```python
import torch

def _softmax(x, axis=-1):
    return torch.softmax(x, dim=axis)
def _gelu(x):
    return torch.nn.functional.gelu(x, approximate="tanh")
def _silu(x):
    return torch.nn.functional.silu(x)
def _sigmoid(x):
    return torch.sigmoid(x)
def _layernorm(x, axis=-1, eps=1e-5):
    m = x.mean(dim=axis, keepdim=True)
    v = x.var(dim=axis, keepdim=True, unbiased=False)
    return (x - m) / torch.sqrt(v + eps)
def _scatter_add(tgt, idx, src, axis=0):
    return tgt.clone().index_add_(axis, idx, src)
def _segment_sum(src, seg, n):
    out = torch.zeros((n,) + src.shape[1:], dtype=src.dtype)
    return out.index_add_(0, seg, src)
def _pad(x, pw):
    flat = tuple(v for pair in reversed(pw) for v in pair)
    return torch.nn.functional.pad(x, flat)

kernel_name = 'parallel_sum__ssm_conv_s5__dense_activation_silu__prompt'

def setup_inputs():

    _w = (lambda a: (lambda t: t.to(torch.bfloat16) if t.is_floating_point() else t)(torch.as_tensor(a)))
    def _A_setup():
        B, S, D = 1, 2048, 448
        P = D
        Lambda_re = -0.5 * (lambda _x: torch.exp(torch.as_tensor(_x)))((lambda *s: torch.randn(*s, dtype=torch.bfloat16) * 0.2)(P))
        Lambda_im = (lambda *s: torch.randn(*s, dtype=torch.bfloat16) * 0.8)(P) * 1.0
        B_re = (lambda *s: torch.randn(*s, dtype=torch.bfloat16) * 0.2)(P, D) * (D ** -0.5)
        B_im = (lambda *s: torch.randn(*s, dtype=torch.bfloat16) * 0.2)(P, D) * (D ** -0.5)
        C_re = (lambda *s: torch.randn(*s, dtype=torch.bfloat16) * 0.2)(D, P) * (P ** -0.5)
        C_im = (lambda *s: torch.randn(*s, dtype=torch.bfloat16) * 0.2)(D, P) * (P ** -0.5)
        log_dt = (lambda *s: torch.randn(*s, dtype=torch.bfloat16) * 0.2)(P) * 0.3 - 2.0
        Dskip = (lambda *s: torch.randn(*s, dtype=torch.bfloat16) * 0.05)(D)
        return {
            "x": _w((lambda *s: torch.randn(*s, dtype=torch.bfloat16) * 0.05)(B, S, D)),
            "Lambda_re": _w(Lambda_re),
            "Lambda_im": _w(Lambda_im),
            "B_re": _w(B_re),
            "B_im": _w(B_im),
            "C_re": _w(C_re),
            "C_im": _w(C_im),
            "log_dt": _w(log_dt),
            "Dskip": _w(Dskip),
        }
    _A_in = _A_setup()

    def _B_setup():
        B, S, D, F = 1, 2048, 448, 1792
        return {
            "x": _w((lambda *s: torch.randn(*s, dtype=torch.bfloat16) * 0.05)(B, S, D)),
            "w1": _w((lambda *s: torch.randn(*s, dtype=torch.bfloat16) * 0.8)(D, F) * (D ** -0.5)),
            "w2": _w((lambda *s: torch.randn(*s, dtype=torch.bfloat16) * 0.2)(F, D) * (F ** -0.5)),
        }
    _B_in = _B_setup()

    return {
        "A_x": _A_in["x"],
        "A_Lambda_re": _A_in["Lambda_re"],
        "A_Lambda_im": _A_in["Lambda_im"],
        "A_B_re": _A_in["B_re"],
        "A_B_im": _A_in["B_im"],
        "A_C_re": _A_in["C_re"],
        "A_C_im": _A_in["C_im"],
        "A_log_dt": _A_in["log_dt"],
        "A_Dskip": _A_in["Dskip"],
        "B_x": _B_in["x"],
        "B_w1": _B_in["w1"],
        "B_w2": _B_in["w2"],
    }

def reference(A_x, A_Lambda_re, A_Lambda_im, A_B_re, A_B_im, A_C_re, A_C_im, A_log_dt, A_Dskip, B_x, B_w1, B_w2):
    def _A_ref(x, Lambda_re, Lambda_im, B_re, B_im, C_re, C_im, log_dt, Dskip):
        Bsz, L, H = x.shape
        Lam = Lambda_re + 1j * Lambda_im
        Bmat = B_re + 1j * B_im
        Cmat = C_re + 1j * C_im
        dt = torch.exp(log_dt)
        Lam_bar = torch.exp(dt * Lam)
        B_bar = ((Lam_bar - 1.0) / Lam)[:, None] * Bmat
        Bu = torch.einsum("bld,pd->blp", x + 0j, B_bar)
        h = torch.zeros_like(Bu[:, 0, :])
        hs = []
        for t in range(L):
            h = Lam_bar[None, :] * h + Bu[:, t, :]
            hs.append(h)
        hseq = torch.stack(hs, 1)
        y = 2.0 * torch.einsum("blp,dp->bld", hseq, Cmat).real + x * Dskip[None, None, :]
        return y

    def _B_ref(x, w1, w2):
        h = torch.einsum("bsd,df->bsf", x, w1)
        h = _silu(h)
        out = torch.einsum("bsf,fd->bsd", h, w2)
        return out

    x = A_x
    xn = _layernorm(x, axis=-1)
    return x + _A_ref(xn, A_Lambda_re, A_Lambda_im, A_B_re, A_B_im, A_C_re, A_C_im, A_log_dt, A_Dskip) + _B_ref(xn, B_w1, B_w2)
```

```python
import re

REG_RE = re.compile(r'^(-|\|)?(v|a|s)(\d+)\|?$')
RNG_RE = re.compile(r'^(-)?(v|a|s)\[(\d+):(\d+)\]$')

def regs_of(tok):
    tok = tok.strip()
    if tok.startswith('abs(') or tok.startswith('-abs('):
        tok = tok[tok.index('(') + 1:-1]
    m = REG_RE.match(tok)
    if m: return [(m.group(2), int(m.group(3)))]
    m = RNG_RE.match(tok)
    if m: return [(m.group(2), i) for i in range(int(m.group(3)), int(m.group(4)) + 1)]
    if tok == 'vcc': return [('vcc', 0)]
    if tok == 'exec': return [('exec', 0)]
    if tok == 'm0': return [('m0', 0)]
    return []

def split_ops(s):
    out, depth, cur = [], 0, ''
    for ch in s:
        if ch in '[(': depth += 1
        if ch in '])': depth -= 1
        if ch == ',' and depth == 0:
            out.append(cur.strip()); cur = ''
        else: cur += ch
    if cur.strip(): out.append(cur.strip())
    return out

TRANS = ('v_exp_f32', 'v_log_f32', 'v_rcp_f32', 'v_rsq_f32', 'v_sqrt_f32', 'v_sin_f32', 'v_cos_f32')

class Ins:
    __slots__ = ('text', 'op', 'kind', 'rd', 'wr', 'tok', 'need', 'srcC', 'data', 'width', 'note')
    def __init__(self, text, tok=None, need=None):
        self.text = text; self.tok = tok; self.need = need or []
        self.srcC = []; self.data = []; self.width = 0; self.note = None
        t = text.strip()
        if t.endswith(':') or t.startswith('.') or t.startswith(';'):
            self.op = ''; self.kind = 'label'; self.rd = []; self.wr = []; return
        parts = t.split(None, 1)
        op = parts[0]; self.op = op
        rest = parts[1] if len(parts) > 1 else ''
        ops = split_ops(rest)
        mods = ''
        if ops:
            l = ops[-1].split(None, 1)
            ops[-1] = l[0]
            mods = l[1] if len(l) > 1 else ''
        R = [regs_of(o) for o in ops]
        flat = lambda xs: [r for x in xs for r in x]
        rd, wr = [], []
        if op.startswith('v_mfma'):
            self.kind = 'mfma'; wr = R[0]; rd = flat(R[1:]); self.srcC = R[3]
        elif op.startswith('buffer_load'):
            if ' lds' in (' ' + mods):
                self.kind = 'dma'; rd = flat(R) + [('m0', 0)]
            else:
                self.kind = 'vload'; wr = R[0]; rd = flat(R[1:])
        elif op.startswith('global_load'):
            self.kind = 'vload'; wr = R[0]; rd = flat(R[1:])
        elif op.startswith('buffer_store') or op.startswith('buffer_atomic'):
            self.kind = 'vstore'; rd = flat(R); self.data = R[0]; self.width = len(R[0])
        elif op.startswith('ds_read'):
            self.kind = 'dsread'; wr = R[0]; rd = flat(R[1:])
        elif op.startswith('ds_write'):
            self.kind = 'dswrite'; rd = flat(R); self.data = flat(R[1:])
        elif op.startswith('s_load') or op in ('s_memtime', 's_memrealtime'):
            self.kind = 'smem'; wr = R[0]; rd = flat(R[1:])
        elif op == 's_waitcnt': self.kind = 'wait'
        elif op == 's_nop': self.kind = 'nop'; self.width = int(ops[0], 0) + 1
        elif op == 's_barrier': self.kind = 'barrier'
        elif op.startswith('s_cbranch') or op in ('s_branch', 's_endpgm', 's_setpc_b64'):
            self.kind = 'branch'
            if 'vcc' in op: rd = [('vcc', 0)]
            if 'exec' in op: rd = [('exec', 0)]
        elif op.startswith('s_cmp') or op in ('s_setprio', 's_sleep'):
            self.kind = 'salu'; rd = flat(R)
        elif op.startswith('s_'):
            self.kind = 'salu'; wr = R[0]; rd = flat(R[1:])
            if 'saveexec' in op: wr = wr + [('exec', 0)]; rd = rd + [('exec', 0)]
        elif op.startswith('v_'):
            base = op.replace('_e32', '').replace('_e64', '')
            self.kind = 'trans' if base in TRANS else ('dot' if base.startswith('v_dot') else 'valu')
            wr = R[0]; rd = flat(R[1:])
            if base.startswith(('v_fmac', 'v_dot2c', 'v_pk_fmac')): rd = rd + R[0]
            if base.startswith('v_permlane') and 'swap' in base: wr = R[0] + R[1]; rd = R[0] + R[1]; self.kind = 'perm'
            if base.startswith('v_cndmask') and len(ops) == 3: rd = rd + [('vcc', 0)]
            if base.startswith('v_cmpx'): wr = wr + [('exec', 0)]
            if '_dpp' in base or 'row_' in mods or 'quad_perm' in mods:
                self.note = 'dpp'; rd = rd + R[0]
            if base.startswith(('v_readfirstlane', 'v_readlane')): self.note = 'rl'
            if base.startswith('v_writelane'): rd = rd + R[0]
            if base.startswith(('v_add_co', 'v_sub_co', 'v_addc_co')): wr = R[0] + R[1]; rd = flat(R[2:])
        else:
            raise ValueError('unknown op ' + text)
        self.rd = rd; self.wr = wr

VALUISH = ('valu', 'trans', 'dot', 'perm')

class Prog:
    def __init__(self):
        self.ins = []
    def __call__(self, text, tok=None, need=None):
        for line in text.split('\n'):
            if line.strip():
                self.ins.append(Ins(line.strip(), tok, need))
                need = None
        return self
    def extend(self, lst): self.ins.extend(lst)
    def waitvm(self, *toks):
        i = Ins('; waitvm ' + ','.join(map(str, toks))); i.kind = 'needvm'; i.need = list(toks); self.ins.append(i)
    def waitlgkm(self, *toks):
        i = Ins('; waitlgkm ' + ','.join(map(str, toks))); i.kind = 'needlgkm'; i.need = list(toks); self.ins.append(i)
    def reset(self):
        i = Ins('; reset'); i.kind = 'reset'; self.ins.append(i)

def insert_waits(ins):
    out = []
    vm, lg = [], []
    def need_from(fifo, pred):
        idx = -1
        for k, e in enumerate(fifo):
            if pred(e): idx = k
        return idx
    def emit_wait(vn, ln):
        parts = []
        if vn is not None: parts.append('vmcnt(%d)' % vn)
        if ln is not None: parts.append('lgkmcnt(%d)' % ln)
        out.append(Ins('s_waitcnt ' + ' '.join(parts)))
    for i in ins:
        if i.kind == 'reset':
            vm, lg = [], []; continue
        vn = ln = None
        touched = set(i.rd) | set(i.wr)
        if i.kind == 'needvm':
            k = need_from(vm, lambda e: e[1] in i.need)
            if k >= 0: vn = len(vm) - 1 - k
        elif i.kind == 'needlgkm':
            k = need_from(lg, lambda e: e[1] in i.need)
            if k >= 0: ln = len(lg) - 1 - k
        elif i.kind == 'wait':
            m = re.search(r'vmcnt\((\d+)\)', i.text)
            if m: n = int(m.group(1)); vm = vm[len(vm) - n:] if n < len(vm) else vm; vm = vm if n else []
            m = re.search(r'lgkmcnt\((\d+)\)', i.text)
            if m:
                n = int(m.group(1))
                if n == 0: lg = []
                elif not any(e[2] for e in lg): lg = lg[len(lg) - n:] if n < len(lg) else lg
            out.append(i); continue
        elif touched:
            k = need_from(vm, lambda e: e[0] & touched)
            if k >= 0: vn = len(vm) - 1 - k
            k = need_from(lg, lambda e: e[0] & touched)
            if k >= 0: ln = len(lg) - 1 - k
        if vn is not None:
            vn = min(vn, 63); vm = vm[len(vm) - vn:] if vn else []
        if ln is not None:
            if any(e[2] for e in lg): ln = 0
            ln = min(ln, 15); lg = lg[len(lg) - ln:] if ln else []
        if vn is not None or ln is not None: emit_wait(vn, ln)
        if i.kind in ('needvm', 'needlgkm'): continue
        out.append(i)
        if i.kind in ('vload', 'dma', 'vstore'):
            vm.append((set(i.wr), i.tok, False))
            assert len(vm) <= 63, 'more than 63 VMEM ops outstanding at: ' + i.text
        elif i.kind in ('dsread', 'dswrite'): lg.append((set(i.wr), i.tok, False))
        elif i.kind == 'smem': lg.append((set(i.wr), i.tok, True))
    return out

def required_gap(p, c):
    g = 0
    pw, cr, cw = set(p.wr), set(c.rd), set(c.wr)
    pv = {r for r in pw if r[0] in 'va'}
    ps = {r for r in pw if r[0] in ('s', 'vcc')}
    if p.kind == 'mfma':
        if c.kind == 'mfma':
            if pv & (cr - set(c.srcC)): g = max(g, 12)
            if pv & set(c.srcC) and set(c.srcC) != pv: g = max(g, 10)
            if pv & cw and cw != pv: g = max(g, 12)
        elif c.kind in VALUISH or c.kind in ('vload', 'dma', 'vstore', 'dsread', 'dswrite'):
            if pv & (cr | cw): g = max(g, 12)
            if c.kind in VALUISH and set(p.srcC) & cw: g = max(g, 7)
    if p.kind in VALUISH:
        if c.kind == 'mfma' and pv & cr: g = max(g, 2)
        if p.kind == 'trans' and c.kind in ('valu', 'dot', 'perm') and pv & cr: g = max(g, 1)
        if p.kind == 'dot' and c.kind in VALUISH + ('mfma', 'vstore', 'dswrite', 'vload', 'dsread', 'dma') and pv & (cr | cw):
            same_acc = (c.op == p.op and not (pv & set(r for r in c.rd if r not in c.wr)) and c.op.startswith('v_dot2c'))
            if not same_acc: g = max(g, 3)
        if c.kind == 'perm' and pv & cr: g = max(g, 2)
        if c.note == 'dpp' and pv & cr: g = max(g, 2)
        if c.note == 'rl' and pv & cr: g = max(g, 1)
        if ps:
            if c.kind in ('vload', 'dma', 'vstore') and ps & cr: g = max(g, 5)
            if c.kind in VALUISH and ps & cr: g = max(g, 4 if c.note == 'rl' else 2)
            if c.kind == 'branch' and ps & cr: g = max(g, 5)
            if c.kind == 'salu' and ps & cr: g = max(g, 2)
        if ('exec', 0) in pw:
            if c.kind == 'mfma' or c.kind == 'perm' or c.note == 'rl': g = max(g, 4)
            if c.note == 'dpp': g = max(g, 5)
    if p.kind == 'salu':
        if ('m0', 0) in pw and c.kind == 'dma': g = max(g, 1)
    if p.kind == 'vstore' and p.width >= 3:
        if set(p.data) & cw: g = max(g, 2 if c.kind in VALUISH else 1)
    return g

def pad_hazards(ins):
    out = []
    for c in ins:
        if c.kind in ('label',):
            out.append(c); continue
        need = 0; dist = 0
        for p in reversed(out):
            if p.kind == 'label':
                continue
            g = required_gap(p, c)
            if g > dist: need = max(need, g - dist)
            dist += p.width if p.kind == 'nop' else 1
            if dist >= 13: break
        while need > 0:
            n = min(need, 16); out.append(Ins('s_nop %d' % (n - 1))); need -= n
        out.append(c)
    return out

def finalize(prog):
    return pad_hazards(insert_waits(prog.ins))

def text_of(ins):
    return '\n'.join(('' if i.kind == 'label' else '    ') + i.text for i in ins) + '\n'

def interleave(main, fill, total_weight=None):
    out = []; n = len(main); k = 0
    for gi, g in enumerate(main):
        out.extend(g)
        tgt = (len(fill) * (gi + 1)) // n
        out.extend(fill[k:tgt]); k = tgt
    out.extend(fill[k:])
    return out
```

```python
import sys, os
sys.path.insert(0, os.path.dirname(os.path.abspath(__file__)))
from dsl import *

KNAME = 'parallel_sum__ssm_conv_s5__dense_activation_silu__prompt_kernel'
OPT = dict(stamps=False, rot=True, w1pf=True, spin=1 << 16)
for a in sys.argv[2:]:
    k, v = a.split('='); OPT[k] = int(v)

WS_EPOCH = 0
WS_PF    = 0x1000
WS_FL    = 0x2000
WS_EG    = 0x10000
WS_STAMP = 0x80000
WS_W2F   = 0x100000
WS_HID   = 0x400000
WS_END   = WS_HID + 64 * 168 * 1024
L0     = 8192
L_XW   = 24576
L_SW   = L0 + 98304
L_TR   = L0 + 114688
L_MISC = 0
L_RS   = L_MISC
L_MR   = L_MISC + 512
L_EW   = L_MISC + 1536
LDS_BYTES = 163840
LOG2E = 0x3fb8aa3b
NLOG2E = 0xbfb8aa3b
INV2PI = 0x3e22f983

sR, sC, sW, sROT, sTL, sTH, sONE, sMHI = 8, 9, 10, 11, 12, 13, 14, 15
SX, SBRE, SBIM, SW1, SWS, SOUT, SLRE, SLIM, SLDT, SDSK, SCODE = 40, 44, 48, 52, 56, 60, 64, 68, 72, 76, 80
SEG = 44
KB = [84 + j for j in range(7)]
W1K = [91 + j for j in range(7)]
sT0, sT1, sLW, sT2 = 98, 99, 100, 101
sHW, sCB, sHALF, sRT0, sPMASK, sW2, sH0, sH1, sSPIN, sFW = 16, 17, 18, 19, 20, 21, 22, 23, 24, 25
sT3, sT4, sT5, sT6 = 26, 27, 28, 29
sP0 = 30
sST = 32
def srd(b): return 's[%d:%d]' % (b, b + 3)
def v4(b): return ('v[%d:%d]' % (b, b + 3)) if b < 256 else ('a[%d:%d]' % (b - 256, b - 253))
def v2(b): return ('v[%d:%d]' % (b, b + 1)) if b < 256 else ('a[%d:%d]' % (b - 256, b - 255))
def v16(b): return 'v[%d:%d]' % (b, b + 15)

vL = 1; vL16 = 2; vT0, vT1, vT2, vT3 = 3, 4, 5, 6
vM, vS, vNK, vRSv = 7, 8, 9, 10
vZ = 11
vH = 12
vP = 13
vFA = 14
vDUM = 15
X = 16
SRE, SIM, F0, F1 = 128, 144, 160, 176
vXO = [192, 193, 194, 195]
vBO = 196
vW1O = [197, 198]
vRX = [199, 200, 201, 202]
vRF = [[203, 204], [205, 206]]
L1r, L1i, N1i, L2r, L2i, L3r, L3i, L4r, L4i, L32r, L32i, L128r, L128i, L256r, L256i = range(207, 222)
vTW, vTRr = 222, 223
TMP = 224
WB = 256 + 224

stamp_slots = []
def stamp(p, name):
    if not OPT['stamps']: return
    k = len(stamp_slots); stamp_slots.append(name)
    p('s_memtime s[%d:%d]' % (sP0, sP0 + 1))
    p('s_waitcnt lgkmcnt(0)')
    p('v_writelane_b32 v%d, s%d, %d' % (vDUM, sP0, k))

def mk_srd(p, b, ptr, nbytes):
    p('s_mov_b32 s%d, s%d' % (b, ptr)); p('s_mov_b32 s%d, s%d' % (b + 1, ptr + 1))
    p('s_mov_b32 s%d, %d' % (b + 2, nbytes)); p('s_mov_b32 s%d, 0x20000' % (b + 3))

def bf16_round(p, dst, src):
    p('v_cvt_pk_bf16_f32 v%d, v%d, v%d' % (dst, src, src))
    p('v_lshlrev_b32 v%d, 16, v%d' % (dst, dst))

def lam_from(p, lre, lim, ldt, outr, outi, t0, t1):
    p('v_lshlrev_b32 v%d, 16, v%d' % (lre, lre))
    p('v_lshlrev_b32 v%d, 16, v%d' % (lim, lim))
    p('v_lshlrev_b32 v%d, 16, v%d' % (ldt, ldt))
    p('v_mul_f32 v%d, 0x%x, v%d' % (ldt, LOG2E, ldt))
    p('v_exp_f32 v%d, v%d' % (ldt, ldt))
    bf16_round(p, ldt, ldt)
    p('v_mul_f32 v%d, v%d, v%d' % (t0, ldt, lre))
    p('v_mul_f32 v%d, v%d, v%d' % (t1, ldt, lim))
    p('v_mul_f32 v%d, 0x%x, v%d' % (t0, LOG2E, t0))
    p('v_exp_f32 v%d, v%d' % (t0, t0))
    p('v_mul_f32 v%d, 0x%x, v%d' % (t1, INV2PI, t1))
    p('v_fract_f32 v%d, v%d' % (t1, t1))
    p('v_cos_f32 v%d, v%d' % (outr, t1))
    p('v_sin_f32 v%d, v%d' % (outi, t1))
    p('v_mul_f32 v%d, v%d, v%d' % (outr, t0, outr))
    p('v_mul_f32 v%d, v%d, v%d' % (outi, t0, outi))

def cmul(p, dr, di, ar, ai, br, bi):
    p('v_mul_f32 v%d, v%d, v%d' % (dr, ar, br))
    p('v_mul_f32 v%d, v%d, v%d' % (di, ar, bi))
    p('v_fma_f32 v%d, -v%d, v%d, v%d' % (dr, ai, bi, dr))
    p('v_fmac_f32 v%d, v%d, v%d' % (di, ai, br))

def cmac(p, dr, di, ar, ai, br, bi):
    p('v_fmac_f32 v%d, v%d, v%d' % (dr, ar, br))
    p('v_fmac_f32 v%d, v%d, v%d' % (di, ar, bi))
    p('v_fma_f32 v%d, -v%d, v%d, v%d' % (dr, ai, bi, dr))
    p('v_fmac_f32 v%d, v%d, v%d' % (di, ai, br))

def tag_setup(p, vlo):
    p('v_readfirstlane_b32 s%d, v%d' % (sTL, vlo))
    p('v_readfirstlane_b32 s%d, v%d' % (sTH, vlo + 1))
    p('s_mul_i32 s%d, s%d, 0x9e3779b1' % (sTL, sTL)); p('s_add_u32 s%d, s%d, 0x7f4a7c15' % (sTL, sTL))
    p('s_mul_i32 s%d, s%d, 0x85ebca6b' % (sTH, sTH)); p('s_add_u32 s%d, s%d, 0xc2b2ae35' % (sTH, sTH))

retry_blocks = []
def poll_check(p, name, reg, mask_s, reload_text):
    def cmp_(q):
        q('v_cmp_ne_u32 vcc, s%d, v%d' % (sTL, reg))
        q('v_cmp_ne_u32 s[%d:%d], s%d, v%d' % (sP0, sP0 + 1, sTH, reg + 1))
        q('s_or_b32 s%d, vcc_lo, s%d' % (sT0, sP0), )
        q('s_and_b32 s%d, s%d, s%d' % (sT0, sT0, mask_s))
    p('v_cmp_ne_u32 vcc, s%d, v%d' % (sTL, reg))
    p('v_cmp_ne_u32 s[%d:%d], s%d, v%d' % (sP0, sP0 + 1, sTH, reg + 1))
    p('s_nop 1')
    p('s_or_b32 s%d, vcc_lo, s%d' % (sT0, sP0))
    p('s_and_b32 s%d, s%d, s%d' % (sT0, sT0, mask_s))
    p('s_cbranch_scc1 L_retry_%s' % name)
    p('L_ok_%s:' % name)
    q = Prog()
    q('L_retry_%s:' % name)
    q('s_mov_b32 s%d, 0' % sSPIN)
    q('L_loop_%s:' % name)
    q('s_sleep 1')
    q(reload_text)
    q('s_waitcnt vmcnt(0)')
    q('v_cmp_ne_u32 vcc, s%d, v%d' % (sTL, reg))
    q('v_cmp_ne_u32 s[%d:%d], s%d, v%d' % (sP0, sP0 + 1, sTH, reg + 1))
    q('s_add_u32 s%d, s%d, 1' % (sSPIN, sSPIN))
    q('s_cmp_gt_u32 s%d, %d' % (sSPIN, OPT['spin']))
    q('s_cbranch_scc1 L_ok_%s' % name)
    q('s_or_b32 s%d, vcc_lo, s%d' % (sT0, sP0))
    q('s_and_b32 s%d, s%d, s%d' % (sT0, sT0, mask_s))
    q('s_cbranch_scc1 L_loop_%s' % name)
    q('s_branch L_ok_%s' % name)
    retry_blocks.append(q)

def flag_store(p, voff_zero, soff, imm=0):
    p('s_mov_b64 exec, 1')
    p('buffer_store_dwordx2 v[%d:%d], v%d, %s, s%d offen offset:%d sc1' % (TMP + 30, TMP + 31, voff_zero, srd(SWS), soff, imm))
    p('s_mov_b64 exec, -1')

def prologue_common(p):
    p('s_cmp_ge_u32 s2, 256')
    p('s_cbranch_scc1 L_exit')
    p('s_load_dwordx16 s[16:31], s[0:1], 0')
    p('s_load_dwordx8 s[32:39], s[0:1], 64')
    p('s_load_dwordx2 s[4:5], s[0:1], 96')
    p('s_load_dwordx2 s[6:7], s[0:1], 112')
    p('v_lshrrev_b32 v%d, 6, v0' % vT0)
    p('v_and_b32 v%d, 63, v0' % vL)
    p('v_readfirstlane_b32 s%d, v%d' % (sW, vT0))
    p('v_lshlrev_b32 v%d, 4, v%d' % (vL16, vL))
    p('v_mov_b32 v%d, 0' % vZ)
    p('v_lshrrev_b32 v%d, 5, v%d' % (vH, vL))
    p('v_and_b32 v%d, 31, v%d' % (vP, vL))
    p('s_and_b32 s%d, s2, 7' % sT0)
    p('s_lshr_b32 s%d, s2, 3' % sT1)
    p('s_mov_b32 s%d, 0x3f803f80' % sONE)
    p('s_mov_b32 s%d, 0xffff0000' % sMHI)
    p('s_getpc_b64 s[%d:%d]' % (SCODE, SCODE + 1))
    p('L_pc:')
    p('s_sub_u32 s%d, s%d, L_pc-%s' % (SCODE, SCODE, KNAME))
    p('s_subb_u32 s%d, s%d, 0' % (SCODE + 1, SCODE + 1))
    p('s_mov_b32 s%d, L_code_end-%s' % (SCODE + 2, KNAME))
    p('s_mov_b32 s%d, 0x20000' % (SCODE + 3))
    p('s_cmp_ge_u32 s%d, 28' % sT1)
    p('s_cbranch_scc1 L_prep')

def main_path(p):
    p('s_mul_i32 s%d, s%d, 37' % (sT2, sT1)); p('s_lshr_b32 s%d, s%d, 8' % (sT2, sT2))
    p('s_mul_i32 s3, s%d, 7' % sT2); p('s_sub_u32 s%d, s%d, s3' % (sROT, sT1))
    p('s_lshr_b32 s%d, s%d, 1' % (sR, sT0)); p('s_lshl_b32 s%d, s%d, 2' % (sR, sR)); p('s_add_u32 s%d, s%d, s%d' % (sR, sR, sT2))
    p('s_and_b32 s3, s%d, 1' % sT0)
    p('s_mul_i32 s%d, s3, 7' % sC); p('s_add_u32 s%d, s%d, s%d' % (sC, sC, sROT))
    p('s_mul_i32 s%d, s%d, %d' % (sLW, sW, L_XW)); p('s_add_u32 s%d, s%d, %d' % (sLW, sLW, L0))
    for j in range(7):
        if OPT['rot']:
            p('s_add_u32 s%d, s%d, %d' % (sT0, sROT, j))
            p('s_cmp_ge_u32 s%d, 7' % sT0)
            p('s_cselect_b32 s%d, 7, 0' % sT1)
            p('s_sub_u32 s%d, s%d, s%d' % (sT0, sT0, sT1))
            p('s_lshl_b32 s%d, s%d, 7' % (KB[j], sT0))
        else:
            p('s_mov_b32 s%d, %d' % (KB[j], j * 128))
    p('v_lshrrev_b32 v%d, 3, v%d' % (vT0, vL))
    p('v_mul_u32_u24 v%d, 896, v%d' % (vT0, vT0))
    p('v_lshrrev_b32 v%d, 4, v%d' % (vT1, vL))
    p('v_and_b32 v%d, 7, v%d' % (vT2, vL))
    p('v_xor_b32 v%d, v%d, v%d' % (vT1, vT1, vT2))
    p('v_lshl_add_u32 v%d, v%d, 4, v%d' % (vT0, vT1, vT0))
    p('v_xor_b32 v%d, 64, v%d' % (vT1, vT0))
    p('s_lshl_b32 s%d, s%d, 2' % (sT0, sR)); p('s_add_u32 s%d, s%d, s%d' % (sT0, sT0, sW))
    p('s_mul_i32 s%d, s%d, %d' % (sT1, sT0, 32 * 896))
    p('v_add_u32 v%d, s%d, v%d' % (vXO[0], sT1, vT0))
    p('v_add_u32 v%d, s%d, v%d' % (vXO[1], sT1, vT1))
    p('v_add_u32 v%d, %d, v%d' % (vXO[2], 14336, vXO[0]))
    p('v_add_u32 v%d, %d, v%d' % (vXO[1], 7168, vXO[1]))
    p('v_add_u32 v%d, %d, v%d' % (vXO[3], 14336, vXO[1]))
    p('s_waitcnt lgkmcnt(0)')
    mk_srd(p, SX, 16, 2048 * 896)
    mk_srd(p, SWS, 6, WS_END)
    mk_srd(p, SLRE, 18, 896); mk_srd(p, SLIM, 20, 896); mk_srd(p, SLDT, 30, 896)
    def x_dma(j):
        for rg in range(4):
            p('s_add_u32 m0, s%d, %d' % (sLW, j * 4096 + rg * 1024))
            p('buffer_load_dwordx4 v%d, %s, s%d offen lds' % (vXO[rg], srd(SX), KB[j]), tok=('x', j))
    x_dma(0)
    p('buffer_load_dwordx2 v[%d:%d], v%d, %s, 0 offen sc1' % (TMP + 28, TMP + 29, vZ, srd(SWS)))
    p('s_lshl_b32 s%d, s%d, 6' % (sT1, sC))
    p('v_lshlrev_b32 v%d, 1, v%d' % (vT2, vP))
    p('buffer_load_ushort v%d, v%d, %s, s%d offen' % (TMP + 0, vT2, srd(SLRE), sT1))
    p('buffer_load_ushort v%d, v%d, %s, s%d offen' % (TMP + 1, vT2, srd(SLIM), sT1))
    p('buffer_load_ushort v%d, v%d, %s, s%d offen' % (TMP + 2, vT2, srd(SLDT), sT1))
    for j in range(1, 6): x_dma(j)
    for rg in range(4):
        p('buffer_load_dwordx4 %s, v%d, %s, s%d offen' % (v4(F0 + 4 * rg), vXO[rg], srd(SX), KB[6]))
    mk_srd(p, SBRE, 22, 448 * 896); mk_srd(p, SBIM, 24, 448 * 896); mk_srd(p, SW1, 36, 448 * 3584)
    p('s_and_b32 s%d, s%d, 1' % (sT1, sW)); p('s_lshl_b32 s%d, s%d, 6' % (sT1, sT1))
    p('v_xor_b32 v%d, s%d, v%d' % (vBO, sT1, vT0))
    p('s_mul_i32 s%d, s%d, 7168' % (sT1, sW)); p('s_mul_i32 s%d, s%d, %d' % (sT2, sC, 32 * 896)); p('s_add_u32 s%d, s%d, s%d' % (sT1, sT1, sT2))
    p('v_add_u32 v%d, s%d, v%d' % (vBO, sT1, vBO))
    p('s_lshl_b32 s%d, s%d, 10' % (sT2, sW))
    for j in range(7):
        for T in range(2):
            p('s_add_u32 m0, s%d, %d' % (sT2, L_SW + T * 28672 + j * 4096))
            p('buffer_load_dwordx4 v%d, %s, s%d offen lds' % (vBO, srd(SBRE if T == 0 else SBIM), KB[j]), tok='ssmw')
    p('v_lshlrev_b32 v%d, 7, v0' % vT2)
    p('buffer_load_dword v%d, v%d, %s, 0 offen' % (F1, vT2, srd(SCODE)), tok='cpf')
    mk_srd(p, SOUT, 4, 2048 * 1792); mk_srd(p, SDSK, 32, 896)
    for j in range(7): p('s_mul_i32 s%d, s%d, 1792' % (W1K[j], KB[j]))
    p('v_lshrrev_b32 v%d, 3, v%d' % (vT0, vL))
    p('v_mul_u32_u24 v%d, 3584, v%d' % (vT0, vT0))
    p('v_lshrrev_b32 v%d, 2, v%d' % (vT1, vL)); p('v_and_b32 v%d, 4, v%d' % (vT1, vT1))
    p('v_and_b32 v%d, 7, v%d' % (vT2, vL)); p('v_xor_b32 v%d, v%d, v%d' % (vT1, vT1, vT2))
    p('v_lshl_add_u32 v%d, v%d, 4, v%d' % (vT0, vT1, vT0))
    p('s_mul_i32 s%d, s%d, %d' % (sT1, sW, 16 * 3584)); p('s_lshl_b32 s%d, s%d, 8' % (sT2, sC)); p('s_add_u32 s%d, s%d, s%d' % (sT1, sT1, sT2))
    p('v_add_u32 v%d, s%d, v%d' % (vW1O[0], sT1, vT0))
    p('v_add_u32 v%d, %d, v%d' % (vW1O[1], 8 * 3584, vW1O[0]))
    if OPT['w1pf']:
        p('v_lshrrev_b32 v%d, 1, v0' % vT1); p('v_mul_u32_u24 v%d, 3584, v%d' % (vT1, vT1))
        p('v_and_b32 v%d, 1, v0' % vT2); p('v_lshl_add_u32 v%d, v%d, 7, v%d' % (vT1, vT2, vT1))
        p('s_and_b32 s%d, s%d, 3' % (sT1, sR)); p('s_mul_i32 s%d, s%d, %d' % (sT1, sT1, 112 * 3584)); p('s_add_u32 s%d, s%d, s%d' % (sT1, sT1, sT2))
        p('buffer_load_dword v%d, v%d, %s, s%d offen' % (F1 + 1, vT1, srd(SW1), sT1), tok='cpf')
    p('v_lshrrev_b32 v%d, 1, v%d' % (vT0, vP)); p('v_and_b32 v%d, 7, v%d' % (vT0, vT0))
    p('v_xor_b32 v%d, v%d, v%d' % (vT0, vT0, vH)); p('v_lshlrev_b32 v%d, 4, v%d' % (vT0, vT0))
    p('v_lshl_add_u32 v%d, v%d, 7, v%d' % (vT0, vP, vT0))
    p('v_add_u32 v%d, s%d, v%d' % (vRX[0], sLW, vT0))
    for i in range(1, 4): p('v_xor_b32 v%d, %d, v%d' % (vRX[i], i << 5, vRX[0]))
    p('v_lshrrev_b32 v%d, 2, v%d' % (vT0, vL)); p('v_and_b32 v%d, 3, v%d' % (vT0, vT0))
    p('v_lshlrev_b32 v%d, 7, v%d' % (vT1, vT0))
    p('v_lshl_add_u32 v%d, v%d, 10, v%d' % (vT1, vH, vT1))
    p('v_and_b32 v%d, 2, v%d' % (vT0, vT0)); p('v_lshl_add_u32 v%d, v%d, 5, v%d' % (vT1, vT0, vT1))
    p('v_and_b32 v%d, 16, v%d' % (vT0, vL)); p('v_lshl_add_u32 v%d, v%d, 1, v%d' % (vT1, vT0, vT1))
    p('v_and_b32 v%d, 3, v%d' % (vT0, vL)); p('v_lshl_add_u32 v%d, v%d, 3, v%d' % (vRF[0][0], vT0, vT1))
    p('v_add_u32 v%d, %d, v%d' % (vRF[0][0], L0, vRF[0][0]))
    p('v_xor_b32 v%d, 64, v%d' % (vRF[1][0], vRF[0][0]))
    p('v_add_u32 v%d, 0x10000, v%d' % (vRF[0][1], vRF[0][0]))
    p('v_add_u32 v%d, 0x10000, v%d' % (vRF[1][1], vRF[1][0]))
    p('s_mul_i32 s%d, s%d, 4608' % (sT1, sW)); p('s_add_u32 s%d, s%d, %d' % (sT1, sT1, L_TR))
    p('v_mul_u32_u24 v%d, 72, v%d' % (vT0, vP)); p('v_lshl_add_u32 v%d, v%d, 3, v%d' % (vT0, vH, vT0))
    p('v_add_u32 v%d, s%d, v%d' % (vTW, sT1, vT0))
    p('v_lshrrev_b32 v%d, 2, v%d' % (vT0, vL)); p('v_and_b32 v%d, 3, v%d' % (vT0, vT0))
    p('v_lshl_add_u32 v%d, v%d, 3, v%d' % (vT0, vH, vT0)); p('v_mul_u32_u24 v%d, 72, v%d' % (vT0, vT0))
    p('v_and_b32 v%d, 16, v%d' % (vT1, vL)); p('v_lshl_add_u32 v%d, v%d, 1, v%d' % (vT0, vT1, vT0))
    p('v_and_b32 v%d, 3, v%d' % (vT1, vL)); p('v_lshl_add_u32 v%d, v%d, 3, v%d' % (vT0, vT1, vT0))
    p('v_add_u32 v%d, s%d, v%d' % (vTRr, sT1, vT0))
    p('s_mov_b32 s%d, s%d' % (sCB, sROT))
    p('s_mov_b32 s%d, s3' % sHALF)
    p('s_lshl_b32 s%d, s%d, 2' % (sT0, sR)); p('s_add_u32 s%d, s%d, s%d' % (sT1, sT0, sW))
    p('s_mul_i32 s%d, s%d, 168' % (sHW, sT1)); p('s_lshl_b32 s%d, s%d, 2' % (sT2, sC)); p('s_add_u32 s%d, s%d, s%d' % (sHW, sHW, sT2))
    p('s_lshl_b32 s%d, s%d, 10' % (sHW, sHW)); p('s_add_u32 s%d, s%d, %d' % (sHW, sHW, WS_HID))
    p('s_lshl_b32 s%d, s%d, 7' % (sFW, sT1)); p('s_lshl_b32 s%d, s%d, 3' % (sT2, sC)); p('s_add_u32 s%d, s%d, s%d' % (sFW, sFW, sT2))
    p('s_add_u32 s%d, s%d, %d' % (sFW, sFW, WS_FL))
    p('s_lshl_b32 s%d, s%d, 1' % (sT2, sHALF)); p('s_add_u32 s%d, s%d, s%d' % (sRT0, sT0, sT2))
    p('s_mul_i32 s%d, s%d, 14' % (sT2, sW))
    p('s_mul_i32 s%d, s%d, 168' % (sH0, sRT0)); p('s_add_u32 s%d, s%d, s%d' % (sH0, sH0, sT2)); p('s_lshl_b32 s%d, s%d, 10' % (sH0, sH0))
    p('s_add_u32 s%d, s%d, %d' % (sH0, sH0, WS_HID)); p('s_add_u32 s%d, s%d, %d' % (sH1, sH0, 168 * 1024))
    p('s_mul_i32 s%d, s%d, 168' % (sW2, sCB)); p('s_add_u32 s%d, s%d, s%d' % (sW2, sW2, sT2)); p('s_lshl_b32 s%d, s%d, 11' % (sW2, sW2))
    p('s_add_u32 s%d, s%d, %d' % (sW2, sW2, WS_W2F))
    p('s_lshr_b32 s%d, s%d, 2' % (sT2, sT2)); p('s_lshl_b32 s%d, 0x000f000f, s%d' % (sPMASK, sT2))
    p('v_and_b32 v%d, 16, v%d' % (vT0, vL)); p('v_lshlrev_b32 v%d, 3, v%d' % (vT0, vT0))
    p('v_and_b32 v%d, 15, v%d' % (vT1, vL)); p('v_lshl_add_u32 v%d, v%d, 3, v%d' % (vT0, vT1, vT0))
    p('s_lshl_b32 s%d, s%d, 7' % (sT2, sRT0)); p('s_add_u32 s%d, s%d, %d' % (sT2, sT2, WS_FL))
    p('v_add_u32 v%d, s%d, v%d' % (vFA, sT2, vT0))
    lam_from(p, TMP + 0, TMP + 1, TMP + 2, L1r, L1i, TMP + 4, TMP + 5)
    p('v_sub_f32 v%d, 0, v%d' % (N1i, L1i))
    cmul(p, L2r, L2i, L1r, L1i, L1r, L1i)
    cmul(p, L3r, L3i, L2r, L2i, L1r, L1i)
    cmul(p, L4r, L4i, L2r, L2i, L2r, L2i)
    cmul(p, TMP + 4, TMP + 5, L4r, L4i, L4r, L4i)
    cmul(p, TMP + 6, TMP + 7, TMP + 4, TMP + 5, TMP + 4, TMP + 5)
    cmul(p, L32r, L32i, TMP + 6, TMP + 7, TMP + 6, TMP + 7)
    cmul(p, TMP + 4, TMP + 5, L32r, L32i, L32r, L32i)
    cmul(p, L128r, L128i, TMP + 4, TMP + 5, TMP + 4, TMP + 5)
    cmul(p, L256r, L256i, L128r, L128i, L128r, L128i)
    tag_setup(p, TMP + 28)
    p('v_mov_b32 v%d, s%d' % (TMP + 30, sTL)); p('v_mov_b32 v%d, s%d' % (TMP + 31, sTH))
    stamp(p, 'prologue')

    A0, A1, Q0, Q1 = TMP + 8, TMP + 9, TMP + 10, TMP + 11
    for a in (A0, A1, Q0, Q1): p('v_mov_b32 v%d, 0' % a)
    def x_read(j, slot):
        for i in range(4):
            p('ds_read_b128 %s, v%d offset:%d' % (v4(X + 16 * j + 4 * i), vRX[i], slot * 4096), tok=('xr', j))
    def x_stats(j):
        for k in range(16):
            r_ = X + 16 * j + k
            p('v_dot2c_f32_bf16 v%d, s%d, v%d' % (A0 if k % 2 == 0 else A1, sONE, r_))
            p('v_dot2c_f32_bf16 v%d, v%d, v%d' % (Q0 if k % 2 == 0 else Q1, r_, r_))
    p.waitvm(('x', 0)); x_read(0, 0)
    for j in range(1, 6):
        p.waitvm(('x', j)); x_read(j, j)
        x_stats(j - 1)
    p('v_add_u32 v%d, s%d, v%d' % (vT0, sLW, vL16))
    for rg in range(4):
        p('ds_write_b128 v%d, %s offset:%d' % (vT0, v4(F0 + 4 * rg), rg * 1024))
    x_read(6, 0)
    x_stats(5)
    x_stats(6)
    stamp(p, 'x_in')
    dma = Prog()
    for dt in range(2):
        for j in range(7 if dt == 0 else 5):
            for e in range(2):
                l_off = (0 if dt == 0 else 14336 - 128) + (2 * j + e) * 1024
                dma('s_add_u32 m0, s%d, %d' % (sLW, l_off))
                dma('buffer_load_dwordx4 v%d, %s, s%d offen offset:%d lds' % (vW1O[e], srd(SW1), W1K[j], 128 * dt), tok='ffnA' if dt == 0 else 'ffnB')
    p.extend(dma.ins[:12]); dma_rest = dma.ins[12:]
    p('v_add_f32 v%d, v%d, v%d' % (A0, A0, A1)); p('v_add_f32 v%d, v%d, v%d' % (Q0, Q0, Q1))
    p('v_mov_b32 v%d, v%d' % (A1, A0)); p('v_mov_b32 v%d, v%d' % (Q1, Q0))
    p('v_permlane32_swap_b32 v%d, v%d' % (A0, A1)); p('v_permlane32_swap_b32 v%d, v%d' % (Q0, Q1))
    p('v_add_f32 v%d, v%d, v%d' % (A0, A0, A1)); p('v_add_f32 v%d, v%d, v%d' % (Q0, Q0, Q1))
    p('v_mul_f32 v%d, 0x3b124925, v%d' % (A0, A0))
    p('v_mul_f32 v%d, 0x3b124925, v%d' % (Q0, Q0))
    p('v_fma_f32 v%d, -v%d, v%d, v%d' % (Q0, A0, A0, Q0))
    p('v_max_f32 v%d, 0, v%d' % (Q0, Q0))
    bf16_round(p, vM, A0)
    bf16_round(p, Q0, Q0)
    p('v_add_f32 v%d, 0x3727c5ac, v%d' % (Q0, Q0))
    bf16_round(p, Q0, Q0)
    p('v_sqrt_f32 v%d, v%d' % (Q0, Q0))
    bf16_round(p, vS, Q0)
    p('v_rcp_f32 v%d, v%d' % (vRSv, vS))
    p('v_mul_f32 v%d, 0x%x, v%d' % (vNK, NLOG2E, vRSv))
    p('s_lshl_b32 s%d, s%d, 7' % (sT0, sW))
    p('v_lshl_add_u32 v%d, v%d, 2, s%d' % (vT0, vP, sT0))
    p('ds_write_b32 v%d, v%d offset:%d' % (vT0, vRSv, L_RS))
    p('v_lshlrev_b32 v%d, 1, v%d' % (vT0, vT0))
    p('v_mov_b32 v%d, v%d' % (TMP + 12, vM)); p('v_mov_b32 v%d, v%d' % (TMP + 13, vRSv))
    p('ds_write_b64 v%d, v[%d:%d] offset:%d' % (vT0, TMP + 12, TMP + 13, L_MR))
    p('s_sub_u32 s%d, %d, s%d' % (sT0, L_SW, sLW))
    for i in range(4): p('v_add_u32 v%d, s%d, v%d' % (vRX[i], sT0, vRX[i]))

    def d_step(ks):
        q = Prog()
        for k in range(4):
            r_ = X + 4 * ks + k; lo, hi = TMP + 8 + 2 * (k % 2), TMP + 9 + 2 * (k % 2)
            q('v_lshlrev_b32 v%d, 16, v%d' % (lo, r_))
            q('v_and_b32 v%d, s%d, v%d' % (hi, sMHI, r_))
            q('v_sub_f32 v%d, v%d, v%d' % (lo, lo, vM))
            q('v_sub_f32 v%d, v%d, v%d' % (hi, hi, vM))
            q('v_cvt_pk_bf16_f32 v%d, v%d, v%d' % (r_, lo, hi))
        return q.ins
    LEAD = 8
    head = []
    for ks in range(LEAD): head += d_step(ks)
    groups = [head[i:i + 5] for i in range(0, len(head), 5)]
    nd = 2 * 10
    p.extend(interleave(groups, dma_rest[:nd])); dma_rest = dma_rest[nd:]
    p.waitvm('ssmw')
    p('s_barrier')
    stamp(p, 'B1')
    wb = [0]
    def wbuf(n): return WB + 4 * (n % 8)
    def ssm_read(n):
        ks, T = n // 2, n % 2
        j, i = ks // 4, ks % 4
        q = Prog(); q('ds_read_b128 %s, v%d offset:%d' % (v4(wbuf(n)), vRX[i], T * 28672 + j * 4096)); return q.ins
    PRE = 6
    for n in range(PRE): p.extend(ssm_read(n))
    groups = []
    for n in range(56):
        ks, T = n // 2, n % 2
        q = Prog()
        acc = SRE if T == 0 else SIM
        q('v_mfma_f32_32x32x16_bf16 %s, %s, %s, %s' % (v16(acc), v4(X + 4 * ks), v4(wbuf(n)), '0' if ks == 0 else v16(acc)))
        g = q.ins
        if n + PRE < 56: g = g + ssm_read(n + PRE)
        groups.append(g)
    fill = []
    for ks in range(LEAD, 28): fill += d_step(ks)
    k = 0; dk = 0
    for n, g in enumerate(groups):
        p.extend(g)
        tgt = min(len(fill), (len(fill) * (n + 1)) // 38)
        p.extend(fill[k:tgt]); k = tgt
        if n % 3 == 2 and dk < len(dma_rest): p.extend(dma_rest[dk:dk + 2]); dk += 2
    p.extend(dma_rest[dk:])
    RSF = TMP + 8
    p('s_lshl_b32 s%d, s%d, 7' % (sT0, sW))
    p('v_lshl_add_u32 v%d, v%d, 4, s%d' % (vT0, vH, sT0))
    for g in range(4):
        p('ds_read_b128 %s, v%d offset:%d' % (v4(RSF + 4 * g), vT0, L_RS + 32 * g))
    p.waitvm('ffnA')
    p('s_waitcnt lgkmcnt(0)')
    p('s_barrier')
    stamp(p, 'B2')
    p('s_lshl_b32 s%d, s%d, 12' % (sT2, sW))
    for j in (5, 6):
        for e in range(2):
            p('s_add_u32 m0, s%d, %d' % (sT2, L_SW - 128 + (2 * (j - 5) + e) * 1024))
            p('buffer_load_dwordx4 v%d, %s, s%d offen offset:128 lds' % (vW1O[e], srd(SW1), W1K[j]), tok='ffnB')
    PFR = TMP + 26
    p('v_lshlrev_b32 v%d, 3, v%d' % (vT3, vP))
    pf_load = 'buffer_load_dwordx2 v[%d:%d], v%d, %s, 0 offen offset:%d sc1' % (PFR, PFR + 1, vT3, srd(SWS), 0)
    p('v_add_u32 v%d, %d, v%d' % (vT3, WS_PF, vT3))
    p(pf_load)

    def ffn_read(T, ks, n):
        dt, tt = T // 2, T % 2
        j, i = ks // 4, ks % 4
        if dt == 0: U = i * L_XW + 2 * j * 1024
        elif j <= 4: U = i * L_XW + 14336 + 2 * j * 1024
        else: U = L_SW - L0 + i * 4096 + 2 * (j - 5) * 1024
        q = Prog()
        for hh in range(2):
            off = U + hh * 512; win = 0
            if off >= 65536: off -= 65536; win = 1
            q('ds_read_b64_tr_b16 %s, v%d offset:%d' % (v2(wbuf(n) + 2 * hh), vRF[tt][win], off))
        return q.ins
    def silu(T):
        acc = F0 if T % 2 == 0 else F1
        q = Prog()
        tp = [vT0, vT1, vT2, vBO]
        for b in range(0, 16, 4):
            for k in range(4): q('v_mul_f32 v%d, v%d, v%d' % (tp[k], vNK, acc + b + k))
            for k in range(4): q('v_exp_f32 v%d, v%d' % (tp[k], tp[k]))
            for k in range(4): q('v_fma_f32 v%d, v%d, v%d, v%d' % (tp[k], tp[k], vS, vS))
            for k in range(4): q('v_rcp_f32 v%d, v%d' % (tp[k], tp[k]))
            for k in range(4): q('v_mul_f32 v%d, v%d, v%d' % (acc + b + k, acc + b + k, tp[k]))
            q('v_cvt_pk_bf16_f32 v%d, v%d, v%d' % (acc + b // 2, acc + b, acc + b + 1))
            q('v_cvt_pk_bf16_f32 v%d, v%d, v%d' % (acc + b // 2 + 1, acc + b + 2, acc + b + 3))
        q('s_add_u32 s%d, s%d, %d' % (sT3, sHW, ((T // 2) * 56 + 2 * (T % 2)) * 1024))
        q('buffer_store_dwordx4 %s, v%d, %s, s%d offen sc1' % (v4(acc), vL16, srd(SWS), sT3), tok=('hs', T))
        q('buffer_store_dwordx4 %s, v%d, %s, s%d offen offset:1024 sc1' % (v4(acc + 4), vL16, srd(SWS), sT3), tok=('hs', T))
        return q.ins
    E0r, E0i, E1r, E1i = vXO[0], vXO[1], vXO[2], vXO[3]
    def scan1():
        q = Prog()
        for g in range(4):
            for i in range(4):
                q('v_mul_f32 v%d, v%d, v%d' % (SRE + 4 * g + i, RSF + 4 * g + i, SRE + 4 * g + i))
                q('v_mul_f32 v%d, v%d, v%d' % (SIM + 4 * g + i, RSF + 4 * g + i, SIM + 4 * g + i))
        for i in range(1, 4):
            for g in range(4):
                a, b = SRE + 4 * g + i, SIM + 4 * g + i
                q('v_fmac_f32 v%d, v%d, v%d' % (a, L1r, a - 1))
                q('v_fmac_f32 v%d, v%d, v%d' % (b, L1r, b - 1))
                q('v_fmac_f32 v%d, v%d, v%d' % (a, N1i, b - 1))
                q('v_fmac_f32 v%d, v%d, v%d' % (b, L1i, a - 1))
        for g in range(4):
            b = RSF + 4 * g
            q('v_mov_b32 v%d, v%d' % (b, SRE + 4 * g + 3)); q('v_mov_b32 v%d, v%d' % (b + 1, SRE + 4 * g + 3))
            q('v_mov_b32 v%d, v%d' % (b + 2, SIM + 4 * g + 3)); q('v_mov_b32 v%d, v%d' % (b + 3, SIM + 4 * g + 3))
        for g in range(4):
            b = RSF + 4 * g
            q('v_permlane32_swap_b32 v%d, v%d' % (b, b + 1)); q('v_permlane32_swap_b32 v%d, v%d' % (b + 2, b + 3))
        cur = (RSF, RSF + 2); nxt = [(E0r, E0i), (E1r, E1i)]
        for s in range(1, 8):
            g, h = s // 2, s % 2
            er, ei = RSF + 4 * g + h, RSF + 4 * g + 2 + h
            d = nxt[s % 2]
            q('v_fma_f32 v%d, v%d, v%d, v%d' % (d[0], L4r, cur[0], er))
            q('v_fma_f32 v%d, v%d, v%d, v%d' % (d[1], L4r, cur[1], ei))
            q('v_fma_f32 v%d, -v%d, v%d, v%d' % (d[0], L4i, cur[1], d[0]))
            q('v_fmac_f32 v%d, v%d, v%d' % (d[1], L4i, cur[0]))
            cur = d
        assert cur == (E1r, E1i)
        q('s_lshl_b32 s%d, s%d, 8' % (sT4, sW))
        q('v_lshl_add_u32 v%d, v%d, 3, s%d' % (vT0, vP, sT4))
        q('ds_write_b64 v%d, v[%d:%d] offset:%d' % (vT0, E1r, E1i, L_EW), tok='ew')
        return q.ins
    w2_regs = []
    def w2_load(idx, reg):
        s_, kk, ct = idx // 28, (idx % 28) // 2, idx % 2
        off = (s_ * 56 + kk) * 2048 + ct * 1024
        q = Prog()
        if off % 4096 == 0 or idx in w2_force:
            q('s_add_u32 s%d, s%d, %d' % (sT5, sW2, off - off % 4096))
        q('buffer_load_dwordx4 %s, v%d, %s, s%d offen offset:%d sc1' % (v4(reg), vL16, srd(SWS), sT5, off % 4096))
        return q.ins
    w2_force = set()
    n = 56
    PRE = 6
    seq = [(T, ks) for T in range(4) for ks in range(28)]
    for m in range(PRE): p.extend(ffn_read(seq[m][0], seq[m][1], n + m))
    w2i = 0
    EWR = TMP + 0
    for T in range(4):
        groups = []
        acc = F0 if T % 2 == 0 else F1
        for ks in range(28):
            m = T * 28 + ks
            q = Prog()
            q('v_mfma_f32_32x32x16_bf16 %s, %s, %s, %s' % (v16(acc), v4(wbuf(n + m)), v4(X + 4 * ks), '0' if ks == 0 else v16(acc)))
            g = q.ins
            if m + PRE < 112:
                pre = Prog()
                if seq[m + PRE] == (2, 0):
                    pre.waitvm('ffnB'); pre('s_barrier')
                g = g + pre.ins + ffn_read(seq[m + PRE][0], seq[m + PRE][1], n + m + PRE)
            groups.append(g)
        if T == 0:
            fill = scan1()
            p.extend(groups[0]); p.extend(groups[1])
            p.extend(interleave(groups[2:], fill))
            p.waitlgkm('ew')
            p('s_barrier')
            p('v_lshlrev_b32 v%d, 3, v%d' % (vT0, vP))
            p('ds_read_b64 v[%d:%d], v%d offset:%d' % (EWR, EWR + 1, vT0, L_EW))
            p('ds_read_b64 v[%d:%d], v%d offset:%d' % (EWR + 2, EWR + 3, vT0, L_EW + 256))
            p('ds_read_b64 v[%d:%d], v%d offset:%d' % (EWR + 4, EWR + 5, vT0, L_EW + 512))
            p('ds_read_b64 v[%d:%d], v%d offset:%d' % (EWR + 6, EWR + 7, vT0, L_EW + 768))
            p('s_mov_b32 s%d, 0x0fffffff' % sT6)
            poll_check(p, 'prep', PFR, sT6, pf_load)
            stamp(p, 'T0')
        else:
            fill = []
            if T == 1:
                q = Prog()
                G = TMP + 24
                q('v_fma_f32 v%d, v%d, v%d, v%d' % (E0r, L32r, EWR, EWR + 2)); q('v_fma_f32 v%d, v%d, v%d, v%d' % (E0i, L32r, EWR + 1, EWR + 3))
                q('v_fma_f32 v%d, -v%d, v%d, v%d' % (E0r, L32i, EWR + 1, E0r)); q('v_fmac_f32 v%d, v%d, v%d' % (E0i, L32i, EWR))
                q('v_fma_f32 v%d, v%d, v%d, v%d' % (E1r, L32r, E0r, EWR + 4)); q('v_fma_f32 v%d, v%d, v%d, v%d' % (E1i, L32r, E0i, EWR + 5))
                q('v_fma_f32 v%d, -v%d, v%d, v%d' % (E1r, L32i, E0i, E1r)); q('v_fmac_f32 v%d, v%d, v%d' % (E1i, L32i, E0r))
                q('v_fma_f32 v%d, v%d, v%d, v%d' % (G, L32r, E1r, EWR + 6)); q('v_fma_f32 v%d, v%d, v%d, v%d' % (G + 1, L32r, E1i, EWR + 7))
                q('v_fma_f32 v%d, -v%d, v%d, v%d' % (G, L32i, E1i, G)); q('v_fmac_f32 v%d, v%d, v%d' % (G + 1, L32i, E1r))
                q('v_mov_b32 v%d, s%d' % (G + 2, sTL)); q('v_mov_b32 v%d, s%d' % (G + 3, sTH))
                q('s_lshl_b32 s%d, s%d, 13' % (sT4, sC)); q('s_add_u32 s%d, s%d, %d' % (sT4, sT4, WS_EG))
                q('s_add_u32 s%d, s6, s%d' % (SEG, sT4)); q('s_addc_u32 s%d, s7, 0' % (SEG + 1))
                q('s_mov_b32 s%d, 8192' % (SEG + 2)); q('s_mov_b32 s%d, 0x20000' % (SEG + 3))
                q('s_lshl_b32 s%d, s%d, 3' % (sT4, sW)); q('s_lshl_b32 s%d, 0xff, s%d' % (sT4, sT4))
                q('s_lshl_b32 s%d, s%d, 9' % (sT6, sR))
                q('s_mov_b32 exec_lo, s%d' % sT4); q('s_mov_b32 exec_hi, 0')
                q('buffer_store_dwordx4 %s, v%d, %s, s%d offen sc1' % (v4(G), vL16, srd(SEG), sT6), tok='eg')
                q('s_mov_b64 exec, -1')
                p.extend(q.ins)
            fill += silu(T - 1)
            wl = []
            cnt = 18 if T < 3 else 20
            for _ in range(cnt):
                if w2i < 56:
                    if _ == 0: w2_force.add(w2i)
                    wl.append(w2_load(w2i, 256 + 4 * w2i)); w2_regs.append(256 + 4 * w2i); w2i += 1
            gs = interleave_groups(groups, wl)
            p.extend(gs[0]); p.extend(gs[1]); p.extend(gs[2])
            p.extend(interleave(gs[3:], fill))
            if T == 2:
                p.waitvm(('hs', 1))
                flag_store(p, vZ, sFW, 0)
            stamp(p, 'T%d' % T)
        if T == 2:
            pass
    LB = X
    p('s_sub_u32 s%d, s%d, 1' % (sT0, sR)); p('s_lshl_b32 s%d, s%d, 9' % (sT0, sT0))
    p('v_lshlrev_b32 v%d, 9, v%d' % (vT0, vH))
    p('v_sub_u32 v%d, s%d, v%d' % (vT0, sT0, vT0))
    p('v_lshl_add_u32 v%d, v%d, 4, v%d' % (vRX[0], vP, vT0))
    lb_loads = Prog()
    for m in range(8):
        if m: lb_loads('v_subrev_u32 v%d, %d, v%d' % (vRX[1], 1024 * m, vRX[0]))
        lb_loads('buffer_load_dwordx4 %s, v%d, %s, 0 offen sc1' % (v4(LB + 4 * m), vRX[1] if m else vRX[0], srd(SEG)))
    lb_text = '\n'.join(i.text for i in lb_loads.ins)
    p.extend(lb_loads.ins)
    p.extend(silu(3))
    FR = TMP + 26
    def fl_load(stage): return 'buffer_load_dwordx2 v[%d:%d], v%d, %s, s%d offen sc1' % (FR, FR + 1, vFA, srd(SWS), sT6)
    w2_force.add(w2i)
    for k in range(20):
        p.extend(w2_load(w2i, X + 32 + 4 * k)); w2_regs.append(X + 32 + 4 * k); w2i += 1
    p('s_mov_b32 s%d, 0' % sT6)
    p(fl_load(0))
    stamp(p, 'silu3')
    def lb_check(q, lab_bad):
        q('v_add3_u32 v%d, v%d, v%d, v%d' % (vT0, LB + 2, LB + 6, LB + 10)); q('v_add3_u32 v%d, v%d, v%d, v%d' % (vT1, LB + 3, LB + 7, LB + 11))
        q('v_add3_u32 v%d, v%d, v%d, v%d' % (vT0, vT0, LB + 14, LB + 18)); q('v_add3_u32 v%d, v%d, v%d, v%d' % (vT1, vT1, LB + 15, LB + 19))
        q('v_add3_u32 v%d, v%d, v%d, v%d' % (vT0, vT0, LB + 22, LB + 26)); q('v_add3_u32 v%d, v%d, v%d, v%d' % (vT1, vT1, LB + 23, LB + 27))
        q('v_add_u32 v%d, v%d, v%d' % (vT0, vT0, LB + 30)); q('v_add_u32 v%d, v%d, v%d' % (vT1, vT1, LB + 31))
        q('v_cmp_ne_u32 vcc, v%d, v%d' % (vT0, vT2))
        q('v_cmp_ne_u32 s[%d:%d], v%d, v%d' % (sP0, sP0 + 1, vT1, vT3))
        q('s_nop 1')
        q('s_or_b64 vcc, vcc, s[%d:%d]' % (sP0, sP0 + 1))
        q('s_cbranch_scc1 %s' % lab_bad)
    p('v_sub_u32 v%d, s%d, v%d' % (vT3, sR, vH)); p('v_add_u32 v%d, 1, v%d' % (vT3, vT3)); p('v_lshrrev_b32 v%d, 1, v%d' % (vT3, vT3))
    p('v_mul_lo_u32 v%d, s%d, v%d' % (vT2, sTL, vT3)); p('v_mul_lo_u32 v%d, s%d, v%d' % (vT3, sTH, vT3))
    lb_check(p, 'L_retry_lb')
    p('L_ok_lb:')
    q = Prog()
    q('L_retry_lb:'); q('s_mov_b32 s%d, 0' % sSPIN); q('L_loop_lb:'); q('s_sleep 1'); q(lb_text); q('s_waitcnt vmcnt(0)')
    q('s_add_u32 s%d, s%d, 1' % (sSPIN, sSPIN)); q('s_cmp_gt_u32 s%d, %d' % (sSPIN, OPT['spin'])); q('s_cbranch_scc1 L_ok_lb')
    lb_check(q, 'L_loop_lb'); q('s_branch L_ok_lb')
    retry_blocks.append(q)
    for m in range(6, -1, -1):
        cmac(p, LB + 4 * m, LB + 4 * m + 1, L256r, L256i, LB + 4 * m + 4, LB + 4 * m + 5)
    p('v_mov_b32 v%d, v%d' % (LB + 4, LB)); p('v_mov_b32 v%d, v%d' % (LB + 5, LB + 1))
    p('v_permlane32_swap_b32 v%d, v%d' % (LB, LB + 4)); p('v_permlane32_swap_b32 v%d, v%d' % (LB + 1, LB + 5))
    cmac(p, LB, LB + 1, L128r, L128i, LB + 4, LB + 5)
    Cr, Ci = LB, LB + 1
    for k in range(3):
        p('s_cmp_le_u32 s%d, %d' % (sW, k)); p('s_cbranch_scc1 L_cw_done')
        cmac(p, EWR + 2 * k, EWR + 2 * k + 1, L32r, L32i, Cr, Ci)
        p('v_mov_b32 v%d, v%d' % (Cr, EWR + 2 * k)); p('v_mov_b32 v%d, v%d' % (Ci, EWR + 2 * k + 1))
    p('L_cw_done:')
    CS = LB + 8
    p('v_mov_b32 v%d, v%d' % (CS, Cr)); p('v_mov_b32 v%d, v%d' % (CS + 1, Ci))
    for s in range(7):
        g, h = s // 2, s % 2
        er, ei = RSF + 4 * g + h, RSF + 4 * g + 2 + h
        d, cur = CS + 2 * (s + 1), CS + 2 * s
        p('v_fma_f32 v%d, v%d, v%d, v%d' % (d, L4r, cur, er))
        p('v_fma_f32 v%d, v%d, v%d, v%d' % (d + 1, L4r, cur + 1, ei))
        p('v_fma_f32 v%d, -v%d, v%d, v%d' % (d, L4i, cur + 1, d))
        p('v_fmac_f32 v%d, v%d, v%d' % (d + 1, L4i, cur))
    p('v_cmp_ne_u32 vcc, 0, v%d' % vH)
    for g in range(4):
        a = CS + 4 * g
        p('v_cndmask_b32 v%d, v%d, v%d, vcc' % (a, a, a + 2))
        p('v_cndmask_b32 v%d, v%d, v%d, vcc' % (a + 1, a + 1, a + 3))
        p('v_sub_f32 v%d, 0, v%d' % (a + 2, a + 1))
    PW = [(L1r, L1i), (L2r, L2i), (L3r, L3i), (L4r, L4i)]
    for g in range(4):
        a = CS + 4 * g
        for i in range(4):
            ur, ui = SRE + 4 * g + i, SIM + 4 * g + i
            p('v_fmac_f32 v%d, v%d, v%d' % (ur, PW[i][0], a))
            p('v_fmac_f32 v%d, v%d, v%d' % (ui, PW[i][0], a + 1))
            p('v_fmac_f32 v%d, v%d, v%d' % (ur, PW[i][1], a + 2))
            p('v_fmac_f32 v%d, v%d, v%d' % (ui, PW[i][1], a))
        for comp, base in ((0, SRE), (1, SIM)):
            b = base + 4 * g
            p('v_cvt_pk_bf16_f32 v%d, v%d, v%d' % (b, b, b + 1))
            p('v_cvt_pk_bf16_f32 v%d, v%d, v%d' % (b + 1, b + 2, b + 3))
            p('ds_write_b64 v%d, v[%d:%d] offset:%d' % (vTW, b, b + 1, comp * 2304 + 16 * g))
    HS = F0
    for comp in range(2):
        for q_ in range(2):
            for hh in range(2):
                p('ds_read_b64_tr_b16 %s, v%d offset:%d' % (v2(HS + 8 * comp + 4 * q_ + 2 * hh), vTRr, comp * 2304 + (16 * q_ + 4 * hh) * 72))
    stamp(p, 'fixup')
    poll_check(p, 'fa', FR, sPMASK, fl_load(0))
    p.waitvm(('hs', 3))
    flag_store(p, vZ, sFW_stage(p, 1), 0)
    pool = [X + 4 * k for k in range(8)] + [WB + 4 * k for k in range(8)] + [F1 + 4 * k for k in range(4)]
    ACC = {(0, 0): SRE, (0, 1): SIM, (1, 0): 192, (1, 1): 208}
    hid_regs = {}
    def hid_load(idx):
        s_, kk, rt = idx // 28, (idx % 28) // 2, idx % 2
        off = (s_ * 56 + kk) * 1024
        reg = pool.pop(0); hid_regs[idx] = reg
        sreg = sT3 if rt == 0 else sT4
        if off % 4096 == 0 or kk == 0:
            p('s_add_u32 s%d, s%d, %d' % (sreg, sH0 if rt == 0 else sH1, off - off % 4096))
        p('buffer_load_dwordx4 %s, v%d, %s, s%d offen offset:%d sc1' % (v4(reg), vL16, srd(SWS), sreg, off % 4096))
    hi = 0
    while hi < 20: hid_load(hi); hi += 1
    p('s_add_u32 s%d, s%d, %d' % (sT2, sHW, 112 * 1024))
    for f in range(4):
        p('buffer_store_dwordx4 %s, v%d, %s, s%d offen offset:%d sc1' % (v4(HS + 4 * f), vL16, srd(SWS), sT2, f * 1024), tok='hsC')
    pool += [F0 + 4 * k for k in range(4)]
    w2_force.add(w2i)
    tail_regs = [TMP + 4 * k for k in range(6)]
    w2_pending = list(range(w2i, 84))
    p('s_barrier')
    stamp(p, 'g2start')
    polled = {0}
    flagC_done = False
    def top_up(step):
        nonlocal hi, flagC_done
        while w2_pending and (tail_regs or (pool and step >= 14)):
            idx = w2_pending.pop(0)
            reg = tail_regs.pop(0) if tail_regs else pool.pop(0)
            w2_force.add(idx)
            p.extend(w2_load(idx, reg)); w2_regs.append(reg)
        while hi < 84 and pool:
            st = hi // 28
            if st not in polled:
                if (st, 'issued') not in polled:
                    p('s_mov_b32 s%d, %d' % (sT6, st * 8192)); p(fl_load(st)); polled.add((st, 'issued')); polled.add((st, step))
                    return
                if step < [x[1] for x in polled if isinstance(x, tuple) and x[0] == st and x[1] != 'issued'][0] + 3: return
                poll_check(p, 'f%d' % st, FR, sPMASK, fl_load(st)); polled.add(st)
            hid_load(hi); hi += 1
    for step in range(42):
        top_up(step)
        if step == 8:
            p.waitvm('hsC'); flag_store(p, vZ, sFW_stage(p, 2), 0)
        w0, w1_ = w2_regs[2 * step], w2_regs[2 * step + 1]
        while 2 * step + 1 not in hid_regs: top_up(99)
        h0, h1 = hid_regs[2 * step], hid_regs[2 * step + 1]
        for ct, wr in ((0, w0), (1, w1_)):
            for rt, hr in ((0, h0), (1, h1)):
                a = ACC[(ct, rt)]
                p('v_mfma_f32_32x32x16_bf16 %s, %s, %s, %s' % (v16(a), v4(wr), v4(hr), '0' if step == 0 else v16(a)))
        pool += [w0, w1_, h0, h1]
        if step == 30:
            epi_loads(p)
    stamp(p, 'g2end')
    epilogue(p, ACC)

def interleave_groups(groups, extra):
    out = [list(g) for g in groups]
    n = len(groups)
    for k, e in enumerate(extra):
        out[min(n - 1, (k * n) // max(1, len(extra)))] += e
    return out

def sFW_stage(p, st):
    p('s_add_u32 s%d, s%d, %d' % (sT1, sFW, st * 8192))
    return sT1

EPX = 224 + 0
def epi_loads(p):
    pass

def epilogue(p, ACC):
    EX = 16; ED = 24
    p('v_lshrrev_b32 v%d, 4, v%d' % (vT0, vL)); p('v_and_b32 v%d, 15, v%d' % (vT1, vL))
    p('v_mul_u32_u24 v%d, 896, v%d' % (vT2, vT0)); p('v_lshl_add_u32 v%d, v%d, 3, v%d' % (vT2, vT1, vT2))
    p('s_lshl_b32 s%d, s%d, 5' % (sT0, sRT0)); p('s_lshl_b32 s%d, s%d, 4' % (sT1, sW)); p('s_add_u32 s%d, s%d, s%d' % (sT0, sT0, sT1))
    p('s_mul_i32 s%d, s%d, 896' % (sT0, sT0)); p('s_lshl_b32 s%d, s%d, 7' % (sT1, sCB)); p('s_add_u32 s%d, s%d, s%d' % (sT0, sT0, sT1))
    for it in range(4):
        p('s_add_u32 s%d, s%d, %d' % (sT2, sT0, it * 4 * 896))
        p('buffer_load_dwordx2 v[%d:%d], v%d, %s, s%d offen' % (EX + 2 * it, EX + 2 * it + 1, vT2, srd(SX), sT2))
    p('v_lshlrev_b32 v%d, 3, v%d' % (vT3, vT1))
    p('buffer_load_dwordx2 v[%d:%d], v%d, %s, s%d offen' % (ED, ED + 1, vT3, srd(SDSK), sT1))
    PWA = 28
    p('v_and_b32 v%d, 7, v%d' % (PWA, vP)); p('v_xor_b32 v%d, v%d, v%d' % (PWA, PWA, vH)); p('v_lshlrev_b32 v%d, 4, v%d' % (PWA, PWA))
    p('v_lshl_add_u32 v%d, v%d, 8, v%d' % (PWA, vP, PWA))
    p('s_lshl_b32 s%d, s%d, 14' % (sT1, sW)); p('s_add_u32 s%d, s%d, %d' % (sT1, sT1, L0)); p('v_add_u32 v%d, s%d, v%d' % (PWA, sT1, PWA))
    for g in range(1, 4): p('v_xor_b32 v%d, %d, v%d' % (PWA + g, g << 5, PWA))
    for rt in range(2):
        for ct in range(2):
            for g in range(4):
                p('ds_write_b128 v%d, %s offset:%d' % (PWA + g, v4(ACC[(ct, rt)] + 4 * g), rt * 8192 + ct * 128))
    PRA = 32
    p('v_xor_b32 v%d, v%d, v%d' % (PRA, vT1, vT0)); p('v_lshlrev_b32 v%d, 4, v%d' % (PRA, PRA))
    p('v_lshl_add_u32 v%d, v%d, 8, v%d' % (PRA, vT0, PRA))
    p('s_lshl_b32 s%d, s%d, 12' % (sT1, sW)); p('s_add_u32 s%d, s%d, %d' % (sT1, sT1, L0)); p('v_add_u32 v%d, s%d, v%d' % (PRA, sT1, PRA))
    p('v_xor_b32 v%d, 64, v%d' % (PRA + 1, PRA)); p('v_add_u32 v%d, 1024, v%d' % (PRA + 1, PRA + 1))
    ST = 36
    p('s_lshl_b32 s%d, s%d, 9' % (sT1, sHALF)); p('s_lshl_b32 s%d, s%d, 7' % (sT2, sW)); p('s_add_u32 s%d, s%d, s%d' % (sT1, sT1, sT2))
    p('v_lshl_add_u32 v%d, v%d, 3, s%d' % (vT3, vT0, sT1))
    for it in range(4):
        p('ds_read_b64 v[%d:%d], v%d offset:%d' % (ST + 2 * it, ST + 2 * it + 1, vT3, L_MR + 32 * it))
    D = 44; B = 48
    p('v_lshlrev_b32 v%d, 16, v%d' % (D, ED)); p('v_and_b32 v%d, s%d, v%d' % (D + 1, sMHI, ED))
    p('v_lshlrev_b32 v%d, 16, v%d' % (D + 2, ED + 1)); p('v_and_b32 v%d, s%d, v%d' % (D + 3, sMHI, ED + 1))
    T = 64
    for it in range(4):
        b = B + 4 * it; m, rs = ST + 2 * it, ST + 2 * it + 1
        p('v_lshlrev_b32 v%d, 16, v%d' % (b, EX + 2 * it)); p('v_and_b32 v%d, s%d, v%d' % (b + 1, sMHI, EX + 2 * it))
        p('v_lshlrev_b32 v%d, 16, v%d' % (b + 2, EX + 2 * it + 1)); p('v_and_b32 v%d, s%d, v%d' % (b + 3, sMHI, EX + 2 * it + 1))
        for k in range(4): p('v_sub_f32 v%d, v%d, v%d' % (T + k, b + k, m))
        def rnd():
            p('v_cvt_pk_bf16_f32 v%d, v%d, v%d' % (T + 4, T, T + 1)); p('v_cvt_pk_bf16_f32 v%d, v%d, v%d' % (T + 5, T + 2, T + 3))
            p('v_lshlrev_b32 v%d, 16, v%d' % (T, T + 4)); p('v_and_b32 v%d, s%d, v%d' % (T + 1, sMHI, T + 4))
            p('v_lshlrev_b32 v%d, 16, v%d' % (T + 2, T + 5)); p('v_and_b32 v%d, s%d, v%d' % (T + 3, sMHI, T + 5))
        rnd()
        for k in range(4): p('v_mul_f32 v%d, v%d, v%d' % (T + k, T + k, rs))
        rnd()
        for k in range(4): p('v_mul_f32 v%d, v%d, v%d' % (T + k, T + k, D + k))
        rnd()
        for k in range(4): p('v_add_f32 v%d, v%d, v%d' % (b + k, b + k, T + k))
    p('s_waitcnt lgkmcnt(0)')
    p('s_barrier')
    R = 72
    for it in range(4):
        for P in range(4):
            p('ds_read_b128 %s, v%d offset:%d' % (v4(R + 16 * it + 4 * P), PRA + (it & 1), P * 16384 + (it >> 1) * 2048))
    p('v_lshlrev_b32 v%d, 1, v%d' % (vT2, vT2))
    p('s_lshl_b32 s%d, s%d, 1' % (sT0, sT0))
    for it in range(4):
        b = B + 4 * it
        for P in range(4):
            for k in range(4): p('v_add_f32 v%d, v%d, v%d' % (b + k, b + k, R + 16 * it + 4 * P + k))
        p('s_add_u32 s%d, s%d, %d' % (sT2, sT0, it * 4 * 1792))
        p('buffer_store_dwordx4 %s, v%d, %s, s%d offen' % (v4(b), vT2, srd(SOUT), sT2))
    if OPT['stamps']:
        stamp(p, 'end')
        p('s_lshl_b32 s%d, s2, 2' % sT0); p('s_add_u32 s%d, s%d, s%d' % (sT0, sT0, sW)); p('s_lshl_b32 s%d, s%d, 8' % (sT0, sT0))
        p('s_add_u32 s%d, s%d, %d' % (sT0, sT0, WS_STAMP))
        p('v_lshlrev_b32 v%d, 2, v%d' % (vT0, vL))
        p('buffer_store_dword v%d, v%d, %s, s%d offen' % (vDUM, vT0, srd(SWS), sT0))
    p('s_cmp_eq_u32 s%d, 15' % sR); p('s_cbranch_scc0 L_exit')
    p('s_cmp_eq_u32 s%d, 13' % sC); p('s_cbranch_scc0 L_exit')
    p('s_cmp_eq_u32 s%d, 3' % sW); p('s_cbranch_scc0 L_exit')
    p('v_mov_b32 v%d, s%d' % (TMP + 30, sTL)); p('v_mov_b32 v%d, s%d' % (TMP + 31, sTH))
    p('s_mov_b32 s%d, %d' % (sT0, WS_EPOCH))
    flag_store(p, vZ, sT0, 0)
    p('s_endpgm')

def prep_path(p):
    SW2, SCRE, SCIM = 44, 48, 52
    sQ = 8
    p('L_prep:')
    p.reset()
    p('s_lshl_b32 s%d, s%d, 2' % (sQ, sT0)); p('s_add_u32 s%d, s%d, s%d' % (sQ, sQ, sT1)); p('s_sub_u32 s%d, s%d, 28' % (sQ, sQ))
    p('s_cmp_ge_u32 s%d, 28' % sQ); p('s_cbranch_scc1 L_exit')
    p('s_waitcnt lgkmcnt(0)')
    mk_srd(p, SW2, 38, 1792 * 896); mk_srd(p, SCRE, 26, 448 * 896); mk_srd(p, SCIM, 28, 448 * 896)
    mk_srd(p, SWS, 6, WS_END)
    mk_srd(p, SLRE, 18, 896); mk_srd(p, SLIM, 20, 896); mk_srd(p, SLDT, 30, 896)
    sKF, sF0, sKS = 84, 85, 86
    p('s_lshl_b32 s%d, s%d, 2' % (sKF, sQ)); p('s_add_u32 s%d, s%d, s%d' % (sKF, sKF, sW))
    p('s_cmp_ge_u32 s%d, 56' % sKF); p('s_cselect_b32 s%d, 56, 0' % sT0); p('s_cselect_b32 s%d, 64, 0' % sT1)
    p('s_sub_u32 s%d, s%d, s%d' % (sT0, sKF, sT0))
    p('s_lshr_b32 s%d, s%d, 2' % (sF0, sT0)); p('s_lshl_b32 s%d, s%d, 7' % (sF0, sF0)); p('s_add_u32 s%d, s%d, s%d' % (sF0, sF0, sT1))
    p('s_and_b32 s%d, s%d, 3' % (sT0, sT0)); p('s_lshl_b32 s%d, s%d, 4' % (sT0, sT0)); p('s_add_u32 s%d, s%d, s%d' % (sF0, sF0, sT0))
    p('s_mul_i32 s%d, s%d, 896' % (sF0, sF0))
    p('s_lshl_b32 s%d, s%d, 14' % (sLW, sW))
    for k in range(14):
        if k % 4 == 0:
            p('s_add_u32 m0, s%d, %d' % (sLW, k * 1024)); p('s_add_u32 s%d, s%d, %d' % (sT0, sF0, k * 1024))
        p('buffer_load_dwordx4 v%d, %s, s%d offen offset:%d lds' % (vL16, srd(SW2), sT0, (k % 4) * 1024), tok='w2')
    p('buffer_load_dwordx2 v[%d:%d], v%d, %s, 0 offen sc1' % (TMP + 28, TMP + 29, vZ, srd(SWS)))
    p('v_and_b32 v%d, 15, v%d' % (vT2, vL)); p('v_lshlrev_b32 v%d, 1, v%d' % (vT2, vT2)); p('s_lshl_b32 s%d, s%d, 5' % (sT1, sQ))
    p('buffer_load_ushort v%d, v%d, %s, s%d offen' % (TMP + 0, vT2, srd(SLRE), sT1))
    p('buffer_load_ushort v%d, v%d, %s, s%d offen' % (TMP + 1, vT2, srd(SLIM), sT1))
    p('buffer_load_ushort v%d, v%d, %s, s%d offen' % (TMP + 2, vT2, srd(SLDT), sT1))
    p('v_mul_u32_u24 v%d, 896, v%d' % (vT0, vP)); p('v_lshl_add_u32 v%d, v%d, 4, v%d' % (vT0, vH, vT0))
    p('s_mul_i32 s%d, s%d, %d' % (sT2, sW, 32 * 896)); p('s_add_u32 s%d, s%d, s%d' % (sT2, sT2, sT1))
    CR = 16
    for it in range(4):
        p('s_add_u32 s%d, s%d, %d' % (sT0, sT2, it * 4 * 32 * 896))
        p('buffer_load_dwordx4 %s, v%d, %s, s%d offen' % (v4(CR + 8 * it), vT0, srd(SCRE), sT0))
        p('buffer_load_dwordx4 %s, v%d, %s, s%d offen' % (v4(CR + 8 * it + 4), vT0, srd(SCIM), sT0))
    p('v_lshlrev_b32 v%d, 7, v0' % vT1)
    p('buffer_load_dword v%d, v%d, %s, 0 offen' % (TMP + 3, vT1, srd(SCODE)), tok='cpf')
    p('v_lshrrev_b32 v%d, 2, v%d' % (vT1, vL)); p('v_and_b32 v%d, 3, v%d' % (vT1, vT1))
    p('v_lshl_add_u32 v%d, v%d, 2, v%d' % (vT1, vH, vT1)); p('v_mul_u32_u24 v%d, 896, v%d' % (vT1, vT1))
    p('v_and_b32 v%d, 16, v%d' % (vT2, vL)); p('v_lshl_add_u32 v%d, v%d, 1, v%d' % (vT1, vT2, vT1))
    p('v_and_b32 v%d, 3, v%d' % (vT2, vL)); p('v_lshl_add_u32 v%d, v%d, 3, v%d' % (vT1, vT2, vT1))
    p('v_add_u32 v%d, s%d, v%d' % (vT1, sLW, vT1))
    FRG = 64
    p.waitvm('w2')
    for ctg in range(14):
        for hh in range(2):
            p('ds_read_b64_tr_b16 %s, v%d offset:%d' % (v2(FRG + 4 * ctg + 2 * hh), vT1, hh * 8 * 896 + ctg * 64))
    p('s_lshl_b32 s%d, s%d, 11' % (sKS, sKF)); p('s_add_u32 s%d, s%d, %d' % (sKS, sKS, WS_W2F))
    for ctg in range(14):
        if ctg % 2 == 0: p('s_add_u32 s%d, s%d, %d' % (sT0, sKS, (ctg // 2) * 168 * 2048))
        p('buffer_store_dwordx4 %s, v%d, %s, s%d offen offset:%d sc1' % (v4(FRG + 4 * ctg), vL16, srd(SWS), sT0, (ctg % 2) * 1024))
    lr, li = TMP + 6, TMP + 7
    lam_from(p, TMP + 0, TMP + 1, TMP + 2, lr, li, TMP + 4, TMP + 5)
    p('v_add_f32 v%d, -1.0, v%d' % (lr, lr))
    p('v_mul_f32 v%d, v%d, v%d' % (TMP + 4, TMP + 0, TMP + 0)); p('v_fmac_f32 v%d, v%d, v%d' % (TMP + 4, TMP + 1, TMP + 1))
    p('v_rcp_f32 v%d, v%d' % (TMP + 4, TMP + 4))
    p('v_add_f32 v%d, v%d, v%d' % (TMP + 4, TMP + 4, TMP + 4))
    p('v_mul_f32 v%d, v%d, v%d' % (TMP + 8, lr, TMP + 0)); p('v_fmac_f32 v%d, v%d, v%d' % (TMP + 8, li, TMP + 1))
    p('v_mul_f32 v%d, v%d, v%d' % (TMP + 9, li, TMP + 0)); p('v_fma_f32 v%d, -v%d, v%d, v%d' % (TMP + 9, lr, TMP + 1, TMP + 9))
    p('v_mul_f32 v%d, v%d, v%d' % (TMP + 8, TMP + 8, TMP + 4)); p('v_mul_f32 v%d, v%d, v%d' % (TMP + 9, TMP + 9, TMP + 4))
    p('v_and_b32 v%d, 15, v%d' % (vT2, vL)); p('v_lshl_add_u32 v%d, v%d, 3, s%d' % (vT2, vT2, sLW))
    p('ds_write_b64 v%d, v[%d:%d] offset:%d' % (vT2, TMP + 8, TMP + 9, 15360))
    p('v_lshl_add_u32 v%d, v%d, 6, s%d' % (vT2, vH, sLW))
    CF = 128
    for k in range(4): p('ds_read_b128 %s, v%d offset:%d' % (v4(CF + 4 * k), vT2, 15360 + 16 * k))
    tag_setup(p, TMP + 28)
    p('s_lshr_b32 s%d, s%d, 1' % (sT0, sQ)); p('s_lshl_b32 s%d, s%d, 2' % (sT0, sT0)); p('s_and_b32 s%d, s%d, 1' % (sT1, sQ)); p('s_add_u32 s%d, s%d, s%d' % (sT0, sT0, sT1))
    p('s_add_u32 s%d, s%d, 112' % (sT0, sT0)); p('s_lshl_b32 s%d, s%d, 11' % (sKS, sT0)); p('s_add_u32 s%d, s%d, %d' % (sKS, sKS, WS_W2F))
    p('s_lshr_b32 s%d, s%d, 1' % (sT0, sW)); p('s_mul_i32 s%d, s%d, %d' % (sT0, sT0, 168 * 2048)); p('s_add_u32 s%d, s%d, s%d' % (sKS, sKS, sT0))
    p('s_and_b32 s%d, s%d, 1' % (sT0, sW)); p('s_lshl_b32 s%d, s%d, 10' % (sT0, sT0)); p('s_add_u32 s%d, s%d, s%d' % (sKS, sKS, sT0))
    U = 144; O = 176
    for it in range(4):
        if it == 3:
            p('s_cmp_ge_u32 s%d, 2' % sW); p('s_cbranch_scc1 L_prep_fin')
        cr, ci = CR + 8 * it, CR + 8 * it + 4
        o = O + 8 * it
        for k in range(4):
            a0, b0, a1, b1 = CF + 4 * k, CF + 4 * k + 1, CF + 4 * k + 2, CF + 4 * k + 3
            p('v_lshlrev_b32 v%d, 16, v%d' % (U, cr + k)); p('v_and_b32 v%d, s%d, v%d' % (U + 1, sMHI, cr + k))
            p('v_lshlrev_b32 v%d, 16, v%d' % (U + 2, ci + k)); p('v_and_b32 v%d, s%d, v%d' % (U + 3, sMHI, ci + k))
            p('v_mul_f32 v%d, v%d, v%d' % (U + 4, a0, U)); p('v_fma_f32 v%d, -v%d, v%d, v%d' % (U + 4, b0, U + 2, U + 4))
            p('v_mul_f32 v%d, v%d, v%d' % (U + 5, a1, U + 1)); p('v_fma_f32 v%d, -v%d, v%d, v%d' % (U + 5, b1, U + 3, U + 5))
            p('v_mul_f32 v%d, -v%d, v%d' % (U + 6, a0, U + 2)); p('v_fma_f32 v%d, -v%d, v%d, v%d' % (U + 6, b0, U, U + 6))
            p('v_mul_f32 v%d, -v%d, v%d' % (U + 7, a1, U + 3)); p('v_fma_f32 v%d, -v%d, v%d, v%d' % (U + 7, b1, U + 1, U + 7))
            p('v_cvt_pk_bf16_f32 v%d, v%d, v%d' % (o + k, U + 4, U + 5))
            p('v_cvt_pk_bf16_f32 v%d, v%d, v%d' % (o + 4 + k, U + 6, U + 7))
        p('s_add_u32 s%d, s%d, %d' % (sT0, sKS, it * 2 * 168 * 2048))
        p('s_add_u32 s%d, s%d, 4096' % (sT1, sT0))
        p('buffer_store_dwordx4 %s, v%d, %s, s%d offen sc1' % (v4(o), vL16, srd(SWS), sT0))
        p('buffer_store_dwordx4 %s, v%d, %s, s%d offen sc1' % (v4(o + 4), vL16, srd(SWS), sT1))
    p('L_prep_fin:')
    p('s_waitcnt vmcnt(0)')
    p('s_barrier')
    p('s_cmp_lg_u32 s%d, 0' % sW); p('s_cbranch_scc1 L_exit')
    p('v_mov_b32 v%d, s%d' % (TMP + 30, sTL)); p('v_mov_b32 v%d, s%d' % (TMP + 31, sTH))
    p('s_lshl_b32 s%d, s%d, 3' % (sT0, sQ)); p('s_add_u32 s%d, s%d, %d' % (sT0, sT0, WS_PF))
    flag_store(p, vZ, sT0, 0)
    p('L_exit:')
    p('s_endpgm')

HEADER = open('parallel_sum__ssm_conv_s5__dense_activation_silu__prompt.s.ref').read().split('; Override launch')[0]

def build():
    p = Prog()
    prologue_common(p)
    main_path(p)
    for q in retry_blocks:
        p.reset(); p.extend(q.ins)
    prep_path(p)
    ins = finalize(p)
    body = text_of(ins)
    s = HEADER
    s += '; @launch grid=(256,1,1) block=(256,1,1) lds=%d\n' % LDS_BYTES
    s += '.amdgcn_target "amdgcn-amd-amdhsa--gfx950"\n.text\n.globl %s\n.p2align 8\n.type %s,@function\n%s:\n' % (KNAME, KNAME, KNAME)
    s += body
    s += 'L_code_end:\n'
    s += '.section .rodata,"a"\n.p2align 6\n.amdhsa_kernel %s\n' % KNAME
    s += '  .amdhsa_next_free_vgpr 512\n  .amdhsa_next_free_sgpr 102\n  .amdhsa_accum_offset 256\n  .amdhsa_group_segment_fixed_size 0\n'
    s += '  .amdhsa_kernarg_size 120\n  .amdhsa_user_sgpr_count 2\n  .amdhsa_user_sgpr_kernarg_segment_ptr 1\n  .amdhsa_system_sgpr_workgroup_id_x 1\n'
    s += '  .amdhsa_float_denorm_mode_32 3\n'
    s += '.end_amdhsa_kernel\n'
    return s, ins

if __name__ == '__main__':
    s, ins = build()
    open(sys.argv[1], 'w').write(s)
    from collections import Counter
    c = Counter(i.kind for i in ins)
    print('instructions:', sum(v for k, v in c.items() if k != 'label'), dict(c))
    if OPT['stamps']: print('stamps:', stamp_slots)
```

```python
import sys, os
sys.path.insert(0, os.path.dirname(os.path.abspath(__file__)))
from dsl import *

KNAME = 'parallel_sum__ssm_conv_s5__dense_activation_silu__prompt_kernel'
OPT = dict(stamps=False, rot=True, w1pf=True, spin=1 << 16)
for a in sys.argv[2:]:
    k, v = a.split('='); OPT[k] = int(v)

WS_EPOCH = 0
WS_PF    = 0x1000
WS_FL    = 0x2000
WS_EG    = 0x10000
WS_STAMP = 0x80000
WS_W2F   = 0x100000
WS_HID   = 0x400000
WS_END   = WS_HID + 64 * 168 * 1024
L0     = 8192
L_XW   = 24576
L_SW   = L0 + 98304
L_TR   = L0 + 114688
L_MISC = 0
L_RS   = L_MISC
L_MR   = L_MISC + 512
L_EW   = L_MISC + 1536
LDS_BYTES = 163840
LOG2E = 0x3fb8aa3b
NLOG2E = 0xbfb8aa3b
INV2PI = 0x3e22f983

sR, sC, sW, sROT, sTL, sTH, sONE, sMHI = 8, 9, 10, 11, 12, 13, 14, 15
SX, SBRE, SBIM, SW1, SWS, SOUT, SLRE, SLIM, SLDT, SDSK, SCODE = 40, 44, 48, 52, 56, 60, 64, 68, 72, 76, 80
SEG = 44
KB = [84 + j for j in range(7)]
W1K = [91 + j for j in range(7)]
sT0, sT1, sLW, sT2 = 98, 99, 100, 101
sHW, sCB, sHALF, sRT0, sPMASK, sW2, sH0, sH1, sSPIN, sFW = 16, 17, 18, 19, 20, 21, 22, 23, 24, 25
sT3, sT4, sT5, sT6 = 26, 27, 28, 29
sP0 = 30
sST = 32
def srd(b): return 's[%d:%d]' % (b, b + 3)
def v4(b): return ('v[%d:%d]' % (b, b + 3)) if b < 256 else ('a[%d:%d]' % (b - 256, b - 253))
def v2(b): return ('v[%d:%d]' % (b, b + 1)) if b < 256 else ('a[%d:%d]' % (b - 256, b - 255))
def v16(b): return 'v[%d:%d]' % (b, b + 15)

vL = 1; vL16 = 2; vT0, vT1, vT2, vT3 = 3, 4, 5, 6
vM, vS, vNK, vRSv = 7, 8, 9, 10
vZ = 11
vH = 12
vP = 13
vFA = 14
vDUM = 15
X = 16
SRE, SIM, F0, F1 = 128, 144, 160, 176
vXO = [192, 193, 194, 195]
vBO = 196
vW1O = [197, 198]
vRX = [199, 200, 201, 202]
vRF = [[203, 204], [205, 206]]
L1r, L1i, N1i, L2r, L2i, L3r, L3i, L4r, L4i, L32r, L32i, L128r, L128i, L256r, L256i = range(207, 222)
vTW, vTRr = 222, 223
TMP = 224
WB = 256 + 224

stamp_slots = []
def stamp(p, name):
    if not OPT['stamps']: return
    k = len(stamp_slots); stamp_slots.append(name)
    p('s_memtime s[%d:%d]' % (sP0, sP0 + 1))
    p('s_waitcnt lgkmcnt(0)')
    p('v_writelane_b32 v%d, s%d, %d' % (vDUM, sP0, k))

def mk_srd(p, b, ptr, nbytes):
    p('s_mov_b32 s%d, s%d' % (b, ptr)); p('s_mov_b32 s%d, s%d' % (b + 1, ptr + 1))
    p('s_mov_b32 s%d, %d' % (b + 2, nbytes)); p('s_mov_b32 s%d, 0x20000' % (b + 3))

def bf16_round(p, dst, src):
    p('v_cvt_pk_bf16_f32 v%d, v%d, v%d' % (dst, src, src))
    p('v_lshlrev_b32 v%d, 16, v%d' % (dst, dst))

def lam_from(p, lre, lim, ldt, outr, outi, t0, t1):
    p('v_lshlrev_b32 v%d, 16, v%d' % (lre, lre))
    p('v_lshlrev_b32 v%d, 16, v%d' % (lim, lim))
    p('v_lshlrev_b32 v%d, 16, v%d' % (ldt, ldt))
    p('v_mul_f32 v%d, 0x%x, v%d' % (ldt, LOG2E, ldt))
    p('v_exp_f32 v%d, v%d' % (ldt, ldt))
    bf16_round(p, ldt, ldt)
    p('v_mul_f32 v%d, v%d, v%d' % (t0, ldt, lre))
    p('v_mul_f32 v%d, v%d, v%d' % (t1, ldt, lim))
    p('v_mul_f32 v%d, 0x%x, v%d' % (t0, LOG2E, t0))
    p('v_exp_f32 v%d, v%d' % (t0, t0))
    p('v_mul_f32 v%d, 0x%x, v%d' % (t1, INV2PI, t1))
    p('v_fract_f32 v%d, v%d' % (t1, t1))
    p('v_cos_f32 v%d, v%d' % (outr, t1))
    p('v_sin_f32 v%d, v%d' % (outi, t1))
    p('v_mul_f32 v%d, v%d, v%d' % (outr, t0, outr))
    p('v_mul_f32 v%d, v%d, v%d' % (outi, t0, outi))

def cmul(p, dr, di, ar, ai, br, bi):
    p('v_mul_f32 v%d, v%d, v%d' % (dr, ar, br))
    p('v_mul_f32 v%d, v%d, v%d' % (di, ar, bi))
    p('v_fma_f32 v%d, -v%d, v%d, v%d' % (dr, ai, bi, dr))
    p('v_fmac_f32 v%d, v%d, v%d' % (di, ai, br))

def cmac(p, dr, di, ar, ai, br, bi):
    p('v_fmac_f32 v%d, v%d, v%d' % (dr, ar, br))
    p('v_fmac_f32 v%d, v%d, v%d' % (di, ar, bi))
    p('v_fma_f32 v%d, -v%d, v%d, v%d' % (dr, ai, bi, dr))
    p('v_fmac_f32 v%d, v%d, v%d' % (di, ai, br))

def tag_setup(p, vlo):
    p('v_readfirstlane_b32 s%d, v%d' % (sTL, vlo))
    p('v_readfirstlane_b32 s%d, v%d' % (sTH, vlo + 1))
    p('s_mul_i32 s%d, s%d, 0x9e3779b1' % (sTL, sTL)); p('s_add_u32 s%d, s%d, 0x7f4a7c15' % (sTL, sTL))
    p('s_mul_i32 s%d, s%d, 0x85ebca6b' % (sTH, sTH)); p('s_add_u32 s%d, s%d, 0xc2b2ae35' % (sTH, sTH))

retry_blocks = []
def poll_check(p, name, reg, mask_s, reload_text):
    def cmp_(q):
        q('v_cmp_ne_u32 vcc, s%d, v%d' % (sTL, reg))
        q('v_cmp_ne_u32 s[%d:%d], s%d, v%d' % (sP0, sP0 + 1, sTH, reg + 1))
        q('s_or_b32 s%d, vcc_lo, s%d' % (sT0, sP0), )
        q('s_and_b32 s%d, s%d, s%d' % (sT0, sT0, mask_s))
    p('v_cmp_ne_u32 vcc, s%d, v%d' % (sTL, reg))
    p('v_cmp_ne_u32 s[%d:%d], s%d, v%d' % (sP0, sP0 + 1, sTH, reg + 1))
    p('s_nop 1')
    p('s_or_b32 s%d, vcc_lo, s%d' % (sT0, sP0))
    p('s_and_b32 s%d, s%d, s%d' % (sT0, sT0, mask_s))
    p('s_cbranch_scc1 L_retry_%s' % name)
    p('L_ok_%s:' % name)
    q = Prog()
    q('L_retry_%s:' % name)
    q('s_mov_b32 s%d, 0' % sSPIN)
    q('L_loop_%s:' % name)
    q('s_sleep 1')
    q(reload_text)
    q('s_waitcnt vmcnt(0)')
    q('v_cmp_ne_u32 vcc, s%d, v%d' % (sTL, reg))
    q('v_cmp_ne_u32 s[%d:%d], s%d, v%d' % (sP0, sP0 + 1, sTH, reg + 1))
    q('s_add_u32 s%d, s%d, 1' % (sSPIN, sSPIN))
    q('s_cmp_gt_u32 s%d, %d' % (sSPIN, OPT['spin']))
    q('s_cbranch_scc1 L_ok_%s' % name)
    q('s_or_b32 s%d, vcc_lo, s%d' % (sT0, sP0))
    q('s_and_b32 s%d, s%d, s%d' % (sT0, sT0, mask_s))
    q('s_cbranch_scc1 L_loop_%s' % name)
    q('s_branch L_ok_%s' % name)
    retry_blocks.append(q)

def flag_store(p, voff_zero, soff, imm=0):
    p('s_mov_b64 exec, 1')
    p('buffer_store_dwordx2 v[%d:%d], v%d, %s, s%d offen offset:%d sc1' % (TMP + 30, TMP + 31, voff_zero, srd(SWS), soff, imm))
    p('s_mov_b64 exec, -1')

def prologue_common(p):
    p('s_cmp_ge_u32 s2, 256')
    p('s_cbranch_scc1 L_exit')
    if OPT['stamps']:
        p('s_memrealtime s[%d:%d]' % (SOUT, SOUT + 1))
        p('s_memtime s[%d:%d]' % (SOUT + 2, SOUT + 3))
    p('s_load_dwordx16 s[16:31], s[0:1], 0')
    p('s_load_dwordx8 s[32:39], s[0:1], 64')
    p('s_load_dwordx2 s[4:5], s[0:1], 96')
    p('s_load_dwordx2 s[6:7], s[0:1], 112')
    p('v_lshrrev_b32 v%d, 6, v0' % vT0)
    p('v_and_b32 v%d, 63, v0' % vL)
    p('v_readfirstlane_b32 s%d, v%d' % (sW, vT0))
    p('v_lshlrev_b32 v%d, 4, v%d' % (vL16, vL))
    p('v_mov_b32 v%d, 0' % vZ)
    p('v_lshrrev_b32 v%d, 5, v%d' % (vH, vL))
    p('v_and_b32 v%d, 31, v%d' % (vP, vL))
    p('s_and_b32 s%d, s2, 7' % sT0)
    p('s_lshr_b32 s%d, s2, 3' % sT1)
    p('s_mov_b32 s%d, 0x3f803f80' % sONE)
    p('s_mov_b32 s%d, 0xffff0000' % sMHI)
    p('s_getpc_b64 s[%d:%d]' % (SCODE, SCODE + 1))
    p('L_pc:')
    p('s_sub_u32 s%d, s%d, L_pc-%s' % (SCODE, SCODE, KNAME))
    p('s_subb_u32 s%d, s%d, 0' % (SCODE + 1, SCODE + 1))
    p('s_mov_b32 s%d, L_code_end-%s' % (SCODE + 2, KNAME))
    p('s_mov_b32 s%d, 0x20000' % (SCODE + 3))
    p('s_cmp_ge_u32 s%d, 28' % sT1)
    p('s_cbranch_scc1 L_prep')

def main_path(p):
    p('s_mul_i32 s%d, s%d, 37' % (sT2, sT1)); p('s_lshr_b32 s%d, s%d, 8' % (sT2, sT2))
    p('s_mul_i32 s3, s%d, 7' % sT2); p('s_sub_u32 s%d, s%d, s3' % (sROT, sT1))
    p('s_lshr_b32 s%d, s%d, 1' % (sR, sT0)); p('s_lshl_b32 s%d, s%d, 2' % (sR, sR)); p('s_add_u32 s%d, s%d, s%d' % (sR, sR, sT2))
    p('s_and_b32 s3, s%d, 1' % sT0)
    p('s_mul_i32 s%d, s3, 7' % sC); p('s_add_u32 s%d, s%d, s%d' % (sC, sC, sROT))
    p('s_mul_i32 s%d, s%d, %d' % (sLW, sW, L_XW)); p('s_add_u32 s%d, s%d, %d' % (sLW, sLW, L0))
    for j in range(7):
        if OPT['rot']:
            p('s_add_u32 s%d, s%d, %d' % (sT0, sROT, j))
            p('s_cmp_ge_u32 s%d, 7' % sT0)
            p('s_cselect_b32 s%d, 7, 0' % sT1)
            p('s_sub_u32 s%d, s%d, s%d' % (sT0, sT0, sT1))
            p('s_lshl_b32 s%d, s%d, 7' % (KB[j], sT0))
        else:
            p('s_mov_b32 s%d, %d' % (KB[j], j * 128))
    p('v_lshrrev_b32 v%d, 3, v%d' % (vT0, vL))
    p('v_mul_u32_u24 v%d, 896, v%d' % (vT0, vT0))
    p('v_lshrrev_b32 v%d, 4, v%d' % (vT1, vL))
    p('v_and_b32 v%d, 7, v%d' % (vT2, vL))
    p('v_xor_b32 v%d, v%d, v%d' % (vT1, vT1, vT2))
    p('v_lshl_add_u32 v%d, v%d, 4, v%d' % (vT0, vT1, vT0))
    p('v_xor_b32 v%d, 64, v%d' % (vT1, vT0))
    p('s_lshl_b32 s%d, s%d, 2' % (sT0, sR)); p('s_add_u32 s%d, s%d, s%d' % (sT0, sT0, sW))
    p('s_mul_i32 s%d, s%d, %d' % (sT1, sT0, 32 * 896))
    p('v_add_u32 v%d, s%d, v%d' % (vXO[0], sT1, vT0))
    p('v_add_u32 v%d, s%d, v%d' % (vXO[1], sT1, vT1))
    p('v_add_u32 v%d, %d, v%d' % (vXO[2], 14336, vXO[0]))
    p('v_add_u32 v%d, %d, v%d' % (vXO[1], 7168, vXO[1]))
    p('v_add_u32 v%d, %d, v%d' % (vXO[3], 14336, vXO[1]))
    p('s_waitcnt lgkmcnt(0)')
    if OPT['stamps']:
        p('v_writelane_b32 v%d, s%d, 62' % (vDUM, SOUT)); p('v_writelane_b32 v%d, s%d, 61' % (vDUM, SOUT + 2))
    mk_srd(p, SX, 16, 2048 * 896)
    mk_srd(p, SWS, 6, WS_END)
    mk_srd(p, SLRE, 18, 896); mk_srd(p, SLIM, 20, 896); mk_srd(p, SLDT, 30, 896)
    def x_dma(j):
        for rg in range(4):
            p('s_add_u32 m0, s%d, %d' % (sLW, j * 4096 + rg * 1024))
            p('buffer_load_dwordx4 v%d, %s, s%d offen lds' % (vXO[rg], srd(SX), KB[j]), tok=('x', j))
    x_dma(0)
    p('buffer_load_dwordx2 v[%d:%d], v%d, %s, 0 offen sc1' % (TMP + 28, TMP + 29, vZ, srd(SWS)))
    p('s_lshl_b32 s%d, s%d, 6' % (sT1, sC))
    p('v_lshlrev_b32 v%d, 1, v%d' % (vT2, vP))
    p('buffer_load_ushort v%d, v%d, %s, s%d offen' % (TMP + 0, vT2, srd(SLRE), sT1))
    p('buffer_load_ushort v%d, v%d, %s, s%d offen' % (TMP + 1, vT2, srd(SLIM), sT1))
    p('buffer_load_ushort v%d, v%d, %s, s%d offen' % (TMP + 2, vT2, srd(SLDT), sT1))
    for j in range(1, 6): x_dma(j)
    for rg in range(4):
        p('buffer_load_dwordx4 %s, v%d, %s, s%d offen' % (v4(F0 + 4 * rg), vXO[rg], srd(SX), KB[6]))
    mk_srd(p, SBRE, 22, 448 * 896); mk_srd(p, SBIM, 24, 448 * 896); mk_srd(p, SW1, 36, 448 * 3584)
    p('s_and_b32 s%d, s%d, 1' % (sT1, sW)); p('s_lshl_b32 s%d, s%d, 6' % (sT1, sT1))
    p('v_xor_b32 v%d, s%d, v%d' % (vBO, sT1, vT0))
    p('s_mul_i32 s%d, s%d, 7168' % (sT1, sW)); p('s_mul_i32 s%d, s%d, %d' % (sT2, sC, 32 * 896)); p('s_add_u32 s%d, s%d, s%d' % (sT1, sT1, sT2))
    p('v_add_u32 v%d, s%d, v%d' % (vBO, sT1, vBO))
    p('s_lshl_b32 s%d, s%d, 10' % (sT2, sW))
    for j in range(7):
        for T in range(2):
            p('s_add_u32 m0, s%d, %d' % (sT2, L_SW + T * 28672 + j * 4096))
            p('buffer_load_dwordx4 v%d, %s, s%d offen lds' % (vBO, srd(SBRE if T == 0 else SBIM), KB[j]), tok='ssmw')
    p('v_lshlrev_b32 v%d, 7, v0' % vT2)
    p('buffer_load_dword v%d, v%d, %s, 0 offen' % (F1, vT2, srd(SCODE)), tok='cpf')
    mk_srd(p, SOUT, 4, 2048 * 1792); mk_srd(p, SDSK, 32, 896)
    for j in range(7): p('s_mul_i32 s%d, s%d, 1792' % (W1K[j], KB[j]))
    p('v_lshrrev_b32 v%d, 3, v%d' % (vT0, vL))
    p('v_mul_u32_u24 v%d, 3584, v%d' % (vT0, vT0))
    p('v_lshrrev_b32 v%d, 2, v%d' % (vT1, vL)); p('v_and_b32 v%d, 4, v%d' % (vT1, vT1))
    p('v_and_b32 v%d, 7, v%d' % (vT2, vL)); p('v_xor_b32 v%d, v%d, v%d' % (vT1, vT1, vT2))
    p('v_lshl_add_u32 v%d, v%d, 4, v%d' % (vT0, vT1, vT0))
    p('s_mul_i32 s%d, s%d, %d' % (sT1, sW, 16 * 3584)); p('s_lshl_b32 s%d, s%d, 8' % (sT2, sC)); p('s_add_u32 s%d, s%d, s%d' % (sT1, sT1, sT2))
    p('v_add_u32 v%d, s%d, v%d' % (vW1O[0], sT1, vT0))
    p('v_add_u32 v%d, %d, v%d' % (vW1O[1], 8 * 3584, vW1O[0]))
    if OPT['w1pf']:
        p('v_lshrrev_b32 v%d, 1, v0' % vT1); p('v_mul_u32_u24 v%d, 3584, v%d' % (vT1, vT1))
        p('v_and_b32 v%d, 1, v0' % vT2); p('v_lshl_add_u32 v%d, v%d, 7, v%d' % (vT1, vT2, vT1))
        p('s_and_b32 s%d, s%d, 3' % (sT1, sR)); p('s_mul_i32 s%d, s%d, %d' % (sT1, sT1, 112 * 3584)); p('s_add_u32 s%d, s%d, s%d' % (sT1, sT1, sT2))
        p('buffer_load_dword v%d, v%d, %s, s%d offen' % (F1 + 1, vT1, srd(SW1), sT1), tok='cpf')
    p('v_lshrrev_b32 v%d, 1, v%d' % (vT0, vP)); p('v_and_b32 v%d, 7, v%d' % (vT0, vT0))
    p('v_xor_b32 v%d, v%d, v%d' % (vT0, vT0, vH)); p('v_lshlrev_b32 v%d, 4, v%d' % (vT0, vT0))
    p('v_lshl_add_u32 v%d, v%d, 7, v%d' % (vT0, vP, vT0))
    p('v_add_u32 v%d, s%d, v%d' % (vRX[0], sLW, vT0))
    for i in range(1, 4): p('v_xor_b32 v%d, %d, v%d' % (vRX[i], i << 5, vRX[0]))
    p('v_lshrrev_b32 v%d, 2, v%d' % (vT0, vL)); p('v_and_b32 v%d, 3, v%d' % (vT0, vT0))
    p('v_lshlrev_b32 v%d, 7, v%d' % (vT1, vT0))
    p('v_lshl_add_u32 v%d, v%d, 10, v%d' % (vT1, vH, vT1))
    p('v_and_b32 v%d, 2, v%d' % (vT0, vT0)); p('v_lshl_add_u32 v%d, v%d, 5, v%d' % (vT1, vT0, vT1))
    p('v_and_b32 v%d, 16, v%d' % (vT0, vL)); p('v_lshl_add_u32 v%d, v%d, 1, v%d' % (vT1, vT0, vT1))
    p('v_and_b32 v%d, 3, v%d' % (vT0, vL)); p('v_lshl_add_u32 v%d, v%d, 3, v%d' % (vRF[0][0], vT0, vT1))
    p('v_add_u32 v%d, %d, v%d' % (vRF[0][0], L0, vRF[0][0]))
    p('v_xor_b32 v%d, 64, v%d' % (vRF[1][0], vRF[0][0]))
    p('v_add_u32 v%d, 0x10000, v%d' % (vRF[0][1], vRF[0][0]))
    p('v_add_u32 v%d, 0x10000, v%d' % (vRF[1][1], vRF[1][0]))
    p('s_mul_i32 s%d, s%d, 4608' % (sT1, sW)); p('s_add_u32 s%d, s%d, %d' % (sT1, sT1, L_TR))
    p('v_mul_u32_u24 v%d, 72, v%d' % (vT0, vP)); p('v_lshl_add_u32 v%d, v%d, 3, v%d' % (vT0, vH, vT0))
    p('v_add_u32 v%d, s%d, v%d' % (vTW, sT1, vT0))
    p('v_lshrrev_b32 v%d, 2, v%d' % (vT0, vL)); p('v_and_b32 v%d, 3, v%d' % (vT0, vT0))
    p('v_lshl_add_u32 v%d, v%d, 3, v%d' % (vT0, vH, vT0)); p('v_mul_u32_u24 v%d, 72, v%d' % (vT0, vT0))
    p('v_and_b32 v%d, 16, v%d' % (vT1, vL)); p('v_lshl_add_u32 v%d, v%d, 1, v%d' % (vT0, vT1, vT0))
    p('v_and_b32 v%d, 3, v%d' % (vT1, vL)); p('v_lshl_add_u32 v%d, v%d, 3, v%d' % (vT0, vT1, vT0))
    p('v_add_u32 v%d, s%d, v%d' % (vTRr, sT1, vT0))
    p('s_mov_b32 s%d, s%d' % (sCB, sROT))
    p('s_mov_b32 s%d, s3' % sHALF)
    p('s_lshl_b32 s%d, s%d, 2' % (sT0, sR)); p('s_add_u32 s%d, s%d, s%d' % (sT1, sT0, sW))
    p('s_mul_i32 s%d, s%d, 168' % (sHW, sT1)); p('s_lshl_b32 s%d, s%d, 2' % (sT2, sC)); p('s_add_u32 s%d, s%d, s%d' % (sHW, sHW, sT2))
    p('s_lshl_b32 s%d, s%d, 10' % (sHW, sHW)); p('s_add_u32 s%d, s%d, %d' % (sHW, sHW, WS_HID))
    p('s_lshl_b32 s%d, s%d, 7' % (sFW, sT1)); p('s_lshl_b32 s%d, s%d, 3' % (sT2, sC)); p('s_add_u32 s%d, s%d, s%d' % (sFW, sFW, sT2))
    p('s_add_u32 s%d, s%d, %d' % (sFW, sFW, WS_FL))
    p('s_lshl_b32 s%d, s%d, 1' % (sT2, sHALF)); p('s_add_u32 s%d, s%d, s%d' % (sRT0, sT0, sT2))
    p('s_mul_i32 s%d, s%d, 14' % (sT2, sW))
    p('s_mul_i32 s%d, s%d, 168' % (sH0, sRT0)); p('s_add_u32 s%d, s%d, s%d' % (sH0, sH0, sT2)); p('s_lshl_b32 s%d, s%d, 10' % (sH0, sH0))
    p('s_add_u32 s%d, s%d, %d' % (sH0, sH0, WS_HID)); p('s_add_u32 s%d, s%d, %d' % (sH1, sH0, 168 * 1024))
    p('s_mul_i32 s%d, s%d, 168' % (sW2, sCB)); p('s_add_u32 s%d, s%d, s%d' % (sW2, sW2, sT2)); p('s_lshl_b32 s%d, s%d, 11' % (sW2, sW2))
    p('s_add_u32 s%d, s%d, %d' % (sW2, sW2, WS_W2F))
    p('s_lshr_b32 s%d, s%d, 2' % (sT2, sT2)); p('s_lshl_b32 s%d, 0x000f000f, s%d' % (sPMASK, sT2))
    p('v_and_b32 v%d, 16, v%d' % (vT0, vL)); p('v_lshlrev_b32 v%d, 3, v%d' % (vT0, vT0))
    p('v_and_b32 v%d, 15, v%d' % (vT1, vL)); p('v_lshl_add_u32 v%d, v%d, 3, v%d' % (vT0, vT1, vT0))
    p('s_lshl_b32 s%d, s%d, 7' % (sT2, sRT0)); p('s_add_u32 s%d, s%d, %d' % (sT2, sT2, WS_FL))
    p('v_add_u32 v%d, s%d, v%d' % (vFA, sT2, vT0))
    lam_from(p, TMP + 0, TMP + 1, TMP + 2, L1r, L1i, TMP + 4, TMP + 5)
    p('v_sub_f32 v%d, 0, v%d' % (N1i, L1i))
    cmul(p, L2r, L2i, L1r, L1i, L1r, L1i)
    cmul(p, L3r, L3i, L2r, L2i, L1r, L1i)
    cmul(p, L4r, L4i, L2r, L2i, L2r, L2i)
    cmul(p, TMP + 4, TMP + 5, L4r, L4i, L4r, L4i)
    cmul(p, TMP + 6, TMP + 7, TMP + 4, TMP + 5, TMP + 4, TMP + 5)
    cmul(p, L32r, L32i, TMP + 6, TMP + 7, TMP + 6, TMP + 7)
    cmul(p, TMP + 4, TMP + 5, L32r, L32i, L32r, L32i)
    cmul(p, L128r, L128i, TMP + 4, TMP + 5, TMP + 4, TMP + 5)
    cmul(p, L256r, L256i, L128r, L128i, L128r, L128i)
    tag_setup(p, TMP + 28)
    p('v_mov_b32 v%d, s%d' % (TMP + 30, sTL)); p('v_mov_b32 v%d, s%d' % (TMP + 31, sTH))
    stamp(p, 'prologue')

    A0, A1, Q0, Q1 = TMP + 8, TMP + 9, TMP + 10, TMP + 11
    for a in (A0, A1, Q0, Q1): p('v_mov_b32 v%d, 0' % a)
    def x_read(j, slot):
        for i in range(4):
            p('ds_read_b128 %s, v%d offset:%d' % (v4(X + 16 * j + 4 * i), vRX[i], slot * 4096), tok=('xr', j))
    def x_stats(j):
        for k in range(16):
            r_ = X + 16 * j + k
            p('v_dot2c_f32_bf16 v%d, s%d, v%d' % (A0 if k % 2 == 0 else A1, sONE, r_))
            p('v_dot2c_f32_bf16 v%d, v%d, v%d' % (Q0 if k % 2 == 0 else Q1, r_, r_))
    p.waitvm(('x', 0)); x_read(0, 0)
    for j in range(1, 6):
        p.waitvm(('x', j)); x_read(j, j)
        x_stats(j - 1)
    p('v_add_u32 v%d, s%d, v%d' % (vT0, sLW, vL16))
    for rg in range(4):
        p('ds_write_b128 v%d, %s offset:%d' % (vT0, v4(F0 + 4 * rg), rg * 1024))
    x_read(6, 0)
    x_stats(5)
    x_stats(6)
    stamp(p, 'x_in')
    dma = Prog()
    for dt in range(2):
        for j in range(7 if dt == 0 else 5):
            for e in range(2):
                l_off = (0 if dt == 0 else 14336 - 128) + (2 * j + e) * 1024
                dma('s_add_u32 m0, s%d, %d' % (sLW, l_off))
                dma('buffer_load_dwordx4 v%d, %s, s%d offen offset:%d lds' % (vW1O[e], srd(SW1), W1K[j], 128 * dt), tok='ffnA' if dt == 0 else 'ffnB')
    p.extend(dma.ins[:12]); dma_rest = dma.ins[12:]
    p('v_add_f32 v%d, v%d, v%d' % (A0, A0, A1)); p('v_add_f32 v%d, v%d, v%d' % (Q0, Q0, Q1))
    p('v_mov_b32 v%d, v%d' % (A1, A0)); p('v_mov_b32 v%d, v%d' % (Q1, Q0))
    p('v_permlane32_swap_b32 v%d, v%d' % (A0, A1)); p('v_permlane32_swap_b32 v%d, v%d' % (Q0, Q1))
    p('v_add_f32 v%d, v%d, v%d' % (A0, A0, A1)); p('v_add_f32 v%d, v%d, v%d' % (Q0, Q0, Q1))
    p('v_mul_f32 v%d, 0x3b124925, v%d' % (A0, A0))
    p('v_mul_f32 v%d, 0x3b124925, v%d' % (Q0, Q0))
    p('v_fma_f32 v%d, -v%d, v%d, v%d' % (Q0, A0, A0, Q0))
    p('v_max_f32 v%d, 0, v%d' % (Q0, Q0))
    bf16_round(p, vM, A0)
    bf16_round(p, Q0, Q0)
    p('v_add_f32 v%d, 0x3727c5ac, v%d' % (Q0, Q0))
    bf16_round(p, Q0, Q0)
    p('v_sqrt_f32 v%d, v%d' % (Q0, Q0))
    bf16_round(p, vS, Q0)
    p('v_rcp_f32 v%d, v%d' % (vRSv, vS))
    p('v_mul_f32 v%d, 0x%x, v%d' % (vNK, NLOG2E, vRSv))
    p('s_lshl_b32 s%d, s%d, 7' % (sT0, sW))
    p('v_lshl_add_u32 v%d, v%d, 2, s%d' % (vT0, vP, sT0))
    p('ds_write_b32 v%d, v%d offset:%d' % (vT0, vRSv, L_RS))
    p('v_lshlrev_b32 v%d, 1, v%d' % (vT0, vT0))
    p('v_mov_b32 v%d, v%d' % (TMP + 12, vM)); p('v_mov_b32 v%d, v%d' % (TMP + 13, vRSv))
    p('ds_write_b64 v%d, v[%d:%d] offset:%d' % (vT0, TMP + 12, TMP + 13, L_MR))
    p('s_sub_u32 s%d, %d, s%d' % (sT0, L_SW, sLW))
    for i in range(4): p('v_add_u32 v%d, s%d, v%d' % (vRX[i], sT0, vRX[i]))

    def d_step(ks):
        q = Prog()
        for k in range(4):
            r_ = X + 4 * ks + k; lo, hi = TMP + 8 + 2 * (k % 2), TMP + 9 + 2 * (k % 2)
            q('v_lshlrev_b32 v%d, 16, v%d' % (lo, r_))
            q('v_and_b32 v%d, s%d, v%d' % (hi, sMHI, r_))
            q('v_sub_f32 v%d, v%d, v%d' % (lo, lo, vM))
            q('v_sub_f32 v%d, v%d, v%d' % (hi, hi, vM))
            q('v_cvt_pk_bf16_f32 v%d, v%d, v%d' % (r_, lo, hi))
        return q.ins
    LEAD = 8
    head = []
    for ks in range(LEAD): head += d_step(ks)
    groups = [head[i:i + 5] for i in range(0, len(head), 5)]
    nd = 2 * 10
    p.extend(interleave(groups, dma_rest[:nd])); dma_rest = dma_rest[nd:]
    p.waitvm('ssmw')
    p('s_barrier')
    stamp(p, 'B1')
    wb = [0]
    def wbuf(n): return WB + 4 * (n % 8)
    def ssm_read(n):
        ks, T = n // 2, n % 2
        j, i = ks // 4, ks % 4
        q = Prog(); q('ds_read_b128 %s, v%d offset:%d' % (v4(wbuf(n)), vRX[i], T * 28672 + j * 4096)); return q.ins
    PRE = 6
    for n in range(PRE): p.extend(ssm_read(n))
    groups = []
    for n in range(56):
        ks, T = n // 2, n % 2
        q = Prog()
        acc = SRE if T == 0 else SIM
        q('v_mfma_f32_32x32x16_bf16 %s, %s, %s, %s' % (v16(acc), v4(X + 4 * ks), v4(wbuf(n)), '0' if ks == 0 else v16(acc)))
        g = q.ins
        if n + PRE < 56: g = g + ssm_read(n + PRE)
        groups.append(g)
    fill = []
    for ks in range(LEAD, 28): fill += d_step(ks)
    k = 0; dk = 0
    for n, g in enumerate(groups):
        p.extend(g)
        tgt = min(len(fill), (len(fill) * (n + 1)) // 38)
        p.extend(fill[k:tgt]); k = tgt
        if n % 3 == 2 and dk < len(dma_rest): p.extend(dma_rest[dk:dk + 2]); dk += 2
    p.extend(dma_rest[dk:])
    RSF = TMP + 8
    p('s_lshl_b32 s%d, s%d, 7' % (sT0, sW))
    p('v_lshl_add_u32 v%d, v%d, 4, s%d' % (vT0, vH, sT0))
    for g in range(4):
        p('ds_read_b128 %s, v%d offset:%d' % (v4(RSF + 4 * g), vT0, L_RS + 32 * g))
    p.waitvm('ffnA')
    p('s_waitcnt lgkmcnt(0)')
    p('s_barrier')
    stamp(p, 'B2')
    p('s_lshl_b32 s%d, s%d, 12' % (sT2, sW))
    for j in (5, 6):
        for e in range(2):
            p('s_add_u32 m0, s%d, %d' % (sT2, L_SW - 128 + (2 * (j - 5) + e) * 1024))
            p('buffer_load_dwordx4 v%d, %s, s%d offen offset:128 lds' % (vW1O[e], srd(SW1), W1K[j]), tok='ffnB')
    PFR = TMP + 26
    p('v_lshlrev_b32 v%d, 3, v%d' % (vT3, vP))
    pf_load = 'buffer_load_dwordx2 v[%d:%d], v%d, %s, 0 offen offset:%d sc1' % (PFR, PFR + 1, vT3, srd(SWS), 0)
    p('v_add_u32 v%d, %d, v%d' % (vT3, WS_PF, vT3))
    p(pf_load)

    def ffn_read(T, ks, n):
        dt, tt = T // 2, T % 2
        j, i = ks // 4, ks % 4
        if dt == 0: U = i * L_XW + 2 * j * 1024
        elif j <= 4: U = i * L_XW + 14336 + 2 * j * 1024
        else: U = L_SW - L0 + i * 4096 + 2 * (j - 5) * 1024
        q = Prog()
        for hh in range(2):
            off = U + hh * 512; win = 0
            if off >= 65536: off -= 65536; win = 1
            q('ds_read_b64_tr_b16 %s, v%d offset:%d' % (v2(wbuf(n) + 2 * hh), vRF[tt][win], off))
        return q.ins
    def silu(T):
        acc = F0 if T % 2 == 0 else F1
        q = Prog()
        tp = [vT0, vT1, vT2, vBO]
        for b in range(0, 16, 4):
            for k in range(4): q('v_mul_f32 v%d, v%d, v%d' % (tp[k], vNK, acc + b + k))
            for k in range(4): q('v_exp_f32 v%d, v%d' % (tp[k], tp[k]))
            for k in range(4): q('v_fma_f32 v%d, v%d, v%d, v%d' % (tp[k], tp[k], vS, vS))
            for k in range(4): q('v_rcp_f32 v%d, v%d' % (tp[k], tp[k]))
            for k in range(4): q('v_mul_f32 v%d, v%d, v%d' % (acc + b + k, acc + b + k, tp[k]))
            q('v_cvt_pk_bf16_f32 v%d, v%d, v%d' % (acc + b // 2, acc + b, acc + b + 1))
            q('v_cvt_pk_bf16_f32 v%d, v%d, v%d' % (acc + b // 2 + 1, acc + b + 2, acc + b + 3))
        q('s_add_u32 s%d, s%d, %d' % (sT3, sHW, ((T // 2) * 56 + 2 * (T % 2)) * 1024))
        q('buffer_store_dwordx4 %s, v%d, %s, s%d offen sc1' % (v4(acc), vL16, srd(SWS), sT3), tok=('hs', T))
        q('buffer_store_dwordx4 %s, v%d, %s, s%d offen offset:1024 sc1' % (v4(acc + 4), vL16, srd(SWS), sT3), tok=('hs', T))
        return q.ins
    E0r, E0i, E1r, E1i = vXO[0], vXO[1], vXO[2], vXO[3]
    def scan1():
        q = Prog()
        for g in range(4):
            for i in range(4):
                q('v_mul_f32 v%d, v%d, v%d' % (SRE + 4 * g + i, RSF + 4 * g + i, SRE + 4 * g + i))
                q('v_mul_f32 v%d, v%d, v%d' % (SIM + 4 * g + i, RSF + 4 * g + i, SIM + 4 * g + i))
        for i in range(1, 4):
            for g in range(4):
                a, b = SRE + 4 * g + i, SIM + 4 * g + i
                q('v_fmac_f32 v%d, v%d, v%d' % (a, L1r, a - 1))
                q('v_fmac_f32 v%d, v%d, v%d' % (b, L1r, b - 1))
                q('v_fmac_f32 v%d, v%d, v%d' % (a, N1i, b - 1))
                q('v_fmac_f32 v%d, v%d, v%d' % (b, L1i, a - 1))
        for g in range(4):
            b = RSF + 4 * g
            q('v_mov_b32 v%d, v%d' % (b, SRE + 4 * g + 3)); q('v_mov_b32 v%d, v%d' % (b + 1, SRE + 4 * g + 3))
            q('v_mov_b32 v%d, v%d' % (b + 2, SIM + 4 * g + 3)); q('v_mov_b32 v%d, v%d' % (b + 3, SIM + 4 * g + 3))
        for g in range(4):
            b = RSF + 4 * g
            q('v_permlane32_swap_b32 v%d, v%d' % (b, b + 1)); q('v_permlane32_swap_b32 v%d, v%d' % (b + 2, b + 3))
        cur = (RSF, RSF + 2); nxt = [(E0r, E0i), (E1r, E1i)]
        for s in range(1, 8):
            g, h = s // 2, s % 2
            er, ei = RSF + 4 * g + h, RSF + 4 * g + 2 + h
            d = nxt[s % 2]
            q('v_fma_f32 v%d, v%d, v%d, v%d' % (d[0], L4r, cur[0], er))
            q('v_fma_f32 v%d, v%d, v%d, v%d' % (d[1], L4r, cur[1], ei))
            q('v_fma_f32 v%d, -v%d, v%d, v%d' % (d[0], L4i, cur[1], d[0]))
            q('v_fmac_f32 v%d, v%d, v%d' % (d[1], L4i, cur[0]))
            cur = d
        assert cur == (E1r, E1i)
        q('s_lshl_b32 s%d, s%d, 8' % (sT4, sW))
        q('v_lshl_add_u32 v%d, v%d, 3, s%d' % (vT0, vP, sT4))
        q('ds_write_b64 v%d, v[%d:%d] offset:%d' % (vT0, E1r, E1i, L_EW), tok='ew')
        return q.ins
    w2_regs = []
    def w2_load(idx, reg):
        s_, kk, ct = idx // 28, (idx % 28) // 2, idx % 2
        off = (s_ * 56 + kk) * 2048 + ct * 1024
        q = Prog()
        if off % 4096 == 0 or idx in w2_force:
            q('s_add_u32 s%d, s%d, %d' % (sT5, sW2, off - off % 4096))
        q('buffer_load_dwordx4 %s, v%d, %s, s%d offen offset:%d sc1' % (v4(reg), vL16, srd(SWS), sT5, off % 4096))
        return q.ins
    w2_force = set()
    n = 56
    PRE = 6
    seq = [(T, ks) for T in range(4) for ks in range(28)]
    for m in range(PRE): p.extend(ffn_read(seq[m][0], seq[m][1], n + m))
    w2i = 0
    EWR = TMP + 0
    for T in range(4):
        groups = []
        acc = F0 if T % 2 == 0 else F1
        for ks in range(28):
            m = T * 28 + ks
            q = Prog()
            q('v_mfma_f32_32x32x16_bf16 %s, %s, %s, %s' % (v16(acc), v4(wbuf(n + m)), v4(X + 4 * ks), '0' if ks == 0 else v16(acc)))
            g = q.ins
            if m + PRE < 112:
                pre = Prog()
                if seq[m + PRE] == (2, 0):
                    pre.waitvm('ffnB'); pre('s_barrier')
                g = g + pre.ins + ffn_read(seq[m + PRE][0], seq[m + PRE][1], n + m + PRE)
            groups.append(g)
        if T == 0:
            fill = scan1()
            p.extend(groups[0]); p.extend(groups[1])
            p.extend(interleave(groups[2:], fill))
            p.waitlgkm('ew')
            p('s_barrier')
            p('v_lshlrev_b32 v%d, 3, v%d' % (vT0, vP))
            p('ds_read_b64 v[%d:%d], v%d offset:%d' % (EWR, EWR + 1, vT0, L_EW))
            p('ds_read_b64 v[%d:%d], v%d offset:%d' % (EWR + 2, EWR + 3, vT0, L_EW + 256))
            p('ds_read_b64 v[%d:%d], v%d offset:%d' % (EWR + 4, EWR + 5, vT0, L_EW + 512))
            p('ds_read_b64 v[%d:%d], v%d offset:%d' % (EWR + 6, EWR + 7, vT0, L_EW + 768))
            p('s_mov_b32 s%d, 0x0fffffff' % sT6)
            poll_check(p, 'prep', PFR, sT6, pf_load)
            stamp(p, 'T0')
        else:
            fill = []
            if T == 1:
                q = Prog()
                G = TMP + 24
                q('v_fma_f32 v%d, v%d, v%d, v%d' % (E0r, L32r, EWR, EWR + 2)); q('v_fma_f32 v%d, v%d, v%d, v%d' % (E0i, L32r, EWR + 1, EWR + 3))
                q('v_fma_f32 v%d, -v%d, v%d, v%d' % (E0r, L32i, EWR + 1, E0r)); q('v_fmac_f32 v%d, v%d, v%d' % (E0i, L32i, EWR))
                q('v_fma_f32 v%d, v%d, v%d, v%d' % (E1r, L32r, E0r, EWR + 4)); q('v_fma_f32 v%d, v%d, v%d, v%d' % (E1i, L32r, E0i, EWR + 5))
                q('v_fma_f32 v%d, -v%d, v%d, v%d' % (E1r, L32i, E0i, E1r)); q('v_fmac_f32 v%d, v%d, v%d' % (E1i, L32i, E0r))
                q('v_fma_f32 v%d, v%d, v%d, v%d' % (G, L32r, E1r, EWR + 6)); q('v_fma_f32 v%d, v%d, v%d, v%d' % (G + 1, L32r, E1i, EWR + 7))
                q('v_fma_f32 v%d, -v%d, v%d, v%d' % (G, L32i, E1i, G)); q('v_fmac_f32 v%d, v%d, v%d' % (G + 1, L32i, E1r))
                q('v_mov_b32 v%d, s%d' % (G + 2, sTL)); q('v_mov_b32 v%d, s%d' % (G + 3, sTH))
                q('s_lshl_b32 s%d, s%d, 13' % (sT4, sC)); q('s_add_u32 s%d, s%d, %d' % (sT4, sT4, WS_EG))
                q('s_add_u32 s%d, s6, s%d' % (SEG, sT4)); q('s_addc_u32 s%d, s7, 0' % (SEG + 1))
                q('s_mov_b32 s%d, 8192' % (SEG + 2)); q('s_mov_b32 s%d, 0x20000' % (SEG + 3))
                q('s_lshl_b32 s%d, s%d, 3' % (sT4, sW)); q('s_lshl_b32 s%d, 0xff, s%d' % (sT4, sT4))
                q('s_lshl_b32 s%d, s%d, 9' % (sT6, sR))
                q('s_mov_b32 exec_lo, s%d' % sT4); q('s_mov_b32 exec_hi, 0')
                q('buffer_store_dwordx4 %s, v%d, %s, s%d offen sc1' % (v4(G), vL16, srd(SEG), sT6), tok='eg')
                q('s_mov_b64 exec, -1')
                p.extend(q.ins)
            fill += silu(T - 1)
            wl = []
            cnt = 18 if T < 3 else 20
            for _ in range(cnt):
                if w2i < 56:
                    if _ == 0: w2_force.add(w2i)
                    wl.append(w2_load(w2i, 256 + 4 * w2i)); w2_regs.append(256 + 4 * w2i); w2i += 1
            gs = interleave_groups(groups, wl)
            p.extend(gs[0]); p.extend(gs[1]); p.extend(gs[2])
            p.extend(interleave(gs[3:], fill))
            if T == 2:
                p.waitvm(('hs', 1))
                flag_store(p, vZ, sFW, 0)
            stamp(p, 'T%d' % T)
        if T == 2:
            pass
    LB = X
    p('s_sub_u32 s%d, s%d, 1' % (sT0, sR)); p('s_lshl_b32 s%d, s%d, 9' % (sT0, sT0))
    p('v_lshlrev_b32 v%d, 9, v%d' % (vT0, vH))
    p('v_sub_u32 v%d, s%d, v%d' % (vT0, sT0, vT0))
    p('v_lshl_add_u32 v%d, v%d, 4, v%d' % (vRX[0], vP, vT0))
    lb_loads = Prog()
    for m in range(8):
        if m: lb_loads('v_subrev_u32 v%d, %d, v%d' % (vRX[1], 1024 * m, vRX[0]))
        lb_loads('buffer_load_dwordx4 %s, v%d, %s, 0 offen sc1' % (v4(LB + 4 * m), vRX[1] if m else vRX[0], srd(SEG)))
    lb_text = '\n'.join(i.text for i in lb_loads.ins)
    p.extend(lb_loads.ins)
    p.extend(silu(3))
    FR = TMP + 26
    def fl_load(stage): return 'buffer_load_dwordx2 v[%d:%d], v%d, %s, s%d offen sc1' % (FR, FR + 1, vFA, srd(SWS), sT6)
    w2_force.add(w2i)
    for k in range(20):
        p.extend(w2_load(w2i, X + 32 + 4 * k)); w2_regs.append(X + 32 + 4 * k); w2i += 1
    p('s_mov_b32 s%d, 0' % sT6)
    p(fl_load(0))
    stamp(p, 'silu3')
    def lb_check(q, lab_bad):
        q('v_add3_u32 v%d, v%d, v%d, v%d' % (vT0, LB + 2, LB + 6, LB + 10)); q('v_add3_u32 v%d, v%d, v%d, v%d' % (vT1, LB + 3, LB + 7, LB + 11))
        q('v_add3_u32 v%d, v%d, v%d, v%d' % (vT0, vT0, LB + 14, LB + 18)); q('v_add3_u32 v%d, v%d, v%d, v%d' % (vT1, vT1, LB + 15, LB + 19))
        q('v_add3_u32 v%d, v%d, v%d, v%d' % (vT0, vT0, LB + 22, LB + 26)); q('v_add3_u32 v%d, v%d, v%d, v%d' % (vT1, vT1, LB + 23, LB + 27))
        q('v_add_u32 v%d, v%d, v%d' % (vT0, vT0, LB + 30)); q('v_add_u32 v%d, v%d, v%d' % (vT1, vT1, LB + 31))
        q('v_cmp_ne_u32 vcc, v%d, v%d' % (vT0, vT2))
        q('v_cmp_ne_u32 s[%d:%d], v%d, v%d' % (sP0, sP0 + 1, vT1, vT3))
        q('s_nop 1')
        q('s_or_b64 vcc, vcc, s[%d:%d]' % (sP0, sP0 + 1))
        q('s_cbranch_scc1 %s' % lab_bad)
    p('v_sub_u32 v%d, s%d, v%d' % (vT3, sR, vH)); p('v_add_u32 v%d, 1, v%d' % (vT3, vT3)); p('v_lshrrev_b32 v%d, 1, v%d' % (vT3, vT3))
    p('v_mul_lo_u32 v%d, s%d, v%d' % (vT2, sTL, vT3)); p('v_mul_lo_u32 v%d, s%d, v%d' % (vT3, sTH, vT3))
    lb_check(p, 'L_retry_lb')
    p('L_ok_lb:')
    q = Prog()
    q('L_retry_lb:'); q('s_mov_b32 s%d, 0' % sSPIN); q('L_loop_lb:'); q('s_sleep 1'); q(lb_text); q('s_waitcnt vmcnt(0)')
    q('s_add_u32 s%d, s%d, 1' % (sSPIN, sSPIN)); q('s_cmp_gt_u32 s%d, %d' % (sSPIN, OPT['spin'])); q('s_cbranch_scc1 L_ok_lb')
    lb_check(q, 'L_loop_lb'); q('s_branch L_ok_lb')
    retry_blocks.append(q)
    for m in range(6, -1, -1):
        cmac(p, LB + 4 * m, LB + 4 * m + 1, L256r, L256i, LB + 4 * m + 4, LB + 4 * m + 5)
    p('v_mov_b32 v%d, v%d' % (LB + 4, LB)); p('v_mov_b32 v%d, v%d' % (LB + 5, LB + 1))
    p('v_permlane32_swap_b32 v%d, v%d' % (LB, LB + 4)); p('v_permlane32_swap_b32 v%d, v%d' % (LB + 1, LB + 5))
    cmac(p, LB, LB + 1, L128r, L128i, LB + 4, LB + 5)
    Cr, Ci = LB, LB + 1
    for k in range(3):
        p('s_cmp_le_u32 s%d, %d' % (sW, k)); p('s_cbranch_scc1 L_cw_done')
        cmac(p, EWR + 2 * k, EWR + 2 * k + 1, L32r, L32i, Cr, Ci)
        p('v_mov_b32 v%d, v%d' % (Cr, EWR + 2 * k)); p('v_mov_b32 v%d, v%d' % (Ci, EWR + 2 * k + 1))
    p('L_cw_done:')
    CS = LB + 8
    p('v_mov_b32 v%d, v%d' % (CS, Cr)); p('v_mov_b32 v%d, v%d' % (CS + 1, Ci))
    for s in range(7):
        g, h = s // 2, s % 2
        er, ei = RSF + 4 * g + h, RSF + 4 * g + 2 + h
        d, cur = CS + 2 * (s + 1), CS + 2 * s
        p('v_fma_f32 v%d, v%d, v%d, v%d' % (d, L4r, cur, er))
        p('v_fma_f32 v%d, v%d, v%d, v%d' % (d + 1, L4r, cur + 1, ei))
        p('v_fma_f32 v%d, -v%d, v%d, v%d' % (d, L4i, cur + 1, d))
        p('v_fmac_f32 v%d, v%d, v%d' % (d + 1, L4i, cur))
    p('v_cmp_ne_u32 vcc, 0, v%d' % vH)
    for g in range(4):
        a = CS + 4 * g
        p('v_cndmask_b32 v%d, v%d, v%d, vcc' % (a, a, a + 2))
        p('v_cndmask_b32 v%d, v%d, v%d, vcc' % (a + 1, a + 1, a + 3))
        p('v_sub_f32 v%d, 0, v%d' % (a + 2, a + 1))
    PW = [(L1r, L1i), (L2r, L2i), (L3r, L3i), (L4r, L4i)]
    for g in range(4):
        a = CS + 4 * g
        for i in range(4):
            ur, ui = SRE + 4 * g + i, SIM + 4 * g + i
            p('v_fmac_f32 v%d, v%d, v%d' % (ur, PW[i][0], a))
            p('v_fmac_f32 v%d, v%d, v%d' % (ui, PW[i][0], a + 1))
            p('v_fmac_f32 v%d, v%d, v%d' % (ur, PW[i][1], a + 2))
            p('v_fmac_f32 v%d, v%d, v%d' % (ui, PW[i][1], a))
        for comp, base in ((0, SRE), (1, SIM)):
            b = base + 4 * g
            p('v_cvt_pk_bf16_f32 v%d, v%d, v%d' % (b, b, b + 1))
            p('v_cvt_pk_bf16_f32 v%d, v%d, v%d' % (b + 1, b + 2, b + 3))
            p('ds_write_b64 v%d, v[%d:%d] offset:%d' % (vTW, b, b + 1, comp * 2304 + 16 * g))
    HS = F0
    for comp in range(2):
        for q_ in range(2):
            for hh in range(2):
                p('ds_read_b64_tr_b16 %s, v%d offset:%d' % (v2(HS + 8 * comp + 4 * q_ + 2 * hh), vTRr, comp * 2304 + (16 * q_ + 4 * hh) * 72))
    stamp(p, 'fixup')
    poll_check(p, 'fa', FR, sPMASK, fl_load(0))
    p.waitvm(('hs', 3))
    flag_store(p, vZ, sFW_stage(p, 1), 0)
    pool = [X + 4 * k for k in range(8)] + [WB + 4 * k for k in range(8)] + [F1 + 4 * k for k in range(4)]
    ACC = {(0, 0): SRE, (0, 1): SIM, (1, 0): 192, (1, 1): 208}
    hid_regs = {}
    def hid_load(idx):
        s_, kk, rt = idx // 28, (idx % 28) // 2, idx % 2
        off = (s_ * 56 + kk) * 1024
        reg = pool.pop(0); hid_regs[idx] = reg
        sreg = sT3 if rt == 0 else sT4
        if off % 4096 == 0 or kk == 0:
            p('s_add_u32 s%d, s%d, %d' % (sreg, sH0 if rt == 0 else sH1, off - off % 4096))
        p('buffer_load_dwordx4 %s, v%d, %s, s%d offen offset:%d sc1' % (v4(reg), vL16, srd(SWS), sreg, off % 4096))
    hi = 0
    while hi < 20: hid_load(hi); hi += 1
    p('s_add_u32 s%d, s%d, %d' % (sT2, sHW, 112 * 1024))
    for f in range(4):
        p('buffer_store_dwordx4 %s, v%d, %s, s%d offen offset:%d sc1' % (v4(HS + 4 * f), vL16, srd(SWS), sT2, f * 1024), tok='hsC')
    pool += [F0 + 4 * k for k in range(4)]
    w2_force.add(w2i)
    tail_regs = [TMP + 4 * k for k in range(6)]
    w2_pending = list(range(w2i, 84))
    p('s_barrier')
    stamp(p, 'g2start')
    polled = {0}
    flagC_done = False
    def top_up(step):
        nonlocal hi, flagC_done
        while w2_pending and (tail_regs or (pool and step >= 14)):
            idx = w2_pending.pop(0)
            reg = tail_regs.pop(0) if tail_regs else pool.pop(0)
            w2_force.add(idx)
            p.extend(w2_load(idx, reg)); w2_regs.append(reg)
        while hi < 84 and pool:
            st = hi // 28
            if st not in polled:
                if (st, 'issued') not in polled:
                    p('s_mov_b32 s%d, %d' % (sT6, st * 8192)); p(fl_load(st)); polled.add((st, 'issued')); polled.add((st, step))
                    return
                if step < [x[1] for x in polled if isinstance(x, tuple) and x[0] == st and x[1] != 'issued'][0] + 3: return
                poll_check(p, 'f%d' % st, FR, sPMASK, fl_load(st)); polled.add(st)
            hid_load(hi); hi += 1
    for step in range(42):
        top_up(step)
        if step == 8:
            p.waitvm('hsC'); flag_store(p, vZ, sFW_stage(p, 2), 0)
        w0, w1_ = w2_regs[2 * step], w2_regs[2 * step + 1]
        while 2 * step + 1 not in hid_regs: top_up(99)
        h0, h1 = hid_regs[2 * step], hid_regs[2 * step + 1]
        for ct, wr in ((0, w0), (1, w1_)):
            for rt, hr in ((0, h0), (1, h1)):
                a = ACC[(ct, rt)]
                p('v_mfma_f32_32x32x16_bf16 %s, %s, %s, %s' % (v16(a), v4(wr), v4(hr), '0' if step == 0 else v16(a)))
        pool += [w0, w1_, h0, h1]
        if step == 30:
            epi_loads(p)
    stamp(p, 'g2end')
    epilogue(p, ACC)

def interleave_groups(groups, extra):
    out = [list(g) for g in groups]
    n = len(groups)
    for k, e in enumerate(extra):
        out[min(n - 1, (k * n) // max(1, len(extra)))] += e
    return out

def sFW_stage(p, st):
    p('s_add_u32 s%d, s%d, %d' % (sT1, sFW, st * 8192))
    return sT1

EPX = 224 + 0
def epi_loads(p):
    pass

def epilogue(p, ACC):
    EX = 16; ED = 24
    p('v_lshrrev_b32 v%d, 4, v%d' % (vT0, vL)); p('v_and_b32 v%d, 15, v%d' % (vT1, vL))
    p('v_mul_u32_u24 v%d, 896, v%d' % (vT2, vT0)); p('v_lshl_add_u32 v%d, v%d, 3, v%d' % (vT2, vT1, vT2))
    p('s_lshl_b32 s%d, s%d, 5' % (sT0, sRT0)); p('s_lshl_b32 s%d, s%d, 4' % (sT1, sW)); p('s_add_u32 s%d, s%d, s%d' % (sT0, sT0, sT1))
    p('s_mul_i32 s%d, s%d, 896' % (sT0, sT0)); p('s_lshl_b32 s%d, s%d, 7' % (sT1, sCB)); p('s_add_u32 s%d, s%d, s%d' % (sT0, sT0, sT1))
    for it in range(4):
        p('s_add_u32 s%d, s%d, %d' % (sT2, sT0, it * 4 * 896))
        p('buffer_load_dwordx2 v[%d:%d], v%d, %s, s%d offen' % (EX + 2 * it, EX + 2 * it + 1, vT2, srd(SX), sT2))
    p('v_lshlrev_b32 v%d, 3, v%d' % (vT3, vT1))
    p('buffer_load_dwordx2 v[%d:%d], v%d, %s, s%d offen' % (ED, ED + 1, vT3, srd(SDSK), sT1))
    PWA = 28
    p('v_and_b32 v%d, 7, v%d' % (PWA, vP)); p('v_xor_b32 v%d, v%d, v%d' % (PWA, PWA, vH)); p('v_lshlrev_b32 v%d, 4, v%d' % (PWA, PWA))
    p('v_lshl_add_u32 v%d, v%d, 8, v%d' % (PWA, vP, PWA))
    p('s_lshl_b32 s%d, s%d, 14' % (sT1, sW)); p('s_add_u32 s%d, s%d, %d' % (sT1, sT1, L0)); p('v_add_u32 v%d, s%d, v%d' % (PWA, sT1, PWA))
    for g in range(1, 4): p('v_xor_b32 v%d, %d, v%d' % (PWA + g, g << 5, PWA))
    for rt in range(2):
        for ct in range(2):
            for g in range(4):
                p('ds_write_b128 v%d, %s offset:%d' % (PWA + g, v4(ACC[(ct, rt)] + 4 * g), rt * 8192 + ct * 128))
    PRA = 32
    p('v_xor_b32 v%d, v%d, v%d' % (PRA, vT1, vT0)); p('v_lshlrev_b32 v%d, 4, v%d' % (PRA, PRA))
    p('v_lshl_add_u32 v%d, v%d, 8, v%d' % (PRA, vT0, PRA))
    p('s_lshl_b32 s%d, s%d, 12' % (sT1, sW)); p('s_add_u32 s%d, s%d, %d' % (sT1, sT1, L0)); p('v_add_u32 v%d, s%d, v%d' % (PRA, sT1, PRA))
    p('v_xor_b32 v%d, 64, v%d' % (PRA + 1, PRA)); p('v_add_u32 v%d, 1024, v%d' % (PRA + 1, PRA + 1))
    ST = 36
    p('s_lshl_b32 s%d, s%d, 9' % (sT1, sHALF)); p('s_lshl_b32 s%d, s%d, 7' % (sT2, sW)); p('s_add_u32 s%d, s%d, s%d' % (sT1, sT1, sT2))
    p('v_lshl_add_u32 v%d, v%d, 3, s%d' % (vT3, vT0, sT1))
    for it in range(4):
        p('ds_read_b64 v[%d:%d], v%d offset:%d' % (ST + 2 * it, ST + 2 * it + 1, vT3, L_MR + 32 * it))
    D = 44; B = 48
    p('v_lshlrev_b32 v%d, 16, v%d' % (D, ED)); p('v_and_b32 v%d, s%d, v%d' % (D + 1, sMHI, ED))
    p('v_lshlrev_b32 v%d, 16, v%d' % (D + 2, ED + 1)); p('v_and_b32 v%d, s%d, v%d' % (D + 3, sMHI, ED + 1))
    T = 64
    for it in range(4):
        b = B + 4 * it; m, rs = ST + 2 * it, ST + 2 * it + 1
        p('v_lshlrev_b32 v%d, 16, v%d' % (b, EX + 2 * it)); p('v_and_b32 v%d, s%d, v%d' % (b + 1, sMHI, EX + 2 * it))
        p('v_lshlrev_b32 v%d, 16, v%d' % (b + 2, EX + 2 * it + 1)); p('v_and_b32 v%d, s%d, v%d' % (b + 3, sMHI, EX + 2 * it + 1))
        for k in range(4): p('v_sub_f32 v%d, v%d, v%d' % (T + k, b + k, m))
        def rnd():
            p('v_cvt_pk_bf16_f32 v%d, v%d, v%d' % (T + 4, T, T + 1)); p('v_cvt_pk_bf16_f32 v%d, v%d, v%d' % (T + 5, T + 2, T + 3))
            p('v_lshlrev_b32 v%d, 16, v%d' % (T, T + 4)); p('v_and_b32 v%d, s%d, v%d' % (T + 1, sMHI, T + 4))
            p('v_lshlrev_b32 v%d, 16, v%d' % (T + 2, T + 5)); p('v_and_b32 v%d, s%d, v%d' % (T + 3, sMHI, T + 5))
        rnd()
        for k in range(4): p('v_mul_f32 v%d, v%d, v%d' % (T + k, T + k, rs))
        rnd()
        for k in range(4): p('v_mul_f32 v%d, v%d, v%d' % (T + k, T + k, D + k))
        rnd()
        for k in range(4): p('v_add_f32 v%d, v%d, v%d' % (b + k, b + k, T + k))
    p('s_waitcnt lgkmcnt(0)')
    p('s_barrier')
    R = 72
    for it in range(4):
        for P in range(4):
            p('ds_read_b128 %s, v%d offset:%d' % (v4(R + 16 * it + 4 * P), PRA + (it & 1), P * 16384 + (it >> 1) * 2048))
    p('v_lshlrev_b32 v%d, 1, v%d' % (vT2, vT2))
    p('s_lshl_b32 s%d, s%d, 1' % (sT0, sT0))
    for it in range(4):
        b = B + 4 * it
        for P in range(4):
            for k in range(4): p('v_add_f32 v%d, v%d, v%d' % (b + k, b + k, R + 16 * it + 4 * P + k))
        p('s_add_u32 s%d, s%d, %d' % (sT2, sT0, it * 4 * 1792))
        p('buffer_store_dwordx4 %s, v%d, %s, s%d offen' % (v4(b), vT2, srd(SOUT), sT2))
    if OPT['stamps']:
        stamp(p, 'end')
        p('s_memrealtime s[%d:%d]' % (sP0, sP0 + 1)); p('s_load_dwordx2 s[36:37], s[0:1], 104'); p('s_waitcnt lgkmcnt(0)')
        p('v_writelane_b32 v%d, s%d, 63' % (vDUM, sP0))
        mk_srd(p, 84, 36, 256)
        p('v_readlane_b32 s%d, v%d, 62' % (sT0, vDUM)); p('v_readlane_b32 s%d, v%d, 61' % (sT1, vDUM))
        p('s_not_b32 s%d, s%d' % (sT0, sT0))
        p('v_mov_b32 v%d, s%d' % (vT0, sT0)); p('v_mov_b32 v%d, s%d' % (vT1, sP0))
        p('s_mov_b64 exec, 1')
        p('buffer_atomic_umax v%d, v%d, s[84:87], 0 offen sc1' % (vT0, vZ))
        p('buffer_atomic_umax v%d, v%d, s[84:87], 0 offen offset:4 sc1' % (vT1, vZ))
        p('s_mov_b64 exec, -1')
        p('s_lshl_b32 s%d, s2, 2' % sT0); p('s_add_u32 s%d, s%d, s%d' % (sT0, sT0, sW)); p('s_cmp_lg_u32 s%d, %d' % (sT0, OPT.get('dbgwave', 0)))
        p('s_cbranch_scc1 L_nodbg')
        p('v_subrev_u32 v%d, s%d, v%d' % (vT0, sT1, vDUM))
        p('v_lshlrev_b32 v%d, 2, v%d' % (vT1, vL))
        p('s_mov_b64 exec, 0x3fff')
        p('buffer_store_dword v%d, v%d, s[84:87], 0 offen offset:8' % (vT0, vT1))
        p('s_mov_b64 exec, -1')
        p('L_nodbg:')
        p('s_lshl_b32 s%d, s2, 2' % sT0); p('s_add_u32 s%d, s%d, s%d' % (sT0, sT0, sW)); p('s_lshl_b32 s%d, s%d, 8' % (sT0, sT0))
        p('s_add_u32 s%d, s%d, %d' % (sT0, sT0, WS_STAMP))
        p('v_lshlrev_b32 v%d, 2, v%d' % (vT0, vL))
        p('buffer_store_dword v%d, v%d, %s, s%d offen' % (vDUM, vT0, srd(SWS), sT0))
    p('s_cmp_eq_u32 s%d, 15' % sR); p('s_cbranch_scc0 L_exit')
    p('s_cmp_eq_u32 s%d, 13' % sC); p('s_cbranch_scc0 L_exit')
    p('s_cmp_eq_u32 s%d, 3' % sW); p('s_cbranch_scc0 L_exit')
    p('v_mov_b32 v%d, s%d' % (TMP + 30, sTL)); p('v_mov_b32 v%d, s%d' % (TMP + 31, sTH))
    p('s_mov_b32 s%d, %d' % (sT0, WS_EPOCH))
    flag_store(p, vZ, sT0, 0)
    p('s_endpgm')

def prep_path(p):
    SW2, SCRE, SCIM = 44, 48, 52
    sQ = 8
    p('L_prep:')
    p.reset()
    p('s_lshl_b32 s%d, s%d, 2' % (sQ, sT0)); p('s_add_u32 s%d, s%d, s%d' % (sQ, sQ, sT1)); p('s_sub_u32 s%d, s%d, 28' % (sQ, sQ))
    p('s_cmp_ge_u32 s%d, 28' % sQ); p('s_cbranch_scc1 L_exit')
    p('s_waitcnt lgkmcnt(0)')
    mk_srd(p, SW2, 38, 1792 * 896); mk_srd(p, SCRE, 26, 448 * 896); mk_srd(p, SCIM, 28, 448 * 896)
    mk_srd(p, SWS, 6, WS_END)
    mk_srd(p, SLRE, 18, 896); mk_srd(p, SLIM, 20, 896); mk_srd(p, SLDT, 30, 896)
    sKF, sF0, sKS = 84, 85, 86
    p('s_lshl_b32 s%d, s%d, 2' % (sKF, sQ)); p('s_add_u32 s%d, s%d, s%d' % (sKF, sKF, sW))
    p('s_cmp_ge_u32 s%d, 56' % sKF); p('s_cselect_b32 s%d, 56, 0' % sT0); p('s_cselect_b32 s%d, 64, 0' % sT1)
    p('s_sub_u32 s%d, s%d, s%d' % (sT0, sKF, sT0))
    p('s_lshr_b32 s%d, s%d, 2' % (sF0, sT0)); p('s_lshl_b32 s%d, s%d, 7' % (sF0, sF0)); p('s_add_u32 s%d, s%d, s%d' % (sF0, sF0, sT1))
    p('s_and_b32 s%d, s%d, 3' % (sT0, sT0)); p('s_lshl_b32 s%d, s%d, 4' % (sT0, sT0)); p('s_add_u32 s%d, s%d, s%d' % (sF0, sF0, sT0))
    p('s_mul_i32 s%d, s%d, 896' % (sF0, sF0))
    p('s_lshl_b32 s%d, s%d, 14' % (sLW, sW))
    for k in range(14):
        if k % 4 == 0:
            p('s_add_u32 m0, s%d, %d' % (sLW, k * 1024)); p('s_add_u32 s%d, s%d, %d' % (sT0, sF0, k * 1024))
        p('buffer_load_dwordx4 v%d, %s, s%d offen offset:%d lds' % (vL16, srd(SW2), sT0, (k % 4) * 1024), tok='w2')
    p('buffer_load_dwordx2 v[%d:%d], v%d, %s, 0 offen sc1' % (TMP + 28, TMP + 29, vZ, srd(SWS)))
    p('v_and_b32 v%d, 15, v%d' % (vT2, vL)); p('v_lshlrev_b32 v%d, 1, v%d' % (vT2, vT2)); p('s_lshl_b32 s%d, s%d, 5' % (sT1, sQ))
    p('buffer_load_ushort v%d, v%d, %s, s%d offen' % (TMP + 0, vT2, srd(SLRE), sT1))
    p('buffer_load_ushort v%d, v%d, %s, s%d offen' % (TMP + 1, vT2, srd(SLIM), sT1))
    p('buffer_load_ushort v%d, v%d, %s, s%d offen' % (TMP + 2, vT2, srd(SLDT), sT1))
    p('v_mul_u32_u24 v%d, 896, v%d' % (vT0, vP)); p('v_lshl_add_u32 v%d, v%d, 4, v%d' % (vT0, vH, vT0))
    p('s_mul_i32 s%d, s%d, %d' % (sT2, sW, 32 * 896)); p('s_add_u32 s%d, s%d, s%d' % (sT2, sT2, sT1))
    CR = 16
    for it in range(4):
        p('s_add_u32 s%d, s%d, %d' % (sT0, sT2, it * 4 * 32 * 896))
        p('buffer_load_dwordx4 %s, v%d, %s, s%d offen' % (v4(CR + 8 * it), vT0, srd(SCRE), sT0))
        p('buffer_load_dwordx4 %s, v%d, %s, s%d offen' % (v4(CR + 8 * it + 4), vT0, srd(SCIM), sT0))
    p('v_lshlrev_b32 v%d, 7, v0' % vT1)
    p('buffer_load_dword v%d, v%d, %s, 0 offen' % (TMP + 3, vT1, srd(SCODE)), tok='cpf')
    p('v_lshrrev_b32 v%d, 2, v%d' % (vT1, vL)); p('v_and_b32 v%d, 3, v%d' % (vT1, vT1))
    p('v_lshl_add_u32 v%d, v%d, 2, v%d' % (vT1, vH, vT1)); p('v_mul_u32_u24 v%d, 896, v%d' % (vT1, vT1))
    p('v_and_b32 v%d, 16, v%d' % (vT2, vL)); p('v_lshl_add_u32 v%d, v%d, 1, v%d' % (vT1, vT2, vT1))
    p('v_and_b32 v%d, 3, v%d' % (vT2, vL)); p('v_lshl_add_u32 v%d, v%d, 3, v%d' % (vT1, vT2, vT1))
    p('v_add_u32 v%d, s%d, v%d' % (vT1, sLW, vT1))
    FRG = 64
    p.waitvm('w2')
    for ctg in range(14):
        for hh in range(2):
            p('ds_read_b64_tr_b16 %s, v%d offset:%d' % (v2(FRG + 4 * ctg + 2 * hh), vT1, hh * 8 * 896 + ctg * 64))
    p('s_lshl_b32 s%d, s%d, 11' % (sKS, sKF)); p('s_add_u32 s%d, s%d, %d' % (sKS, sKS, WS_W2F))
    for ctg in range(14):
        if ctg % 2 == 0: p('s_add_u32 s%d, s%d, %d' % (sT0, sKS, (ctg // 2) * 168 * 2048))
        p('buffer_store_dwordx4 %s, v%d, %s, s%d offen offset:%d sc1' % (v4(FRG + 4 * ctg), vL16, srd(SWS), sT0, (ctg % 2) * 1024))
    lr, li = TMP + 6, TMP + 7
    lam_from(p, TMP + 0, TMP + 1, TMP + 2, lr, li, TMP + 4, TMP + 5)
    p('v_add_f32 v%d, -1.0, v%d' % (lr, lr))
    p('v_mul_f32 v%d, v%d, v%d' % (TMP + 4, TMP + 0, TMP + 0)); p('v_fmac_f32 v%d, v%d, v%d' % (TMP + 4, TMP + 1, TMP + 1))
    p('v_rcp_f32 v%d, v%d' % (TMP + 4, TMP + 4))
    p('v_add_f32 v%d, v%d, v%d' % (TMP + 4, TMP + 4, TMP + 4))
    p('v_mul_f32 v%d, v%d, v%d' % (TMP + 8, lr, TMP + 0)); p('v_fmac_f32 v%d, v%d, v%d' % (TMP + 8, li, TMP + 1))
    p('v_mul_f32 v%d, v%d, v%d' % (TMP + 9, li, TMP + 0)); p('v_fma_f32 v%d, -v%d, v%d, v%d' % (TMP + 9, lr, TMP + 1, TMP + 9))
    p('v_mul_f32 v%d, v%d, v%d' % (TMP + 8, TMP + 8, TMP + 4)); p('v_mul_f32 v%d, v%d, v%d' % (TMP + 9, TMP + 9, TMP + 4))
    p('v_and_b32 v%d, 15, v%d' % (vT2, vL)); p('v_lshl_add_u32 v%d, v%d, 3, s%d' % (vT2, vT2, sLW))
    p('ds_write_b64 v%d, v[%d:%d] offset:%d' % (vT2, TMP + 8, TMP + 9, 15360))
    p('v_lshl_add_u32 v%d, v%d, 6, s%d' % (vT2, vH, sLW))
    CF = 128
    for k in range(4): p('ds_read_b128 %s, v%d offset:%d' % (v4(CF + 4 * k), vT2, 15360 + 16 * k))
    tag_setup(p, TMP + 28)
    p('s_lshr_b32 s%d, s%d, 1' % (sT0, sQ)); p('s_lshl_b32 s%d, s%d, 2' % (sT0, sT0)); p('s_and_b32 s%d, s%d, 1' % (sT1, sQ)); p('s_add_u32 s%d, s%d, s%d' % (sT0, sT0, sT1))
    p('s_add_u32 s%d, s%d, 112' % (sT0, sT0)); p('s_lshl_b32 s%d, s%d, 11' % (sKS, sT0)); p('s_add_u32 s%d, s%d, %d' % (sKS, sKS, WS_W2F))
    p('s_lshr_b32 s%d, s%d, 1' % (sT0, sW)); p('s_mul_i32 s%d, s%d, %d' % (sT0, sT0, 168 * 2048)); p('s_add_u32 s%d, s%d, s%d' % (sKS, sKS, sT0))
    p('s_and_b32 s%d, s%d, 1' % (sT0, sW)); p('s_lshl_b32 s%d, s%d, 10' % (sT0, sT0)); p('s_add_u32 s%d, s%d, s%d' % (sKS, sKS, sT0))
    U = 144; O = 176
    for it in range(4):
        if it == 3:
            p('s_cmp_ge_u32 s%d, 2' % sW); p('s_cbranch_scc1 L_prep_fin')
        cr, ci = CR + 8 * it, CR + 8 * it + 4
        o = O + 8 * it
        for k in range(4):
            a0, b0, a1, b1 = CF + 4 * k, CF + 4 * k + 1, CF + 4 * k + 2, CF + 4 * k + 3
            p('v_lshlrev_b32 v%d, 16, v%d' % (U, cr + k)); p('v_and_b32 v%d, s%d, v%d' % (U + 1, sMHI, cr + k))
            p('v_lshlrev_b32 v%d, 16, v%d' % (U + 2, ci + k)); p('v_and_b32 v%d, s%d, v%d' % (U + 3, sMHI, ci + k))
            p('v_mul_f32 v%d, v%d, v%d' % (U + 4, a0, U)); p('v_fma_f32 v%d, -v%d, v%d, v%d' % (U + 4, b0, U + 2, U + 4))
            p('v_mul_f32 v%d, v%d, v%d' % (U + 5, a1, U + 1)); p('v_fma_f32 v%d, -v%d, v%d, v%d' % (U + 5, b1, U + 3, U + 5))
            p('v_mul_f32 v%d, -v%d, v%d' % (U + 6, a0, U + 2)); p('v_fma_f32 v%d, -v%d, v%d, v%d' % (U + 6, b0, U, U + 6))
            p('v_mul_f32 v%d, -v%d, v%d' % (U + 7, a1, U + 3)); p('v_fma_f32 v%d, -v%d, v%d, v%d' % (U + 7, b1, U + 1, U + 7))
            p('v_cvt_pk_bf16_f32 v%d, v%d, v%d' % (o + k, U + 4, U + 5))
            p('v_cvt_pk_bf16_f32 v%d, v%d, v%d' % (o + 4 + k, U + 6, U + 7))
        p('s_add_u32 s%d, s%d, %d' % (sT0, sKS, it * 2 * 168 * 2048))
        p('s_add_u32 s%d, s%d, 4096' % (sT1, sT0))
        p('buffer_store_dwordx4 %s, v%d, %s, s%d offen sc1' % (v4(o), vL16, srd(SWS), sT0))
        p('buffer_store_dwordx4 %s, v%d, %s, s%d offen sc1' % (v4(o + 4), vL16, srd(SWS), sT1))
    p('L_prep_fin:')
    p('s_waitcnt vmcnt(0)')
    p('s_barrier')
    p('s_cmp_lg_u32 s%d, 0' % sW); p('s_cbranch_scc1 L_exit')
    p('v_mov_b32 v%d, s%d' % (TMP + 30, sTL)); p('v_mov_b32 v%d, s%d' % (TMP + 31, sTH))
    p('s_lshl_b32 s%d, s%d, 3' % (sT0, sQ)); p('s_add_u32 s%d, s%d, %d' % (sT0, sT0, WS_PF))
    flag_store(p, vZ, sT0, 0)
    p('L_exit:')
    p('s_endpgm')

HEADER = open('parallel_sum__ssm_conv_s5__dense_activation_silu__prompt.s.ref').read().split('; Override launch')[0]

def build():
    p = Prog()
    prologue_common(p)
    main_path(p)
    for q in retry_blocks:
        p.reset(); p.extend(q.ins)
    prep_path(p)
    ins = finalize(p)
    body = text_of(ins)
    s = HEADER
    s += '; @launch grid=(256,1,1) block=(256,1,1) lds=%d\n' % LDS_BYTES
    s += '.amdgcn_target "amdgcn-amd-amdhsa--gfx950"\n.text\n.globl %s\n.p2align 8\n.type %s,@function\n%s:\n' % (KNAME, KNAME, KNAME)
    s += body
    s += 'L_code_end:\n'
    s += '.section .rodata,"a"\n.p2align 6\n.amdhsa_kernel %s\n' % KNAME
    s += '  .amdhsa_next_free_vgpr 512\n  .amdhsa_next_free_sgpr 102\n  .amdhsa_accum_offset 256\n  .amdhsa_group_segment_fixed_size 0\n'
    s += '  .amdhsa_kernarg_size 120\n  .amdhsa_user_sgpr_count 2\n  .amdhsa_user_sgpr_kernarg_segment_ptr 1\n  .amdhsa_system_sgpr_workgroup_id_x 1\n'
    s += '  .amdhsa_float_denorm_mode_32 3\n'
    s += '.end_amdhsa_kernel\n'
    return s, ins

if __name__ == '__main__':
    s, ins = build()
    open(sys.argv[1], 'w').write(s)
    from collections import Counter
    c = Counter(i.kind for i in ins)
    print('instructions:', sum(v for k, v in c.items() if k != 'label'), dict(c))
    if OPT['stamps']: print('stamps:', stamp_slots)
```

```python
import sys, os
sys.path.insert(0, os.path.dirname(os.path.abspath(__file__)))
from dsl import *

KNAME = 'parallel_sum__ssm_conv_s5__dense_activation_silu__prompt_kernel'
OPT = dict(stamps=0, rot=1, w1pf=1, cpf=1, spin=1 << 16, dbg=0, dbgwave=0, per=80, perd=90, lead=8, ahead=12)
for a in sys.argv[2:]:
    k, v = a.split('='); OPT[k] = int(v)

WS_EPOCH = 0
WS_PF    = 0x1000
WS_FL    = 0x2000
WS_EG    = 0x10000
WS_STAMP = 0x80000
WS_W2F   = 0x100000
WS_HID   = 0x400000
WS_END   = WS_HID + 64 * 168 * 1024
L0     = 8192
L_XW   = 24576
L_SW   = L0 + 98304
L_TR   = L0 + 114688
L_RS   = 0
L_MR   = 512
L_EW   = 1536
LDS_BYTES = 163840
LOG2E = 0x3fb8aa3b
NLOG2E = 0xbfb8aa3b
INV2PI = 0x3e22f983

sR, sC, sW, sROT, sTL, sTH, sONE, sMHI = 8, 9, 10, 11, 12, 13, 14, 15
SX, SBRE, SBIM, SW1, SWS, SOUT, SLRE, SLIM, SLDT, SDSK, SCODE = 40, 44, 48, 52, 56, 60, 64, 68, 72, 76, 80
SEG = 44
KB = [84 + j for j in range(7)]
W1K = [91 + j for j in range(7)]
sT0, sT1, sLW, sT2 = 98, 99, 100, 101
BM0 = [64 + j for j in range(7)]
sHW, sCB, sHALF, sRT0, sPMASK, sW2, sH0, sH1, sSPIN, sFW = 16, 17, 18, 19, 20, 21, 22, 23, 24, 25
sT3, sT4, sT5, sT6 = 26, 27, 28, 29
sP0 = 30
sW2S, sH0S, sH1S, sHWS, sIDX, sM1 = 32, 33, 34, 35, 36, 37
RSO = [72 + j for j in range(4)] + [38, 39, 3]
def srd(b): return 's[%d:%d]' % (b, b + 3)
def v4(b): return ('v[%d:%d]' % (b, b + 3)) if b < 256 else ('a[%d:%d]' % (b - 256, b - 253))
def v2(b): return ('v[%d:%d]' % (b, b + 1)) if b < 256 else ('a[%d:%d]' % (b - 256, b - 255))
def v16(b): return 'v[%d:%d]' % (b, b + 15)

vL = 1; vL16 = 2; vT0, vT1, vT2, vT3 = 3, 4, 5, 6
vM, vS, vNK, vRSv = 7, 8, 9, 10
vZ = 11; vH = 12; vP = 13; vFA = 14; vDUM = 15
X = 16
SRE, SIM, F0, F1 = 128, 144, 160, 176
vXO = [192, 193, 194, 195]
vBO = 196
vW1O = [197, 198]
vRX = [199, 200, 201, 202]
vRF = [[203, 204], [205, 206]]
L1r, L1i, N1i, L2r, L2i, L3r, L3i, L4r, L4i, L32r, L32i, L128r, L128i, L256r, L256i = range(207, 222)
vTW, vTRr = 222, 223
TMP = 224
WB = 256 + 224
FR = TMP + 26
TAGP = TMP + 30
vPF = TMP + 28

def cost(i):
    if i.kind in ('label', 'needvm', 'needlgkm', 'reset'): return 0
    if i.kind in ('trans', 'mfma'): return 8
    if i.kind == 'nop': return 4 * i.width
    if i.kind in ('valu', 'dot', 'perm') and (i.op in ('v_fma_f32', 'v_cvt_pk_bf16_f32', 'v_lshl_add_u32', 'v_add3_u32', 'v_mul_lo_u32') or '0x' in i.text): return 5
    if i.kind in ('dsread', 'dswrite', 'vload', 'vstore', 'dma'): return 5
    return 4

def weave(comp, groups, period, start=0):
    out = []; t = 0; pipe = 0; nxt = start; groups = list(groups); noins = 0
    for i in comp:
        if i.kind == 'mfma':
            t = max(t, pipe); pipe = t + 32
        out.append(i); t += cost(i)
        if 'exec' in i.text and i.kind == 'salu':
            noins = 0 if i.text.endswith('exec, -1') else 1
        if groups and t >= nxt and not noins and not (i.kind == 'salu' and 'm0' in i.text) and i.kind not in ('needvm', 'needlgkm') and not getattr(i, 'note', None) == 'glue':
            g = groups.pop(0); out.extend(g); t += sum(cost(x) for x in g); nxt = max(nxt + period, t - period // 2)
    return out, groups

def G(*texts, tok=None):
    q = Prog()
    for t in texts: q(t, tok=tok)
    return q.ins

stamp_slots = []
def stamp(p, name):
    if not OPT['stamps']: return
    k = len(stamp_slots); stamp_slots.append(name)
    p('s_memtime s[%d:%d]' % (sP0, sP0 + 1))
    p('s_waitcnt lgkmcnt(0)')
    p('v_writelane_b32 v%d, s%d, %d' % (vDUM, sP0, k))

def mk_srd(p, b, ptr, nbytes):
    p('s_mov_b32 s%d, s%d' % (b, ptr)); p('s_mov_b32 s%d, s%d' % (b + 1, ptr + 1))
    p('s_mov_b32 s%d, %d' % (b + 2, nbytes)); p('s_mov_b32 s%d, 0x20000' % (b + 3))

def bf16_round(p, dst, src):
    p('v_cvt_pk_bf16_f32 v%d, v%d, v%d' % (dst, src, src))
    p('v_lshlrev_b32 v%d, 16, v%d' % (dst, dst))

def lam_from(p, lre, lim, ldt, outr, outi, t0, t1):
    p('v_lshlrev_b32 v%d, 16, v%d' % (lre, lre))
    p('v_lshlrev_b32 v%d, 16, v%d' % (lim, lim))
    p('v_lshlrev_b32 v%d, 16, v%d' % (ldt, ldt))
    p('v_mul_f32 v%d, 0x%x, v%d' % (ldt, LOG2E, ldt))
    p('v_exp_f32 v%d, v%d' % (ldt, ldt))
    bf16_round(p, ldt, ldt)
    p('v_mul_f32 v%d, v%d, v%d' % (t0, ldt, lre))
    p('v_mul_f32 v%d, v%d, v%d' % (t1, ldt, lim))
    p('v_mul_f32 v%d, 0x%x, v%d' % (t0, LOG2E, t0))
    p('v_exp_f32 v%d, v%d' % (t0, t0))
    p('v_mul_f32 v%d, 0x%x, v%d' % (t1, INV2PI, t1))
    p('v_fract_f32 v%d, v%d' % (t1, t1))
    p('v_cos_f32 v%d, v%d' % (outr, t1))
    p('v_sin_f32 v%d, v%d' % (outi, t1))
    p('v_mul_f32 v%d, v%d, v%d' % (outr, t0, outr))
    p('v_mul_f32 v%d, v%d, v%d' % (outi, t0, outi))

def cmul(p, dr, di, ar, ai, br, bi):
    p('v_mul_f32 v%d, v%d, v%d' % (dr, ar, br))
    p('v_mul_f32 v%d, v%d, v%d' % (di, ar, bi))
    p('v_fma_f32 v%d, -v%d, v%d, v%d' % (dr, ai, bi, dr))
    p('v_fmac_f32 v%d, v%d, v%d' % (di, ai, br))

def cmac(p, dr, di, ar, ai, br, bi):
    p('v_fmac_f32 v%d, v%d, v%d' % (dr, ar, br))
    p('v_fmac_f32 v%d, v%d, v%d' % (di, ar, bi))
    p('v_fma_f32 v%d, -v%d, v%d, v%d' % (dr, ai, bi, dr))
    p('v_fmac_f32 v%d, v%d, v%d' % (di, ai, br))

def tag_setup(p, vlo):
    p('v_readfirstlane_b32 s%d, v%d' % (sTL, vlo))
    p('v_readfirstlane_b32 s%d, v%d' % (sTH, vlo + 1))
    p('s_mul_i32 s%d, s%d, 0x9e3779b1' % (sTL, sTL)); p('s_add_u32 s%d, s%d, 0x7f4a7c15' % (sTL, sTL))
    p('s_mul_i32 s%d, s%d, 0x85ebca6b' % (sTH, sTH)); p('s_add_u32 s%d, s%d, 0xc2b2ae35' % (sTH, sTH))
    p('v_mov_b32 v%d, s%d' % (TAGP, sTL)); p('v_mov_b32 v%d, s%d' % (TAGP + 1, sTH))

retry_blocks = []
def poll_check(name, mask, reload_text):
    p = Prog()
    p('v_cmp_ne_u32 vcc, s%d, v%d' % (sTL, FR))
    p('v_cmp_ne_u32 s[%d:%d], s%d, v%d' % (sP0, sP0 + 1, sTH, FR + 1))
    p('s_nop 1')
    p('s_or_b32 s%d, vcc_lo, s%d' % (sM1, sP0))
    p('s_and_b32 s%d, s%d, %s' % (sM1, sM1, mask))
    p('s_cbranch_scc1 L_retry_%s' % name)
    p('L_ok_%s:' % name)
    for i in p.ins: i.note = 'glue'
    q = Prog()
    q('L_retry_%s:' % name)
    q('s_mov_b32 s%d, 0' % sSPIN)
    q('L_loop_%s:' % name)
    q('s_sleep 1')
    q(reload_text)
    q('s_waitcnt vmcnt(0)')
    q('v_cmp_ne_u32 vcc, s%d, v%d' % (sTL, FR))
    q('v_cmp_ne_u32 s[%d:%d], s%d, v%d' % (sP0, sP0 + 1, sTH, FR + 1))
    q('s_add_u32 s%d, s%d, 1' % (sSPIN, sSPIN))
    if OPT['stamps']: q('v_add_u32 v%d, 1, v%d' % (vRSv, vRSv))
    q('s_cmp_gt_u32 s%d, %d' % (sSPIN, OPT['spin']))
    q('s_cbranch_scc1 L_ok_%s' % name)
    q('s_or_b32 s%d, vcc_lo, s%d' % (sM1, sP0))
    q('s_and_b32 s%d, s%d, %s' % (sM1, sM1, mask))
    q('s_cbranch_scc1 L_loop_%s' % name)
    q('s_branch L_ok_%s' % name)
    retry_blocks.append(q)
    return p.ins

def flag_group(base_s, add, waittok=None):
    q = Prog()
    if waittok is not None: q.waitvm(waittok)
    q('s_add_u32 s%d, s%d, %d' % (sM1, base_s, add))
    q('s_mov_b64 exec, 1')
    q('buffer_store_dwordx2 v[%d:%d], v%d, %s, s%d offen sc1' % (TAGP, TAGP + 1, vZ, srd(SWS), sM1))
    q('s_mov_b64 exec, -1')
    return q.ins

def prologue_common(p):
    p('s_cmp_ge_u32 s2, 256')
    p('s_cbranch_scc1 L_exit')
    p('s_load_dwordx16 s[16:31], s[0:1], 0')
    p('s_load_dwordx8 s[32:39], s[0:1], 64')
    p('s_load_dwordx2 s[4:5], s[0:1], 96')
    p('s_load_dwordx2 s[6:7], s[0:1], 112')
    if OPT['stamps']:
        p('s_memrealtime s[%d:%d]' % (SOUT, SOUT + 1))
        p('s_memtime s[%d:%d]' % (SOUT + 2, SOUT + 3))
    p('v_lshrrev_b32 v%d, 6, v0' % vT0)
    p('v_and_b32 v%d, 63, v0' % vL)
    p('v_readfirstlane_b32 s%d, v%d' % (sW, vT0))
    p('v_lshlrev_b32 v%d, 4, v%d' % (vL16, vL))
    p('v_mov_b32 v%d, 0' % vZ)
    p('v_lshrrev_b32 v%d, 5, v%d' % (vH, vL))
    p('v_and_b32 v%d, 31, v%d' % (vP, vL))
    p('s_and_b32 s%d, s2, 7' % sT0)
    p('s_lshr_b32 s%d, s2, 3' % sT1)
    p('s_mov_b32 s%d, 0x3f803f80' % sONE)
    p('s_mov_b32 s%d, 0xffff0000' % sMHI)
    p('v_lshrrev_b32 v%d, 3, v%d' % (vT0, vL))
    p('v_mul_u32_u24 v%d, 896, v%d' % (vT0, vT0))
    p('v_lshrrev_b32 v%d, 4, v%d' % (vT1, vL))
    p('v_and_b32 v%d, 7, v%d' % (vT2, vL))
    p('v_xor_b32 v%d, v%d, v%d' % (vT1, vT1, vT2))
    p('v_lshl_add_u32 v%d, v%d, 4, v%d' % (vT0, vT1, vT0))
    p('v_xor_b32 v%d, 64, v%d' % (vT1, vT0))
    p('s_cmp_ge_u32 s%d, 28' % sT1)
    p('s_cbranch_scc1 L_prep')

def wrap7(p, dst, a, b_or_imm, tmp):
    p('s_add_u32 s%d, s%d, %s' % (dst, a, b_or_imm))
    p('s_cmp_ge_u32 s%d, 7' % dst)
    p('s_cselect_b32 s%d, 7, 0' % tmp)
    p('s_sub_u32 s%d, s%d, s%d' % (dst, dst, tmp))

def main_path(p):
    sXCD, sI7 = 78, 79
    p('s_mov_b32 s%d, s%d' % (sXCD, sT0)); p('s_mov_b32 s%d, s%d' % (sI7, sT1))
    p('s_mul_i32 s%d, s%d, 37' % (sT2, sT1)); p('s_lshr_b32 s%d, s%d, 8' % (sT2, sT2))
    p('s_mul_i32 s3, s%d, 7' % sT2); p('s_sub_u32 s%d, s%d, s3' % (sROT, sT1))
    p('s_lshr_b32 s%d, s%d, 1' % (sR, sT0)); p('s_lshl_b32 s%d, s%d, 2' % (sR, sR)); p('s_add_u32 s%d, s%d, s%d' % (sR, sR, sT2))
    p('s_and_b32 s%d, s%d, 1' % (sT0, sT0))
    p('s_mul_i32 s%d, s%d, 7' % (sC, sT0)); p('s_add_u32 s%d, s%d, s%d' % (sC, sC, sROT))
    p('s_mul_i32 s%d, s%d, %d' % (sLW, sW, L_XW)); p('s_add_u32 s%d, s%d, %d' % (sLW, sLW, L0))
    for j in range(7):
        if OPT['rot']:
            if j == 0: p('s_lshl_b32 s%d, s%d, 7' % (KB[0], sROT))
            else:
                p('s_add_u32 s%d, s%d, 128' % (KB[j], KB[j - 1]))
                p('s_cmp_ge_u32 s%d, 896' % KB[j])
                p('s_cselect_b32 s%d, 0, s%d' % (KB[j], KB[j]))
        else: p('s_mov_b32 s%d, %d' % (KB[j], j * 128))
    p('s_lshl_b32 s%d, s%d, 2' % (sT0, sR)); p('s_add_u32 s%d, s%d, s%d' % (sT0, sT0, sW))
    p('s_mul_i32 s%d, s%d, %d' % (sT1, sT0, 32 * 896))
    p('v_add_u32 v%d, s%d, v%d' % (vXO[0], sT1, vT0))
    p('v_add_u32 v%d, s%d, v%d' % (vXO[1], sT1, vT1))
    p('v_add_u32 v%d, %d, v%d' % (vXO[2], 14336, vXO[0]))
    p('v_add_u32 v%d, %d, v%d' % (vXO[1], 7168, vXO[1]))
    p('v_add_u32 v%d, %d, v%d' % (vXO[3], 14336, vXO[1]))
    p('s_and_b32 s%d, s%d, 1' % (sT1, sW)); p('s_lshl_b32 s%d, s%d, 6' % (sT1, sT1))
    p('v_xor_b32 v%d, s%d, v%d' % (vBO, sT1, vT0))
    p('s_mul_i32 s%d, s%d, 7168' % (sT1, sW)); p('s_mul_i32 s%d, s%d, %d' % (sT0, sC, 32 * 896)); p('s_add_u32 s%d, s%d, s%d' % (sT1, sT1, sT0))
    p('v_add_u32 v%d, s%d, v%d' % (vBO, sT1, vBO))
    p('s_lshl_b32 s%d, s%d, 1' % (sT2, sT2))
    p('s_lshl_b32 s%d, s%d, 12' % (W1K[0], sT2)); p('s_lshl_b32 s%d, s%d, 10' % (sT1, sW)); p('s_add_u32 s%d, s%d, s%d' % (W1K[0], W1K[0], sT1))
    p('s_add_u32 s%d, s%d, %d' % (sT1, sT1, 7 * 4096))
    for k in range(1, 7):
        p('s_add_u32 s%d, s%d, 4096' % (W1K[k], W1K[k - 1]))
        p('s_cmp_ge_u32 s%d, s%d' % (W1K[k], sT1))
        p('s_cselect_b32 s%d, %d, 0' % (sT0, 7 * 4096))
        p('s_sub_u32 s%d, s%d, s%d' % (W1K[k], W1K[k], sT0))
    p('s_lshl_b32 s%d, s%d, 7' % (sT2, sT2))
    p('s_add_u32 s%d, s%d, s%d' % (sT2, sT2, KB[0]))
    p('s_cmp_ge_u32 s%d, 896' % sT2); p('s_cselect_b32 s%d, 896, 0' % sT0); p('s_sub_u32 s%d, s%d, s%d' % (sT2, sT2, sT0))
    p('v_lshlrev_b32 v%d, 1, v%d' % (vT2, vP))
    p('s_lshl_b32 s%d, s%d, 6' % (sT1, sC))
    p('s_waitcnt lgkmcnt(0)')
    if OPT['stamps']:
        p('v_writelane_b32 v%d, s%d, 62' % (vDUM, SOUT)); p('v_writelane_b32 v%d, s%d, 61' % (vDUM, SOUT + 2))
    mk_srd(p, SX, 16, 2048 * 896)
    def x_dma(j):
        out = []
        for rg in range(4):
            out.append(G('s_add_u32 m0, s%d, %d' % (sLW, j * 4096 + rg * 1024),
                         'buffer_load_dwordx4 v%d, %s, s%d offen lds' % (vXO[rg], srd(SX), KB[j]), tok=('x', j)))
        return out
    fill = Prog()
    mk_srd(fill, SBRE, 22, 448 * 896); mk_srd(fill, SBIM, 24, 448 * 896)
    mk_srd(fill, SLRE, 18, 896); mk_srd(fill, SLIM, 20, 896); mk_srd(fill, SLDT, 30, 896); mk_srd(fill, SWS, 6, WS_END)
    mk_srd(fill, SW1, 36, 448 * 3584)
    fl = fill.ins
    for g in x_dma(0):
        p.extend([g[0]] + fl[:2] + [g[1]]); fl = fl[2:]
    ssm_soff = [sT2]
    def ssm_dma(k, soff):
        return [G('s_add_u32 m0, s%d, %d' % (W1K[k], L_SW + T * 28672),
                  'buffer_load_dwordx4 v%d, %s, s%d offen lds' % (vBO, srd(SBRE if T == 0 else SBIM), soff), tok='ssmw') for T in range(2)]
    def next_soff(q, dst, src):
        q('s_add_u32 s%d, s%d, 128' % (dst, src)); q('s_cmp_ge_u32 s%d, 896' % dst); q('s_cselect_b32 s%d, 0, s%d' % (dst, dst))
    for g in ssm_dma(0, sT2):
        p.extend([g[0]] + fl[:4] + [g[1]]); fl = fl[4:]
    next_soff(p, sT2, sT2)
    for g in ssm_dma(1, sT2):
        p.extend([g[0]] + fl[:4] + [g[1]]); fl = fl[4:]
    p.extend(fl)
    p('buffer_load_dwordx2 v[%d:%d], v%d, %s, 0 offen sc1' % (TMP + 28, TMP + 29, vZ, srd(SWS)))
    p('buffer_load_ushort v%d, v%d, %s, s%d offen' % (TMP + 0, vT2, srd(SLRE), sT1))
    p('buffer_load_ushort v%d, v%d, %s, s%d offen' % (TMP + 1, vT2, srd(SLIM), sT1))
    p('buffer_load_ushort v%d, v%d, %s, s%d offen' % (TMP + 2, vT2, srd(SLDT), sT1))
    if OPT['w1pf']:
        p('v_lshrrev_b32 v%d, 1, v0' % vT1); p('v_mul_u32_u24 v%d, 3584, v%d' % (vT1, vT1))
        p('v_and_b32 v%d, 1, v0' % vT2); p('v_lshl_add_u32 v%d, v%d, 7, v%d' % (vT1, vT2, vT1))
        p('s_and_b32 s%d, s%d, 3' % (sT1, sR)); p('s_mul_i32 s%d, s%d, %d' % (sT1, sT1, 112 * 3584))
        p('s_lshl_b32 s%d, s%d, 8' % (sT0, sC)); p('s_add_u32 s%d, s%d, s%d' % (sT1, sT1, sT0))
        p('v_cmp_gt_u32 vcc, 224, v0')
        p('s_and_saveexec_b64 s[%d:%d], vcc' % (sP0, sP0 + 1))
        p('buffer_load_dword v%d, v%d, %s, s%d offen' % (F1 + 1, vT1, srd(SW1), sT1), tok='cpf')
        p('s_mov_b64 exec, -1')
    if OPT['cpf']:
        p('s_getpc_b64 s[%d:%d]' % (SCODE, SCODE + 1))
        p('L_pc:')
        p('s_lshl_b32 s%d, s%d, 10' % (sT1, sI7)); p('s_lshl_b32 s%d, s%d, 8' % (sT0, sW)); p('s_add_u32 s%d, s%d, s%d' % (sT1, sT1, sT0))
        p('s_sub_u32 s%d, s%d, L_pc-%s' % (SCODE, SCODE, KNAME))
        p('s_subb_u32 s%d, s%d, 0' % (SCODE + 1, SCODE + 1))
        p('s_mov_b32 s%d, L_code_end-%s' % (SCODE + 2, KNAME))
        p('s_mov_b32 s%d, 0x20000' % (SCODE + 3))
        p('v_lshlrev_b32 v%d, 7, v%d' % (vT2, vL))
        p('s_mov_b64 exec, 3')
        p('buffer_load_dword v%d, v%d, %s, s%d offen' % (F1, vT2, srd(SCODE), sT1), tok='cpf')
        p('s_mov_b64 exec, -1')
    stamp(p, 'issued0')
    prev = sT2
    RS7 = [None, None, 38, 39, 34, 35, 3]
    p('s_and_b32 s%d, s%d, 1' % (sHALF, sXCD))
    mk_srd(p, SDSK, 32, 896)
    mk_srd(p, SOUT, 4, 2048 * 1792)
    for k in range(2, 7):
        next_soff(p, RS7[k], prev); prev = RS7[k]
    ssm_rest = []
    for k in range(2, 7): ssm_rest += ssm_dma(k, RS7[k])
    p('v_lshrrev_b32 v%d, 3, v%d' % (vT0, vL))
    p('v_mul_u32_u24 v%d, 3584, v%d' % (vT0, vT0))
    p('v_lshrrev_b32 v%d, 2, v%d' % (vT1, vL)); p('v_and_b32 v%d, 4, v%d' % (vT1, vT1))
    p('v_and_b32 v%d, 7, v%d' % (vT2, vL)); p('v_xor_b32 v%d, v%d, v%d' % (vT1, vT1, vT2))
    p('v_lshl_add_u32 v%d, v%d, 4, v%d' % (vT0, vT1, vT0))
    p('s_mul_i32 s%d, s%d, %d' % (sT1, sW, 16 * 3584)); p('s_lshl_b32 s%d, s%d, 8' % (sT0, sC)); p('s_add_u32 s%d, s%d, s%d' % (sT1, sT1, sT0))
    p('v_add_u32 v%d, s%d, v%d' % (vW1O[0], sT1, vT0))
    p('v_add_u32 v%d, %d, v%d' % (vW1O[1], 8 * 3584, vW1O[0]))
    p('v_lshrrev_b32 v%d, 1, v%d' % (vT0, vP)); p('v_and_b32 v%d, 7, v%d' % (vT0, vT0))
    p('v_xor_b32 v%d, v%d, v%d' % (vT0, vT0, vH)); p('v_lshlrev_b32 v%d, 4, v%d' % (vT0, vT0))
    p('v_lshl_add_u32 v%d, v%d, 7, v%d' % (vT0, vP, vT0))
    p('v_add_u32 v%d, s%d, v%d' % (vRX[0], sLW, vT0))
    for i in range(1, 4): p('v_xor_b32 v%d, %d, v%d' % (vRX[i], i << 5, vRX[0]))
    p('v_lshrrev_b32 v%d, 2, v%d' % (vT0, vL)); p('v_and_b32 v%d, 3, v%d' % (vT0, vT0))
    p('v_lshlrev_b32 v%d, 7, v%d' % (vT1, vT0))
    p('v_lshl_add_u32 v%d, v%d, 10, v%d' % (vT1, vH, vT1))
    p('v_and_b32 v%d, 2, v%d' % (vT0, vT0)); p('v_lshl_add_u32 v%d, v%d, 5, v%d' % (vT1, vT0, vT1))
    p('v_and_b32 v%d, 16, v%d' % (vT0, vL)); p('v_lshl_add_u32 v%d, v%d, 1, v%d' % (vT1, vT0, vT1))
    p('v_and_b32 v%d, 3, v%d' % (vT0, vL)); p('v_lshl_add_u32 v%d, v%d, 3, v%d' % (vRF[0][0], vT0, vT1))
    p('v_add_u32 v%d, %d, v%d' % (vRF[0][0], L0, vRF[0][0]))
    p('v_xor_b32 v%d, 64, v%d' % (vRF[1][0], vRF[0][0]))
    p('v_add_u32 v%d, 0x10000, v%d' % (vRF[0][1], vRF[0][0]))
    p('v_add_u32 v%d, 0x10000, v%d' % (vRF[1][1], vRF[1][0]))
    p('s_mul_i32 s%d, s%d, 4608' % (sT1, sW)); p('s_add_u32 s%d, s%d, %d' % (sT1, sT1, L_TR))
    p('v_mul_u32_u24 v%d, 72, v%d' % (vT0, vP)); p('v_lshl_add_u32 v%d, v%d, 3, v%d' % (vT0, vH, vT0))
    p('v_add_u32 v%d, s%d, v%d' % (vTW, sT1, vT0))
    p('v_lshrrev_b32 v%d, 2, v%d' % (vT0, vL)); p('v_and_b32 v%d, 3, v%d' % (vT0, vT0))
    p('v_lshl_add_u32 v%d, v%d, 3, v%d' % (vT0, vH, vT0)); p('v_mul_u32_u24 v%d, 72, v%d' % (vT0, vT0))
    p('v_and_b32 v%d, 16, v%d' % (vT1, vL)); p('v_lshl_add_u32 v%d, v%d, 1, v%d' % (vT0, vT1, vT0))
    p('v_and_b32 v%d, 3, v%d' % (vT1, vL)); p('v_lshl_add_u32 v%d, v%d, 3, v%d' % (vT0, vT1, vT0))
    p('v_add_u32 v%d, s%d, v%d' % (vTRr, sT1, vT0))
    p('s_mov_b32 s%d, s%d' % (sCB, sROT))
    p('s_lshl_b32 s%d, s%d, 2' % (sT0, sR)); p('s_add_u32 s%d, s%d, s%d' % (sT1, sT0, sW))
    p('s_mul_i32 s%d, s%d, 168' % (sHW, sT1)); p('s_lshl_b32 s%d, s%d, 1' % (sT2, sC)); p('s_add_u32 s%d, s%d, s%d' % (sHW, sHW, sT2))
    p('s_lshl_b32 s%d, s%d, 10' % (sHW, sHW)); p('s_add_u32 s%d, s%d, %d' % (sHW, sHW, WS_HID))
    p('s_lshl_b32 s%d, s%d, 7' % (sFW, sT1)); p('s_lshl_b32 s%d, s%d, 3' % (sT2, sC)); p('s_add_u32 s%d, s%d, s%d' % (sFW, sFW, sT2))
    p('s_add_u32 s%d, s%d, %d' % (sFW, sFW, WS_FL))
    p('s_lshl_b32 s%d, s%d, 1' % (sT2, sHALF)); p('s_add_u32 s%d, s%d, s%d' % (sRT0, sT0, sT2))
    p('s_mul_i32 s%d, s%d, 7' % (sT2, sW))
    p('s_mul_i32 s%d, s%d, 168' % (sH0, sRT0)); p('s_add_u32 s%d, s%d, s%d' % (sH0, sH0, sT2)); p('s_lshl_b32 s%d, s%d, 10' % (sH0, sH0))
    p('s_add_u32 s%d, s%d, %d' % (sH0, sH0, WS_HID)); p('s_add_u32 s%d, s%d, %d' % (sH1, sH0, 168 * 1024))
    p('s_mul_i32 s%d, s%d, 168' % (sW2, sCB)); p('s_add_u32 s%d, s%d, s%d' % (sW2, sW2, sT2)); p('s_lshl_b32 s%d, s%d, 11' % (sW2, sW2))
    p('s_add_u32 s%d, s%d, %d' % (sW2, sW2, WS_W2F))
    p('s_lshr_b32 s%d, s%d, 1' % (sT0, sT2)); p('s_lshl_b32 s%d, 0x000f000f, s%d' % (sPMASK, sT0))
    p('s_lshl_b32 s%d, s%d, 11' % (sT0, sT2)); p('s_add_u32 s%d, s%d, s%d' % (sW2S, sW2, sT0))
    p('s_lshl_b32 s%d, s%d, 10' % (sT0, sT2)); p('s_add_u32 s%d, s%d, s%d' % (sH0S, sH0, sT0))
    p('v_and_b32 v%d, 16, v%d' % (vT0, vL)); p('v_lshlrev_b32 v%d, 3, v%d' % (vT0, vT0))
    p('v_and_b32 v%d, 15, v%d' % (vT1, vL)); p('v_lshl_add_u32 v%d, v%d, 3, v%d' % (vT0, vT1, vT0))
    p('s_lshl_b32 s%d, s%d, 7' % (sT2, sRT0)); p('s_add_u32 s%d, s%d, %d' % (sT2, sT2, WS_FL))
    p('v_add_u32 v%d, s%d, v%d' % (vFA, sT2, vT0))
    A0, A1, Q0, Q1 = TMP + 8, TMP + 9, TMP + 10, TMP + 11
    for a in (A0, A1, Q0, Q1): p('v_mov_b32 v%d, 0' % a)
    for j in (1, 2):
        for g in x_dma(j): p.extend(g)
    lam_from(p, TMP + 0, TMP + 1, TMP + 2, L1r, L1i, TMP + 4, TMP + 5)
    stamp(p, 'first')
    for g in x_dma(3): p.extend(g)
    p('v_sub_f32 v%d, 0, v%d' % (N1i, L1i))
    cmul(p, L2r, L2i, L1r, L1i, L1r, L1i)
    cmul(p, L3r, L3i, L2r, L2i, L1r, L1i)
    cmul(p, L4r, L4i, L2r, L2i, L2r, L2i)
    cmul(p, TMP + 4, TMP + 5, L4r, L4i, L4r, L4i)
    cmul(p, TMP + 6, TMP + 7, TMP + 4, TMP + 5, TMP + 4, TMP + 5)
    cmul(p, L32r, L32i, TMP + 6, TMP + 7, TMP + 6, TMP + 7)
    cmul(p, TMP + 4, TMP + 5, L32r, L32i, L32r, L32i)
    cmul(p, L128r, L128i, TMP + 4, TMP + 5, TMP + 4, TMP + 5)
    cmul(p, L256r, L256i, L128r, L128i, L128r, L128i)
    tag_setup(p, TMP + 28)
    p('v_lshlrev_b32 v%d, 3, v%d' % (vPF, vP)); p('v_add_u32 v%d, %d, v%d' % (vPF, WS_PF, vPF))

    def x_read(q, j, slot):
        for i in range(4):
            q('ds_read_b128 %s, v%d offset:%d' % (v4(X + 16 * j + 4 * i), vRX[i], slot * 4096), tok=('xr', j))
    def x_stats(q, j):
        q.waitlgkm(('xr', j))
        for k in range(16):
            r_ = X + 16 * j + k
            q('v_dot2c_f32_bf16 v%d, s%d, v%d' % (A0 if k % 2 == 0 else A1, sONE, r_))
            q('v_dot2c_f32_bf16 v%d, v%d, v%d' % (Q0 if k % 2 == 0 else Q1, r_, r_))
    q = Prog()
    q.waitvm(('x', 0)); x_read(q, 0, 0)
    for j in range(1, 6):
        q.waitvm(('x', j)); x_read(q, j, j)
        x_stats(q, j - 1)
    q('v_add_u32 v%d, s%d, v%d' % (vT0, sLW, vL16))
    for rg in range(4):
        q('ds_write_b128 v%d, %s offset:%d' % (vT0, v4(F0 + 4 * rg), rg * 1024))
    x_read(q, 6, 0)
    x_stats(q, 5)
    x_stats(q, 6)
    x6 = [G('buffer_load_dwordx4 %s, v%d, %s, s%d offen' % (v4(F0 + 4 * rg), vXO[rg], srd(SX), KB[6])) for rg in range(4)]
    vm = x_dma(4) + x_dma(5) + x6 + ssm_rest
    st, left = weave(q.ins, vm, 44)
    assert not left, len(left)
    p.extend(st)
    stamp(p, 'x_in')
    for j in range(7): p('s_mul_i32 s%d, s%d, 1792' % (W1K[j], KB[j]))
    dma = []
    for dt in range(2):
        for j in range(7 if dt == 0 else 5):
            for e in range(2):
                l_off = (0 if dt == 0 else 14336 - 128) + (2 * j + e) * 1024
                dma.append(G('s_add_u32 m0, s%d, %d' % (sLW, l_off),
                    'buffer_load_dwordx4 v%d, %s, s%d offen offset:%d lds' % (vW1O[e], srd(SW1), W1K[j], 128 * dt), tok='ffnA' if dt == 0 else 'ffnB'))
    q = Prog()
    q('v_add_f32 v%d, v%d, v%d' % (A0, A0, A1)); q('v_add_f32 v%d, v%d, v%d' % (Q0, Q0, Q1))
    q('v_mov_b32 v%d, v%d' % (A1, A0)); q('v_mov_b32 v%d, v%d' % (Q1, Q0))
    q('v_permlane32_swap_b32 v%d, v%d' % (A0, A1)); q('v_permlane32_swap_b32 v%d, v%d' % (Q0, Q1))
    q('v_add_f32 v%d, v%d, v%d' % (A0, A0, A1)); q('v_add_f32 v%d, v%d, v%d' % (Q0, Q0, Q1))
    q('v_mul_f32 v%d, 0x3b124925, v%d' % (A0, A0))
    q('v_mul_f32 v%d, 0x3b124925, v%d' % (Q0, Q0))
    q('v_fma_f32 v%d, -v%d, v%d, v%d' % (Q0, A0, A0, Q0))
    q('v_max_f32 v%d, 0, v%d' % (Q0, Q0))
    bf16_round(q, vM, A0)
    bf16_round(q, Q0, Q0)
    q('v_add_f32 v%d, 0x3727c5ac, v%d' % (Q0, Q0))
    bf16_round(q, Q0, Q0)
    q('v_sqrt_f32 v%d, v%d' % (Q0, Q0))
    bf16_round(q, vS, Q0)
    q('v_rcp_f32 v%d, v%d' % (vRSv, vS))
    q('s_lshl_b32 s%d, s%d, 7' % (sT0, sW))
    q('v_lshl_add_u32 v%d, v%d, 2, s%d' % (vT0, vP, sT0))
    q('v_mul_f32 v%d, 0x%x, v%d' % (vNK, NLOG2E, vRSv))
    q('ds_write_b32 v%d, v%d offset:%d' % (vT0, vRSv, L_RS))
    q('v_lshlrev_b32 v%d, 1, v%d' % (vT0, vT0))
    q('v_mov_b32 v%d, v%d' % (TMP + 12, vM)); q('v_mov_b32 v%d, v%d' % (TMP + 13, vRSv))
    q('ds_write_b64 v%d, v[%d:%d] offset:%d' % (vT0, TMP + 12, TMP + 13, L_MR))
    q('s_sub_u32 s%d, %d, s%d' % (sT0, L_SW, sLW))
    for i in range(4): q('v_add_u32 v%d, s%d, v%d' % (vRX[i], sT0, vRX[i]))
    if OPT['stamps']: q('v_mov_b32 v%d, 0' % vRSv)

    def d_step(ks):
        z = Prog()
        for k in range(4):
            r_ = X + 4 * ks + k; lo, hi = TMP + 8 + 2 * (k % 2), TMP + 9 + 2 * (k % 2)
            z('v_lshlrev_b32 v%d, 16, v%d' % (lo, r_))
            z('v_and_b32 v%d, s%d, v%d' % (hi, sMHI, r_))
            z('v_sub_f32 v%d, v%d, v%d' % (lo, lo, vM))
            z('v_sub_f32 v%d, v%d, v%d' % (hi, hi, vM))
            z('v_cvt_pk_bf16_f32 v%d, v%d, v%d' % (r_, lo, hi))
        return z.ins
    LEAD = OPT['lead']
    for ks in range(LEAD): q.extend(d_step(ks))
    q.waitvm('ssmw')
    q('s_barrier')
    stamp(q, 'B1')
    def wbuf(n): return WB + 4 * (n % 8)
    def ssm_read(n):
        ks, T = n // 2, n % 2
        return G('ds_read_b128 %s, v%d offset:%d' % (v4(wbuf(n)), vRX[ks % 4], T * 28672 + (ks // 4) * 4096), tok=('wf', n))
    PRE = 6
    for n in range(PRE): q.extend(ssm_read(n))
    groups = []
    for ks in range(28):
        z = Prog()
        z.waitlgkm(('wf', 2 * ks + 1))
        for T in range(2):
            n = 2 * ks + T; acc = SRE if T == 0 else SIM
            z('v_mfma_f32_32x32x16_bf16 %s, %s, %s, %s' % (v16(acc), v4(X + 4 * ks), v4(wbuf(n)), '0' if ks == 0 else v16(acc)))
            if n + PRE < 56: z.extend(ssm_read(n + PRE))
            groups.append(z.ins); z = Prog()
    fill = []
    for ks in range(LEAD, 28): fill += d_step(ks)
    k = 0
    span = 2 * (28 - LEAD) + 4
    for n, g in enumerate(groups):
        q.extend(g)
        tgt = min(len(fill), (len(fill) * (n + 1)) // span)
        q.extend(fill[k:tgt]); k = tgt
    RSF = TMP + 8
    q('s_lshl_b32 s%d, s%d, 7' % (sT0, sW))
    q('v_lshl_add_u32 v%d, v%d, 4, s%d' % (vT0, vH, sT0))
    for g in range(4):
        q('ds_read_b128 %s, v%d offset:%d' % (v4(RSF + 4 * g), vT0, L_RS + 32 * g))
    pf1 = 'buffer_load_dwordx2 v[%d:%d], v%d, %s, 0 offen sc1' % (FR, FR + 1, vPF, srd(SWS))
    pf3 = 'buffer_load_dwordx2 v[%d:%d], v%d, %s, 0 offen offset:256 sc1' % (FR, FR + 1, vPF, srd(SWS))
    st, left = weave(q.ins, dma + [G(pf1)], OPT['perd'])
    p.extend(st)
    for g in left: p.extend(g)
    p.waitvm('ffnA')
    p('s_waitcnt lgkmcnt(0)')
    p('s_barrier')
    stamp(p, 'B2')
    p('s_lshl_b32 s%d, s%d, 13' % (sT4, sC)); p('s_add_u32 s%d, s%d, %d' % (sT4, sT4, WS_EG))
    p('s_add_u32 s%d, s6, s%d' % (SEG, sT4)); p('s_addc_u32 s%d, s7, 0' % (SEG + 1))
    p('s_mov_b32 s%d, 8192' % (SEG + 2)); p('s_mov_b32 s%d, 0x20000' % (SEG + 3))
    p('s_lshl_b32 s%d, s%d, 12' % (sT2, sW))
    tail_dma = []
    for j in (5, 6):
        for e in range(2):
            tail_dma.append(G('s_add_u32 m0, s%d, %d' % (sT2, L_SW - 128 + (2 * (j - 5) + e) * 1024),
                'buffer_load_dwordx4 v%d, %s, s%d offen offset:128 lds' % (vW1O[e], srd(SW1), W1K[j]), tok='ffnB'))

    def ffn_read(T, ks, n):
        dt, tt = T // 2, T % 2
        j, i = ks // 4, ks % 4
        if dt == 0: U = i * L_XW + 2 * j * 1024
        elif j <= 4: U = i * L_XW + 14336 + 2 * j * 1024
        else: U = L_SW - L0 + i * 4096 + 2 * (j - 5) * 1024
        z = Prog()
        for hh in range(2):
            off = U + hh * 512; win = 0
            if off >= 65536: off -= 65536; win = 1
            z('ds_read_b64_tr_b16 %s, v%d offset:%d' % (v2(wbuf(n) + 2 * hh), vRF[tt][win], off), tok=('wf', n))
        return z.ins
    def silu(T):
        acc = F0 if T % 2 == 0 else F1
        z = Prog()
        tp = [vT0, vT1, vT2, vBO]
        for b in range(0, 16, 4):
            for k in range(4): z('v_mul_f32 v%d, v%d, v%d' % (tp[k], vNK, acc + b + k))
            for k in range(4): z('v_exp_f32 v%d, v%d' % (tp[k], tp[k]))
            for k in range(4): z('v_fma_f32 v%d, v%d, v%d, v%d' % (tp[k], tp[k], vS, vS))
            for k in range(4): z('v_rcp_f32 v%d, v%d' % (tp[k], tp[k]))
            for k in range(4): z('v_mul_f32 v%d, v%d, v%d' % (acc + b + k, acc + b + k, tp[k]))
            z('v_cvt_pk_bf16_f32 v%d, v%d, v%d' % (acc + b // 2, acc + b, acc + b + 1))
            z('v_cvt_pk_bf16_f32 v%d, v%d, v%d' % (acc + b // 2 + 1, acc + b + 2, acc + b + 3))
            if b == 4:
                z('s_add_u32 s%d, s%d, %d' % (sT3, sHW, T * 28 * 1024))
                z('buffer_store_dwordx4 %s, v%d, %s, s%d offen sc1' % (v4(acc), vL16, srd(SWS), sT3), tok=('hs', T))
        z('buffer_store_dwordx4 %s, v%d, %s, s%d offen offset:1024 sc1' % (v4(acc + 4), vL16, srd(SWS), sT3), tok=('hs', T))
        return z.ins
    E0r, E0i, E1r, E1i = vXO[0], vXO[1], vXO[2], vXO[3]
    def scan1():
        z = Prog()
        for g in range(4):
            for i in range(4):
                z('v_mul_f32 v%d, v%d, v%d' % (SRE + 4 * g + i, RSF + 4 * g + i, SRE + 4 * g + i))
                z('v_mul_f32 v%d, v%d, v%d' % (SIM + 4 * g + i, RSF + 4 * g + i, SIM + 4 * g + i))
        for i in range(1, 4):
            for g in range(4):
                a, b = SRE + 4 * g + i, SIM + 4 * g + i
                z('v_fmac_f32 v%d, v%d, v%d' % (a, L1r, a - 1))
                z('v_fmac_f32 v%d, v%d, v%d' % (b, L1r, b - 1))
                z('v_fmac_f32 v%d, v%d, v%d' % (a, N1i, b - 1))
                z('v_fmac_f32 v%d, v%d, v%d' % (b, L1i, a - 1))
        for g in range(4):
            b = RSF + 4 * g
            z('v_mov_b32 v%d, v%d' % (b, SRE + 4 * g + 3)); z('v_mov_b32 v%d, v%d' % (b + 1, SRE + 4 * g + 3))
            z('v_mov_b32 v%d, v%d' % (b + 2, SIM + 4 * g + 3)); z('v_mov_b32 v%d, v%d' % (b + 3, SIM + 4 * g + 3))
        for g in range(4):
            b = RSF + 4 * g
            z('v_permlane32_swap_b32 v%d, v%d' % (b, b + 1)); z('v_permlane32_swap_b32 v%d, v%d' % (b + 2, b + 3))
        cur = (RSF, RSF + 2); nxt = [(E0r, E0i), (E1r, E1i)]
        for s in range(1, 8):
            g, h = s // 2, s % 2
            er, ei = RSF + 4 * g + h, RSF + 4 * g + 2 + h
            d = nxt[s % 2]
            z('v_fma_f32 v%d, v%d, v%d, v%d' % (d[0], L4r, cur[0], er))
            z('v_fma_f32 v%d, v%d, v%d, v%d' % (d[1], L4r, cur[1], ei))
            z('v_fma_f32 v%d, -v%d, v%d, v%d' % (d[0], L4i, cur[1], d[0]))
            z('v_fmac_f32 v%d, v%d, v%d' % (d[1], L4i, cur[0]))
            cur = d
        z('s_lshl_b32 s%d, s%d, 8' % (sT4, sW))
        z('v_lshl_add_u32 v%d, v%d, 3, s%d' % (vT0, vP, sT4))
        z('ds_write_b64 v%d, v[%d:%d] offset:%d' % (vT0, E1r, E1i, L_EW), tok='ew')
        return z.ins
    w2_regs = {}
    w2_state = {'last': None}
    def w2_load(idx, reg):
        if idx < 56: base, off = sW2, ((idx // 14) * 28 + (idx % 14) // 2) * 2048 + (idx % 2) * 1024
        else: base, off = sW2S, (112 + (idx - 56) // 2) * 2048 + (idx % 2) * 1024
        z = Prog()
        key = (base, off - off % 4096)
        if w2_state['last'] != key:
            z('s_add_u32 s%d, s%d, %d' % (sT5, base, off - off % 4096)); w2_state['last'] = key
        z('buffer_load_dwordx4 %s, v%d, %s, s%d offen offset:%d sc1' % (v4(reg), vL16, srd(SWS), sT5, off % 4096))
        w2_regs[idx] = reg
        return z.ins
    def fl_load(stage): return 'buffer_load_dwordx2 v[%d:%d], v%d, %s, s%d offen sc1' % (FR, FR + 1, vFA, srd(SWS), sT6)
    def fl_issue(stage): return G('s_mov_b32 s%d, %d' % (sT6, stage * 8192), fl_load(stage))
    n0 = 56
    seq = [(T, ks) for T in range(4) for ks in range(28)]
    for m in range(PRE): p.extend(ffn_read(seq[m][0], seq[m][1], n0 + m))
    EWR = TMP + 0
    LB = X
    lbp = Prog()
    lbp('s_sub_u32 s%d, s%d, 1' % (sT0, sR)); lbp('s_lshl_b32 s%d, s%d, 9' % (sT0, sT0))
    lbp('v_lshlrev_b32 v%d, 9, v%d' % (vRX[1], vH))
    lbp('v_sub_u32 v%d, s%d, v%d' % (vRX[1], sT0, vRX[1]))
    lbp('v_lshl_add_u32 v%d, v%d, 4, v%d' % (vRX[0], vP, vRX[1]))
    lb_groups = []
    for m in range(8):
        z = Prog()
        if m: z('v_subrev_u32 v%d, %d, v%d' % (vRX[1], 1024 * m, vRX[0]))
        z('buffer_load_dwordx4 %s, v%d, %s, 0 offen sc1' % (v4(LB + 4 * m), vRX[1] if m else vRX[0], srd(SEG)))
        lb_groups.append(z.ins)
    lb_text = '\n'.join(i.text for g in lb_groups for i in g)
    w2i = 0
    def w2_groups(cnt, regf):
        nonlocal w2i
        out = []
        for _ in range(cnt):
            out.append(w2_load(w2i, regf(w2i))); w2i += 1
        return out
    areg = lambda i: 256 + 4 * i
    for T in range(4):
        groups = []
        acc = F0 if T % 2 == 0 else F1
        for ks in range(28):
            m = T * 28 + ks
            z = Prog()
            if ks % 2 == 0: z.waitlgkm(('wf', n0 + m + 1))
            z('v_mfma_f32_32x32x16_bf16 %s, %s, %s, %s' % (v16(acc), v4(wbuf(n0 + m)), v4(X + 4 * ks), '0' if ks == 0 else v16(acc)))
            if m + PRE < 112:
                if seq[m + PRE] == (2, 0):
                    z.waitvm('ffnB'); z('s_barrier')
                z.extend(ffn_read(seq[m + PRE][0], seq[m + PRE][1], n0 + m + PRE))
            groups.append(z.ins)
        q = Prog()
        if T == 0:
            q.extend(groups[0]); q.extend(groups[1])
            q.extend(interleave(groups[2:], scan1()))
            vm = tail_dma + [poll_check('p1', '0x7f', pf1)] + w2_groups(10, areg) + [G(pf1)]
            st, left = weave(q.ins, vm, OPT['per'] - 10)
            p.extend(st)
            for g in left: p.extend(g)
            p.waitlgkm('ew')
            p('s_barrier')
            p('v_lshlrev_b32 v%d, 3, v%d' % (vT0, vP))
            for k in range(4): p('ds_read_b64 v[%d:%d], v%d offset:%d' % (EWR + 2 * k, EWR + 2 * k + 1, vT0, L_EW + 256 * k))
        else:
            pre = Prog()
            if T == 1:
                Gq = TMP + 24 - 0
                GE = vXO[0]
                pre('v_fma_f32 v%d, v%d, v%d, v%d' % (vT0, L32r, EWR, EWR + 2)); pre('v_fma_f32 v%d, v%d, v%d, v%d' % (vT1, L32r, EWR + 1, EWR + 3))
                pre('v_fma_f32 v%d, -v%d, v%d, v%d' % (vT0, L32i, EWR + 1, vT0)); pre('v_fmac_f32 v%d, v%d, v%d' % (vT1, L32i, EWR))
                pre('v_fma_f32 v%d, v%d, v%d, v%d' % (vT2, L32r, vT0, EWR + 4)); pre('v_fma_f32 v%d, v%d, v%d, v%d' % (vT3, L32r, vT1, EWR + 5))
                pre('v_fma_f32 v%d, -v%d, v%d, v%d' % (vT2, L32i, vT1, vT2)); pre('v_fmac_f32 v%d, v%d, v%d' % (vT3, L32i, vT0))
                pre('v_fma_f32 v%d, v%d, v%d, v%d' % (GE, L32r, vT2, EWR + 6)); pre('v_fma_f32 v%d, v%d, v%d, v%d' % (GE + 1, L32r, vT3, EWR + 7))
                pre('v_fma_f32 v%d, -v%d, v%d, v%d' % (GE, L32i, vT3, GE)); pre('v_fmac_f32 v%d, v%d, v%d' % (GE + 1, L32i, vT2))
                pre('v_mov_b32 v%d, s%d' % (GE + 2, sTL)); pre('v_mov_b32 v%d, s%d' % (GE + 3, sTH))
                pre('s_lshl_b32 s%d, s%d, 3' % (sT4, sW)); pre('s_lshl_b32 s%d, 0xff, s%d' % (sT4, sT4))
                pre('s_lshl_b32 s%d, s%d, 9' % (sT0, sR))
                egs = G('s_mov_b32 exec_lo, s%d' % sT4, 's_mov_b32 exec_hi, 0',
                        'buffer_store_dwordx4 %s, v%d, %s, s%d offen sc1' % (v4(GE), vL16, srd(SEG), sT0), 's_mov_b64 exec, -1')
                q.extend(interleave(groups[:5], pre.ins)); q.extend(egs)
                q.extend(interleave(groups[5:24], silu(0)));
                for g in groups[24:]: q.extend(g)
                vm = w2_groups(4, areg) + [poll_check('p2', '0x0fffffff', pf1)] + w2_groups(12, areg)
            else:
                q.extend(groups[0]); q.extend(groups[1]); q.extend(groups[2])
                q.extend(interleave(groups[3:22], silu(T - 1)))
                for g in groups[22:]: q.extend(g)
                if T == 2:
                    vm = w2_groups(6, areg) + [flag_group(sFW, 0, ('hs', 0))] + w2_groups(9, areg) + [G(pf3)]
            if T == 3:
                w2i_save = w2i
                vm = [poll_check('p3', '0x01ffffff', pf3)] + [flag_group(sFW, 8192, ('hs', 1)) + lbp.ins] + [fl_issue(0)]
                vm += [lb_groups[0] + lb_groups[1], lb_groups[2] + lb_groups[3], lb_groups[4] + lb_groups[5], lb_groups[6] + lb_groups[7]]
                vm_start = 300
            else: vm_start = 0
            if T == 3:
                first = w2_groups(56 - w2i - 10, areg) if 56 - w2i > 10 else []
                rest = w2_groups(56 - w2i, areg)
                vm = first + vm + rest
                vm_start = 0
            st, left = weave(q.ins, vm, OPT['per'] - (20 if T == 3 else 0), vm_start)
            if T == 3:
                pos_m = [k for k, i in enumerate(st) if i.kind == 'mfma'][7]
                pos_l = [k for k, i in enumerate(st) if i.kind == 'vload' and 's[%d:%d]' % (SEG, SEG + 3) in i.text][0]
                assert pos_l > pos_m, (pos_l, pos_m)
            p.extend(st)
            for g in left: p.extend(g)
        stamp(p, 'T%d' % T)
    assert w2i == 56
    pool = [WB + 4 * k for k in range(8)] + [F0 + 4 * k for k in range(4)]
    hid_regs = {}
    hstate = {0: None, 1: None}
    def hid_load(idx):
        rt = idx % 2
        if idx < 56: base, off = (sH0, sH1)[rt], ((idx // 14) * 28 + (idx % 14) // 2) * 1024
        else: base, off = (sH0S, sH1S)[rt], (112 + (idx - 56) // 2) * 1024
        reg = pool.pop(0); hid_regs[idx] = reg
        sreg = sT3 if rt == 0 else sT4
        z = Prog()
        key = (base, off - off % 4096)
        if hstate[rt] != key:
            z('s_add_u32 s%d, s%d, %d' % (sreg, base, off - off % 4096)); hstate[rt] = key
        z('buffer_load_dwordx4 %s, v%d, %s, s%d offen offset:%d sc1' % (v4(reg), vL16, srd(SWS), sreg, off % 4096))
        return z.ins
    stage_of = lambda idx: min(idx // 14, 4)
    hi = 0
    def hid_next():
        nonlocal hi
        g = []
        if hi in (0, 14, 28, 42, 56): g += poll_check('f%d' % stage_of(hi), 's%d' % sPMASK, fl_load(0))
        g += hid_load(hi); hi += 1
        if hi in (14 - OPT['ahead'] + 14 * k for k in range(4)): g += fl_issue(stage_of(hi) + 1)
        return g
    xq = [X + 32 + 4 * k for k in range(20)]
    p('s_add_u32 s%d, s%d, %d' % (sH1S, sH0S, 168 * 1024))
    q = Prog()
    s3 = silu(3)
    for i in s3:
        i.text = i.text.replace('s%d' % sT3, 's%d' % sT2); i.rd = [(f, sT2 if (f, n) == ('s', sT3) else n) for f, n in i.rd]; i.wr = [(f, sT2 if (f, n) == ('s', sT3) else n) for f, n in i.wr]
    q.extend(s3)
    stamp(q, 'silu3')
    def lb_check(z, lab_bad):
        z('v_add3_u32 v%d, v%d, v%d, v%d' % (vT0, LB + 2, LB + 6, LB + 10)); z('v_add3_u32 v%d, v%d, v%d, v%d' % (vT1, LB + 3, LB + 7, LB + 11))
        z('v_add3_u32 v%d, v%d, v%d, v%d' % (vT0, vT0, LB + 14, LB + 18)); z('v_add3_u32 v%d, v%d, v%d, v%d' % (vT1, vT1, LB + 15, LB + 19))
        z('v_add3_u32 v%d, v%d, v%d, v%d' % (vT0, vT0, LB + 22, LB + 26)); z('v_add3_u32 v%d, v%d, v%d, v%d' % (vT1, vT1, LB + 23, LB + 27))
        z('v_add_u32 v%d, v%d, v%d' % (vT0, vT0, LB + 30)); z('v_add_u32 v%d, v%d, v%d' % (vT1, vT1, LB + 31))
        k0 = len(z.ins)
        z('v_cmp_ne_u32 vcc, v%d, v%d' % (vT0, vT2))
        z('v_cmp_ne_u32 s[%d:%d], v%d, v%d' % (sP0, sP0 + 1, vT1, vT3))
        z('s_nop 1')
        z('s_or_b64 vcc, vcc, s[%d:%d]' % (sP0, sP0 + 1))
        z('s_cbranch_scc1 %s' % lab_bad)
        for i in z.ins[k0:]: i.note = 'glue'
    q('v_sub_u32 v%d, s%d, v%d' % (vT3, sR, vH)); q('v_add_u32 v%d, 1, v%d' % (vT3, vT3)); q('v_lshrrev_b32 v%d, 1, v%d' % (vT3, vT3))
    q('v_mul_lo_u32 v%d, s%d, v%d' % (vT2, sTL, vT3)); q('v_mul_lo_u32 v%d, s%d, v%d' % (vT3, sTH, vT3))
    lb_check(q, 'L_retry_lb')
    q('L_ok_lb:')
    z = Prog()
    z('L_retry_lb:'); z('s_mov_b32 s%d, 0' % sSPIN); z('L_loop_lb:'); z('s_sleep 1'); z(lb_text); z('s_waitcnt vmcnt(0)')
    if OPT['stamps']: z('v_add_u32 v%d, 0x100, v%d' % (vRSv, vRSv))
    z('s_add_u32 s%d, s%d, 1' % (sSPIN, sSPIN)); z('s_cmp_gt_u32 s%d, %d' % (sSPIN, OPT['spin'])); z('s_cbranch_scc1 L_ok_lb')
    lb_check(z, 'L_loop_lb'); z('s_branch L_ok_lb')
    retry_blocks.append(z)
    for m in range(6, -1, -1):
        cmac(q, LB + 4 * m, LB + 4 * m + 1, L256r, L256i, LB + 4 * m + 4, LB + 4 * m + 5)
    q('v_mov_b32 v%d, v%d' % (LB + 4, LB)); q('v_mov_b32 v%d, v%d' % (LB + 5, LB + 1))
    q('v_permlane32_swap_b32 v%d, v%d' % (LB, LB + 4)); q('v_permlane32_swap_b32 v%d, v%d' % (LB + 1, LB + 5))
    cmac(q, LB, LB + 1, L128r, L128i, LB + 4, LB + 5)
    cmac(q, EWR, EWR + 1, L32r, L32i, LB, LB + 1)
    cmac(q, EWR + 2, EWR + 3, L32r, L32i, EWR, EWR + 1)
    cmac(q, EWR + 4, EWR + 5, L32r, L32i, EWR + 2, EWR + 3)
    CS = LB + 8
    q('v_mov_b32 v%d, v%d' % (CS, LB)); q('v_mov_b32 v%d, v%d' % (CS + 1, LB + 1))
    for k in range(3):
        k0 = len(q.ins)
        q('s_cmp_eq_u32 s%d, %d' % (sW, k + 1)); q('s_cselect_b64 vcc, -1, 0')
        for i in q.ins[k0:]: i.note = 'glue'
        q('v_cndmask_b32 v%d, v%d, v%d, vcc' % (CS, CS, EWR + 2 * k)); q.ins[-1].note = 'glue'
        q('v_cndmask_b32 v%d, v%d, v%d, vcc' % (CS + 1, CS + 1, EWR + 2 * k + 1))
    for s in range(7):
        g, h = s // 2, s % 2
        er, ei = RSF + 4 * g + h, RSF + 4 * g + 2 + h
        d, cur = CS + 2 * (s + 1), CS + 2 * s
        q('v_fma_f32 v%d, v%d, v%d, v%d' % (d, L4r, cur, er))
        q('v_fma_f32 v%d, v%d, v%d, v%d' % (d + 1, L4r, cur + 1, ei))
        q('v_fma_f32 v%d, -v%d, v%d, v%d' % (d, L4i, cur + 1, d))
        q('v_fmac_f32 v%d, v%d, v%d' % (d + 1, L4i, cur))
    k0 = len(q.ins)
    q('s_mov_b32 vcc_lo, 0'); q('s_mov_b32 vcc_hi, -1')
    for g in range(4):
        a = CS + 4 * g
        q('v_cndmask_b32 v%d, v%d, v%d, vcc' % (a, a, a + 2))
        q('v_cndmask_b32 v%d, v%d, v%d, vcc' % (a + 1, a + 1, a + 3))
    for i in q.ins[k0:-1]: i.note = 'glue'
    for g in range(4):
        a = CS + 4 * g
        q('v_sub_f32 v%d, 0, v%d' % (a + 2, a + 1))
    PW = [(L1r, L1i), (L2r, L2i), (L3r, L3i), (L4r, L4i)]
    for g in range(4):
        a = CS + 4 * g
        for i in range(4):
            ur, ui = SRE + 4 * g + i, SIM + 4 * g + i
            q('v_fmac_f32 v%d, v%d, v%d' % (ur, PW[i][0], a))
            q('v_fmac_f32 v%d, v%d, v%d' % (ui, PW[i][0], a + 1))
            q('v_fmac_f32 v%d, v%d, v%d' % (ur, PW[i][1], a + 2))
            q('v_fmac_f32 v%d, v%d, v%d' % (ui, PW[i][1], a))
        for comp, base in ((0, SRE), (1, SIM)):
            b = base + 4 * g
            q('v_cvt_pk_bf16_f32 v%d, v%d, v%d' % (b, b, b + 1))
            q('v_cvt_pk_bf16_f32 v%d, v%d, v%d' % (b + 1, b + 2, b + 3))
            q('ds_write_b64 v%d, v[%d:%d] offset:%d' % (vTW, b, b + 1, comp * 2304 + 16 * g))
    HS = F1
    for comp in range(2):
        for q_ in range(2):
            for hh in range(2):
                q('ds_read_b64_tr_b16 %s, v%d offset:%d' % (v2(HS + 8 * comp + 4 * q_ + 2 * hh), vTRr, comp * 2304 + (16 * q_ + 4 * hh) * 72))
    vm = [hid_next() for _ in range(6)] + [flag_group(sFW, 2 * 8192, ('hs', 2))] + [hid_next() for _ in range(6)]
    w2_state['last'] = None
    vm += w2_groups(20, lambda i: xq[i - 56])
    st, left = weave(q.ins, vm, OPT['per'])
    p.extend(st)
    stamp(p, 'fixup')
    p('s_lshl_b32 s%d, s%d, 11' % (sT2, sC)); p('s_add_u32 s%d, s%d, s%d' % (sT2, sT2, sHW)); p('s_add_u32 s%d, s%d, %d' % (sT2, sT2, 112 * 1024))
    for f in range(4):
        p('buffer_store_dwordx4 %s, v%d, %s, s%d offen offset:%d sc1' % (v4(HS + 4 * f), vL16, srd(SWS), sT2, f * 1024), tok='hsC')
    p.extend(flag_group(sFW, 3 * 8192, ('hs', 3)))
    pool += [F1 + 4 * k for k in range(4)]
    p('s_barrier')
    stamp(p, 'g2start')
    ACC = {(0, 0): SRE, (0, 1): SIM, (1, 0): 192, (1, 1): 208}
    w2_left = left
    epi = epilogue_pre()
    ek = 0
    for step in range(42):
        if step in (7, 14, 21, 28, 35): stamp(p, 'g%d' % step)
        while hi < 84 and hi < 2 * step + 2 + OPT['ahead'] and pool: p.extend(hid_next())
        if w2_left: p.extend(w2_left.pop(0))
        elif w2i < 84 and pool and step >= 4:
            reg = pool.pop(0); p.extend(w2_load(w2i, reg)); w2i += 1
        if step == 9: p.extend(flag_group(sFW, 4 * 8192, 'hsC'))
        w0, w1_ = w2_regs[2 * step], w2_regs[2 * step + 1]
        h0, h1 = hid_regs[2 * step], hid_regs[2 * step + 1]
        for ct, wr in ((0, w0), (1, w1_)):
            for rt, hr in ((0, h0), (1, h1)):
                a = ACC[(ct, rt)]
                p('v_mfma_f32_32x32x16_bf16 %s, %s, %s, %s' % (v16(a), v4(wr), v4(hr), '0' if step == 0 else v16(a)))
                if step >= 16 and ek < len(epi):
                    nn = 3
                    while ek + nn < len(epi) and epi[ek + nn - 1].note == 'glue': nn += 1
                    p.extend(epi[ek:ek + nn]); ek += nn
        pool += [w0, w1_, h0, h1]
    p.extend(epi[ek:])
    stamp(p, 'g2end')
    epilogue(p, ACC)

EX, ED, ST, DD = TMP + 0, TMP + 8, TMP + 10, TMP + 18
EB, ET, PWA, PRA, vOO = X + 0, X + 16, X + 24, X + 28, X + 30
sXO, sOO = 38, 39
def epilogue_pre():
    p = Prog()
    p('v_lshrrev_b32 v%d, 4, v%d' % (vT0, vL)); p('v_and_b32 v%d, 15, v%d' % (vT1, vL))
    p('v_mul_u32_u24 v%d, 896, v%d' % (vT2, vT0)); p('v_lshl_add_u32 v%d, v%d, 3, v%d' % (vT2, vT1, vT2))
    p('s_lshl_b32 s%d, s%d, 5' % (sXO, sRT0)); p('s_lshl_b32 s%d, s%d, 4' % (sT1, sW)); p('s_add_u32 s%d, s%d, s%d' % (sXO, sXO, sT1))
    p('s_mul_i32 s%d, s%d, 896' % (sXO, sXO)); p('s_lshl_b32 s%d, s%d, 7' % (sT1, sCB)); p('s_add_u32 s%d, s%d, s%d' % (sXO, sXO, sT1))
    for it in range(4):
        p('s_add_u32 s%d, s%d, %d' % (sT2, sXO, it * 4 * 896))
        p('buffer_load_dwordx2 v[%d:%d], v%d, %s, s%d offen' % (EX + 2 * it, EX + 2 * it + 1, vT2, srd(SX), sT2))
    p('v_lshlrev_b32 v%d, 3, v%d' % (vT3, vT1))
    p('buffer_load_dwordx2 v[%d:%d], v%d, %s, s%d offen' % (ED, ED + 1, vT3, srd(SDSK), sT1))
    p('v_lshlrev_b32 v%d, 1, v%d' % (vOO, vT2))
    p('s_lshl_b32 s%d, s%d, 1' % (sOO, sXO))
    p('v_and_b32 v%d, 7, v%d' % (PWA, vP)); p('v_xor_b32 v%d, v%d, v%d' % (PWA, PWA, vH)); p('v_lshlrev_b32 v%d, 4, v%d' % (PWA, PWA))
    p('v_lshl_add_u32 v%d, v%d, 8, v%d' % (PWA, vP, PWA))
    p('s_lshl_b32 s%d, s%d, 14' % (sT1, sW)); p('s_add_u32 s%d, s%d, %d' % (sT1, sT1, L0)); p('v_add_u32 v%d, s%d, v%d' % (PWA, sT1, PWA))
    for g in range(1, 4): p('v_xor_b32 v%d, %d, v%d' % (PWA + g, g << 5, PWA))
    p('v_xor_b32 v%d, v%d, v%d' % (PRA, vT1, vT0)); p('v_lshlrev_b32 v%d, 4, v%d' % (PRA, PRA))
    p('v_lshl_add_u32 v%d, v%d, 8, v%d' % (PRA, vT0, PRA))
    p('s_lshl_b32 s%d, s%d, 12' % (sT1, sW)); p('s_add_u32 s%d, s%d, %d' % (sT1, sT1, L0)); p('v_add_u32 v%d, s%d, v%d' % (PRA, sT1, PRA))
    p('v_xor_b32 v%d, 64, v%d' % (PRA + 1, PRA)); p('v_add_u32 v%d, 1024, v%d' % (PRA + 1, PRA + 1))
    p('s_lshl_b32 s%d, s%d, 9' % (sT1, sHALF)); p('s_lshl_b32 s%d, s%d, 7' % (sT2, sW)); p('s_add_u32 s%d, s%d, s%d' % (sT1, sT1, sT2))
    p('v_lshl_add_u32 v%d, v%d, 3, s%d' % (vT3, vT0, sT1))
    for it in range(4):
        p('ds_read_b64 v[%d:%d], v%d offset:%d' % (ST + 2 * it, ST + 2 * it + 1, vT3, L_MR + 32 * it))
    for _ in range(24): p('; pad')
    D = DD; T = ET
    p('v_lshlrev_b32 v%d, 16, v%d' % (D, ED)); p('v_and_b32 v%d, s%d, v%d' % (D + 1, sMHI, ED))
    p('v_lshlrev_b32 v%d, 16, v%d' % (D + 2, ED + 1)); p('v_and_b32 v%d, s%d, v%d' % (D + 3, sMHI, ED + 1))
    for it in range(4):
        b = EB + 4 * it; m, rs = ST + 2 * it, ST + 2 * it + 1
        p('v_lshlrev_b32 v%d, 16, v%d' % (b, EX + 2 * it)); p('v_and_b32 v%d, s%d, v%d' % (b + 1, sMHI, EX + 2 * it))
        p('v_lshlrev_b32 v%d, 16, v%d' % (b + 2, EX + 2 * it + 1)); p('v_and_b32 v%d, s%d, v%d' % (b + 3, sMHI, EX + 2 * it + 1))
        for k in range(4): p('v_sub_f32 v%d, v%d, v%d' % (T + k, b + k, m))
        def rnd():
            p('v_cvt_pk_bf16_f32 v%d, v%d, v%d' % (T + 4, T, T + 1)); p('v_cvt_pk_bf16_f32 v%d, v%d, v%d' % (T + 5, T + 2, T + 3))
            p('v_lshlrev_b32 v%d, 16, v%d' % (T, T + 4)); p('v_and_b32 v%d, s%d, v%d' % (T + 1, sMHI, T + 4))
            p('v_lshlrev_b32 v%d, 16, v%d' % (T + 2, T + 5)); p('v_and_b32 v%d, s%d, v%d' % (T + 3, sMHI, T + 5))
        rnd()
        for k in range(4): p('v_mul_f32 v%d, v%d, v%d' % (T + k, T + k, rs))
        rnd()
        for k in range(4): p('v_mul_f32 v%d, v%d, v%d' % (T + k, T + k, D + k))
        rnd()
        for k in range(4): p('v_add_f32 v%d, v%d, v%d' % (b + k, b + k, T + k))
    return p.ins

def epilogue(p, ACC):
    for rt in range(2):
        for ct in range(2):
            for g in range(4):
                p('ds_write_b128 v%d, %s offset:%d' % (PWA + g, v4(ACC[(ct, rt)] + 4 * g), rt * 8192 + ct * 128))
    p('s_waitcnt lgkmcnt(0)')
    p('s_barrier')
    R = 48
    for it in range(4):
        for P in range(4):
            p('ds_read_b128 %s, v%d offset:%d' % (v4(R + 16 * it + 4 * P), PRA + (it & 1), P * 16384 + (it >> 1) * 2048))
    for it in range(4):
        b = EB + 4 * it; r_ = R + 16 * it
        p('v_pk_add_f32 v[%d:%d], v[%d:%d], v[%d:%d]' % (r_, r_ + 1, r_, r_ + 1, r_ + 4, r_ + 5))
        p('v_pk_add_f32 v[%d:%d], v[%d:%d], v[%d:%d]' % (r_ + 2, r_ + 3, r_ + 2, r_ + 3, r_ + 6, r_ + 7))
        p('v_pk_add_f32 v[%d:%d], v[%d:%d], v[%d:%d]' % (r_ + 8, r_ + 9, r_ + 8, r_ + 9, r_ + 12, r_ + 13))
        p('v_pk_add_f32 v[%d:%d], v[%d:%d], v[%d:%d]' % (r_ + 10, r_ + 11, r_ + 10, r_ + 11, r_ + 14, r_ + 15))
        p('v_pk_add_f32 v[%d:%d], v[%d:%d], v[%d:%d]' % (b, b + 1, b, b + 1, r_, r_ + 1))
        p('v_pk_add_f32 v[%d:%d], v[%d:%d], v[%d:%d]' % (b + 2, b + 3, b + 2, b + 3, r_ + 2, r_ + 3))
        p('v_pk_add_f32 v[%d:%d], v[%d:%d], v[%d:%d]' % (b, b + 1, b, b + 1, r_ + 8, r_ + 9))
        p('v_pk_add_f32 v[%d:%d], v[%d:%d], v[%d:%d]' % (b + 2, b + 3, b + 2, b + 3, r_ + 10, r_ + 11))
        p('s_add_u32 s%d, s%d, %d' % (sT2, sOO, it * 4 * 1792))
        p('buffer_store_dwordx4 %s, v%d, %s, s%d offen' % (v4(b), vOO, srd(SOUT), sT2))
    if OPT['stamps']:
        stamp(p, 'end')
        p('v_readlane_b32 s%d, v%d, 0' % (sT0, vRSv)); p('s_nop 3'); p('v_writelane_b32 v%d, s%d, 60' % (vDUM, sT0))
        p('s_memrealtime s[%d:%d]' % (sP0, sP0 + 1)); p('s_load_dwordx2 s[36:37], s[0:1], 104'); p('s_waitcnt lgkmcnt(0)')
        p('v_writelane_b32 v%d, s%d, 63' % (vDUM, sP0))
        if OPT['dbg']:
            mk_srd(p, 84, 36, 256)
            p('v_readlane_b32 s%d, v%d, 61' % (sT1, vDUM))
            p('s_lshl_b32 s%d, s2, 2' % sT0); p('s_add_u32 s%d, s%d, s%d' % (sT0, sT0, sW)); p('s_cmp_lg_u32 s%d, %d' % (sT0, OPT['dbgwave']))
            p('s_cbranch_scc1 L_nodbg')
            p('v_subrev_u32 v%d, s%d, v%d' % (vT0, sT1, vDUM))
            p('v_lshlrev_b32 v%d, 2, v%d' % (vT1, vL))
            p('s_mov_b64 exec, 0xffff')
            p('buffer_store_dword v%d, v%d, s[84:87], 0 offen' % (vT0, vT1))
            p('s_mov_b64 exec, -1')
            p('L_nodbg:')
        p('s_lshl_b32 s%d, s2, 2' % sT0); p('s_add_u32 s%d, s%d, s%d' % (sT0, sT0, sW)); p('s_lshl_b32 s%d, s%d, 8' % (sT0, sT0))
        p('s_add_u32 s%d, s%d, %d' % (sT0, sT0, WS_STAMP))
        p('v_lshlrev_b32 v%d, 2, v%d' % (vT0, vL))
        p('buffer_store_dword v%d, v%d, %s, s%d offen' % (vDUM, vT0, srd(SWS), sT0))
    p('s_cmp_eq_u32 s%d, 15' % sR); p('s_cbranch_scc0 L_exit')
    p('s_cmp_eq_u32 s%d, 13' % sC); p('s_cbranch_scc0 L_exit')
    p('s_cmp_eq_u32 s%d, 3' % sW); p('s_cbranch_scc0 L_exit')
    p('s_mov_b32 s%d, %d' % (sT0, WS_EPOCH))
    p.extend(flag_group(sT0, 0))
    p('s_endpgm')

def prep_path(p):
    SW2, SCRE, SCIM = 44, 48, 52
    sQ, sKF, sF0, sKS, sU, sCBK, sCTG = 8, 84, 85, 86, 87, 88, 89
    p('L_prep:')
    p.reset()
    p('s_lshl_b32 s%d, s%d, 2' % (sQ, sT0)); p('s_add_u32 s%d, s%d, s%d' % (sQ, sQ, sT1)); p('s_sub_u32 s%d, s%d, 28' % (sQ, sQ))
    p('s_cmp_ge_u32 s%d, 28' % sQ); p('s_cbranch_scc1 L_exit')
    p('s_lshl_b32 s%d, s%d, 2' % (sKF, sQ)); p('s_add_u32 s%d, s%d, s%d' % (sKF, sKF, sW))
    p('s_mul_i32 s%d, s%d, 2341' % (sT0, sKF)); p('s_lshr_b32 s%d, s%d, 16' % (sT0, sT0))
    p('s_mul_i32 s%d, s%d, 28' % (sT1, sT0)); p('s_sub_u32 s%d, s%d, s%d' % (sT1, sKF, sT1))
    p('s_lshl_b32 s%d, s%d, 5' % (sF0, sT0))
    p('s_lshr_b32 s%d, s%d, 1' % (sT0, sT1)); p('s_lshl_b32 s%d, s%d, 7' % (sT0, sT0)); p('s_add_u32 s%d, s%d, s%d' % (sF0, sF0, sT0))
    p('s_and_b32 s%d, s%d, 1' % (sT0, sT1)); p('s_lshl_b32 s%d, s%d, 4' % (sT0, sT0)); p('s_add_u32 s%d, s%d, s%d' % (sF0, sF0, sT0))
    p('s_mul_i32 s%d, s%d, 896' % (sF0, sF0))
    p('s_mul_i32 s%d, s%d, 24576' % (sLW, sW))
    p('s_mul_i32 s%d, s%d, 4682' % (sCBK, sKF)); p('s_lshr_b32 s%d, s%d, 16' % (sCBK, sCBK))
    p('s_mul_i32 s%d, s%d, 14' % (sT0, sCBK)); p('s_sub_u32 s%d, s%d, s%d' % (sCTG, sKF, sT0))
    p('s_waitcnt lgkmcnt(0)')
    mk_srd(p, SW2, 38, 1792 * 896)
    for k in range(14):
        if k % 4 == 0:
            p('s_add_u32 m0, s%d, %d' % (sLW, k * 1024)); p('s_add_u32 s%d, s%d, %d' % (sT0, sF0, k * 1024))
        p('buffer_load_dwordx4 v%d, %s, s%d offen offset:%d lds' % (vL16, srd(SW2), sT0, (k % 4) * 1024), tok='w2')
    mk_srd(p, SCRE, 26, 448 * 896); mk_srd(p, SCIM, 28, 448 * 896)
    mk_srd(p, SWS, 6, WS_END)
    mk_srd(p, SLRE, 18, 896); mk_srd(p, SLIM, 20, 896); mk_srd(p, SLDT, 30, 896)
    p('buffer_load_dwordx2 v[%d:%d], v%d, %s, 0 offen sc1' % (TMP + 28, TMP + 29, vZ, srd(SWS)))
    p('v_lshlrev_b32 v%d, 1, v%d' % (vT2, vL)); p('s_lshl_b32 s%d, s%d, 7' % (sT1, sCBK))
    p('buffer_load_ushort v%d, v%d, %s, s%d offen' % (TMP + 0, vT2, srd(SLRE), sT1))
    p('buffer_load_ushort v%d, v%d, %s, s%d offen' % (TMP + 1, vT2, srd(SLIM), sT1))
    p('buffer_load_ushort v%d, v%d, %s, s%d offen' % (TMP + 2, vT2, srd(SLDT), sT1))
    p('s_mul_i32 s%d, s%d, %d' % (sT2, sCTG, 32 * 896)); p('s_add_u32 s%d, s%d, s%d' % (sT2, sT2, sT1))
    for comp in range(2):
        for rg in range(4):
            p('s_add_u32 m0, s%d, %d' % (sLW, 16384 + comp * 4096 + rg * 1024))
            p('s_add_u32 s%d, s%d, %d' % (sT0, sT2, rg * 7168))
            p('buffer_load_dwordx4 v%d, %s, s%d offen lds' % (vT0 if rg % 2 == 0 else vT1, srd(SCRE if comp == 0 else SCIM), sT0), tok='c')
    vA = 16
    p('v_lshrrev_b32 v%d, 2, v%d' % (vA, vL)); p('v_and_b32 v%d, 3, v%d' % (vA, vA))
    p('v_lshl_add_u32 v%d, v%d, 2, v%d' % (vA, vH, vA)); p('v_mul_u32_u24 v%d, 896, v%d' % (vA, vA))
    p('v_and_b32 v%d, 16, v%d' % (vT2, vL)); p('v_lshl_add_u32 v%d, v%d, 1, v%d' % (vA, vT2, vA))
    p('v_and_b32 v%d, 3, v%d' % (vT2, vL)); p('v_lshl_add_u32 v%d, v%d, 3, v%d' % (vA, vT2, vA))
    p('v_add_u32 v%d, s%d, v%d' % (vA, sLW, vA))
    vC = [17, 18, 19, 20]
    p('v_lshrrev_b32 v%d, 1, v%d' % (vT2, vP)); p('v_and_b32 v%d, 7, v%d' % (vT2, vT2))
    p('v_xor_b32 v%d, v%d, v%d' % (vT2, vT2, vH)); p('v_lshlrev_b32 v%d, 4, v%d' % (vT2, vT2))
    p('v_lshl_add_u32 v%d, v%d, 7, v%d' % (vT2, vP, vT2))
    p('v_add_u32 v%d, s%d, v%d' % (vC[0], sLW, vT2))
    for i in range(1, 4): p('v_xor_b32 v%d, %d, v%d' % (vC[i], i << 5, vC[0]))
    p('s_lshl_b32 s%d, s%d, 11' % (sKS, sKF)); p('s_add_u32 s%d, s%d, %d' % (sKS, sKS, WS_W2F))
    FRG = 64
    p.waitvm('w2')
    for ctg in range(14):
        for hh in range(2):
            p('ds_read_b64_tr_b16 %s, v%d offset:%d' % (v2(FRG + 4 * ctg + 2 * hh), vA, hh * 8 * 896 + ctg * 64))
    for ctg in range(14):
        if ctg % 2 == 0: p('s_add_u32 s%d, s%d, %d' % (sT0, sKS, (ctg // 2) * 168 * 2048))
        p('buffer_store_dwordx4 %s, v%d, %s, s%d offen offset:%d sc1' % (v4(FRG + 4 * ctg), vL16, srd(SWS), sT0, (ctg % 2) * 1024), tok='fst')
    lr, li = TMP + 6, TMP + 7
    lam_from(p, TMP + 0, TMP + 1, TMP + 2, lr, li, TMP + 4, TMP + 5)
    p('v_add_f32 v%d, -1.0, v%d' % (lr, lr))
    p('v_mul_f32 v%d, v%d, v%d' % (TMP + 4, TMP + 0, TMP + 0)); p('v_fmac_f32 v%d, v%d, v%d' % (TMP + 4, TMP + 1, TMP + 1))
    p('v_rcp_f32 v%d, v%d' % (TMP + 4, TMP + 4))
    p('v_mul_f32 v%d, v%d, v%d' % (TMP + 8, lr, TMP + 0)); p('v_fmac_f32 v%d, v%d, v%d' % (TMP + 8, li, TMP + 1))
    p('v_add_f32 v%d, v%d, v%d' % (TMP + 4, TMP + 4, TMP + 4))
    p('v_mul_f32 v%d, v%d, v%d' % (TMP + 9, li, TMP + 0)); p('v_fma_f32 v%d, -v%d, v%d, v%d' % (TMP + 9, lr, TMP + 1, TMP + 9))
    p('v_mul_f32 v%d, v%d, v%d' % (TMP + 8, TMP + 8, TMP + 4)); p('v_mul_f32 v%d, v%d, v%d' % (TMP + 9, TMP + 9, TMP + 4))
    p('v_lshl_add_u32 v%d, v%d, 3, s%d' % (vT2, vL, sLW))
    p('ds_write_b64 v%d, v[%d:%d] offset:%d' % (vT2, TMP + 8, TMP + 9, 15360))
    p('v_lshl_add_u32 v%d, v%d, 6, s%d' % (vT2, vH, sLW))
    tag_setup(p, TMP + 28)
    p('s_lshl_b32 s%d, s%d, 3' % (sT0, sCBK)); p('s_add_u32 s%d, s%d, 112' % (sT0, sT0)); p('s_lshl_b32 s%d, s%d, 11' % (sKS, sT0))
    p('s_lshr_b32 s%d, s%d, 1' % (sT0, sCTG)); p('s_mul_i32 s%d, s%d, %d' % (sT0, sT0, 168 * 2048)); p('s_add_u32 s%d, s%d, s%d' % (sKS, sKS, sT0))
    p('s_and_b32 s%d, s%d, 1' % (sT0, sCTG)); p('s_lshl_b32 s%d, s%d, 10' % (sT0, sT0)); p('s_add_u32 s%d, s%d, s%d' % (sKS, sKS, sT0))
    p('s_add_u32 s%d, s%d, %d' % (sKS, sKS, WS_W2F))
    CR = 24; CF = 128; U = 56; O = 192
    p.waitvm('c')
    for g4 in range(4):
        p('ds_read_b128 %s, v%d offset:%d' % (v4(CR + 8 * g4), vC[g4], 16384))
        p('ds_read_b128 %s, v%d offset:%d' % (v4(CR + 8 * g4 + 4), vC[g4], 16384 + 4096))
        for k in range(4): p('ds_read_b128 %s, v%d offset:%d' % (v4(CF + 16 * g4 + 4 * k), vT2, 15360 + 128 * g4 + 16 * k))
        if g4 == 1: p('s_waitcnt lgkmcnt(6)')
    for g4 in range(4):
        cr, ci = CR + 8 * g4, CR + 8 * g4 + 4
        o = O + 8 * g4
        for k in range(4):
            a0, b0, a1, b1 = CF + 16 * g4 + 4 * k, CF + 16 * g4 + 4 * k + 1, CF + 16 * g4 + 4 * k + 2, CF + 16 * g4 + 4 * k + 3
            p('v_lshlrev_b32 v%d, 16, v%d' % (U, cr + k)); p('v_and_b32 v%d, s%d, v%d' % (U + 1, sMHI, cr + k))
            p('v_lshlrev_b32 v%d, 16, v%d' % (U + 2, ci + k)); p('v_and_b32 v%d, s%d, v%d' % (U + 3, sMHI, ci + k))
            p('v_mul_f32 v%d, v%d, v%d' % (U + 4, a0, U)); p('v_fma_f32 v%d, -v%d, v%d, v%d' % (U + 4, b0, U + 2, U + 4))
            p('v_mul_f32 v%d, v%d, v%d' % (U + 5, a1, U + 1)); p('v_fma_f32 v%d, -v%d, v%d, v%d' % (U + 5, b1, U + 3, U + 5))
            p('v_mul_f32 v%d, -v%d, v%d' % (U + 6, a0, U + 2)); p('v_fma_f32 v%d, -v%d, v%d, v%d' % (U + 6, b0, U, U + 6))
            p('v_mul_f32 v%d, -v%d, v%d' % (U + 7, a1, U + 3)); p('v_fma_f32 v%d, -v%d, v%d, v%d' % (U + 7, b1, U + 1, U + 7))
            p('v_cvt_pk_bf16_f32 v%d, v%d, v%d' % (o + k, U + 4, U + 5))
            p('v_cvt_pk_bf16_f32 v%d, v%d, v%d' % (o + 4 + k, U + 6, U + 7))
        if g4 == 1:
            p.waitvm('fst')
            p('s_waitcnt lgkmcnt(0)')
            p('s_barrier')
            p('s_cmp_lg_u32 s%d, 0' % sW); p('s_cbranch_scc1 L_prep_nf')
            p('s_lshl_b32 s%d, s%d, 3' % (sT0, sQ))
            p.extend(flag_group(sT0, WS_PF))
            p('L_prep_nf:')
            p.reset()
    p('s_cmp_ge_u32 s%d, 98' % sKF); p('s_cbranch_scc1 L_prep_fin')
    for g4 in range(4):
        o = O + 8 * g4
        p('s_add_u32 s%d, s%d, %d' % (sT0, sKS, (4 * (g4 >> 1) + (g4 & 1)) * 2048))
        p('s_add_u32 s%d, s%d, 4096' % (sT1, sT0))
        p('buffer_store_dwordx4 %s, v%d, %s, s%d offen sc1' % (v4(o), vL16, srd(SWS), sT0))
        p('buffer_store_dwordx4 %s, v%d, %s, s%d offen sc1' % (v4(o + 4), vL16, srd(SWS), sT1))
    p('L_prep_fin:')
    p('s_waitcnt vmcnt(0)')
    p('s_barrier')
    p('s_cmp_lg_u32 s%d, 0' % sW); p('s_cbranch_scc1 L_exit')
    p('s_lshl_b32 s%d, s%d, 3' % (sT0, sQ))
    p.extend(flag_group(sT0, WS_PF + 256))
    p('L_exit:')
    p('s_endpgm')

HEADER = open('parallel_sum__ssm_conv_s5__dense_activation_silu__prompt.s.ref').read().split('; Override launch')[0]

def build():
    p = Prog()
    prologue_common(p)
    main_path(p)
    for q in retry_blocks:
        p.reset(); p.extend(q.ins)
    prep_path(p)
    if OPT.get('abl'):
        out = []; cnt = 0
        lo = stamp_slots.index('T0'); hi_ = stamp_slots.index('T2')
        inside = False
        for i in p.ins:
            if i.op == 'v_writelane_b32':
                k = int(i.text.split(',')[-1])
                if k == lo: inside = True
                if k == hi_: inside = False
                out.append(i); continue
            a = OPT['abl']
            if inside and i.note != 'glue' and (((a & 1) and i.kind == 'vload' and i.text.startswith('buffer_load_dwordx4 a')) or ((a & 2) and i.kind == 'trans') or ((a & 4) and i.kind == 'valu')
                           or ((a & 8) and i.kind == 'dsread') or ((a & 16) and i.kind == 'vstore' and 'dwordx4' in i.text) or ((a & 32) and i.kind == 'mfma')):
                continue
            out.append(i)
        p.ins = out
    ins = finalize(p)
    ins = [i for i in ins if not i.text.startswith('; pad')]
    body = text_of(ins)
    s = HEADER
    s += '; @launch grid=(256,1,1) block=(256,1,1) lds=%d\n' % LDS_BYTES
    s += '.amdgcn_target "amdgcn-amd-amdhsa--gfx950"\n.text\n.globl %s\n.p2align 8\n.type %s,@function\n%s:\n' % (KNAME, KNAME, KNAME)
    s += body
    s += 'L_code_end:\n'
    s += '.section .rodata,"a"\n.p2align 6\n.amdhsa_kernel %s\n' % KNAME
    s += '  .amdhsa_next_free_vgpr 512\n  .amdhsa_next_free_sgpr 102\n  .amdhsa_accum_offset 256\n  .amdhsa_group_segment_fixed_size 0\n'
    s += '  .amdhsa_kernarg_size 120\n  .amdhsa_user_sgpr_count 2\n  .amdhsa_user_sgpr_kernarg_segment_ptr 1\n  .amdhsa_system_sgpr_workgroup_id_x 1\n'
    s += '  .amdhsa_float_denorm_mode_32 3\n'
    s += '.end_amdhsa_kernel\n'
    return s, ins

if __name__ == '__main__':
    s, ins = build()
    open(sys.argv[1], 'w').write(s)
    from collections import Counter
    c = Counter(i.kind for i in ins)
    print('instructions:', sum(v for k, v in c.items() if k != 'label'), dict(c))
    if OPT['stamps']: print('stamps:', ','.join(stamp_slots))
```

```python
import sys, os
sys.path.insert(0, os.path.dirname(os.path.abspath(__file__)))
from dsl import *

KNAME = 'parallel_sum__ssm_conv_s5__dense_activation_silu__prompt_kernel'
OPT = dict(stamps=0, rot=1, w1pf=1, cpf=1, spin=1 << 16, dbg=0, dbgwave=0, per=90, perd=72, lead=16, ahead=12, dot=1, pk=0, w2early=1, tlb=0, fillc=30, ldsw2=1, rotA=1, send=24, p2=7, p3=13, p4=21, pd=3, f3=0, f4=8, perh=80)
for a in sys.argv[2:]:
    k, v = a.split('='); OPT[k] = int(v)

WS_EPOCH = 0
WS_PF    = 0xC000
WS_FL    = 0x2000
WS_EG    = 0x10000
WS_STAMP = 0x80000
WS_W2F   = 0x100000
WS_HID   = 0x400000
WS_END   = WS_HID + 64 * 168 * 1024
L0     = 8192
L_XW   = 24576
L_SW   = L0 + 98304
L_TR   = L0 + 114688
L_WT   = L_TR + 4 * 4608
L_RS   = 0
L_MR   = 512
L_EW   = 1536
LDS_BYTES = 163840
LOG2E = 0x3fb8aa3b
NLOG2E = 0xbfb8aa3b
INV2PI = 0x3e22f983

sR, sC, sW, sROT, sTL, sTH, sONE, sMHI = 8, 9, 10, 11, 12, 13, 14, 15
SX, SBRE, SBIM, SW1, SWS, SOUT, SLRE, SLIM, SLDT, SDSK, SCODE = 40, 44, 48, 52, 56, 60, 64, 68, 72, 76, 80
SEG = 44
KB = [84 + j for j in range(7)]
W1K = [91 + j for j in range(7)]
sT0, sT1, sLW, sT2 = 98, 99, 100, 101
BM0 = [64 + j for j in range(7)]
sHW, sCB, sHALF, sRT0, sPMASK, sW2, sH0, sH1, sSPIN, sFW = 16, 17, 18, 19, 20, 21, 22, 23, 24, 25
sT3, sT4, sT5, sT6 = 26, 27, 28, 29
sP0 = 30
sW2S, sH0S, sH1S, sHWS, sIDX, sM1 = 32, 33, 34, 35, 36, 37
RSO = [72 + j for j in range(4)] + [38, 39, 3]
def srd(b): return 's[%d:%d]' % (b, b + 3)
def v4(b): return ('v[%d:%d]' % (b, b + 3)) if b < 256 else ('a[%d:%d]' % (b - 256, b - 253))
def v2(b): return ('v[%d:%d]' % (b, b + 1)) if b < 256 else ('a[%d:%d]' % (b - 256, b - 255))
def v16(b): return 'v[%d:%d]' % (b, b + 15)

vL = 1; vL16 = 2; vT0, vT1, vT2, vT3 = 3, 4, 5, 6
vM, vS, vNK, vRSv = 7, 8, 9, 10
vZ = 11; vH = 12; vP = 13; vFA = 14; vDUM = 15
X = 16
SRE, SIM, F0, F1 = 128, 144, 160, 176
vXO = [192, 193, 194, 195]
vBO = 196
vW1O = [197, 198]
vRX = [199, 200, 201, 202]
vRF = [[203, 204], [205, 206]]
L1r, L1i, N1i, L2r, L2i, L3r, L3i, L4r, L4i, L32r, L32i, L128r, L128i, L256r, L256i = range(207, 222)
vTW, vTRr = 222, 223
vFA2, vFA3 = 201, 202
TMP = 224
WB = 256 + 224
FR = TMP + 26
FR2 = TMP + 24
TAGP = TMP + 30
vNM = TMP + 16
sSELL, sSELH = 70, 71
sPS, sPM2, sLT, sLA = 68, 69, 67, 66
sRS0, sRS1 = 82, 83
vPF = TMP + 28

def cost(i):
    if i.kind in ('label', 'needvm', 'needlgkm', 'reset'): return 0
    if i.kind in ('trans', 'mfma'): return 8
    if i.kind == 'nop': return 4 * i.width
    if i.kind in ('valu', 'dot', 'perm') and (i.op in ('v_fma_f32', 'v_cvt_pk_bf16_f32', 'v_lshl_add_u32', 'v_add3_u32', 'v_mul_lo_u32') or '0x' in i.text): return 5
    if i.kind in ('vload', 'vstore', 'dma'): return 8
    return 4

def weave(comp, groups, period, start=0, pdma=None, small=()):
    out = []; t = 0; pipe = 0; nxt = start; groups = list(groups); noins = 0
    pdma = pdma or period; nm = 0
    for i in comp:
        if i.kind == 'mfma':
            t = max(t, pipe); pipe = t + 32; nm += 1
        out.append(i); t += cost(i)
        if groups and groups[0] and groups[0][0].text.startswith('; after') and nm < int(groups[0][0].text.split()[2]): continue
        if 'exec' in i.text and i.kind == 'salu':
            noins = 0 if i.text.endswith('exec, -1') else 1
        if groups and t >= nxt and not noins and not (i.kind == 'salu' and 'm0' in i.text) and i.kind not in ('needvm', 'needlgkm') and not getattr(i, 'note', None) == 'glue':
            g = groups.pop(0); out.extend(g); t += sum(cost(x) for x in g)
            nv = sum(1 for x in g if x.kind in ('dma', 'vload', 'vstore') and 'dwordx4' in x.text and not any('s[%d:%d]' % (b, b + 3) in x.text for b in small))
            pr = (period if any('sc1' in x.text for x in g) else pdma) * nv + (0 if nv else 40)
            nxt = max(nxt + pr, t - pr // 2)
    return out, groups

def G(*texts, tok=None):
    q = Prog()
    for t in texts: q(t, tok=tok)
    return q.ins

stamp_slots = []
def stamp(p, name):
    if not OPT['stamps']: return
    k = len(stamp_slots); stamp_slots.append(name)
    p('s_memtime s[%d:%d]' % (sP0, sP0 + 1))
    p('s_waitcnt lgkmcnt(0)')
    p('v_writelane_b32 v%d, s%d, %d' % (vDUM, sP0, k))

def mk_srd(p, b, ptr, nbytes):
    p('s_mov_b32 s%d, s%d' % (b, ptr)); p('s_mov_b32 s%d, s%d' % (b + 1, ptr + 1))
    p('s_mov_b32 s%d, %d' % (b + 2, nbytes)); p('s_mov_b32 s%d, 0x20000' % (b + 3))

def bf16_round(p, dst, src):
    p('v_cvt_pk_bf16_f32 v%d, v%d, v%d' % (dst, src, src))
    p('v_lshlrev_b32 v%d, 16, v%d' % (dst, dst))

def lam_from(p, lre, lim, ldt, outr, outi, t0, t1):
    p('v_lshlrev_b32 v%d, 16, v%d' % (lre, lre))
    p('v_lshlrev_b32 v%d, 16, v%d' % (lim, lim))
    p('v_lshlrev_b32 v%d, 16, v%d' % (ldt, ldt))
    p('v_mul_f32 v%d, 0x%x, v%d' % (ldt, LOG2E, ldt))
    p('v_exp_f32 v%d, v%d' % (ldt, ldt))
    bf16_round(p, ldt, ldt)
    p('v_mul_f32 v%d, v%d, v%d' % (t0, ldt, lre))
    p('v_mul_f32 v%d, v%d, v%d' % (t1, ldt, lim))
    p('v_mul_f32 v%d, 0x%x, v%d' % (t0, LOG2E, t0))
    p('v_exp_f32 v%d, v%d' % (t0, t0))
    p('v_mul_f32 v%d, 0x%x, v%d' % (t1, INV2PI, t1))
    p('v_fract_f32 v%d, v%d' % (t1, t1))
    p('v_cos_f32 v%d, v%d' % (outr, t1))
    p('v_sin_f32 v%d, v%d' % (outi, t1))
    p('v_mul_f32 v%d, v%d, v%d' % (outr, t0, outr))
    p('v_mul_f32 v%d, v%d, v%d' % (outi, t0, outi))

def cmul(p, dr, di, ar, ai, br, bi):
    p('v_mul_f32 v%d, v%d, v%d' % (dr, ar, br))
    p('v_mul_f32 v%d, v%d, v%d' % (di, ar, bi))
    p('v_fma_f32 v%d, -v%d, v%d, v%d' % (dr, ai, bi, dr))
    p('v_fmac_f32 v%d, v%d, v%d' % (di, ai, br))

def cmac(p, dr, di, ar, ai, br, bi):
    p('v_fmac_f32 v%d, v%d, v%d' % (dr, ar, br))
    p('v_fmac_f32 v%d, v%d, v%d' % (di, ar, bi))
    p('v_fma_f32 v%d, -v%d, v%d, v%d' % (dr, ai, bi, dr))
    p('v_fmac_f32 v%d, v%d, v%d' % (di, ai, br))

def tag_setup(p, vlo):
    p('v_readfirstlane_b32 s%d, v%d' % (sTL, vlo))
    p('v_readfirstlane_b32 s%d, v%d' % (sTH, vlo + 1))
    p('s_mul_i32 s%d, s%d, 0x9e3779b1' % (sTL, sTL)); p('s_add_u32 s%d, s%d, 0x7f4a7c15' % (sTL, sTL))
    p('s_mul_i32 s%d, s%d, 0x85ebca6b' % (sTH, sTH)); p('s_add_u32 s%d, s%d, 0xc2b2ae35' % (sTH, sTH))
    p('v_mov_b32 v%d, s%d' % (TAGP, sTL)); p('v_mov_b32 v%d, s%d' % (TAGP + 1, sTH))

retry_blocks = []
def poll_check(name, mask, reload_text, FR=FR):
    p = Prog()
    p('v_cmp_ne_u32 vcc, s%d, v%d' % (sTL, FR))
    p('v_cmp_ne_u32 s[%d:%d], s%d, v%d' % (sP0, sP0 + 1, sTH, FR + 1))
    p('s_nop 1')
    p('s_or_b32 s%d, vcc_lo, s%d' % (sM1, sP0))
    p('s_and_b32 s%d, s%d, %s' % (sM1, sM1, mask))
    p('s_cbranch_scc1 L_retry_%s' % name)
    p('L_ok_%s:' % name)
    for i in p.ins: i.note = 'glue'
    q = Prog()
    q('L_retry_%s:' % name)
    q('s_mov_b32 s%d, 0' % sSPIN)
    q('L_loop_%s:' % name)
    q('s_sleep 1')
    q(reload_text)
    q('s_waitcnt vmcnt(0)')
    q('v_cmp_ne_u32 vcc, s%d, v%d' % (sTL, FR))
    q('v_cmp_ne_u32 s[%d:%d], s%d, v%d' % (sP0, sP0 + 1, sTH, FR + 1))
    q('s_add_u32 s%d, s%d, 1' % (sSPIN, sSPIN))
    if OPT['stamps']: q('v_add_u32 v%d, 1, v%d' % (vRSv, vRSv))
    q('s_cmp_gt_u32 s%d, %d' % (sSPIN, OPT['spin']))
    q('s_cbranch_scc1 L_ok_%s' % name)
    q('s_or_b32 s%d, vcc_lo, s%d' % (sM1, sP0))
    q('s_and_b32 s%d, s%d, %s' % (sM1, sM1, mask))
    q('s_cbranch_scc1 L_loop_%s' % name)
    q('s_branch L_ok_%s' % name)
    retry_blocks.append(q)
    return p.ins

def flag_group(base_s, add, waittok=None):
    q = Prog()
    if waittok is not None: q.waitvm(waittok)
    q('s_add_u32 s%d, s%d, %d' % (sM1, base_s, add))
    q('s_mov_b64 exec, 1')
    q('buffer_store_dwordx2 v[%d:%d], v%d, %s, s%d offen sc1' % (TAGP, TAGP + 1, vZ, srd(SWS), sM1))
    q('s_mov_b64 exec, -1')
    return q.ins

def prologue_common(p):
    p('s_cmp_ge_u32 s2, 256')
    p('s_cbranch_scc1 L_exit')
    p('s_load_dwordx16 s[16:31], s[0:1], 0')
    p('s_load_dwordx8 s[32:39], s[0:1], 64')
    p('s_load_dwordx2 s[4:5], s[0:1], 96')
    p('s_load_dwordx2 s[6:7], s[0:1], 112')
    if OPT['stamps']:
        p('s_memrealtime s[%d:%d]' % (SOUT, SOUT + 1))
        p('s_memtime s[%d:%d]' % (SOUT + 2, SOUT + 3))
    if OPT['cpf']:
        p('s_getpc_b64 s[%d:%d]' % (SCODE, SCODE + 1))
        p('L_pc:')
        p('v_lshrrev_b32 v%d, 5, v0' % vT1); p('v_and_b32 v%d, 6, v%d' % (vT1, vT1)); p('v_and_b32 v%d, 1, v0' % vT2)
        p('v_add_lshl_u32 v%d, v%d, v%d, 7' % (vT2, vT1, vT2))
        p('s_sub_u32 s%d, s%d, L_pc-%s' % (SCODE, SCODE, KNAME))
        p('s_subb_u32 s%d, s%d, 0' % (SCODE + 1, SCODE + 1))
        p('s_mov_b32 s%d, L_code_end-%s' % (SCODE + 2, KNAME))
        p('s_mov_b32 s%d, 0x20000' % (SCODE + 3))
        p('s_lshr_b32 s%d, s2, 3' % sT1); p('s_lshl_b32 s%d, s%d, 10' % (sT1, sT1))
        p('s_mov_b64 exec, 3')
        p('buffer_load_dword v%d, v%d, %s, s%d offen' % (F1, vT2, srd(SCODE), sT1), tok='cpf')
        p('s_mov_b64 exec, -1')
    p('v_lshrrev_b32 v%d, 6, v0' % vT0)
    p('v_and_b32 v%d, 63, v0' % vL)
    p('v_readfirstlane_b32 s%d, v%d' % (sW, vT0))
    p('v_lshlrev_b32 v%d, 4, v%d' % (vL16, vL))
    p('v_mov_b32 v%d, 0' % vZ)
    p('v_lshrrev_b32 v%d, 5, v%d' % (vH, vL))
    p('v_and_b32 v%d, 31, v%d' % (vP, vL))
    p('s_and_b32 s%d, s2, 7' % sT0)
    p('s_lshr_b32 s%d, s2, 3' % sT1)
    p('s_mov_b32 s%d, 0x3f803f80' % sONE)
    p('s_mov_b32 s%d, 0xffff0000' % sMHI)
    p('v_lshrrev_b32 v%d, 3, v%d' % (vT0, vL))
    p('v_mul_u32_u24 v%d, 896, v%d' % (vT0, vT0))
    p('v_lshrrev_b32 v%d, 4, v%d' % (vT1, vL))
    p('v_and_b32 v%d, 7, v%d' % (vT2, vL))
    p('v_xor_b32 v%d, v%d, v%d' % (vT1, vT1, vT2))
    p('v_lshl_add_u32 v%d, v%d, 4, v%d' % (vT0, vT1, vT0))
    p('v_xor_b32 v%d, 64, v%d' % (vT1, vT0))
    p('s_cmp_ge_u32 s%d, 28' % sT1)
    p('s_cbranch_scc1 L_prep')

def wrap7(p, dst, a, b_or_imm, tmp):
    p('s_add_u32 s%d, s%d, %s' % (dst, a, b_or_imm))
    p('s_cmp_ge_u32 s%d, 7' % dst)
    p('s_cselect_b32 s%d, 7, 0' % tmp)
    p('s_sub_u32 s%d, s%d, s%d' % (dst, dst, tmp))

def main_path(p):
    sXCD, sI7 = 78, 79
    p('s_mov_b32 s%d, s%d' % (sXCD, sT0)); p('s_mov_b32 s%d, s%d' % (sI7, sT1))
    p('s_mul_i32 s%d, s%d, 37' % (sT2, sT1)); p('s_lshr_b32 s%d, s%d, 8' % (sT2, sT2))
    p('s_mul_i32 s3, s%d, 7' % sT2); p('s_sub_u32 s%d, s%d, s3' % (sROT, sT1))
    p('s_lshr_b32 s%d, s%d, 1' % (sR, sT0)); p('s_lshl_b32 s%d, s%d, 2' % (sR, sR)); p('s_add_u32 s%d, s%d, s%d' % (sR, sR, sT2))
    p('s_and_b32 s%d, s%d, 1' % (sT0, sT0))
    p('s_mul_i32 s%d, s%d, 7' % (sC, sT0)); p('s_add_u32 s%d, s%d, s%d' % (sC, sC, sROT))
    p('s_mul_i32 s%d, s%d, %d' % (sLW, sW, L_XW)); p('s_add_u32 s%d, s%d, %d' % (sLW, sLW, L0))
    p('s_lshl_b32 s%d, s%d, 7' % (KB[0], sROT)) if OPT['rot'] else p('s_mov_b32 s%d, 0' % KB[0])
    p('s_lshl_b32 s%d, s%d, 2' % (sT0, sR)); p('s_add_u32 s%d, s%d, s%d' % (sT0, sT0, sW))
    p('s_mul_i32 s%d, s%d, %d' % (sT1, sT0, 32 * 896))
    p('v_add_u32 v%d, s%d, v%d' % (vXO[0], sT1, vT0))
    p('v_add_u32 v%d, s%d, v%d' % (vXO[1], sT1, vT1))
    p('v_add_u32 v%d, %d, v%d' % (vXO[2], 14336, vXO[0]))
    p('v_add_u32 v%d, %d, v%d' % (vXO[1], 7168, vXO[1]))
    p('v_add_u32 v%d, %d, v%d' % (vXO[3], 14336, vXO[1]))
    if OPT['stamps']: p('s_memtime s[76:77]')
    p('s_waitcnt lgkmcnt(0)')
    if OPT['stamps']:
        p('v_writelane_b32 v%d, s%d, 62' % (vDUM, SOUT)); p('v_writelane_b32 v%d, s%d, 61' % (vDUM, SOUT + 2))
        stamp_slots.append('prek'); p('v_writelane_b32 v%d, s76, 0' % vDUM)
        p('s_memtime s[%d:%d]' % (SOUT, SOUT + 1))
    mk_srd(p, SX, 16, 2048 * 896)
    def x_dma(j):
        out = []
        for rg in range(4):
            out.append(G('s_add_u32 m0, s%d, %d' % (sLW, j * 4096 + rg * 1024),
                         'buffer_load_dwordx4 v%d, %s, s%d offen lds' % (vXO[rg], srd(SX), KB[j]), tok=('x', j)))
        return out
    fill = Prog()
    mk_srd(fill, SBRE, 22, 448 * 896); mk_srd(fill, SBIM, 24, 448 * 896)
    mk_srd(fill, SLRE, 18, 896); mk_srd(fill, SLIM, 20, 896); mk_srd(fill, SLDT, 30, 896); mk_srd(fill, SWS, 6, WS_END)
    mk_srd(fill, SW1, 36, 448 * 3584)
    fl = fill.ins
    for g in x_dma(0):
        p.extend([g[0]] + fl[:2] + [g[1]]); fl = fl[2:]
    p('s_and_b32 s%d, s%d, 1' % (sT1, sW)); p('s_lshl_b32 s%d, s%d, 6' % (sT1, sT1))
    p('v_xor_b32 v%d, s%d, v%d' % (vBO, sT1, vT0))
    p('s_mul_i32 s%d, s%d, 7168' % (sT1, sW)); p('s_mul_i32 s%d, s%d, %d' % (sT0, sC, 32 * 896)); p('s_add_u32 s%d, s%d, s%d' % (sT1, sT1, sT0))
    p('v_add_u32 v%d, s%d, v%d' % (vBO, sT1, vBO))
    p('s_lshl_b32 s%d, s%d, 1' % (sT2, sT2))
    p('s_lshl_b32 s%d, s%d, 12' % (W1K[0], sT2)); p('s_lshl_b32 s%d, s%d, 10' % (sT1, sW)); p('s_add_u32 s%d, s%d, s%d' % (W1K[0], W1K[0], sT1))
    p('s_add_u32 s%d, s%d, %d' % (sT1, sT1, 7 * 4096))
    for k in range(1, 7):
        p('s_add_u32 s%d, s%d, 4096' % (W1K[k], W1K[k - 1]))
        p('s_cmp_ge_u32 s%d, s%d' % (W1K[k], sT1))
        p('s_cselect_b32 s%d, %d, 0' % (sT0, 7 * 4096))
        p('s_sub_u32 s%d, s%d, s%d' % (W1K[k], W1K[k], sT0))
    p('s_lshl_b32 s%d, s%d, 7' % (sT2, sT2))
    p('s_add_u32 s%d, s%d, s%d' % (sT2, sT2, KB[0]))
    p('s_cmp_ge_u32 s%d, 896' % sT2); p('s_cselect_b32 s%d, 896, 0' % sT0); p('s_sub_u32 s%d, s%d, s%d' % (sT2, sT2, sT0))
    p('v_lshlrev_b32 v%d, 1, v%d' % (vT2, vP))
    p('s_lshl_b32 s%d, s%d, 6' % (sT1, sC))
    if OPT['stamps']:
        p('s_memtime s[%d:%d]' % (SOUT + 2, SOUT + 3)); p('s_waitcnt lgkmcnt(0)')
        stamp_slots.append('karg'); p('v_writelane_b32 v%d, s%d, 1' % (vDUM, SOUT))
        stamp_slots.append('x0'); p('v_writelane_b32 v%d, s%d, 2' % (vDUM, SOUT + 2))
    ssm_soff = [sT2]
    def ssm_dma(k, soff):
        return [G('s_add_u32 m0, s%d, %d' % (W1K[k], L_SW + T * 28672),
                  'buffer_load_dwordx4 v%d, %s, s%d offen lds' % (vBO, srd(SBRE if T == 0 else SBIM), soff), tok='ssmw') for T in range(2)]
    def next_soff(q, dst, src):
        q('s_add_u32 s%d, s%d, 128' % (dst, src)); q('s_cmp_ge_u32 s%d, 896' % dst); q('s_cselect_b32 s%d, 0, s%d' % (dst, dst))
    for g in ssm_dma(0, sT2):
        p.extend([g[0]] + fl[:4] + [g[1]]); fl = fl[4:]
    p('s_mov_b32 s%d, s%d' % (sRS0, sT2))
    next_soff(p, sT2, sT2)
    p('s_mov_b32 s%d, s%d' % (sRS1, sT2))
    for g in ssm_dma(1, sT2):
        p.extend([g[0]] + fl[:4] + [g[1]]); fl = fl[4:]
    p.extend(fl)
    p('buffer_load_dwordx2 v[%d:%d], v%d, %s, 0 offen sc1' % (TMP + 28, TMP + 29, vZ, srd(SWS)))
    p('buffer_load_ushort v%d, v%d, %s, s%d offen' % (TMP + 0, vT2, srd(SLRE), sT1))
    p('buffer_load_ushort v%d, v%d, %s, s%d offen' % (TMP + 1, vT2, srd(SLIM), sT1))
    p('buffer_load_ushort v%d, v%d, %s, s%d offen' % (TMP + 2, vT2, srd(SLDT), sT1))
    if OPT['tlb']:
        p('v_lshlrev_b32 v%d, 21, v%d' % (vT1, vL))
        p('s_mov_b64 exec, 0xfe')
        p('buffer_load_dword v%d, v%d, %s, 0 offen' % (F1 + 3, vT1, srd(SWS)), tok='cpf')
        p('s_mov_b64 exec, 1')
        p('buffer_load_dword v%d, v%d, %s, 0 offen' % (F1 + 4, vZ, srd(SW1)), tok='cpf')
        p('s_mov_b64 exec, -1')
    stamp(p, 'issued0')
    for j in range(1, 7):
        if OPT['rot']:
            p('s_add_u32 s%d, s%d, 128' % (KB[j], KB[j - 1]))
            p('s_cmp_ge_u32 s%d, 896' % KB[j])
            p('s_cselect_b32 s%d, 0, s%d' % (KB[j], KB[j]))
        else: p('s_mov_b32 s%d, %d' % (KB[j], j * 128))
    prev = sT2
    RS7 = [None, None, 38, 39, 34, 35, 3]
    p('s_and_b32 s%d, s%d, 1' % (sHALF, sXCD))
    mk_srd(p, SDSK, 32, 896)
    mk_srd(p, SOUT, 4, 2048 * 1792)
    for k in range(2, 7):
        next_soff(p, RS7[k], prev); prev = RS7[k]
    ssm_rest = []
    for k in range(2, 7): ssm_rest += ssm_dma(k, RS7[k])
    w1g = []
    if OPT['w1pf']:
        p('v_mul_u32_u24 v%d, 3584, v%d' % (vT1, vL))
        p('s_and_b32 s%d, s%d, 3' % (sT1, sR)); p('s_lshl_b32 s%d, s%d, 2' % (sT1, sT1)); p('s_add_u32 s%d, s%d, s%d' % (sT1, sT1, sW))
        p('s_mul_i32 s%d, s%d, %d' % (sT1, sT1, 28 * 3584))
        p('s_lshl_b32 s%d, s%d, 8' % (sT0, sC)); p('s_add_u32 s%d, s%d, s%d' % (sT1, sT1, sT0))
        p('v_add_u32 v%d, s%d, v%d' % (F1 + 2, sT1, vT1))
        w1g = [G('s_mov_b64 exec, 0x0fffffff', 'buffer_load_dword v%d, v%d, %s, 0 offen offset:128' % (F1 + 1, F1 + 2, srd(SW1)), 's_mov_b64 exec, -1', tok='cpf')]
    p('v_lshrrev_b32 v%d, 3, v%d' % (vT0, vL))
    p('v_mul_u32_u24 v%d, 3584, v%d' % (vT0, vT0))
    p('v_lshrrev_b32 v%d, 2, v%d' % (vT1, vL)); p('v_and_b32 v%d, 4, v%d' % (vT1, vT1))
    p('v_and_b32 v%d, 7, v%d' % (vT2, vL)); p('v_xor_b32 v%d, v%d, v%d' % (vT1, vT1, vT2))
    p('v_lshl_add_u32 v%d, v%d, 4, v%d' % (vT0, vT1, vT0))
    p('s_mul_i32 s%d, s%d, %d' % (sT1, sW, 16 * 3584)); p('s_lshl_b32 s%d, s%d, 8' % (sT0, sC)); p('s_add_u32 s%d, s%d, s%d' % (sT1, sT1, sT0))
    p('v_add_u32 v%d, s%d, v%d' % (vW1O[0], sT1, vT0))
    p('v_add_u32 v%d, %d, v%d' % (vW1O[1], 8 * 3584, vW1O[0]))
    p('v_lshrrev_b32 v%d, 1, v%d' % (vT0, vP)); p('v_and_b32 v%d, 7, v%d' % (vT0, vT0))
    p('v_xor_b32 v%d, v%d, v%d' % (vT0, vT0, vH)); p('v_lshlrev_b32 v%d, 4, v%d' % (vT0, vT0))
    p('v_lshl_add_u32 v%d, v%d, 7, v%d' % (vT0, vP, vT0))
    p('v_add_u32 v%d, s%d, v%d' % (vRX[0], sLW, vT0))
    for i in range(1, 4): p('v_xor_b32 v%d, %d, v%d' % (vRX[i], i << 5, vRX[0]))
    p('v_lshrrev_b32 v%d, 2, v%d' % (vT0, vL)); p('v_and_b32 v%d, 3, v%d' % (vT0, vT0))
    p('v_lshlrev_b32 v%d, 7, v%d' % (vT1, vT0))
    p('v_lshl_add_u32 v%d, v%d, 10, v%d' % (vT1, vH, vT1))
    p('v_and_b32 v%d, 2, v%d' % (vT0, vT0)); p('v_lshl_add_u32 v%d, v%d, 5, v%d' % (vT1, vT0, vT1))
    p('v_and_b32 v%d, 16, v%d' % (vT0, vL)); p('v_lshl_add_u32 v%d, v%d, 1, v%d' % (vT1, vT0, vT1))
    p('v_and_b32 v%d, 3, v%d' % (vT0, vL)); p('v_lshl_add_u32 v%d, v%d, 3, v%d' % (vRF[0][0], vT0, vT1))
    p('v_add_u32 v%d, %d, v%d' % (vRF[0][0], L0, vRF[0][0]))
    p('v_xor_b32 v%d, 64, v%d' % (vRF[1][0], vRF[0][0]))
    p('v_add_u32 v%d, 0x10000, v%d' % (vRF[0][1], vRF[0][0]))
    p('v_add_u32 v%d, 0x10000, v%d' % (vRF[1][1], vRF[1][0]))
    p('s_mul_i32 s%d, s%d, 4608' % (sT1, sW)); p('s_add_u32 s%d, s%d, %d' % (sT1, sT1, L_TR))
    p('v_mul_u32_u24 v%d, 72, v%d' % (vT0, vP)); p('v_lshl_add_u32 v%d, v%d, 3, v%d' % (vT0, vH, vT0))
    p('v_add_u32 v%d, s%d, v%d' % (vTW, sT1, vT0))
    p('v_lshrrev_b32 v%d, 2, v%d' % (vT0, vL)); p('v_and_b32 v%d, 3, v%d' % (vT0, vT0))
    p('v_lshl_add_u32 v%d, v%d, 3, v%d' % (vT0, vH, vT0)); p('v_mul_u32_u24 v%d, 72, v%d' % (vT0, vT0))
    p('v_and_b32 v%d, 16, v%d' % (vT1, vL)); p('v_lshl_add_u32 v%d, v%d, 1, v%d' % (vT0, vT1, vT0))
    p('v_and_b32 v%d, 3, v%d' % (vT1, vL)); p('v_lshl_add_u32 v%d, v%d, 3, v%d' % (vT0, vT1, vT0))
    p('v_add_u32 v%d, s%d, v%d' % (vTRr, sT1, vT0))
    p('s_mov_b32 s%d, s%d' % (sCB, sROT))
    p('s_lshl_b32 s%d, s%d, 2' % (sT0, sR)); p('s_add_u32 s%d, s%d, s%d' % (sT1, sT0, sW))
    p('s_mul_i32 s%d, s%d, 168' % (sHW, sT1)); p('s_lshl_b32 s%d, s%d, 1' % (sT2, sC)); p('s_add_u32 s%d, s%d, s%d' % (sHW, sHW, sT2))
    p('s_lshl_b32 s%d, s%d, 10' % (sHW, sHW)); p('s_add_u32 s%d, s%d, %d' % (sHW, sHW, WS_HID))
    p('s_lshl_b32 s%d, s%d, 7' % (sFW, sT1)); p('s_lshl_b32 s%d, s%d, 3' % (sT2, sC)); p('s_add_u32 s%d, s%d, s%d' % (sFW, sFW, sT2))
    p('s_add_u32 s%d, s%d, %d' % (sFW, sFW, WS_FL))
    p('s_lshl_b32 s%d, s%d, 1' % (sT2, sHALF)); p('s_add_u32 s%d, s%d, s%d' % (sRT0, sT0, sT2))
    p('s_mul_i32 s%d, s%d, 7' % (sT2, sW))
    p('s_mul_i32 s%d, s%d, 168' % (sH0, sRT0)); p('s_add_u32 s%d, s%d, s%d' % (sH0, sH0, sT2)); p('s_lshl_b32 s%d, s%d, 10' % (sH0, sH0))
    p('s_add_u32 s%d, s%d, %d' % (sH0, sH0, WS_HID)); p('s_add_u32 s%d, s%d, %d' % (sH1, sH0, 168 * 1024))
    p('s_mul_i32 s%d, s%d, 168' % (sW2, sCB)); p('s_add_u32 s%d, s%d, s%d' % (sW2, sW2, sT2)); p('s_lshl_b32 s%d, s%d, 11' % (sW2, sW2))
    p('s_add_u32 s%d, s%d, %d' % (sW2, sW2, WS_W2F))
    p('s_lshr_b32 s%d, s%d, 1' % (sT0, sT2)); p('s_lshl_b32 s%d, 0x000f000f, s%d' % (sPMASK, sT0))
    p('s_lshl_b32 s%d, s%d, 11' % (sT0, sT2)); p('s_add_u32 s%d, s%d, s%d' % (sW2S, sW2, sT0))
    p('s_lshl_b32 s%d, s%d, 10' % (sT0, sT2)); p('s_add_u32 s%d, s%d, s%d' % (sH0S, sH0, sT0))
    p('v_and_b32 v%d, 16, v%d' % (vT0, vL)); p('v_lshlrev_b32 v%d, 3, v%d' % (vT0, vT0))
    p('v_and_b32 v%d, 15, v%d' % (vT1, vL)); p('v_lshl_add_u32 v%d, v%d, 3, v%d' % (vT0, vT1, vT0))
    p('s_lshl_b32 s%d, s%d, 7' % (sT2, sRT0)); p('s_add_u32 s%d, s%d, %d' % (sT2, sT2, WS_FL))
    p('v_add_u32 v%d, s%d, v%d' % (vFA, sT2, vT0))
    A0, A1, Q0, Q1 = TMP + 8, TMP + 9, TMP + 10, TMP + 11
    for a in (A0, A1, Q0, Q1): p('v_mov_b32 v%d, 0' % a)
    for j in (1, 2):
        for g in x_dma(j): p.extend(g)
    lam_from(p, TMP + 0, TMP + 1, TMP + 2, L1r, L1i, TMP + 4, TMP + 5)
    stamp(p, 'first')
    for g in x_dma(3): p.extend(g)
    p('v_sub_f32 v%d, 0, v%d' % (N1i, L1i))
    cmul(p, L2r, L2i, L1r, L1i, L1r, L1i)
    cmul(p, L3r, L3i, L2r, L2i, L1r, L1i)
    cmul(p, L4r, L4i, L2r, L2i, L2r, L2i)
    cmul(p, TMP + 4, TMP + 5, L4r, L4i, L4r, L4i)
    cmul(p, TMP + 6, TMP + 7, TMP + 4, TMP + 5, TMP + 4, TMP + 5)
    cmul(p, L32r, L32i, TMP + 6, TMP + 7, TMP + 6, TMP + 7)
    cmul(p, TMP + 4, TMP + 5, L32r, L32i, L32r, L32i)
    cmul(p, L128r, L128i, TMP + 4, TMP + 5, TMP + 4, TMP + 5)
    cmul(p, L256r, L256i, L128r, L128i, L128r, L128i)
    tag_setup(p, TMP + 28)
    p('s_lshr_b32 s%d, s%d, 1' % (sT0, sCB)); p('s_lshl_b32 s%d, s%d, 8' % (sT0, sT0))
    p('s_lshl_b32 s%d, s%d, 7' % (sPS, sCB)); p('s_add_u32 s%d, s%d, 4096' % (sPS, sPS)); p('s_sub_u32 s%d, s%d, s%d' % (sPS, sPS, sT0))
    p('s_add_u32 s%d, s%d, %d' % (sT0, sT0, WS_PF))
    p('v_lshl_add_u32 v%d, v%d, 3, s%d' % (vPF, vP, sT0))
    p('s_mul_i32 s%d, s%d, 7' % (sT0, sW)); p('s_lshl_b32 s%d, 0x7f, s%d' % (sPM2, sT0))

    def x_read(q, j, slot):
        for i in range(4):
            q('ds_read_b128 %s, v%d offset:%d' % (v4(X + 16 * j + 4 * i), vRX[i], slot * 4096), tok=('xr', j))
    def x_stats(q, j):
        q.waitlgkm(('xr', j))
        for k in range(16):
            r_ = X + 16 * j + k
            q('v_dot2c_f32_bf16 v%d, s%d, v%d' % (A0 if k % 2 == 0 else A1, sONE, r_))
            q('v_dot2c_f32_bf16 v%d, v%d, v%d' % (Q0 if k % 2 == 0 else Q1, r_, r_))
    q = Prog()
    q.waitvm(('x', 0)); stamp(q, 'x0in'); x_read(q, 0, 0)
    for j in range(1, 6):
        q.waitvm(('x', j)); x_read(q, j, j)
        x_stats(q, j - 1)
    q('v_add_u32 v%d, s%d, v%d' % (vT0, sLW, vL16))
    for rg in range(4):
        q('ds_write_b128 v%d, %s offset:%d' % (vT0, v4(F0 + 4 * rg), rg * 1024))
    x_read(q, 6, 0)
    x_stats(q, 5)
    x_stats(q, 6)
    x6 = [G('buffer_load_dwordx4 %s, v%d, %s, s%d offen' % (v4(F0 + 4 * rg), vXO[rg], srd(SX), KB[6])) for rg in range(4)]
    vm = x_dma(4) + x_dma(5) + x6 + ssm_rest[:4]
    st, left = weave(q.ins, vm, 44)
    assert not left, len(left)
    p.extend(st)
    stamp(p, 'x_in')
    dmaR = []
    RSK = [sRS0, sRS1] + RS7[2:]
    for k in range(7):
        z = Prog()
        z('s_lshr_b32 s%d, s%d, 12' % (sT0, W1K[k])); z('s_lshl_b32 s%d, s%d, 11' % (sT0, sT0)); z('s_add_u32 s%d, s%d, s%d' % (sT0, sT0, sLW))
        z('s_mul_i32 s%d, s%d, 1792' % (sT1, RSK[k]))
        z('s_mov_b32 m0, s%d' % sT0)
        z('buffer_load_dwordx4 v%d, %s, s%d offen lds' % (vW1O[0], srd(SW1), sT1), tok='ffnA')
        dmaR.append(z.ins)
        dmaR.append(G('s_add_u32 m0, s%d, 1024' % sT0, 'buffer_load_dwordx4 v%d, %s, s%d offen lds' % (vW1O[1], srd(SW1), sT1), tok='ffnA'))
    w1k = Prog()
    for j in range(7): w1k('s_mul_i32 s%d, s%d, 1792' % (W1K[j], KB[j]))
    dma = []
    for dt in range(2):
        for j in range(7 if dt == 0 else 5):
            for e in range(2):
                l_off = (0 if dt == 0 else 14336 - 128) + (2 * j + e) * 1024
                dma.append(G('s_add_u32 m0, s%d, %d' % (sLW, l_off),
                    'buffer_load_dwordx4 v%d, %s, s%d offen offset:%d lds' % (vW1O[e], srd(SW1), W1K[j], 128 * dt), tok='ffnA' if dt == 0 else 'ffnB'))
    q = Prog()
    q('v_add_f32 v%d, v%d, v%d' % (A0, A0, A1)); q('v_add_f32 v%d, v%d, v%d' % (Q0, Q0, Q1))
    q('v_mov_b32 v%d, v%d' % (A1, A0)); q('v_mov_b32 v%d, v%d' % (Q1, Q0))
    q('v_permlane32_swap_b32 v%d, v%d' % (A0, A1)); q('v_permlane32_swap_b32 v%d, v%d' % (Q0, Q1))
    q('v_add_f32 v%d, v%d, v%d' % (A0, A0, A1)); q('v_add_f32 v%d, v%d, v%d' % (Q0, Q0, Q1))
    q('v_mul_f32 v%d, 0x3b124925, v%d' % (A0, A0))
    q('v_mul_f32 v%d, 0x3b124925, v%d' % (Q0, Q0))
    q('v_fma_f32 v%d, -v%d, v%d, v%d' % (Q0, A0, A0, Q0))
    q('v_max_f32 v%d, 0, v%d' % (Q0, Q0))
    bf16_round(q, vM, A0)
    bf16_round(q, Q0, Q0)
    q('v_add_f32 v%d, 0x3727c5ac, v%d' % (Q0, Q0))
    bf16_round(q, Q0, Q0)
    q('v_sqrt_f32 v%d, v%d' % (Q0, Q0))
    bf16_round(q, vS, Q0)
    q('v_rcp_f32 v%d, v%d' % (vRSv, vS))
    q('s_lshl_b32 s%d, s%d, 7' % (sT3, sW))
    q('v_lshl_add_u32 v%d, v%d, 2, s%d' % (vT0, vP, sT3))
    q('v_mul_f32 v%d, 0x%x, v%d' % (vNK, NLOG2E, vRSv))
    q('ds_write_b32 v%d, v%d offset:%d' % (vT0, vRSv, L_RS))
    q('v_lshlrev_b32 v%d, 1, v%d' % (vT0, vT0))
    q('v_mov_b32 v%d, v%d' % (TMP + 12, vM)); q('v_mov_b32 v%d, v%d' % (TMP + 13, vRSv))
    q('ds_write_b64 v%d, v[%d:%d] offset:%d' % (vT0, TMP + 12, TMP + 13, L_MR))
    q('s_sub_u32 s%d, %d, s%d' % (sT4, L_SW, sLW))
    for i in range(4): q('v_add_u32 v%d, s%d, v%d' % (vRX[i], sT4, vRX[i]))
    if OPT['stamps']: q('v_mov_b32 v%d, 0' % vRSv)

    def d_step(ks, mode=0):
        z = Prog()
        if mode == 1:
            for k in range(4):
                z('v_dot2_f32_bf16 v%d, v%d, s%d, v%d' % (TMP + 8 + 2 * k, X + 4 * ks + k, sSELL, vNM))
                z('v_dot2_f32_bf16 v%d, v%d, s%d, v%d' % (TMP + 9 + 2 * k, X + 4 * ks + k, sSELH, vNM))
            for k in range(4):
                z('v_cvt_pk_bf16_f32 v%d, v%d, v%d' % (X + 4 * ks + k, TMP + 8 + 2 * k, TMP + 9 + 2 * k))
            return z.ins
        if mode == 2:
            for k in range(4):
                r_ = X + 4 * ks + k; lo = TMP + 8 + 2 * (k % 2)
                z('v_lshlrev_b32 v%d, 16, v%d' % (lo, r_))
                z('v_and_b32 v%d, s%d, v%d' % (lo + 1, sMHI, r_))
                z('v_pk_add_f32 v[%d:%d], v[%d:%d], v[%d:%d] op_sel_hi:[1,0]' % (lo, lo + 1, lo, lo + 1, vNM, vNM + 1))
                z('v_cvt_pk_bf16_f32 v%d, v%d, v%d' % (r_, lo, lo + 1))
            return z.ins
        for k in range(4):
            r_ = X + 4 * ks + k; lo, hi = TMP + 8 + 2 * (k % 2), TMP + 9 + 2 * (k % 2)
            z('v_lshlrev_b32 v%d, 16, v%d' % (lo, r_))
            z('v_and_b32 v%d, s%d, v%d' % (hi, sMHI, r_))
            z('v_sub_f32 v%d, v%d, v%d' % (lo, lo, vM))
            z('v_sub_f32 v%d, v%d, v%d' % (hi, hi, vM))
            z('v_cvt_pk_bf16_f32 v%d, v%d, v%d' % (r_, lo, hi))
        return z.ins
    LEAD = OPT['lead']
    q('v_sub_f32 v%d, 0, v%d' % (vNM, vM))
    q('s_mov_b32 s%d, 0x3f80' % sSELL); q('s_mov_b32 s%d, 0x3f800000' % sSELH)
    for ks in range(LEAD): q.extend(d_step(ks, 1 if OPT['dot'] else 0))
    q.waitvm('ssmw')
    q('s_barrier')
    stamp(q, 'B1')
    def wbuf(n): return WB + 4 * (n % 8)
    def ssm_read(n):
        ks, T = n // 2, n % 2
        return G('ds_read_b128 %s, v%d offset:%d' % (v4(wbuf(n)), vRX[ks % 4], T * 28672 + (ks // 4) * 4096), tok=('wf', n))
    PRE = 6
    for n in range(PRE): q.extend(ssm_read(n))
    groups = []
    for ks in range(28):
        z = Prog()
        z.waitlgkm(('wf', 2 * ks + 1))
        for T in range(2):
            n = 2 * ks + T; acc = SRE if T == 0 else SIM
            z('v_mfma_f32_32x32x16_bf16 %s, %s, %s, %s' % (v16(acc), v4(X + 4 * ks), v4(wbuf(n)), '0' if ks == 0 else v16(acc)))
            if n + PRE < 56: z.extend(ssm_read(n + PRE))
            groups.append(z.ins); z = Prog()
    fill = []
    for ks in range(LEAD, 28): fill += d_step(ks, 2 if OPT['pk'] else 0)
    k = 0
    span = 2 * (28 - LEAD) + 4
    for n, g in enumerate(groups):
        q.extend(g)
        tgt = min(len(fill), (len(fill) * (n + 1)) // span)
        q.extend(fill[k:tgt]); k = tgt
    RSF = TMP + 8
    q('v_lshl_add_u32 v%d, v%d, 4, s%d' % (vT0, vH, sT3))
    for g in range(4):
        q('ds_read_b128 %s, v%d offset:%d' % (v4(RSF + 4 * g), vT0, L_RS + 32 * g))
    def pf(T):
        if T < 4: return 'buffer_load_dwordx2 v[%d:%d], v%d, %s, 0 offen offset:%d sc1' % (FR, FR + 1, vPF, srd(SWS), 1024 * T)
        return 'buffer_load_dwordx2 v[%d:%d], v%d, %s, s%d offen sc1' % (FR, FR + 1, vPF, srd(SWS), sPS)
    w2_regs = {}
    w2_state = {'last': None}
    def w2_load(idx, reg):
        if idx < 56: base, off = sW2, ((idx // 14) * 28 + (idx % 14) // 2) * 2048 + (idx % 2) * 1024
        else: base, off = sW2S, (112 + (idx - 56) // 2) * 2048 + (idx % 2) * 1024
        z = Prog()
        key = (base, off - off % 4096)
        if w2_state['last'] != key:
            z('s_add_u32 s%d, s%d, %d' % (sT5, base, off - off % 4096)); w2_state['last'] = key
        if isinstance(reg, tuple):
            z('s_add_u32 m0, s%d, %d' % (reg[1], reg[2] - off % 4096 + 4096))
            z('buffer_load_dwordx4 v%d, %s, s%d offen offset:%d sc1 lds' % (vL16, srd(SWS), sT5, off % 4096), tok=('w2', idx))
        else:
            z('buffer_load_dwordx4 %s, v%d, %s, s%d offen offset:%d sc1' % (v4(reg), vL16, srd(SWS), sT5, off % 4096), tok=('w2', idx))
        w2_regs[idx] = reg
        return z.ins
    def w2_dest(i):
        if i < 56: return 256 + 4 * i
        if i < 61: return ('lds', sLT, (i - 56) * 1024)
        return ('lds', sLA, (i - 61) * 1024)
    NW2 = 75 if OPT['ldsw2'] else 56
    w2q = []
    for T in range(5):
        lo, hi_ = 14 * T, (14 * T + 14 if T < 4 else NW2)
        if lo >= hi_: break
        w2q.append(poll_check('p%d' % T, ('s%d' % sPM2) if T < 4 else '0x7f7f', pf(T)))
        for i in range(lo, hi_):
            g = w2_load(i, w2_dest(i))
            if i == 61: g = [Ins('; need B4')] + g
            w2q.append(g)
            if i == lo + 1 and T < 4: w2q.append(G(pf(T + 1)))
    w2i = NW2
    dmaA, dmaB = dma[:14], dma[14:]
    if OPT['rotA']: vm = ssm_rest[4:] + dmaR + w1g + [w1k.ins + dmaB[0]] + dmaB[1:6] + [G(pf(0))] + dmaB[6:]
    else: vm = ssm_rest[4:] + [w1k.ins + dmaA[0]] + dmaA[1:] + w1g + dmaB[:6] + [G(pf(0))] + dmaB[6:]
    if OPT['w2early']: vm += w2q
    st, carry = weave(q.ins, vm, OPT['per'], 0, OPT['perd'])
    if not OPT['w2early']: carry += w2q
    assert not any(x.tok in ('ffnA', 'ssmw') for g in carry for x in g)
    pos_b = [k for k, i in enumerate(st) if i.kind == 'barrier'][0]
    assert not any(i.tok == 'ssmw' for i in st[pos_b:]), 'SSM DMA after B1'
    p.extend(st)
    p.waitvm('ffnA')
    p('s_waitcnt lgkmcnt(0)')
    p('s_barrier')
    stamp(p, 'B2')
    p('s_lshl_b32 s%d, s%d, 13' % (sT4, sC)); p('s_add_u32 s%d, s%d, %d' % (sT4, sT4, WS_EG))
    p('s_add_u32 s%d, s6, s%d' % (SEG, sT4)); p('s_addc_u32 s%d, s7, 0' % (SEG + 1))
    p('s_mov_b32 s%d, 8192' % (SEG + 2)); p('s_mov_b32 s%d, 0x20000' % (SEG + 3))
    p('s_lshl_b32 s%d, s%d, 12' % (sT2, sW))
    p('s_mul_i32 s%d, s%d, 5120' % (sLT, sW)); p('s_add_u32 s%d, s%d, %d' % (sLT, sLT, L_WT - 4096))
    p('s_sub_u32 s%d, s%d, 4096' % (sLA, sLW))
    tail_dma = []
    for j in (5, 6):
        for e in range(2):
            tail_dma.append(G('s_add_u32 m0, s%d, %d' % (sT2, L_SW - 128 + (2 * (j - 5) + e) * 1024),
                'buffer_load_dwordx4 v%d, %s, s%d offen offset:128 lds' % (vW1O[e], srd(SW1), W1K[j]), tok='ffnB'))

    def ffn_read(T, ks, n):
        dt, tt = T // 2, T % 2
        j, i = ks // 4, ks % 4
        if dt == 0: U = i * L_XW + 2 * j * 1024
        elif j <= 4: U = i * L_XW + 14336 + 2 * j * 1024
        else: U = L_SW - L0 + i * 4096 + 2 * (j - 5) * 1024
        z = Prog()
        for hh in range(2):
            off = U + hh * 512; win = 0
            if off >= 65536: off -= 65536; win = 1
            z('ds_read_b64_tr_b16 %s, v%d offset:%d' % (v2(wbuf(n) + 2 * hh), vRF[tt][win], off), tok=('wf', n))
        return z.ins
    def silu(T):
        acc = F0 if T % 2 == 0 else F1
        z = Prog()
        tp = [vT0, vT1, vT2, vBO]
        for b in range(0, 16, 4):
            for k in range(4): z('v_mul_f32 v%d, v%d, v%d' % (tp[k], vNK, acc + b + k))
            for k in range(4): z('v_exp_f32 v%d, v%d' % (tp[k], tp[k]))
            for k in range(4): z('v_fma_f32 v%d, v%d, v%d, v%d' % (tp[k], tp[k], vS, vS))
            for k in range(4): z('v_rcp_f32 v%d, v%d' % (tp[k], tp[k]))
            for k in range(4): z('v_mul_f32 v%d, v%d, v%d' % (acc + b + k, acc + b + k, tp[k]))
            z('v_cvt_pk_bf16_f32 v%d, v%d, v%d' % (acc + b // 2, acc + b, acc + b + 1))
            z('v_cvt_pk_bf16_f32 v%d, v%d, v%d' % (acc + b // 2 + 1, acc + b + 2, acc + b + 3))
            if b == 4:
                z('s_add_u32 s%d, s%d, %d' % (sT2, sHW, T * 28 * 1024))
                z('buffer_store_dwordx4 %s, v%d, %s, s%d offen sc1' % (v4(acc), vL16, srd(SWS), sT2), tok=('hs', T))
        z('buffer_store_dwordx4 %s, v%d, %s, s%d offen offset:1024 sc1' % (v4(acc + 4), vL16, srd(SWS), sT2), tok=('hs', T))
        return z.ins
    E0r, E0i, E1r, E1i = vXO[0], vXO[1], vXO[2], vXO[3]
    def scan1():
        z = Prog()
        for g in range(4):
            for i in range(4):
                z('v_mul_f32 v%d, v%d, v%d' % (SRE + 4 * g + i, RSF + 4 * g + i, SRE + 4 * g + i))
                z('v_mul_f32 v%d, v%d, v%d' % (SIM + 4 * g + i, RSF + 4 * g + i, SIM + 4 * g + i))
        for i in range(1, 4):
            for g in range(4):
                a, b = SRE + 4 * g + i, SIM + 4 * g + i
                z('v_fmac_f32 v%d, v%d, v%d' % (a, L1r, a - 1))
                z('v_fmac_f32 v%d, v%d, v%d' % (b, L1r, b - 1))
                z('v_fmac_f32 v%d, v%d, v%d' % (a, N1i, b - 1))
                z('v_fmac_f32 v%d, v%d, v%d' % (b, L1i, a - 1))
        for g in range(4):
            b = RSF + 4 * g
            z('v_mov_b32 v%d, v%d' % (b, SRE + 4 * g + 3)); z('v_mov_b32 v%d, v%d' % (b + 1, SRE + 4 * g + 3))
            z('v_mov_b32 v%d, v%d' % (b + 2, SIM + 4 * g + 3)); z('v_mov_b32 v%d, v%d' % (b + 3, SIM + 4 * g + 3))
        for g in range(4):
            b = RSF + 4 * g
            z('v_permlane32_swap_b32 v%d, v%d' % (b, b + 1)); z('v_permlane32_swap_b32 v%d, v%d' % (b + 2, b + 3))
        cur = (RSF, RSF + 2); nxt = [(E0r, E0i), (E1r, E1i)]
        for s in range(1, 8):
            g, h = s // 2, s % 2
            er, ei = RSF + 4 * g + h, RSF + 4 * g + 2 + h
            d = nxt[s % 2]
            z('v_fma_f32 v%d, v%d, v%d, v%d' % (d[0], L4r, cur[0], er))
            z('v_fma_f32 v%d, v%d, v%d, v%d' % (d[1], L4r, cur[1], ei))
            z('v_fma_f32 v%d, -v%d, v%d, v%d' % (d[0], L4i, cur[1], d[0]))
            z('v_fmac_f32 v%d, v%d, v%d' % (d[1], L4i, cur[0]))
            cur = d
        z('s_lshl_b32 s%d, s%d, 8' % (sT4, sW))
        z('v_lshl_add_u32 v%d, v%d, 3, s%d' % (vT0, vP, sT4))
        z('ds_write_b64 v%d, v[%d:%d] offset:%d' % (vT0, E1r, E1i, L_EW), tok='ew')
        return z.ins
    def fl_load(stage): return 'buffer_load_dwordx2 v[%d:%d], v%d, %s, s%d offen sc1' % (FR2, FR2 + 1, vFA, srd(SWS), sT6)
    def fl_issue(stage): return G('s_mov_b32 s%d, %d' % (sT6, stage * 8192), fl_load(stage))
    n0 = 56
    seq = [(T, ks) for T in range(4) for ks in range(28)]
    for m in range(PRE): p.extend(ffn_read(seq[m][0], seq[m][1], n0 + m))
    EWR = TMP + 0
    LB = X
    lbp = Prog()
    lbp('s_sub_u32 s%d, s%d, 1' % (sT0, sR)); lbp('s_lshl_b32 s%d, s%d, 9' % (sT0, sT0))
    lbp('v_lshlrev_b32 v%d, 9, v%d' % (vRX[1], vH))
    lbp('v_sub_u32 v%d, s%d, v%d' % (vRX[1], sT0, vRX[1]))
    lbp('v_lshl_add_u32 v%d, v%d, 4, v%d' % (vRX[0], vP, vRX[1]))
    lb_groups = []
    for m in range(8):
        z = Prog()
        if m: z('v_subrev_u32 v%d, %d, v%d' % (vRX[1], 1024 * m, vRX[0]))
        z('buffer_load_dwordx4 %s, v%d, %s, 0 offen sc1' % (v4(LB + 4 * m), vRX[1] if m else vRX[0], srd(SEG)))
        lb_groups.append(z.ins)
    lb_text = '\n'.join(i.text for g in lb_groups for i in g)
    pool = []
    hid_regs = {}
    hstate = {0: None, 1: None}
    def hid_load(idx):
        rt = idx % 2
        if idx < 56: base, off = (sH0, sH1)[rt], ((idx // 14) * 28 + (idx % 14) // 2) * 1024
        else: base, off = (sH0S, sH1S)[rt], (112 + (idx - 56) // 2) * 1024
        reg = pool.pop(0); hid_regs[idx] = reg
        sreg = sT3 if rt == 0 else sT4
        z = Prog()
        key = (base, off - off % 4096)
        if hstate[rt] != key:
            z('s_add_u32 s%d, s%d, %d' % (sreg, base, off - off % 4096)); hstate[rt] = key
        z('buffer_load_dwordx4 %s, v%d, %s, s%d offen offset:%d sc1' % (v4(reg), vL16, srd(SWS), sreg, off % 4096), tok=('hid', idx))
        return z.ins
    stage_of = lambda idx: min(idx // 14, 4)
    hi = 0
    checked = set()
    def hid_next():
        nonlocal hi
        assert stage_of(hi) in checked
        g = hid_load(hi); hi += 1
        return g
    def fl_check(st):
        checked.add(st)
        return poll_check('f%d' % st, 's%d' % sPMASK, fl_load(0), FR2)
    def split_at_need(vm):
        for k, g in enumerate(vm):
            if g and g[0].text == '; need B4': return vm[:k], vm[k:]
        return vm, []
    for T in range(4):
        groups = []
        acc = F0 if T % 2 == 0 else F1
        for ks in range(28):
            m = T * 28 + ks
            z = Prog()
            if ks % 2 == 0: z.waitlgkm(('wf', n0 + m + 1))
            z('v_mfma_f32_32x32x16_bf16 %s, %s, %s, %s' % (v16(acc), v4(wbuf(n0 + m)), v4(X + 4 * ks), '0' if ks == 0 else v16(acc)))
            if (T, ks) == (2, 0): z('s_barrier')
            if m + PRE < 112:
                z.extend(ffn_read(seq[m + PRE][0], seq[m + PRE][1], n0 + m + PRE))
            groups.append(z.ins)
        q = Prog()
        held = []
        if T == 0:
            q.extend(groups[0]); q.extend(groups[1])
            q.extend(interleave(groups[2:], scan1()))
            nb = [g for g in carry if any(x.tok == 'ffnB' for x in g)]
            k = max([carry.index(g) for g in nb]) + 1 if nb else 0
            vm = carry[:k] + tail_dma + carry[k:]
        elif T == 1:
            pre = Prog()
            GE = vXO[0]
            pre('v_fma_f32 v%d, v%d, v%d, v%d' % (vT0, L32r, EWR, EWR + 2)); pre('v_fma_f32 v%d, v%d, v%d, v%d' % (vT1, L32r, EWR + 1, EWR + 3))
            pre('v_fma_f32 v%d, -v%d, v%d, v%d' % (vT0, L32i, EWR + 1, vT0)); pre('v_fmac_f32 v%d, v%d, v%d' % (vT1, L32i, EWR))
            pre('v_fma_f32 v%d, v%d, v%d, v%d' % (vT2, L32r, vT0, EWR + 4)); pre('v_fma_f32 v%d, v%d, v%d, v%d' % (vT3, L32r, vT1, EWR + 5))
            pre('v_fma_f32 v%d, -v%d, v%d, v%d' % (vT2, L32i, vT1, vT2)); pre('v_fmac_f32 v%d, v%d, v%d' % (vT3, L32i, vT0))
            pre('v_fma_f32 v%d, v%d, v%d, v%d' % (GE, L32r, vT2, EWR + 6)); pre('v_fma_f32 v%d, v%d, v%d, v%d' % (GE + 1, L32r, vT3, EWR + 7))
            pre('v_fma_f32 v%d, -v%d, v%d, v%d' % (GE, L32i, vT3, GE)); pre('v_fmac_f32 v%d, v%d, v%d' % (GE + 1, L32i, vT2))
            pre('v_mov_b32 v%d, s%d' % (GE + 2, sTL)); pre('v_mov_b32 v%d, s%d' % (GE + 3, sTH))
            pre('s_lshl_b32 s%d, s%d, 3' % (sT4, sW)); pre('s_lshl_b32 s%d, 0xff, s%d' % (sT4, sT4))
            pre('s_lshl_b32 s%d, s%d, 9' % (sT0, sR))
            egs = G('s_mov_b32 exec_lo, s%d' % sT4, 's_mov_b32 exec_hi, 0',
                    'buffer_store_dwordx4 %s, v%d, %s, s%d offen sc1' % (v4(GE), vL16, srd(SEG), sT0), 's_mov_b64 exec, -1')
            q.extend(interleave(groups[:5], pre.ins)); q.extend(egs)
            q.extend(interleave(groups[5:OPT['send'] + 1], silu(0)))
            for g in groups[OPT['send'] + 1:]: q.extend(g)
            vm = carry
        else:
            q.extend(groups[0]); q.extend(groups[1]); q.extend(groups[2])
            q.extend(interleave(groups[3:OPT['send']], silu(T - 1)))
            for g in groups[OPT['send']:]: q.extend(g)
            if T == 2:
                vm = carry[:6] + [flag_group(sFW, 0, ('hs', 0))] + carry[6:]
            else:
                lbs = [[Ins('; after 9')] + lbp.ins + lb_groups[0] + lb_groups[1] + lb_groups[2] + lb_groups[3], lb_groups[4] + lb_groups[5] + lb_groups[6] + lb_groups[7]]
                for g in lbs:
                    for x in g: x.text = x.text
                vm = carry[:4] + [flag_group(sFW, 8192, ('hs', 1))] + lbs + carry[4:]
                vm.insert(min(len(vm), 12), [Ins('; after 22')] + fl_issue(0))
        if T < 2: vm, held = split_at_need(vm)
        st, carry = weave(q.ins, vm, OPT['per'], 60 if T == 2 else 0, OPT['perd'], small=(SEG,))
        carry += held
        if T == 3:
            mf = [k for k, i in enumerate(st) if i.kind == 'mfma']
            pos_l = [k for k, i in enumerate(st) if i.kind == 'vload' and 's[%d:%d]' % (SEG, SEG + 3) in i.text]
            assert len(pos_l) == 8 and pos_l[0] > mf[7], (pos_l, mf[7])
            pos_h = [k for k, i in enumerate(st) if isinstance(i.tok, tuple) and i.tok[0] == 'hid']
            assert not pos_h or pos_h[0] > mf[11]
        p.extend(st)
        if T == 0:
            assert not any(x.tok == 'ffnB' for g in carry for x in g)
            p.waitlgkm('ew'); p.waitvm('ffnB')
            p('s_barrier')
            p('v_lshlrev_b32 v%d, 3, v%d' % (vT0, vP))
            for k in range(4): p('ds_read_b64 v[%d:%d], v%d offset:%d' % (EWR + 2 * k, EWR + 2 * k + 1, vT0, L_EW + 256 * k))
        stamp(p, 'T%d' % T)
        print('after T%d: %d groups pending' % (T, len(carry)))
    pool += [WB + 4 * k for k in range(8)] + [F0 + 4 * k for k in range(4)] + [X + 32 + 4 * k for k in range(4)]
    p('s_add_u32 s%d, s%d, %d' % (sH1S, sH0S, 168 * 1024))

    q = Prog()
    s3 = silu(3)
    q.extend(s3)
    q('; mark silu3')
    def lb_check(z, lab_bad):
        z('v_add3_u32 v%d, v%d, v%d, v%d' % (vT0, LB + 2, LB + 6, LB + 10)); z('v_add3_u32 v%d, v%d, v%d, v%d' % (vT1, LB + 3, LB + 7, LB + 11))
        z('v_add3_u32 v%d, v%d, v%d, v%d' % (vT0, vT0, LB + 14, LB + 18)); z('v_add3_u32 v%d, v%d, v%d, v%d' % (vT1, vT1, LB + 15, LB + 19))
        z('v_add3_u32 v%d, v%d, v%d, v%d' % (vT0, vT0, LB + 22, LB + 26)); z('v_add3_u32 v%d, v%d, v%d, v%d' % (vT1, vT1, LB + 23, LB + 27))
        z('v_add_u32 v%d, v%d, v%d' % (vT0, vT0, LB + 30)); z('v_add_u32 v%d, v%d, v%d' % (vT1, vT1, LB + 31))
        k0 = len(z.ins)
        z('v_cmp_ne_u32 vcc, v%d, v%d' % (vT0, vT2))
        z('v_cmp_ne_u32 s[%d:%d], v%d, v%d' % (sP0, sP0 + 1, vT1, vT3))
        z('s_nop 1')
        z('s_or_b64 vcc, vcc, s[%d:%d]' % (sP0, sP0 + 1))
        z('s_cbranch_scc1 %s' % lab_bad)
        for i in z.ins[k0:]: i.note = 'glue'
    q('v_sub_u32 v%d, s%d, v%d' % (vT3, sR, vH)); q('v_add_u32 v%d, 1, v%d' % (vT3, vT3)); q('v_lshrrev_b32 v%d, 1, v%d' % (vT3, vT3))
    q('v_mul_lo_u32 v%d, s%d, v%d' % (vT2, sTL, vT3)); q('v_mul_lo_u32 v%d, s%d, v%d' % (vT3, sTH, vT3))
    lb_check(q, 'L_retry_lb')
    q('L_ok_lb:')
    z = Prog()
    z('L_retry_lb:'); z('s_mov_b32 s%d, 0' % sSPIN); z('L_loop_lb:'); z('s_sleep 1'); z(lb_text); z('s_waitcnt vmcnt(0)')
    if OPT['stamps']: z('v_add_u32 v%d, 0x100, v%d' % (vRSv, vRSv))
    z('s_add_u32 s%d, s%d, 1' % (sSPIN, sSPIN)); z('s_cmp_gt_u32 s%d, %d' % (sSPIN, OPT['spin'])); z('s_cbranch_scc1 L_ok_lb')
    lb_check(z, 'L_loop_lb'); z('s_branch L_ok_lb')
    retry_blocks.append(z)
    for m in range(6, -1, -1):
        cmac(q, LB + 4 * m, LB + 4 * m + 1, L256r, L256i, LB + 4 * m + 4, LB + 4 * m + 5)
    q('v_mov_b32 v%d, v%d' % (LB + 4, LB)); q('v_mov_b32 v%d, v%d' % (LB + 5, LB + 1))
    q('v_permlane32_swap_b32 v%d, v%d' % (LB, LB + 4)); q('v_permlane32_swap_b32 v%d, v%d' % (LB + 1, LB + 5))
    cmac(q, LB, LB + 1, L128r, L128i, LB + 4, LB + 5)
    cmac(q, EWR, EWR + 1, L32r, L32i, LB, LB + 1)
    cmac(q, EWR + 2, EWR + 3, L32r, L32i, EWR, EWR + 1)
    cmac(q, EWR + 4, EWR + 5, L32r, L32i, EWR + 2, EWR + 3)
    CS = LB + 8
    q('v_mov_b32 v%d, v%d' % (CS, LB)); q('v_mov_b32 v%d, v%d' % (CS + 1, LB + 1))
    for k in range(3):
        k0 = len(q.ins)
        q('s_cmp_eq_u32 s%d, %d' % (sW, k + 1)); q('s_cselect_b64 vcc, -1, 0')
        q('v_cndmask_b32 v%d, v%d, v%d, vcc' % (CS, CS, EWR + 2 * k))
        for i in q.ins[k0:]: i.note = 'glue'
        q('v_cndmask_b32 v%d, v%d, v%d, vcc' % (CS + 1, CS + 1, EWR + 2 * k + 1))
    for s in range(7):
        g, h = s // 2, s % 2
        er, ei = RSF + 4 * g + h, RSF + 4 * g + 2 + h
        d, cur = CS + 2 * (s + 1), CS + 2 * s
        q('v_fma_f32 v%d, v%d, v%d, v%d' % (d, L4r, cur, er))
        q('v_fma_f32 v%d, v%d, v%d, v%d' % (d + 1, L4r, cur + 1, ei))
        q('v_fma_f32 v%d, -v%d, v%d, v%d' % (d, L4i, cur + 1, d))
        q('v_fmac_f32 v%d, v%d, v%d' % (d + 1, L4i, cur))
    k0 = len(q.ins)
    q('s_mov_b32 vcc_lo, 0'); q('s_mov_b32 vcc_hi, -1')
    for g in range(4):
        a = CS + 4 * g
        q('v_cndmask_b32 v%d, v%d, v%d, vcc' % (a, a, a + 2))
        q('v_cndmask_b32 v%d, v%d, v%d, vcc' % (a + 1, a + 1, a + 3))
    for i in q.ins[k0:-1]: i.note = 'glue'
    for g in range(4):
        a = CS + 4 * g
        q('v_sub_f32 v%d, 0, v%d' % (a + 2, a + 1))
    PW = [(L1r, L1i), (L2r, L2i), (L3r, L3i), (L4r, L4i)]
    for g in range(4):
        a = CS + 4 * g
        for i in range(4):
            ur, ui = SRE + 4 * g + i, SIM + 4 * g + i
            q('v_fmac_f32 v%d, v%d, v%d' % (ur, PW[i][0], a))
            q('v_fmac_f32 v%d, v%d, v%d' % (ui, PW[i][0], a + 1))
            q('v_fmac_f32 v%d, v%d, v%d' % (ur, PW[i][1], a + 2))
            q('v_fmac_f32 v%d, v%d, v%d' % (ui, PW[i][1], a))
        for comp, base in ((0, SRE), (1, SIM)):
            b = base + 4 * g
            q('v_cvt_pk_bf16_f32 v%d, v%d, v%d' % (b, b, b + 1))
            q('v_cvt_pk_bf16_f32 v%d, v%d, v%d' % (b + 1, b + 2, b + 3))
            q('ds_write_b64 v%d, v[%d:%d] offset:%d' % (vTW, b, b + 1, comp * 2304 + 16 * g))
    HS = F1
    for comp in range(2):
        for q_ in range(2):
            for hh in range(2):
                q('ds_read_b64_tr_b16 %s, v%d offset:%d' % (v2(HS + 8 * comp + 4 * q_ + 2 * hh), vTRr, comp * 2304 + (16 * q_ + 4 * hh) * 72))
    q('s_lshl_b32 s%d, s%d, 11' % (sT2, sC)); q('s_add_u32 s%d, s%d, s%d' % (sT2, sT2, sHW)); q('s_add_u32 s%d, s%d, %d' % (sT2, sT2, 112 * 1024))
    for _ in range(10): q('; pad')
    for f in range(4):
        q('buffer_store_dwordx4 %s, v%d, %s, s%d offen offset:%d sc1' % (v4(HS + 4 * f), vL16, srd(SWS), sT2, f * 1024), tok='hsC')
    pend0 = [g for g in carry if any('s_mov_b32 s%d' % sT6 in x.text for x in g)]
    rest = [g for g in carry if g not in pend0]
    vm = pend0 + rest[:5] + [fl_check(0)] + [hid_next() for _ in range(6)] + [flag_group(sFW, 2 * 8192, ('hs', 2))] + [hid_next() for _ in range(6)] + [fl_issue(1)]
    vm += [hid_next() for _ in range(2)] + rest[5:]
    q.ins = [i for i in q.ins if not i.text.startswith('; mark')]
    st, left = weave(q.ins, vm, OPT['perh'])
    p.extend(st)
    pool += [F1 + 4 * k for k in range(4)] + [SRE + 4 * k for k in range(8)] + [204 + 4 * k for k in range(5)]
    fillr = epilogue_pre()
    ACC = {(0, 0): X + 48, (0, 1): X + 64, (1, 0): X + 80, (1, 1): X + 96}
    fk = 0
    when = {}
    p('v_add_u32 v%d, s%d, v%d' % (vFA2, sLT, vL16)); p('v_add_u32 v%d, s%d, v%d' % (vFA3, sLA, vL16))
    pstep = {OPT['p2']: 2, OPT['p3']: 3, OPT['p4']: 4}
    cstep = {1: 1, OPT['p2'] + OPT['pd']: 2, OPT['p3'] + OPT['pd']: 3, OPT['p4'] + OPT['pd']: 4}
    for step in range(42):
        if step in (0, 7, 14, 21, 28, 35): stamp(p, 'g%d' % step)
        while any((isinstance(x.tok, tuple) and x.tok[0] == 'hid') or 's_mov_b32 s%d' % sT6 in x.text for g in left for x in g): p.extend(left.pop(0))
        if step == OPT['f3']: p.extend(flag_group(sFW, 3 * 8192, ('hs', 3)))
        if step == OPT['f4']: p.extend(flag_group(sFW, 4 * 8192, 'hsC'))
        if step in cstep: p.extend(fl_check(cstep[step]))
        if step in pstep: p.extend(fl_issue(pstep[step]))
        while hi < 84 and hi < 2 * step + 2 + OPT['ahead'] and pool and stage_of(hi) in checked: p.extend(hid_next())
        for rep in range(2):
            if rep == 1 and len(left) + 84 - w2i <= max(0, 28 - step): break
            if left: p.extend(left.pop(0))
            elif w2i < 84 and len(pool) > 2 and step >= 2:
                reg = pool.pop(0); p.extend(w2_load(w2i, reg)); w2i += 1
        if step == 5: p('s_barrier')
        for i in (2 * step + 4, 2 * step + 5):
            if i < 84 and isinstance(w2_regs.get(i), tuple):
                d = w2_regs[i]; reg = pool.pop(0)
                p.waitvm(('w2', i))
                p('ds_read_b128 %s, v%d offset:%d' % (v4(reg), vFA2 if d[1] == sLT else vFA3, d[2] + 4096))
                w2_regs[i] = reg
        w0, w1_ = w2_regs[2 * step], w2_regs[2 * step + 1]
        h0, h1 = hid_regs[2 * step], hid_regs[2 * step + 1]
        em = set(x.tok for x in p.ins if isinstance(x.tok, tuple))
        for t in (('w2', 2 * step), ('w2', 2 * step + 1), ('hid', 2 * step), ('hid', 2 * step + 1)): assert t in em, t
        for ct, wr in ((0, w0), (1, w1_)):
            for rt, hr in ((0, h0), (1, h1)):
                a = ACC[(ct, rt)]
                p('v_mfma_f32_32x32x16_bf16 %s, %s, %s, %s' % (v16(a), v4(wr), v4(hr), '0' if step == 0 else v16(a)))
                c = 0
                while step >= 10 and fk < len(fillr) and (c < 12 or fillr[fk - 1].note == 'glue'):
                    i = fillr[fk]; fk += 1
                    c += cost(i) if not i.text.startswith('; pad') else 4
                    p.ins.append(i)
        pool += [w0, w1_, h0, h1]
    assert fk == len(fillr) and w2i == 84 and not left, (fk, len(fillr), w2i, len(left))
    print('G2 marks', when)
    stamp(p, 'g2end')
    epilogue(p, ACC)

EX, ED, ST, DD = TMP + 0, TMP + 8, TMP + 10, TMP + 18
EB, ET, PWA, PRA, vOO, PRB = X + 0, X + 16, X + 24, X + 28, X + 30, X + 22
sXO, sOO = 38, 39
def epilogue_pre():
    p = Prog()
    p('v_lshrrev_b32 v%d, 4, v%d' % (vT0, vL)); p('v_and_b32 v%d, 15, v%d' % (vT1, vL))
    p('v_mul_u32_u24 v%d, 896, v%d' % (vT2, vT0)); p('v_lshl_add_u32 v%d, v%d, 3, v%d' % (vT2, vT1, vT2))
    p('s_lshl_b32 s%d, s%d, 5' % (sXO, sRT0)); p('s_lshl_b32 s%d, s%d, 4' % (sT1, sW)); p('s_add_u32 s%d, s%d, s%d' % (sXO, sXO, sT1))
    p('s_mul_i32 s%d, s%d, 896' % (sXO, sXO)); p('s_lshl_b32 s%d, s%d, 7' % (sT1, sCB)); p('s_add_u32 s%d, s%d, s%d' % (sXO, sXO, sT1))
    for it in range(4):
        p('s_add_u32 s%d, s%d, %d' % (sT2, sXO, it * 4 * 896))
        p('buffer_load_dwordx2 v[%d:%d], v%d, %s, s%d offen' % (EX + 2 * it, EX + 2 * it + 1, vT2, srd(SX), sT2))
    p('v_lshlrev_b32 v%d, 3, v%d' % (vT3, vT1))
    p('buffer_load_dwordx2 v[%d:%d], v%d, %s, s%d offen' % (ED, ED + 1, vT3, srd(SDSK), sT1))
    p('v_lshlrev_b32 v%d, 1, v%d' % (vOO, vT2))
    p('s_lshl_b32 s%d, s%d, 1' % (sOO, sXO))
    p('v_and_b32 v%d, 7, v%d' % (PWA, vP)); p('v_xor_b32 v%d, v%d, v%d' % (PWA, PWA, vH)); p('v_lshlrev_b32 v%d, 4, v%d' % (PWA, PWA))
    p('v_lshl_add_u32 v%d, v%d, 8, v%d' % (PWA, vP, PWA))
    p('v_add_u32 v%d, s%d, v%d' % (PWA, sLW, PWA))
    for g in range(1, 4): p('v_xor_b32 v%d, %d, v%d' % (PWA + g, g << 5, PWA))
    p('v_xor_b32 v%d, v%d, v%d' % (PRA, vT1, vT0)); p('v_lshlrev_b32 v%d, 4, v%d' % (PRA, PRA))
    p('v_lshl_add_u32 v%d, v%d, 8, v%d' % (PRA, vT0, PRA))
    p('s_lshl_b32 s%d, s%d, 12' % (sT1, sW)); p('s_add_u32 s%d, s%d, %d' % (sT1, sT1, L0)); p('v_add_u32 v%d, s%d, v%d' % (PRA, sT1, PRA))
    p('v_xor_b32 v%d, 64, v%d' % (PRA + 1, PRA)); p('v_add_u32 v%d, 1024, v%d' % (PRA + 1, PRA + 1))
    p('v_add_u32 v%d, %d, v%d' % (PRB, 3 * L_XW, PRA)); p('v_add_u32 v%d, %d, v%d' % (PRB + 1, 3 * L_XW, PRA + 1))
    p('s_lshl_b32 s%d, s%d, 9' % (sT1, sHALF)); p('s_lshl_b32 s%d, s%d, 7' % (sT2, sW)); p('s_add_u32 s%d, s%d, s%d' % (sT1, sT1, sT2))
    p('v_lshl_add_u32 v%d, v%d, 3, s%d' % (vT3, vT0, sT1))
    for it in range(4):
        p('ds_read_b64 v[%d:%d], v%d offset:%d' % (ST + 2 * it, ST + 2 * it + 1, vT3, L_MR + 32 * it))
    for _ in range(24): p('; pad')
    D = DD; T = ET
    p('v_lshlrev_b32 v%d, 16, v%d' % (D, ED)); p('v_and_b32 v%d, s%d, v%d' % (D + 1, sMHI, ED))
    p('v_lshlrev_b32 v%d, 16, v%d' % (D + 2, ED + 1)); p('v_and_b32 v%d, s%d, v%d' % (D + 3, sMHI, ED + 1))
    for it in range(4):
        b = EB + 4 * it; m, rs = ST + 2 * it, ST + 2 * it + 1
        p('v_lshlrev_b32 v%d, 16, v%d' % (b, EX + 2 * it)); p('v_and_b32 v%d, s%d, v%d' % (b + 1, sMHI, EX + 2 * it))
        p('v_lshlrev_b32 v%d, 16, v%d' % (b + 2, EX + 2 * it + 1)); p('v_and_b32 v%d, s%d, v%d' % (b + 3, sMHI, EX + 2 * it + 1))
        for k in range(4): p('v_sub_f32 v%d, v%d, v%d' % (T + k, b + k, m))
        def rnd():
            p('v_cvt_pk_bf16_f32 v%d, v%d, v%d' % (T + 4, T, T + 1)); p('v_cvt_pk_bf16_f32 v%d, v%d, v%d' % (T + 5, T + 2, T + 3))
            p('v_lshlrev_b32 v%d, 16, v%d' % (T, T + 4)); p('v_and_b32 v%d, s%d, v%d' % (T + 1, sMHI, T + 4))
            p('v_lshlrev_b32 v%d, 16, v%d' % (T + 2, T + 5)); p('v_and_b32 v%d, s%d, v%d' % (T + 3, sMHI, T + 5))
        rnd()
        for k in range(4): p('v_mul_f32 v%d, v%d, v%d' % (T + k, T + k, rs))
        rnd()
        for k in range(4): p('v_mul_f32 v%d, v%d, v%d' % (T + k, T + k, D + k))
        rnd()
        for k in range(4): p('v_add_f32 v%d, v%d, v%d' % (b + k, b + k, T + k))
    return p.ins

def epilogue(p, ACC):
    for rt in range(2):
        for ct in range(2):
            for g in range(4):
                p('ds_write_b128 v%d, %s offset:%d' % (PWA + g, v4(ACC[(ct, rt)] + 4 * g), rt * 8192 + ct * 128))
    p('s_waitcnt lgkmcnt(0)')
    p('s_barrier')
    R = 128
    for it in range(4):
        for P in range(4):
            p('ds_read_b128 %s, v%d offset:%d' % (v4(R + 16 * it + 4 * P), (PRA if P < 3 else PRB) + (it & 1), (P % 3) * L_XW + (it >> 1) * 2048))
    for it in range(4):
        b = EB + 4 * it; r_ = R + 16 * it
        p('v_pk_add_f32 v[%d:%d], v[%d:%d], v[%d:%d]' % (r_, r_ + 1, r_, r_ + 1, r_ + 4, r_ + 5))
        p('v_pk_add_f32 v[%d:%d], v[%d:%d], v[%d:%d]' % (r_ + 2, r_ + 3, r_ + 2, r_ + 3, r_ + 6, r_ + 7))
        p('v_pk_add_f32 v[%d:%d], v[%d:%d], v[%d:%d]' % (r_ + 8, r_ + 9, r_ + 8, r_ + 9, r_ + 12, r_ + 13))
        p('v_pk_add_f32 v[%d:%d], v[%d:%d], v[%d:%d]' % (r_ + 10, r_ + 11, r_ + 10, r_ + 11, r_ + 14, r_ + 15))
        p('v_pk_add_f32 v[%d:%d], v[%d:%d], v[%d:%d]' % (b, b + 1, b, b + 1, r_, r_ + 1))
        p('v_pk_add_f32 v[%d:%d], v[%d:%d], v[%d:%d]' % (b + 2, b + 3, b + 2, b + 3, r_ + 2, r_ + 3))
        p('v_pk_add_f32 v[%d:%d], v[%d:%d], v[%d:%d]' % (b, b + 1, b, b + 1, r_ + 8, r_ + 9))
        p('v_pk_add_f32 v[%d:%d], v[%d:%d], v[%d:%d]' % (b + 2, b + 3, b + 2, b + 3, r_ + 10, r_ + 11))
        p('s_add_u32 s%d, s%d, %d' % (sT2, sOO, it * 4 * 1792))
        p('buffer_store_dwordx4 %s, v%d, %s, s%d offen' % (v4(b), vOO, srd(SOUT), sT2))
    if OPT['stamps']:
        stamp(p, 'end')
        p('v_readlane_b32 s%d, v%d, 0' % (sT0, vRSv)); p('s_nop 3'); p('v_writelane_b32 v%d, s%d, 60' % (vDUM, sT0))
        p('s_memrealtime s[%d:%d]' % (sP0, sP0 + 1)); p('s_load_dwordx2 s[36:37], s[0:1], 104'); p('s_waitcnt lgkmcnt(0)')
        p('v_writelane_b32 v%d, s%d, 63' % (vDUM, sP0))
        if OPT.get('amp', -1) >= 0:
            p('s_lshl_b32 s%d, s2, 2' % sT0); p('s_add_u32 s%d, s%d, s%d' % (sT0, sT0, sW)); p('s_cmp_lg_u32 s%d, %d' % (sT0, OPT['dbgwave']))
            p('s_cbranch_scc1 L_noamp')
            p('v_readlane_b32 s%d, v%d, %d' % (sT0, vDUM, OPT['amp'])); p('v_readlane_b32 s%d, v%d, %d' % (sT1, vDUM, OPT.get('amp0', 61)))
            p('s_nop 3')
            p('s_sub_u32 s%d, s%d, s%d' % (sT0, sT0, sT1)); p('s_mul_i32 s%d, s%d, %d' % (sT0, sT0, OPT.get('ampk', 4)))
            p('s_min_u32 s%d, s%d, 400000' % (sT0, sT0))
            p('s_memtime s[84:85]'); p('s_waitcnt lgkmcnt(0)')
            p('L_amp:')
            p('s_memtime s[86:87]'); p('s_waitcnt lgkmcnt(0)')
            p('s_sub_u32 s%d, s86, s84' % sT1); p('s_cmp_lt_u32 s%d, s%d' % (sT1, sT0)); p('s_cbranch_scc1 L_amp')
            p('L_noamp:')
        if OPT['dbg']:
            mk_srd(p, 84, 36, 256)
            p('v_readlane_b32 s%d, v%d, 61' % (sT1, vDUM))
            p('s_lshl_b32 s%d, s2, 2' % sT0); p('s_add_u32 s%d, s%d, s%d' % (sT0, sT0, sW)); p('s_cmp_lg_u32 s%d, %d' % (sT0, OPT['dbgwave']))
            p('s_cbranch_scc1 L_nodbg')
            p('v_subrev_u32 v%d, s%d, v%d' % (vT0, sT1, vDUM))
            p('v_lshlrev_b32 v%d, 2, v%d' % (vT1, vL))
            p('s_mov_b64 exec, 0xffff')
            p('buffer_store_dword v%d, v%d, s[84:87], 0 offen' % (vT0, vT1))
            p('s_mov_b64 exec, -1')
            p('L_nodbg:')
        p('s_lshl_b32 s%d, s2, 2' % sT0); p('s_add_u32 s%d, s%d, s%d' % (sT0, sT0, sW)); p('s_lshl_b32 s%d, s%d, 8' % (sT0, sT0))
        p('s_add_u32 s%d, s%d, %d' % (sT0, sT0, WS_STAMP))
        p('v_lshlrev_b32 v%d, 2, v%d' % (vT0, vL))
        p('buffer_store_dword v%d, v%d, %s, s%d offen' % (vDUM, vT0, srd(SWS), sT0))
    p('s_cmp_eq_u32 s%d, 15' % sR); p('s_cbranch_scc0 L_exit')
    p('s_cmp_eq_u32 s%d, 13' % sC); p('s_cbranch_scc0 L_exit')
    p('s_cmp_eq_u32 s%d, 3' % sW); p('s_cbranch_scc0 L_exit')
    p('s_mov_b32 s%d, %d' % (sT0, WS_EPOCH))
    p.extend(flag_group(sT0, 0))
    p('s_endpgm')

def pstamp(p, k):
    if not OPT['stamps']: return
    p('s_memtime s[90:91]'); p('s_waitcnt lgkmcnt(0)'); p('v_writelane_b32 v%d, s90, %d' % (vDUM, k))

def prep_path(p):
    SW2, SCRE, SCIM = 44, 48, 52
    sQ, sKF, sF0, sKS, sT0T, sCBK, sCTG, sFF = 8, 84, 85, 86, 87, 88, 89, 92
    p('L_prep:')
    p.reset()
    p('s_lshl_b32 s%d, s%d, 2' % (sQ, sT0)); p('s_add_u32 s%d, s%d, s%d' % (sQ, sQ, sT1)); p('s_sub_u32 s%d, s%d, 28' % (sQ, sQ))
    p('s_cmp_ge_u32 s%d, 28' % sQ); p('s_cbranch_scc1 L_exit')
    p('s_lshr_b32 s%d, s%d, 1' % (sF0, sQ)); p('s_lshl_b32 s%d, s%d, 7' % (sF0, sF0))
    p('s_and_b32 s%d, s%d, 1' % (sT0, sQ)); p('s_lshl_b32 s%d, s%d, 4' % (sT0, sT0)); p('s_add_u32 s%d, s%d, s%d' % (sF0, sF0, sT0))
    p('s_mul_i32 s%d, s%d, 896' % (sF0, sF0))
    p('s_lshl_b32 s%d, s%d, 2' % (sT0T, sW)); p('s_min_u32 s%d, s%d, 10' % (sT0T, sT0T))
    p('s_lshl_b32 s%d, s%d, 6' % (sT0, sT0T)); p('s_add_u32 s%d, s%d, s%d' % (sF0, sF0, sT0))
    p('s_mul_i32 s%d, s%d, 26624' % (sLW, sW))
    vWO = 21
    p('v_lshrrev_b32 v%d, 4, v%d' % (vWO, vL)); p('v_mul_u32_u24 v%d, 896, v%d' % (vWO, vWO))
    p('v_and_b32 v%d, 15, v%d' % (vT2, vL)); p('v_lshl_add_u32 v%d, v%d, 4, v%d' % (vWO, vT2, vWO))
    p('s_lshl_b32 s%d, s%d, 2' % (sKF, sQ)); p('s_add_u32 s%d, s%d, s%d' % (sKF, sKF, sW))
    p('s_mul_i32 s%d, s%d, 4682' % (sCBK, sKF)); p('s_lshr_b32 s%d, s%d, 16' % (sCBK, sCBK))
    p('s_mul_i32 s%d, s%d, 14' % (sT0, sCBK)); p('s_sub_u32 s%d, s%d, s%d' % (sCTG, sKF, sT0))
    p('s_waitcnt lgkmcnt(0)')
    mk_srd(p, SW2, 38, 1792 * 896)
    def w2dma(T):
        for i in range(4):
            p('s_add_u32 m0, s%d, %d' % (sLW, T * 4096 + i * 1024)); p('s_add_u32 s%d, s%d, %d' % (sT0, sF0, T * 28672 + i * 3584))
            p('buffer_load_dwordx4 v%d, %s, s%d offen lds' % (vWO, srd(SW2), sT0), tok=('w2', T))
    w2dma(0)
    mk_srd(p, SWS, 6, WS_END)
    p('buffer_load_dwordx2 v[%d:%d], v%d, %s, 0 offen sc1' % (TMP + 28, TMP + 29, vZ, srd(SWS)))
    w2dma(1)
    mk_srd(p, SLRE, 18, 896); mk_srd(p, SLIM, 20, 896); mk_srd(p, SLDT, 30, 896)
    p('v_lshlrev_b32 v%d, 1, v%d' % (vT2, vL)); p('s_lshl_b32 s%d, s%d, 7' % (sT1, sCBK))
    p('buffer_load_ushort v%d, v%d, %s, s%d offen' % (TMP + 0, vT2, srd(SLRE), sT1))
    p('buffer_load_ushort v%d, v%d, %s, s%d offen' % (TMP + 1, vT2, srd(SLIM), sT1))
    p('buffer_load_ushort v%d, v%d, %s, s%d offen' % (TMP + 2, vT2, srd(SLDT), sT1))
    w2dma(2)
    mk_srd(p, SCRE, 26, 448 * 896); mk_srd(p, SCIM, 28, 448 * 896)
    vA = 16
    p('v_lshrrev_b32 v%d, 2, v%d' % (vA, vL)); p('v_and_b32 v%d, 3, v%d' % (vA, vA))
    p('v_lshl_add_u32 v%d, v%d, 2, v%d' % (vA, vH, vA)); p('v_lshlrev_b32 v%d, 8, v%d' % (vA, vA))
    p('v_and_b32 v%d, 16, v%d' % (vT2, vL)); p('v_lshl_add_u32 v%d, v%d, 1, v%d' % (vA, vT2, vA))
    p('v_and_b32 v%d, 3, v%d' % (vT2, vL)); p('v_lshl_add_u32 v%d, v%d, 3, v%d' % (vA, vT2, vA))
    p('v_add_u32 v%d, s%d, v%d' % (vA, sLW, vA))
    vC = [17, 18, 19, 20]
    p('v_lshrrev_b32 v%d, 1, v%d' % (vT2, vP)); p('v_and_b32 v%d, 7, v%d' % (vT2, vT2))
    p('v_xor_b32 v%d, v%d, v%d' % (vT2, vT2, vH)); p('v_lshlrev_b32 v%d, 4, v%d' % (vT2, vT2))
    p('v_lshl_add_u32 v%d, v%d, 7, v%d' % (vT2, vP, vT2))
    p('v_add_u32 v%d, s%d, v%d' % (vC[0], sLW, vT2))
    for i in range(1, 4): p('v_xor_b32 v%d, %d, v%d' % (vC[i], i << 5, vC[0]))
    p('s_lshr_b32 s%d, s%d, 1' % (sKS, sT0T)); p('s_mul_i32 s%d, s%d, 168' % (sKS, sKS)); p('s_add_u32 s%d, s%d, s%d' % (sKS, sKS, sQ))
    p('s_lshl_b32 s%d, s%d, 11' % (sKS, sKS)); p('s_add_u32 s%d, s%d, %d' % (sKS, sKS, WS_W2F))
    p('s_lshl_b32 s%d, s%d, 5' % (sFF, sW)); p('s_add_u32 s%d, s%d, s%d' % (sFF, sFF, sQ)); p('s_lshl_b32 s%d, s%d, 3' % (sFF, sFF))
    p('s_mul_i32 s%d, s%d, %d' % (sT2, sCTG, 32 * 896)); p('s_add_u32 s%d, s%d, s%d' % (sT2, sT2, sT1))
    pstamp(p, 0)
    FRG = 64
    def stage(T):
        p.waitvm(('w2', T))
        for ct4 in range(4):
            for hh in range(2):
                p('ds_read_b64_tr_b16 %s, v%d offset:%d' % (v2(FRG + 16 * T + 4 * ct4 + 2 * hh), vA, T * 4096 + hh * 2048 + ct4 * 64))
        for ct4 in range(4):
            if ct4 % 2 == 0: p('s_add_u32 s%d, s%d, %d' % (sT0, sKS, ((ct4 // 2) * 168 + 28 * T) * 2048))
            p('buffer_store_dwordx4 %s, v%d, %s, s%d offen offset:%d sc1' % (v4(FRG + 16 * T + 4 * ct4), vL16, srd(SWS), sT0, (ct4 % 2) * 1024), tok=('fst', T))
    stage(0)
    pstamp(p, 1)
    stage(1)
    stage(2)
    tag_setup(p, TMP + 28)
    w2dma(3)
    for comp in range(2):
        for rg in range(4):
            p('s_add_u32 m0, s%d, %d' % (sLW, 16384 + comp * 4096 + rg * 1024))
            p('s_add_u32 s%d, s%d, %d' % (sT0, sT2, rg * 7168))
            p('buffer_load_dwordx4 v%d, %s, s%d offen lds' % (vT0 if rg % 2 == 0 else vT1, srd(SCRE if comp == 0 else SCIM), sT0), tok='c')
        if comp == 0:
            p.extend(flag_group(sFF, WS_PF, ('fst', 0)))
            pstamp(p, 2)
    p.extend(flag_group(sFF, WS_PF + 1024, ('fst', 1)))
    p.extend(flag_group(sFF, WS_PF + 2048, ('fst', 2)))
    lr, li = TMP + 6, TMP + 7
    lam_from(p, TMP + 0, TMP + 1, TMP + 2, lr, li, TMP + 4, TMP + 5)
    p('v_add_f32 v%d, -1.0, v%d' % (lr, lr))
    p('v_mul_f32 v%d, v%d, v%d' % (TMP + 4, TMP + 0, TMP + 0)); p('v_fmac_f32 v%d, v%d, v%d' % (TMP + 4, TMP + 1, TMP + 1))
    p('v_rcp_f32 v%d, v%d' % (TMP + 4, TMP + 4))
    p('v_mul_f32 v%d, v%d, v%d' % (TMP + 8, lr, TMP + 0)); p('v_fmac_f32 v%d, v%d, v%d' % (TMP + 8, li, TMP + 1))
    p('v_add_f32 v%d, v%d, v%d' % (TMP + 4, TMP + 4, TMP + 4))
    p('v_mul_f32 v%d, v%d, v%d' % (TMP + 9, li, TMP + 0)); p('v_fma_f32 v%d, -v%d, v%d, v%d' % (TMP + 9, lr, TMP + 1, TMP + 9))
    p('v_mul_f32 v%d, v%d, v%d' % (TMP + 8, TMP + 8, TMP + 4)); p('v_mul_f32 v%d, v%d, v%d' % (TMP + 9, TMP + 9, TMP + 4))
    p('v_lshl_add_u32 v%d, v%d, 3, s%d' % (vT2, vL, sLW))
    p('ds_write_b64 v%d, v[%d:%d] offset:%d' % (vT2, TMP + 8, TMP + 9, 24576))
    p('v_lshl_add_u32 v%d, v%d, 6, s%d' % (vT2, vH, sLW))
    stage(3)
    p('s_lshl_b32 s%d, s%d, 3' % (sT0, sCBK)); p('s_add_u32 s%d, s%d, 112' % (sT0, sT0)); p('s_lshl_b32 s%d, s%d, 11' % (sKS, sT0))
    p('s_lshr_b32 s%d, s%d, 1' % (sT0, sCTG)); p('s_mul_i32 s%d, s%d, %d' % (sT0, sT0, 168 * 2048)); p('s_add_u32 s%d, s%d, s%d' % (sKS, sKS, sT0))
    p('s_and_b32 s%d, s%d, 1' % (sT0, sCTG)); p('s_lshl_b32 s%d, s%d, 10' % (sT0, sT0)); p('s_add_u32 s%d, s%d, s%d' % (sKS, sKS, sT0))
    p('s_add_u32 s%d, s%d, %d' % (sKS, sKS, WS_W2F))
    CR = 24; CF = 128; U = 56; O = 192
    p.waitvm('c')
    for g4 in range(4):
        p('ds_read_b128 %s, v%d offset:%d' % (v4(CR + 8 * g4), vC[g4], 16384))
        p('ds_read_b128 %s, v%d offset:%d' % (v4(CR + 8 * g4 + 4), vC[g4], 16384 + 4096))
        for k in range(4): p('ds_read_b128 %s, v%d offset:%d' % (v4(CF + 16 * g4 + 4 * k), vT2, 24576 + 128 * g4 + 16 * k))
        if g4 == 1: p('s_waitcnt lgkmcnt(6)')
    for g4 in range(4):
        cr, ci = CR + 8 * g4, CR + 8 * g4 + 4
        o = O + 8 * g4
        for k in range(4):
            a0, b0, a1, b1 = CF + 16 * g4 + 4 * k, CF + 16 * g4 + 4 * k + 1, CF + 16 * g4 + 4 * k + 2, CF + 16 * g4 + 4 * k + 3
            p('v_lshlrev_b32 v%d, 16, v%d' % (U, cr + k)); p('v_and_b32 v%d, s%d, v%d' % (U + 1, sMHI, cr + k))
            p('v_lshlrev_b32 v%d, 16, v%d' % (U + 2, ci + k)); p('v_and_b32 v%d, s%d, v%d' % (U + 3, sMHI, ci + k))
            p('v_mul_f32 v%d, v%d, v%d' % (U + 4, a0, U)); p('v_fma_f32 v%d, -v%d, v%d, v%d' % (U + 4, b0, U + 2, U + 4))
            p('v_mul_f32 v%d, v%d, v%d' % (U + 5, a1, U + 1)); p('v_fma_f32 v%d, -v%d, v%d, v%d' % (U + 5, b1, U + 3, U + 5))
            p('v_mul_f32 v%d, -v%d, v%d' % (U + 6, a0, U + 2)); p('v_fma_f32 v%d, -v%d, v%d, v%d' % (U + 6, b0, U, U + 6))
            p('v_mul_f32 v%d, -v%d, v%d' % (U + 7, a1, U + 3)); p('v_fma_f32 v%d, -v%d, v%d, v%d' % (U + 7, b1, U + 1, U + 7))
            p('v_cvt_pk_bf16_f32 v%d, v%d, v%d' % (o + k, U + 4, U + 5))
            p('v_cvt_pk_bf16_f32 v%d, v%d, v%d' % (o + 4 + k, U + 6, U + 7))
        if g4 == 1: p.extend(flag_group(sFF, WS_PF + 3072, ('fst', 3)))
    p('s_cmp_ge_u32 s%d, 98' % sKF); p('s_cbranch_scc1 L_prep_fin')
    for g4 in range(4):
        o = O + 8 * g4
        p('s_add_u32 s%d, s%d, %d' % (sT0, sKS, (4 * (g4 >> 1) + (g4 & 1)) * 2048))
        p('s_add_u32 s%d, s%d, 4096' % (sT1, sT0))
        p('buffer_store_dwordx4 %s, v%d, %s, s%d offen sc1' % (v4(o), vL16, srd(SWS), sT0))
        p('buffer_store_dwordx4 %s, v%d, %s, s%d offen sc1' % (v4(o + 4), vL16, srd(SWS), sT1))
    p('s_lshl_b32 s%d, s%d, 3' % (sT0, sCTG)); p('s_add_u32 s%d, s%d, s%d' % (sT0, sT0, sCBK)); p('s_lshl_b32 s%d, s%d, 3' % (sT0, sT0))
    p('s_waitcnt vmcnt(0)')
    p.extend(flag_group(sT0, WS_PF + 4096))
    p('L_prep_fin:')
    if OPT['stamps']:
        pstamp(p, 3)
        p('v_writelane_b32 v%d, s%d, 62' % (vDUM, SOUT)); p('v_writelane_b32 v%d, s%d, 61' % (vDUM, SOUT + 2))
        p('s_lshl_b32 s%d, s2, 2' % sT0); p('s_add_u32 s%d, s%d, s%d' % (sT0, sT0, sW)); p('s_lshl_b32 s%d, s%d, 8' % (sT0, sT0))
        p('s_add_u32 s%d, s%d, %d' % (sT0, sT0, WS_STAMP))
        p('v_lshlrev_b32 v%d, 2, v%d' % (vT0, vL))
        p('buffer_store_dword v%d, v%d, %s, s%d offen' % (vDUM, vT0, srd(SWS), sT0))
    p('L_exit:')
    p('s_endpgm')

HEADER = open('parallel_sum__ssm_conv_s5__dense_activation_silu__prompt.s.ref').read().split('; Override launch')[0]

def build():
    p = Prog()
    prologue_common(p)
    main_path(p)
    for q in retry_blocks:
        p.reset(); p.extend(q.ins)
    prep_path(p)
    if OPT.get('abl'):
        out = []; cnt = 0
        lo = stamp_slots.index('T0'); hi_ = stamp_slots.index('T2')
        inside = False
        for i in p.ins:
            if i.op == 'v_writelane_b32':
                k = int(i.text.split(',')[-1])
                if k == lo: inside = True
                if k == hi_: inside = False
                out.append(i); continue
            a = OPT['abl']
            if inside and i.note != 'glue' and (((a & 1) and i.kind == 'vload' and i.text.startswith('buffer_load_dwordx4 a')) or ((a & 2) and i.kind == 'trans') or ((a & 4) and i.kind == 'valu')
                           or ((a & 8) and i.kind == 'dsread') or ((a & 16) and i.kind == 'vstore' and 'dwordx4' in i.text) or ((a & 32) and i.kind == 'mfma')):
                continue
            out.append(i)
        p.ins = out
    ins = finalize(p)
    ins = [i for i in ins if not i.text.startswith(('; pad', '; need', '; after'))]
    body = text_of(ins)
    s = HEADER
    s += '; @launch grid=(256,1,1) block=(256,1,1) lds=%d\n' % LDS_BYTES
    s += '.amdgcn_target "amdgcn-amd-amdhsa--gfx950"\n.text\n.globl %s\n.p2align 8\n.type %s,@function\n%s:\n' % (KNAME, KNAME, KNAME)
    s += body
    s += 'L_code_end:\n'
    s += '.section .rodata,"a"\n.p2align 6\n.amdhsa_kernel %s\n' % KNAME
    s += '  .amdhsa_next_free_vgpr 512\n  .amdhsa_next_free_sgpr 102\n  .amdhsa_accum_offset 256\n  .amdhsa_group_segment_fixed_size 0\n'
    s += '  .amdhsa_kernarg_size 120\n  .amdhsa_user_sgpr_count 2\n  .amdhsa_user_sgpr_kernarg_segment_ptr 1\n  .amdhsa_system_sgpr_workgroup_id_x 1\n'
    s += '  .amdhsa_float_denorm_mode_32 3\n'
    s += '.end_amdhsa_kernel\n'
    return s, ins

if __name__ == '__main__':
    s, ins = build()
    open(sys.argv[1], 'w').write(s)
    from collections import Counter
    c = Counter(i.kind for i in ins)
    print('instructions:', sum(v for k, v in c.items() if k != 'label'), dict(c))
    if OPT['stamps']: print('stamps:', ','.join(stamp_slots))
```

```python
import sys, os
sys.path.insert(0, os.path.dirname(os.path.abspath(__file__)))
from dsl import *

KNAME = 'parallel_sum__ssm_conv_s5__dense_activation_silu__prompt_kernel'
OPT = dict(stamps=0, rot=1, w1pf=0, cpf=1, spin=1 << 16, dbg=0, dbgwave=0, per=70, perd=72, lead=16, ahead=12, dot=1, pk=0, w2early=1, tlb=0, fillc=30, ldsw2=1, rotA=0, gpf=2, xup=3, tp=1350, tc=2500, loc=0, send=24, p2=3, p3=9, p4=16, pd=6, f3=0, f4=7, c1=0, tf=900, tp0=1000, tc0=500, tp1=900, tf2=1000, perh=80)
for a in sys.argv[2:]:
    k, v = a.split('='); OPT[k] = int(v)

HSC = '' if OPT.get('plain') else ' sc1'
WS_EPOCH = 0
WS_PF    = 0xC000
WS_FL    = 0x2000
WS_EG    = 0x10000
WS_STAMP = 0x80000
WS_W2F   = 0x100000
WS_HID   = 0x400000
WS_END   = WS_HID + 64 * 168 * 1024
L0     = 8192
L_XW   = 24576
L_SW   = L0 + 98304
L_TR   = L0 + 114688
L_WT   = L_TR + 4 * 4608
L_RS   = 0
L_MR   = 512
L_EW   = 1536
LDS_BYTES = 163840
LOG2E = 0x3fb8aa3b
NLOG2E = 0xbfb8aa3b
INV2PI = 0x3e22f983

sR, sC, sW, sROT, sTL, sTH, sONE, sMHI = 8, 9, 10, 11, 12, 13, 14, 15
SX, SBRE, SBIM, SW1, SWS, SOUT, SLRE, SLIM, SLDT, SDSK, SCODE = 40, 44, 48, 52, 56, 60, 64, 68, 72, 76, 80
SEG = 44
KB = [84 + j for j in range(7)]
W1K = [91 + j for j in range(7)]
sT0, sT1, sLW, sT2 = 98, 99, 100, 101
BM0 = [64 + j for j in range(7)]
sHW, sCB, sHALF, sRT0, sPMASK, sW2, sH0, sH1, sSPIN, sFW = 16, 17, 18, 19, 20, 21, 22, 23, 24, 25
sT3, sT4, sT5, sT6 = 26, 27, 28, 29
sP0 = 30
sW2S, sH0S, sH1S, sHWS, sIDX, sM1 = 32, 33, 34, 35, 36, 37
RSO = [72 + j for j in range(4)] + [38, 39, 3]
def srd(b): return 's[%d:%d]' % (b, b + 3)
def v4(b): return ('v[%d:%d]' % (b, b + 3)) if b < 256 else ('a[%d:%d]' % (b - 256, b - 253))
def v2(b): return ('v[%d:%d]' % (b, b + 1)) if b < 256 else ('a[%d:%d]' % (b - 256, b - 255))
def v16(b): return 'v[%d:%d]' % (b, b + 15)

vL = 1; vL16 = 2; vT0, vT1, vT2, vT3 = 3, 4, 5, 6
vM, vS, vNK, vRSv = 7, 8, 9, 10
vZ = 11; vH = 12; vP = 13; vFA = 14; vDUM = 15
X = 16
SRE, SIM, F0, F1 = 128, 144, 160, 176
vXO = [192, 193, 194, 195]
vBO = 196
vW1O = [197, 198]
vRX = [199, 200, 201, 202]
vRF = [[203, 204], [205, 206]]
L1r, L1i, N1i, L2r, L2i, L3r, L3i, L4r, L4i, L32r, L32i, L128r, L128i, L256r, L256i = range(207, 222)
vTW, vTRr = 222, 223
vFA2, vFA3 = 201, 202
TMP = 224
WB = 256 + 224
FR = TMP + 26
FR2 = TMP + 24
TAGP = TMP + 30
vNM = TMP + 16
sSELL, sSELH = 70, 71
sPS, sPM2, sLT, sLA = 68, 69, 67, 66
sRS0, sRS1 = 82, 83
vPF = TMP + 28

def cost(i):
    if i.kind in ('label', 'needvm', 'needlgkm', 'reset'): return 0
    if i.kind in ('trans', 'mfma'): return 8
    if i.kind == 'nop': return 4 * i.width
    if i.kind in ('valu', 'dot', 'perm') and (i.op in ('v_fma_f32', 'v_cvt_pk_bf16_f32', 'v_lshl_add_u32', 'v_add3_u32', 'v_mul_lo_u32') or '0x' in i.text): return 5
    if i.kind in ('vload', 'vstore', 'dma'): return 8
    return 4

def weave(comp, groups, period, start=0, pdma=None, small=(), events=()):
    out = []; t = 0; pipe = 0; nxt = start; groups = list(groups); noins = 0
    pdma = pdma or period; nm = 0; events = sorted(events, key=lambda e: e[0])
    for i in comp:
        if i.kind == 'mfma':
            t = max(t, pipe); pipe = t + 32; nm += 1
        out.append(i); t += cost(i)
        if 'exec' in i.text and i.kind == 'salu':
            noins = 0 if i.text.endswith('exec, -1') else 1
        ok = not noins and not (i.kind == 'salu' and 'm0' in i.text) and i.kind not in ('needvm', 'needlgkm') and not getattr(i, 'note', None) == 'glue'
        if events and ok and t >= events[0][0]:
            g = events.pop(0)[1]; out.extend(g); t += sum(cost(x) for x in g); continue
        if groups and groups[0] and groups[0][0].text.startswith('; after') and nm < int(groups[0][0].text.split()[2]): continue
        if groups and groups[0] and groups[0][0].text.startswith('; at') and t < int(groups[0][0].text.split()[2]): continue
        if 'exec' in i.text and i.kind == 'salu':
            noins = 0 if i.text.endswith('exec, -1') else 1
        if groups and t >= nxt and not noins and not (i.kind == 'salu' and 'm0' in i.text) and i.kind not in ('needvm', 'needlgkm') and not getattr(i, 'note', None) == 'glue':
            g = groups.pop(0); out.extend(g); t += sum(cost(x) for x in g)
            nv = sum(1 for x in g if x.kind in ('dma', 'vload', 'vstore') and 'dwordx4' in x.text and not any('s[%d:%d]' % (b, b + 3) in x.text for b in small))
            pr = (period if any('sc1' in x.text for x in g) else pdma) * nv + (0 if nv else 40)
            nxt = max(nxt + pr, t - pr // 2)
    for e in events: out.extend(e[1])
    return out, groups

def G(*texts, tok=None):
    q = Prog()
    for t in texts: q(t, tok=tok)
    return q.ins

stamp_slots = []
def stamp(p, name):
    if not OPT['stamps']: return
    if OPT.get('allg') and name in ('issued0', 'first', 'x0in', 'lead', 'Win', 'ssmend', 'Ain', 'lbok', 'T0', 'T1', 'T2', 'B1'): return
    k = len(stamp_slots); stamp_slots.append(name)
    p('s_memtime s[%d:%d]' % (sP0, sP0 + 1))
    p('s_waitcnt lgkmcnt(0)')
    p('v_writelane_b32 v%d, s%d, %d' % (vDUM, sP0, k))

def mk_srd(p, b, ptr, nbytes):
    p('s_mov_b32 s%d, s%d' % (b, ptr)); p('s_mov_b32 s%d, s%d' % (b + 1, ptr + 1))
    p('s_mov_b32 s%d, %d' % (b + 2, nbytes)); p('s_mov_b32 s%d, 0x20000' % (b + 3))

def bf16_round(p, dst, src):
    p('v_cvt_pk_bf16_f32 v%d, v%d, v%d' % (dst, src, src))
    p('v_lshlrev_b32 v%d, 16, v%d' % (dst, dst))

def lam_from(p, lre, lim, ldt, outr, outi, t0, t1):
    p('v_lshlrev_b32 v%d, 16, v%d' % (lre, lre))
    p('v_lshlrev_b32 v%d, 16, v%d' % (lim, lim))
    p('v_lshlrev_b32 v%d, 16, v%d' % (ldt, ldt))
    p('v_mul_f32 v%d, 0x%x, v%d' % (ldt, LOG2E, ldt))
    p('v_exp_f32 v%d, v%d' % (ldt, ldt))
    bf16_round(p, ldt, ldt)
    p('v_mul_f32 v%d, v%d, v%d' % (t0, ldt, lre))
    p('v_mul_f32 v%d, v%d, v%d' % (t1, ldt, lim))
    p('v_mul_f32 v%d, 0x%x, v%d' % (t0, LOG2E, t0))
    p('v_exp_f32 v%d, v%d' % (t0, t0))
    p('v_mul_f32 v%d, 0x%x, v%d' % (t1, INV2PI, t1))
    p('v_fract_f32 v%d, v%d' % (t1, t1))
    p('v_cos_f32 v%d, v%d' % (outr, t1))
    p('v_sin_f32 v%d, v%d' % (outi, t1))
    p('v_mul_f32 v%d, v%d, v%d' % (outr, t0, outr))
    p('v_mul_f32 v%d, v%d, v%d' % (outi, t0, outi))

def cmul(p, dr, di, ar, ai, br, bi):
    p('v_mul_f32 v%d, v%d, v%d' % (dr, ar, br))
    p('v_mul_f32 v%d, v%d, v%d' % (di, ar, bi))
    p('v_fma_f32 v%d, -v%d, v%d, v%d' % (dr, ai, bi, dr))
    p('v_fmac_f32 v%d, v%d, v%d' % (di, ai, br))

def cmac(p, dr, di, ar, ai, br, bi):
    p('v_fmac_f32 v%d, v%d, v%d' % (dr, ar, br))
    p('v_fmac_f32 v%d, v%d, v%d' % (di, ar, bi))
    p('v_fma_f32 v%d, -v%d, v%d, v%d' % (dr, ai, bi, dr))
    p('v_fmac_f32 v%d, v%d, v%d' % (di, ai, br))

def tag_setup(p, vlo):
    p('v_readfirstlane_b32 s%d, v%d' % (sTL, vlo))
    p('v_readfirstlane_b32 s%d, v%d' % (sTH, vlo + 1))
    p('s_mul_i32 s%d, s%d, 0x9e3779b1' % (sTL, sTL)); p('s_add_u32 s%d, s%d, 0x7f4a7c15' % (sTL, sTL))
    p('s_mul_i32 s%d, s%d, 0x85ebca6b' % (sTH, sTH)); p('s_add_u32 s%d, s%d, 0xc2b2ae35' % (sTH, sTH))
    p('v_mov_b32 v%d, s%d' % (TAGP, sTL)); p('v_mov_b32 v%d, s%d' % (TAGP + 1, sTH))

retry_blocks = []
def poll_check(name, mask, reload_text, FR=FR):
    p = Prog()
    p('v_cmp_ne_u32 vcc, s%d, v%d' % (sTL, FR))
    p('v_cmp_ne_u32 s[%d:%d], s%d, v%d' % (sP0, sP0 + 1, sTH, FR + 1))
    p('s_nop 1')
    p('s_or_b32 s%d, vcc_lo, s%d' % (sM1, sP0))
    p('s_and_b32 s%d, s%d, %s' % (sM1, sM1, mask))
    p('s_cbranch_scc1 L_retry_%s' % name)
    p('L_ok_%s:' % name)
    for i in p.ins: i.note = 'glue'
    q = Prog()
    q('L_retry_%s:' % name)
    q('s_mov_b32 s%d, 0' % sSPIN)
    q('L_loop_%s:' % name)
    q('s_sleep 1')
    q(reload_text)
    q('s_waitcnt vmcnt(0)')
    q('v_cmp_ne_u32 vcc, s%d, v%d' % (sTL, FR))
    q('v_cmp_ne_u32 s[%d:%d], s%d, v%d' % (sP0, sP0 + 1, sTH, FR + 1))
    q('s_add_u32 s%d, s%d, 1' % (sSPIN, sSPIN))
    if OPT['stamps']: q('v_add_u32 v%d, 1, v%d' % (vRSv, vRSv))
    q('s_cmp_gt_u32 s%d, %d' % (sSPIN, OPT['spin']))
    q('s_cbranch_scc1 L_ok_%s' % name)
    q('s_or_b32 s%d, vcc_lo, s%d' % (sM1, sP0))
    q('s_and_b32 s%d, s%d, %s' % (sM1, sM1, mask))
    q('s_cbranch_scc1 L_loop_%s' % name)
    q('s_branch L_ok_%s' % name)
    retry_blocks.append(q)
    return p.ins

def flag_group(base_s, add, waittok=None):
    q = Prog()
    if waittok is not None: q.waitvm(waittok)
    q('s_add_u32 s%d, s%d, %d' % (sM1, base_s, add))
    q('s_mov_b64 exec, 1')
    q('buffer_store_dwordx2 v[%d:%d], v%d, %s, s%d offen%s' % (TAGP, TAGP + 1, vZ, srd(SWS), sM1, HSC if base_s == sFW else ' sc1'))
    q('s_mov_b64 exec, -1')
    return q.ins

def prologue_common(p):
    p('s_cmp_ge_u32 s2, 256')
    p('s_cbranch_scc1 L_exit')
    p('s_load_dwordx16 s[16:31], s[0:1], 0')
    p('s_load_dwordx8 s[32:39], s[0:1], 64')
    p('s_load_dwordx2 s[4:5], s[0:1], 96')
    p('s_load_dwordx2 s[6:7], s[0:1], 112')
    if OPT['stamps']:
        p('s_memrealtime s[%d:%d]' % (SOUT, SOUT + 1))
        p('s_memtime s[%d:%d]' % (SOUT + 2, SOUT + 3))
    if OPT['cpf']:
        p('s_getpc_b64 s[%d:%d]' % (SCODE, SCODE + 1))
        p('L_pc:')
        p('v_lshrrev_b32 v%d, 5, v0' % vT1); p('v_and_b32 v%d, 6, v%d' % (vT1, vT1)); p('v_and_b32 v%d, 1, v0' % vT2)
        p('v_add_lshl_u32 v%d, v%d, v%d, 7' % (vT2, vT1, vT2))
        p('s_sub_u32 s%d, s%d, L_pc-%s' % (SCODE, SCODE, KNAME))
        p('s_subb_u32 s%d, s%d, 0' % (SCODE + 1, SCODE + 1))
        p('s_mov_b32 s%d, L_code_end-%s' % (SCODE + 2, KNAME))
        p('s_mov_b32 s%d, 0x20000' % (SCODE + 3))
        p('s_lshr_b32 s%d, s2, 3' % sT1); p('s_lshl_b32 s%d, s%d, 10' % (sT1, sT1))
        p('s_mov_b64 exec, 3')
        p('buffer_load_dword v%d, v%d, %s, s%d offen' % (F1, vT2, srd(SCODE), sT1), tok='cpf')
        p('s_mov_b64 exec, -1')
    p('v_lshrrev_b32 v%d, 6, v0' % vT0)
    p('v_and_b32 v%d, 63, v0' % vL)
    p('v_readfirstlane_b32 s%d, v%d' % (sW, vT0))
    p('v_lshlrev_b32 v%d, 4, v%d' % (vL16, vL))
    p('v_mov_b32 v%d, 0' % vZ)
    p('v_lshrrev_b32 v%d, 5, v%d' % (vH, vL))
    p('v_and_b32 v%d, 31, v%d' % (vP, vL))
    p('s_and_b32 s%d, s2, 7' % sT0)
    p('s_lshr_b32 s%d, s2, 3' % sT1)
    p('s_mov_b32 s%d, 0x3f803f80' % sONE)
    p('s_mov_b32 s%d, 0xffff0000' % sMHI)
    p('v_lshrrev_b32 v%d, 3, v%d' % (vT0, vL))
    p('v_mul_u32_u24 v%d, 896, v%d' % (vT0, vT0))
    p('v_lshrrev_b32 v%d, 4, v%d' % (vT1, vL))
    p('v_and_b32 v%d, 7, v%d' % (vT2, vL))
    p('v_xor_b32 v%d, v%d, v%d' % (vT1, vT1, vT2))
    p('v_lshl_add_u32 v%d, v%d, 4, v%d' % (vT0, vT1, vT0))
    p('v_xor_b32 v%d, 64, v%d' % (vT1, vT0))
    p('s_cmp_ge_u32 s%d, 28' % sT1)
    p('s_cbranch_scc1 L_prep')

def wrap7(p, dst, a, b_or_imm, tmp):
    p('s_add_u32 s%d, s%d, %s' % (dst, a, b_or_imm))
    p('s_cmp_ge_u32 s%d, 7' % dst)
    p('s_cselect_b32 s%d, 7, 0' % tmp)
    p('s_sub_u32 s%d, s%d, s%d' % (dst, dst, tmp))

def main_path(p):
    sXCD, sI7 = 78, 79
    p('s_mov_b32 s%d, s%d' % (sXCD, sT0)); p('s_mov_b32 s%d, s%d' % (sI7, sT1))
    if not OPT['loc']:
        p('s_mul_i32 s%d, s%d, 37' % (sT2, sT1)); p('s_lshr_b32 s%d, s%d, 8' % (sT2, sT2))
        p('s_mul_i32 s3, s%d, 7' % sT2); p('s_sub_u32 s%d, s%d, s3' % (sROT, sT1))
        p('s_lshr_b32 s%d, s%d, 1' % (sR, sT0)); p('s_lshl_b32 s%d, s%d, 2' % (sR, sR)); p('s_add_u32 s%d, s%d, s%d' % (sR, sR, sT2))
        p('s_and_b32 s%d, s%d, 1' % (sT0, sT0))
        p('s_mul_i32 s%d, s%d, 7' % (sC, sT0)); p('s_add_u32 s%d, s%d, s%d' % (sC, sC, sROT))
    else:
        p('s_cmp_ge_u32 s%d, 14' % sT1); p('s_cselect_b32 s%d, 1, 0' % sT2); p('s_cselect_b32 s3, 14, 0')
        p('s_sub_u32 s%d, s%d, s3' % (sC, sT1))
        p('s_lshl_b32 s%d, s%d, 1' % (sR, sT0)); p('s_add_u32 s%d, s%d, s%d' % (sR, sR, sT2))
        p('s_cmp_ge_u32 s%d, 7' % sC); p('s_cselect_b32 s%d, 1, 0' % sXCD); p('s_cselect_b32 s3, 7, 0')
        p('s_sub_u32 s%d, s%d, s3' % (sROT, sC))
        p('s_lshl_b32 s%d, s%d, 1' % (sT2, sT2))
    p('s_mul_i32 s%d, s%d, %d' % (sLW, sW, L_XW)); p('s_add_u32 s%d, s%d, %d' % (sLW, sLW, L0))
    p('s_lshl_b32 s%d, s%d, 7' % (KB[0], sROT)) if OPT['rot'] else p('s_mov_b32 s%d, 0' % KB[0])
    p('s_lshl_b32 s%d, s%d, 2' % (sT0, sR)); p('s_add_u32 s%d, s%d, s%d' % (sT0, sT0, sW))
    p('s_mul_i32 s%d, s%d, %d' % (sT1, sT0, 32 * 896))
    p('v_add_u32 v%d, s%d, v%d' % (vXO[0], sT1, vT0))
    p('v_add_u32 v%d, s%d, v%d' % (vXO[1], sT1, vT1))
    p('v_add_u32 v%d, %d, v%d' % (vXO[2], 14336 - 2048, vXO[0]))
    p('v_add_u32 v%d, %d, v%d' % (vXO[1], 7168 - 1024, vXO[1]))
    p('v_add_u32 v%d, %d, v%d' % (vXO[3], 14336 - 2048, vXO[1]))
    if OPT['stamps']: p('s_memtime s[76:77]')
    p('s_waitcnt lgkmcnt(0)')
    if OPT['stamps']:
        p('v_writelane_b32 v%d, s%d, 62' % (vDUM, SOUT)); p('v_writelane_b32 v%d, s%d, 61' % (vDUM, SOUT + 2))
        stamp_slots.append('prek'); p('v_writelane_b32 v%d, s76, 0' % vDUM)
        p('s_memtime s[%d:%d]' % (SOUT, SOUT + 1))
    mk_srd(p, SX, 16, 2048 * 896)
    def x_dma(j):
        out = [G('buffer_load_dwordx4 v%d, %s, s%d offen offset:%d lds' % (vXO[rg], srd(SX), KB[j], rg * 1024), tok=('x', j)) for rg in range(4)]
        out[0] = G('s_add_u32 m0, s%d, %d' % (sLW, j * 4096)) + out[0]
        return out
    fill = Prog()
    mk_srd(fill, SBRE, 22, 448 * 896); mk_srd(fill, SBIM, 24, 448 * 896)
    mk_srd(fill, SLRE, 18, 896); mk_srd(fill, SLIM, 20, 896); mk_srd(fill, SLDT, 30, 896); mk_srd(fill, SWS, 6, WS_END)
    mk_srd(fill, SW1, 36, 448 * 3584)
    fl = fill.ins
    for g in x_dma(0): p.extend(g)
    p.extend(fl[:8]); fl = fl[8:]
    p('s_and_b32 s%d, s%d, 1' % (sT1, sW)); p('s_lshl_b32 s%d, s%d, 6' % (sT1, sT1))
    p('v_xor_b32 v%d, s%d, v%d' % (vBO, sT1, vT0))
    p('s_mul_i32 s%d, s%d, 7168' % (sT1, sW)); p('s_mul_i32 s%d, s%d, %d' % (sT0, sC, 32 * 896)); p('s_add_u32 s%d, s%d, s%d' % (sT1, sT1, sT0))
    p('v_add_u32 v%d, s%d, v%d' % (vBO, sT1, vBO))
    p('s_lshl_b32 s%d, s%d, 1' % (sT2, sT2))
    p('s_lshl_b32 s%d, s%d, 12' % (W1K[0], sT2)); p('s_lshl_b32 s%d, s%d, 10' % (sT1, sW)); p('s_add_u32 s%d, s%d, s%d' % (W1K[0], W1K[0], sT1))
    p('s_add_u32 s%d, s%d, %d' % (sT1, sT1, 7 * 4096))
    for k in range(1, 7):
        p('s_add_u32 s%d, s%d, 4096' % (W1K[k], W1K[k - 1]))
        p('s_cmp_ge_u32 s%d, s%d' % (W1K[k], sT1))
        p('s_cselect_b32 s%d, %d, 0' % (sT0, 7 * 4096))
        p('s_sub_u32 s%d, s%d, s%d' % (W1K[k], W1K[k], sT0))
    p('s_lshl_b32 s%d, s%d, 7' % (sT2, sT2))
    p('s_add_u32 s%d, s%d, s%d' % (sT2, sT2, KB[0]))
    p('s_cmp_ge_u32 s%d, 896' % sT2); p('s_cselect_b32 s%d, 896, 0' % sT0); p('s_sub_u32 s%d, s%d, s%d' % (sT2, sT2, sT0))
    p('v_lshlrev_b32 v%d, 1, v%d' % (vT2, vP))
    p('s_lshl_b32 s%d, s%d, 6' % (sT1, sC))
    if OPT['stamps']:
        p('s_memtime s[%d:%d]' % (SOUT + 2, SOUT + 3)); p('s_waitcnt lgkmcnt(0)')
        stamp_slots.append('karg'); p('v_writelane_b32 v%d, s%d, 1' % (vDUM, SOUT))
        stamp_slots.append('x0'); p('v_writelane_b32 v%d, s%d, 2' % (vDUM, SOUT + 2))
    ssm_soff = [sT2]
    def ssm_dma(k, soff):
        return [G('s_add_u32 m0, s%d, %d' % (W1K[k], L_SW + T * 28672),
                  'buffer_load_dwordx4 v%d, %s, s%d offen lds' % (vBO, srd(SBRE if T == 0 else SBIM), soff), tok='ssmw') for T in range(2)]
    def next_soff(q, dst, src):
        q('s_add_u32 s%d, s%d, 128' % (dst, src)); q('s_cmp_ge_u32 s%d, 896' % dst); q('s_cselect_b32 s%d, 0, s%d' % (dst, dst))
    for g in ssm_dma(0, sT2):
        p.extend([g[0]] + fl[:4] + [g[1]]); fl = fl[4:]
    p('s_mov_b32 s%d, s%d' % (sRS0, sT2))
    next_soff(p, sT2, sT2)
    p('s_mov_b32 s%d, s%d' % (sRS1, sT2))
    for g in ssm_dma(1, sT2):
        p.extend([g[0]] + fl[:4] + [g[1]]); fl = fl[4:]
    p.extend(fl)
    p('buffer_load_dwordx2 v[%d:%d], v%d, %s, 0 offen sc1' % (TMP + 28, TMP + 29, vZ, srd(SWS)))
    p('buffer_load_ushort v%d, v%d, %s, s%d offen' % (TMP + 0, vT2, srd(SLRE), sT1))
    p('buffer_load_ushort v%d, v%d, %s, s%d offen' % (TMP + 1, vT2, srd(SLIM), sT1))
    p('buffer_load_ushort v%d, v%d, %s, s%d offen' % (TMP + 2, vT2, srd(SLDT), sT1))
    gpf = Prog()
    if OPT['gpf']:
        gpf('s_mul_i32 s%d, s%d, 14' % (sT0, sR)); gpf('s_add_u32 s%d, s%d, s%d' % (sT0, sT0, sC)); gpf('s_lshl_b32 s%d, s%d, 2' % (sT0, sT0))
        gpf('s_add_u32 s%d, s%d, s%d' % (sT0, sT0, sW)); gpf('s_mul_i32 s%d, s%d, 1792' % (sT0, sT0))
        gpf('v_lshlrev_b32 v%d, 7, v%d' % (vT1, vL))
        gpf('s_mov_b64 exec, 0x3fff')
        gpf('buffer_load_dword v%d, v%d, %s, s%d offen' % (F1 + 5, vT1, srd(SW1), sT0), tok='cpf')
        gpf('s_mov_b64 exec, -1')
    if OPT['gpf'] == 1: p.extend(gpf.ins)
    if OPT['tlb']:
        p('v_lshlrev_b32 v%d, 21, v%d' % (vT1, vL))
        p('s_mov_b64 exec, 0xfe')
        p('buffer_load_dword v%d, v%d, %s, 0 offen' % (F1 + 3, vT1, srd(SWS)), tok='cpf')
        p('s_mov_b64 exec, 1')
        p('buffer_load_dword v%d, v%d, %s, 0 offen' % (F1 + 4, vZ, srd(SW1)), tok='cpf')
        p('s_mov_b64 exec, -1')
    stamp(p, 'issued0')
    for j in range(1, 7):
        if OPT['rot']:
            p('s_add_u32 s%d, s%d, 128' % (KB[j], KB[j - 1]))
            p('s_cmp_ge_u32 s%d, 896' % KB[j])
            p('s_cselect_b32 s%d, 0, s%d' % (KB[j], KB[j]))
        else: p('s_mov_b32 s%d, %d' % (KB[j], j * 128))
    prev = sT2
    RS7 = [None, None, 38, 39, 34, 35, 3]
    p('s_and_b32 s%d, s%d, 1' % (sHALF, sXCD))
    mk_srd(p, SDSK, 32, 896)
    mk_srd(p, SOUT, 4, 2048 * 1792)
    for k in range(2, 7):
        next_soff(p, RS7[k], prev); prev = RS7[k]
    ssm_rest = []
    for k in range(2, 7): ssm_rest += ssm_dma(k, RS7[k])
    w1g = []
    if OPT['w1pf']:
        p('v_mul_u32_u24 v%d, 3584, v%d' % (vT1, vL))
        p('s_and_b32 s%d, s%d, 3' % (sT1, sR)); p('s_lshl_b32 s%d, s%d, 2' % (sT1, sT1)); p('s_add_u32 s%d, s%d, s%d' % (sT1, sT1, sW))
        p('s_mul_i32 s%d, s%d, %d' % (sT1, sT1, 28 * 3584))
        p('s_lshl_b32 s%d, s%d, 8' % (sT0, sC)); p('s_add_u32 s%d, s%d, s%d' % (sT1, sT1, sT0))
        p('v_add_u32 v%d, s%d, v%d' % (F1 + 2, sT1, vT1))
        w1g = [G('s_mov_b64 exec, 0x0fffffff', 'buffer_load_dword v%d, v%d, %s, 0 offen offset:128' % (F1 + 1, F1 + 2, srd(SW1)), 's_mov_b64 exec, -1', tok='cpf')]
    p('v_lshrrev_b32 v%d, 3, v%d' % (vT0, vL))
    p('v_mul_u32_u24 v%d, 3584, v%d' % (vT0, vT0))
    p('v_lshrrev_b32 v%d, 2, v%d' % (vT1, vL)); p('v_and_b32 v%d, 4, v%d' % (vT1, vT1))
    p('v_and_b32 v%d, 7, v%d' % (vT2, vL)); p('v_xor_b32 v%d, v%d, v%d' % (vT1, vT1, vT2))
    p('v_lshl_add_u32 v%d, v%d, 4, v%d' % (vT0, vT1, vT0))
    p('s_mul_i32 s%d, s%d, %d' % (sT1, sW, 16 * 3584)); p('s_lshl_b32 s%d, s%d, 8' % (sT0, sC)); p('s_add_u32 s%d, s%d, s%d' % (sT1, sT1, sT0))
    p('v_add_u32 v%d, s%d, v%d' % (vW1O[0], sT1, vT0))
    p('v_add_u32 v%d, %d, v%d' % (vW1O[1], 8 * 3584 - 1024, vW1O[0]))
    p('v_lshrrev_b32 v%d, 1, v%d' % (vT0, vP)); p('v_and_b32 v%d, 7, v%d' % (vT0, vT0))
    p('v_xor_b32 v%d, v%d, v%d' % (vT0, vT0, vH)); p('v_lshlrev_b32 v%d, 4, v%d' % (vT0, vT0))
    p('v_lshl_add_u32 v%d, v%d, 7, v%d' % (vT0, vP, vT0))
    p('v_add_u32 v%d, s%d, v%d' % (vRX[0], sLW, vT0))
    for i in range(1, 4): p('v_xor_b32 v%d, %d, v%d' % (vRX[i], i << 5, vRX[0]))
    p('v_lshrrev_b32 v%d, 2, v%d' % (vT0, vL)); p('v_and_b32 v%d, 3, v%d' % (vT0, vT0))
    p('v_lshlrev_b32 v%d, 7, v%d' % (vT1, vT0))
    p('v_lshl_add_u32 v%d, v%d, 10, v%d' % (vT1, vH, vT1))
    p('v_and_b32 v%d, 2, v%d' % (vT0, vT0)); p('v_lshl_add_u32 v%d, v%d, 5, v%d' % (vT1, vT0, vT1))
    p('v_and_b32 v%d, 16, v%d' % (vT0, vL)); p('v_lshl_add_u32 v%d, v%d, 1, v%d' % (vT1, vT0, vT1))
    p('v_and_b32 v%d, 3, v%d' % (vT0, vL)); p('v_lshl_add_u32 v%d, v%d, 3, v%d' % (vRF[0][0], vT0, vT1))
    p('v_add_u32 v%d, %d, v%d' % (vRF[0][0], L0, vRF[0][0]))
    p('v_xor_b32 v%d, 64, v%d' % (vRF[1][0], vRF[0][0]))
    p('v_add_u32 v%d, 0x10000, v%d' % (vRF[0][1], vRF[0][0]))
    p('v_add_u32 v%d, 0x10000, v%d' % (vRF[1][1], vRF[1][0]))
    p('s_mul_i32 s%d, s%d, 4608' % (sT1, sW)); p('s_add_u32 s%d, s%d, %d' % (sT1, sT1, L_TR))
    p('v_mul_u32_u24 v%d, 72, v%d' % (vT0, vP)); p('v_lshl_add_u32 v%d, v%d, 3, v%d' % (vT0, vH, vT0))
    p('v_add_u32 v%d, s%d, v%d' % (vTW, sT1, vT0))
    p('v_lshrrev_b32 v%d, 2, v%d' % (vT0, vL)); p('v_and_b32 v%d, 3, v%d' % (vT0, vT0))
    p('v_lshl_add_u32 v%d, v%d, 3, v%d' % (vT0, vH, vT0)); p('v_mul_u32_u24 v%d, 72, v%d' % (vT0, vT0))
    p('v_and_b32 v%d, 16, v%d' % (vT1, vL)); p('v_lshl_add_u32 v%d, v%d, 1, v%d' % (vT0, vT1, vT0))
    p('v_and_b32 v%d, 3, v%d' % (vT1, vL)); p('v_lshl_add_u32 v%d, v%d, 3, v%d' % (vT0, vT1, vT0))
    p('v_add_u32 v%d, s%d, v%d' % (vTRr, sT1, vT0))
    p('s_mov_b32 s%d, s%d' % (sCB, sROT))
    p('s_lshl_b32 s%d, s%d, 2' % (sT0, sR)); p('s_add_u32 s%d, s%d, s%d' % (sT1, sT0, sW))
    p('s_mul_i32 s%d, s%d, 168' % (sHW, sT1)); p('s_lshl_b32 s%d, s%d, 1' % (sT2, sC)); p('s_add_u32 s%d, s%d, s%d' % (sHW, sHW, sT2))
    p('s_lshl_b32 s%d, s%d, 10' % (sHW, sHW)); p('s_add_u32 s%d, s%d, %d' % (sHW, sHW, WS_HID))
    p('s_lshl_b32 s%d, s%d, 7' % (sFW, sT1)); p('s_lshl_b32 s%d, s%d, 3' % (sT2, sC)); p('s_add_u32 s%d, s%d, s%d' % (sFW, sFW, sT2))
    p('s_add_u32 s%d, s%d, %d' % (sFW, sFW, WS_FL))
    p('s_lshl_b32 s%d, s%d, 1' % (sT2, sHALF)); p('s_add_u32 s%d, s%d, s%d' % (sRT0, sT0, sT2))
    p('s_mul_i32 s%d, s%d, 7' % (sT2, sW))
    p('s_mul_i32 s%d, s%d, 168' % (sH0, sRT0)); p('s_add_u32 s%d, s%d, s%d' % (sH0, sH0, sT2)); p('s_lshl_b32 s%d, s%d, 10' % (sH0, sH0))
    p('s_add_u32 s%d, s%d, %d' % (sH0, sH0, WS_HID)); p('s_add_u32 s%d, s%d, %d' % (sH1, sH0, 168 * 1024))
    p('s_mul_i32 s%d, s%d, 168' % (sW2, sCB)); p('s_add_u32 s%d, s%d, s%d' % (sW2, sW2, sT2)); p('s_lshl_b32 s%d, s%d, 11' % (sW2, sW2))
    p('s_add_u32 s%d, s%d, %d' % (sW2, sW2, WS_W2F))
    p('s_lshr_b32 s%d, s%d, 1' % (sT0, sT2)); p('s_lshl_b32 s%d, 0x000f000f, s%d' % (sPMASK, sT0))
    p('s_lshl_b32 s%d, s%d, 11' % (sT0, sT2)); p('s_add_u32 s%d, s%d, s%d' % (sW2S, sW2, sT0))
    p('s_lshl_b32 s%d, s%d, 10' % (sT0, sT2)); p('s_add_u32 s%d, s%d, s%d' % (sH0S, sH0, sT0))
    p('v_and_b32 v%d, 16, v%d' % (vT0, vL)); p('v_lshlrev_b32 v%d, 3, v%d' % (vT0, vT0))
    p('v_and_b32 v%d, 15, v%d' % (vT1, vL)); p('v_lshl_add_u32 v%d, v%d, 3, v%d' % (vT0, vT1, vT0))
    p('s_lshl_b32 s%d, s%d, 7' % (sT2, sRT0)); p('s_add_u32 s%d, s%d, %d' % (sT2, sT2, WS_FL))
    p('v_add_u32 v%d, s%d, v%d' % (vFA, sT2, vT0))
    A0, A1, Q0, Q1 = TMP + 8, TMP + 9, TMP + 10, TMP + 11
    for a in (A0, A1, Q0, Q1): p('v_mov_b32 v%d, 0' % a)
    for j in range(1, OPT['xup'] + 1):
        for g in x_dma(j): p.extend(g)
        if j == 2 and OPT['gpf'] == 2: p.extend(gpf.ins)
    stamp(p, 'first')
    lam = Prog()
    LT = F1 + 8
    lam_from(lam, TMP + 0, TMP + 1, TMP + 2, L1r, L1i, LT, LT + 1)
    lam('v_sub_f32 v%d, 0, v%d' % (N1i, L1i))
    cmul(lam, L2r, L2i, L1r, L1i, L1r, L1i)
    cmul(lam, L3r, L3i, L2r, L2i, L1r, L1i)
    cmul(lam, L4r, L4i, L2r, L2i, L2r, L2i)
    cmul(lam, LT, LT + 1, L4r, L4i, L4r, L4i)
    cmul(lam, LT + 2, LT + 3, LT, LT + 1, LT, LT + 1)
    cmul(lam, L32r, L32i, LT + 2, LT + 3, LT + 2, LT + 3)
    cmul(lam, LT, LT + 1, L32r, L32i, L32r, L32i)
    cmul(lam, L128r, L128i, LT, LT + 1, LT, LT + 1)
    cmul(lam, L256r, L256i, L128r, L128i, L128r, L128i)
    tagp = Prog()
    tag_setup(tagp, TMP + 28)
    tagp('s_lshr_b32 s%d, s%d, 1' % (sT5, sCB)); tagp('s_lshl_b32 s%d, s%d, 8' % (sT5, sT5))
    tagp('s_lshl_b32 s%d, s%d, 7' % (sPS, sCB)); tagp('s_add_u32 s%d, s%d, 4096' % (sPS, sPS)); tagp('s_sub_u32 s%d, s%d, s%d' % (sPS, sPS, sT5))
    tagp('s_add_u32 s%d, s%d, %d' % (sT5, sT5, WS_PF))
    tagp('v_lshl_add_u32 v%d, v%d, 3, s%d' % (vPF, vP, sT5))
    tagp('s_mul_i32 s%d, s%d, 7' % (sT5, sW)); tagp('s_lshl_b32 s%d, 0x7f, s%d' % (sPM2, sT5))

    def x_read(q, j, slot):
        for i in range(4):
            q('ds_read_b128 %s, v%d offset:%d' % (v4(X + 16 * j + 4 * i), vRX[i], slot * 4096), tok=('xr', j))
    def x_stats(q, j):
        q.waitlgkm(('xr', j))
        for k in range(16):
            r_ = X + 16 * j + k
            q('v_dot2c_f32_bf16 v%d, s%d, v%d' % (A0 if k % 2 == 0 else A1, sONE, r_))
            q('v_dot2c_f32_bf16 v%d, v%d, v%d' % (Q0 if k % 2 == 0 else Q1, r_, r_))
    q = Prog()
    q.waitvm(('x', 0)); stamp(q, 'x0in'); x_read(q, 0, 0)
    for j in range(1, 6):
        q.waitvm(('x', j)); x_read(q, j, j)
        x_stats(q, j - 1)
    q('v_add_u32 v%d, s%d, v%d' % (vT0, sLW, vL16))
    for rg in range(4):
        q('ds_write_b128 v%d, %s offset:%d' % (vT0, v4(F0 + 4 * rg), rg * 1024))
    x_read(q, 6, 0)
    x_stats(q, 5)
    x_stats(q, 6)
    x6 = [G('buffer_load_dwordx4 %s, v%d, %s, s%d offen offset:%d' % (v4(F0 + 4 * rg), vXO[rg], srd(SX), KB[6], rg * 1024)) for rg in range(4)]
    vm = []
    for j in range(OPT['xup'] + 1, 6): vm += x_dma(j)
    vm += x6 + ([gpf.ins] if OPT['gpf'] == 3 else []) + ssm_rest[:4]
    st, left = weave(q.ins, vm, OPT.get('perx', 44))
    assert not left, len(left)
    p.extend(st)
    stamp(p, 'x_in')
    w1k = Prog()
    for j in range(7): w1k('s_mul_i32 s%d, s%d, 1792' % (W1K[j], KB[j]))
    dma = []
    for dt in range(2):
        for j in range(7 if dt == 0 else 5):
            for e in range(2):
                l_off = (0 if dt == 0 else 14336 - 128) + 2 * j * 1024
                dma.append((G('s_add_u32 m0, s%d, %d' % (sLW, l_off)) if e == 0 else []) + G(
                    'buffer_load_dwordx4 v%d, %s, s%d offen offset:%d lds' % (vW1O[e], srd(SW1), W1K[j], 128 * dt + 1024 * e), tok='ffnA' if dt == 0 else 'ffnB'))
    q = Prog()
    q('v_add_f32 v%d, v%d, v%d' % (A0, A0, A1)); q('v_add_f32 v%d, v%d, v%d' % (Q0, Q0, Q1))
    q('v_mov_b32 v%d, v%d' % (A1, A0)); q('v_mov_b32 v%d, v%d' % (Q1, Q0))
    q('v_permlane32_swap_b32 v%d, v%d' % (A0, A1)); q('v_permlane32_swap_b32 v%d, v%d' % (Q0, Q1))
    q('v_add_f32 v%d, v%d, v%d' % (A0, A0, A1)); q('v_add_f32 v%d, v%d, v%d' % (Q0, Q0, Q1))
    q('v_mul_f32 v%d, 0x3b124925, v%d' % (A0, A0))
    q('v_mul_f32 v%d, 0x3b124925, v%d' % (Q0, Q0))
    q('v_fma_f32 v%d, -v%d, v%d, v%d' % (Q0, A0, A0, Q0))
    q('v_max_f32 v%d, 0, v%d' % (Q0, Q0))
    bf16_round(q, vM, A0)
    bf16_round(q, Q0, Q0)
    q('v_add_f32 v%d, 0x3727c5ac, v%d' % (Q0, Q0))
    bf16_round(q, Q0, Q0)
    q('v_sqrt_f32 v%d, v%d' % (Q0, Q0))
    bf16_round(q, vS, Q0)
    q('v_rcp_f32 v%d, v%d' % (vRSv, vS))
    q('s_lshl_b32 s%d, s%d, 7' % (sT3, sW))
    q('v_lshl_add_u32 v%d, v%d, 2, s%d' % (vT0, vP, sT3))
    q('v_mul_f32 v%d, 0x%x, v%d' % (vNK, NLOG2E, vRSv))
    q('ds_write_b32 v%d, v%d offset:%d' % (vT0, vRSv, L_RS))
    q('v_lshlrev_b32 v%d, 1, v%d' % (vT0, vT0))
    q('v_mov_b32 v%d, v%d' % (TMP + 12, vM)); q('v_mov_b32 v%d, v%d' % (TMP + 13, vRSv))
    q('ds_write_b64 v%d, v[%d:%d] offset:%d' % (vT0, TMP + 12, TMP + 13, L_MR))
    q('s_sub_u32 s%d, %d, s%d' % (sT4, L_SW, sLW))
    for i in range(4): q('v_add_u32 v%d, s%d, v%d' % (vRX[i], sT4, vRX[i]))
    if OPT['stamps']: q('v_mov_b32 v%d, 0' % vRSv)

    def d_step(ks, mode=0):
        z = Prog()
        if mode == 1:
            for k in range(4):
                z('v_dot2_f32_bf16 v%d, v%d, s%d, v%d' % (TMP + 8 + 2 * k, X + 4 * ks + k, sSELL, vNM))
                z('v_dot2_f32_bf16 v%d, v%d, s%d, v%d' % (TMP + 9 + 2 * k, X + 4 * ks + k, sSELH, vNM))
            for k in range(4):
                z('v_cvt_pk_bf16_f32 v%d, v%d, v%d' % (X + 4 * ks + k, TMP + 8 + 2 * k, TMP + 9 + 2 * k))
            return z.ins
        if mode == 2:
            for k in range(4):
                r_ = X + 4 * ks + k; lo = TMP + 8 + 2 * (k % 2)
                z('v_lshlrev_b32 v%d, 16, v%d' % (lo, r_))
                z('v_and_b32 v%d, s%d, v%d' % (lo + 1, sMHI, r_))
                z('v_pk_add_f32 v[%d:%d], v[%d:%d], v[%d:%d] op_sel_hi:[1,0]' % (lo, lo + 1, lo, lo + 1, vNM, vNM + 1))
                z('v_cvt_pk_bf16_f32 v%d, v%d, v%d' % (r_, lo, lo + 1))
            return z.ins
        for k in range(4):
            r_ = X + 4 * ks + k; lo, hi = TMP + 8 + 2 * (k % 2), TMP + 9 + 2 * (k % 2)
            z('v_lshlrev_b32 v%d, 16, v%d' % (lo, r_))
            z('v_and_b32 v%d, s%d, v%d' % (hi, sMHI, r_))
            z('v_sub_f32 v%d, v%d, v%d' % (lo, lo, vM))
            z('v_sub_f32 v%d, v%d, v%d' % (hi, hi, vM))
            z('v_cvt_pk_bf16_f32 v%d, v%d, v%d' % (r_, lo, hi))
        return z.ins
    LEAD = OPT['lead']
    q('v_sub_f32 v%d, 0, v%d' % (vNM, vM))
    q('s_mov_b32 s%d, 0x3f80' % sSELL); q('s_mov_b32 s%d, 0x3f800000' % sSELH)
    for ks in range(LEAD): q.extend(d_step(ks, 1 if OPT['dot'] else 0))
    q.extend(tagp.ins)
    stamp(q, 'lead')
    q.waitvm('ssmw')
    stamp(q, 'Win')
    q('s_barrier')
    stamp(q, 'B1')
    def wbuf(n): return WB + 4 * (n % 8)
    def ssm_read(n):
        ks, T = n // 2, n % 2
        return G('ds_read_b128 %s, v%d offset:%d' % (v4(wbuf(n)), vRX[ks % 4], T * 28672 + (ks // 4) * 4096), tok=('wf', n))
    PRE = 6
    for n in range(PRE): q.extend(ssm_read(n))
    groups = []
    for ks in range(28):
        z = Prog()
        z.waitlgkm(('wf', 2 * ks + 1))
        for T in range(2):
            n = 2 * ks + T; acc = SRE if T == 0 else SIM
            z('v_mfma_f32_32x32x16_bf16 %s, %s, %s, %s' % (v16(acc), v4(X + 4 * ks), v4(wbuf(n)), '0' if ks == 0 else v16(acc)))
            if n + PRE < 56: z.extend(ssm_read(n + PRE))
            groups.append(z.ins); z = Prog()
    fill = []
    for ks in range(LEAD, 28): fill += d_step(ks, 2 if OPT['pk'] else 0)
    fill = fill + lam.ins
    k = 0
    span = OPT.get('span', 54)
    for n, g in enumerate(groups):
        q.extend(g)
        tgt = min(len(fill), (len(fill) * (n + 1)) // span)
        q.extend(fill[k:tgt]); k = tgt
    done = set(range(X, X + 4 * LEAD))
    for i in q.ins:
        if i.op == 'v_cvt_pk_bf16_f32' and X <= i.wr[0][1] < X + 112: done.add(i.wr[0][1])
        if i.kind == 'mfma': assert all(r[1] in done for r in i.rd if r[0] == 'v' and X <= r[1] < X + 112), i.text
    RSF = TMP + 8
    q('v_lshl_add_u32 v%d, v%d, 4, s%d' % (vT0, vH, sT3))
    for g in range(4):
        q('ds_read_b128 %s, v%d offset:%d' % (v4(RSF + 4 * g), vT0, L_RS + 32 * g))
    def pf(T):
        if T < 4: return 'buffer_load_dwordx2 v[%d:%d], v%d, %s, 0 offen offset:%d sc1' % (FR, FR + 1, vPF, srd(SWS), 1024 * T)
        return 'buffer_load_dwordx2 v[%d:%d], v%d, %s, s%d offen sc1' % (FR, FR + 1, vPF, srd(SWS), sPS)
    w2_regs = {}
    w2_state = {'last': None}
    def w2_load(idx, reg):
        if idx < 56: base, off = sW2, ((idx // 14) * 28 + (idx % 14) // 2) * 2048 + (idx % 2) * 1024
        else: base, off = sW2S, (112 + (idx - 56) // 2) * 2048 + (idx % 2) * 1024
        z = Prog()
        key = (base, off - off % 4096)
        if w2_state['last'] != key:
            z('s_add_u32 s%d, s%d, %d' % (sT5, base, off - off % 4096)); w2_state['last'] = key
        if isinstance(reg, tuple):
            mk = (reg[1], reg[2] - off % 4096 + 4096)
            if w2_state.get('m0') != mk:
                z('s_add_u32 m0, s%d, %d' % mk); w2_state['m0'] = mk
            z('buffer_load_dwordx4 v%d, %s, s%d offen offset:%d sc1 lds' % (vL16, srd(SWS), sT5, off % 4096), tok=('w2', idx))
        else:
            z('buffer_load_dwordx4 %s, v%d, %s, s%d offen offset:%d sc1' % (v4(reg), vL16, srd(SWS), sT5, off % 4096), tok=('w2', idx))
        w2_regs[idx] = reg
        return z.ins
    def w2_dest(i):
        if i < 56: return 256 + 4 * i
        if i < 61: return ('lds', sLT, (i - 56) * 1024)
        return ('lds', sLA, (i - 61) * 1024)
    NW2 = 75 if OPT['ldsw2'] else 56
    w2q = []
    for T in range(5):
        lo, hi_ = 14 * T, (14 * T + 14 if T < 4 else NW2)
        if lo >= hi_: break
        w2q.append(poll_check('p%d' % T, ('s%d' % sPM2) if T < 4 else '0x7f7f', pf(T)))
        for i in range(lo, hi_):
            g = w2_load(i, w2_dest(i))
            if i == 61: g = [Ins('; need B4')] + g
            w2q.append(g)
            if i == lo + 1 and T < 4: w2q.append(G(pf(T + 1)))
    w2i = NW2
    dmaA, dmaB = dma[:14], dma[14:]
    vm = ssm_rest[4:] + [w1k.ins + dmaA[0]] + dmaA[1:] + w1g + dmaB
    w2q[0] = [Ins('; at %d' % OPT['tc'])] + w2q[0]
    if OPT['w2early']: vm += w2q
    st, carry = weave(q.ins, vm, OPT['per'], 0, OPT['perd'], events=[(OPT['tp'], G(pf(0)))])
    kt = [k for k, i in enumerate(st) if i.text.startswith('v_lshl_add_u32 v%d' % vPF)][0]
    kp = [k for k, i in enumerate(st) if i.text == pf(0)][0]
    assert kt < kp
    if carry and carry[0][0].text.startswith('; at'): carry[0] = carry[0][1:]
    if not OPT['w2early']: carry += w2q
    assert not any(x.tok in ('ffnA', 'ssmw') for g in carry for x in g)
    pos_b = [k for k, i in enumerate(st) if i.kind == 'barrier'][0]
    assert not any(i.tok == 'ssmw' for i in st[pos_b:]), 'SSM DMA after B1'
    p.extend(st)
    stamp(p, 'ssmend')
    p.waitvm('ffnA')
    stamp(p, 'Ain')
    p('s_waitcnt lgkmcnt(0)')
    p('s_barrier')
    stamp(p, 'B2')
    p('s_lshl_b32 s%d, s%d, 13' % (sT4, sC)); p('s_add_u32 s%d, s%d, %d' % (sT4, sT4, WS_EG))
    p('s_add_u32 s%d, s6, s%d' % (SEG, sT4)); p('s_addc_u32 s%d, s7, 0' % (SEG + 1))
    p('s_mov_b32 s%d, 8192' % (SEG + 2)); p('s_mov_b32 s%d, 0x20000' % (SEG + 3))
    p('s_lshl_b32 s%d, s%d, 12' % (sT2, sW))
    p('s_mul_i32 s%d, s%d, 5120' % (sLT, sW)); p('s_add_u32 s%d, s%d, %d' % (sLT, sLT, L_WT - 4096))
    p('s_sub_u32 s%d, s%d, 4096' % (sLA, sLW))
    tail_dma = []
    for j in (5, 6):
        for e in range(2):
            tail_dma.append((G('s_add_u32 m0, s%d, %d' % (sT2, L_SW - 128 + 2 * (j - 5) * 1024)) if e == 0 else []) + G(
                'buffer_load_dwordx4 v%d, %s, s%d offen offset:%d lds' % (vW1O[e], srd(SW1), W1K[j], 128 + 1024 * e), tok='ffnB'))

    def ffn_read(T, ks, n):
        dt, tt = T // 2, T % 2
        j, i = ks // 4, ks % 4
        if dt == 0: U = i * L_XW + 2 * j * 1024
        elif j <= 4: U = i * L_XW + 14336 + 2 * j * 1024
        else: U = L_SW - L0 + i * 4096 + 2 * (j - 5) * 1024
        z = Prog()
        for hh in range(2):
            off = U + hh * 512; win = 0
            if off >= 65536: off -= 65536; win = 1
            z('ds_read_b64_tr_b16 %s, v%d offset:%d' % (v2(wbuf(n) + 2 * hh), vRF[tt][win], off), tok=('wf', n))
        return z.ins
    def silu(T):
        acc = F0 if T % 2 == 0 else F1
        z = Prog()
        tp = [vT0, vT1, vT2, vBO]
        for b in range(0, 16, 4):
            for k in range(4): z('v_mul_f32 v%d, v%d, v%d' % (tp[k], vNK, acc + b + k))
            for k in range(4): z('v_exp_f32 v%d, v%d' % (tp[k], tp[k]))
            for k in range(4): z('v_fma_f32 v%d, v%d, v%d, v%d' % (tp[k], tp[k], vS, vS))
            for k in range(4): z('v_rcp_f32 v%d, v%d' % (tp[k], tp[k]))
            for k in range(4): z('v_mul_f32 v%d, v%d, v%d' % (acc + b + k, acc + b + k, tp[k]))
            z('v_cvt_pk_bf16_f32 v%d, v%d, v%d' % (acc + b // 2, acc + b, acc + b + 1))
            z('v_cvt_pk_bf16_f32 v%d, v%d, v%d' % (acc + b // 2 + 1, acc + b + 2, acc + b + 3))
            if b == 4:
                z('s_add_u32 s%d, s%d, %d' % (sT2, sHW, T * 28 * 1024))
                z('buffer_store_dwordx4 %s, v%d, %s, s%d offen%s' % (v4(acc), vL16, srd(SWS), sT2, HSC), tok=('hs', T))
        z('buffer_store_dwordx4 %s, v%d, %s, s%d offen offset:1024%s' % (v4(acc + 4), vL16, srd(SWS), sT2, HSC), tok=('hs', T))
        return z.ins
    E0r, E0i, E1r, E1i = vXO[0], vXO[1], vXO[2], vXO[3]
    def scan1():
        z = Prog()
        for g in range(4):
            for i in range(4):
                z('v_mul_f32 v%d, v%d, v%d' % (SRE + 4 * g + i, RSF + 4 * g + i, SRE + 4 * g + i))
                z('v_mul_f32 v%d, v%d, v%d' % (SIM + 4 * g + i, RSF + 4 * g + i, SIM + 4 * g + i))
        for i in range(1, 4):
            for g in range(4):
                a, b = SRE + 4 * g + i, SIM + 4 * g + i
                z('v_fmac_f32 v%d, v%d, v%d' % (a, L1r, a - 1))
                z('v_fmac_f32 v%d, v%d, v%d' % (b, L1r, b - 1))
                z('v_fmac_f32 v%d, v%d, v%d' % (a, N1i, b - 1))
                z('v_fmac_f32 v%d, v%d, v%d' % (b, L1i, a - 1))
        for g in range(4):
            b = RSF + 4 * g
            z('v_mov_b32 v%d, v%d' % (b, SRE + 4 * g + 3)); z('v_mov_b32 v%d, v%d' % (b + 1, SRE + 4 * g + 3))
            z('v_mov_b32 v%d, v%d' % (b + 2, SIM + 4 * g + 3)); z('v_mov_b32 v%d, v%d' % (b + 3, SIM + 4 * g + 3))
        for g in range(4):
            b = RSF + 4 * g
            z('v_permlane32_swap_b32 v%d, v%d' % (b, b + 1)); z('v_permlane32_swap_b32 v%d, v%d' % (b + 2, b + 3))
        cur = (RSF, RSF + 2); nxt = [(E0r, E0i), (E1r, E1i)]
        for s in range(1, 8):
            g, h = s // 2, s % 2
            er, ei = RSF + 4 * g + h, RSF + 4 * g + 2 + h
            d = nxt[s % 2]
            z('v_fma_f32 v%d, v%d, v%d, v%d' % (d[0], L4r, cur[0], er))
            z('v_fma_f32 v%d, v%d, v%d, v%d' % (d[1], L4r, cur[1], ei))
            z('v_fma_f32 v%d, -v%d, v%d, v%d' % (d[0], L4i, cur[1], d[0]))
            z('v_fmac_f32 v%d, v%d, v%d' % (d[1], L4i, cur[0]))
            cur = d
        z('s_lshl_b32 s%d, s%d, 8' % (sT4, sW))
        z('v_lshl_add_u32 v%d, v%d, 3, s%d' % (vT0, vP, sT4))
        z('ds_write_b64 v%d, v[%d:%d] offset:%d' % (vT0, E1r, E1i, L_EW), tok='ew')
        return z.ins
    def fl_load(stage): return 'buffer_load_dwordx2 v[%d:%d], v%d, %s, s%d offen sc1' % (FR2, FR2 + 1, vFA, srd(SWS), sT6)
    def fl_issue(stage): return G('s_mov_b32 s%d, %d' % (sT6, stage * 8192), fl_load(stage))
    n0 = 56
    seq = [(T, ks) for T in range(4) for ks in range(28)]
    for m in range(PRE): p.extend(ffn_read(seq[m][0], seq[m][1], n0 + m))
    EWR = TMP + 0
    LB = X
    lbp = Prog()
    lbp('s_sub_u32 s%d, s%d, 1' % (sT0, sR)); lbp('s_lshl_b32 s%d, s%d, 9' % (sT0, sT0))
    lbp('v_lshlrev_b32 v%d, 9, v%d' % (vRX[1], vH))
    lbp('v_sub_u32 v%d, s%d, v%d' % (vRX[1], sT0, vRX[1]))
    lbp('v_lshl_add_u32 v%d, v%d, 4, v%d' % (vRX[0], vP, vRX[1]))
    lb_groups = []
    for m in range(8):
        z = Prog()
        if m: z('v_subrev_u32 v%d, %d, v%d' % (vRX[1], 1024 * m, vRX[0]))
        z('buffer_load_dwordx4 %s, v%d, %s, 0 offen sc1' % (v4(LB + 4 * m), vRX[1] if m else vRX[0], srd(SEG)))
        lb_groups.append(z.ins)
    lb_text = '\n'.join(i.text for g in lb_groups for i in g)
    pool = []
    hid_regs = {}
    hstate = {0: None, 1: None}
    def hid_load(idx):
        rt = idx % 2
        if idx < 56: base, off = (sH0, sH1)[rt], ((idx // 14) * 28 + (idx % 14) // 2) * 1024
        else: base, off = (sH0S, sH1S)[rt], (112 + (idx - 56) // 2) * 1024
        reg = pool.pop(0); hid_regs[idx] = reg
        sreg = sT3 if rt == 0 else sT4
        z = Prog()
        key = (base, off - off % 4096)
        if hstate[rt] != key:
            z('s_add_u32 s%d, s%d, %d' % (sreg, base, off - off % 4096)); hstate[rt] = key
        z('buffer_load_dwordx4 %s, v%d, %s, s%d offen offset:%d sc1' % (v4(reg), vL16, srd(SWS), sreg, off % 4096), tok=('hid', idx))
        return z.ins
    stage_of = lambda idx: min(idx // 14, 4)
    hi = 0
    checked = set()
    def hid_next():
        nonlocal hi
        assert stage_of(hi) in checked
        g = hid_load(hi); hi += 1
        return g
    def fl_check(st):
        checked.add(st)
        return poll_check('f%d' % st, 's%d' % sPMASK, fl_load(0), FR2)
    def split_at_need(vm):
        for k, g in enumerate(vm):
            if g and g[0].text == '; need B4': return vm[:k], vm[k:]
        return vm, []
    for T in range(4):
        groups = []
        acc = F0 if T % 2 == 0 else F1
        for ks in range(28):
            m = T * 28 + ks
            z = Prog()
            if ks % 2 == 0: z.waitlgkm(('wf', n0 + m + 1))
            z('v_mfma_f32_32x32x16_bf16 %s, %s, %s, %s' % (v16(acc), v4(wbuf(n0 + m)), v4(X + 4 * ks), '0' if ks == 0 else v16(acc)))
            if (T, ks) == (2, 0): z('s_barrier')
            if m + PRE < 112:
                z.extend(ffn_read(seq[m + PRE][0], seq[m + PRE][1], n0 + m + PRE))
            groups.append(z.ins)
        q = Prog()
        held = []; ev = []
        if T == 0:
            q.extend(groups[0]); q.extend(groups[1])
            q.extend(interleave(groups[2:], scan1()))
            nb = [g for g in carry if any(x.tok == 'ffnB' for x in g)]
            k = max([carry.index(g) for g in nb]) + 1 if nb else 0
            vm = carry[:k] + tail_dma + carry[k:]
        elif T == 1:
            pre = Prog()
            GE = vXO[0]
            pre('v_fma_f32 v%d, v%d, v%d, v%d' % (vT0, L32r, EWR, EWR + 2)); pre('v_fma_f32 v%d, v%d, v%d, v%d' % (vT1, L32r, EWR + 1, EWR + 3))
            pre('v_fma_f32 v%d, -v%d, v%d, v%d' % (vT0, L32i, EWR + 1, vT0)); pre('v_fmac_f32 v%d, v%d, v%d' % (vT1, L32i, EWR))
            pre('v_fma_f32 v%d, v%d, v%d, v%d' % (vT2, L32r, vT0, EWR + 4)); pre('v_fma_f32 v%d, v%d, v%d, v%d' % (vT3, L32r, vT1, EWR + 5))
            pre('v_fma_f32 v%d, -v%d, v%d, v%d' % (vT2, L32i, vT1, vT2)); pre('v_fmac_f32 v%d, v%d, v%d' % (vT3, L32i, vT0))
            pre('v_fma_f32 v%d, v%d, v%d, v%d' % (GE, L32r, vT2, EWR + 6)); pre('v_fma_f32 v%d, v%d, v%d, v%d' % (GE + 1, L32r, vT3, EWR + 7))
            pre('v_fma_f32 v%d, -v%d, v%d, v%d' % (GE, L32i, vT3, GE)); pre('v_fmac_f32 v%d, v%d, v%d' % (GE + 1, L32i, vT2))
            pre('v_mov_b32 v%d, s%d' % (GE + 2, sTL)); pre('v_mov_b32 v%d, s%d' % (GE + 3, sTH))
            pre('s_lshl_b32 s%d, s%d, 3' % (sT4, sW)); pre('s_lshl_b32 s%d, 0xff, s%d' % (sT4, sT4))
            pre('s_lshl_b32 s%d, s%d, 9' % (sT0, sR))
            egs = G('s_mov_b32 exec_lo, s%d' % sT4, 's_mov_b32 exec_hi, 0',
                    'buffer_store_dwordx4 %s, v%d, %s, s%d offen sc1' % (v4(GE), vL16, srd(SEG), sT0), 's_mov_b64 exec, -1')
            q.extend(interleave(groups[:5], pre.ins)); q.extend(egs)
            q.extend(interleave(groups[5:OPT['send'] + 1], silu(0)))
            for g in groups[OPT['send'] + 1:]: q.extend(g)
            vm = carry
        else:
            q.extend(groups[0]); q.extend(groups[1]); q.extend(groups[2])
            q.extend(interleave(groups[3:OPT['send']], silu(T - 1)))
            for g in groups[OPT['send']:]: q.extend(g)
            if T == 2:
                vm = carry; ev = [(OPT['tf'], flag_group(sFW, 0, ('hs', 0)))]
            else:
                lbs = [[Ins('; after 9')] + lbp.ins + lb_groups[0] + lb_groups[1] + lb_groups[2] + lb_groups[3], lb_groups[4] + lb_groups[5] + lb_groups[6] + lb_groups[7]]
                for g in lbs:
                    for x in g: x.text = x.text
                vm = carry
                ev = [(420, lbs[0][1:]), (520, lbs[1]), (OPT['tf'], flag_group(sFW, 8192, ('hs', 1))), (OPT['tp0'], fl_issue(0))]
        if T < 2: vm, held = split_at_need(vm)
        st, carry = weave(q.ins, vm, OPT['per'], 60 if T == 2 else 0, OPT['perd'], small=(SEG,), events=ev)
        carry += held
        if T == 3:
            mf = [k for k, i in enumerate(st) if i.kind == 'mfma']
            pos_l = [k for k, i in enumerate(st) if i.kind == 'vload' and 's[%d:%d]' % (SEG, SEG + 3) in i.text]
            assert len(pos_l) == 8 and pos_l[0] > mf[7], (pos_l, mf[7])
            pos_h = [k for k, i in enumerate(st) if isinstance(i.tok, tuple) and i.tok[0] == 'hid']
            assert not pos_h or pos_h[0] > mf[11]
        p.extend(st)
        if T == 0:
            assert not any(x.tok == 'ffnB' for g in carry for x in g)
            p.waitlgkm('ew'); p.waitvm('ffnB')
            p('s_barrier')
            p('v_lshlrev_b32 v%d, 3, v%d' % (vT0, vP))
            for k in range(4): p('ds_read_b64 v[%d:%d], v%d offset:%d' % (EWR + 2 * k, EWR + 2 * k + 1, vT0, L_EW + 256 * k))
        stamp(p, 'T%d' % T)
        print('after T%d: %d groups pending' % (T, len(carry)))
    pool += [WB + 4 * k for k in range(8)] + [F0 + 4 * k for k in range(4)] + [X + 32 + 4 * k for k in range(4)]
    p('s_add_u32 s%d, s%d, %d' % (sH1S, sH0S, 168 * 1024))

    q = Prog()
    s3 = silu(3)
    q.extend(s3)
    stamp(q, 'silu3')
    def lb_check(z, lab_bad):
        z('v_add3_u32 v%d, v%d, v%d, v%d' % (vT0, LB + 2, LB + 6, LB + 10)); z('v_add3_u32 v%d, v%d, v%d, v%d' % (vT1, LB + 3, LB + 7, LB + 11))
        z('v_add3_u32 v%d, v%d, v%d, v%d' % (vT0, vT0, LB + 14, LB + 18)); z('v_add3_u32 v%d, v%d, v%d, v%d' % (vT1, vT1, LB + 15, LB + 19))
        z('v_add3_u32 v%d, v%d, v%d, v%d' % (vT0, vT0, LB + 22, LB + 26)); z('v_add3_u32 v%d, v%d, v%d, v%d' % (vT1, vT1, LB + 23, LB + 27))
        z('v_add_u32 v%d, v%d, v%d' % (vT0, vT0, LB + 30)); z('v_add_u32 v%d, v%d, v%d' % (vT1, vT1, LB + 31))
        k0 = len(z.ins)
        z('v_cmp_ne_u32 vcc, v%d, v%d' % (vT0, vT2))
        z('v_cmp_ne_u32 s[%d:%d], v%d, v%d' % (sP0, sP0 + 1, vT1, vT3))
        z('s_nop 1')
        z('s_or_b64 vcc, vcc, s[%d:%d]' % (sP0, sP0 + 1))
        z('s_cbranch_scc1 %s' % lab_bad)
        for i in z.ins[k0:]: i.note = 'glue'
    q('v_sub_u32 v%d, s%d, v%d' % (vT3, sR, vH)); q('v_add_u32 v%d, 1, v%d' % (vT3, vT3)); q('v_lshrrev_b32 v%d, 1, v%d' % (vT3, vT3))
    q('v_mul_lo_u32 v%d, s%d, v%d' % (vT2, sTL, vT3)); q('v_mul_lo_u32 v%d, s%d, v%d' % (vT3, sTH, vT3))
    lb_check(q, 'L_retry_lb')
    q('L_ok_lb:')
    stamp(q, 'lbok')
    z = Prog()
    z('L_retry_lb:'); z('s_mov_b32 s%d, 0' % sSPIN); z('L_loop_lb:'); z('s_sleep 1'); z(lb_text); z('s_waitcnt vmcnt(0)')
    if OPT['stamps']: z('v_add_u32 v%d, 0x100, v%d' % (vRSv, vRSv))
    z('s_add_u32 s%d, s%d, 1' % (sSPIN, sSPIN)); z('s_cmp_gt_u32 s%d, %d' % (sSPIN, OPT['spin'])); z('s_cbranch_scc1 L_ok_lb')
    lb_check(z, 'L_loop_lb'); z('s_branch L_ok_lb')
    retry_blocks.append(z)
    for m in range(6, -1, -1):
        cmac(q, LB + 4 * m, LB + 4 * m + 1, L256r, L256i, LB + 4 * m + 4, LB + 4 * m + 5)
    q('v_mov_b32 v%d, v%d' % (LB + 4, LB)); q('v_mov_b32 v%d, v%d' % (LB + 5, LB + 1))
    q('v_permlane32_swap_b32 v%d, v%d' % (LB, LB + 4)); q('v_permlane32_swap_b32 v%d, v%d' % (LB + 1, LB + 5))
    cmac(q, LB, LB + 1, L128r, L128i, LB + 4, LB + 5)
    cmac(q, EWR, EWR + 1, L32r, L32i, LB, LB + 1)
    cmac(q, EWR + 2, EWR + 3, L32r, L32i, EWR, EWR + 1)
    cmac(q, EWR + 4, EWR + 5, L32r, L32i, EWR + 2, EWR + 3)
    CS = LB + 8
    q('v_mov_b32 v%d, v%d' % (CS, LB)); q('v_mov_b32 v%d, v%d' % (CS + 1, LB + 1))
    for k in range(3):
        k0 = len(q.ins)
        q('s_cmp_eq_u32 s%d, %d' % (sW, k + 1)); q('s_cselect_b64 vcc, -1, 0')
        q('v_cndmask_b32 v%d, v%d, v%d, vcc' % (CS, CS, EWR + 2 * k))
        for i in q.ins[k0:]: i.note = 'glue'
        q('v_cndmask_b32 v%d, v%d, v%d, vcc' % (CS + 1, CS + 1, EWR + 2 * k + 1))
    for s in range(7):
        g, h = s // 2, s % 2
        er, ei = RSF + 4 * g + h, RSF + 4 * g + 2 + h
        d, cur = CS + 2 * (s + 1), CS + 2 * s
        q('v_fma_f32 v%d, v%d, v%d, v%d' % (d, L4r, cur, er))
        q('v_fma_f32 v%d, v%d, v%d, v%d' % (d + 1, L4r, cur + 1, ei))
        q('v_fma_f32 v%d, -v%d, v%d, v%d' % (d, L4i, cur + 1, d))
        q('v_fmac_f32 v%d, v%d, v%d' % (d + 1, L4i, cur))
    k0 = len(q.ins)
    q('s_mov_b32 vcc_lo, 0'); q('s_mov_b32 vcc_hi, -1')
    for g in range(4):
        a = CS + 4 * g
        q('v_cndmask_b32 v%d, v%d, v%d, vcc' % (a, a, a + 2))
        q('v_cndmask_b32 v%d, v%d, v%d, vcc' % (a + 1, a + 1, a + 3))
    for i in q.ins[k0:-1]: i.note = 'glue'
    for g in range(4):
        a = CS + 4 * g
        q('v_sub_f32 v%d, 0, v%d' % (a + 2, a + 1))
    stamp(q, 'carry')
    q.extend(epilogue_loads())
    PW = [(L1r, L1i), (L2r, L2i), (L3r, L3i), (L4r, L4i)]
    for g in range(4):
        a = CS + 4 * g
        for i in range(4):
            ur, ui = SRE + 4 * g + i, SIM + 4 * g + i
            q('v_fmac_f32 v%d, v%d, v%d' % (ur, PW[i][0], a))
            q('v_fmac_f32 v%d, v%d, v%d' % (ui, PW[i][0], a + 1))
            q('v_fmac_f32 v%d, v%d, v%d' % (ur, PW[i][1], a + 2))
            q('v_fmac_f32 v%d, v%d, v%d' % (ui, PW[i][1], a))
        for comp, base in ((0, SRE), (1, SIM)):
            b = base + 4 * g
            q('v_cvt_pk_bf16_f32 v%d, v%d, v%d' % (b, b, b + 1))
            q('v_cvt_pk_bf16_f32 v%d, v%d, v%d' % (b + 1, b + 2, b + 3))
            q('ds_write_b64 v%d, v[%d:%d] offset:%d' % (vTW, b, b + 1, comp * 2304 + 16 * g))
    stamp(q, 'fix')
    HS = F1
    for comp in range(2):
        for q_ in range(2):
            for hh in range(2):
                q('ds_read_b64_tr_b16 %s, v%d offset:%d' % (v2(HS + 8 * comp + 4 * q_ + 2 * hh), vTRr, comp * 2304 + (16 * q_ + 4 * hh) * 72))
    q('s_lshl_b32 s%d, s%d, 11' % (sT2, sC)); q('s_add_u32 s%d, s%d, s%d' % (sT2, sT2, sHW)); q('s_add_u32 s%d, s%d, %d' % (sT2, sT2, 112 * 1024))
    for _ in range(10): q('; pad')
    for f in range(4):
        q('buffer_store_dwordx4 %s, v%d, %s, s%d offen offset:%d%s' % (v4(HS + 4 * f), vL16, srd(SWS), sT2, f * 1024, HSC), tok='hsC')
    vm = carry[:5] + [[Ins('; at %d' % OPT['tc0'])] + fl_check(0)] + [hid_next() for _ in range(14)] + carry[5:]
    ev = [(OPT['tp1'], fl_issue(1)), (OPT['tf2'], flag_group(sFW, 2 * 8192, ('hs', 2)))]
    q.ins = [i for i in q.ins if not i.text.startswith('; mark')]
    st, left = weave(q.ins, vm, OPT['perh'], events=ev)
    k0 = [k for k, i in enumerate(st) if i.text == 'L_ok_f0:'][0]; k1 = [k for k, i in enumerate(st) if i.text.startswith('s_mov_b32 s%d, 8192' % sT6)][0]
    assert k0 < k1
    p.extend(st)
    pool += [F1 + 4 * k for k in range(4)] + [SRE + 4 * k for k in range(8)] + [204 + 4 * k for k in range(5)]
    fillr = epilogue_pre()
    ACC = {(0, 0): X + 48, (0, 1): X + 64, (1, 0): X + 80, (1, 1): X + 96}
    fk = 0
    when = {}
    p('v_add_u32 v%d, s%d, v%d' % (vFA2, sLT, vL16)); p('v_add_u32 v%d, s%d, v%d' % (vFA3, sLA, vL16))
    pstep = {OPT['p2']: 2, OPT['p3']: 3, OPT['p4']: 4}
    cstep = {OPT['c1']: 1, OPT['p2'] + OPT['pd']: 2, OPT['p3'] + OPT['pd']: 3, OPT['p4'] + OPT['pd']: 4}
    real_p = p
    for step in range(42):
        if step in (0, 7, 14, 21, 28, 35) or OPT.get('allg'): stamp(real_p, 'g%d' % step)
        side = []
        while any((isinstance(x.tok, tuple) and x.tok[0] == 'hid') or 's_mov_b32 s%d' % sT6 in x.text for g in left for x in g):
            (real_p.extend if step == 0 else side.append)(left.pop(0))
        if step == OPT['f3']: side.append(flag_group(sFW, 3 * 8192, ('hs', 3)))
        if step == OPT['f4']: side.append(flag_group(sFW, 4 * 8192, 'hsC'))
        if step in cstep: side.append(fl_check(cstep[step]))
        if step in pstep:
            assert pstep[step] - 1 in checked
            side.append(fl_issue(pstep[step]))
        nh = 0
        while hi < 84 and hi < 2 * step + 4 + OPT['ahead'] and pool and stage_of(hi) in checked and nh < OPT.get('maxh', 4): side.append(hid_next()); nh += 1
        for rep in range(2):
            if rep == 1 and len(left) + 84 - w2i <= max(0, 30 - step): break
            if left: side.append(left.pop(0))
            elif w2i < 84 and len(pool) > 2 and step >= OPT.get('w2s', 2) and nh < 3:
                reg = pool.pop(0); side.append(w2_load(w2i, reg)); w2i += 1
        if step == OPT.get('b5', 36): side.append(G('s_barrier'))
        for i in (2 * step + 4, 2 * step + 5):
            if i < 84 and isinstance(w2_regs.get(i), tuple):
                d = w2_regs[i]; reg = pool.pop(0)
                z = Prog(); z.waitvm(('w2', i))
                z('ds_read_b128 %s, v%d offset:%d' % (v4(reg), vFA2 if d[1] == sLT else vFA3, d[2] + 4096))
                side.append(z.ins)
                w2_regs[i] = reg
        w0, w1_ = w2_regs[2 * step], w2_regs[2 * step + 1]
        h0, h1 = hid_regs[2 * step], hid_regs[2 * step + 1]
        em = set(x.tok for x in p.ins if isinstance(x.tok, tuple))
        for t in (('w2', 2 * step), ('w2', 2 * step + 1), ('hid', 2 * step), ('hid', 2 * step + 1)): assert t in em, t
        k = 0
        for n, (ct, rt) in enumerate(((0, 0), (0, 1), (1, 0), (1, 1))):
            a = ACC[(ct, rt)]
            p('v_mfma_f32_32x32x16_bf16 %s, %s, %s, %s' % (v16(a), v4((w0, w1_)[ct]), v4((h0, h1)[rt]), '0' if step == 0 else v16(a)))
            tgt = (len(side) * (n + 1) + 3) // 4
            c = 0
            for g in side[k:tgt]: p.extend(g); c += sum(cost(x) for x in g)
            k = tgt
            while step >= OPT.get('fs', 1) and fk < len(fillr) and (c < OPT.get('fb', 36) or fillr[fk - 1].note == 'glue'):
                i = fillr[fk]; fk += 1
                c += cost(i)
                p.ins.append(i)
        pool += [w0, w1_, h0, h1]
    assert fk == len(fillr) and w2i == 84 and not left, (fk, len(fillr), w2i, len(left))
    print('G2 marks', when)
    stamp(p, 'g2end')
    epilogue(p, ACC)

EX, ED, ST, DD = TMP + 0, TMP + 8, TMP + 10, TMP + 18
EB, ET, PWA, PRA, vOO, PRB = X + 0, X + 16, X + 24, X + 28, X + 30, X + 22
sXO, sOO = 38, 39
def epilogue_loads():
    p = Prog()
    p('v_lshrrev_b32 v%d, 4, v%d' % (vT0, vL)); p('v_and_b32 v%d, 15, v%d' % (vT1, vL))
    p('v_mul_u32_u24 v%d, 896, v%d' % (vT2, vT0)); p('v_lshl_add_u32 v%d, v%d, 3, v%d' % (vT2, vT1, vT2))
    p('s_lshl_b32 s%d, s%d, 5' % (sXO, sRT0)); p('s_lshl_b32 s%d, s%d, 4' % (sT1, sW)); p('s_add_u32 s%d, s%d, s%d' % (sXO, sXO, sT1))
    p('s_mul_i32 s%d, s%d, 896' % (sXO, sXO)); p('s_lshl_b32 s%d, s%d, 7' % (sT1, sCB)); p('s_add_u32 s%d, s%d, s%d' % (sXO, sXO, sT1))
    p('s_add_u32 s%d, s%d, %d' % (sT0, sXO, 8 * 896))
    for it in range(4):
        p('buffer_load_dwordx2 v[%d:%d], v%d, %s, s%d offen offset:%d' % (EX + 2 * it, EX + 2 * it + 1, vT2, srd(SX), sXO if it < 2 else sT0, (it % 2) * 4 * 896))
    p('v_lshlrev_b32 v%d, 3, v%d' % (vT3, vT1))
    p('buffer_load_dwordx2 v[%d:%d], v%d, %s, s%d offen' % (ED, ED + 1, vT3, srd(SDSK), sT1))
    p('s_lshl_b32 s%d, s%d, 9' % (sT1, sHALF)); p('s_lshl_b32 s%d, s%d, 7' % (sT0, sW)); p('s_add_u32 s%d, s%d, s%d' % (sT1, sT1, sT0))
    p('v_lshl_add_u32 v%d, v%d, 3, s%d' % (vT3, vT0, sT1))
    for it in range(4):
        p('ds_read_b64 v[%d:%d], v%d offset:%d' % (ST + 2 * it, ST + 2 * it + 1, vT3, L_MR + 32 * it))
    return p.ins

def epilogue_pre():
    p = Prog()
    p('v_lshlrev_b32 v%d, 1, v%d' % (vOO, vT2))
    p('s_lshl_b32 s%d, s%d, 1' % (sOO, sXO))
    p('v_and_b32 v%d, 7, v%d' % (PWA, vP)); p('v_xor_b32 v%d, v%d, v%d' % (PWA, PWA, vH)); p('v_lshlrev_b32 v%d, 4, v%d' % (PWA, PWA))
    p('v_lshl_add_u32 v%d, v%d, 8, v%d' % (PWA, vP, PWA))
    p('v_add_u32 v%d, s%d, v%d' % (PWA, sLW, PWA))
    for g in range(1, 4): p('v_xor_b32 v%d, %d, v%d' % (PWA + g, g << 5, PWA))
    p('v_xor_b32 v%d, v%d, v%d' % (PRA, vT1, vT0)); p('v_lshlrev_b32 v%d, 4, v%d' % (PRA, PRA))
    p('v_lshl_add_u32 v%d, v%d, 8, v%d' % (PRA, vT0, PRA))
    p('s_lshl_b32 s%d, s%d, 12' % (sT1, sW)); p('s_add_u32 s%d, s%d, %d' % (sT1, sT1, L0)); p('v_add_u32 v%d, s%d, v%d' % (PRA, sT1, PRA))
    p('v_xor_b32 v%d, 64, v%d' % (PRA + 1, PRA)); p('v_add_u32 v%d, 1024, v%d' % (PRA + 1, PRA + 1))
    p('v_add_u32 v%d, %d, v%d' % (PRB, 3 * L_XW, PRA)); p('v_add_u32 v%d, %d, v%d' % (PRB + 1, 3 * L_XW, PRA + 1))
    D = DD; T = ET
    p('v_lshlrev_b32 v%d, 16, v%d' % (D, ED)); p('v_and_b32 v%d, s%d, v%d' % (D + 1, sMHI, ED))
    p('v_lshlrev_b32 v%d, 16, v%d' % (D + 2, ED + 1)); p('v_and_b32 v%d, s%d, v%d' % (D + 3, sMHI, ED + 1))
    for it in range(4):
        b = EB + 4 * it; m, rs = ST + 2 * it, ST + 2 * it + 1
        p('v_lshlrev_b32 v%d, 16, v%d' % (b, EX + 2 * it)); p('v_and_b32 v%d, s%d, v%d' % (b + 1, sMHI, EX + 2 * it))
        p('v_lshlrev_b32 v%d, 16, v%d' % (b + 2, EX + 2 * it + 1)); p('v_and_b32 v%d, s%d, v%d' % (b + 3, sMHI, EX + 2 * it + 1))
        for k in range(4): p('v_sub_f32 v%d, v%d, v%d' % (T + k, b + k, m))
        def rnd():
            p('v_cvt_pk_bf16_f32 v%d, v%d, v%d' % (T + 4, T, T + 1)); p('v_cvt_pk_bf16_f32 v%d, v%d, v%d' % (T + 5, T + 2, T + 3))
            p('v_lshlrev_b32 v%d, 16, v%d' % (T, T + 4)); p('v_and_b32 v%d, s%d, v%d' % (T + 1, sMHI, T + 4))
            p('v_lshlrev_b32 v%d, 16, v%d' % (T + 2, T + 5)); p('v_and_b32 v%d, s%d, v%d' % (T + 3, sMHI, T + 5))
        rnd()
        for k in range(4): p('v_mul_f32 v%d, v%d, v%d' % (T + k, T + k, rs))
        rnd()
        for k in range(4): p('v_mul_f32 v%d, v%d, v%d' % (T + k, T + k, D + k))
        rnd()
        for k in range(4): p('v_add_f32 v%d, v%d, v%d' % (b + k, b + k, T + k))
    return p.ins

def epilogue(p, ACC):
    for rt in range(2):
        for ct in range(2):
            for g in range(4):
                p('ds_write_b128 v%d, %s offset:%d' % (PWA + g, v4(ACC[(ct, rt)] + 4 * g), rt * 8192 + ct * 128))
    p('s_waitcnt lgkmcnt(0)')
    p('s_barrier')
    R = 128
    for it in range(4):
        for P in range(4):
            p('ds_read_b128 %s, v%d offset:%d' % (v4(R + 16 * it + 4 * P), (PRA if P < 3 else PRB) + (it & 1), (P % 3) * L_XW + (it >> 1) * 2048))
    for it in range(4):
        b = EB + 4 * it; r_ = R + 16 * it
        p('v_pk_add_f32 v[%d:%d], v[%d:%d], v[%d:%d]' % (r_, r_ + 1, r_, r_ + 1, r_ + 4, r_ + 5))
        p('v_pk_add_f32 v[%d:%d], v[%d:%d], v[%d:%d]' % (r_ + 2, r_ + 3, r_ + 2, r_ + 3, r_ + 6, r_ + 7))
        p('v_pk_add_f32 v[%d:%d], v[%d:%d], v[%d:%d]' % (r_ + 8, r_ + 9, r_ + 8, r_ + 9, r_ + 12, r_ + 13))
        p('v_pk_add_f32 v[%d:%d], v[%d:%d], v[%d:%d]' % (r_ + 10, r_ + 11, r_ + 10, r_ + 11, r_ + 14, r_ + 15))
        p('v_pk_add_f32 v[%d:%d], v[%d:%d], v[%d:%d]' % (b, b + 1, b, b + 1, r_, r_ + 1))
        p('v_pk_add_f32 v[%d:%d], v[%d:%d], v[%d:%d]' % (b + 2, b + 3, b + 2, b + 3, r_ + 2, r_ + 3))
        p('v_pk_add_f32 v[%d:%d], v[%d:%d], v[%d:%d]' % (b, b + 1, b, b + 1, r_ + 8, r_ + 9))
        p('v_pk_add_f32 v[%d:%d], v[%d:%d], v[%d:%d]' % (b + 2, b + 3, b + 2, b + 3, r_ + 10, r_ + 11))
        p('s_add_u32 s%d, s%d, %d' % (sT2, sOO, it * 4 * 1792))
        p('buffer_store_dwordx4 %s, v%d, %s, s%d offen%s' % (v4(b), vOO, srd(SOUT), sT2, ['', ' sc1', ' nt', ' sc0 sc1', ' sc1 nt'][OPT.get('ost', 0)]))
    if OPT['stamps']:
        stamp(p, 'end')
        p('v_readlane_b32 s%d, v%d, 0' % (sT0, vRSv)); p('s_nop 3'); p('v_writelane_b32 v%d, s%d, 60' % (vDUM, sT0))
        p('s_memrealtime s[%d:%d]' % (sP0, sP0 + 1)); p('s_load_dwordx2 s[36:37], s[0:1], 104'); p('s_waitcnt lgkmcnt(0)')
        p('v_writelane_b32 v%d, s%d, 63' % (vDUM, sP0))
        if OPT.get('amp', -1) >= 0:
            p('s_lshl_b32 s%d, s2, 2' % sT0); p('s_add_u32 s%d, s%d, s%d' % (sT0, sT0, sW)); p('s_cmp_lg_u32 s%d, %d' % (sT0, OPT['dbgwave']))
            p('s_cbranch_scc1 L_noamp')
            p('v_readlane_b32 s%d, v%d, %d' % (sT0, vDUM, OPT['amp'])); p('v_readlane_b32 s%d, v%d, %d' % (sT1, vDUM, OPT.get('amp0', 61)))
            p('s_nop 3')
            p('s_sub_u32 s%d, s%d, s%d' % (sT0, sT0, sT1)); p('s_mul_i32 s%d, s%d, %d' % (sT0, sT0, OPT.get('ampk', 4)))
            p('s_min_u32 s%d, s%d, 400000' % (sT0, sT0))
            p('s_memtime s[84:85]'); p('s_waitcnt lgkmcnt(0)')
            p('L_amp:')
            p('s_memtime s[86:87]'); p('s_waitcnt lgkmcnt(0)')
            p('s_sub_u32 s%d, s86, s84' % sT1); p('s_cmp_lt_u32 s%d, s%d' % (sT1, sT0)); p('s_cbranch_scc1 L_amp')
            p('L_noamp:')
        if OPT['dbg']:
            mk_srd(p, 84, 36, 256)
            p('v_readlane_b32 s%d, v%d, 61' % (sT1, vDUM))
            p('s_lshl_b32 s%d, s2, 2' % sT0); p('s_add_u32 s%d, s%d, s%d' % (sT0, sT0, sW)); p('s_cmp_lg_u32 s%d, %d' % (sT0, OPT['dbgwave']))
            p('s_cbranch_scc1 L_nodbg')
            p('v_subrev_u32 v%d, s%d, v%d' % (vT0, sT1, vDUM))
            p('v_lshlrev_b32 v%d, 2, v%d' % (vT1, vL))
            p('s_mov_b64 exec, 0xffff')
            p('buffer_store_dword v%d, v%d, s[84:87], 0 offen' % (vT0, vT1))
            p('s_mov_b64 exec, -1')
            p('L_nodbg:')
        p('s_lshl_b32 s%d, s2, 2' % sT0); p('s_add_u32 s%d, s%d, s%d' % (sT0, sT0, sW)); p('s_lshl_b32 s%d, s%d, 8' % (sT0, sT0))
        p('s_add_u32 s%d, s%d, %d' % (sT0, sT0, WS_STAMP))
        p('v_lshlrev_b32 v%d, 2, v%d' % (vT0, vL))
        p('buffer_store_dword v%d, v%d, %s, s%d offen' % (vDUM, vT0, srd(SWS), sT0))
    p('s_cmp_eq_u32 s%d, 15' % sR); p('s_cbranch_scc0 L_exit')
    p('s_cmp_eq_u32 s%d, 13' % sC); p('s_cbranch_scc0 L_exit')
    p('s_cmp_eq_u32 s%d, 3' % sW); p('s_cbranch_scc0 L_exit')
    p('s_mov_b32 s%d, %d' % (sT0, WS_EPOCH))
    p.extend(flag_group(sT0, 0))
    p('s_endpgm')

def pstamp(p, k):
    if not OPT['stamps']: return
    p('s_memtime s[90:91]'); p('s_waitcnt lgkmcnt(0)'); p('v_writelane_b32 v%d, s90, %d' % (vDUM, k))

def prep_path(p):
    SW2, SCRE, SCIM = 44, 48, 52
    sQ, sKF, sF0, sKS, sT0T, sCBK, sCTG, sFF = 8, 84, 85, 86, 87, 88, 89, 92
    p('L_prep:')
    p.reset()
    p('s_lshl_b32 s%d, s%d, 2' % (sQ, sT0)); p('s_add_u32 s%d, s%d, s%d' % (sQ, sQ, sT1)); p('s_sub_u32 s%d, s%d, 28' % (sQ, sQ))
    p('s_cmp_ge_u32 s%d, 28' % sQ); p('s_cbranch_scc1 L_exit')
    p('s_lshr_b32 s%d, s%d, 1' % (sF0, sQ)); p('s_lshl_b32 s%d, s%d, 7' % (sF0, sF0))
    p('s_and_b32 s%d, s%d, 1' % (sT0, sQ)); p('s_lshl_b32 s%d, s%d, 4' % (sT0, sT0)); p('s_add_u32 s%d, s%d, s%d' % (sF0, sF0, sT0))
    p('s_mul_i32 s%d, s%d, 896' % (sF0, sF0))
    p('s_lshl_b32 s%d, s%d, 2' % (sT0T, sW)); p('s_min_u32 s%d, s%d, 10' % (sT0T, sT0T))
    p('s_lshl_b32 s%d, s%d, 6' % (sT0, sT0T)); p('s_add_u32 s%d, s%d, s%d' % (sF0, sF0, sT0))
    p('s_mul_i32 s%d, s%d, 26624' % (sLW, sW))
    vWO = 21
    p('v_lshrrev_b32 v%d, 4, v%d' % (vWO, vL)); p('v_mul_u32_u24 v%d, 896, v%d' % (vWO, vWO))
    p('v_and_b32 v%d, 15, v%d' % (vT2, vL)); p('v_lshl_add_u32 v%d, v%d, 4, v%d' % (vWO, vT2, vWO))
    p('s_lshl_b32 s%d, s%d, 2' % (sKF, sQ)); p('s_add_u32 s%d, s%d, s%d' % (sKF, sKF, sW))
    p('s_mul_i32 s%d, s%d, 4682' % (sCBK, sKF)); p('s_lshr_b32 s%d, s%d, 16' % (sCBK, sCBK))
    p('s_mul_i32 s%d, s%d, 14' % (sT0, sCBK)); p('s_sub_u32 s%d, s%d, s%d' % (sCTG, sKF, sT0))
    p('s_waitcnt lgkmcnt(0)')
    mk_srd(p, SW2, 38, 1792 * 896)
    def w2dma(T):
        for i in range(4):
            p('s_add_u32 m0, s%d, %d' % (sLW, T * 4096 + i * 1024)); p('s_add_u32 s%d, s%d, %d' % (sT0, sF0, T * 28672 + i * 3584))
            p('buffer_load_dwordx4 v%d, %s, s%d offen lds' % (vWO, srd(SW2), sT0), tok=('w2', T))
    w2dma(0)
    mk_srd(p, SWS, 6, WS_END)
    p('buffer_load_dwordx2 v[%d:%d], v%d, %s, 0 offen sc1' % (TMP + 28, TMP + 29, vZ, srd(SWS)))
    w2dma(1)
    mk_srd(p, SLRE, 18, 896); mk_srd(p, SLIM, 20, 896); mk_srd(p, SLDT, 30, 896)
    p('v_lshlrev_b32 v%d, 1, v%d' % (vT2, vL)); p('s_lshl_b32 s%d, s%d, 7' % (sT1, sCBK))
    p('buffer_load_ushort v%d, v%d, %s, s%d offen' % (TMP + 0, vT2, srd(SLRE), sT1))
    p('buffer_load_ushort v%d, v%d, %s, s%d offen' % (TMP + 1, vT2, srd(SLIM), sT1))
    p('buffer_load_ushort v%d, v%d, %s, s%d offen' % (TMP + 2, vT2, srd(SLDT), sT1))
    w2dma(2)
    mk_srd(p, SCRE, 26, 448 * 896); mk_srd(p, SCIM, 28, 448 * 896)
    vA = 16
    p('v_lshrrev_b32 v%d, 2, v%d' % (vA, vL)); p('v_and_b32 v%d, 3, v%d' % (vA, vA))
    p('v_lshl_add_u32 v%d, v%d, 2, v%d' % (vA, vH, vA)); p('v_lshlrev_b32 v%d, 8, v%d' % (vA, vA))
    p('v_and_b32 v%d, 16, v%d' % (vT2, vL)); p('v_lshl_add_u32 v%d, v%d, 1, v%d' % (vA, vT2, vA))
    p('v_and_b32 v%d, 3, v%d' % (vT2, vL)); p('v_lshl_add_u32 v%d, v%d, 3, v%d' % (vA, vT2, vA))
    p('v_add_u32 v%d, s%d, v%d' % (vA, sLW, vA))
    vC = [17, 18, 19, 20]
    p('v_lshrrev_b32 v%d, 1, v%d' % (vT2, vP)); p('v_and_b32 v%d, 7, v%d' % (vT2, vT2))
    p('v_xor_b32 v%d, v%d, v%d' % (vT2, vT2, vH)); p('v_lshlrev_b32 v%d, 4, v%d' % (vT2, vT2))
    p('v_lshl_add_u32 v%d, v%d, 7, v%d' % (vT2, vP, vT2))
    p('v_add_u32 v%d, s%d, v%d' % (vC[0], sLW, vT2))
    for i in range(1, 4): p('v_xor_b32 v%d, %d, v%d' % (vC[i], i << 5, vC[0]))
    p('s_lshr_b32 s%d, s%d, 1' % (sKS, sT0T)); p('s_mul_i32 s%d, s%d, 168' % (sKS, sKS)); p('s_add_u32 s%d, s%d, s%d' % (sKS, sKS, sQ))
    p('s_lshl_b32 s%d, s%d, 11' % (sKS, sKS)); p('s_add_u32 s%d, s%d, %d' % (sKS, sKS, WS_W2F))
    p('s_lshl_b32 s%d, s%d, 5' % (sFF, sW)); p('s_add_u32 s%d, s%d, s%d' % (sFF, sFF, sQ)); p('s_lshl_b32 s%d, s%d, 3' % (sFF, sFF))
    p('s_mul_i32 s%d, s%d, %d' % (sT2, sCTG, 32 * 896)); p('s_add_u32 s%d, s%d, s%d' % (sT2, sT2, sT1))
    pstamp(p, 0)
    FRG = 64
    def stage(T):
        p.waitvm(('w2', T))
        for ct4 in range(4):
            for hh in range(2):
                p('ds_read_b64_tr_b16 %s, v%d offset:%d' % (v2(FRG + 16 * T + 4 * ct4 + 2 * hh), vA, T * 4096 + hh * 2048 + ct4 * 64))
        for ct4 in range(4):
            if ct4 % 2 == 0: p('s_add_u32 s%d, s%d, %d' % (sT0, sKS, ((ct4 // 2) * 168 + 28 * T) * 2048))
            p('buffer_store_dwordx4 %s, v%d, %s, s%d offen offset:%d sc1' % (v4(FRG + 16 * T + 4 * ct4), vL16, srd(SWS), sT0, (ct4 % 2) * 1024), tok=('fst', T))
    stage(0)
    pstamp(p, 1)
    stage(1)
    stage(2)
    tag_setup(p, TMP + 28)
    w2dma(3)
    for comp in range(2):
        for rg in range(4):
            p('s_add_u32 m0, s%d, %d' % (sLW, 16384 + comp * 4096 + rg * 1024))
            p('s_add_u32 s%d, s%d, %d' % (sT0, sT2, rg * 7168))
            p('buffer_load_dwordx4 v%d, %s, s%d offen lds' % (vT0 if rg % 2 == 0 else vT1, srd(SCRE if comp == 0 else SCIM), sT0), tok='c')
        if comp == 0:
            p.extend(flag_group(sFF, WS_PF, ('fst', 0)))
            pstamp(p, 2)
    p.extend(flag_group(sFF, WS_PF + 1024, ('fst', 1)))
    p.extend(flag_group(sFF, WS_PF + 2048, ('fst', 2)))
    lr, li = TMP + 6, TMP + 7
    lam_from(p, TMP + 0, TMP + 1, TMP + 2, lr, li, TMP + 4, TMP + 5)
    p('v_add_f32 v%d, -1.0, v%d' % (lr, lr))
    p('v_mul_f32 v%d, v%d, v%d' % (TMP + 4, TMP + 0, TMP + 0)); p('v_fmac_f32 v%d, v%d, v%d' % (TMP + 4, TMP + 1, TMP + 1))
    p('v_rcp_f32 v%d, v%d' % (TMP + 4, TMP + 4))
    p('v_mul_f32 v%d, v%d, v%d' % (TMP + 8, lr, TMP + 0)); p('v_fmac_f32 v%d, v%d, v%d' % (TMP + 8, li, TMP + 1))
    p('v_add_f32 v%d, v%d, v%d' % (TMP + 4, TMP + 4, TMP + 4))
    p('v_mul_f32 v%d, v%d, v%d' % (TMP + 9, li, TMP + 0)); p('v_fma_f32 v%d, -v%d, v%d, v%d' % (TMP + 9, lr, TMP + 1, TMP + 9))
    p('v_mul_f32 v%d, v%d, v%d' % (TMP + 8, TMP + 8, TMP + 4)); p('v_mul_f32 v%d, v%d, v%d' % (TMP + 9, TMP + 9, TMP + 4))
    p('v_lshl_add_u32 v%d, v%d, 3, s%d' % (vT2, vL, sLW))
    p('ds_write_b64 v%d, v[%d:%d] offset:%d' % (vT2, TMP + 8, TMP + 9, 24576))
    p('v_lshl_add_u32 v%d, v%d, 6, s%d' % (vT2, vH, sLW))
    stage(3)
    p('s_lshl_b32 s%d, s%d, 3' % (sT0, sCBK)); p('s_add_u32 s%d, s%d, 112' % (sT0, sT0)); p('s_lshl_b32 s%d, s%d, 11' % (sKS, sT0))
    p('s_lshr_b32 s%d, s%d, 1' % (sT0, sCTG)); p('s_mul_i32 s%d, s%d, %d' % (sT0, sT0, 168 * 2048)); p('s_add_u32 s%d, s%d, s%d' % (sKS, sKS, sT0))
    p('s_and_b32 s%d, s%d, 1' % (sT0, sCTG)); p('s_lshl_b32 s%d, s%d, 10' % (sT0, sT0)); p('s_add_u32 s%d, s%d, s%d' % (sKS, sKS, sT0))
    p('s_add_u32 s%d, s%d, %d' % (sKS, sKS, WS_W2F))
    CR = 24; CF = 128; U = 56; O = 192
    p.waitvm('c')
    for g4 in range(4):
        p('ds_read_b128 %s, v%d offset:%d' % (v4(CR + 8 * g4), vC[g4], 16384))
        p('ds_read_b128 %s, v%d offset:%d' % (v4(CR + 8 * g4 + 4), vC[g4], 16384 + 4096))
        for k in range(4): p('ds_read_b128 %s, v%d offset:%d' % (v4(CF + 16 * g4 + 4 * k), vT2, 24576 + 128 * g4 + 16 * k))
        if g4 == 1: p('s_waitcnt lgkmcnt(6)')
    for g4 in range(4):
        cr, ci = CR + 8 * g4, CR + 8 * g4 + 4
        o = O + 8 * g4
        for k in range(4):
            a0, b0, a1, b1 = CF + 16 * g4 + 4 * k, CF + 16 * g4 + 4 * k + 1, CF + 16 * g4 + 4 * k + 2, CF + 16 * g4 + 4 * k + 3
            p('v_lshlrev_b32 v%d, 16, v%d' % (U, cr + k)); p('v_and_b32 v%d, s%d, v%d' % (U + 1, sMHI, cr + k))
            p('v_lshlrev_b32 v%d, 16, v%d' % (U + 2, ci + k)); p('v_and_b32 v%d, s%d, v%d' % (U + 3, sMHI, ci + k))
            p('v_mul_f32 v%d, v%d, v%d' % (U + 4, a0, U)); p('v_fma_f32 v%d, -v%d, v%d, v%d' % (U + 4, b0, U + 2, U + 4))
            p('v_mul_f32 v%d, v%d, v%d' % (U + 5, a1, U + 1)); p('v_fma_f32 v%d, -v%d, v%d, v%d' % (U + 5, b1, U + 3, U + 5))
            p('v_mul_f32 v%d, -v%d, v%d' % (U + 6, a0, U + 2)); p('v_fma_f32 v%d, -v%d, v%d, v%d' % (U + 6, b0, U, U + 6))
            p('v_mul_f32 v%d, -v%d, v%d' % (U + 7, a1, U + 3)); p('v_fma_f32 v%d, -v%d, v%d, v%d' % (U + 7, b1, U + 1, U + 7))
            p('v_cvt_pk_bf16_f32 v%d, v%d, v%d' % (o + k, U + 4, U + 5))
            p('v_cvt_pk_bf16_f32 v%d, v%d, v%d' % (o + 4 + k, U + 6, U + 7))
        if g4 == 1: p.extend(flag_group(sFF, WS_PF + 3072, ('fst', 3)))
    p('s_cmp_ge_u32 s%d, 98' % sKF); p('s_cbranch_scc1 L_prep_fin')
    for g4 in range(4):
        o = O + 8 * g4
        p('s_add_u32 s%d, s%d, %d' % (sT0, sKS, (4 * (g4 >> 1) + (g4 & 1)) * 2048))
        p('s_add_u32 s%d, s%d, 4096' % (sT1, sT0))
        p('buffer_store_dwordx4 %s, v%d, %s, s%d offen sc1' % (v4(o), vL16, srd(SWS), sT0))
        p('buffer_store_dwordx4 %s, v%d, %s, s%d offen sc1' % (v4(o + 4), vL16, srd(SWS), sT1))
    p('s_lshl_b32 s%d, s%d, 3' % (sT0, sCTG)); p('s_add_u32 s%d, s%d, s%d' % (sT0, sT0, sCBK)); p('s_lshl_b32 s%d, s%d, 3' % (sT0, sT0))
    p('s_waitcnt vmcnt(0)')
    p.extend(flag_group(sT0, WS_PF + 4096))
    p('L_prep_fin:')
    if OPT['stamps']:
        pstamp(p, 3)
        p('v_writelane_b32 v%d, s%d, 62' % (vDUM, SOUT)); p('v_writelane_b32 v%d, s%d, 61' % (vDUM, SOUT + 2))
        p('s_lshl_b32 s%d, s2, 2' % sT0); p('s_add_u32 s%d, s%d, s%d' % (sT0, sT0, sW)); p('s_lshl_b32 s%d, s%d, 8' % (sT0, sT0))
        p('s_add_u32 s%d, s%d, %d' % (sT0, sT0, WS_STAMP))
        p('v_lshlrev_b32 v%d, 2, v%d' % (vT0, vL))
        p('buffer_store_dword v%d, v%d, %s, s%d offen' % (vDUM, vT0, srd(SWS), sT0))
    p('L_exit:')
    p('s_endpgm')

HEADER = open('parallel_sum__ssm_conv_s5__dense_activation_silu__prompt.s.ref').read().split('; Override launch')[0]

def build():
    p = Prog()
    prologue_common(p)
    main_path(p)
    for q in retry_blocks:
        p.reset(); p.extend(q.ins)
    prep_path(p)
    if OPT.get('abl'):
        out = []; cnt = 0
        lo = stamp_slots.index(OPT.get('ablo', 'T0') if isinstance(OPT.get('ablo', 'T0'), str) else stamp_slots[OPT['ablo']]); hi_ = stamp_slots.index('T2') if 'abhi' not in OPT else OPT['abhi']
        inside = False
        for i in p.ins:
            if i.op == 'v_writelane_b32':
                k = int(i.text.split(',')[-1])
                if k == lo: inside = True
                if k == hi_: inside = False
                out.append(i); continue
            a = OPT['abl']
            if inside and (a & 64) and (i.kind in ('vload', 'dma', 'vstore', 'needvm') or (i.kind == 'branch' and 'retry' in i.text)): continue
            if inside and (a & 128) and i.kind == 'salu' and 'exec' not in i.text and 'vcc' not in i.text: continue
            if inside and i.note != 'glue' and (((a & 1) and i.kind in ('vload', 'dma') and 'dwordx4' in i.text and 'sc1' in i.text) or ((a & 2) and i.kind == 'trans') or ((a & 4) and i.kind == 'valu')
                           or ((a & 8) and i.kind == 'dsread') or ((a & 16) and i.kind == 'vstore' and 'dwordx4' in i.text) or ((a & 32) and i.kind == 'mfma')):
                continue
            out.append(i)
        p.ins = out
    ins = finalize(p)
    if OPT.get('wlo') is not None:
        out = []; inside = False; slot = 30
        for i in ins:
            if i.op == 'v_writelane_b32' and 's%d,' % sP0 in i.text:
                k = int(i.text.split(',')[-1])
                if k == OPT['wlo']: inside = True
                if k == OPT['whi']: inside = False
            if inside and i.kind in ('dma', 'vload', 'vstore') and OPT.get('wv'): OPT['wskip'] = OPT.get('wskip', 0) - 1
            if inside and slot < 59 and ((i.kind in ('dma', 'vload', 'vstore') and OPT.get('wskip', 0) < 0) if OPT.get('wv') else ((i.kind == 'wait' and 'vmcnt' in i.text) or i.kind == 'barrier')):
                out += [Ins('s_memtime s[62:63]')] if False else []
                out += [Ins('s_memtime s[64:65]'), i, Ins('s_memtime s[72:73]'), Ins('s_waitcnt lgkmcnt(0)'),
                        Ins('v_writelane_b32 v%d, s64, %d' % (vDUM, slot)), Ins('v_writelane_b32 v%d, s72, %d' % (vDUM, slot + 1))]
                print('W%d: %s' % (slot, i.text)); slot += 2
            else: out.append(i)
        ins = out
    ins = [i for i in ins if not i.text.startswith(('; pad', '; need', '; after', '; at'))]
    body = text_of(ins)
    s = HEADER
    s += '; @launch grid=(256,1,1) block=(256,1,1) lds=%d\n' % LDS_BYTES
    s += '.amdgcn_target "amdgcn-amd-amdhsa--gfx950"\n.text\n.globl %s\n.p2align 8\n.type %s,@function\n%s:\n' % (KNAME, KNAME, KNAME)
    s += body
    s += 'L_code_end:\n'
    s += '.section .rodata,"a"\n.p2align 6\n.amdhsa_kernel %s\n' % KNAME
    s += '  .amdhsa_next_free_vgpr 512\n  .amdhsa_next_free_sgpr 102\n  .amdhsa_accum_offset 256\n  .amdhsa_group_segment_fixed_size 0\n'
    s += '  .amdhsa_kernarg_size 120\n  .amdhsa_user_sgpr_count 2\n  .amdhsa_user_sgpr_kernarg_segment_ptr 1\n  .amdhsa_system_sgpr_workgroup_id_x 1\n'
    s += '  .amdhsa_float_denorm_mode_32 3\n'
    s += '.end_amdhsa_kernel\n'
    return s, ins

if __name__ == '__main__':
    s, ins = build()
    open(sys.argv[1], 'w').write(s)
    from collections import Counter
    c = Counter(i.kind for i in ins)
    print('instructions:', sum(v for k, v in c.items() if k != 'label'), dict(c))
    if OPT['stamps']: print('stamps:', ','.join(stamp_slots))
```

```python
import sys, os
sys.path.insert(0, os.path.dirname(os.path.abspath(__file__)))
from dsl import *

KNAME = 'parallel_sum__ssm_conv_s5__dense_activation_silu__prompt_kernel'
OPT = dict(stamps=0, rot=1, w1pf=0, cpf=1, spin=1 << 16, dbg=0, dbgwave=0, per=70, perd=72, lead=16, ahead=12, dot=1, pk=0, w2early=1, tlb=0, fillc=30, ldsw2=1, rotA=0, gpf=3, xup=5, ost=1, tp=1350, tc=2500, loc=0, send=24, p2=3, p3=9, p4=16, pd=6, f3=0, f4=7, c1=0, tf=900, tp0=1000, tc0=500, tp1=900, tf2=1000, perh=80)
for a in sys.argv[2:]:
    k, v = a.split('='); OPT[k] = int(v)

HSC = '' if OPT.get('plain') else ' sc1'
WS_EPOCH = 0
WS_PF    = 0xC000
WS_FL    = 0x2000
WS_EG    = 0x10000
WS_STAMP = 0x80000
WS_W2F   = 0x100000
WS_HID   = 0x400000
WS_END   = WS_HID + 64 * 168 * 1024
L0     = 8192
L_XW   = 24576
L_SW   = L0 + 98304
L_TR   = L0 + 114688
L_WT   = L_TR + 4 * 4608
L_RS   = 0
L_MR   = 512
L_EW   = 1536
LDS_BYTES = 163840
LOG2E = 0x3fb8aa3b
NLOG2E = 0xbfb8aa3b
INV2PI = 0x3e22f983

sR, sC, sW, sROT, sTL, sTH, sONE, sMHI = 8, 9, 10, 11, 12, 13, 14, 15
SX, SBRE, SBIM, SW1, SWS, SOUT, SLRE, SLIM, SLDT, SDSK, SCODE = 40, 44, 48, 52, 56, 60, 64, 68, 72, 76, 80
SEG = 44
KB = [84 + j for j in range(7)]
W1K = [91 + j for j in range(7)]
sT0, sT1, sLW, sT2 = 98, 99, 100, 101
BM0 = [64 + j for j in range(7)]
sHW, sCB, sHALF, sRT0, sPMASK, sW2, sH0, sH1, sSPIN, sFW = 16, 17, 18, 19, 20, 21, 22, 23, 24, 25
sT3, sT4, sT5, sT6 = 26, 27, 28, 29
sP0 = 30
sW2S, sH0S, sH1S, sHWS, sIDX, sM1 = 32, 33, 34, 35, 36, 37
RSO = [72 + j for j in range(4)] + [38, 39, 3]
def srd(b): return 's[%d:%d]' % (b, b + 3)
def v4(b): return ('v[%d:%d]' % (b, b + 3)) if b < 256 else ('a[%d:%d]' % (b - 256, b - 253))
def v2(b): return ('v[%d:%d]' % (b, b + 1)) if b < 256 else ('a[%d:%d]' % (b - 256, b - 255))
def v16(b): return 'v[%d:%d]' % (b, b + 15)

vL = 1; vL16 = 2; vT0, vT1, vT2, vT3 = 3, 4, 5, 6
vM, vS, vNK, vRSv = 7, 8, 9, 10
vZ = 11; vH = 12; vP = 13; vFA = 14; vDUM = 15
X = 16
SRE, SIM, F0, F1 = 128, 144, 160, 176
vXO = [192, 193, 194, 195]
vBO = 196
vW1O = [197, 198]
vRX = [199, 200, 201, 202]
vRF = [[203, 204], [205, 206]]
L1r, L1i, N1i, L2r, L2i, L3r, L3i, L4r, L4i, L32r, L32i, L128r, L128i, L256r, L256i = range(207, 222)
vTW, vTRr = 222, 223
vFA2, vFA3 = 201, 202
TMP = 224
WB = 256 + 224
FR = TMP + 26
FR2 = TMP + 24
TAGP = TMP + 30
vNM = TMP + 16
sSELL, sSELH = 70, 71
sPS, sPM2, sLT, sLA = 68, 69, 67, 66
sRS0, sRS1 = 82, 83
vPF = TMP + 28

def cost(i):
    if i.kind in ('label', 'needvm', 'needlgkm', 'reset'): return 0
    if i.kind in ('trans', 'mfma'): return 8
    if i.kind == 'nop': return 4 * i.width
    if i.kind in ('valu', 'dot', 'perm') and (i.op in ('v_fma_f32', 'v_cvt_pk_bf16_f32', 'v_lshl_add_u32', 'v_add3_u32', 'v_mul_lo_u32') or '0x' in i.text): return 5
    if i.kind in ('vload', 'vstore', 'dma'): return 8
    return 4

def weave(comp, groups, period, start=0, pdma=None, small=(), events=()):
    out = []; t = 0; pipe = 0; nxt = start; groups = list(groups); noins = 0
    pdma = pdma or period; nm = 0; events = sorted(events, key=lambda e: e[0])
    for i in comp:
        if i.kind == 'mfma':
            t = max(t, pipe); pipe = t + 32; nm += 1
        out.append(i); t += cost(i)
        if 'exec' in i.text and i.kind == 'salu':
            noins = 0 if i.text.endswith('exec, -1') else 1
        ok = not noins and not (i.kind == 'salu' and 'm0' in i.text) and i.kind not in ('needvm', 'needlgkm') and not getattr(i, 'note', None) == 'glue'
        if events and ok and t >= events[0][0]:
            g = events.pop(0)[1]; out.extend(g); t += sum(cost(x) for x in g); continue
        if groups and groups[0] and groups[0][0].text.startswith('; after') and nm < int(groups[0][0].text.split()[2]): continue
        if groups and groups[0] and groups[0][0].text.startswith('; at') and t < int(groups[0][0].text.split()[2]): continue
        if 'exec' in i.text and i.kind == 'salu':
            noins = 0 if i.text.endswith('exec, -1') else 1
        if groups and t >= nxt and not noins and not (i.kind == 'salu' and 'm0' in i.text) and i.kind not in ('needvm', 'needlgkm') and not getattr(i, 'note', None) == 'glue':
            g = groups.pop(0); out.extend(g); t += sum(cost(x) for x in g)
            nv = sum(1 for x in g if x.kind in ('dma', 'vload', 'vstore') and 'dwordx4' in x.text and not any('s[%d:%d]' % (b, b + 3) in x.text for b in small))
            pr = (period if any('sc1' in x.text for x in g) else pdma) * nv + (0 if nv else 40)
            nxt = max(nxt + pr, t - pr // 2)
    for e in events: out.extend(e[1])
    return out, groups

def G(*texts, tok=None):
    q = Prog()
    for t in texts: q(t, tok=tok)
    return q.ins

stamp_slots = []
def stamp(p, name):
    if not OPT['stamps']: return
    if OPT.get('allg') and name in ('issued0', 'first', 'x0in', 'lead', 'Win', 'ssmend', 'Ain', 'lbok', 'T0', 'T1', 'T2', 'B1'): return
    k = len(stamp_slots); stamp_slots.append(name)
    p('s_memtime s[%d:%d]' % (sP0, sP0 + 1))
    p('s_waitcnt lgkmcnt(0)')
    p('v_writelane_b32 v%d, s%d, %d' % (vDUM, sP0, k))

def mk_srd(p, b, ptr, nbytes):
    p('s_mov_b32 s%d, s%d' % (b, ptr)); p('s_mov_b32 s%d, s%d' % (b + 1, ptr + 1))
    p('s_mov_b32 s%d, %d' % (b + 2, nbytes)); p('s_mov_b32 s%d, 0x20000' % (b + 3))

def bf16_round(p, dst, src):
    p('v_cvt_pk_bf16_f32 v%d, v%d, v%d' % (dst, src, src))
    p('v_lshlrev_b32 v%d, 16, v%d' % (dst, dst))

def lam_from(p, lre, lim, ldt, outr, outi, t0, t1):
    p('v_lshlrev_b32 v%d, 16, v%d' % (lre, lre))
    p('v_lshlrev_b32 v%d, 16, v%d' % (lim, lim))
    p('v_lshlrev_b32 v%d, 16, v%d' % (ldt, ldt))
    p('v_mul_f32 v%d, 0x%x, v%d' % (ldt, LOG2E, ldt))
    p('v_exp_f32 v%d, v%d' % (ldt, ldt))
    bf16_round(p, ldt, ldt)
    p('v_mul_f32 v%d, v%d, v%d' % (t0, ldt, lre))
    p('v_mul_f32 v%d, v%d, v%d' % (t1, ldt, lim))
    p('v_mul_f32 v%d, 0x%x, v%d' % (t0, LOG2E, t0))
    p('v_exp_f32 v%d, v%d' % (t0, t0))
    p('v_mul_f32 v%d, 0x%x, v%d' % (t1, INV2PI, t1))
    p('v_fract_f32 v%d, v%d' % (t1, t1))
    p('v_cos_f32 v%d, v%d' % (outr, t1))
    p('v_sin_f32 v%d, v%d' % (outi, t1))
    p('v_mul_f32 v%d, v%d, v%d' % (outr, t0, outr))
    p('v_mul_f32 v%d, v%d, v%d' % (outi, t0, outi))

def cmul(p, dr, di, ar, ai, br, bi):
    p('v_mul_f32 v%d, v%d, v%d' % (dr, ar, br))
    p('v_mul_f32 v%d, v%d, v%d' % (di, ar, bi))
    p('v_fma_f32 v%d, -v%d, v%d, v%d' % (dr, ai, bi, dr))
    p('v_fmac_f32 v%d, v%d, v%d' % (di, ai, br))

def cmac(p, dr, di, ar, ai, br, bi):
    p('v_fmac_f32 v%d, v%d, v%d' % (dr, ar, br))
    p('v_fmac_f32 v%d, v%d, v%d' % (di, ar, bi))
    p('v_fma_f32 v%d, -v%d, v%d, v%d' % (dr, ai, bi, dr))
    p('v_fmac_f32 v%d, v%d, v%d' % (di, ai, br))

def tag_setup(p, vlo):
    p('v_readfirstlane_b32 s%d, v%d' % (sTL, vlo))
    p('v_readfirstlane_b32 s%d, v%d' % (sTH, vlo + 1))
    p('s_mul_i32 s%d, s%d, 0x9e3779b1' % (sTL, sTL)); p('s_add_u32 s%d, s%d, 0x7f4a7c15' % (sTL, sTL))
    p('s_mul_i32 s%d, s%d, 0x85ebca6b' % (sTH, sTH)); p('s_add_u32 s%d, s%d, 0xc2b2ae35' % (sTH, sTH))
    p('v_mov_b32 v%d, s%d' % (TAGP, sTL)); p('v_mov_b32 v%d, s%d' % (TAGP + 1, sTH))

retry_blocks = []
def poll_check(name, mask, reload_text, FR=FR):
    p = Prog()
    p('v_cmp_ne_u32 vcc, s%d, v%d' % (sTL, FR))
    p('v_cmp_ne_u32 s[%d:%d], s%d, v%d' % (sP0, sP0 + 1, sTH, FR + 1))
    p('s_nop 1')
    p('s_or_b32 s%d, vcc_lo, s%d' % (sM1, sP0))
    p('s_and_b32 s%d, s%d, %s' % (sM1, sM1, mask))
    p('s_cbranch_scc1 L_retry_%s' % name)
    p('L_ok_%s:' % name)
    for i in p.ins: i.note = 'glue'
    q = Prog()
    q('L_retry_%s:' % name)
    q('s_mov_b32 s%d, 0' % sSPIN)
    q('L_loop_%s:' % name)
    q('s_sleep 1')
    q(reload_text)
    q('s_waitcnt vmcnt(0)')
    q('v_cmp_ne_u32 vcc, s%d, v%d' % (sTL, FR))
    q('v_cmp_ne_u32 s[%d:%d], s%d, v%d' % (sP0, sP0 + 1, sTH, FR + 1))
    q('s_add_u32 s%d, s%d, 1' % (sSPIN, sSPIN))
    if OPT['stamps']: q('v_add_u32 v%d, 1, v%d' % (vRSv, vRSv))
    q('s_cmp_gt_u32 s%d, %d' % (sSPIN, OPT['spin']))
    q('s_cbranch_scc1 L_ok_%s' % name)
    q('s_or_b32 s%d, vcc_lo, s%d' % (sM1, sP0))
    q('s_and_b32 s%d, s%d, %s' % (sM1, sM1, mask))
    q('s_cbranch_scc1 L_loop_%s' % name)
    q('s_branch L_ok_%s' % name)
    retry_blocks.append(q)
    return p.ins

def flag_group(base_s, add, waittok=None):
    q = Prog()
    if waittok is not None: q.waitvm(waittok)
    q('s_add_u32 s%d, s%d, %d' % (sM1, base_s, add))
    q('s_mov_b64 exec, 1')
    q('buffer_store_dwordx2 v[%d:%d], v%d, %s, s%d offen%s' % (TAGP, TAGP + 1, vZ, srd(SWS), sM1, HSC if base_s == sFW else ' sc1'))
    q('s_mov_b64 exec, -1')
    return q.ins

def prologue_common(p):
    p('s_cmp_ge_u32 s2, 256')
    p('s_cbranch_scc1 L_exit')
    p('s_load_dwordx16 s[16:31], s[0:1], 0')
    p('s_load_dwordx8 s[32:39], s[0:1], 64')
    p('s_load_dwordx2 s[4:5], s[0:1], 96')
    p('s_load_dwordx2 s[6:7], s[0:1], 112')
    if OPT['stamps']:
        p('s_memrealtime s[%d:%d]' % (SOUT, SOUT + 1))
        p('s_memtime s[%d:%d]' % (SOUT + 2, SOUT + 3))
    if OPT['cpf']:
        p('s_getpc_b64 s[%d:%d]' % (SCODE, SCODE + 1))
        p('L_pc:')
        p('v_lshrrev_b32 v%d, 5, v0' % vT1); p('v_and_b32 v%d, 6, v%d' % (vT1, vT1)); p('v_and_b32 v%d, 1, v0' % vT2)
        p('v_add_lshl_u32 v%d, v%d, v%d, 7' % (vT2, vT1, vT2))
        p('s_sub_u32 s%d, s%d, L_pc-%s' % (SCODE, SCODE, KNAME))
        p('s_subb_u32 s%d, s%d, 0' % (SCODE + 1, SCODE + 1))
        p('s_mov_b32 s%d, L_code_end-%s' % (SCODE + 2, KNAME))
        p('s_mov_b32 s%d, 0x20000' % (SCODE + 3))
        p('s_lshr_b32 s%d, s2, 3' % sT1); p('s_lshl_b32 s%d, s%d, 10' % (sT1, sT1))
        p('s_mov_b64 exec, 3')
        p('buffer_load_dword v%d, v%d, %s, s%d offen' % (F1, vT2, srd(SCODE), sT1), tok='cpf')
        p('s_mov_b64 exec, -1')
    p('v_lshrrev_b32 v%d, 6, v0' % vT0)
    p('v_and_b32 v%d, 63, v0' % vL)
    p('v_readfirstlane_b32 s%d, v%d' % (sW, vT0))
    p('v_lshlrev_b32 v%d, 4, v%d' % (vL16, vL))
    p('v_mov_b32 v%d, 0' % vZ)
    p('v_lshrrev_b32 v%d, 5, v%d' % (vH, vL))
    p('v_and_b32 v%d, 31, v%d' % (vP, vL))
    p('s_and_b32 s%d, s2, 7' % sT0)
    p('s_lshr_b32 s%d, s2, 3' % sT1)
    p('s_mov_b32 s%d, 0x3f803f80' % sONE)
    p('s_mov_b32 s%d, 0xffff0000' % sMHI)
    p('v_lshrrev_b32 v%d, 3, v%d' % (vT0, vL))
    p('v_mul_u32_u24 v%d, 896, v%d' % (vT0, vT0))
    p('v_lshrrev_b32 v%d, 4, v%d' % (vT1, vL))
    p('v_and_b32 v%d, 7, v%d' % (vT2, vL))
    p('v_xor_b32 v%d, v%d, v%d' % (vT1, vT1, vT2))
    p('v_lshl_add_u32 v%d, v%d, 4, v%d' % (vT0, vT1, vT0))
    p('v_xor_b32 v%d, 64, v%d' % (vT1, vT0))
    p('s_cmp_ge_u32 s%d, 28' % sT1)
    p('s_cbranch_scc1 L_prep')

def wrap7(p, dst, a, b_or_imm, tmp):
    p('s_add_u32 s%d, s%d, %s' % (dst, a, b_or_imm))
    p('s_cmp_ge_u32 s%d, 7' % dst)
    p('s_cselect_b32 s%d, 7, 0' % tmp)
    p('s_sub_u32 s%d, s%d, s%d' % (dst, dst, tmp))

def main_path(p):
    sXCD, sI7 = 78, 79
    p('s_mov_b32 s%d, s%d' % (sXCD, sT0)); p('s_mov_b32 s%d, s%d' % (sI7, sT1))
    if not OPT['loc']:
        p('s_mul_i32 s%d, s%d, 37' % (sT2, sT1)); p('s_lshr_b32 s%d, s%d, 8' % (sT2, sT2))
        p('s_mul_i32 s3, s%d, 7' % sT2); p('s_sub_u32 s%d, s%d, s3' % (sROT, sT1))
        p('s_lshr_b32 s%d, s%d, 1' % (sR, sT0)); p('s_lshl_b32 s%d, s%d, 2' % (sR, sR)); p('s_add_u32 s%d, s%d, s%d' % (sR, sR, sT2))
        p('s_and_b32 s%d, s%d, 1' % (sT0, sT0))
        p('s_mul_i32 s%d, s%d, 7' % (sC, sT0)); p('s_add_u32 s%d, s%d, s%d' % (sC, sC, sROT))
    else:
        p('s_cmp_ge_u32 s%d, 14' % sT1); p('s_cselect_b32 s%d, 1, 0' % sT2); p('s_cselect_b32 s3, 14, 0')
        p('s_sub_u32 s%d, s%d, s3' % (sC, sT1))
        p('s_lshl_b32 s%d, s%d, 1' % (sR, sT0)); p('s_add_u32 s%d, s%d, s%d' % (sR, sR, sT2))
        p('s_cmp_ge_u32 s%d, 7' % sC); p('s_cselect_b32 s%d, 1, 0' % sXCD); p('s_cselect_b32 s3, 7, 0')
        p('s_sub_u32 s%d, s%d, s3' % (sROT, sC))
        p('s_lshl_b32 s%d, s%d, 1' % (sT2, sT2))
    p('s_mul_i32 s%d, s%d, %d' % (sLW, sW, L_XW)); p('s_add_u32 s%d, s%d, %d' % (sLW, sLW, L0))
    p('s_lshl_b32 s%d, s%d, 7' % (KB[0], sROT)) if OPT['rot'] else p('s_mov_b32 s%d, 0' % KB[0])
    p('s_lshl_b32 s%d, s%d, 2' % (sT0, sR)); p('s_add_u32 s%d, s%d, s%d' % (sT0, sT0, sW))
    p('s_mul_i32 s%d, s%d, %d' % (sT1, sT0, 32 * 896))
    p('v_add_u32 v%d, s%d, v%d' % (vXO[0], sT1, vT0))
    p('v_add_u32 v%d, s%d, v%d' % (vXO[1], sT1, vT1))
    p('v_add_u32 v%d, %d, v%d' % (vXO[2], 14336 - 2048, vXO[0]))
    p('v_add_u32 v%d, %d, v%d' % (vXO[1], 7168 - 1024, vXO[1]))
    p('v_add_u32 v%d, %d, v%d' % (vXO[3], 14336 - 2048, vXO[1]))
    if OPT['stamps']: p('s_memtime s[76:77]')
    p('s_waitcnt lgkmcnt(0)')
    if OPT['stamps']:
        p('v_writelane_b32 v%d, s%d, 62' % (vDUM, SOUT)); p('v_writelane_b32 v%d, s%d, 61' % (vDUM, SOUT + 2))
        stamp_slots.append('prek'); p('v_writelane_b32 v%d, s76, 0' % vDUM)
        p('s_memtime s[%d:%d]' % (SOUT, SOUT + 1))
    mk_srd(p, SX, 16, 2048 * 896)
    def x_dma(j):
        out = [G('buffer_load_dwordx4 v%d, %s, s%d offen offset:%d lds' % (vXO[rg], srd(SX), KB[j], rg * 1024), tok=('x', j)) for rg in range(4)]
        out[0] = G('s_add_u32 m0, s%d, %d' % (sLW, j * 4096)) + out[0]
        return out
    fill = Prog()
    mk_srd(fill, SBRE, 22, 448 * 896); mk_srd(fill, SBIM, 24, 448 * 896)
    mk_srd(fill, SLRE, 18, 896); mk_srd(fill, SLIM, 20, 896); mk_srd(fill, SLDT, 30, 896); mk_srd(fill, SWS, 6, WS_END)
    mk_srd(fill, SW1, 36, 448 * 3584)
    fl = fill.ins
    for g in x_dma(0): p.extend(g)
    p.extend(fl[:8]); fl = fl[8:]
    p('s_and_b32 s%d, s%d, 1' % (sT1, sW)); p('s_lshl_b32 s%d, s%d, 6' % (sT1, sT1))
    p('v_xor_b32 v%d, s%d, v%d' % (vBO, sT1, vT0))
    p('s_mul_i32 s%d, s%d, 7168' % (sT1, sW)); p('s_mul_i32 s%d, s%d, %d' % (sT0, sC, 32 * 896)); p('s_add_u32 s%d, s%d, s%d' % (sT1, sT1, sT0))
    p('v_add_u32 v%d, s%d, v%d' % (vBO, sT1, vBO))
    p('s_lshl_b32 s%d, s%d, 1' % (sT2, sT2))
    p('s_lshl_b32 s%d, s%d, 12' % (W1K[0], sT2)); p('s_lshl_b32 s%d, s%d, 10' % (sT1, sW)); p('s_add_u32 s%d, s%d, s%d' % (W1K[0], W1K[0], sT1))
    p('s_add_u32 s%d, s%d, %d' % (sT1, sT1, 7 * 4096))
    for k in range(1, 7):
        p('s_add_u32 s%d, s%d, 4096' % (W1K[k], W1K[k - 1]))
        p('s_cmp_ge_u32 s%d, s%d' % (W1K[k], sT1))
        p('s_cselect_b32 s%d, %d, 0' % (sT0, 7 * 4096))
        p('s_sub_u32 s%d, s%d, s%d' % (W1K[k], W1K[k], sT0))
    p('s_lshl_b32 s%d, s%d, 7' % (sT2, sT2))
    p('s_add_u32 s%d, s%d, s%d' % (sT2, sT2, KB[0]))
    p('s_cmp_ge_u32 s%d, 896' % sT2); p('s_cselect_b32 s%d, 896, 0' % sT0); p('s_sub_u32 s%d, s%d, s%d' % (sT2, sT2, sT0))
    p('v_lshlrev_b32 v%d, 1, v%d' % (vT2, vP))
    p('s_lshl_b32 s%d, s%d, 6' % (sT1, sC))
    if OPT['stamps']:
        p('s_memtime s[%d:%d]' % (SOUT + 2, SOUT + 3)); p('s_waitcnt lgkmcnt(0)')
        stamp_slots.append('karg'); p('v_writelane_b32 v%d, s%d, 1' % (vDUM, SOUT))
        stamp_slots.append('x0'); p('v_writelane_b32 v%d, s%d, 2' % (vDUM, SOUT + 2))
    ssm_soff = [sT2]
    def ssm_dma(k, soff):
        return [G('s_add_u32 m0, s%d, %d' % (W1K[k], L_SW + T * 28672),
                  'buffer_load_dwordx4 v%d, %s, s%d offen lds' % (vBO, srd(SBRE if T == 0 else SBIM), soff), tok='ssmw') for T in range(2)]
    def next_soff(q, dst, src):
        q('s_add_u32 s%d, s%d, 128' % (dst, src)); q('s_cmp_ge_u32 s%d, 896' % dst); q('s_cselect_b32 s%d, 0, s%d' % (dst, dst))
    p('s_mov_b32 s%d, s%d' % (sRS0, sT2))
    next_soff(p, sT2, sT2)
    p('s_mov_b32 s%d, s%d' % (sRS1, sT2))
    share = ssm_dma(0, sRS0) + ssm_dma(1, sRS1)
    NSH = OPT.get('sshare', 4)
    for g in share[:NSH]:
        p.extend([g[0]] + fl[:4] + [g[1]]); fl = fl[4:]
    p.extend(fl)
    p('buffer_load_dwordx2 v[%d:%d], v%d, %s, 0 offen sc1' % (TMP + 28, TMP + 29, vZ, srd(SWS)))
    p('buffer_load_ushort v%d, v%d, %s, s%d offen' % (TMP + 0, vT2, srd(SLRE), sT1))
    p('buffer_load_ushort v%d, v%d, %s, s%d offen' % (TMP + 1, vT2, srd(SLIM), sT1))
    p('buffer_load_ushort v%d, v%d, %s, s%d offen' % (TMP + 2, vT2, srd(SLDT), sT1))
    gpf = Prog()
    if OPT['gpf']:
        gpf('s_mul_i32 s%d, s%d, 14' % (sT0, sR)); gpf('s_add_u32 s%d, s%d, s%d' % (sT0, sT0, sC)); gpf('s_lshl_b32 s%d, s%d, 2' % (sT0, sT0))
        gpf('s_add_u32 s%d, s%d, s%d' % (sT0, sT0, sW)); gpf('s_mul_i32 s%d, s%d, 1792' % (sT0, sT0))
        gpf('v_lshlrev_b32 v%d, 7, v%d' % (vT1, vL))
        gpf('s_mov_b64 exec, 0x3fff')
        gpf('buffer_load_dword v%d, v%d, %s, s%d offen' % (F1 + 5, vT1, srd(SW1), sT0), tok='cpf')
        gpf('s_mov_b64 exec, -1')
    if OPT['gpf'] == 1: p.extend(gpf.ins)
    if OPT['tlb']:
        p('v_lshlrev_b32 v%d, 21, v%d' % (vT1, vL))
        p('s_mov_b64 exec, 0xfe')
        p('buffer_load_dword v%d, v%d, %s, 0 offen' % (F1 + 3, vT1, srd(SWS)), tok='cpf')
        p('s_mov_b64 exec, 1')
        p('buffer_load_dword v%d, v%d, %s, 0 offen' % (F1 + 4, vZ, srd(SW1)), tok='cpf')
        p('s_mov_b64 exec, -1')
    stamp(p, 'issued0')
    for j in range(1, 7):
        if OPT['rot']:
            p('s_add_u32 s%d, s%d, 128' % (KB[j], KB[j - 1]))
            p('s_cmp_ge_u32 s%d, 896' % KB[j])
            p('s_cselect_b32 s%d, 0, s%d' % (KB[j], KB[j]))
        else: p('s_mov_b32 s%d, %d' % (KB[j], j * 128))
    prev = sT2
    RS7 = [None, None, 38, 39, 34, 35, 3]
    p('s_and_b32 s%d, s%d, 1' % (sHALF, sXCD))
    mk_srd(p, SDSK, 32, 896)
    mk_srd(p, SOUT, 4, 2048 * 1792)
    for k in range(2, 7):
        next_soff(p, RS7[k], prev); prev = RS7[k]
    ssm_rest = []
    for k in range(2, 7): ssm_rest += ssm_dma(k, RS7[k])
    w1g = []
    if OPT['w1pf']:
        p('v_mul_u32_u24 v%d, 3584, v%d' % (vT1, vL))
        p('s_and_b32 s%d, s%d, 3' % (sT1, sR)); p('s_lshl_b32 s%d, s%d, 2' % (sT1, sT1)); p('s_add_u32 s%d, s%d, s%d' % (sT1, sT1, sW))
        p('s_mul_i32 s%d, s%d, %d' % (sT1, sT1, 28 * 3584))
        p('s_lshl_b32 s%d, s%d, 8' % (sT0, sC)); p('s_add_u32 s%d, s%d, s%d' % (sT1, sT1, sT0))
        p('v_add_u32 v%d, s%d, v%d' % (F1 + 2, sT1, vT1))
        w1g = [G('s_mov_b64 exec, 0x0fffffff', 'buffer_load_dword v%d, v%d, %s, 0 offen offset:128' % (F1 + 1, F1 + 2, srd(SW1)), 's_mov_b64 exec, -1', tok='cpf')]
    p('v_lshrrev_b32 v%d, 3, v%d' % (vT0, vL))
    p('v_mul_u32_u24 v%d, 3584, v%d' % (vT0, vT0))
    p('v_lshrrev_b32 v%d, 2, v%d' % (vT1, vL)); p('v_and_b32 v%d, 4, v%d' % (vT1, vT1))
    p('v_and_b32 v%d, 7, v%d' % (vT2, vL)); p('v_xor_b32 v%d, v%d, v%d' % (vT1, vT1, vT2))
    p('v_lshl_add_u32 v%d, v%d, 4, v%d' % (vT0, vT1, vT0))
    p('s_mul_i32 s%d, s%d, %d' % (sT1, sW, 16 * 3584)); p('s_lshl_b32 s%d, s%d, 8' % (sT0, sC)); p('s_add_u32 s%d, s%d, s%d' % (sT1, sT1, sT0))
    p('v_add_u32 v%d, s%d, v%d' % (vW1O[0], sT1, vT0))
    p('v_add_u32 v%d, %d, v%d' % (vW1O[1], 8 * 3584 - 1024, vW1O[0]))
    p('v_lshrrev_b32 v%d, 1, v%d' % (vT0, vP)); p('v_and_b32 v%d, 7, v%d' % (vT0, vT0))
    p('v_xor_b32 v%d, v%d, v%d' % (vT0, vT0, vH)); p('v_lshlrev_b32 v%d, 4, v%d' % (vT0, vT0))
    p('v_lshl_add_u32 v%d, v%d, 7, v%d' % (vT0, vP, vT0))
    p('v_add_u32 v%d, s%d, v%d' % (vRX[0], sLW, vT0))
    for i in range(1, 4): p('v_xor_b32 v%d, %d, v%d' % (vRX[i], i << 5, vRX[0]))
    p('v_lshrrev_b32 v%d, 2, v%d' % (vT0, vL)); p('v_and_b32 v%d, 3, v%d' % (vT0, vT0))
    p('v_lshlrev_b32 v%d, 7, v%d' % (vT1, vT0))
    p('v_lshl_add_u32 v%d, v%d, 10, v%d' % (vT1, vH, vT1))
    p('v_and_b32 v%d, 2, v%d' % (vT0, vT0)); p('v_lshl_add_u32 v%d, v%d, 5, v%d' % (vT1, vT0, vT1))
    p('v_and_b32 v%d, 16, v%d' % (vT0, vL)); p('v_lshl_add_u32 v%d, v%d, 1, v%d' % (vT1, vT0, vT1))
    p('v_and_b32 v%d, 3, v%d' % (vT0, vL)); p('v_lshl_add_u32 v%d, v%d, 3, v%d' % (vRF[0][0], vT0, vT1))
    p('v_add_u32 v%d, %d, v%d' % (vRF[0][0], L0, vRF[0][0]))
    p('v_xor_b32 v%d, 64, v%d' % (vRF[1][0], vRF[0][0]))
    p('v_add_u32 v%d, 0x10000, v%d' % (vRF[0][1], vRF[0][0]))
    p('v_add_u32 v%d, 0x10000, v%d' % (vRF[1][1], vRF[1][0]))
    p('s_mul_i32 s%d, s%d, 4608' % (sT1, sW)); p('s_add_u32 s%d, s%d, %d' % (sT1, sT1, L_TR))
    p('v_mul_u32_u24 v%d, 72, v%d' % (vT0, vP)); p('v_lshl_add_u32 v%d, v%d, 3, v%d' % (vT0, vH, vT0))
    p('v_add_u32 v%d, s%d, v%d' % (vTW, sT1, vT0))
    p('v_lshrrev_b32 v%d, 2, v%d' % (vT0, vL)); p('v_and_b32 v%d, 3, v%d' % (vT0, vT0))
    p('v_lshl_add_u32 v%d, v%d, 3, v%d' % (vT0, vH, vT0)); p('v_mul_u32_u24 v%d, 72, v%d' % (vT0, vT0))
    p('v_and_b32 v%d, 16, v%d' % (vT1, vL)); p('v_lshl_add_u32 v%d, v%d, 1, v%d' % (vT0, vT1, vT0))
    p('v_and_b32 v%d, 3, v%d' % (vT1, vL)); p('v_lshl_add_u32 v%d, v%d, 3, v%d' % (vT0, vT1, vT0))
    p('v_add_u32 v%d, s%d, v%d' % (vTRr, sT1, vT0))
    p('s_mov_b32 s%d, s%d' % (sCB, sROT))
    p('s_lshl_b32 s%d, s%d, 2' % (sT0, sR)); p('s_add_u32 s%d, s%d, s%d' % (sT1, sT0, sW))
    p('s_mul_i32 s%d, s%d, 168' % (sHW, sT1)); p('s_lshl_b32 s%d, s%d, 1' % (sT2, sC)); p('s_add_u32 s%d, s%d, s%d' % (sHW, sHW, sT2))
    p('s_lshl_b32 s%d, s%d, 10' % (sHW, sHW)); p('s_add_u32 s%d, s%d, %d' % (sHW, sHW, WS_HID))
    p('s_lshl_b32 s%d, s%d, 7' % (sFW, sT1)); p('s_lshl_b32 s%d, s%d, 3' % (sT2, sC)); p('s_add_u32 s%d, s%d, s%d' % (sFW, sFW, sT2))
    p('s_add_u32 s%d, s%d, %d' % (sFW, sFW, WS_FL))
    p('s_lshl_b32 s%d, s%d, 1' % (sT2, sHALF)); p('s_add_u32 s%d, s%d, s%d' % (sRT0, sT0, sT2))
    p('s_mul_i32 s%d, s%d, 7' % (sT2, sW))
    p('s_mul_i32 s%d, s%d, 168' % (sH0, sRT0)); p('s_add_u32 s%d, s%d, s%d' % (sH0, sH0, sT2)); p('s_lshl_b32 s%d, s%d, 10' % (sH0, sH0))
    p('s_add_u32 s%d, s%d, %d' % (sH0, sH0, WS_HID)); p('s_add_u32 s%d, s%d, %d' % (sH1, sH0, 168 * 1024))
    p('s_mul_i32 s%d, s%d, 168' % (sW2, sCB)); p('s_add_u32 s%d, s%d, s%d' % (sW2, sW2, sT2)); p('s_lshl_b32 s%d, s%d, 11' % (sW2, sW2))
    p('s_add_u32 s%d, s%d, %d' % (sW2, sW2, WS_W2F))
    p('s_lshr_b32 s%d, s%d, 1' % (sT0, sT2)); p('s_lshl_b32 s%d, 0x000f000f, s%d' % (sPMASK, sT0))
    p('s_lshl_b32 s%d, s%d, 11' % (sT0, sT2)); p('s_add_u32 s%d, s%d, s%d' % (sW2S, sW2, sT0))
    p('s_lshl_b32 s%d, s%d, 10' % (sT0, sT2)); p('s_add_u32 s%d, s%d, s%d' % (sH0S, sH0, sT0))
    p('v_and_b32 v%d, 16, v%d' % (vT0, vL)); p('v_lshlrev_b32 v%d, 3, v%d' % (vT0, vT0))
    p('v_and_b32 v%d, 15, v%d' % (vT1, vL)); p('v_lshl_add_u32 v%d, v%d, 3, v%d' % (vT0, vT1, vT0))
    p('s_lshl_b32 s%d, s%d, 7' % (sT2, sRT0)); p('s_add_u32 s%d, s%d, %d' % (sT2, sT2, WS_FL))
    p('v_add_u32 v%d, s%d, v%d' % (vFA, sT2, vT0))
    A0, A1, Q0, Q1 = TMP + 8, TMP + 9, TMP + 10, TMP + 11
    for a in (A0, A1, Q0, Q1): p('v_mov_b32 v%d, 0' % a)
    for j in range(1, OPT['xup'] + 1):
        for g in x_dma(j): p.extend(g)
        if j == 2 and OPT['gpf'] == 2: p.extend(gpf.ins)
    stamp(p, 'first')
    lam = Prog()
    LT = F1 + 8
    lam_from(lam, TMP + 0, TMP + 1, TMP + 2, L1r, L1i, LT, LT + 1)
    lam('v_sub_f32 v%d, 0, v%d' % (N1i, L1i))
    cmul(lam, L2r, L2i, L1r, L1i, L1r, L1i)
    cmul(lam, L3r, L3i, L2r, L2i, L1r, L1i)
    cmul(lam, L4r, L4i, L2r, L2i, L2r, L2i)
    cmul(lam, LT, LT + 1, L4r, L4i, L4r, L4i)
    cmul(lam, LT + 2, LT + 3, LT, LT + 1, LT, LT + 1)
    cmul(lam, L32r, L32i, LT + 2, LT + 3, LT + 2, LT + 3)
    cmul(lam, LT, LT + 1, L32r, L32i, L32r, L32i)
    cmul(lam, L128r, L128i, LT, LT + 1, LT, LT + 1)
    cmul(lam, L256r, L256i, L128r, L128i, L128r, L128i)
    tagp = Prog()
    tag_setup(tagp, TMP + 28)
    tagp('s_lshr_b32 s%d, s%d, 1' % (sT5, sCB)); tagp('s_lshl_b32 s%d, s%d, 8' % (sT5, sT5))
    tagp('s_lshl_b32 s%d, s%d, 7' % (sPS, sCB)); tagp('s_add_u32 s%d, s%d, 4096' % (sPS, sPS)); tagp('s_sub_u32 s%d, s%d, s%d' % (sPS, sPS, sT5))
    tagp('s_add_u32 s%d, s%d, %d' % (sT5, sT5, WS_PF))
    tagp('v_lshl_add_u32 v%d, v%d, 3, s%d' % (vPF, vP, sT5))
    tagp('s_mul_i32 s%d, s%d, 7' % (sT5, sW)); tagp('s_lshl_b32 s%d, 0x7f, s%d' % (sPM2, sT5))

    def x_read(q, j, slot):
        for i in range(4):
            q('ds_read_b128 %s, v%d offset:%d' % (v4(X + 16 * j + 4 * i), vRX[i], slot * 4096), tok=('xr', j))
    def x_stats(q, j):
        q.waitlgkm(('xr', j))
        for k in range(16):
            r_ = X + 16 * j + k
            q('v_dot2c_f32_bf16 v%d, s%d, v%d' % (A0 if k % 2 == 0 else A1, sONE, r_))
            q('v_dot2c_f32_bf16 v%d, v%d, v%d' % (Q0 if k % 2 == 0 else Q1, r_, r_))
    q = Prog()
    q.waitvm(('x', 0)); stamp(q, 'x0in'); x_read(q, 0, 0)
    for j in range(1, 6):
        q.waitvm(('x', j)); x_read(q, j, j)
        x_stats(q, j - 1)
    q('v_add_u32 v%d, s%d, v%d' % (vT0, sLW, vL16))
    for rg in range(4):
        q('ds_write_b128 v%d, %s offset:%d' % (vT0, v4(F0 + 4 * rg), rg * 1024))
    x_read(q, 6, 0)
    x_stats(q, 5)
    x_stats(q, 6)
    x6 = [G('buffer_load_dwordx4 %s, v%d, %s, s%d offen offset:%d' % (v4(F0 + 4 * rg), vXO[rg], srd(SX), KB[6], rg * 1024)) for rg in range(4)]
    vm = []
    for j in range(OPT['xup'] + 1, 6): vm += x_dma(j)
    NS = OPT.get('ns', 4)
    vm += x6 + share[NSH:] + ([gpf.ins] if OPT['gpf'] == 3 else []) + ssm_rest[:NS]
    st, left = weave(q.ins, vm, OPT.get('perx', 44))
    assert not left, len(left)
    p.extend(st)
    stamp(p, 'x_in')
    w1k = Prog()
    for j in range(7): w1k('s_mul_i32 s%d, s%d, 1792' % (W1K[j], KB[j]))
    dma = []
    for dt in range(2):
        for j in range(7 if dt == 0 else 5):
            for e in range(2):
                l_off = (0 if dt == 0 else 14336 - 128) + 2 * j * 1024
                dma.append((G('s_add_u32 m0, s%d, %d' % (sLW, l_off)) if e == 0 else []) + G(
                    'buffer_load_dwordx4 v%d, %s, s%d offen offset:%d lds' % (vW1O[e], srd(SW1), W1K[j], 128 * dt + 1024 * e), tok='ffnA' if dt == 0 else 'ffnB'))
    q = Prog()
    q('v_add_f32 v%d, v%d, v%d' % (A0, A0, A1)); q('v_add_f32 v%d, v%d, v%d' % (Q0, Q0, Q1))
    q('v_mov_b32 v%d, v%d' % (A1, A0)); q('v_mov_b32 v%d, v%d' % (Q1, Q0))
    q('v_permlane32_swap_b32 v%d, v%d' % (A0, A1)); q('v_permlane32_swap_b32 v%d, v%d' % (Q0, Q1))
    q('v_add_f32 v%d, v%d, v%d' % (A0, A0, A1)); q('v_add_f32 v%d, v%d, v%d' % (Q0, Q0, Q1))
    q('v_mul_f32 v%d, 0x3b124925, v%d' % (A0, A0))
    q('v_mul_f32 v%d, 0x3b124925, v%d' % (Q0, Q0))
    q('v_fma_f32 v%d, -v%d, v%d, v%d' % (Q0, A0, A0, Q0))
    q('v_max_f32 v%d, 0, v%d' % (Q0, Q0))
    bf16_round(q, vM, A0)
    bf16_round(q, Q0, Q0)
    q('v_add_f32 v%d, 0x3727c5ac, v%d' % (Q0, Q0))
    bf16_round(q, Q0, Q0)
    q('v_sqrt_f32 v%d, v%d' % (Q0, Q0))
    bf16_round(q, vS, Q0)
    q('v_rcp_f32 v%d, v%d' % (vRSv, vS))
    q('s_lshl_b32 s%d, s%d, 7' % (sT3, sW))
    q('v_lshl_add_u32 v%d, v%d, 2, s%d' % (vT0, vP, sT3))
    q('v_mul_f32 v%d, 0x%x, v%d' % (vNK, NLOG2E, vRSv))
    q('ds_write_b32 v%d, v%d offset:%d' % (vT0, vRSv, L_RS))
    q('v_lshlrev_b32 v%d, 1, v%d' % (vT0, vT0))
    q('v_mov_b32 v%d, v%d' % (TMP + 12, vM)); q('v_mov_b32 v%d, v%d' % (TMP + 13, vRSv))
    q('ds_write_b64 v%d, v[%d:%d] offset:%d' % (vT0, TMP + 12, TMP + 13, L_MR))
    q('s_sub_u32 s%d, %d, s%d' % (sT4, L_SW, sLW))
    for i in range(4): q('v_add_u32 v%d, s%d, v%d' % (vRX[i], sT4, vRX[i]))
    if OPT['stamps']: q('v_mov_b32 v%d, 0' % vRSv)

    def d_step(ks, mode=0):
        z = Prog()
        if mode == 1:
            for k in range(4):
                z('v_dot2_f32_bf16 v%d, v%d, s%d, v%d' % (TMP + 8 + 2 * k, X + 4 * ks + k, sSELL, vNM))
                z('v_dot2_f32_bf16 v%d, v%d, s%d, v%d' % (TMP + 9 + 2 * k, X + 4 * ks + k, sSELH, vNM))
            for k in range(4):
                z('v_cvt_pk_bf16_f32 v%d, v%d, v%d' % (X + 4 * ks + k, TMP + 8 + 2 * k, TMP + 9 + 2 * k))
            return z.ins
        if mode == 2:
            for k in range(4):
                r_ = X + 4 * ks + k; lo = TMP + 8 + 2 * (k % 2)
                z('v_lshlrev_b32 v%d, 16, v%d' % (lo, r_))
                z('v_and_b32 v%d, s%d, v%d' % (lo + 1, sMHI, r_))
                z('v_pk_add_f32 v[%d:%d], v[%d:%d], v[%d:%d] op_sel_hi:[1,0]' % (lo, lo + 1, lo, lo + 1, vNM, vNM + 1))
                z('v_cvt_pk_bf16_f32 v%d, v%d, v%d' % (r_, lo, lo + 1))
            return z.ins
        for k in range(4):
            r_ = X + 4 * ks + k; lo, hi = TMP + 8 + 2 * (k % 2), TMP + 9 + 2 * (k % 2)
            z('v_lshlrev_b32 v%d, 16, v%d' % (lo, r_))
            z('v_and_b32 v%d, s%d, v%d' % (hi, sMHI, r_))
            z('v_sub_f32 v%d, v%d, v%d' % (lo, lo, vM))
            z('v_sub_f32 v%d, v%d, v%d' % (hi, hi, vM))
            z('v_cvt_pk_bf16_f32 v%d, v%d, v%d' % (r_, lo, hi))
        return z.ins
    LEAD = OPT['lead']
    q('v_sub_f32 v%d, 0, v%d' % (vNM, vM))
    q('s_mov_b32 s%d, 0x3f80' % sSELL); q('s_mov_b32 s%d, 0x3f800000' % sSELH)
    for ks in range(LEAD): q.extend(d_step(ks, 1 if OPT['dot'] else 0))
    q.extend(tagp.ins)
    stamp(q, 'lead')
    q.waitvm('ssmw')
    stamp(q, 'Win')
    q('s_barrier')
    stamp(q, 'B1')
    def wbuf(n): return WB + 4 * (n % 8)
    def ssm_read(n):
        ks, T = n // 2, n % 2
        return G('ds_read_b128 %s, v%d offset:%d' % (v4(wbuf(n)), vRX[ks % 4], T * 28672 + (ks // 4) * 4096), tok=('wf', n))
    PRE = 6
    for n in range(PRE): q.extend(ssm_read(n))
    groups = []
    for ks in range(28):
        z = Prog()
        z.waitlgkm(('wf', 2 * ks + 1))
        for T in range(2):
            n = 2 * ks + T; acc = SRE if T == 0 else SIM
            z('v_mfma_f32_32x32x16_bf16 %s, %s, %s, %s' % (v16(acc), v4(X + 4 * ks), v4(wbuf(n)), '0' if ks == 0 else v16(acc)))
            if n + PRE < 56: z.extend(ssm_read(n + PRE))
            groups.append(z.ins); z = Prog()
    fill = []
    for ks in range(LEAD, 28): fill += d_step(ks, 2 if OPT['pk'] else 0)
    fill = fill + lam.ins
    k = 0
    span = OPT.get('span', 54)
    for n, g in enumerate(groups):
        q.extend(g)
        tgt = min(len(fill), (len(fill) * (n + 1)) // span)
        q.extend(fill[k:tgt]); k = tgt
    done = set(range(X, X + 4 * LEAD))
    for i in q.ins:
        if i.op == 'v_cvt_pk_bf16_f32' and X <= i.wr[0][1] < X + 112: done.add(i.wr[0][1])
        if i.kind == 'mfma': assert all(r[1] in done for r in i.rd if r[0] == 'v' and X <= r[1] < X + 112), i.text
    RSF = TMP + 8
    q('v_lshl_add_u32 v%d, v%d, 4, s%d' % (vT0, vH, sT3))
    for g in range(4):
        q('ds_read_b128 %s, v%d offset:%d' % (v4(RSF + 4 * g), vT0, L_RS + 32 * g))
    def pf(T):
        if T < 4: return 'buffer_load_dwordx2 v[%d:%d], v%d, %s, 0 offen offset:%d sc1' % (FR, FR + 1, vPF, srd(SWS), 1024 * T)
        return 'buffer_load_dwordx2 v[%d:%d], v%d, %s, s%d offen sc1' % (FR, FR + 1, vPF, srd(SWS), sPS)
    w2_regs = {}
    w2_state = {'last': None}
    def w2_load(idx, reg):
        if idx < 56: base, off = sW2, ((idx // 14) * 28 + (idx % 14) // 2) * 2048 + (idx % 2) * 1024
        else: base, off = sW2S, (112 + (idx - 56) // 2) * 2048 + (idx % 2) * 1024
        z = Prog()
        key = (base, off - off % 4096)
        if w2_state['last'] != key:
            z('s_add_u32 s%d, s%d, %d' % (sT5, base, off - off % 4096)); w2_state['last'] = key
        if isinstance(reg, tuple):
            mk = (reg[1], reg[2] - off % 4096 + 4096)
            if w2_state.get('m0') != mk:
                z('s_add_u32 m0, s%d, %d' % mk); w2_state['m0'] = mk
            z('buffer_load_dwordx4 v%d, %s, s%d offen offset:%d sc1 lds' % (vL16, srd(SWS), sT5, off % 4096), tok=('w2', idx))
        else:
            z('buffer_load_dwordx4 %s, v%d, %s, s%d offen offset:%d sc1' % (v4(reg), vL16, srd(SWS), sT5, off % 4096), tok=('w2', idx))
        w2_regs[idx] = reg
        return z.ins
    def w2_dest(i):
        if i < 56: return 256 + 4 * i
        if i < 61: return ('lds', sLT, (i - 56) * 1024)
        return ('lds', sLA, (i - 61) * 1024)
    NW2 = 75 if OPT['ldsw2'] else 56
    w2q = []
    for T in range(5):
        lo, hi_ = 14 * T, (14 * T + 14 if T < 4 else NW2)
        if lo >= hi_: break
        w2q.append(poll_check('p%d' % T, ('s%d' % sPM2) if T < 4 else '0x7f7f', pf(T)))
        for i in range(lo, hi_):
            g = w2_load(i, w2_dest(i))
            if i == 61: g = [Ins('; need B4')] + g
            w2q.append(g)
            if i == lo + 1 and T < 4: w2q.append(G(pf(T + 1)))
    w2i = NW2
    dmaA, dmaB = dma[:14], dma[14:]
    vm = ssm_rest[NS:] + [w1k.ins + dmaA[0]] + dmaA[1:] + w1g + dmaB
    w2q[0] = [Ins('; at %d' % OPT['tc'])] + w2q[0]
    if OPT['w2early']: vm += w2q
    st, carry = weave(q.ins, vm, OPT['per'], 0, OPT['perd'], events=[(OPT['tp'], G(pf(0)))])
    kt = [k for k, i in enumerate(st) if i.text.startswith('v_lshl_add_u32 v%d' % vPF)][0]
    kp = [k for k, i in enumerate(st) if i.text == pf(0)][0]
    assert kt < kp
    if carry and carry[0][0].text.startswith('; at'): carry[0] = carry[0][1:]
    if not OPT['w2early']: carry += w2q
    assert not any(x.tok in ('ffnA', 'ssmw') for g in carry for x in g)
    pos_b = [k for k, i in enumerate(st) if i.kind == 'barrier'][0]
    assert not any(i.tok == 'ssmw' for i in st[pos_b:]), 'SSM DMA after B1'
    p.extend(st)
    stamp(p, 'ssmend')
    p.waitvm('ffnA')
    stamp(p, 'Ain')
    p('s_waitcnt lgkmcnt(0)')
    p('s_barrier')
    stamp(p, 'B2')
    p('s_lshl_b32 s%d, s%d, 13' % (sT4, sC)); p('s_add_u32 s%d, s%d, %d' % (sT4, sT4, WS_EG))
    p('s_add_u32 s%d, s6, s%d' % (SEG, sT4)); p('s_addc_u32 s%d, s7, 0' % (SEG + 1))
    p('s_mov_b32 s%d, 8192' % (SEG + 2)); p('s_mov_b32 s%d, 0x20000' % (SEG + 3))
    p('s_lshl_b32 s%d, s%d, 12' % (sT2, sW))
    p('s_mul_i32 s%d, s%d, 5120' % (sLT, sW)); p('s_add_u32 s%d, s%d, %d' % (sLT, sLT, L_WT - 4096))
    p('s_sub_u32 s%d, s%d, 4096' % (sLA, sLW))
    tail_dma = []
    for j in (5, 6):
        for e in range(2):
            tail_dma.append((G('s_add_u32 m0, s%d, %d' % (sT2, L_SW - 128 + 2 * (j - 5) * 1024)) if e == 0 else []) + G(
                'buffer_load_dwordx4 v%d, %s, s%d offen offset:%d lds' % (vW1O[e], srd(SW1), W1K[j], 128 + 1024 * e), tok='ffnB'))

    def ffn_read(T, ks, n):
        dt, tt = T // 2, T % 2
        j, i = ks // 4, ks % 4
        if dt == 0: U = i * L_XW + 2 * j * 1024
        elif j <= 4: U = i * L_XW + 14336 + 2 * j * 1024
        else: U = L_SW - L0 + i * 4096 + 2 * (j - 5) * 1024
        z = Prog()
        for hh in range(2):
            off = U + hh * 512; win = 0
            if off >= 65536: off -= 65536; win = 1
            z('ds_read_b64_tr_b16 %s, v%d offset:%d' % (v2(wbuf(n) + 2 * hh), vRF[tt][win], off), tok=('wf', n))
        return z.ins
    def silu(T):
        acc = F0 if T % 2 == 0 else F1
        z = Prog()
        tp = [vT0, vT1, vT2, vBO]
        for b in range(0, 16, 4):
            for k in range(4): z('v_mul_f32 v%d, v%d, v%d' % (tp[k], vNK, acc + b + k))
            for k in range(4): z('v_exp_f32 v%d, v%d' % (tp[k], tp[k]))
            for k in range(4): z('v_fma_f32 v%d, v%d, v%d, v%d' % (tp[k], tp[k], vS, vS))
            for k in range(4): z('v_rcp_f32 v%d, v%d' % (tp[k], tp[k]))
            for k in range(4): z('v_mul_f32 v%d, v%d, v%d' % (acc + b + k, acc + b + k, tp[k]))
            z('v_cvt_pk_bf16_f32 v%d, v%d, v%d' % (acc + b // 2, acc + b, acc + b + 1))
            z('v_cvt_pk_bf16_f32 v%d, v%d, v%d' % (acc + b // 2 + 1, acc + b + 2, acc + b + 3))
            if b == 4:
                z('s_add_u32 s%d, s%d, %d' % (sT2, sHW, T * 28 * 1024))
                z('buffer_store_dwordx4 %s, v%d, %s, s%d offen%s' % (v4(acc), vL16, srd(SWS), sT2, HSC), tok=('hs', T))
        z('buffer_store_dwordx4 %s, v%d, %s, s%d offen offset:1024%s' % (v4(acc + 4), vL16, srd(SWS), sT2, HSC), tok=('hs', T))
        return z.ins
    E0r, E0i, E1r, E1i = vXO[0], vXO[1], vXO[2], vXO[3]
    def scan1():
        z = Prog()
        for g in range(4):
            for i in range(4):
                z('v_mul_f32 v%d, v%d, v%d' % (SRE + 4 * g + i, RSF + 4 * g + i, SRE + 4 * g + i))
                z('v_mul_f32 v%d, v%d, v%d' % (SIM + 4 * g + i, RSF + 4 * g + i, SIM + 4 * g + i))
        for i in range(1, 4):
            for g in range(4):
                a, b = SRE + 4 * g + i, SIM + 4 * g + i
                z('v_fmac_f32 v%d, v%d, v%d' % (a, L1r, a - 1))
                z('v_fmac_f32 v%d, v%d, v%d' % (b, L1r, b - 1))
                z('v_fmac_f32 v%d, v%d, v%d' % (a, N1i, b - 1))
                z('v_fmac_f32 v%d, v%d, v%d' % (b, L1i, a - 1))
        for g in range(4):
            b = RSF + 4 * g
            z('v_mov_b32 v%d, v%d' % (b, SRE + 4 * g + 3)); z('v_mov_b32 v%d, v%d' % (b + 1, SRE + 4 * g + 3))
            z('v_mov_b32 v%d, v%d' % (b + 2, SIM + 4 * g + 3)); z('v_mov_b32 v%d, v%d' % (b + 3, SIM + 4 * g + 3))
        for g in range(4):
            b = RSF + 4 * g
            z('v_permlane32_swap_b32 v%d, v%d' % (b, b + 1)); z('v_permlane32_swap_b32 v%d, v%d' % (b + 2, b + 3))
        cur = (RSF, RSF + 2); nxt = [(E0r, E0i), (E1r, E1i)]
        for s in range(1, 8):
            g, h = s // 2, s % 2
            er, ei = RSF + 4 * g + h, RSF + 4 * g + 2 + h
            d = nxt[s % 2]
            z('v_fma_f32 v%d, v%d, v%d, v%d' % (d[0], L4r, cur[0], er))
            z('v_fma_f32 v%d, v%d, v%d, v%d' % (d[1], L4r, cur[1], ei))
            z('v_fma_f32 v%d, -v%d, v%d, v%d' % (d[0], L4i, cur[1], d[0]))
            z('v_fmac_f32 v%d, v%d, v%d' % (d[1], L4i, cur[0]))
            cur = d
        z('s_lshl_b32 s%d, s%d, 8' % (sT4, sW))
        z('v_lshl_add_u32 v%d, v%d, 3, s%d' % (vT0, vP, sT4))
        z('ds_write_b64 v%d, v[%d:%d] offset:%d' % (vT0, E1r, E1i, L_EW), tok='ew')
        return z.ins
    def fl_load(stage): return 'buffer_load_dwordx2 v[%d:%d], v%d, %s, s%d offen sc1' % (FR2, FR2 + 1, vFA, srd(SWS), sT6)
    def fl_issue(stage): return G('s_mov_b32 s%d, %d' % (sT6, stage * 8192), fl_load(stage))
    n0 = 56
    seq = [(T, ks) for T in range(4) for ks in range(28)]
    for m in range(PRE): p.extend(ffn_read(seq[m][0], seq[m][1], n0 + m))
    EWR = TMP + 0
    LB = X
    lbp = Prog()
    lbp('s_sub_u32 s%d, s%d, 1' % (sT0, sR)); lbp('s_lshl_b32 s%d, s%d, 9' % (sT0, sT0))
    lbp('v_lshlrev_b32 v%d, 9, v%d' % (vRX[1], vH))
    lbp('v_sub_u32 v%d, s%d, v%d' % (vRX[1], sT0, vRX[1]))
    lbp('v_lshl_add_u32 v%d, v%d, 4, v%d' % (vRX[0], vP, vRX[1]))
    lb_groups = []
    for m in range(8):
        z = Prog()
        if m: z('v_subrev_u32 v%d, %d, v%d' % (vRX[1], 1024 * m, vRX[0]))
        z('buffer_load_dwordx4 %s, v%d, %s, 0 offen sc1' % (v4(LB + 4 * m), vRX[1] if m else vRX[0], srd(SEG)))
        lb_groups.append(z.ins)
    lb_text = '\n'.join(i.text for g in lb_groups for i in g)
    pool = []
    hid_regs = {}
    hstate = {0: None, 1: None}
    def hid_load(idx):
        rt = idx % 2
        if idx < 56: base, off = (sH0, sH1)[rt], ((idx // 14) * 28 + (idx % 14) // 2) * 1024
        else: base, off = (sH0S, sH1S)[rt], (112 + (idx - 56) // 2) * 1024
        reg = pool.pop(0); hid_regs[idx] = reg
        sreg = sT3 if rt == 0 else sT4
        z = Prog()
        key = (base, off - off % 4096)
        if hstate[rt] != key:
            z('s_add_u32 s%d, s%d, %d' % (sreg, base, off - off % 4096)); hstate[rt] = key
        z('buffer_load_dwordx4 %s, v%d, %s, s%d offen offset:%d sc1' % (v4(reg), vL16, srd(SWS), sreg, off % 4096), tok=('hid', idx))
        return z.ins
    stage_of = lambda idx: min(idx // 14, 4)
    hi = 0
    checked = set()
    def hid_next():
        nonlocal hi
        assert stage_of(hi) in checked
        g = hid_load(hi); hi += 1
        return g
    def fl_check(st):
        checked.add(st)
        return poll_check('f%d' % st, 's%d' % sPMASK, fl_load(0), FR2)
    def split_at_need(vm):
        for k, g in enumerate(vm):
            if g and g[0].text == '; need B4': return vm[:k], vm[k:]
        return vm, []
    for T in range(4):
        groups = []
        acc = F0 if T % 2 == 0 else F1
        for ks in range(28):
            m = T * 28 + ks
            z = Prog()
            if ks % 2 == 0: z.waitlgkm(('wf', n0 + m + 1))
            z('v_mfma_f32_32x32x16_bf16 %s, %s, %s, %s' % (v16(acc), v4(wbuf(n0 + m)), v4(X + 4 * ks), '0' if ks == 0 else v16(acc)))
            if (T, ks) == (2, 0): z('s_barrier')
            if m + PRE < 112:
                z.extend(ffn_read(seq[m + PRE][0], seq[m + PRE][1], n0 + m + PRE))
            groups.append(z.ins)
        q = Prog()
        held = []; ev = []
        if T == 0:
            q.extend(groups[0]); q.extend(groups[1])
            q.extend(interleave(groups[2:], scan1()))
            nb = [g for g in carry if any(x.tok == 'ffnB' for x in g)]
            k = max([carry.index(g) for g in nb]) + 1 if nb else 0
            vm = carry[:k] + tail_dma + carry[k:]
        elif T == 1:
            pre = Prog()
            GE = vXO[0]
            pre('v_fma_f32 v%d, v%d, v%d, v%d' % (vT0, L32r, EWR, EWR + 2)); pre('v_fma_f32 v%d, v%d, v%d, v%d' % (vT1, L32r, EWR + 1, EWR + 3))
            pre('v_fma_f32 v%d, -v%d, v%d, v%d' % (vT0, L32i, EWR + 1, vT0)); pre('v_fmac_f32 v%d, v%d, v%d' % (vT1, L32i, EWR))
            pre('v_fma_f32 v%d, v%d, v%d, v%d' % (vT2, L32r, vT0, EWR + 4)); pre('v_fma_f32 v%d, v%d, v%d, v%d' % (vT3, L32r, vT1, EWR + 5))
            pre('v_fma_f32 v%d, -v%d, v%d, v%d' % (vT2, L32i, vT1, vT2)); pre('v_fmac_f32 v%d, v%d, v%d' % (vT3, L32i, vT0))
            pre('v_fma_f32 v%d, v%d, v%d, v%d' % (GE, L32r, vT2, EWR + 6)); pre('v_fma_f32 v%d, v%d, v%d, v%d' % (GE + 1, L32r, vT3, EWR + 7))
            pre('v_fma_f32 v%d, -v%d, v%d, v%d' % (GE, L32i, vT3, GE)); pre('v_fmac_f32 v%d, v%d, v%d' % (GE + 1, L32i, vT2))
            pre('v_mov_b32 v%d, s%d' % (GE + 2, sTL)); pre('v_mov_b32 v%d, s%d' % (GE + 3, sTH))
            pre('s_lshl_b32 s%d, s%d, 3' % (sT4, sW)); pre('s_lshl_b32 s%d, 0xff, s%d' % (sT4, sT4))
            pre('s_lshl_b32 s%d, s%d, 9' % (sT0, sR))
            egs = G('s_mov_b32 exec_lo, s%d' % sT4, 's_mov_b32 exec_hi, 0',
                    'buffer_store_dwordx4 %s, v%d, %s, s%d offen sc1' % (v4(GE), vL16, srd(SEG), sT0), 's_mov_b64 exec, -1')
            q.extend(interleave(groups[:5], pre.ins)); q.extend(egs)
            q.extend(interleave(groups[5:OPT['send'] + 1], silu(0)))
            for g in groups[OPT['send'] + 1:]: q.extend(g)
            vm = carry
        else:
            q.extend(groups[0]); q.extend(groups[1]); q.extend(groups[2])
            q.extend(interleave(groups[3:OPT['send']], silu(T - 1)))
            for g in groups[OPT['send']:]: q.extend(g)
            if T == 2:
                vm = carry; ev = [(OPT['tf'], flag_group(sFW, 0, ('hs', 0)))]
            else:
                lbs = [[Ins('; after 9')] + lbp.ins + lb_groups[0] + lb_groups[1] + lb_groups[2] + lb_groups[3], lb_groups[4] + lb_groups[5] + lb_groups[6] + lb_groups[7]]
                for g in lbs:
                    for x in g: x.text = x.text
                vm = carry
                ev = [(420, lbs[0][1:]), (520, lbs[1]), (OPT['tf'], flag_group(sFW, 8192, ('hs', 1))), (OPT['tp0'], fl_issue(0))]
        if T < 2: vm, held = split_at_need(vm)
        st, carry = weave(q.ins, vm, OPT['per'], 60 if T == 2 else 0, OPT['perd'], small=(SEG,), events=ev)
        carry += held
        if T == 3:
            mf = [k for k, i in enumerate(st) if i.kind == 'mfma']
            pos_l = [k for k, i in enumerate(st) if i.kind == 'vload' and 's[%d:%d]' % (SEG, SEG + 3) in i.text]
            assert len(pos_l) == 8 and pos_l[0] > mf[7], (pos_l, mf[7])
            pos_h = [k for k, i in enumerate(st) if isinstance(i.tok, tuple) and i.tok[0] == 'hid']
            assert not pos_h or pos_h[0] > mf[11]
        p.extend(st)
        if T == 0:
            assert not any(x.tok == 'ffnB' for g in carry for x in g)
            p.waitlgkm('ew'); p.waitvm('ffnB')
            p('s_barrier')
            p('v_lshlrev_b32 v%d, 3, v%d' % (vT0, vP))
            for k in range(4): p('ds_read_b64 v[%d:%d], v%d offset:%d' % (EWR + 2 * k, EWR + 2 * k + 1, vT0, L_EW + 256 * k))
        stamp(p, 'T%d' % T)
        print('after T%d: %d groups pending' % (T, len(carry)))
    pool += [WB + 4 * k for k in range(8)] + [F0 + 4 * k for k in range(4)] + [X + 32 + 4 * k for k in range(4)]
    p('s_add_u32 s%d, s%d, %d' % (sH1S, sH0S, 168 * 1024))

    q = Prog()
    s3 = silu(3)
    q.extend(s3)
    stamp(q, 'silu3')
    def lb_check(z, lab_bad):
        z('v_add3_u32 v%d, v%d, v%d, v%d' % (vT0, LB + 2, LB + 6, LB + 10)); z('v_add3_u32 v%d, v%d, v%d, v%d' % (vT1, LB + 3, LB + 7, LB + 11))
        z('v_add3_u32 v%d, v%d, v%d, v%d' % (vT0, vT0, LB + 14, LB + 18)); z('v_add3_u32 v%d, v%d, v%d, v%d' % (vT1, vT1, LB + 15, LB + 19))
        z('v_add3_u32 v%d, v%d, v%d, v%d' % (vT0, vT0, LB + 22, LB + 26)); z('v_add3_u32 v%d, v%d, v%d, v%d' % (vT1, vT1, LB + 23, LB + 27))
        z('v_add_u32 v%d, v%d, v%d' % (vT0, vT0, LB + 30)); z('v_add_u32 v%d, v%d, v%d' % (vT1, vT1, LB + 31))
        k0 = len(z.ins)
        z('v_cmp_ne_u32 vcc, v%d, v%d' % (vT0, vT2))
        z('v_cmp_ne_u32 s[%d:%d], v%d, v%d' % (sP0, sP0 + 1, vT1, vT3))
        z('s_nop 1')
        z('s_or_b64 vcc, vcc, s[%d:%d]' % (sP0, sP0 + 1))
        z('s_cbranch_scc1 %s' % lab_bad)
        for i in z.ins[k0:]: i.note = 'glue'
    q('v_sub_u32 v%d, s%d, v%d' % (vT3, sR, vH)); q('v_add_u32 v%d, 1, v%d' % (vT3, vT3)); q('v_lshrrev_b32 v%d, 1, v%d' % (vT3, vT3))
    q('v_mul_lo_u32 v%d, s%d, v%d' % (vT2, sTL, vT3)); q('v_mul_lo_u32 v%d, s%d, v%d' % (vT3, sTH, vT3))
    lb_check(q, 'L_retry_lb')
    q('L_ok_lb:')
    stamp(q, 'lbok')
    z = Prog()
    z('L_retry_lb:'); z('s_mov_b32 s%d, 0' % sSPIN); z('L_loop_lb:'); z('s_sleep 1'); z(lb_text); z('s_waitcnt vmcnt(0)')
    if OPT['stamps']: z('v_add_u32 v%d, 0x100, v%d' % (vRSv, vRSv))
    z('s_add_u32 s%d, s%d, 1' % (sSPIN, sSPIN)); z('s_cmp_gt_u32 s%d, %d' % (sSPIN, OPT['spin'])); z('s_cbranch_scc1 L_ok_lb')
    lb_check(z, 'L_loop_lb'); z('s_branch L_ok_lb')
    retry_blocks.append(z)
    for m in range(6, -1, -1):
        cmac(q, LB + 4 * m, LB + 4 * m + 1, L256r, L256i, LB + 4 * m + 4, LB + 4 * m + 5)
    q('v_mov_b32 v%d, v%d' % (LB + 4, LB)); q('v_mov_b32 v%d, v%d' % (LB + 5, LB + 1))
    q('v_permlane32_swap_b32 v%d, v%d' % (LB, LB + 4)); q('v_permlane32_swap_b32 v%d, v%d' % (LB + 1, LB + 5))
    cmac(q, LB, LB + 1, L128r, L128i, LB + 4, LB + 5)
    cmac(q, EWR, EWR + 1, L32r, L32i, LB, LB + 1)
    cmac(q, EWR + 2, EWR + 3, L32r, L32i, EWR, EWR + 1)
    cmac(q, EWR + 4, EWR + 5, L32r, L32i, EWR + 2, EWR + 3)
    CS = LB + 8
    q('v_mov_b32 v%d, v%d' % (CS, LB)); q('v_mov_b32 v%d, v%d' % (CS + 1, LB + 1))
    for k in range(3):
        k0 = len(q.ins)
        q('s_cmp_eq_u32 s%d, %d' % (sW, k + 1)); q('s_cselect_b64 vcc, -1, 0')
        q('v_cndmask_b32 v%d, v%d, v%d, vcc' % (CS, CS, EWR + 2 * k))
        for i in q.ins[k0:]: i.note = 'glue'
        q('v_cndmask_b32 v%d, v%d, v%d, vcc' % (CS + 1, CS + 1, EWR + 2 * k + 1))
    for s in range(7):
        g, h = s // 2, s % 2
        er, ei = RSF + 4 * g + h, RSF + 4 * g + 2 + h
        d, cur = CS + 2 * (s + 1), CS + 2 * s
        q('v_fma_f32 v%d, v%d, v%d, v%d' % (d, L4r, cur, er))
        q('v_fma_f32 v%d, v%d, v%d, v%d' % (d + 1, L4r, cur + 1, ei))
        q('v_fma_f32 v%d, -v%d, v%d, v%d' % (d, L4i, cur + 1, d))
        q('v_fmac_f32 v%d, v%d, v%d' % (d + 1, L4i, cur))
    k0 = len(q.ins)
    q('s_mov_b32 vcc_lo, 0'); q('s_mov_b32 vcc_hi, -1')
    for g in range(4):
        a = CS + 4 * g
        q('v_cndmask_b32 v%d, v%d, v%d, vcc' % (a, a, a + 2))
        q('v_cndmask_b32 v%d, v%d, v%d, vcc' % (a + 1, a + 1, a + 3))
    for i in q.ins[k0:-1]: i.note = 'glue'
    for g in range(4):
        a = CS + 4 * g
        q('v_sub_f32 v%d, 0, v%d' % (a + 2, a + 1))
    stamp(q, 'carry')
    q.extend(epilogue_loads())
    PW = [(L1r, L1i), (L2r, L2i), (L3r, L3i), (L4r, L4i)]
    for g in range(4):
        a = CS + 4 * g
        for i in range(4):
            ur, ui = SRE + 4 * g + i, SIM + 4 * g + i
            q('v_fmac_f32 v%d, v%d, v%d' % (ur, PW[i][0], a))
            q('v_fmac_f32 v%d, v%d, v%d' % (ui, PW[i][0], a + 1))
            q('v_fmac_f32 v%d, v%d, v%d' % (ur, PW[i][1], a + 2))
            q('v_fmac_f32 v%d, v%d, v%d' % (ui, PW[i][1], a))
        for comp, base in ((0, SRE), (1, SIM)):
            b = base + 4 * g
            q('v_cvt_pk_bf16_f32 v%d, v%d, v%d' % (b, b, b + 1))
            q('v_cvt_pk_bf16_f32 v%d, v%d, v%d' % (b + 1, b + 2, b + 3))
            q('ds_write_b64 v%d, v[%d:%d] offset:%d' % (vTW, b, b + 1, comp * 2304 + 16 * g))
    stamp(q, 'fix')
    HS = F1
    for comp in range(2):
        for q_ in range(2):
            for hh in range(2):
                q('ds_read_b64_tr_b16 %s, v%d offset:%d' % (v2(HS + 8 * comp + 4 * q_ + 2 * hh), vTRr, comp * 2304 + (16 * q_ + 4 * hh) * 72))
    q('s_lshl_b32 s%d, s%d, 11' % (sT2, sC)); q('s_add_u32 s%d, s%d, s%d' % (sT2, sT2, sHW)); q('s_add_u32 s%d, s%d, %d' % (sT2, sT2, 112 * 1024))
    for _ in range(10): q('; pad')
    for f in range(4):
        q('buffer_store_dwordx4 %s, v%d, %s, s%d offen offset:%d%s' % (v4(HS + 4 * f), vL16, srd(SWS), sT2, f * 1024, HSC), tok='hsC')
    vm = carry[:5] + [[Ins('; at %d' % OPT['tc0'])] + fl_check(0)] + [hid_next() for _ in range(14)] + carry[5:]
    ev = [(OPT['tp1'], fl_issue(1)), (OPT['tf2'], flag_group(sFW, 2 * 8192, ('hs', 2)))]
    q.ins = [i for i in q.ins if not i.text.startswith('; mark')]
    st, left = weave(q.ins, vm, OPT['perh'], events=ev)
    k0 = [k for k, i in enumerate(st) if i.text == 'L_ok_f0:'][0]; k1 = [k for k, i in enumerate(st) if i.text.startswith('s_mov_b32 s%d, 8192' % sT6)][0]
    assert k0 < k1
    p.extend(st)
    pool += [F1 + 4 * k for k in range(4)] + [SRE + 4 * k for k in range(8)] + [204 + 4 * k for k in range(5)]
    fillr = epilogue_pre()
    ACC = {(0, 0): X + 48, (0, 1): X + 64, (1, 0): X + 80, (1, 1): X + 96}
    fk = 0
    when = {}
    p('v_add_u32 v%d, s%d, v%d' % (vFA2, sLT, vL16)); p('v_add_u32 v%d, s%d, v%d' % (vFA3, sLA, vL16))
    pstep = {OPT['p2']: 2, OPT['p3']: 3, OPT['p4']: 4}
    cstep = {OPT['c1']: 1, OPT['p2'] + OPT['pd']: 2, OPT['p3'] + OPT['pd']: 3, OPT['p4'] + OPT['pd']: 4}
    real_p = p
    for step in range(42):
        if step in (0, 7, 14, 21, 28, 35) or OPT.get('allg'): stamp(real_p, 'g%d' % step)
        side = []
        while any((isinstance(x.tok, tuple) and x.tok[0] == 'hid') or 's_mov_b32 s%d' % sT6 in x.text for g in left for x in g):
            (real_p.extend if step == 0 else side.append)(left.pop(0))
        if step == OPT['f3']: side.append(flag_group(sFW, 3 * 8192, ('hs', 3)))
        if step == OPT['f4']: side.append(flag_group(sFW, 4 * 8192, 'hsC'))
        if step in cstep: side.append(fl_check(cstep[step]))
        if step in pstep:
            assert pstep[step] - 1 in checked
            side.append(fl_issue(pstep[step]))
        nh = 0
        while hi < 84 and hi < 2 * step + 4 + OPT['ahead'] and pool and stage_of(hi) in checked and nh < OPT.get('maxh', 4): side.append(hid_next()); nh += 1
        for rep in range(2):
            if rep == 1 and len(left) + 84 - w2i <= max(0, 30 - step): break
            if left: side.append(left.pop(0))
            elif w2i < 84 and len(pool) > 2 and step >= OPT.get('w2s', 2) and nh < 3:
                reg = pool.pop(0); side.append(w2_load(w2i, reg)); w2i += 1
        if step == OPT.get('b5', 36): side.append(G('s_barrier'))
        for i in (2 * step + 4, 2 * step + 5):
            if i < 84 and isinstance(w2_regs.get(i), tuple):
                d = w2_regs[i]; reg = pool.pop(0)
                z = Prog(); z.waitvm(('w2', i))
                z('ds_read_b128 %s, v%d offset:%d' % (v4(reg), vFA2 if d[1] == sLT else vFA3, d[2] + 4096))
                side.append(z.ins)
                w2_regs[i] = reg
        w0, w1_ = w2_regs[2 * step], w2_regs[2 * step + 1]
        h0, h1 = hid_regs[2 * step], hid_regs[2 * step + 1]
        em = set(x.tok for x in p.ins if isinstance(x.tok, tuple))
        for t in (('w2', 2 * step), ('w2', 2 * step + 1), ('hid', 2 * step), ('hid', 2 * step + 1)): assert t in em, t
        k = 0
        for n, (ct, rt) in enumerate(((0, 0), (0, 1), (1, 0), (1, 1))):
            a = ACC[(ct, rt)]
            p('v_mfma_f32_32x32x16_bf16 %s, %s, %s, %s' % (v16(a), v4((w0, w1_)[ct]), v4((h0, h1)[rt]), '0' if step == 0 else v16(a)))
            tgt = (len(side) * (n + 1) + 3) // 4
            c = 0
            for g in side[k:tgt]: p.extend(g); c += sum(cost(x) for x in g)
            k = tgt
            while step >= OPT.get('fs', 1) and fk < len(fillr) and (c < OPT.get('fb', 36) or fillr[fk - 1].note == 'glue'):
                i = fillr[fk]; fk += 1
                c += cost(i)
                p.ins.append(i)
        pool += [w0, w1_, h0, h1]
    assert fk == len(fillr) and w2i == 84 and not left, (fk, len(fillr), w2i, len(left))
    print('G2 marks', when)
    stamp(p, 'g2end')
    epilogue(p, ACC)

EX, ED, ST, DD = TMP + 0, TMP + 8, TMP + 10, TMP + 18
EB, ET, PWA, PRA, vOO, PRB = X + 0, X + 16, X + 24, X + 28, X + 30, X + 22
sXO, sOO = 38, 39
def epilogue_loads():
    p = Prog()
    p('v_lshrrev_b32 v%d, 4, v%d' % (vT0, vL)); p('v_and_b32 v%d, 15, v%d' % (vT1, vL))
    p('v_mul_u32_u24 v%d, 896, v%d' % (vT2, vT0)); p('v_lshl_add_u32 v%d, v%d, 3, v%d' % (vT2, vT1, vT2))
    p('s_lshl_b32 s%d, s%d, 5' % (sXO, sRT0)); p('s_lshl_b32 s%d, s%d, 4' % (sT1, sW)); p('s_add_u32 s%d, s%d, s%d' % (sXO, sXO, sT1))
    p('s_mul_i32 s%d, s%d, 896' % (sXO, sXO)); p('s_lshl_b32 s%d, s%d, 7' % (sT1, sCB)); p('s_add_u32 s%d, s%d, s%d' % (sXO, sXO, sT1))
    p('s_add_u32 s%d, s%d, %d' % (sT0, sXO, 8 * 896))
    for it in range(4):
        p('buffer_load_dwordx2 v[%d:%d], v%d, %s, s%d offen offset:%d' % (EX + 2 * it, EX + 2 * it + 1, vT2, srd(SX), sXO if it < 2 else sT0, (it % 2) * 4 * 896))
    p('v_lshlrev_b32 v%d, 3, v%d' % (vT3, vT1))
    p('buffer_load_dwordx2 v[%d:%d], v%d, %s, s%d offen' % (ED, ED + 1, vT3, srd(SDSK), sT1))
    p('s_lshl_b32 s%d, s%d, 9' % (sT1, sHALF)); p('s_lshl_b32 s%d, s%d, 7' % (sT0, sW)); p('s_add_u32 s%d, s%d, s%d' % (sT1, sT1, sT0))
    p('v_lshl_add_u32 v%d, v%d, 3, s%d' % (vT3, vT0, sT1))
    for it in range(4):
        p('ds_read_b64 v[%d:%d], v%d offset:%d' % (ST + 2 * it, ST + 2 * it + 1, vT3, L_MR + 32 * it))
    return p.ins

def epilogue_pre():
    p = Prog()
    p('v_lshlrev_b32 v%d, 1, v%d' % (vOO, vT2))
    p('s_lshl_b32 s%d, s%d, 1' % (sOO, sXO))
    p('v_and_b32 v%d, 7, v%d' % (PWA, vP)); p('v_xor_b32 v%d, v%d, v%d' % (PWA, PWA, vH)); p('v_lshlrev_b32 v%d, 4, v%d' % (PWA, PWA))
    p('v_lshl_add_u32 v%d, v%d, 8, v%d' % (PWA, vP, PWA))
    p('v_add_u32 v%d, s%d, v%d' % (PWA, sLW, PWA))
    for g in range(1, 4): p('v_xor_b32 v%d, %d, v%d' % (PWA + g, g << 5, PWA))
    p('v_xor_b32 v%d, v%d, v%d' % (PRA, vT1, vT0)); p('v_lshlrev_b32 v%d, 4, v%d' % (PRA, PRA))
    p('v_lshl_add_u32 v%d, v%d, 8, v%d' % (PRA, vT0, PRA))
    p('s_lshl_b32 s%d, s%d, 12' % (sT1, sW)); p('s_add_u32 s%d, s%d, %d' % (sT1, sT1, L0)); p('v_add_u32 v%d, s%d, v%d' % (PRA, sT1, PRA))
    p('v_xor_b32 v%d, 64, v%d' % (PRA + 1, PRA)); p('v_add_u32 v%d, 1024, v%d' % (PRA + 1, PRA + 1))
    p('v_add_u32 v%d, %d, v%d' % (PRB, 3 * L_XW, PRA)); p('v_add_u32 v%d, %d, v%d' % (PRB + 1, 3 * L_XW, PRA + 1))
    D = DD; T = ET
    p('v_lshlrev_b32 v%d, 16, v%d' % (D, ED)); p('v_and_b32 v%d, s%d, v%d' % (D + 1, sMHI, ED))
    p('v_lshlrev_b32 v%d, 16, v%d' % (D + 2, ED + 1)); p('v_and_b32 v%d, s%d, v%d' % (D + 3, sMHI, ED + 1))
    for it in range(4):
        b = EB + 4 * it; m, rs = ST + 2 * it, ST + 2 * it + 1
        p('v_lshlrev_b32 v%d, 16, v%d' % (b, EX + 2 * it)); p('v_and_b32 v%d, s%d, v%d' % (b + 1, sMHI, EX + 2 * it))
        p('v_lshlrev_b32 v%d, 16, v%d' % (b + 2, EX + 2 * it + 1)); p('v_and_b32 v%d, s%d, v%d' % (b + 3, sMHI, EX + 2 * it + 1))
        for k in range(4): p('v_sub_f32 v%d, v%d, v%d' % (T + k, b + k, m))
        def rnd():
            p('v_cvt_pk_bf16_f32 v%d, v%d, v%d' % (T + 4, T, T + 1)); p('v_cvt_pk_bf16_f32 v%d, v%d, v%d' % (T + 5, T + 2, T + 3))
            p('v_lshlrev_b32 v%d, 16, v%d' % (T, T + 4)); p('v_and_b32 v%d, s%d, v%d' % (T + 1, sMHI, T + 4))
            p('v_lshlrev_b32 v%d, 16, v%d' % (T + 2, T + 5)); p('v_and_b32 v%d, s%d, v%d' % (T + 3, sMHI, T + 5))
        rnd()
        for k in range(4): p('v_mul_f32 v%d, v%d, v%d' % (T + k, T + k, rs))
        rnd()
        for k in range(4): p('v_mul_f32 v%d, v%d, v%d' % (T + k, T + k, D + k))
        rnd()
        for k in range(4): p('v_add_f32 v%d, v%d, v%d' % (b + k, b + k, T + k))
    return p.ins

def epilogue(p, ACC):
    for rt in range(2):
        for ct in range(2):
            for g in range(4):
                p('ds_write_b128 v%d, %s offset:%d' % (PWA + g, v4(ACC[(ct, rt)] + 4 * g), rt * 8192 + ct * 128))
    p('s_waitcnt lgkmcnt(0)')
    p('s_barrier')
    R = 128
    for it in range(4):
        for P in range(4):
            p('ds_read_b128 %s, v%d offset:%d' % (v4(R + 16 * it + 4 * P), (PRA if P < 3 else PRB) + (it & 1), (P % 3) * L_XW + (it >> 1) * 2048))
    for it in range(4):
        b = EB + 4 * it; r_ = R + 16 * it
        p('v_pk_add_f32 v[%d:%d], v[%d:%d], v[%d:%d]' % (r_, r_ + 1, r_, r_ + 1, r_ + 4, r_ + 5))
        p('v_pk_add_f32 v[%d:%d], v[%d:%d], v[%d:%d]' % (r_ + 2, r_ + 3, r_ + 2, r_ + 3, r_ + 6, r_ + 7))
        p('v_pk_add_f32 v[%d:%d], v[%d:%d], v[%d:%d]' % (r_ + 8, r_ + 9, r_ + 8, r_ + 9, r_ + 12, r_ + 13))
        p('v_pk_add_f32 v[%d:%d], v[%d:%d], v[%d:%d]' % (r_ + 10, r_ + 11, r_ + 10, r_ + 11, r_ + 14, r_ + 15))
        p('v_pk_add_f32 v[%d:%d], v[%d:%d], v[%d:%d]' % (b, b + 1, b, b + 1, r_, r_ + 1))
        p('v_pk_add_f32 v[%d:%d], v[%d:%d], v[%d:%d]' % (b + 2, b + 3, b + 2, b + 3, r_ + 2, r_ + 3))
        p('v_pk_add_f32 v[%d:%d], v[%d:%d], v[%d:%d]' % (b, b + 1, b, b + 1, r_ + 8, r_ + 9))
        p('v_pk_add_f32 v[%d:%d], v[%d:%d], v[%d:%d]' % (b + 2, b + 3, b + 2, b + 3, r_ + 10, r_ + 11))
        p('s_add_u32 s%d, s%d, %d' % (sT2, sOO, it * 4 * 1792))
        p('buffer_store_dwordx4 %s, v%d, %s, s%d offen%s' % (v4(b), vOO, srd(SOUT), sT2, ['', ' sc1', ' nt', ' sc0 sc1', ' sc1 nt'][OPT.get('ost', 0)]))
    if OPT['stamps']:
        stamp(p, 'end')
        p('v_readlane_b32 s%d, v%d, 0' % (sT0, vRSv)); p('s_nop 3'); p('v_writelane_b32 v%d, s%d, 60' % (vDUM, sT0))
        p('s_memrealtime s[%d:%d]' % (sP0, sP0 + 1)); p('s_load_dwordx2 s[36:37], s[0:1], 104'); p('s_waitcnt lgkmcnt(0)')
        p('v_writelane_b32 v%d, s%d, 63' % (vDUM, sP0))
        if OPT.get('amp', -1) >= 0:
            p('s_lshl_b32 s%d, s2, 2' % sT0); p('s_add_u32 s%d, s%d, s%d' % (sT0, sT0, sW)); p('s_cmp_lg_u32 s%d, %d' % (sT0, OPT['dbgwave']))
            p('s_cbranch_scc1 L_noamp')
            p('v_readlane_b32 s%d, v%d, %d' % (sT0, vDUM, OPT['amp'])); p('v_readlane_b32 s%d, v%d, %d' % (sT1, vDUM, OPT.get('amp0', 61)))
            p('s_nop 3')
            p('s_sub_u32 s%d, s%d, s%d' % (sT0, sT0, sT1)); p('s_mul_i32 s%d, s%d, %d' % (sT0, sT0, OPT.get('ampk', 4)))
            p('s_min_u32 s%d, s%d, 400000' % (sT0, sT0))
            p('s_memtime s[84:85]'); p('s_waitcnt lgkmcnt(0)')
            p('L_amp:')
            p('s_memtime s[86:87]'); p('s_waitcnt lgkmcnt(0)')
            p('s_sub_u32 s%d, s86, s84' % sT1); p('s_cmp_lt_u32 s%d, s%d' % (sT1, sT0)); p('s_cbranch_scc1 L_amp')
            p('L_noamp:')
        if OPT['dbg']:
            mk_srd(p, 84, 36, 256)
            p('v_readlane_b32 s%d, v%d, 61' % (sT1, vDUM))
            p('s_lshl_b32 s%d, s2, 2' % sT0); p('s_add_u32 s%d, s%d, s%d' % (sT0, sT0, sW)); p('s_cmp_lg_u32 s%d, %d' % (sT0, OPT['dbgwave']))
            p('s_cbranch_scc1 L_nodbg')
            p('v_subrev_u32 v%d, s%d, v%d' % (vT0, sT1, vDUM))
            p('v_lshlrev_b32 v%d, 2, v%d' % (vT1, vL))
            p('s_mov_b64 exec, 0xffff')
            p('buffer_store_dword v%d, v%d, s[84:87], 0 offen' % (vT0, vT1))
            p('s_mov_b64 exec, -1')
            p('L_nodbg:')
        p('s_lshl_b32 s%d, s2, 2' % sT0); p('s_add_u32 s%d, s%d, s%d' % (sT0, sT0, sW)); p('s_lshl_b32 s%d, s%d, 8' % (sT0, sT0))
        p('s_add_u32 s%d, s%d, %d' % (sT0, sT0, WS_STAMP))
        p('v_lshlrev_b32 v%d, 2, v%d' % (vT0, vL))
        p('buffer_store_dword v%d, v%d, %s, s%d offen' % (vDUM, vT0, srd(SWS), sT0))
    p('s_cmp_eq_u32 s%d, 15' % sR); p('s_cbranch_scc0 L_exit')
    p('s_cmp_eq_u32 s%d, 13' % sC); p('s_cbranch_scc0 L_exit')
    p('s_cmp_eq_u32 s%d, 3' % sW); p('s_cbranch_scc0 L_exit')
    p('s_mov_b32 s%d, %d' % (sT0, WS_EPOCH))
    p.extend(flag_group(sT0, 0))
    p('s_endpgm')

def pstamp(p, k):
    if not OPT['stamps']: return
    p('s_memtime s[90:91]'); p('s_waitcnt lgkmcnt(0)'); p('v_writelane_b32 v%d, s90, %d' % (vDUM, k))

def prep_path(p):
    SW2, SCRE, SCIM = 44, 48, 52
    sQ, sKF, sF0, sKS, sT0T, sCBK, sCTG, sFF = 8, 84, 85, 86, 87, 88, 89, 92
    p('L_prep:')
    p.reset()
    p('s_lshl_b32 s%d, s%d, 2' % (sQ, sT0)); p('s_add_u32 s%d, s%d, s%d' % (sQ, sQ, sT1)); p('s_sub_u32 s%d, s%d, 28' % (sQ, sQ))
    p('s_cmp_ge_u32 s%d, 28' % sQ); p('s_cbranch_scc1 L_exit')
    p('s_lshr_b32 s%d, s%d, 1' % (sF0, sQ)); p('s_lshl_b32 s%d, s%d, 7' % (sF0, sF0))
    p('s_and_b32 s%d, s%d, 1' % (sT0, sQ)); p('s_lshl_b32 s%d, s%d, 4' % (sT0, sT0)); p('s_add_u32 s%d, s%d, s%d' % (sF0, sF0, sT0))
    p('s_mul_i32 s%d, s%d, 896' % (sF0, sF0))
    p('s_lshl_b32 s%d, s%d, 2' % (sT0T, sW)); p('s_min_u32 s%d, s%d, 10' % (sT0T, sT0T))
    p('s_lshl_b32 s%d, s%d, 6' % (sT0, sT0T)); p('s_add_u32 s%d, s%d, s%d' % (sF0, sF0, sT0))
    p('s_mul_i32 s%d, s%d, 26624' % (sLW, sW))
    vWO = 21
    p('v_lshrrev_b32 v%d, 4, v%d' % (vWO, vL)); p('v_mul_u32_u24 v%d, 896, v%d' % (vWO, vWO))
    p('v_and_b32 v%d, 15, v%d' % (vT2, vL)); p('v_lshl_add_u32 v%d, v%d, 4, v%d' % (vWO, vT2, vWO))
    p('s_lshl_b32 s%d, s%d, 2' % (sKF, sQ)); p('s_add_u32 s%d, s%d, s%d' % (sKF, sKF, sW))
    p('s_mul_i32 s%d, s%d, 4682' % (sCBK, sKF)); p('s_lshr_b32 s%d, s%d, 16' % (sCBK, sCBK))
    p('s_mul_i32 s%d, s%d, 14' % (sT0, sCBK)); p('s_sub_u32 s%d, s%d, s%d' % (sCTG, sKF, sT0))
    p('s_waitcnt lgkmcnt(0)')
    mk_srd(p, SW2, 38, 1792 * 896)
    def w2dma(T):
        for i in range(4):
            p('s_add_u32 m0, s%d, %d' % (sLW, T * 4096 + i * 1024)); p('s_add_u32 s%d, s%d, %d' % (sT0, sF0, T * 28672 + i * 3584))
            p('buffer_load_dwordx4 v%d, %s, s%d offen lds' % (vWO, srd(SW2), sT0), tok=('w2', T))
    w2dma(0)
    mk_srd(p, SWS, 6, WS_END)
    p('buffer_load_dwordx2 v[%d:%d], v%d, %s, 0 offen sc1' % (TMP + 28, TMP + 29, vZ, srd(SWS)))
    if not OPT.get('pdelay'): w2dma(1)
    mk_srd(p, SLRE, 18, 896); mk_srd(p, SLIM, 20, 896); mk_srd(p, SLDT, 30, 896)
    p('v_lshlrev_b32 v%d, 1, v%d' % (vT2, vL)); p('s_lshl_b32 s%d, s%d, 7' % (sT1, sCBK))
    p('buffer_load_ushort v%d, v%d, %s, s%d offen' % (TMP + 0, vT2, srd(SLRE), sT1))
    p('buffer_load_ushort v%d, v%d, %s, s%d offen' % (TMP + 1, vT2, srd(SLIM), sT1))
    p('buffer_load_ushort v%d, v%d, %s, s%d offen' % (TMP + 2, vT2, srd(SLDT), sT1))
    if not OPT.get('pdelay'): w2dma(2)
    mk_srd(p, SCRE, 26, 448 * 896); mk_srd(p, SCIM, 28, 448 * 896)
    vA = 16
    p('v_lshrrev_b32 v%d, 2, v%d' % (vA, vL)); p('v_and_b32 v%d, 3, v%d' % (vA, vA))
    p('v_lshl_add_u32 v%d, v%d, 2, v%d' % (vA, vH, vA)); p('v_lshlrev_b32 v%d, 8, v%d' % (vA, vA))
    p('v_and_b32 v%d, 16, v%d' % (vT2, vL)); p('v_lshl_add_u32 v%d, v%d, 1, v%d' % (vA, vT2, vA))
    p('v_and_b32 v%d, 3, v%d' % (vT2, vL)); p('v_lshl_add_u32 v%d, v%d, 3, v%d' % (vA, vT2, vA))
    p('v_add_u32 v%d, s%d, v%d' % (vA, sLW, vA))
    vC = [17, 18, 19, 20]
    p('v_lshrrev_b32 v%d, 1, v%d' % (vT2, vP)); p('v_and_b32 v%d, 7, v%d' % (vT2, vT2))
    p('v_xor_b32 v%d, v%d, v%d' % (vT2, vT2, vH)); p('v_lshlrev_b32 v%d, 4, v%d' % (vT2, vT2))
    p('v_lshl_add_u32 v%d, v%d, 7, v%d' % (vT2, vP, vT2))
    p('v_add_u32 v%d, s%d, v%d' % (vC[0], sLW, vT2))
    for i in range(1, 4): p('v_xor_b32 v%d, %d, v%d' % (vC[i], i << 5, vC[0]))
    p('s_lshr_b32 s%d, s%d, 1' % (sKS, sT0T)); p('s_mul_i32 s%d, s%d, 168' % (sKS, sKS)); p('s_add_u32 s%d, s%d, s%d' % (sKS, sKS, sQ))
    p('s_lshl_b32 s%d, s%d, 11' % (sKS, sKS)); p('s_add_u32 s%d, s%d, %d' % (sKS, sKS, WS_W2F))
    p('s_lshl_b32 s%d, s%d, 5' % (sFF, sW)); p('s_add_u32 s%d, s%d, s%d' % (sFF, sFF, sQ)); p('s_lshl_b32 s%d, s%d, 3' % (sFF, sFF))
    p('s_mul_i32 s%d, s%d, %d' % (sT2, sCTG, 32 * 896)); p('s_add_u32 s%d, s%d, s%d' % (sT2, sT2, sT1))
    pstamp(p, 0)
    FRG = 64
    def stage(T):
        p.waitvm(('w2', T))
        for ct4 in range(4):
            for hh in range(2):
                p('ds_read_b64_tr_b16 %s, v%d offset:%d' % (v2(FRG + 16 * T + 4 * ct4 + 2 * hh), vA, T * 4096 + hh * 2048 + ct4 * 64))
        for ct4 in range(4):
            if ct4 % 2 == 0: p('s_add_u32 s%d, s%d, %d' % (sT0, sKS, ((ct4 // 2) * 168 + 28 * T) * 2048))
            p('buffer_store_dwordx4 %s, v%d, %s, s%d offen offset:%d sc1' % (v4(FRG + 16 * T + 4 * ct4), vL16, srd(SWS), sT0, (ct4 % 2) * 1024), tok=('fst', T))
    if OPT.get('pdelay'):
        p.waitvm(('w2', 0)); w2dma(1); w2dma(2)
    stage(0)
    pstamp(p, 1)
    if OPT.get('pdelay'):
        tag_setup(p, TMP + 28)
        w2dma(3)
        p.extend(flag_group(sFF, WS_PF, ('fst', 0)))
        pstamp(p, 2)
    stage(1)
    stage(2)
    if not OPT.get('pdelay'):
        tag_setup(p, TMP + 28)
        w2dma(3)
    for comp in range(2):
        for rg in range(4):
            p('s_add_u32 m0, s%d, %d' % (sLW, 16384 + comp * 4096 + rg * 1024))
            p('s_add_u32 s%d, s%d, %d' % (sT0, sT2, rg * 7168))
            p('buffer_load_dwordx4 v%d, %s, s%d offen lds' % (vT0 if rg % 2 == 0 else vT1, srd(SCRE if comp == 0 else SCIM), sT0), tok='c')
        if comp == 0 and not OPT.get('pdelay'):
            p.extend(flag_group(sFF, WS_PF, ('fst', 0)))
            pstamp(p, 2)
    p.extend(flag_group(sFF, WS_PF + 1024, ('fst', 1)))
    p.extend(flag_group(sFF, WS_PF + 2048, ('fst', 2)))
    lr, li = TMP + 6, TMP + 7
    lam_from(p, TMP + 0, TMP + 1, TMP + 2, lr, li, TMP + 4, TMP + 5)
    p('v_add_f32 v%d, -1.0, v%d' % (lr, lr))
    p('v_mul_f32 v%d, v%d, v%d' % (TMP + 4, TMP + 0, TMP + 0)); p('v_fmac_f32 v%d, v%d, v%d' % (TMP + 4, TMP + 1, TMP + 1))
    p('v_rcp_f32 v%d, v%d' % (TMP + 4, TMP + 4))
    p('v_mul_f32 v%d, v%d, v%d' % (TMP + 8, lr, TMP + 0)); p('v_fmac_f32 v%d, v%d, v%d' % (TMP + 8, li, TMP + 1))
    p('v_add_f32 v%d, v%d, v%d' % (TMP + 4, TMP + 4, TMP + 4))
    p('v_mul_f32 v%d, v%d, v%d' % (TMP + 9, li, TMP + 0)); p('v_fma_f32 v%d, -v%d, v%d, v%d' % (TMP + 9, lr, TMP + 1, TMP + 9))
    p('v_mul_f32 v%d, v%d, v%d' % (TMP + 8, TMP + 8, TMP + 4)); p('v_mul_f32 v%d, v%d, v%d' % (TMP + 9, TMP + 9, TMP + 4))
    p('v_lshl_add_u32 v%d, v%d, 3, s%d' % (vT2, vL, sLW))
    p('ds_write_b64 v%d, v[%d:%d] offset:%d' % (vT2, TMP + 8, TMP + 9, 24576))
    p('v_lshl_add_u32 v%d, v%d, 6, s%d' % (vT2, vH, sLW))
    stage(3)
    p('s_lshl_b32 s%d, s%d, 3' % (sT0, sCBK)); p('s_add_u32 s%d, s%d, 112' % (sT0, sT0)); p('s_lshl_b32 s%d, s%d, 11' % (sKS, sT0))
    p('s_lshr_b32 s%d, s%d, 1' % (sT0, sCTG)); p('s_mul_i32 s%d, s%d, %d' % (sT0, sT0, 168 * 2048)); p('s_add_u32 s%d, s%d, s%d' % (sKS, sKS, sT0))
    p('s_and_b32 s%d, s%d, 1' % (sT0, sCTG)); p('s_lshl_b32 s%d, s%d, 10' % (sT0, sT0)); p('s_add_u32 s%d, s%d, s%d' % (sKS, sKS, sT0))
    p('s_add_u32 s%d, s%d, %d' % (sKS, sKS, WS_W2F))
    CR = 24; CF = 128; U = 56; O = 192
    p.waitvm('c')
    for g4 in range(4):
        p('ds_read_b128 %s, v%d offset:%d' % (v4(CR + 8 * g4), vC[g4], 16384))
        p('ds_read_b128 %s, v%d offset:%d' % (v4(CR + 8 * g4 + 4), vC[g4], 16384 + 4096))
        for k in range(4): p('ds_read_b128 %s, v%d offset:%d' % (v4(CF + 16 * g4 + 4 * k), vT2, 24576 + 128 * g4 + 16 * k))
        if g4 == 1: p('s_waitcnt lgkmcnt(6)')
    for g4 in range(4):
        cr, ci = CR + 8 * g4, CR + 8 * g4 + 4
        o = O + 8 * g4
        for k in range(4):
            a0, b0, a1, b1 = CF + 16 * g4 + 4 * k, CF + 16 * g4 + 4 * k + 1, CF + 16 * g4 + 4 * k + 2, CF + 16 * g4 + 4 * k + 3
            p('v_lshlrev_b32 v%d, 16, v%d' % (U, cr + k)); p('v_and_b32 v%d, s%d, v%d' % (U + 1, sMHI, cr + k))
            p('v_lshlrev_b32 v%d, 16, v%d' % (U + 2, ci + k)); p('v_and_b32 v%d, s%d, v%d' % (U + 3, sMHI, ci + k))
            p('v_mul_f32 v%d, v%d, v%d' % (U + 4, a0, U)); p('v_fma_f32 v%d, -v%d, v%d, v%d' % (U + 4, b0, U + 2, U + 4))
            p('v_mul_f32 v%d, v%d, v%d' % (U + 5, a1, U + 1)); p('v_fma_f32 v%d, -v%d, v%d, v%d' % (U + 5, b1, U + 3, U + 5))
            p('v_mul_f32 v%d, -v%d, v%d' % (U + 6, a0, U + 2)); p('v_fma_f32 v%d, -v%d, v%d, v%d' % (U + 6, b0, U, U + 6))
            p('v_mul_f32 v%d, -v%d, v%d' % (U + 7, a1, U + 3)); p('v_fma_f32 v%d, -v%d, v%d, v%d' % (U + 7, b1, U + 1, U + 7))
            p('v_cvt_pk_bf16_f32 v%d, v%d, v%d' % (o + k, U + 4, U + 5))
            p('v_cvt_pk_bf16_f32 v%d, v%d, v%d' % (o + 4 + k, U + 6, U + 7))
        if g4 == 1: p.extend(flag_group(sFF, WS_PF + 3072, ('fst', 3)))
    p('s_cmp_ge_u32 s%d, 98' % sKF); p('s_cbranch_scc1 L_prep_fin')
    for g4 in range(4):
        o = O + 8 * g4
        p('s_add_u32 s%d, s%d, %d' % (sT0, sKS, (4 * (g4 >> 1) + (g4 & 1)) * 2048))
        p('s_add_u32 s%d, s%d, 4096' % (sT1, sT0))
        p('buffer_store_dwordx4 %s, v%d, %s, s%d offen sc1' % (v4(o), vL16, srd(SWS), sT0))
        p('buffer_store_dwordx4 %s, v%d, %s, s%d offen sc1' % (v4(o + 4), vL16, srd(SWS), sT1))
    p('s_lshl_b32 s%d, s%d, 3' % (sT0, sCTG)); p('s_add_u32 s%d, s%d, s%d' % (sT0, sT0, sCBK)); p('s_lshl_b32 s%d, s%d, 3' % (sT0, sT0))
    p('s_waitcnt vmcnt(0)')
    p.extend(flag_group(sT0, WS_PF + 4096))
    p('L_prep_fin:')
    if OPT['stamps']:
        pstamp(p, 3)
        p('v_writelane_b32 v%d, s%d, 62' % (vDUM, SOUT)); p('v_writelane_b32 v%d, s%d, 61' % (vDUM, SOUT + 2))
        p('s_lshl_b32 s%d, s2, 2' % sT0); p('s_add_u32 s%d, s%d, s%d' % (sT0, sT0, sW)); p('s_lshl_b32 s%d, s%d, 8' % (sT0, sT0))
        p('s_add_u32 s%d, s%d, %d' % (sT0, sT0, WS_STAMP))
        p('v_lshlrev_b32 v%d, 2, v%d' % (vT0, vL))
        p('buffer_store_dword v%d, v%d, %s, s%d offen' % (vDUM, vT0, srd(SWS), sT0))
    p('L_exit:')
    p('s_endpgm')

HEADER = open('parallel_sum__ssm_conv_s5__dense_activation_silu__prompt.s.ref').read().split('; Override launch')[0]

def build():
    p = Prog()
    prologue_common(p)
    main_path(p)
    for q in retry_blocks:
        p.reset(); p.extend(q.ins)
    prep_path(p)
    if OPT.get('abl'):
        out = []; cnt = 0
        lo = stamp_slots.index(OPT.get('ablo', 'T0') if isinstance(OPT.get('ablo', 'T0'), str) else stamp_slots[OPT['ablo']]); hi_ = stamp_slots.index('T2') if 'abhi' not in OPT else OPT['abhi']
        inside = False
        for i in p.ins:
            if i.op == 'v_writelane_b32':
                k = int(i.text.split(',')[-1])
                if k == lo: inside = True
                if k == hi_: inside = False
                out.append(i); continue
            a = OPT['abl']
            if inside and (a & 64) and (i.kind in ('vload', 'dma', 'vstore', 'needvm') or (i.kind == 'branch' and 'retry' in i.text)): continue
            if inside and (a & 128) and i.kind == 'salu' and 'exec' not in i.text and 'vcc' not in i.text: continue
            if inside and i.note != 'glue' and (((a & 1) and i.kind in ('vload', 'dma') and 'dwordx4' in i.text and 'sc1' in i.text) or ((a & 2) and i.kind == 'trans') or ((a & 4) and i.kind == 'valu')
                           or ((a & 8) and i.kind == 'dsread') or ((a & 16) and i.kind == 'vstore' and 'dwordx4' in i.text) or ((a & 32) and i.kind == 'mfma')):
                continue
            out.append(i)
        p.ins = out
    ins = finalize(p)
    if OPT.get('wlo') is not None:
        out = []; inside = False; slot = 30
        for i in ins:
            if i.op == 'v_writelane_b32' and 's%d,' % sP0 in i.text:
                k = int(i.text.split(',')[-1])
                if k == OPT['wlo']: inside = True
                if k == OPT['whi']: inside = False
            if inside and i.kind in ('dma', 'vload', 'vstore') and OPT.get('wv'): OPT['wskip'] = OPT.get('wskip', 0) - 1
            if inside and slot < 59 and ((i.kind in ('dma', 'vload', 'vstore') and OPT.get('wskip', 0) < 0) if OPT.get('wv') else ((i.kind == 'wait' and 'vmcnt' in i.text) or i.kind == 'barrier')):
                out += [Ins('s_memtime s[62:63]')] if False else []
                out += [Ins('s_memtime s[64:65]'), i, Ins('s_memtime s[72:73]'), Ins('s_waitcnt lgkmcnt(0)'),
                        Ins('v_writelane_b32 v%d, s64, %d' % (vDUM, slot)), Ins('v_writelane_b32 v%d, s72, %d' % (vDUM, slot + 1))]
                print('W%d: %s' % (slot, i.text)); slot += 2
            else: out.append(i)
        ins = out
    ins = [i for i in ins if not i.text.startswith(('; pad', '; need', '; after', '; at'))]
    body = text_of(ins)
    s = HEADER
    s += '; @launch grid=(256,1,1) block=(256,1,1) lds=%d\n' % LDS_BYTES
    s += '.amdgcn_target "amdgcn-amd-amdhsa--gfx950"\n.text\n.globl %s\n.p2align 8\n.type %s,@function\n%s:\n' % (KNAME, KNAME, KNAME)
    s += body
    s += 'L_code_end:\n'
    s += '.section .rodata,"a"\n.p2align 6\n.amdhsa_kernel %s\n' % KNAME
    s += '  .amdhsa_next_free_vgpr 512\n  .amdhsa_next_free_sgpr 102\n  .amdhsa_accum_offset 256\n  .amdhsa_group_segment_fixed_size 0\n'
    s += '  .amdhsa_kernarg_size 120\n  .amdhsa_user_sgpr_count 2\n  .amdhsa_user_sgpr_kernarg_segment_ptr 1\n  .amdhsa_system_sgpr_workgroup_id_x 1\n'
    s += '  .amdhsa_float_denorm_mode_32 3\n'
    s += '.end_amdhsa_kernel\n'
    return s, ins

if __name__ == '__main__':
    s, ins = build()
    open(sys.argv[1], 'w').write(s)
    from collections import Counter
    c = Counter(i.kind for i in ins)
    print('instructions:', sum(v for k, v in c.items() if k != 'label'), dict(c))
    if OPT['stamps']: print('stamps:', ','.join(stamp_slots))
```

```python
import sys, os
sys.path.insert(0, os.path.dirname(os.path.abspath(__file__)))
from dsl import *

KNAME = 'parallel_sum__ssm_conv_s5__dense_activation_silu__prompt_kernel'
OPT = dict(stamps=0, rot=1, w1pf=0, cpf=1, spin=1 << 16, dbg=0, dbgwave=0, per=70, perd=72, lead=22, ahead=10, w2s=12, dot=1, pk=0, w2early=1, tlb=0, fillc=30, ldsw2=1, rotA=0, gpf=3, xup=5, ost=1, sshare=0, ns=0, perx=36, tp=2600, tc=5000, loc=0, send=24, p2=3, p3=9, p4=16, pd=6, f3=0, f4=7, c1=2, tf=900, tp0=1000, tc0=500, tp1=1300, tf2=1400, perh=80)
for a in sys.argv[2:]:
    k, v = a.split('='); OPT[k] = int(v)

HSC = '' if OPT.get('plain') else [' sc1', ' sc0 sc1'][OPT.get('hsc', 0)]
WS_EPOCH = 0
WS_PF    = 0xC000
WS_FL    = 0x2000
WS_EG    = 0x10000
WS_STAMP = 0x80000
WS_W2F   = 0x100000
WS_HID   = 0x400000
WS_END   = WS_HID + 64 * 168 * 1024
L0     = 8192
L_XW   = 24576
L_SW   = L0 + 98304
L_TR   = L0 + 114688
L_WT   = L_TR + 4 * 4608
L_RS   = 0
L_MR   = 512
L_EW   = 1536
LDS_BYTES = 163840
LOG2E = 0x3fb8aa3b
NLOG2E = 0xbfb8aa3b
INV2PI = 0x3e22f983

sR, sC, sW, sROT, sTL, sTH, sONE, sMHI = 8, 9, 10, 11, 12, 13, 14, 15
SX, SBRE, SBIM, SW1, SWS, SOUT, SLRE, SLIM, SLDT, SDSK, SCODE = 40, 44, 48, 52, 56, 60, 64, 68, 72, 76, 80
SEG = 44
KB = [84 + j for j in range(7)]
W1K = [91 + j for j in range(7)]
sT0, sT1, sLW, sT2 = 98, 99, 100, 101
BM0 = [64 + j for j in range(7)]
sHW, sCB, sHALF, sRT0, sPMASK, sW2, sH0, sH1, sSPIN, sFW = 16, 17, 18, 19, 20, 21, 22, 23, 24, 25
sT3, sT4, sT5, sT6 = 26, 27, 28, 29
sP0 = 30
sW2S, sH0S, sH1S, sHWS, sIDX, sM1 = 32, 33, 34, 35, 36, 37
RSO = [72 + j for j in range(4)] + [38, 39, 3]
def srd(b): return 's[%d:%d]' % (b, b + 3)
def v4(b): return ('v[%d:%d]' % (b, b + 3)) if b < 256 else ('a[%d:%d]' % (b - 256, b - 253))
def v2(b): return ('v[%d:%d]' % (b, b + 1)) if b < 256 else ('a[%d:%d]' % (b - 256, b - 255))
def v16(b): return 'v[%d:%d]' % (b, b + 15)

vL = 1; vL16 = 2; vT0, vT1, vT2, vT3 = 3, 4, 5, 6
vM, vS, vNK, vRSv = 7, 8, 9, 10
vZ = 11; vH = 12; vP = 13; vFA = 14; vDUM = 15
X = 16
SRE, SIM, F0, F1 = 128, 144, 160, 176
vXO = [192, 193, 194, 195]
vBO = 196
vW1O = [197, 198]
vRX = [199, 200, 201, 202]
vRF = [[203, 204], [205, 206]]
L1r, L1i, N1i, L2r, L2i, L3r, L3i, L4r, L4i, L32r, L32i, L128r, L128i, L256r, L256i = range(207, 222)
vTW, vTRr = 222, 223
vFA2, vFA3 = 201, 202
TMP = 224
WB = 256 + 224
FR = TMP + 26
FR2 = TMP + 24
TAGP = TMP + 30
vNM = TMP + 16
sSELL, sSELH = 70, 71
sPS, sPM2, sLT, sLA = 68, 69, 67, 66
sRS0, sRS1 = 82, 83
vPF = TMP + 28

def cost(i):
    if i.kind in ('label', 'needvm', 'needlgkm', 'reset'): return 0
    if i.kind in ('trans', 'mfma'): return 8
    if i.kind == 'nop': return 4 * i.width
    if i.kind in ('valu', 'dot', 'perm') and (i.op in ('v_fma_f32', 'v_cvt_pk_bf16_f32', 'v_lshl_add_u32', 'v_add3_u32', 'v_mul_lo_u32') or '0x' in i.text): return 5
    if i.kind in ('vload', 'vstore', 'dma'): return 8
    return 4

def weave(comp, groups, period, start=0, pdma=None, small=(), events=()):
    out = []; t = 0; pipe = 0; nxt = start; groups = list(groups); noins = 0
    pdma = pdma or period; nm = 0; events = sorted(events, key=lambda e: e[0])
    for i in comp:
        if i.kind == 'mfma':
            t = max(t, pipe); pipe = t + 32; nm += 1
        out.append(i); t += cost(i)
        if 'exec' in i.text and i.kind == 'salu':
            noins = 0 if i.text.endswith('exec, -1') else 1
        ok = not noins and not (i.kind == 'salu' and 'm0' in i.text) and i.kind not in ('needvm', 'needlgkm') and not getattr(i, 'note', None) == 'glue'
        if events and ok and t >= events[0][0]:
            g = events.pop(0)[1]; out.extend(g); t += sum(cost(x) for x in g); continue
        if groups and groups[0] and groups[0][0].text.startswith('; after') and nm < int(groups[0][0].text.split()[2]): continue
        if groups and groups[0] and groups[0][0].text.startswith('; at') and t < int(groups[0][0].text.split()[2]): continue
        if 'exec' in i.text and i.kind == 'salu':
            noins = 0 if i.text.endswith('exec, -1') else 1
        if groups and t >= nxt and not noins and not (i.kind == 'salu' and 'm0' in i.text) and i.kind not in ('needvm', 'needlgkm') and not getattr(i, 'note', None) == 'glue':
            g = groups.pop(0); out.extend(g); t += sum(cost(x) for x in g)
            nv = sum(1 for x in g if x.kind in ('dma', 'vload', 'vstore') and 'dwordx4' in x.text and not any('s[%d:%d]' % (b, b + 3) in x.text for b in small))
            pr = (period if any('sc1' in x.text for x in g) else pdma) * nv + (0 if nv else 40)
            nxt = max(nxt + pr, t - pr // 2)
    for e in events: out.extend(e[1])
    return out, groups

def G(*texts, tok=None):
    q = Prog()
    for t in texts: q(t, tok=tok)
    return q.ins

stamp_slots = []
def stamp(p, name):
    if not OPT['stamps']: return
    if OPT.get('rt') and name in ('issued0', 'first', 'x0in', 'Win', 'Ain', 'lbok', 'silu3', 'carry'): return
    if OPT.get('allg') and name in ('issued0', 'first', 'x0in', 'lead', 'Win', 'ssmend', 'Ain', 'lbok', 'T0', 'T1', 'T2', 'B1'): return
    k = len(stamp_slots); stamp_slots.append(name)
    p('s_memtime s[%d:%d]' % (sP0, sP0 + 1))
    if OPT.get('rt'): p('s_memrealtime s[64:65]')
    p('s_waitcnt lgkmcnt(0)')
    p('v_writelane_b32 v%d, s%d, %d' % (vDUM, sP0, k))
    if OPT.get('rt'): p('v_writelane_b32 v%d, s64, %d' % (vDUM, 30 + k))

def mk_srd(p, b, ptr, nbytes):
    p('s_mov_b32 s%d, s%d' % (b, ptr)); p('s_mov_b32 s%d, s%d' % (b + 1, ptr + 1))
    p('s_mov_b32 s%d, %d' % (b + 2, nbytes)); p('s_mov_b32 s%d, 0x20000' % (b + 3))

def bf16_round(p, dst, src):
    p('v_cvt_pk_bf16_f32 v%d, v%d, v%d' % (dst, src, src))
    p('v_lshlrev_b32 v%d, 16, v%d' % (dst, dst))

def lam_from(p, lre, lim, ldt, outr, outi, t0, t1):
    p('v_lshlrev_b32 v%d, 16, v%d' % (lre, lre))
    p('v_lshlrev_b32 v%d, 16, v%d' % (lim, lim))
    p('v_lshlrev_b32 v%d, 16, v%d' % (ldt, ldt))
    p('v_mul_f32 v%d, 0x%x, v%d' % (ldt, LOG2E, ldt))
    p('v_exp_f32 v%d, v%d' % (ldt, ldt))
    bf16_round(p, ldt, ldt)
    p('v_mul_f32 v%d, v%d, v%d' % (t0, ldt, lre))
    p('v_mul_f32 v%d, v%d, v%d' % (t1, ldt, lim))
    p('v_mul_f32 v%d, 0x%x, v%d' % (t0, LOG2E, t0))
    p('v_exp_f32 v%d, v%d' % (t0, t0))
    p('v_mul_f32 v%d, 0x%x, v%d' % (t1, INV2PI, t1))
    p('v_fract_f32 v%d, v%d' % (t1, t1))
    p('v_cos_f32 v%d, v%d' % (outr, t1))
    p('v_sin_f32 v%d, v%d' % (outi, t1))
    p('v_mul_f32 v%d, v%d, v%d' % (outr, t0, outr))
    p('v_mul_f32 v%d, v%d, v%d' % (outi, t0, outi))

def cmul(p, dr, di, ar, ai, br, bi):
    p('v_mul_f32 v%d, v%d, v%d' % (dr, ar, br))
    p('v_mul_f32 v%d, v%d, v%d' % (di, ar, bi))
    p('v_fma_f32 v%d, -v%d, v%d, v%d' % (dr, ai, bi, dr))
    p('v_fmac_f32 v%d, v%d, v%d' % (di, ai, br))

def cmac(p, dr, di, ar, ai, br, bi):
    p('v_fmac_f32 v%d, v%d, v%d' % (dr, ar, br))
    p('v_fmac_f32 v%d, v%d, v%d' % (di, ar, bi))
    p('v_fma_f32 v%d, -v%d, v%d, v%d' % (dr, ai, bi, dr))
    p('v_fmac_f32 v%d, v%d, v%d' % (di, ai, br))

def tag_setup(p, vlo):
    p('v_readfirstlane_b32 s%d, v%d' % (sTL, vlo))
    p('v_readfirstlane_b32 s%d, v%d' % (sTH, vlo + 1))
    p('s_mul_i32 s%d, s%d, 0x9e3779b1' % (sTL, sTL)); p('s_add_u32 s%d, s%d, 0x7f4a7c15' % (sTL, sTL))
    p('s_mul_i32 s%d, s%d, 0x85ebca6b' % (sTH, sTH)); p('s_add_u32 s%d, s%d, 0xc2b2ae35' % (sTH, sTH))
    p('v_mov_b32 v%d, s%d' % (TAGP, sTL)); p('v_mov_b32 v%d, s%d' % (TAGP + 1, sTH))

retry_blocks = []
def poll_check(name, mask, reload_text, FR=FR):
    p = Prog()
    p('v_cmp_ne_u32 vcc, s%d, v%d' % (sTL, FR))
    p('v_cmp_ne_u32 s[%d:%d], s%d, v%d' % (sP0, sP0 + 1, sTH, FR + 1))
    p('s_nop 1')
    p('s_or_b32 s%d, vcc_lo, s%d' % (sM1, sP0))
    p('s_and_b32 s%d, s%d, %s' % (sM1, sM1, mask))
    p('s_cbranch_scc1 L_retry_%s' % name)
    p('L_ok_%s:' % name)
    for i in p.ins: i.note = 'glue'
    q = Prog()
    q('L_retry_%s:' % name)
    q('s_mov_b32 s%d, 0' % sSPIN)
    q('L_loop_%s:' % name)
    q('s_sleep 1')
    q(reload_text)
    q('s_waitcnt vmcnt(0)')
    q('v_cmp_ne_u32 vcc, s%d, v%d' % (sTL, FR))
    q('v_cmp_ne_u32 s[%d:%d], s%d, v%d' % (sP0, sP0 + 1, sTH, FR + 1))
    q('s_add_u32 s%d, s%d, 1' % (sSPIN, sSPIN))
    if OPT['stamps']: q('v_add_u32 v%d, 1, v%d' % (vRSv, vRSv))
    q('s_cmp_gt_u32 s%d, %d' % (sSPIN, OPT['spin']))
    q('s_cbranch_scc1 L_ok_%s' % name)
    q('s_or_b32 s%d, vcc_lo, s%d' % (sM1, sP0))
    q('s_and_b32 s%d, s%d, %s' % (sM1, sM1, mask))
    q('s_cbranch_scc1 L_loop_%s' % name)
    q('s_branch L_ok_%s' % name)
    retry_blocks.append(q)
    return p.ins

def flag_group(base_s, add, waittok=None):
    q = Prog()
    if waittok is not None: q.waitvm(waittok)
    q('s_add_u32 s%d, s%d, %d' % (sM1, base_s, add))
    q('s_mov_b64 exec, 1')
    q('buffer_store_dwordx2 v[%d:%d], v%d, %s, s%d offen%s' % (TAGP, TAGP + 1, vZ, srd(SWS), sM1, HSC if base_s == sFW else ' sc1'))
    q('s_mov_b64 exec, -1')
    return q.ins

def prologue_common(p):
    p('s_cmp_ge_u32 s2, 256')
    p('s_cbranch_scc1 L_exit')
    p('s_load_dwordx16 s[16:31], s[0:1], 0')
    p('s_load_dwordx8 s[32:39], s[0:1], 64')
    p('s_load_dwordx2 s[4:5], s[0:1], 96')
    p('s_load_dwordx2 s[6:7], s[0:1], 112')
    if OPT['stamps']:
        p('s_memrealtime s[%d:%d]' % (SOUT, SOUT + 1))
        p('s_memtime s[%d:%d]' % (SOUT + 2, SOUT + 3))
    if OPT['cpf']:
        p('s_getpc_b64 s[%d:%d]' % (SCODE, SCODE + 1))
        p('L_pc:')
        p('v_lshrrev_b32 v%d, 5, v0' % vT1); p('v_and_b32 v%d, 6, v%d' % (vT1, vT1)); p('v_and_b32 v%d, 1, v0' % vT2)
        p('v_add_lshl_u32 v%d, v%d, v%d, 7' % (vT2, vT1, vT2))
        p('s_sub_u32 s%d, s%d, L_pc-%s' % (SCODE, SCODE, KNAME))
        p('s_subb_u32 s%d, s%d, 0' % (SCODE + 1, SCODE + 1))
        p('s_mov_b32 s%d, L_code_end-%s' % (SCODE + 2, KNAME))
        p('s_mov_b32 s%d, 0x20000' % (SCODE + 3))
        p('s_lshr_b32 s%d, s2, 3' % sT1); p('s_lshl_b32 s%d, s%d, 10' % (sT1, sT1))
        p('s_mov_b64 exec, 3')
        p('buffer_load_dword v%d, v%d, %s, s%d offen' % (F1, vT2, srd(SCODE), sT1), tok='cpf')
        p('s_mov_b64 exec, -1')
    p('v_lshrrev_b32 v%d, 6, v0' % vT0)
    p('v_and_b32 v%d, 63, v0' % vL)
    p('v_readfirstlane_b32 s%d, v%d' % (sW, vT0))
    p('v_lshlrev_b32 v%d, 4, v%d' % (vL16, vL))
    p('v_mov_b32 v%d, 0' % vZ)
    p('v_lshrrev_b32 v%d, 5, v%d' % (vH, vL))
    p('v_and_b32 v%d, 31, v%d' % (vP, vL))
    p('s_and_b32 s%d, s2, 7' % sT0)
    p('s_lshr_b32 s%d, s2, 3' % sT1)
    p('s_mov_b32 s%d, 0x3f803f80' % sONE)
    p('s_mov_b32 s%d, 0xffff0000' % sMHI)
    p('v_lshrrev_b32 v%d, 3, v%d' % (vT0, vL))
    p('v_mul_u32_u24 v%d, 896, v%d' % (vT0, vT0))
    p('v_lshrrev_b32 v%d, 4, v%d' % (vT1, vL))
    p('v_and_b32 v%d, 7, v%d' % (vT2, vL))
    p('v_xor_b32 v%d, v%d, v%d' % (vT1, vT1, vT2))
    p('v_lshl_add_u32 v%d, v%d, 4, v%d' % (vT0, vT1, vT0))
    p('v_xor_b32 v%d, 64, v%d' % (vT1, vT0))
    p('s_cmp_ge_u32 s%d, 28' % sT1)
    p('s_cbranch_scc1 L_prep')

def wrap7(p, dst, a, b_or_imm, tmp):
    p('s_add_u32 s%d, s%d, %s' % (dst, a, b_or_imm))
    p('s_cmp_ge_u32 s%d, 7' % dst)
    p('s_cselect_b32 s%d, 7, 0' % tmp)
    p('s_sub_u32 s%d, s%d, s%d' % (dst, dst, tmp))

def main_path(p):
    sXCD, sI7 = 78, 79
    p('s_mov_b32 s%d, s%d' % (sXCD, sT0)); p('s_mov_b32 s%d, s%d' % (sI7, sT1))
    if not OPT['loc']:
        p('s_mul_i32 s%d, s%d, 37' % (sT2, sT1)); p('s_lshr_b32 s%d, s%d, 8' % (sT2, sT2))
        p('s_mul_i32 s3, s%d, 7' % sT2); p('s_sub_u32 s%d, s%d, s3' % (sROT, sT1))
        p('s_lshr_b32 s%d, s%d, 1' % (sR, sT0)); p('s_lshl_b32 s%d, s%d, 2' % (sR, sR)); p('s_add_u32 s%d, s%d, s%d' % (sR, sR, sT2))
        p('s_and_b32 s%d, s%d, 1' % (sT0, sT0))
        p('s_mul_i32 s%d, s%d, 7' % (sC, sT0)); p('s_add_u32 s%d, s%d, s%d' % (sC, sC, sROT))
    else:
        p('s_cmp_ge_u32 s%d, 14' % sT1); p('s_cselect_b32 s%d, 1, 0' % sT2); p('s_cselect_b32 s3, 14, 0')
        p('s_sub_u32 s%d, s%d, s3' % (sC, sT1))
        p('s_lshl_b32 s%d, s%d, 1' % (sR, sT0)); p('s_add_u32 s%d, s%d, s%d' % (sR, sR, sT2))
        p('s_cmp_ge_u32 s%d, 7' % sC); p('s_cselect_b32 s%d, 1, 0' % sXCD); p('s_cselect_b32 s3, 7, 0')
        p('s_sub_u32 s%d, s%d, s3' % (sROT, sC))
        p('s_lshl_b32 s%d, s%d, 1' % (sT2, sT2))
    p('s_mul_i32 s%d, s%d, %d' % (sLW, sW, L_XW)); p('s_add_u32 s%d, s%d, %d' % (sLW, sLW, L0))
    p('s_lshl_b32 s%d, s%d, 7' % (KB[0], sROT)) if OPT['rot'] else p('s_mov_b32 s%d, 0' % KB[0])
    p('s_lshl_b32 s%d, s%d, 2' % (sT0, sR)); p('s_add_u32 s%d, s%d, s%d' % (sT0, sT0, sW))
    p('s_mul_i32 s%d, s%d, %d' % (sT1, sT0, 32 * 896))
    p('v_add_u32 v%d, s%d, v%d' % (vXO[0], sT1, vT0))
    p('v_add_u32 v%d, s%d, v%d' % (vXO[1], sT1, vT1))
    p('v_add_u32 v%d, %d, v%d' % (vXO[2], 14336 - 2048, vXO[0]))
    p('v_add_u32 v%d, %d, v%d' % (vXO[1], 7168 - 1024, vXO[1]))
    p('v_add_u32 v%d, %d, v%d' % (vXO[3], 14336 - 2048, vXO[1]))
    if OPT['stamps']: p('s_memtime s[76:77]')
    p('s_waitcnt lgkmcnt(0)')
    if OPT['stamps']:
        p('v_writelane_b32 v%d, s%d, 62' % (vDUM, SOUT)); p('v_writelane_b32 v%d, s%d, 61' % (vDUM, SOUT + 2))
        stamp_slots.append('prek'); p('v_writelane_b32 v%d, s76, 0' % vDUM)
        p('s_memtime s[%d:%d]' % (SOUT, SOUT + 1))
    mk_srd(p, SX, 16, 2048 * 896)
    def x_dma(j):
        out = [G('buffer_load_dwordx4 v%d, %s, s%d offen offset:%d lds' % (vXO[rg], srd(SX), KB[j], rg * 1024), tok=('x', j)) for rg in range(4)]
        out[0] = G('s_add_u32 m0, s%d, %d' % (sLW, j * 4096)) + out[0]
        return out
    fill = Prog()
    mk_srd(fill, SBRE, 22, 448 * 896); mk_srd(fill, SBIM, 24, 448 * 896)
    mk_srd(fill, SLRE, 18, 896); mk_srd(fill, SLIM, 20, 896); mk_srd(fill, SLDT, 30, 896); mk_srd(fill, SWS, 6, WS_END)
    mk_srd(fill, SW1, 36, 448 * 3584)
    fl = fill.ins
    for g in x_dma(0): p.extend(g)
    p.extend(fl[:8]); fl = fl[8:]
    p('s_and_b32 s%d, s%d, 1' % (sT1, sW)); p('s_lshl_b32 s%d, s%d, 6' % (sT1, sT1))
    p('v_xor_b32 v%d, s%d, v%d' % (vBO, sT1, vT0))
    p('s_mul_i32 s%d, s%d, 7168' % (sT1, sW)); p('s_mul_i32 s%d, s%d, %d' % (sT0, sC, 32 * 896)); p('s_add_u32 s%d, s%d, s%d' % (sT1, sT1, sT0))
    p('v_add_u32 v%d, s%d, v%d' % (vBO, sT1, vBO))
    p('s_lshl_b32 s%d, s%d, 1' % (sT2, sT2))
    p('s_lshl_b32 s%d, s%d, 12' % (W1K[0], sT2)); p('s_lshl_b32 s%d, s%d, 10' % (sT1, sW)); p('s_add_u32 s%d, s%d, s%d' % (W1K[0], W1K[0], sT1))
    p('s_add_u32 s%d, s%d, %d' % (sT1, sT1, 7 * 4096))
    for k in range(1, 7):
        p('s_add_u32 s%d, s%d, 4096' % (W1K[k], W1K[k - 1]))
        p('s_cmp_ge_u32 s%d, s%d' % (W1K[k], sT1))
        p('s_cselect_b32 s%d, %d, 0' % (sT0, 7 * 4096))
        p('s_sub_u32 s%d, s%d, s%d' % (W1K[k], W1K[k], sT0))
    p('s_lshl_b32 s%d, s%d, 7' % (sT2, sT2))
    p('s_add_u32 s%d, s%d, s%d' % (sT2, sT2, KB[0]))
    p('s_cmp_ge_u32 s%d, 896' % sT2); p('s_cselect_b32 s%d, 896, 0' % sT0); p('s_sub_u32 s%d, s%d, s%d' % (sT2, sT2, sT0))
    p('v_lshlrev_b32 v%d, 1, v%d' % (vT2, vP))
    p('s_lshl_b32 s%d, s%d, 6' % (sT1, sC))
    if OPT['stamps']:
        p('s_memtime s[%d:%d]' % (SOUT + 2, SOUT + 3)); p('s_waitcnt lgkmcnt(0)')
        stamp_slots.append('karg'); p('v_writelane_b32 v%d, s%d, 1' % (vDUM, SOUT))
        stamp_slots.append('x0'); p('v_writelane_b32 v%d, s%d, 2' % (vDUM, SOUT + 2))
    ssm_soff = [sT2]
    def ssm_dma(k, soff):
        return [G('s_add_u32 m0, s%d, %d' % (W1K[k], L_SW + T * 28672),
                  'buffer_load_dwordx4 v%d, %s, s%d offen lds' % (vBO, srd(SBRE if T == 0 else SBIM), soff), tok='ssmw') for T in range(2)]
    def next_soff(q, dst, src):
        q('s_add_u32 s%d, s%d, 128' % (dst, src)); q('s_cmp_ge_u32 s%d, 896' % dst); q('s_cselect_b32 s%d, 0, s%d' % (dst, dst))
    p('s_mov_b32 s%d, s%d' % (sRS0, sT2))
    next_soff(p, sT2, sT2)
    p('s_mov_b32 s%d, s%d' % (sRS1, sT2))
    share = ssm_dma(0, sRS0) + ssm_dma(1, sRS1)
    NSH = OPT.get('sshare', 4)
    for g in share[:NSH]:
        p.extend([g[0]] + fl[:4] + [g[1]]); fl = fl[4:]
    p.extend(fl)
    p('buffer_load_dwordx2 v[%d:%d], v%d, %s, 0 offen sc1' % (TMP + 28, TMP + 29, vZ, srd(SWS)))
    p('buffer_load_ushort v%d, v%d, %s, s%d offen' % (TMP + 0, vT2, srd(SLRE), sT1))
    p('buffer_load_ushort v%d, v%d, %s, s%d offen' % (TMP + 1, vT2, srd(SLIM), sT1))
    p('buffer_load_ushort v%d, v%d, %s, s%d offen' % (TMP + 2, vT2, srd(SLDT), sT1))
    gpf = Prog()
    if OPT['gpf']:
        gpf('s_mul_i32 s%d, s%d, 14' % (sT0, sR)); gpf('s_add_u32 s%d, s%d, s%d' % (sT0, sT0, sC)); gpf('s_lshl_b32 s%d, s%d, 2' % (sT0, sT0))
        gpf('s_add_u32 s%d, s%d, s%d' % (sT0, sT0, sW)); gpf('s_mul_i32 s%d, s%d, 1792' % (sT0, sT0))
        gpf('v_lshlrev_b32 v%d, 7, v%d' % (vT1, vL))
        gpf('s_mov_b64 exec, 0x3fff')
        gpf('buffer_load_dword v%d, v%d, %s, s%d offen' % (F1 + 5, vT1, srd(SW1), sT0), tok='cpf')
        gpf('s_mov_b64 exec, -1')
    if OPT['gpf'] == 1: p.extend(gpf.ins)
    if OPT['tlb']:
        p('v_lshlrev_b32 v%d, 21, v%d' % (vT1, vL))
        p('s_mov_b64 exec, 0xfe')
        p('buffer_load_dword v%d, v%d, %s, 0 offen' % (F1 + 3, vT1, srd(SWS)), tok='cpf')
        p('s_mov_b64 exec, 1')
        p('buffer_load_dword v%d, v%d, %s, 0 offen' % (F1 + 4, vZ, srd(SW1)), tok='cpf')
        p('s_mov_b64 exec, -1')
    stamp(p, 'issued0')
    for j in range(1, 7):
        if OPT['rot']:
            p('s_add_u32 s%d, s%d, 128' % (KB[j], KB[j - 1]))
            p('s_cmp_ge_u32 s%d, 896' % KB[j])
            p('s_cselect_b32 s%d, 0, s%d' % (KB[j], KB[j]))
        else: p('s_mov_b32 s%d, %d' % (KB[j], j * 128))
    prev = sT2
    RS7 = [None, None, 38, 39, 34, 35, 3]
    p('s_and_b32 s%d, s%d, 1' % (sHALF, sXCD))
    mk_srd(p, SDSK, 32, 896)
    mk_srd(p, SOUT, 4, 2048 * 1792)
    for k in range(2, 7):
        next_soff(p, RS7[k], prev); prev = RS7[k]
    ssm_rest = []
    for k in range(2, 7): ssm_rest += ssm_dma(k, RS7[k])
    w1g = []
    if OPT['w1pf']:
        p('v_mul_u32_u24 v%d, 3584, v%d' % (vT1, vL))
        p('s_and_b32 s%d, s%d, 3' % (sT1, sR)); p('s_lshl_b32 s%d, s%d, 2' % (sT1, sT1)); p('s_add_u32 s%d, s%d, s%d' % (sT1, sT1, sW))
        p('s_mul_i32 s%d, s%d, %d' % (sT1, sT1, 28 * 3584))
        p('s_lshl_b32 s%d, s%d, 8' % (sT0, sC)); p('s_add_u32 s%d, s%d, s%d' % (sT1, sT1, sT0))
        p('v_add_u32 v%d, s%d, v%d' % (F1 + 2, sT1, vT1))
        w1g = [G('s_mov_b64 exec, 0x0fffffff', 'buffer_load_dword v%d, v%d, %s, 0 offen offset:128' % (F1 + 1, F1 + 2, srd(SW1)), 's_mov_b64 exec, -1', tok='cpf')]
    p('v_lshrrev_b32 v%d, 3, v%d' % (vT0, vL))
    p('v_mul_u32_u24 v%d, 3584, v%d' % (vT0, vT0))
    p('v_lshrrev_b32 v%d, 2, v%d' % (vT1, vL)); p('v_and_b32 v%d, 4, v%d' % (vT1, vT1))
    p('v_and_b32 v%d, 7, v%d' % (vT2, vL)); p('v_xor_b32 v%d, v%d, v%d' % (vT1, vT1, vT2))
    p('v_lshl_add_u32 v%d, v%d, 4, v%d' % (vT0, vT1, vT0))
    p('s_mul_i32 s%d, s%d, %d' % (sT1, sW, 16 * 3584)); p('s_lshl_b32 s%d, s%d, 8' % (sT0, sC)); p('s_add_u32 s%d, s%d, s%d' % (sT1, sT1, sT0))
    p('v_add_u32 v%d, s%d, v%d' % (vW1O[0], sT1, vT0))
    p('v_add_u32 v%d, %d, v%d' % (vW1O[1], 8 * 3584 - 1024, vW1O[0]))
    p('v_lshrrev_b32 v%d, 1, v%d' % (vT0, vP)); p('v_and_b32 v%d, 7, v%d' % (vT0, vT0))
    p('v_xor_b32 v%d, v%d, v%d' % (vT0, vT0, vH)); p('v_lshlrev_b32 v%d, 4, v%d' % (vT0, vT0))
    p('v_lshl_add_u32 v%d, v%d, 7, v%d' % (vT0, vP, vT0))
    p('v_add_u32 v%d, s%d, v%d' % (vRX[0], sLW, vT0))
    for i in range(1, 4): p('v_xor_b32 v%d, %d, v%d' % (vRX[i], i << 5, vRX[0]))
    p('v_lshrrev_b32 v%d, 2, v%d' % (vT0, vL)); p('v_and_b32 v%d, 3, v%d' % (vT0, vT0))
    p('v_lshlrev_b32 v%d, 7, v%d' % (vT1, vT0))
    p('v_lshl_add_u32 v%d, v%d, 10, v%d' % (vT1, vH, vT1))
    p('v_and_b32 v%d, 2, v%d' % (vT0, vT0)); p('v_lshl_add_u32 v%d, v%d, 5, v%d' % (vT1, vT0, vT1))
    p('v_and_b32 v%d, 16, v%d' % (vT0, vL)); p('v_lshl_add_u32 v%d, v%d, 1, v%d' % (vT1, vT0, vT1))
    p('v_and_b32 v%d, 3, v%d' % (vT0, vL)); p('v_lshl_add_u32 v%d, v%d, 3, v%d' % (vRF[0][0], vT0, vT1))
    p('v_add_u32 v%d, %d, v%d' % (vRF[0][0], L0, vRF[0][0]))
    p('v_xor_b32 v%d, 64, v%d' % (vRF[1][0], vRF[0][0]))
    p('v_add_u32 v%d, 0x10000, v%d' % (vRF[0][1], vRF[0][0]))
    p('v_add_u32 v%d, 0x10000, v%d' % (vRF[1][1], vRF[1][0]))
    p('s_mul_i32 s%d, s%d, 4608' % (sT1, sW)); p('s_add_u32 s%d, s%d, %d' % (sT1, sT1, L_TR))
    p('v_mul_u32_u24 v%d, 72, v%d' % (vT0, vP)); p('v_lshl_add_u32 v%d, v%d, 3, v%d' % (vT0, vH, vT0))
    p('v_add_u32 v%d, s%d, v%d' % (vTW, sT1, vT0))
    p('v_lshrrev_b32 v%d, 2, v%d' % (vT0, vL)); p('v_and_b32 v%d, 3, v%d' % (vT0, vT0))
    p('v_lshl_add_u32 v%d, v%d, 3, v%d' % (vT0, vH, vT0)); p('v_mul_u32_u24 v%d, 72, v%d' % (vT0, vT0))
    p('v_and_b32 v%d, 16, v%d' % (vT1, vL)); p('v_lshl_add_u32 v%d, v%d, 1, v%d' % (vT0, vT1, vT0))
    p('v_and_b32 v%d, 3, v%d' % (vT1, vL)); p('v_lshl_add_u32 v%d, v%d, 3, v%d' % (vT0, vT1, vT0))
    p('v_add_u32 v%d, s%d, v%d' % (vTRr, sT1, vT0))
    p('s_mov_b32 s%d, s%d' % (sCB, sROT))
    p('s_lshl_b32 s%d, s%d, 2' % (sT0, sR)); p('s_add_u32 s%d, s%d, s%d' % (sT1, sT0, sW))
    p('s_mul_i32 s%d, s%d, 168' % (sHW, sT1)); p('s_lshl_b32 s%d, s%d, 1' % (sT2, sC)); p('s_add_u32 s%d, s%d, s%d' % (sHW, sHW, sT2))
    p('s_lshl_b32 s%d, s%d, 10' % (sHW, sHW)); p('s_add_u32 s%d, s%d, %d' % (sHW, sHW, WS_HID))
    p('s_lshl_b32 s%d, s%d, 7' % (sFW, sT1)); p('s_lshl_b32 s%d, s%d, 3' % (sT2, sC)); p('s_add_u32 s%d, s%d, s%d' % (sFW, sFW, sT2))
    p('s_add_u32 s%d, s%d, %d' % (sFW, sFW, WS_FL))
    p('s_lshl_b32 s%d, s%d, 1' % (sT2, sHALF)); p('s_add_u32 s%d, s%d, s%d' % (sRT0, sT0, sT2))
    p('s_mul_i32 s%d, s%d, 7' % (sT2, sW))
    p('s_mul_i32 s%d, s%d, 168' % (sH0, sRT0)); p('s_add_u32 s%d, s%d, s%d' % (sH0, sH0, sT2)); p('s_lshl_b32 s%d, s%d, 10' % (sH0, sH0))
    p('s_add_u32 s%d, s%d, %d' % (sH0, sH0, WS_HID)); p('s_add_u32 s%d, s%d, %d' % (sH1, sH0, 168 * 1024))
    p('s_mul_i32 s%d, s%d, 168' % (sW2, sCB)); p('s_add_u32 s%d, s%d, s%d' % (sW2, sW2, sT2)); p('s_lshl_b32 s%d, s%d, 11' % (sW2, sW2))
    p('s_add_u32 s%d, s%d, %d' % (sW2, sW2, WS_W2F))
    p('s_lshr_b32 s%d, s%d, 1' % (sT0, sT2)); p('s_lshl_b32 s%d, 0x000f000f, s%d' % (sPMASK, sT0))
    p('s_lshl_b32 s%d, s%d, 11' % (sT0, sT2)); p('s_add_u32 s%d, s%d, s%d' % (sW2S, sW2, sT0))
    p('s_lshl_b32 s%d, s%d, 10' % (sT0, sT2)); p('s_add_u32 s%d, s%d, s%d' % (sH0S, sH0, sT0))
    p('v_and_b32 v%d, 16, v%d' % (vT0, vL)); p('v_lshlrev_b32 v%d, 3, v%d' % (vT0, vT0))
    p('v_and_b32 v%d, 15, v%d' % (vT1, vL)); p('v_lshl_add_u32 v%d, v%d, 3, v%d' % (vT0, vT1, vT0))
    p('s_lshl_b32 s%d, s%d, 7' % (sT2, sRT0)); p('s_add_u32 s%d, s%d, %d' % (sT2, sT2, WS_FL))
    p('v_add_u32 v%d, s%d, v%d' % (vFA, sT2, vT0))
    A0, A1, Q0, Q1 = TMP + 8, TMP + 9, TMP + 10, TMP + 11
    for a in (A0, A1, Q0, Q1): p('v_mov_b32 v%d, 0' % a)
    for j in range(1, OPT['xup'] + 1):
        for g in x_dma(j): p.extend(g)
        if j == 2 and OPT['gpf'] == 2: p.extend(gpf.ins)
    stamp(p, 'first')
    lam = Prog()
    LT = F1 + 8
    lam_from(lam, TMP + 0, TMP + 1, TMP + 2, L1r, L1i, LT, LT + 1)
    lam('v_sub_f32 v%d, 0, v%d' % (N1i, L1i))
    cmul(lam, L2r, L2i, L1r, L1i, L1r, L1i)
    cmul(lam, L3r, L3i, L2r, L2i, L1r, L1i)
    cmul(lam, L4r, L4i, L2r, L2i, L2r, L2i)
    cmul(lam, LT, LT + 1, L4r, L4i, L4r, L4i)
    cmul(lam, LT + 2, LT + 3, LT, LT + 1, LT, LT + 1)
    cmul(lam, L32r, L32i, LT + 2, LT + 3, LT + 2, LT + 3)
    cmul(lam, LT, LT + 1, L32r, L32i, L32r, L32i)
    cmul(lam, L128r, L128i, LT, LT + 1, LT, LT + 1)
    cmul(lam, L256r, L256i, L128r, L128i, L128r, L128i)
    tagp = Prog()
    tag_setup(tagp, TMP + 28)
    tagp('s_lshr_b32 s%d, s%d, 1' % (sT5, sCB)); tagp('s_lshl_b32 s%d, s%d, 8' % (sT5, sT5))
    tagp('s_lshl_b32 s%d, s%d, 7' % (sPS, sCB)); tagp('s_add_u32 s%d, s%d, 4096' % (sPS, sPS)); tagp('s_sub_u32 s%d, s%d, s%d' % (sPS, sPS, sT5))
    tagp('s_add_u32 s%d, s%d, %d' % (sT5, sT5, WS_PF))
    tagp('v_lshl_add_u32 v%d, v%d, 3, s%d' % (vPF, vP, sT5))
    tagp('s_mul_i32 s%d, s%d, 7' % (sT5, sW)); tagp('s_lshl_b32 s%d, 0x7f, s%d' % (sPM2, sT5))

    def x_read(q, j, slot):
        for i in range(4):
            q('ds_read_b128 %s, v%d offset:%d' % (v4(X + 16 * j + 4 * i), vRX[i], slot * 4096), tok=('xr', j))
    def x_stats(q, j):
        q.waitlgkm(('xr', j))
        for k in range(16):
            r_ = X + 16 * j + k
            q('v_dot2c_f32_bf16 v%d, s%d, v%d' % (A0 if k % 2 == 0 else A1, sONE, r_))
            q('v_dot2c_f32_bf16 v%d, v%d, v%d' % (Q0 if k % 2 == 0 else Q1, r_, r_))
    q = Prog()
    q.waitvm(('x', 0)); stamp(q, 'x0in'); x_read(q, 0, 0)
    for j in range(1, 6):
        q.waitvm(('x', j)); x_read(q, j, j)
        x_stats(q, j - 1)
    q('v_add_u32 v%d, s%d, v%d' % (vT0, sLW, vL16))
    for rg in range(4):
        q('ds_write_b128 v%d, %s offset:%d' % (vT0, v4(F0 + 4 * rg), rg * 1024))
    x_read(q, 6, 0)
    x_stats(q, 5)
    x_stats(q, 6)
    x6 = [G('buffer_load_dwordx4 %s, v%d, %s, s%d offen offset:%d' % (v4(F0 + 4 * rg), vXO[rg], srd(SX), KB[6], rg * 1024)) for rg in range(4)]
    vm = []
    for j in range(OPT['xup'] + 1, 6): vm += x_dma(j)
    NS = OPT.get('ns', 4)
    vm += x6 + share[NSH:] + ([gpf.ins] if OPT['gpf'] == 3 else []) + ssm_rest[:NS]
    st, left = weave(q.ins, vm, OPT.get('perx', 44))
    assert not left, len(left)
    p.extend(st)
    stamp(p, 'x_in')
    w1k = Prog()
    for j in range(7): w1k('s_mul_i32 s%d, s%d, 1792' % (W1K[j], KB[j]))
    dma = []
    for dt in range(2):
        for j in range(7 if dt == 0 else 5):
            for e in range(2):
                l_off = (0 if dt == 0 else 14336 - 128) + 2 * j * 1024
                dma.append((G('s_add_u32 m0, s%d, %d' % (sLW, l_off)) if e == 0 else []) + G(
                    'buffer_load_dwordx4 v%d, %s, s%d offen offset:%d lds' % (vW1O[e], srd(SW1), W1K[j], 128 * dt + 1024 * e), tok='ffnA' if dt == 0 else 'ffnB'))
    q = Prog()
    q('v_add_f32 v%d, v%d, v%d' % (A0, A0, A1)); q('v_add_f32 v%d, v%d, v%d' % (Q0, Q0, Q1))
    q('v_mov_b32 v%d, v%d' % (A1, A0)); q('v_mov_b32 v%d, v%d' % (Q1, Q0))
    q('v_permlane32_swap_b32 v%d, v%d' % (A0, A1)); q('v_permlane32_swap_b32 v%d, v%d' % (Q0, Q1))
    q('v_add_f32 v%d, v%d, v%d' % (A0, A0, A1)); q('v_add_f32 v%d, v%d, v%d' % (Q0, Q0, Q1))
    q('v_mul_f32 v%d, 0x3b124925, v%d' % (A0, A0))
    q('v_mul_f32 v%d, 0x3b124925, v%d' % (Q0, Q0))
    q('v_fma_f32 v%d, -v%d, v%d, v%d' % (Q0, A0, A0, Q0))
    q('v_max_f32 v%d, 0, v%d' % (Q0, Q0))
    bf16_round(q, vM, A0)
    bf16_round(q, Q0, Q0)
    q('v_add_f32 v%d, 0x3727c5ac, v%d' % (Q0, Q0))
    bf16_round(q, Q0, Q0)
    q('v_sqrt_f32 v%d, v%d' % (Q0, Q0))
    bf16_round(q, vS, Q0)
    q('v_rcp_f32 v%d, v%d' % (vRSv, vS))
    q('s_lshl_b32 s%d, s%d, 7' % (sT3, sW))
    q('v_lshl_add_u32 v%d, v%d, 2, s%d' % (vT0, vP, sT3))
    q('v_mul_f32 v%d, 0x%x, v%d' % (vNK, NLOG2E, vRSv))
    q('ds_write_b32 v%d, v%d offset:%d' % (vT0, vRSv, L_RS))
    q('v_lshlrev_b32 v%d, 1, v%d' % (vT0, vT0))
    q('v_mov_b32 v%d, v%d' % (TMP + 12, vM)); q('v_mov_b32 v%d, v%d' % (TMP + 13, vRSv))
    q('ds_write_b64 v%d, v[%d:%d] offset:%d' % (vT0, TMP + 12, TMP + 13, L_MR))
    q('s_sub_u32 s%d, %d, s%d' % (sT4, L_SW, sLW))
    for i in range(4): q('v_add_u32 v%d, s%d, v%d' % (vRX[i], sT4, vRX[i]))
    if OPT['stamps']: q('v_mov_b32 v%d, 0' % vRSv)

    def d_step(ks, mode=0):
        z = Prog()
        if mode == 1:
            for k in range(4):
                z('v_dot2_f32_bf16 v%d, v%d, s%d, v%d' % (TMP + 8 + 2 * k, X + 4 * ks + k, sSELL, vNM))
                z('v_dot2_f32_bf16 v%d, v%d, s%d, v%d' % (TMP + 9 + 2 * k, X + 4 * ks + k, sSELH, vNM))
            for k in range(4):
                z('v_cvt_pk_bf16_f32 v%d, v%d, v%d' % (X + 4 * ks + k, TMP + 8 + 2 * k, TMP + 9 + 2 * k))
            return z.ins
        if mode == 2:
            for k in range(4):
                r_ = X + 4 * ks + k; lo = TMP + 8 + 2 * (k % 2)
                z('v_lshlrev_b32 v%d, 16, v%d' % (lo, r_))
                z('v_and_b32 v%d, s%d, v%d' % (lo + 1, sMHI, r_))
                z('v_pk_add_f32 v[%d:%d], v[%d:%d], v[%d:%d] op_sel_hi:[1,0]' % (lo, lo + 1, lo, lo + 1, vNM, vNM + 1))
                z('v_cvt_pk_bf16_f32 v%d, v%d, v%d' % (r_, lo, lo + 1))
            return z.ins
        for k in range(4):
            r_ = X + 4 * ks + k; lo, hi = TMP + 8 + 2 * (k % 2), TMP + 9 + 2 * (k % 2)
            z('v_lshlrev_b32 v%d, 16, v%d' % (lo, r_))
            z('v_and_b32 v%d, s%d, v%d' % (hi, sMHI, r_))
            z('v_sub_f32 v%d, v%d, v%d' % (lo, lo, vM))
            z('v_sub_f32 v%d, v%d, v%d' % (hi, hi, vM))
            z('v_cvt_pk_bf16_f32 v%d, v%d, v%d' % (r_, lo, hi))
        return z.ins
    LEAD = OPT['lead']
    q('v_sub_f32 v%d, 0, v%d' % (vNM, vM))
    q('s_mov_b32 s%d, 0x3f80' % sSELL); q('s_mov_b32 s%d, 0x3f800000' % sSELH)
    for ks in range(LEAD): q.extend(d_step(ks, 1 if OPT['dot'] else 0))
    q.extend(tagp.ins)
    stamp(q, 'lead')
    q.waitvm('ssmw')
    stamp(q, 'Win')
    q('s_barrier')
    stamp(q, 'B1')
    def wbuf(n): return WB + 4 * (n % 8)
    def ssm_read(n):
        ks, T = n // 2, n % 2
        return G('ds_read_b128 %s, v%d offset:%d' % (v4(wbuf(n)), vRX[ks % 4], T * 28672 + (ks // 4) * 4096), tok=('wf', n))
    PRE = 6
    for n in range(PRE): q.extend(ssm_read(n))
    groups = []
    for ks in range(28):
        z = Prog()
        z.waitlgkm(('wf', 2 * ks + 1))
        for T in range(2):
            n = 2 * ks + T; acc = SRE if T == 0 else SIM
            z('v_mfma_f32_32x32x16_bf16 %s, %s, %s, %s' % (v16(acc), v4(X + 4 * ks), v4(wbuf(n)), '0' if ks == 0 else v16(acc)))
            if n + PRE < 56: z.extend(ssm_read(n + PRE))
            groups.append(z.ins); z = Prog()
    fill = []
    for ks in range(LEAD, 28): fill += d_step(ks, 2 if OPT['pk'] else 0)
    fill = fill + lam.ins
    k = 0
    span = OPT.get('span', 54)
    for n, g in enumerate(groups):
        q.extend(g)
        tgt = min(len(fill), (len(fill) * (n + 1)) // span)
        q.extend(fill[k:tgt]); k = tgt
    done = set(range(X, X + 4 * LEAD))
    for i in q.ins:
        if i.op == 'v_cvt_pk_bf16_f32' and X <= i.wr[0][1] < X + 112: done.add(i.wr[0][1])
        if i.kind == 'mfma': assert all(r[1] in done for r in i.rd if r[0] == 'v' and X <= r[1] < X + 112), i.text
    RSF = TMP + 8
    q('v_lshl_add_u32 v%d, v%d, 4, s%d' % (vT0, vH, sT3))
    for g in range(4):
        q('ds_read_b128 %s, v%d offset:%d' % (v4(RSF + 4 * g), vT0, L_RS + 32 * g))
    def pf(T):
        if T < 4: return 'buffer_load_dwordx2 v[%d:%d], v%d, %s, 0 offen offset:%d sc1' % (FR, FR + 1, vPF, srd(SWS), 1024 * T)
        return 'buffer_load_dwordx2 v[%d:%d], v%d, %s, s%d offen sc1' % (FR, FR + 1, vPF, srd(SWS), sPS)
    w2_regs = {}
    w2_state = {'last': None}
    def w2_load(idx, reg):
        if idx < 56: base, off = sW2, ((idx // 14) * 28 + (idx % 14) // 2) * 2048 + (idx % 2) * 1024
        else: base, off = sW2S, (112 + (idx - 56) // 2) * 2048 + (idx % 2) * 1024
        z = Prog()
        key = (base, off - off % 4096)
        if w2_state['last'] != key:
            z('s_add_u32 s%d, s%d, %d' % (sT5, base, off - off % 4096)); w2_state['last'] = key
        if isinstance(reg, tuple):
            mk = (reg[1], reg[2] - off % 4096 + 4096)
            if w2_state.get('m0') != mk:
                z('s_add_u32 m0, s%d, %d' % mk); w2_state['m0'] = mk
            z('buffer_load_dwordx4 v%d, %s, s%d offen offset:%d sc1 lds' % (vL16, srd(SWS), sT5, off % 4096), tok=('w2', idx))
        else:
            z('buffer_load_dwordx4 %s, v%d, %s, s%d offen offset:%d sc1' % (v4(reg), vL16, srd(SWS), sT5, off % 4096), tok=('w2', idx))
        w2_regs[idx] = reg
        return z.ins
    def w2_dest(i):
        if i < 56: return 256 + 4 * i
        if i < 61: return ('lds', sLT, (i - 56) * 1024)
        return ('lds', sLA, (i - 61) * 1024)
    NW2 = 75 if OPT['ldsw2'] else 56
    w2q = []
    for T in range(5):
        lo, hi_ = 14 * T, (14 * T + 14 if T < 4 else NW2)
        if lo >= hi_: break
        Tp = T if not OPT.get('p3only', 1) else {0: 0, 1: 3, 2: None, 3: None, 4: 4}[T]
        nx = (T + 1 if T < 4 else None) if not OPT.get('p3only', 1) else {0: 3, 1: 4}.get(T)
        if Tp is not None: w2q.append(poll_check('p%d' % Tp, ('s%d' % sPM2) if Tp < 4 else '0x7f7f', pf(Tp)))
        for i in range(lo, hi_):
            g = w2_load(i, w2_dest(i))
            if i == 61: g = [Ins('; need B4')] + g
            w2q.append(g)
            if nx is not None and (nx != 4 or not OPT.get('p3only', 1)) and i == lo + 1: w2q.append(G(pf(nx)))
            if OPT.get('p3only', 1) and i == OPT.get('psidx', 27): w2q.append(G(pf(4)))
    w2i = NW2
    dmaA, dmaB = dma[:14], dma[14:]
    vm = ssm_rest[NS:] + [w1k.ins + dmaA[0]] + dmaA[1:] + w1g + dmaB
    w2q[0] = [Ins('; at %d' % OPT['tc'])] + w2q[0]
    if OPT['w2early']: vm += w2q
    st, carry = weave(q.ins, vm, OPT['per'], 0, OPT['perd'], events=[(OPT['tp'], G(pf(0)))])
    kt = [k for k, i in enumerate(st) if i.text.startswith('v_lshl_add_u32 v%d' % vPF)][0]
    kp = [k for k, i in enumerate(st) if i.text == pf(0)][0]
    assert kt < kp
    if carry and carry[0][0].text.startswith('; at'): carry[0] = carry[0][1:]
    if not OPT['w2early']: carry += w2q
    assert not any(x.tok in ('ffnA', 'ssmw') for g in carry for x in g)
    pos_b = [k for k, i in enumerate(st) if i.kind == 'barrier'][0]
    assert not any(i.tok == 'ssmw' for i in st[pos_b:]), 'SSM DMA after B1'
    p.extend(st)
    stamp(p, 'ssmend')
    p.waitvm('ffnA')
    stamp(p, 'Ain')
    p('s_waitcnt lgkmcnt(0)')
    p('s_barrier')
    stamp(p, 'B2')
    p('s_lshl_b32 s%d, s%d, 13' % (sT4, sC)); p('s_add_u32 s%d, s%d, %d' % (sT4, sT4, WS_EG))
    p('s_add_u32 s%d, s6, s%d' % (SEG, sT4)); p('s_addc_u32 s%d, s7, 0' % (SEG + 1))
    p('s_mov_b32 s%d, 8192' % (SEG + 2)); p('s_mov_b32 s%d, 0x20000' % (SEG + 3))
    p('s_lshl_b32 s%d, s%d, 12' % (sT2, sW))
    p('s_mul_i32 s%d, s%d, 5120' % (sLT, sW)); p('s_add_u32 s%d, s%d, %d' % (sLT, sLT, L_WT - 4096))
    p('s_sub_u32 s%d, s%d, 4096' % (sLA, sLW))
    tail_dma = []
    for j in (5, 6):
        for e in range(2):
            tail_dma.append((G('s_add_u32 m0, s%d, %d' % (sT2, L_SW - 128 + 2 * (j - 5) * 1024)) if e == 0 else []) + G(
                'buffer_load_dwordx4 v%d, %s, s%d offen offset:%d lds' % (vW1O[e], srd(SW1), W1K[j], 128 + 1024 * e), tok='ffnB'))

    def ffn_read(T, ks, n):
        dt, tt = T // 2, T % 2
        j, i = ks // 4, ks % 4
        if dt == 0: U = i * L_XW + 2 * j * 1024
        elif j <= 4: U = i * L_XW + 14336 + 2 * j * 1024
        else: U = L_SW - L0 + i * 4096 + 2 * (j - 5) * 1024
        z = Prog()
        for hh in range(2):
            off = U + hh * 512; win = 0
            if off >= 65536: off -= 65536; win = 1
            z('ds_read_b64_tr_b16 %s, v%d offset:%d' % (v2(wbuf(n) + 2 * hh), vRF[tt][win], off), tok=('wf', n))
        return z.ins
    def silu(T):
        acc = F0 if T % 2 == 0 else F1
        z = Prog()
        tp = [vT0, vT1, vT2, vBO]
        for b in range(0, 16, 4):
            for k in range(4): z('v_mul_f32 v%d, v%d, v%d' % (tp[k], vNK, acc + b + k))
            for k in range(4): z('v_exp_f32 v%d, v%d' % (tp[k], tp[k]))
            for k in range(4): z('v_fma_f32 v%d, v%d, v%d, v%d' % (tp[k], tp[k], vS, vS))
            for k in range(4): z('v_rcp_f32 v%d, v%d' % (tp[k], tp[k]))
            for k in range(4): z('v_mul_f32 v%d, v%d, v%d' % (acc + b + k, acc + b + k, tp[k]))
            z('v_cvt_pk_bf16_f32 v%d, v%d, v%d' % (acc + b // 2, acc + b, acc + b + 1))
            z('v_cvt_pk_bf16_f32 v%d, v%d, v%d' % (acc + b // 2 + 1, acc + b + 2, acc + b + 3))
            if b == 4:
                z('s_add_u32 s%d, s%d, %d' % (sT2, sHW, T * 28 * 1024))
                z('buffer_store_dwordx4 %s, v%d, %s, s%d offen%s' % (v4(acc), vL16, srd(SWS), sT2, HSC), tok=('hs', T))
        z('buffer_store_dwordx4 %s, v%d, %s, s%d offen offset:1024%s' % (v4(acc + 4), vL16, srd(SWS), sT2, HSC), tok=('hs', T))
        return z.ins
    E0r, E0i, E1r, E1i = vXO[0], vXO[1], vXO[2], vXO[3]
    def scan1():
        z = Prog()
        for g in range(4):
            for i in range(4):
                z('v_mul_f32 v%d, v%d, v%d' % (SRE + 4 * g + i, RSF + 4 * g + i, SRE + 4 * g + i))
                z('v_mul_f32 v%d, v%d, v%d' % (SIM + 4 * g + i, RSF + 4 * g + i, SIM + 4 * g + i))
        for i in range(1, 4):
            for g in range(4):
                a, b = SRE + 4 * g + i, SIM + 4 * g + i
                z('v_fmac_f32 v%d, v%d, v%d' % (a, L1r, a - 1))
                z('v_fmac_f32 v%d, v%d, v%d' % (b, L1r, b - 1))
                z('v_fmac_f32 v%d, v%d, v%d' % (a, N1i, b - 1))
                z('v_fmac_f32 v%d, v%d, v%d' % (b, L1i, a - 1))
        for g in range(4):
            b = RSF + 4 * g
            z('v_mov_b32 v%d, v%d' % (b, SRE + 4 * g + 3)); z('v_mov_b32 v%d, v%d' % (b + 1, SRE + 4 * g + 3))
            z('v_mov_b32 v%d, v%d' % (b + 2, SIM + 4 * g + 3)); z('v_mov_b32 v%d, v%d' % (b + 3, SIM + 4 * g + 3))
        for g in range(4):
            b = RSF + 4 * g
            z('v_permlane32_swap_b32 v%d, v%d' % (b, b + 1)); z('v_permlane32_swap_b32 v%d, v%d' % (b + 2, b + 3))
        cur = (RSF, RSF + 2); nxt = [(E0r, E0i), (E1r, E1i)]
        for s in range(1, 8):
            g, h = s // 2, s % 2
            er, ei = RSF + 4 * g + h, RSF + 4 * g + 2 + h
            d = nxt[s % 2]
            z('v_fma_f32 v%d, v%d, v%d, v%d' % (d[0], L4r, cur[0], er))
            z('v_fma_f32 v%d, v%d, v%d, v%d' % (d[1], L4r, cur[1], ei))
            z('v_fma_f32 v%d, -v%d, v%d, v%d' % (d[0], L4i, cur[1], d[0]))
            z('v_fmac_f32 v%d, v%d, v%d' % (d[1], L4i, cur[0]))
            cur = d
        z('s_lshl_b32 s%d, s%d, 8' % (sT4, sW))
        z('v_lshl_add_u32 v%d, v%d, 3, s%d' % (vT0, vP, sT4))
        z('ds_write_b64 v%d, v[%d:%d] offset:%d' % (vT0, E1r, E1i, L_EW), tok='ew')
        return z.ins
    def fl_load(stage): return 'buffer_load_dwordx2 v[%d:%d], v%d, %s, s%d offen sc1' % (FR2, FR2 + 1, vFA, srd(SWS), sT6)
    def fl_issue(stage): return G('s_mov_b32 s%d, %d' % (sT6, stage * 8192), fl_load(stage))
    n0 = 56
    seq = [(T, ks) for T in range(4) for ks in range(28)]
    for m in range(PRE): p.extend(ffn_read(seq[m][0], seq[m][1], n0 + m))
    EWR = TMP + 0
    LB = X
    lbp = Prog()
    lbp('s_sub_u32 s%d, s%d, 1' % (sT0, sR)); lbp('s_lshl_b32 s%d, s%d, 9' % (sT0, sT0))
    lbp('v_lshlrev_b32 v%d, 9, v%d' % (vRX[1], vH))
    lbp('v_sub_u32 v%d, s%d, v%d' % (vRX[1], sT0, vRX[1]))
    lbp('v_lshl_add_u32 v%d, v%d, 4, v%d' % (vRX[0], vP, vRX[1]))
    lb_groups = []
    for m in range(8):
        z = Prog()
        if m: z('v_subrev_u32 v%d, %d, v%d' % (vRX[1], 1024 * m, vRX[0]))
        z('buffer_load_dwordx4 %s, v%d, %s, 0 offen sc1' % (v4(LB + 4 * m), vRX[1] if m else vRX[0], srd(SEG)))
        lb_groups.append(z.ins)
    lb_text = '\n'.join(i.text for g in lb_groups for i in g)
    pool = []
    hid_regs = {}
    hstate = {0: None, 1: None}
    def hid_load(idx):
        rt = idx % 2
        if idx < 56: base, off = (sH0, sH1)[rt], ((idx // 14) * 28 + (idx % 14) // 2) * 1024
        else: base, off = (sH0S, sH1S)[rt], (112 + (idx - 56) // 2) * 1024
        reg = pool.pop(0); hid_regs[idx] = reg
        sreg = sT3 if rt == 0 else sT4
        z = Prog()
        key = (base, off - off % 4096)
        if hstate[rt] != key:
            z('s_add_u32 s%d, s%d, %d' % (sreg, base, off - off % 4096)); hstate[rt] = key
        z('buffer_load_dwordx4 %s, v%d, %s, s%d offen offset:%d sc1' % (v4(reg), vL16, srd(SWS), sreg, off % 4096), tok=('hid', idx))
        return z.ins
    stage_of = lambda idx: min(idx // 14, 4)
    hi = 0
    checked = set()
    def hid_next():
        nonlocal hi
        assert stage_of(hi) in checked
        g = hid_load(hi); hi += 1
        return g
    def fl_check(st):
        checked.add(st)
        return poll_check('f%d' % st, 's%d' % sPMASK, fl_load(0), FR2)
    def split_at_need(vm):
        for k, g in enumerate(vm):
            if g and g[0].text == '; need B4': return vm[:k], vm[k:]
        return vm, []
    for T in range(4):
        groups = []
        acc = F0 if T % 2 == 0 else F1
        for ks in range(28):
            m = T * 28 + ks
            z = Prog()
            if ks % 2 == 0: z.waitlgkm(('wf', n0 + m + 1))
            z('v_mfma_f32_32x32x16_bf16 %s, %s, %s, %s' % (v16(acc), v4(wbuf(n0 + m)), v4(X + 4 * ks), '0' if ks == 0 else v16(acc)))
            if (T, ks) == (2, 0): z('s_barrier')
            if m + PRE < 112:
                z.extend(ffn_read(seq[m + PRE][0], seq[m + PRE][1], n0 + m + PRE))
            groups.append(z.ins)
        q = Prog()
        held = []; ev = []
        if T == 0:
            q.extend(groups[0]); q.extend(groups[1])
            q.extend(interleave(groups[2:], scan1()))
            nb = [g for g in carry if any(x.tok == 'ffnB' for x in g)]
            k = max([carry.index(g) for g in nb]) + 1 if nb else 0
            vm = carry[:k] + tail_dma + carry[k:]
        elif T == 1:
            pre = Prog()
            GE = vXO[0]
            pre('v_fma_f32 v%d, v%d, v%d, v%d' % (vT0, L32r, EWR, EWR + 2)); pre('v_fma_f32 v%d, v%d, v%d, v%d' % (vT1, L32r, EWR + 1, EWR + 3))
            pre('v_fma_f32 v%d, -v%d, v%d, v%d' % (vT0, L32i, EWR + 1, vT0)); pre('v_fmac_f32 v%d, v%d, v%d' % (vT1, L32i, EWR))
            pre('v_fma_f32 v%d, v%d, v%d, v%d' % (vT2, L32r, vT0, EWR + 4)); pre('v_fma_f32 v%d, v%d, v%d, v%d' % (vT3, L32r, vT1, EWR + 5))
            pre('v_fma_f32 v%d, -v%d, v%d, v%d' % (vT2, L32i, vT1, vT2)); pre('v_fmac_f32 v%d, v%d, v%d' % (vT3, L32i, vT0))
            pre('v_fma_f32 v%d, v%d, v%d, v%d' % (GE, L32r, vT2, EWR + 6)); pre('v_fma_f32 v%d, v%d, v%d, v%d' % (GE + 1, L32r, vT3, EWR + 7))
            pre('v_fma_f32 v%d, -v%d, v%d, v%d' % (GE, L32i, vT3, GE)); pre('v_fmac_f32 v%d, v%d, v%d' % (GE + 1, L32i, vT2))
            pre('v_mov_b32 v%d, s%d' % (GE + 2, sTL)); pre('v_mov_b32 v%d, s%d' % (GE + 3, sTH))
            pre('s_lshl_b32 s%d, s%d, 3' % (sT4, sW)); pre('s_lshl_b32 s%d, 0xff, s%d' % (sT4, sT4))
            pre('s_lshl_b32 s%d, s%d, 9' % (sT0, sR))
            egs = G('s_mov_b32 exec_lo, s%d' % sT4, 's_mov_b32 exec_hi, 0',
                    'buffer_store_dwordx4 %s, v%d, %s, s%d offen sc1' % (v4(GE), vL16, srd(SEG), sT0), 's_mov_b64 exec, -1')
            q.extend(interleave(groups[:5], pre.ins)); q.extend(egs)
            q.extend(interleave(groups[5:OPT['send'] + 1], silu(0)))
            for g in groups[OPT['send'] + 1:]: q.extend(g)
            vm = carry
        else:
            q.extend(groups[0]); q.extend(groups[1]); q.extend(groups[2])
            q.extend(interleave(groups[3:OPT['send']], silu(T - 1)))
            for g in groups[OPT['send']:]: q.extend(g)
            if T == 2:
                vm = carry; ev = [(OPT['tf'], flag_group(sFW, 0, ('hs', 0)))]
            else:
                lbs = [[Ins('; after 9')] + lbp.ins + lb_groups[0] + lb_groups[1] + lb_groups[2] + lb_groups[3], lb_groups[4] + lb_groups[5] + lb_groups[6] + lb_groups[7]]
                for g in lbs:
                    for x in g: x.text = x.text
                vm = carry
                ev = [(420, lbs[0][1:]), (520, lbs[1]), (OPT['tf'], flag_group(sFW, 8192, ('hs', 1))), (OPT['tp0'], fl_issue(0))]
        if T < 2: vm, held = split_at_need(vm)
        st, carry = weave(q.ins, vm, OPT['per'], 60 if T == 2 else 0, OPT['perd'], small=(SEG,), events=ev)
        carry += held
        if T == 3:
            mf = [k for k, i in enumerate(st) if i.kind == 'mfma']
            pos_l = [k for k, i in enumerate(st) if i.kind == 'vload' and 's[%d:%d]' % (SEG, SEG + 3) in i.text]
            assert len(pos_l) == 8 and pos_l[0] > mf[7], (pos_l, mf[7])
            pos_h = [k for k, i in enumerate(st) if isinstance(i.tok, tuple) and i.tok[0] == 'hid']
            assert not pos_h or pos_h[0] > mf[11]
        p.extend(st)
        if T == 0:
            assert not any(x.tok == 'ffnB' for g in carry for x in g)
            p.waitlgkm('ew'); p.waitvm('ffnB')
            p('s_barrier')
            p('v_lshlrev_b32 v%d, 3, v%d' % (vT0, vP))
            for k in range(4): p('ds_read_b64 v[%d:%d], v%d offset:%d' % (EWR + 2 * k, EWR + 2 * k + 1, vT0, L_EW + 256 * k))
        stamp(p, 'T%d' % T)
        print('after T%d: %d groups pending' % (T, len(carry)))
    pool += [WB + 4 * k for k in range(8)] + [F0 + 4 * k for k in range(4)] + [X + 32 + 4 * k for k in range(4)]
    p('s_add_u32 s%d, s%d, %d' % (sH1S, sH0S, 168 * 1024))

    q = Prog()
    s3 = silu(3)
    q.extend(s3)
    stamp(q, 'silu3')
    def lb_check(z, lab_bad):
        z('v_add3_u32 v%d, v%d, v%d, v%d' % (vT0, LB + 2, LB + 6, LB + 10)); z('v_add3_u32 v%d, v%d, v%d, v%d' % (vT1, LB + 3, LB + 7, LB + 11))
        z('v_add3_u32 v%d, v%d, v%d, v%d' % (vT0, vT0, LB + 14, LB + 18)); z('v_add3_u32 v%d, v%d, v%d, v%d' % (vT1, vT1, LB + 15, LB + 19))
        z('v_add3_u32 v%d, v%d, v%d, v%d' % (vT0, vT0, LB + 22, LB + 26)); z('v_add3_u32 v%d, v%d, v%d, v%d' % (vT1, vT1, LB + 23, LB + 27))
        z('v_add_u32 v%d, v%d, v%d' % (vT0, vT0, LB + 30)); z('v_add_u32 v%d, v%d, v%d' % (vT1, vT1, LB + 31))
        k0 = len(z.ins)
        z('v_cmp_ne_u32 vcc, v%d, v%d' % (vT0, vT2))
        z('v_cmp_ne_u32 s[%d:%d], v%d, v%d' % (sP0, sP0 + 1, vT1, vT3))
        z('s_nop 1')
        z('s_or_b64 vcc, vcc, s[%d:%d]' % (sP0, sP0 + 1))
        z('s_cbranch_scc1 %s' % lab_bad)
        for i in z.ins[k0:]: i.note = 'glue'
    q('v_sub_u32 v%d, s%d, v%d' % (vT3, sR, vH)); q('v_add_u32 v%d, 1, v%d' % (vT3, vT3)); q('v_lshrrev_b32 v%d, 1, v%d' % (vT3, vT3))
    q('v_mul_lo_u32 v%d, s%d, v%d' % (vT2, sTL, vT3)); q('v_mul_lo_u32 v%d, s%d, v%d' % (vT3, sTH, vT3))
    lb_check(q, 'L_retry_lb')
    q('L_ok_lb:')
    stamp(q, 'lbok')
    z = Prog()
    z('L_retry_lb:'); z('s_mov_b32 s%d, 0' % sSPIN); z('L_loop_lb:'); z('s_sleep 1'); z(lb_text); z('s_waitcnt vmcnt(0)')
    if OPT['stamps']: z('v_add_u32 v%d, 0x100, v%d' % (vRSv, vRSv))
    z('s_add_u32 s%d, s%d, 1' % (sSPIN, sSPIN)); z('s_cmp_gt_u32 s%d, %d' % (sSPIN, OPT['spin'])); z('s_cbranch_scc1 L_ok_lb')
    lb_check(z, 'L_loop_lb'); z('s_branch L_ok_lb')
    retry_blocks.append(z)
    for m in range(6, -1, -1):
        cmac(q, LB + 4 * m, LB + 4 * m + 1, L256r, L256i, LB + 4 * m + 4, LB + 4 * m + 5)
    q('v_mov_b32 v%d, v%d' % (LB + 4, LB)); q('v_mov_b32 v%d, v%d' % (LB + 5, LB + 1))
    q('v_permlane32_swap_b32 v%d, v%d' % (LB, LB + 4)); q('v_permlane32_swap_b32 v%d, v%d' % (LB + 1, LB + 5))
    cmac(q, LB, LB + 1, L128r, L128i, LB + 4, LB + 5)
    cmac(q, EWR, EWR + 1, L32r, L32i, LB, LB + 1)
    cmac(q, EWR + 2, EWR + 3, L32r, L32i, EWR, EWR + 1)
    cmac(q, EWR + 4, EWR + 5, L32r, L32i, EWR + 2, EWR + 3)
    CS = LB + 8
    q('v_mov_b32 v%d, v%d' % (CS, LB)); q('v_mov_b32 v%d, v%d' % (CS + 1, LB + 1))
    for k in range(3):
        k0 = len(q.ins)
        q('s_cmp_eq_u32 s%d, %d' % (sW, k + 1)); q('s_cselect_b64 vcc, -1, 0')
        q('v_cndmask_b32 v%d, v%d, v%d, vcc' % (CS, CS, EWR + 2 * k))
        for i in q.ins[k0:]: i.note = 'glue'
        q('v_cndmask_b32 v%d, v%d, v%d, vcc' % (CS + 1, CS + 1, EWR + 2 * k + 1))
    for s in range(7):
        g, h = s // 2, s % 2
        er, ei = RSF + 4 * g + h, RSF + 4 * g + 2 + h
        d, cur = CS + 2 * (s + 1), CS + 2 * s
        q('v_fma_f32 v%d, v%d, v%d, v%d' % (d, L4r, cur, er))
        q('v_fma_f32 v%d, v%d, v%d, v%d' % (d + 1, L4r, cur + 1, ei))
        q('v_fma_f32 v%d, -v%d, v%d, v%d' % (d, L4i, cur + 1, d))
        q('v_fmac_f32 v%d, v%d, v%d' % (d + 1, L4i, cur))
    k0 = len(q.ins)
    q('s_mov_b32 vcc_lo, 0'); q('s_mov_b32 vcc_hi, -1')
    for g in range(4):
        a = CS + 4 * g
        q('v_cndmask_b32 v%d, v%d, v%d, vcc' % (a, a, a + 2))
        q('v_cndmask_b32 v%d, v%d, v%d, vcc' % (a + 1, a + 1, a + 3))
    for i in q.ins[k0:-1]: i.note = 'glue'
    for g in range(4):
        a = CS + 4 * g
        q('v_sub_f32 v%d, 0, v%d' % (a + 2, a + 1))
    stamp(q, 'carry')
    q.extend(epilogue_loads())
    PW = [(L1r, L1i), (L2r, L2i), (L3r, L3i), (L4r, L4i)]
    for g in range(4):
        a = CS + 4 * g
        for i in range(4):
            ur, ui = SRE + 4 * g + i, SIM + 4 * g + i
            q('v_fmac_f32 v%d, v%d, v%d' % (ur, PW[i][0], a))
            q('v_fmac_f32 v%d, v%d, v%d' % (ui, PW[i][0], a + 1))
            q('v_fmac_f32 v%d, v%d, v%d' % (ur, PW[i][1], a + 2))
            q('v_fmac_f32 v%d, v%d, v%d' % (ui, PW[i][1], a))
        for comp, base in ((0, SRE), (1, SIM)):
            b = base + 4 * g
            q('v_cvt_pk_bf16_f32 v%d, v%d, v%d' % (b, b, b + 1))
            q('v_cvt_pk_bf16_f32 v%d, v%d, v%d' % (b + 1, b + 2, b + 3))
            q('ds_write_b64 v%d, v[%d:%d] offset:%d' % (vTW, b, b + 1, comp * 2304 + 16 * g))
    stamp(q, 'fix')
    HS = F1
    for comp in range(2):
        for q_ in range(2):
            for hh in range(2):
                q('ds_read_b64_tr_b16 %s, v%d offset:%d' % (v2(HS + 8 * comp + 4 * q_ + 2 * hh), vTRr, comp * 2304 + (16 * q_ + 4 * hh) * 72))
    q('s_lshl_b32 s%d, s%d, 11' % (sT2, sC)); q('s_add_u32 s%d, s%d, s%d' % (sT2, sT2, sHW)); q('s_add_u32 s%d, s%d, %d' % (sT2, sT2, 112 * 1024))
    for _ in range(10): q('; pad')
    for f in range(4):
        q('buffer_store_dwordx4 %s, v%d, %s, s%d offen offset:%d%s' % (v4(HS + 4 * f), vL16, srd(SWS), sT2, f * 1024, HSC), tok='hsC')
    vm = carry[:5] + [[Ins('; at %d' % OPT['tc0'])] + fl_check(0)] + [hid_next() for _ in range(14)] + carry[5:]
    ev = [(OPT['tp1'], fl_issue(1)), (OPT['tf2'], flag_group(sFW, 2 * 8192, ('hs', 2)))]
    q.ins = [i for i in q.ins if not i.text.startswith('; mark')]
    st, left = weave(q.ins, vm, OPT['perh'], events=ev)
    k0 = [k for k, i in enumerate(st) if i.text == 'L_ok_f0:'][0]; k1 = [k for k, i in enumerate(st) if i.text.startswith('s_mov_b32 s%d, 8192' % sT6)][0]
    assert k0 < k1
    p.extend(st)
    pool += [F1 + 4 * k for k in range(4)] + [SRE + 4 * k for k in range(8)] + [204 + 4 * k for k in range(5)]
    fillr = epilogue_pre()
    ACC = {(0, 0): X + 48, (0, 1): X + 64, (1, 0): X + 80, (1, 1): X + 96}
    fk = 0
    when = {}
    p('v_add_u32 v%d, s%d, v%d' % (vFA2, sLT, vL16)); p('v_add_u32 v%d, s%d, v%d' % (vFA3, sLA, vL16))
    pstep = {OPT['p2']: 2, OPT['p3']: 3, OPT['p4']: 4}
    cstep = {OPT['c1']: 1, OPT['p2'] + OPT['pd']: 2, OPT['p3'] + OPT['pd']: 3, OPT['p4'] + OPT['pd']: 4}
    real_p = p
    late = []
    for step in range(42):
        if step in (0, 7, 14, 21, 28, 35) or OPT.get('allg'): stamp(real_p, 'g%d' % step)
        side = []
        while any((isinstance(x.tok, tuple) and x.tok[0] == 'hid') or 's_mov_b32 s%d' % sT6 in x.text for g in left for x in g):
            (real_p.extend if step == 0 else side.append)(left.pop(0))
        if step == OPT['f3']: side.append(flag_group(sFW, 3 * 8192, ('hs', 3)))
        if step == OPT['f4']: side.append(flag_group(sFW, 4 * 8192, 'hsC'))
        if step in cstep: side.append(fl_check(cstep[step]))
        if step in pstep:
            assert pstep[step] - 1 in checked
            side.append(fl_issue(pstep[step]))
        nh = 0
        while hi < 84 and hi < 2 * step + 4 + OPT['ahead'] and pool and stage_of(hi) in checked and nh < OPT.get('maxh', 4): side.append(hid_next()); nh += 1
        for rep in range(2):
            if rep == 1 and len(left) + 84 - w2i <= max(0, 30 - step): break
            if left: side.append(left.pop(0))
            elif w2i < 84 and len(pool) > 2 and step >= OPT.get('w2s', 2) and nh < 3:
                reg = pool.pop(0); side.append(w2_load(w2i, reg)); w2i += 1
        if step == OPT.get('b5', 36): side.append(G('s_barrier'))
        for i in (2 * step + 4, 2 * step + 5):
            if i < 84 and isinstance(w2_regs.get(i), tuple):
                d = w2_regs[i]; reg = pool.pop(0)
                z = Prog(); z.waitvm(('w2', i))
                z('ds_read_b128 %s, v%d offset:%d' % (v4(reg), vFA2 if d[1] == sLT else vFA3, d[2] + 4096))
                side.append(z.ins)
                w2_regs[i] = reg
        w0, w1_ = w2_regs[2 * step], w2_regs[2 * step + 1]
        h0, h1 = hid_regs[2 * step], hid_regs[2 * step + 1]
        em = set(x.tok for x in p.ins if isinstance(x.tok, tuple))
        for t in (('w2', 2 * step), ('w2', 2 * step + 1), ('hid', 2 * step), ('hid', 2 * step + 1)): assert t in em, t
        k = 0
        NL = OPT.get('nlast', 3)
        order = ((0, 0), (0, 1), (1, 0), (1, 1))
        if step >= 42 - NL:
            late.append((w1_, h0, h1)); order = order[:2]
        for n, (ct, rt) in enumerate(order):
            a = ACC[(ct, rt)]
            p('v_mfma_f32_32x32x16_bf16 %s, %s, %s, %s' % (v16(a), v4((w0, w1_)[ct]), v4((h0, h1)[rt]), '0' if step == 0 else v16(a)))
            tgt = (len(side) * (n + 1) + len(order) - 1) // len(order)
            c = 0
            for g in side[k:tgt]: p.extend(g); c += sum(cost(x) for x in g)
            k = tgt
            while step >= OPT.get('fs', 1) and fk < len(fillr) and (c < OPT.get('fb', 36) or fillr[fk - 1].note == 'glue'):
                i = fillr[fk]; fk += 1
                c += cost(i)
                p.ins.append(i)
        pool += [w0, w1_, h0, h1]
    wr = [G('ds_write_b128 v%d, %s offset:%d' % (PWA + g, v4(ACC[(0, rt)] + 4 * g), rt * 8192)) for rt in range(2) for g in range(4)] if late else []
    mm = [G('v_mfma_f32_32x32x16_bf16 %s, %s, %s, %s' % (v16(ACC[(1, rt)]), v4(w), v4((a_, b_)[rt]), v16(ACC[(1, rt)]))) for (w, a_, b_) in late for rt in range(2)]
    for n, g in enumerate(mm):
        p.extend(g)
        if n >= 1:
            for _ in range(2):
                if wr: p.extend(wr.pop(0))
    for g in wr: p.extend(g)
    OPT['_ct0done'] = bool(late)
    assert fk == len(fillr) and w2i == 84 and not left, (fk, len(fillr), w2i, len(left))
    print('G2 marks', when)
    stamp(p, 'g2end')
    epilogue(p, ACC)

EX, ED, ST, DD = TMP + 0, TMP + 8, TMP + 10, TMP + 18
EB, ET, PWA, PRA, vOO, PRB = X + 0, X + 16, X + 24, X + 28, X + 30, X + 22
sXO, sOO = 38, 39
def epilogue_loads():
    p = Prog()
    p('v_lshrrev_b32 v%d, 4, v%d' % (vT0, vL)); p('v_and_b32 v%d, 15, v%d' % (vT1, vL))
    p('v_mul_u32_u24 v%d, 896, v%d' % (vT2, vT0)); p('v_lshl_add_u32 v%d, v%d, 3, v%d' % (vT2, vT1, vT2))
    p('s_lshl_b32 s%d, s%d, 5' % (sXO, sRT0)); p('s_lshl_b32 s%d, s%d, 4' % (sT1, sW)); p('s_add_u32 s%d, s%d, s%d' % (sXO, sXO, sT1))
    p('s_mul_i32 s%d, s%d, 896' % (sXO, sXO)); p('s_lshl_b32 s%d, s%d, 7' % (sT1, sCB)); p('s_add_u32 s%d, s%d, s%d' % (sXO, sXO, sT1))
    p('s_add_u32 s%d, s%d, %d' % (sT0, sXO, 8 * 896))
    for it in range(4):
        p('buffer_load_dwordx2 v[%d:%d], v%d, %s, s%d offen offset:%d' % (EX + 2 * it, EX + 2 * it + 1, vT2, srd(SX), sXO if it < 2 else sT0, (it % 2) * 4 * 896))
    p('v_lshlrev_b32 v%d, 3, v%d' % (vT3, vT1))
    p('buffer_load_dwordx2 v[%d:%d], v%d, %s, s%d offen' % (ED, ED + 1, vT3, srd(SDSK), sT1))
    p('s_lshl_b32 s%d, s%d, 9' % (sT1, sHALF)); p('s_lshl_b32 s%d, s%d, 7' % (sT0, sW)); p('s_add_u32 s%d, s%d, s%d' % (sT1, sT1, sT0))
    p('v_lshl_add_u32 v%d, v%d, 3, s%d' % (vT3, vT0, sT1))
    for it in range(4):
        p('ds_read_b64 v[%d:%d], v%d offset:%d' % (ST + 2 * it, ST + 2 * it + 1, vT3, L_MR + 32 * it))
    return p.ins

def epilogue_pre():
    p = Prog()
    p('v_lshlrev_b32 v%d, 1, v%d' % (vOO, vT2))
    p('s_lshl_b32 s%d, s%d, 1' % (sOO, sXO))
    p('v_and_b32 v%d, 7, v%d' % (PWA, vP)); p('v_xor_b32 v%d, v%d, v%d' % (PWA, PWA, vH)); p('v_lshlrev_b32 v%d, 4, v%d' % (PWA, PWA))
    p('v_lshl_add_u32 v%d, v%d, 8, v%d' % (PWA, vP, PWA))
    p('v_add_u32 v%d, s%d, v%d' % (PWA, sLW, PWA))
    for g in range(1, 4): p('v_xor_b32 v%d, %d, v%d' % (PWA + g, g << 5, PWA))
    p('v_xor_b32 v%d, v%d, v%d' % (PRA, vT1, vT0)); p('v_lshlrev_b32 v%d, 4, v%d' % (PRA, PRA))
    p('v_lshl_add_u32 v%d, v%d, 8, v%d' % (PRA, vT0, PRA))
    p('s_lshl_b32 s%d, s%d, 12' % (sT1, sW)); p('s_add_u32 s%d, s%d, %d' % (sT1, sT1, L0)); p('v_add_u32 v%d, s%d, v%d' % (PRA, sT1, PRA))
    p('v_xor_b32 v%d, 64, v%d' % (PRA + 1, PRA)); p('v_add_u32 v%d, 1024, v%d' % (PRA + 1, PRA + 1))
    p('v_add_u32 v%d, %d, v%d' % (PRB, 3 * L_XW, PRA)); p('v_add_u32 v%d, %d, v%d' % (PRB + 1, 3 * L_XW, PRA + 1))
    D = DD; T = ET
    p('v_lshlrev_b32 v%d, 16, v%d' % (D, ED)); p('v_and_b32 v%d, s%d, v%d' % (D + 1, sMHI, ED))
    p('v_lshlrev_b32 v%d, 16, v%d' % (D + 2, ED + 1)); p('v_and_b32 v%d, s%d, v%d' % (D + 3, sMHI, ED + 1))
    for it in range(4):
        b = EB + 4 * it; m, rs = ST + 2 * it, ST + 2 * it + 1
        p('v_lshlrev_b32 v%d, 16, v%d' % (b, EX + 2 * it)); p('v_and_b32 v%d, s%d, v%d' % (b + 1, sMHI, EX + 2 * it))
        p('v_lshlrev_b32 v%d, 16, v%d' % (b + 2, EX + 2 * it + 1)); p('v_and_b32 v%d, s%d, v%d' % (b + 3, sMHI, EX + 2 * it + 1))
        for k in range(4): p('v_sub_f32 v%d, v%d, v%d' % (T + k, b + k, m))
        def rnd():
            p('v_cvt_pk_bf16_f32 v%d, v%d, v%d' % (T + 4, T, T + 1)); p('v_cvt_pk_bf16_f32 v%d, v%d, v%d' % (T + 5, T + 2, T + 3))
            p('v_lshlrev_b32 v%d, 16, v%d' % (T, T + 4)); p('v_and_b32 v%d, s%d, v%d' % (T + 1, sMHI, T + 4))
            p('v_lshlrev_b32 v%d, 16, v%d' % (T + 2, T + 5)); p('v_and_b32 v%d, s%d, v%d' % (T + 3, sMHI, T + 5))
        rnd()
        for k in range(4): p('v_mul_f32 v%d, v%d, v%d' % (T + k, T + k, rs))
        rnd()
        for k in range(4): p('v_mul_f32 v%d, v%d, v%d' % (T + k, T + k, D + k))
        rnd()
        for k in range(4): p('v_add_f32 v%d, v%d, v%d' % (b + k, b + k, T + k))
    return p.ins

def epilogue(p, ACC):
    for rt in range(2):
        for ct in range(1 if OPT.get('_ct0done') else 0, 2):
            for g in range(4):
                p('ds_write_b128 v%d, %s offset:%d' % (PWA + g, v4(ACC[(ct, rt)] + 4 * g), rt * 8192 + ct * 128))
    p('s_waitcnt lgkmcnt(0)')
    p('s_barrier')
    R = 128
    for it in range(4):
        for P in range(4):
            p('ds_read_b128 %s, v%d offset:%d' % (v4(R + 16 * it + 4 * P), (PRA if P < 3 else PRB) + (it & 1), (P % 3) * L_XW + (it >> 1) * 2048))
    for it in range(4):
        b = EB + 4 * it; r_ = R + 16 * it
        p('v_pk_add_f32 v[%d:%d], v[%d:%d], v[%d:%d]' % (r_, r_ + 1, r_, r_ + 1, r_ + 4, r_ + 5))
        p('v_pk_add_f32 v[%d:%d], v[%d:%d], v[%d:%d]' % (r_ + 2, r_ + 3, r_ + 2, r_ + 3, r_ + 6, r_ + 7))
        p('v_pk_add_f32 v[%d:%d], v[%d:%d], v[%d:%d]' % (r_ + 8, r_ + 9, r_ + 8, r_ + 9, r_ + 12, r_ + 13))
        p('v_pk_add_f32 v[%d:%d], v[%d:%d], v[%d:%d]' % (r_ + 10, r_ + 11, r_ + 10, r_ + 11, r_ + 14, r_ + 15))
        p('v_pk_add_f32 v[%d:%d], v[%d:%d], v[%d:%d]' % (b, b + 1, b, b + 1, r_, r_ + 1))
        p('v_pk_add_f32 v[%d:%d], v[%d:%d], v[%d:%d]' % (b + 2, b + 3, b + 2, b + 3, r_ + 2, r_ + 3))
        p('v_pk_add_f32 v[%d:%d], v[%d:%d], v[%d:%d]' % (b, b + 1, b, b + 1, r_ + 8, r_ + 9))
        p('v_pk_add_f32 v[%d:%d], v[%d:%d], v[%d:%d]' % (b + 2, b + 3, b + 2, b + 3, r_ + 10, r_ + 11))
        p('s_add_u32 s%d, s%d, %d' % (sT2, sOO, it * 4 * 1792))
        p('buffer_store_dwordx4 %s, v%d, %s, s%d offen%s' % (v4(b), vOO, srd(SOUT), sT2, ['', ' sc1', ' nt', ' sc0 sc1', ' sc1 nt'][OPT.get('ost', 0)]))
    if OPT['stamps']:
        stamp(p, 'end')
        p('v_readlane_b32 s%d, v%d, 0' % (sT0, vRSv)); p('s_nop 3'); p('v_writelane_b32 v%d, s%d, 60' % (vDUM, sT0))
        p('s_memrealtime s[%d:%d]' % (sP0, sP0 + 1)); p('s_load_dwordx2 s[36:37], s[0:1], 104'); p('s_waitcnt lgkmcnt(0)')
        p('v_writelane_b32 v%d, s%d, 63' % (vDUM, sP0))
        if OPT.get('amp', -1) >= 0:
            p('s_lshl_b32 s%d, s2, 2' % sT0); p('s_add_u32 s%d, s%d, s%d' % (sT0, sT0, sW)); p('s_cmp_lg_u32 s%d, %d' % (sT0, OPT['dbgwave']))
            p('s_cbranch_scc1 L_noamp')
            p('v_readlane_b32 s%d, v%d, %d' % (sT0, vDUM, OPT['amp'])); p('v_readlane_b32 s%d, v%d, %d' % (sT1, vDUM, OPT.get('amp0', 61)))
            p('s_nop 3')
            p('s_sub_u32 s%d, s%d, s%d' % (sT0, sT0, sT1)); p('s_mul_i32 s%d, s%d, %d' % (sT0, sT0, OPT.get('ampk', 4)))
            p('s_min_u32 s%d, s%d, 400000' % (sT0, sT0))
            p('s_memtime s[84:85]'); p('s_waitcnt lgkmcnt(0)')
            p('L_amp:')
            p('s_memtime s[86:87]'); p('s_waitcnt lgkmcnt(0)')
            p('s_sub_u32 s%d, s86, s84' % sT1); p('s_cmp_lt_u32 s%d, s%d' % (sT1, sT0)); p('s_cbranch_scc1 L_amp')
            p('L_noamp:')
        if OPT['dbg']:
            mk_srd(p, 84, 36, 256)
            p('v_readlane_b32 s%d, v%d, 61' % (sT1, vDUM))
            p('s_lshl_b32 s%d, s2, 2' % sT0); p('s_add_u32 s%d, s%d, s%d' % (sT0, sT0, sW)); p('s_cmp_lg_u32 s%d, %d' % (sT0, OPT['dbgwave']))
            p('s_cbranch_scc1 L_nodbg')
            p('v_subrev_u32 v%d, s%d, v%d' % (vT0, sT1, vDUM))
            p('v_lshlrev_b32 v%d, 2, v%d' % (vT1, vL))
            p('s_mov_b64 exec, 0xffff')
            p('buffer_store_dword v%d, v%d, s[84:87], 0 offen' % (vT0, vT1))
            p('s_mov_b64 exec, -1')
            p('L_nodbg:')
        p('s_lshl_b32 s%d, s2, 2' % sT0); p('s_add_u32 s%d, s%d, s%d' % (sT0, sT0, sW)); p('s_lshl_b32 s%d, s%d, 8' % (sT0, sT0))
        p('s_add_u32 s%d, s%d, %d' % (sT0, sT0, WS_STAMP))
        p('v_lshlrev_b32 v%d, 2, v%d' % (vT0, vL))
        p('buffer_store_dword v%d, v%d, %s, s%d offen' % (vDUM, vT0, srd(SWS), sT0))
    p('s_cmp_eq_u32 s%d, 15' % sR); p('s_cbranch_scc0 L_exit')
    p('s_cmp_eq_u32 s%d, 13' % sC); p('s_cbranch_scc0 L_exit')
    p('s_cmp_eq_u32 s%d, 3' % sW); p('s_cbranch_scc0 L_exit')
    p('s_mov_b32 s%d, %d' % (sT0, WS_EPOCH))
    p.extend(flag_group(sT0, 0))
    p('s_endpgm')

def pstamp(p, k):
    if not OPT['stamps']: return
    p('s_memtime s[90:91]'); p('s_waitcnt lgkmcnt(0)'); p('v_writelane_b32 v%d, s90, %d' % (vDUM, k))

def prep_path(p):
    SW2, SCRE, SCIM = 44, 48, 52
    sQ, sKF, sF0, sKS, sT0T, sCBK, sCTG, sFF = 8, 84, 85, 86, 87, 88, 89, 92
    p('L_prep:')
    p.reset()
    p('s_lshl_b32 s%d, s%d, 2' % (sQ, sT0)); p('s_add_u32 s%d, s%d, s%d' % (sQ, sQ, sT1)); p('s_sub_u32 s%d, s%d, 28' % (sQ, sQ))
    p('s_cmp_ge_u32 s%d, 28' % sQ); p('s_cbranch_scc1 L_exit')
    p('s_lshr_b32 s%d, s%d, 1' % (sF0, sQ)); p('s_lshl_b32 s%d, s%d, 7' % (sF0, sF0))
    p('s_and_b32 s%d, s%d, 1' % (sT0, sQ)); p('s_lshl_b32 s%d, s%d, 4' % (sT0, sT0)); p('s_add_u32 s%d, s%d, s%d' % (sF0, sF0, sT0))
    p('s_mul_i32 s%d, s%d, 896' % (sF0, sF0))
    p('s_lshl_b32 s%d, s%d, 2' % (sT0T, sW)); p('s_min_u32 s%d, s%d, 10' % (sT0T, sT0T))
    p('s_lshl_b32 s%d, s%d, 6' % (sT0, sT0T)); p('s_add_u32 s%d, s%d, s%d' % (sF0, sF0, sT0))
    p('s_mul_i32 s%d, s%d, 26624' % (sLW, sW))
    vWO = 21
    p('v_lshrrev_b32 v%d, 4, v%d' % (vWO, vL)); p('v_mul_u32_u24 v%d, 896, v%d' % (vWO, vWO))
    p('v_and_b32 v%d, 15, v%d' % (vT2, vL)); p('v_lshl_add_u32 v%d, v%d, 4, v%d' % (vWO, vT2, vWO))
    p('s_lshl_b32 s%d, s%d, 2' % (sKF, sQ)); p('s_add_u32 s%d, s%d, s%d' % (sKF, sKF, sW))
    p('s_mul_i32 s%d, s%d, 4682' % (sCBK, sKF)); p('s_lshr_b32 s%d, s%d, 16' % (sCBK, sCBK))
    p('s_mul_i32 s%d, s%d, 14' % (sT0, sCBK)); p('s_sub_u32 s%d, s%d, s%d' % (sCTG, sKF, sT0))
    p('s_waitcnt lgkmcnt(0)')
    mk_srd(p, SW2, 38, 1792 * 896)
    def w2dma(T):
        for i in range(4):
            p('s_add_u32 m0, s%d, %d' % (sLW, T * 4096 + i * 1024)); p('s_add_u32 s%d, s%d, %d' % (sT0, sF0, T * 28672 + i * 3584))
            p('buffer_load_dwordx4 v%d, %s, s%d offen lds' % (vWO, srd(SW2), sT0), tok=('w2', T))
    w2dma(0)
    mk_srd(p, SWS, 6, WS_END)
    p('buffer_load_dwordx2 v[%d:%d], v%d, %s, 0 offen sc1' % (TMP + 28, TMP + 29, vZ, srd(SWS)))
    w2dma(1)
    mk_srd(p, SLRE, 18, 896); mk_srd(p, SLIM, 20, 896); mk_srd(p, SLDT, 30, 896)
    p('v_lshlrev_b32 v%d, 1, v%d' % (vT2, vL)); p('s_lshl_b32 s%d, s%d, 7' % (sT1, sCBK))
    p('buffer_load_ushort v%d, v%d, %s, s%d offen' % (TMP + 0, vT2, srd(SLRE), sT1))
    p('buffer_load_ushort v%d, v%d, %s, s%d offen' % (TMP + 1, vT2, srd(SLIM), sT1))
    p('buffer_load_ushort v%d, v%d, %s, s%d offen' % (TMP + 2, vT2, srd(SLDT), sT1))
    w2dma(2)
    mk_srd(p, SCRE, 26, 448 * 896); mk_srd(p, SCIM, 28, 448 * 896)
    vA = 16
    p('v_lshrrev_b32 v%d, 2, v%d' % (vA, vL)); p('v_and_b32 v%d, 3, v%d' % (vA, vA))
    p('v_lshl_add_u32 v%d, v%d, 2, v%d' % (vA, vH, vA)); p('v_lshlrev_b32 v%d, 8, v%d' % (vA, vA))
    p('v_and_b32 v%d, 16, v%d' % (vT2, vL)); p('v_lshl_add_u32 v%d, v%d, 1, v%d' % (vA, vT2, vA))
    p('v_and_b32 v%d, 3, v%d' % (vT2, vL)); p('v_lshl_add_u32 v%d, v%d, 3, v%d' % (vA, vT2, vA))
    p('v_add_u32 v%d, s%d, v%d' % (vA, sLW, vA))
    vC = [17, 18, 19, 20]
    p('v_lshrrev_b32 v%d, 1, v%d' % (vT2, vP)); p('v_and_b32 v%d, 7, v%d' % (vT2, vT2))
    p('v_xor_b32 v%d, v%d, v%d' % (vT2, vT2, vH)); p('v_lshlrev_b32 v%d, 4, v%d' % (vT2, vT2))
    p('v_lshl_add_u32 v%d, v%d, 7, v%d' % (vT2, vP, vT2))
    p('v_add_u32 v%d, s%d, v%d' % (vC[0], sLW, vT2))
    for i in range(1, 4): p('v_xor_b32 v%d, %d, v%d' % (vC[i], i << 5, vC[0]))
    p('s_lshr_b32 s%d, s%d, 1' % (sKS, sT0T)); p('s_mul_i32 s%d, s%d, 168' % (sKS, sKS)); p('s_add_u32 s%d, s%d, s%d' % (sKS, sKS, sQ))
    p('s_lshl_b32 s%d, s%d, 11' % (sKS, sKS)); p('s_add_u32 s%d, s%d, %d' % (sKS, sKS, WS_W2F))
    p('s_lshl_b32 s%d, s%d, 5' % (sFF, sW)); p('s_add_u32 s%d, s%d, s%d' % (sFF, sFF, sQ)); p('s_lshl_b32 s%d, s%d, 3' % (sFF, sFF))
    p('s_mul_i32 s%d, s%d, %d' % (sT2, sCTG, 32 * 896)); p('s_add_u32 s%d, s%d, s%d' % (sT2, sT2, sT1))
    if OPT.get('ptlb', 0):
        p('v_and_b32 v%d, 3, v%d' % (vT2, vL)); p('v_mul_u32_u24 v%d, %d, v%d' % (vT2, 28 * 2048, vT2))
        p('v_lshrrev_b32 v%d, 2, v%d' % (vT3, vL)); p('v_mul_u32_u24 v%d, %d, v%d' % (vT3, 168 * 2048, vT3))
        p('v_add_u32 v%d, v%d, v%d' % (vT2, vT2, vT3))
        p('s_mov_b64 exec, 0xff')
        p('buffer_load_dword v%d, v%d, %s, s%d offen sc1' % (TMP + 12, vT2, srd(SWS), sKS), tok='ptlb')
        p('s_mov_b64 exec, -1')
    pstamp(p, 0)
    FRG = 64
    def stage(T):
        p.waitvm(('w2', T))
        for ct4 in range(4):
            for hh in range(2):
                p('ds_read_b64_tr_b16 %s, v%d offset:%d' % (v2(FRG + 16 * T + 4 * ct4 + 2 * hh), vA, T * 4096 + hh * 2048 + ct4 * 64))
        for ct4 in range(4):
            if ct4 % 2 == 0: p('s_add_u32 s%d, s%d, %d' % (sT0, sKS, ((ct4 // 2) * 168 + 28 * T) * 2048))
            p('buffer_store_dwordx4 %s, v%d, %s, s%d offen offset:%d sc1' % (v4(FRG + 16 * T + 4 * ct4), vL16, srd(SWS), sT0, (ct4 % 2) * 1024), tok=('fst', T))
    def cdma():
        for comp in range(2):
            for rg in range(4):
                p('s_add_u32 m0, s%d, %d' % (sLW, 16384 + comp * 4096 + rg * 1024))
                p('s_add_u32 s%d, s%d, %d' % (sT0, sT2, rg * 7168))
                p('buffer_load_dwordx4 v%d, %s, s%d offen lds' % (vT0 if rg % 2 == 0 else vT1, srd(SCRE if comp == 0 else SCIM), sT0), tok='c')
            if comp == 0 and PO == 0:
                p.extend(flag_group(sFF, WS_PF, ('fst', 0)))
                pstamp(p, 2)
    PO = OPT.get('pord', 0)
    if PO == 2:
        p.waitvm(('w2', 0)); w2dma(3); cdma()
    if PO == 3:
        p.waitvm(('w2', 0)); w2dma(3)
    stage(0)
    pstamp(p, 1)
    stage(1)
    stage(2)
    tag_setup(p, TMP + 28)
    if PO < 2: w2dma(3)
    if PO != 2: cdma()
    lr, li = TMP + 6, TMP + 7
    lam_from(p, TMP + 0, TMP + 1, TMP + 2, lr, li, TMP + 4, TMP + 5)
    p('v_add_f32 v%d, -1.0, v%d' % (lr, lr))
    p('v_mul_f32 v%d, v%d, v%d' % (TMP + 4, TMP + 0, TMP + 0)); p('v_fmac_f32 v%d, v%d, v%d' % (TMP + 4, TMP + 1, TMP + 1))
    p('v_rcp_f32 v%d, v%d' % (TMP + 4, TMP + 4))
    p('v_mul_f32 v%d, v%d, v%d' % (TMP + 8, lr, TMP + 0)); p('v_fmac_f32 v%d, v%d, v%d' % (TMP + 8, li, TMP + 1))
    p('v_add_f32 v%d, v%d, v%d' % (TMP + 4, TMP + 4, TMP + 4))
    p('v_mul_f32 v%d, v%d, v%d' % (TMP + 9, li, TMP + 0)); p('v_fma_f32 v%d, -v%d, v%d, v%d' % (TMP + 9, lr, TMP + 1, TMP + 9))
    p('v_mul_f32 v%d, v%d, v%d' % (TMP + 8, TMP + 8, TMP + 4)); p('v_mul_f32 v%d, v%d, v%d' % (TMP + 9, TMP + 9, TMP + 4))
    p('v_lshl_add_u32 v%d, v%d, 3, s%d' % (vT2, vL, sLW))
    p('ds_write_b64 v%d, v[%d:%d] offset:%d' % (vT2, TMP + 8, TMP + 9, 24576))
    p('v_lshl_add_u32 v%d, v%d, 6, s%d' % (vT2, vH, sLW))
    if PO:
        p.extend(flag_group(sFF, WS_PF, ('fst', 0)))
        pstamp(p, 2)
    stage(3)
    p('s_lshl_b32 s%d, s%d, 3' % (sT0, sCBK)); p('s_add_u32 s%d, s%d, 112' % (sT0, sT0)); p('s_lshl_b32 s%d, s%d, 11' % (sKS, sT0))
    p('s_lshr_b32 s%d, s%d, 1' % (sT0, sCTG)); p('s_mul_i32 s%d, s%d, %d' % (sT0, sT0, 168 * 2048)); p('s_add_u32 s%d, s%d, s%d' % (sKS, sKS, sT0))
    p('s_and_b32 s%d, s%d, 1' % (sT0, sCTG)); p('s_lshl_b32 s%d, s%d, 10' % (sT0, sT0)); p('s_add_u32 s%d, s%d, s%d' % (sKS, sKS, sT0))
    p('s_add_u32 s%d, s%d, %d' % (sKS, sKS, WS_W2F))
    CR = 24; CF = 128; U = 56; O = 192
    p.waitvm('c')
    for g4 in range(4):
        p('ds_read_b128 %s, v%d offset:%d' % (v4(CR + 8 * g4), vC[g4], 16384))
        p('ds_read_b128 %s, v%d offset:%d' % (v4(CR + 8 * g4 + 4), vC[g4], 16384 + 4096))
        for k in range(4): p('ds_read_b128 %s, v%d offset:%d' % (v4(CF + 16 * g4 + 4 * k), vT2, 24576 + 128 * g4 + 16 * k))
        if g4 == 1: p('s_waitcnt lgkmcnt(6)')
    for g4 in range(4):
        cr, ci = CR + 8 * g4, CR + 8 * g4 + 4
        o = O + 8 * g4
        for k in range(4):
            a0, b0, a1, b1 = CF + 16 * g4 + 4 * k, CF + 16 * g4 + 4 * k + 1, CF + 16 * g4 + 4 * k + 2, CF + 16 * g4 + 4 * k + 3
            p('v_lshlrev_b32 v%d, 16, v%d' % (U, cr + k)); p('v_and_b32 v%d, s%d, v%d' % (U + 1, sMHI, cr + k))
            p('v_lshlrev_b32 v%d, 16, v%d' % (U + 2, ci + k)); p('v_and_b32 v%d, s%d, v%d' % (U + 3, sMHI, ci + k))
            p('v_mul_f32 v%d, v%d, v%d' % (U + 4, a0, U)); p('v_fma_f32 v%d, -v%d, v%d, v%d' % (U + 4, b0, U + 2, U + 4))
            p('v_mul_f32 v%d, v%d, v%d' % (U + 5, a1, U + 1)); p('v_fma_f32 v%d, -v%d, v%d, v%d' % (U + 5, b1, U + 3, U + 5))
            p('v_mul_f32 v%d, -v%d, v%d' % (U + 6, a0, U + 2)); p('v_fma_f32 v%d, -v%d, v%d, v%d' % (U + 6, b0, U, U + 6))
            p('v_mul_f32 v%d, -v%d, v%d' % (U + 7, a1, U + 3)); p('v_fma_f32 v%d, -v%d, v%d, v%d' % (U + 7, b1, U + 1, U + 7))
            p('v_cvt_pk_bf16_f32 v%d, v%d, v%d' % (o + k, U + 4, U + 5))
            p('v_cvt_pk_bf16_f32 v%d, v%d, v%d' % (o + 4 + k, U + 6, U + 7))
        if g4 == 1: p.extend(flag_group(sFF, WS_PF + 3072, ('fst', 3)))
    p('s_cmp_ge_u32 s%d, 98' % sKF); p('s_cbranch_scc1 L_prep_fin')
    for g4 in range(4):
        o = O + 8 * g4
        p('s_add_u32 s%d, s%d, %d' % (sT0, sKS, (4 * (g4 >> 1) + (g4 & 1)) * 2048))
        p('s_add_u32 s%d, s%d, 4096' % (sT1, sT0))
        p('buffer_store_dwordx4 %s, v%d, %s, s%d offen sc1' % (v4(o), vL16, srd(SWS), sT0))
        p('buffer_store_dwordx4 %s, v%d, %s, s%d offen sc1' % (v4(o + 4), vL16, srd(SWS), sT1))
    p('s_lshl_b32 s%d, s%d, 3' % (sT0, sCTG)); p('s_add_u32 s%d, s%d, s%d' % (sT0, sT0, sCBK)); p('s_lshl_b32 s%d, s%d, 3' % (sT0, sT0))
    p('s_waitcnt vmcnt(0)')
    p.extend(flag_group(sT0, WS_PF + 4096))
    p('L_prep_fin:')
    if OPT['stamps']:
        pstamp(p, 3)
        p('v_writelane_b32 v%d, s%d, 62' % (vDUM, SOUT)); p('v_writelane_b32 v%d, s%d, 61' % (vDUM, SOUT + 2))
        p('s_lshl_b32 s%d, s2, 2' % sT0); p('s_add_u32 s%d, s%d, s%d' % (sT0, sT0, sW)); p('s_lshl_b32 s%d, s%d, 8' % (sT0, sT0))
        p('s_add_u32 s%d, s%d, %d' % (sT0, sT0, WS_STAMP))
        p('v_lshlrev_b32 v%d, 2, v%d' % (vT0, vL))
        p('buffer_store_dword v%d, v%d, %s, s%d offen' % (vDUM, vT0, srd(SWS), sT0))
    p('L_exit:')
    p('s_endpgm')

HEADER = open('parallel_sum__ssm_conv_s5__dense_activation_silu__prompt.s.ref').read().split('; Override launch')[0]

def build():
    p = Prog()
    prologue_common(p)
    main_path(p)
    for q in retry_blocks:
        p.reset(); p.extend(q.ins)
    prep_path(p)
    if OPT.get('abl'):
        out = []; cnt = 0
        lo = stamp_slots.index(OPT.get('ablo', 'T0') if isinstance(OPT.get('ablo', 'T0'), str) else stamp_slots[OPT['ablo']]); hi_ = stamp_slots.index('T2') if 'abhi' not in OPT else OPT['abhi']
        inside = False
        for i in p.ins:
            if i.op == 'v_writelane_b32':
                k = int(i.text.split(',')[-1])
                if k == lo: inside = True
                if k == hi_: inside = False
                out.append(i); continue
            a = OPT['abl']
            if inside and (a & 64) and (i.kind in ('vload', 'dma', 'vstore', 'needvm') or (i.kind == 'branch' and 'retry' in i.text)): continue
            if inside and (a & 128) and i.kind == 'salu' and 'exec' not in i.text and 'vcc' not in i.text: continue
            if inside and i.note != 'glue' and (((a & 1) and i.kind in ('vload', 'dma') and 'dwordx4' in i.text and 'sc1' in i.text) or ((a & 2) and i.kind == 'trans') or ((a & 4) and i.kind == 'valu')
                           or ((a & 8) and i.kind == 'dsread') or ((a & 16) and i.kind == 'vstore' and 'dwordx4' in i.text) or ((a & 32) and i.kind == 'mfma')):
                continue
            out.append(i)
        p.ins = out
    ins = finalize(p)
    if OPT.get('wlo') is not None:
        out = []; inside = False; slot = 30
        for i in ins:
            if i.op == 'v_writelane_b32' and 's%d,' % sP0 in i.text:
                k = int(i.text.split(',')[-1])
                if k == OPT['wlo']: inside = True
                if k == OPT['whi']: inside = False
            if inside and i.kind in ('dma', 'vload', 'vstore') and OPT.get('wv'): OPT['wskip'] = OPT.get('wskip', 0) - 1
            if inside and slot < 59 and ((i.kind in ('dma', 'vload', 'vstore') and OPT.get('wskip', 0) < 0) if OPT.get('wv') else ((i.kind == 'wait' and 'vmcnt' in i.text) or i.kind == 'barrier')):
                out += [Ins('s_memtime s[62:63]')] if False else []
                out += [Ins('s_memtime s[64:65]'), i, Ins('s_memtime s[72:73]'), Ins('s_waitcnt lgkmcnt(0)'),
                        Ins('v_writelane_b32 v%d, s64, %d' % (vDUM, slot)), Ins('v_writelane_b32 v%d, s72, %d' % (vDUM, slot + 1))]
                print('W%d: %s' % (slot, i.text)); slot += 2
            else: out.append(i)
        ins = out
    ins = [i for i in ins if not i.text.startswith(('; pad', '; need', '; after', '; at'))]
    body = text_of(ins)
    s = HEADER
    s += '; @launch grid=(256,1,1) block=(256,1,1) lds=%d\n' % LDS_BYTES
    s += '.amdgcn_target "amdgcn-amd-amdhsa--gfx950"\n.text\n.globl %s\n.p2align 8\n.type %s,@function\n%s:\n' % (KNAME, KNAME, KNAME)
    s += body
    s += 'L_code_end:\n'
    s += '.section .rodata,"a"\n.p2align 6\n.amdhsa_kernel %s\n' % KNAME
    s += '  .amdhsa_next_free_vgpr 512\n  .amdhsa_next_free_sgpr 102\n  .amdhsa_accum_offset 256\n  .amdhsa_group_segment_fixed_size 0\n'
    s += '  .amdhsa_kernarg_size 120\n  .amdhsa_user_sgpr_count 2\n  .amdhsa_user_sgpr_kernarg_segment_ptr 1\n  .amdhsa_system_sgpr_workgroup_id_x 1\n'
    s += '  .amdhsa_float_denorm_mode_32 3\n'
    s += '.end_amdhsa_kernel\n'
    return s, ins

if __name__ == '__main__':
    s, ins = build()
    open(sys.argv[1], 'w').write(s)
    from collections import Counter
    c = Counter(i.kind for i in ins)
    print('instructions:', sum(v for k, v in c.items() if k != 'label'), dict(c))
    if OPT['stamps']: print('stamps:', ','.join(stamp_slots))
```

```python
import sys, os
sys.path.insert(0, os.path.dirname(os.path.abspath(__file__)))
from dsl import *

KNAME = 'parallel_sum__ssm_conv_s5__dense_activation_silu__prompt_kernel'
OPT = dict(stamps=0, rot=1, w1pf=0, cpf=1, spin=1 << 16, dbg=0, dbgwave=0, per=70, perd=72, lead=22, ahead=10, w2s=12, dot=1, pk=0, w2early=1, tlb=0, fillc=30, ldsw2=1, rotA=0, gpf=0, xup=5, ost=1, sshare=0, ns=0, perx=36, tp=1800, tc=3000, loc=0, send=24, p2=3, p3=9, p4=16, pd=6, f3=0, f4=7, c1=2, tf=900, tp0=1000, tc0=500, tp1=1300, tf2=1400, perh=80)
for a in sys.argv[2:]:
    k, v = a.split('='); OPT[k] = int(v)

HSC = '' if OPT.get('plain') else [' sc1', ' sc0 sc1'][OPT.get('hsc', 0)]
WS_EPOCH = 0
WS_PF    = 0xC000
WS_FL    = 0x2000
WS_EG    = 0x10000
WS_STAMP = 0x80000
WS_W2F   = 0x100000
WS_HID   = 0x400000
WS_END   = WS_HID + 64 * 168 * 1024
L0     = 8192
L_XW   = 24576
L_SW   = L0 + 98304
L_TR   = L0 + 114688
L_WT   = L_TR + 4 * 4608
L_RS   = 0
L_MR   = 512
L_EW   = 1536
LDS_BYTES = 163840
LOG2E = 0x3fb8aa3b
NLOG2E = 0xbfb8aa3b
INV2PI = 0x3e22f983

sR, sC, sW, sROT, sTL, sTH, sONE, sMHI = 8, 9, 10, 11, 12, 13, 14, 15
SX, SBRE, SBIM, SW1, SWS, SOUT, SLRE, SLIM, SLDT, SDSK, SCODE = 40, 44, 48, 52, 56, 60, 64, 68, 72, 76, 80
SEG = 44
KB = [84 + j for j in range(7)]
W1K = [91 + j for j in range(7)]
sT0, sT1, sLW, sT2 = 98, 99, 100, 101
BM0 = [64 + j for j in range(7)]
sHW, sCB, sHALF, sRT0, sPMASK, sW2, sH0, sH1, sSPIN, sFW = 16, 17, 18, 19, 20, 21, 22, 23, 24, 25
sT3, sT4, sT5, sT6 = 26, 27, 28, 29
sP0 = 30
sW2S, sH0S, sH1S, sHWS, sIDX, sM1 = 32, 33, 34, 35, 36, 37
RSO = [72 + j for j in range(4)] + [38, 39, 3]
def srd(b): return 's[%d:%d]' % (b, b + 3)
def v4(b): return ('v[%d:%d]' % (b, b + 3)) if b < 256 else ('a[%d:%d]' % (b - 256, b - 253))
def v2(b): return ('v[%d:%d]' % (b, b + 1)) if b < 256 else ('a[%d:%d]' % (b - 256, b - 255))
def v16(b): return 'v[%d:%d]' % (b, b + 15)

vL = 1; vL16 = 2; vT0, vT1, vT2, vT3 = 3, 4, 5, 6
vM, vS, vNK, vRSv = 7, 8, 9, 10
vZ = 11; vH = 12; vP = 13; vFA = 14; vDUM = 15
X = 16
SRE, SIM, F0, F1 = 128, 144, 160, 176
vXO = [192, 193, 194, 195]
vBO = 196
vW1O = [197, 198]
vRX = [199, 200, 201, 202]
vRF = [[203, 204], [205, 206]]
L1r, L1i, N1i, L2r, L2i, L3r, L3i, L4r, L4i, L32r, L32i, L128r, L128i, L256r, L256i = range(207, 222)
vTW, vTRr = 222, 223
vFA2, vFA3 = 201, 202
TMP = 224
WB = 256 + 224
FR = TMP + 26
FR2 = TMP + 24
TAGP = TMP + 30
vNM = TMP + 16
sSELL, sSELH = 70, 71
sPS, sPM2, sLT, sLA = 68, 69, 67, 66
sRS0, sRS1 = 82, 83
vPF = TMP + 28

def cost(i):
    if i.kind in ('label', 'needvm', 'needlgkm', 'reset'): return 0
    if i.kind in ('trans', 'mfma'): return 8
    if i.kind == 'nop': return 4 * i.width
    if i.kind in ('valu', 'dot', 'perm') and (i.op in ('v_fma_f32', 'v_cvt_pk_bf16_f32', 'v_lshl_add_u32', 'v_add3_u32', 'v_mul_lo_u32') or '0x' in i.text): return 5
    if i.kind in ('vload', 'vstore', 'dma'): return 8
    return 4

def weave(comp, groups, period, start=0, pdma=None, small=(), events=()):
    out = []; t = 0; pipe = 0; nxt = start; groups = list(groups); noins = 0
    pdma = pdma or period; nm = 0; events = sorted(events, key=lambda e: e[0])
    for i in comp:
        if i.kind == 'mfma':
            t = max(t, pipe); pipe = t + 32; nm += 1
        out.append(i); t += cost(i)
        if 'exec' in i.text and i.kind == 'salu':
            noins = 0 if i.text.endswith('exec, -1') else 1
        ok = not noins and not (i.kind == 'salu' and 'm0' in i.text) and i.kind not in ('needvm', 'needlgkm') and not getattr(i, 'note', None) == 'glue'
        if events and ok and t >= events[0][0]:
            g = events.pop(0)[1]; out.extend(g); t += sum(cost(x) for x in g); continue
        if groups and groups[0] and groups[0][0].text.startswith('; after') and nm < int(groups[0][0].text.split()[2]): continue
        if groups and groups[0] and groups[0][0].text.startswith('; at') and t < int(groups[0][0].text.split()[2]): continue
        if 'exec' in i.text and i.kind == 'salu':
            noins = 0 if i.text.endswith('exec, -1') else 1
        if groups and t >= nxt and not noins and not (i.kind == 'salu' and 'm0' in i.text) and i.kind not in ('needvm', 'needlgkm') and not getattr(i, 'note', None) == 'glue':
            g = groups.pop(0); out.extend(g); t += sum(cost(x) for x in g)
            nv = sum(1 for x in g if x.kind in ('dma', 'vload', 'vstore') and 'dwordx4' in x.text and not any('s[%d:%d]' % (b, b + 3) in x.text for b in small))
            pr = (period if any('sc1' in x.text for x in g) else pdma) * nv + (0 if nv else 40)
            nxt = max(nxt + pr, t - pr // 2)
    for e in events: out.extend(e[1])
    return out, groups

def G(*texts, tok=None):
    q = Prog()
    for t in texts: q(t, tok=tok)
    return q.ins

stamp_slots = []
def stamp(p, name):
    if not OPT['stamps']: return
    if OPT.get('rt') and name in ('issued0', 'first', 'x0in', 'Win', 'Ain', 'lbok', 'silu3', 'carry'): return
    if OPT.get('allg') and name in ('issued0', 'first', 'x0in', 'lead', 'Win', 'ssmend', 'Ain', 'lbok', 'T0', 'T1', 'T2', 'B1'): return
    k = len(stamp_slots); stamp_slots.append(name)
    p('s_memtime s[%d:%d]' % (sP0, sP0 + 1))
    if OPT.get('rt'): p('s_memrealtime s[64:65]')
    p('s_waitcnt lgkmcnt(0)')
    p('v_writelane_b32 v%d, s%d, %d' % (vDUM, sP0, k))
    if OPT.get('rt'): p('v_writelane_b32 v%d, s64, %d' % (vDUM, 30 + k))

def mk_srd(p, b, ptr, nbytes):
    p('s_mov_b32 s%d, s%d' % (b, ptr)); p('s_mov_b32 s%d, s%d' % (b + 1, ptr + 1))
    p('s_mov_b32 s%d, %d' % (b + 2, nbytes)); p('s_mov_b32 s%d, 0x20000' % (b + 3))

def bf16_round(p, dst, src):
    p('v_cvt_pk_bf16_f32 v%d, v%d, v%d' % (dst, src, src))
    p('v_lshlrev_b32 v%d, 16, v%d' % (dst, dst))

def lam_from(p, lre, lim, ldt, outr, outi, t0, t1):
    p('v_lshlrev_b32 v%d, 16, v%d' % (lre, lre))
    p('v_lshlrev_b32 v%d, 16, v%d' % (lim, lim))
    p('v_lshlrev_b32 v%d, 16, v%d' % (ldt, ldt))
    p('v_mul_f32 v%d, 0x%x, v%d' % (ldt, LOG2E, ldt))
    p('v_exp_f32 v%d, v%d' % (ldt, ldt))
    bf16_round(p, ldt, ldt)
    p('v_mul_f32 v%d, v%d, v%d' % (t0, ldt, lre))
    p('v_mul_f32 v%d, v%d, v%d' % (t1, ldt, lim))
    p('v_mul_f32 v%d, 0x%x, v%d' % (t0, LOG2E, t0))
    p('v_exp_f32 v%d, v%d' % (t0, t0))
    p('v_mul_f32 v%d, 0x%x, v%d' % (t1, INV2PI, t1))
    p('v_fract_f32 v%d, v%d' % (t1, t1))
    p('v_cos_f32 v%d, v%d' % (outr, t1))
    p('v_sin_f32 v%d, v%d' % (outi, t1))
    p('v_mul_f32 v%d, v%d, v%d' % (outr, t0, outr))
    p('v_mul_f32 v%d, v%d, v%d' % (outi, t0, outi))

def cmul(p, dr, di, ar, ai, br, bi):
    p('v_mul_f32 v%d, v%d, v%d' % (dr, ar, br))
    p('v_mul_f32 v%d, v%d, v%d' % (di, ar, bi))
    p('v_fma_f32 v%d, -v%d, v%d, v%d' % (dr, ai, bi, dr))
    p('v_fmac_f32 v%d, v%d, v%d' % (di, ai, br))

def cmac(p, dr, di, ar, ai, br, bi):
    p('v_fmac_f32 v%d, v%d, v%d' % (dr, ar, br))
    p('v_fmac_f32 v%d, v%d, v%d' % (di, ar, bi))
    p('v_fma_f32 v%d, -v%d, v%d, v%d' % (dr, ai, bi, dr))
    p('v_fmac_f32 v%d, v%d, v%d' % (di, ai, br))

def tag_setup(p, vlo):
    p('v_readfirstlane_b32 s%d, v%d' % (sTL, vlo))
    p('v_readfirstlane_b32 s%d, v%d' % (sTH, vlo + 1))
    p('s_mul_i32 s%d, s%d, 0x9e3779b1' % (sTL, sTL)); p('s_add_u32 s%d, s%d, 0x7f4a7c15' % (sTL, sTL))
    p('s_mul_i32 s%d, s%d, 0x85ebca6b' % (sTH, sTH)); p('s_add_u32 s%d, s%d, 0xc2b2ae35' % (sTH, sTH))
    p('v_mov_b32 v%d, s%d' % (TAGP, sTL)); p('v_mov_b32 v%d, s%d' % (TAGP + 1, sTH))

retry_blocks = []
def poll_check(name, mask, reload_text, FR=FR):
    p = Prog()
    p('v_cmp_ne_u32 vcc, s%d, v%d' % (sTL, FR))
    p('v_cmp_ne_u32 s[%d:%d], s%d, v%d' % (sP0, sP0 + 1, sTH, FR + 1))
    p('s_nop 1')
    p('s_or_b32 s%d, vcc_lo, s%d' % (sM1, sP0))
    p('s_and_b32 s%d, s%d, %s' % (sM1, sM1, mask))
    p('s_cbranch_scc1 L_retry_%s' % name)
    p('L_ok_%s:' % name)
    for i in p.ins: i.note = 'glue'
    q = Prog()
    q('L_retry_%s:' % name)
    q('s_mov_b32 s%d, 0' % sSPIN)
    q('L_loop_%s:' % name)
    q('s_sleep 1')
    q(reload_text)
    q('s_waitcnt vmcnt(0)')
    q('v_cmp_ne_u32 vcc, s%d, v%d' % (sTL, FR))
    q('v_cmp_ne_u32 s[%d:%d], s%d, v%d' % (sP0, sP0 + 1, sTH, FR + 1))
    q('s_add_u32 s%d, s%d, 1' % (sSPIN, sSPIN))
    if OPT['stamps']: q('v_add_u32 v%d, 1, v%d' % (vRSv, vRSv))
    q('s_cmp_gt_u32 s%d, %d' % (sSPIN, OPT['spin']))
    q('s_cbranch_scc1 L_ok_%s' % name)
    q('s_or_b32 s%d, vcc_lo, s%d' % (sM1, sP0))
    q('s_and_b32 s%d, s%d, %s' % (sM1, sM1, mask))
    q('s_cbranch_scc1 L_loop_%s' % name)
    q('s_branch L_ok_%s' % name)
    retry_blocks.append(q)
    return p.ins

def flag_group(base_s, add, waittok=None):
    q = Prog()
    if waittok is not None: q.waitvm(waittok)
    q('s_add_u32 s%d, s%d, %d' % (sM1, base_s, add))
    q('s_mov_b64 exec, 1')
    q('buffer_store_dwordx2 v[%d:%d], v%d, %s, s%d offen%s' % (TAGP, TAGP + 1, vZ, srd(SWS), sM1, HSC if base_s == sFW else ' sc1'))
    q('s_mov_b64 exec, -1')
    return q.ins

def prologue_common(p):
    p('s_cmp_ge_u32 s2, 256')
    p('s_cbranch_scc1 L_exit')
    p('s_load_dwordx16 s[16:31], s[0:1], 0')
    p('s_load_dwordx8 s[32:39], s[0:1], 64')
    p('s_load_dwordx2 s[4:5], s[0:1], 96')
    p('s_load_dwordx2 s[6:7], s[0:1], 112')
    if OPT['stamps']:
        p('s_memrealtime s[%d:%d]' % (SOUT, SOUT + 1))
        p('s_memtime s[%d:%d]' % (SOUT + 2, SOUT + 3))
    if OPT['cpf']:
        p('s_getpc_b64 s[%d:%d]' % (SCODE, SCODE + 1))
        p('L_pc:')
        p('v_lshrrev_b32 v%d, 5, v0' % vT1); p('v_and_b32 v%d, 6, v%d' % (vT1, vT1)); p('v_and_b32 v%d, 1, v0' % vT2)
        p('v_add_lshl_u32 v%d, v%d, v%d, 7' % (vT2, vT1, vT2))
        p('s_sub_u32 s%d, s%d, L_pc-%s' % (SCODE, SCODE, KNAME))
        p('s_subb_u32 s%d, s%d, 0' % (SCODE + 1, SCODE + 1))
        p('s_mov_b32 s%d, L_code_end-%s' % (SCODE + 2, KNAME))
        p('s_mov_b32 s%d, 0x20000' % (SCODE + 3))
        p('s_lshr_b32 s%d, s2, 3' % sT1); p('s_lshl_b32 s%d, s%d, 10' % (sT1, sT1))
        p('s_mov_b64 exec, 3')
        p('buffer_load_dword v%d, v%d, %s, s%d offen' % (F1, vT2, srd(SCODE), sT1), tok='cpf')
        p('s_mov_b64 exec, -1')
    p('v_lshrrev_b32 v%d, 6, v0' % vT0)
    p('v_and_b32 v%d, 63, v0' % vL)
    p('v_readfirstlane_b32 s%d, v%d' % (sW, vT0))
    p('v_lshlrev_b32 v%d, 4, v%d' % (vL16, vL))
    p('v_mov_b32 v%d, 0' % vZ)
    p('v_lshrrev_b32 v%d, 5, v%d' % (vH, vL))
    p('v_and_b32 v%d, 31, v%d' % (vP, vL))
    p('s_and_b32 s%d, s2, 7' % sT0)
    p('s_lshr_b32 s%d, s2, 3' % sT1)
    p('s_mov_b32 s%d, 0x3f803f80' % sONE)
    p('s_mov_b32 s%d, 0xffff0000' % sMHI)
    p('v_lshrrev_b32 v%d, 3, v%d' % (vT0, vL))
    p('v_mul_u32_u24 v%d, 896, v%d' % (vT0, vT0))
    p('v_lshrrev_b32 v%d, 4, v%d' % (vT1, vL))
    p('v_and_b32 v%d, 7, v%d' % (vT2, vL))
    p('v_xor_b32 v%d, v%d, v%d' % (vT1, vT1, vT2))
    p('v_lshl_add_u32 v%d, v%d, 4, v%d' % (vT0, vT1, vT0))
    p('v_xor_b32 v%d, 64, v%d' % (vT1, vT0))
    p('s_cmp_ge_u32 s%d, 28' % sT1)
    p('s_cbranch_scc1 L_prep')

def wrap7(p, dst, a, b_or_imm, tmp):
    p('s_add_u32 s%d, s%d, %s' % (dst, a, b_or_imm))
    p('s_cmp_ge_u32 s%d, 7' % dst)
    p('s_cselect_b32 s%d, 7, 0' % tmp)
    p('s_sub_u32 s%d, s%d, s%d' % (dst, dst, tmp))

def main_path(p):
    sXCD, sI7 = 78, 79
    p('s_mov_b32 s%d, s%d' % (sXCD, sT0)); p('s_mov_b32 s%d, s%d' % (sI7, sT1))
    if not OPT['loc']:
        p('s_mul_i32 s%d, s%d, 37' % (sT2, sT1)); p('s_lshr_b32 s%d, s%d, 8' % (sT2, sT2))
        p('s_mul_i32 s3, s%d, 7' % sT2); p('s_sub_u32 s%d, s%d, s3' % (sROT, sT1))
        p('s_lshr_b32 s%d, s%d, 1' % (sR, sT0)); p('s_lshl_b32 s%d, s%d, 2' % (sR, sR)); p('s_add_u32 s%d, s%d, s%d' % (sR, sR, sT2))
        p('s_and_b32 s%d, s%d, 1' % (sT0, sT0))
        p('s_mul_i32 s%d, s%d, 7' % (sC, sT0)); p('s_add_u32 s%d, s%d, s%d' % (sC, sC, sROT))
    else:
        p('s_cmp_ge_u32 s%d, 14' % sT1); p('s_cselect_b32 s%d, 1, 0' % sT2); p('s_cselect_b32 s3, 14, 0')
        p('s_sub_u32 s%d, s%d, s3' % (sC, sT1))
        p('s_lshl_b32 s%d, s%d, 1' % (sR, sT0)); p('s_add_u32 s%d, s%d, s%d' % (sR, sR, sT2))
        p('s_cmp_ge_u32 s%d, 7' % sC); p('s_cselect_b32 s%d, 1, 0' % sXCD); p('s_cselect_b32 s3, 7, 0')
        p('s_sub_u32 s%d, s%d, s3' % (sROT, sC))
        p('s_lshl_b32 s%d, s%d, 1' % (sT2, sT2))
    p('s_mul_i32 s%d, s%d, %d' % (sLW, sW, L_XW)); p('s_add_u32 s%d, s%d, %d' % (sLW, sLW, L0))
    p('s_lshl_b32 s%d, s%d, 7' % (KB[0], sROT)) if OPT['rot'] else p('s_mov_b32 s%d, 0' % KB[0])
    p('s_lshl_b32 s%d, s%d, 2' % (sT0, sR)); p('s_add_u32 s%d, s%d, s%d' % (sT0, sT0, sW))
    p('s_mul_i32 s%d, s%d, %d' % (sT1, sT0, 32 * 896))
    p('v_add_u32 v%d, s%d, v%d' % (vXO[0], sT1, vT0))
    p('v_add_u32 v%d, s%d, v%d' % (vXO[1], sT1, vT1))
    p('v_add_u32 v%d, %d, v%d' % (vXO[2], 14336 - 2048, vXO[0]))
    p('v_add_u32 v%d, %d, v%d' % (vXO[1], 7168 - 1024, vXO[1]))
    p('v_add_u32 v%d, %d, v%d' % (vXO[3], 14336 - 2048, vXO[1]))
    if OPT['stamps']: p('s_memtime s[76:77]')
    p('s_waitcnt lgkmcnt(0)')
    if OPT['stamps']:
        p('v_writelane_b32 v%d, s%d, 62' % (vDUM, SOUT)); p('v_writelane_b32 v%d, s%d, 61' % (vDUM, SOUT + 2))
        stamp_slots.append('prek'); p('v_writelane_b32 v%d, s76, 0' % vDUM)
        p('s_memtime s[%d:%d]' % (SOUT, SOUT + 1))
    mk_srd(p, SX, 16, 2048 * 896)
    def x_dma(j):
        out = [G('buffer_load_dwordx4 v%d, %s, s%d offen offset:%d lds' % (vXO[rg], srd(SX), KB[j], rg * 1024), tok=('x', j)) for rg in range(4)]
        out[0] = G('s_add_u32 m0, s%d, %d' % (sLW, j * 4096)) + out[0]
        return out
    fill = Prog()
    mk_srd(fill, SBRE, 22, 448 * 896); mk_srd(fill, SBIM, 24, 448 * 896)
    mk_srd(fill, SLRE, 18, 896); mk_srd(fill, SLIM, 20, 896); mk_srd(fill, SLDT, 30, 896); mk_srd(fill, SWS, 6, WS_END)
    mk_srd(fill, SW1, 36, 448 * 3584)
    fl = fill.ins
    for g in x_dma(0): p.extend(g)
    p.extend(fl[:8]); fl = fl[8:]
    p('s_and_b32 s%d, s%d, 1' % (sT1, sW)); p('s_lshl_b32 s%d, s%d, 6' % (sT1, sT1))
    p('v_xor_b32 v%d, s%d, v%d' % (vBO, sT1, vT0))
    p('s_mul_i32 s%d, s%d, 7168' % (sT1, sW)); p('s_mul_i32 s%d, s%d, %d' % (sT0, sC, 32 * 896)); p('s_add_u32 s%d, s%d, s%d' % (sT1, sT1, sT0))
    p('v_add_u32 v%d, s%d, v%d' % (vBO, sT1, vBO))
    p('s_lshl_b32 s%d, s%d, 1' % (sT2, sT2))
    p('s_lshl_b32 s%d, s%d, 12' % (W1K[0], sT2)); p('s_lshl_b32 s%d, s%d, 10' % (sT1, sW)); p('s_add_u32 s%d, s%d, s%d' % (W1K[0], W1K[0], sT1))
    p('s_add_u32 s%d, s%d, %d' % (sT1, sT1, 7 * 4096))
    for k in range(1, 7):
        p('s_add_u32 s%d, s%d, 4096' % (W1K[k], W1K[k - 1]))
        p('s_cmp_ge_u32 s%d, s%d' % (W1K[k], sT1))
        p('s_cselect_b32 s%d, %d, 0' % (sT0, 7 * 4096))
        p('s_sub_u32 s%d, s%d, s%d' % (W1K[k], W1K[k], sT0))
    p('s_lshl_b32 s%d, s%d, 7' % (sT2, sT2))
    p('s_add_u32 s%d, s%d, s%d' % (sT2, sT2, KB[0]))
    p('s_cmp_ge_u32 s%d, 896' % sT2); p('s_cselect_b32 s%d, 896, 0' % sT0); p('s_sub_u32 s%d, s%d, s%d' % (sT2, sT2, sT0))
    p('v_lshlrev_b32 v%d, 1, v%d' % (vT2, vP))
    p('s_lshl_b32 s%d, s%d, 6' % (sT1, sC))
    if OPT['stamps']:
        p('s_memtime s[%d:%d]' % (SOUT + 2, SOUT + 3)); p('s_waitcnt lgkmcnt(0)')
        stamp_slots.append('karg'); p('v_writelane_b32 v%d, s%d, 1' % (vDUM, SOUT))
        stamp_slots.append('x0'); p('v_writelane_b32 v%d, s%d, 2' % (vDUM, SOUT + 2))
    ssm_soff = [sT2]
    def ssm_dma(k, soff):
        return [G('s_add_u32 m0, s%d, %d' % (W1K[k], L_SW + T * 28672),
                  'buffer_load_dwordx4 v%d, %s, s%d offen lds' % (vBO, srd(SBRE if T == 0 else SBIM), soff), tok='ssmw') for T in range(2)]
    def next_soff(q, dst, src):
        q('s_add_u32 s%d, s%d, 128' % (dst, src)); q('s_cmp_ge_u32 s%d, 896' % dst); q('s_cselect_b32 s%d, 0, s%d' % (dst, dst))
    p('s_mov_b32 s%d, s%d' % (sRS0, sT2))
    next_soff(p, sT2, sT2)
    p('s_mov_b32 s%d, s%d' % (sRS1, sT2))
    share = ssm_dma(0, sRS0) + ssm_dma(1, sRS1)
    NSH = OPT.get('sshare', 4)
    for g in share[:NSH]:
        p.extend([g[0]] + fl[:4] + [g[1]]); fl = fl[4:]
    p.extend(fl)
    p('buffer_load_dwordx2 v[%d:%d], v%d, %s, 0 offen sc1' % (TMP + 28, TMP + 29, vZ, srd(SWS)))
    p('buffer_load_ushort v%d, v%d, %s, s%d offen' % (TMP + 0, vT2, srd(SLRE), sT1))
    p('buffer_load_ushort v%d, v%d, %s, s%d offen' % (TMP + 1, vT2, srd(SLIM), sT1))
    p('buffer_load_ushort v%d, v%d, %s, s%d offen' % (TMP + 2, vT2, srd(SLDT), sT1))
    gpf = Prog()
    if OPT['gpf']:
        gpf('s_mul_i32 s%d, s%d, 14' % (sT0, sR)); gpf('s_add_u32 s%d, s%d, s%d' % (sT0, sT0, sC)); gpf('s_lshl_b32 s%d, s%d, 2' % (sT0, sT0))
        gpf('s_add_u32 s%d, s%d, s%d' % (sT0, sT0, sW)); gpf('s_mul_i32 s%d, s%d, 1792' % (sT0, sT0))
        gpf('v_lshlrev_b32 v%d, 7, v%d' % (vT1, vL))
        gpf('s_mov_b64 exec, 0x3fff')
        gpf('buffer_load_dword v%d, v%d, %s, s%d offen' % (F1 + 5, vT1, srd(SW1), sT0), tok='cpf')
        gpf('s_mov_b64 exec, -1')
    if OPT['gpf'] == 1: p.extend(gpf.ins)
    if OPT['tlb']:
        p('v_lshlrev_b32 v%d, 21, v%d' % (vT1, vL))
        p('s_mov_b64 exec, 0xfe')
        p('buffer_load_dword v%d, v%d, %s, 0 offen' % (F1 + 3, vT1, srd(SWS)), tok='cpf')
        p('s_mov_b64 exec, 1')
        p('buffer_load_dword v%d, v%d, %s, 0 offen' % (F1 + 4, vZ, srd(SW1)), tok='cpf')
        p('s_mov_b64 exec, -1')
    stamp(p, 'issued0')
    if OPT.get('amp') == 99:
        p('v_readlane_b32 s%d, v%d, 62' % (sT0, vDUM)); p('s_lshl_b32 s%d, s2, 7' % sT1); p('s_add_u32 s%d, s%d, 0xF0000' % (sT1, sT1))
        p('v_mov_b32 v%d, s%d' % (F1 + 7, sT0))
        p('buffer_store_dword v%d, v%d, %s, s%d offen sc1' % (F1 + 7, vZ, srd(SWS), sT1))
    for j in range(1, 7):
        if OPT['rot']:
            p('s_add_u32 s%d, s%d, 128' % (KB[j], KB[j - 1]))
            p('s_cmp_ge_u32 s%d, 896' % KB[j])
            p('s_cselect_b32 s%d, 0, s%d' % (KB[j], KB[j]))
        else: p('s_mov_b32 s%d, %d' % (KB[j], j * 128))
    prev = sT2
    RS7 = [None, None, 38, 39, 34, 35, 3]
    p('s_and_b32 s%d, s%d, 1' % (sHALF, sXCD))
    mk_srd(p, SDSK, 32, 896)
    mk_srd(p, SOUT, 4, 2048 * 1792)
    for k in range(2, 7):
        next_soff(p, RS7[k], prev); prev = RS7[k]
    ssm_rest = []
    for k in range(2, 7): ssm_rest += ssm_dma(k, RS7[k])
    w1g = []
    if OPT['w1pf']:
        p('v_mul_u32_u24 v%d, 3584, v%d' % (vT1, vL))
        p('s_and_b32 s%d, s%d, 3' % (sT1, sR)); p('s_lshl_b32 s%d, s%d, 2' % (sT1, sT1)); p('s_add_u32 s%d, s%d, s%d' % (sT1, sT1, sW))
        p('s_mul_i32 s%d, s%d, %d' % (sT1, sT1, 28 * 3584))
        p('s_lshl_b32 s%d, s%d, 8' % (sT0, sC)); p('s_add_u32 s%d, s%d, s%d' % (sT1, sT1, sT0))
        p('v_add_u32 v%d, s%d, v%d' % (F1 + 2, sT1, vT1))
        w1g = [G('s_mov_b64 exec, 0x0fffffff', 'buffer_load_dword v%d, v%d, %s, 0 offen offset:128' % (F1 + 1, F1 + 2, srd(SW1)), 's_mov_b64 exec, -1', tok='cpf')]
    p('v_lshrrev_b32 v%d, 3, v%d' % (vT0, vL))
    p('v_mul_u32_u24 v%d, 3584, v%d' % (vT0, vT0))
    p('v_lshrrev_b32 v%d, 2, v%d' % (vT1, vL)); p('v_and_b32 v%d, 4, v%d' % (vT1, vT1))
    p('v_and_b32 v%d, 7, v%d' % (vT2, vL)); p('v_xor_b32 v%d, v%d, v%d' % (vT1, vT1, vT2))
    p('v_lshl_add_u32 v%d, v%d, 4, v%d' % (vT0, vT1, vT0))
    p('s_mul_i32 s%d, s%d, %d' % (sT1, sW, 16 * 3584)); p('s_lshl_b32 s%d, s%d, 8' % (sT0, sC)); p('s_add_u32 s%d, s%d, s%d' % (sT1, sT1, sT0))
    p('v_add_u32 v%d, s%d, v%d' % (vW1O[0], sT1, vT0))
    p('v_add_u32 v%d, %d, v%d' % (vW1O[1], 8 * 3584 - 1024, vW1O[0]))
    p('v_lshrrev_b32 v%d, 1, v%d' % (vT0, vP)); p('v_and_b32 v%d, 7, v%d' % (vT0, vT0))
    p('v_xor_b32 v%d, v%d, v%d' % (vT0, vT0, vH)); p('v_lshlrev_b32 v%d, 4, v%d' % (vT0, vT0))
    p('v_lshl_add_u32 v%d, v%d, 7, v%d' % (vT0, vP, vT0))
    p('v_add_u32 v%d, s%d, v%d' % (vRX[0], sLW, vT0))
    for i in range(1, 4): p('v_xor_b32 v%d, %d, v%d' % (vRX[i], i << 5, vRX[0]))
    p('v_lshrrev_b32 v%d, 2, v%d' % (vT0, vL)); p('v_and_b32 v%d, 3, v%d' % (vT0, vT0))
    p('v_lshlrev_b32 v%d, 7, v%d' % (vT1, vT0))
    p('v_lshl_add_u32 v%d, v%d, 10, v%d' % (vT1, vH, vT1))
    p('v_and_b32 v%d, 2, v%d' % (vT0, vT0)); p('v_lshl_add_u32 v%d, v%d, 5, v%d' % (vT1, vT0, vT1))
    p('v_and_b32 v%d, 16, v%d' % (vT0, vL)); p('v_lshl_add_u32 v%d, v%d, 1, v%d' % (vT1, vT0, vT1))
    p('v_and_b32 v%d, 3, v%d' % (vT0, vL)); p('v_lshl_add_u32 v%d, v%d, 3, v%d' % (vRF[0][0], vT0, vT1))
    p('v_add_u32 v%d, %d, v%d' % (vRF[0][0], L0, vRF[0][0]))
    p('v_xor_b32 v%d, 64, v%d' % (vRF[1][0], vRF[0][0]))
    p('v_add_u32 v%d, 0x10000, v%d' % (vRF[0][1], vRF[0][0]))
    p('v_add_u32 v%d, 0x10000, v%d' % (vRF[1][1], vRF[1][0]))
    p('s_mul_i32 s%d, s%d, 4608' % (sT1, sW)); p('s_add_u32 s%d, s%d, %d' % (sT1, sT1, L_TR))
    p('v_mul_u32_u24 v%d, 72, v%d' % (vT0, vP)); p('v_lshl_add_u32 v%d, v%d, 3, v%d' % (vT0, vH, vT0))
    p('v_add_u32 v%d, s%d, v%d' % (vTW, sT1, vT0))
    p('v_lshrrev_b32 v%d, 2, v%d' % (vT0, vL)); p('v_and_b32 v%d, 3, v%d' % (vT0, vT0))
    p('v_lshl_add_u32 v%d, v%d, 3, v%d' % (vT0, vH, vT0)); p('v_mul_u32_u24 v%d, 72, v%d' % (vT0, vT0))
    p('v_and_b32 v%d, 16, v%d' % (vT1, vL)); p('v_lshl_add_u32 v%d, v%d, 1, v%d' % (vT0, vT1, vT0))
    p('v_and_b32 v%d, 3, v%d' % (vT1, vL)); p('v_lshl_add_u32 v%d, v%d, 3, v%d' % (vT0, vT1, vT0))
    p('v_add_u32 v%d, s%d, v%d' % (vTRr, sT1, vT0))
    p('s_mov_b32 s%d, s%d' % (sCB, sROT))
    p('s_lshl_b32 s%d, s%d, 2' % (sT0, sR)); p('s_add_u32 s%d, s%d, s%d' % (sT1, sT0, sW))
    p('s_mul_i32 s%d, s%d, 168' % (sHW, sT1)); p('s_lshl_b32 s%d, s%d, 1' % (sT2, sC)); p('s_add_u32 s%d, s%d, s%d' % (sHW, sHW, sT2))
    p('s_lshl_b32 s%d, s%d, 10' % (sHW, sHW)); p('s_add_u32 s%d, s%d, %d' % (sHW, sHW, WS_HID))
    p('s_lshl_b32 s%d, s%d, 7' % (sFW, sT1)); p('s_lshl_b32 s%d, s%d, 3' % (sT2, sC)); p('s_add_u32 s%d, s%d, s%d' % (sFW, sFW, sT2))
    p('s_add_u32 s%d, s%d, %d' % (sFW, sFW, WS_FL))
    p('s_lshl_b32 s%d, s%d, 1' % (sT2, sHALF)); p('s_add_u32 s%d, s%d, s%d' % (sRT0, sT0, sT2))
    p('s_mul_i32 s%d, s%d, 7' % (sT2, sW))
    p('s_mul_i32 s%d, s%d, 168' % (sH0, sRT0)); p('s_add_u32 s%d, s%d, s%d' % (sH0, sH0, sT2)); p('s_lshl_b32 s%d, s%d, 10' % (sH0, sH0))
    p('s_add_u32 s%d, s%d, %d' % (sH0, sH0, WS_HID)); p('s_add_u32 s%d, s%d, %d' % (sH1, sH0, 168 * 1024))
    p('s_mul_i32 s%d, s%d, 168' % (sW2, sCB)); p('s_add_u32 s%d, s%d, s%d' % (sW2, sW2, sT2)); p('s_lshl_b32 s%d, s%d, 11' % (sW2, sW2))
    p('s_add_u32 s%d, s%d, %d' % (sW2, sW2, WS_W2F))
    p('s_lshr_b32 s%d, s%d, 1' % (sT0, sT2)); p('s_lshl_b32 s%d, 0x000f000f, s%d' % (sPMASK, sT0))
    p('s_lshl_b32 s%d, s%d, 11' % (sT0, sT2)); p('s_add_u32 s%d, s%d, s%d' % (sW2S, sW2, sT0))
    p('s_lshl_b32 s%d, s%d, 10' % (sT0, sT2)); p('s_add_u32 s%d, s%d, s%d' % (sH0S, sH0, sT0))
    p('v_and_b32 v%d, 16, v%d' % (vT0, vL)); p('v_lshlrev_b32 v%d, 3, v%d' % (vT0, vT0))
    p('v_and_b32 v%d, 15, v%d' % (vT1, vL)); p('v_lshl_add_u32 v%d, v%d, 3, v%d' % (vT0, vT1, vT0))
    p('s_lshl_b32 s%d, s%d, 7' % (sT2, sRT0)); p('s_add_u32 s%d, s%d, %d' % (sT2, sT2, WS_FL))
    p('v_add_u32 v%d, s%d, v%d' % (vFA, sT2, vT0))
    A0, A1, Q0, Q1 = TMP + 8, TMP + 9, TMP + 10, TMP + 11
    for a in (A0, A1, Q0, Q1): p('v_mov_b32 v%d, 0' % a)
    for j in range(1, OPT['xup'] + 1):
        for g in x_dma(j): p.extend(g)
        if j == 2 and OPT['gpf'] == 2: p.extend(gpf.ins)
    stamp(p, 'first')
    lam = Prog()
    LT = F1 + 8
    lam_from(lam, TMP + 0, TMP + 1, TMP + 2, L1r, L1i, LT, LT + 1)
    lam('v_sub_f32 v%d, 0, v%d' % (N1i, L1i))
    cmul(lam, L2r, L2i, L1r, L1i, L1r, L1i)
    cmul(lam, L3r, L3i, L2r, L2i, L1r, L1i)
    cmul(lam, L4r, L4i, L2r, L2i, L2r, L2i)
    cmul(lam, LT, LT + 1, L4r, L4i, L4r, L4i)
    cmul(lam, LT + 2, LT + 3, LT, LT + 1, LT, LT + 1)
    cmul(lam, L32r, L32i, LT + 2, LT + 3, LT + 2, LT + 3)
    cmul(lam, LT, LT + 1, L32r, L32i, L32r, L32i)
    cmul(lam, L128r, L128i, LT, LT + 1, LT, LT + 1)
    cmul(lam, L256r, L256i, L128r, L128i, L128r, L128i)
    tagp = Prog()
    tag_setup(tagp, TMP + 28)
    tagp('s_lshr_b32 s%d, s%d, 1' % (sT5, sCB)); tagp('s_lshl_b32 s%d, s%d, 8' % (sT5, sT5))
    tagp('s_lshl_b32 s%d, s%d, 7' % (sPS, sCB)); tagp('s_add_u32 s%d, s%d, 4096' % (sPS, sPS)); tagp('s_sub_u32 s%d, s%d, s%d' % (sPS, sPS, sT5))
    tagp('s_add_u32 s%d, s%d, %d' % (sT5, sT5, WS_PF))
    tagp('v_lshl_add_u32 v%d, v%d, 3, s%d' % (vPF, vP, sT5))
    tagp('s_mul_i32 s%d, s%d, 7' % (sT5, sW)); tagp('s_lshl_b32 s%d, 0x7f, s%d' % (sPM2, sT5))

    def x_read(q, j, slot):
        for i in range(4):
            q('ds_read_b128 %s, v%d offset:%d' % (v4(X + 16 * j + 4 * i), vRX[i], slot * 4096), tok=('xr', j))
    def x_stats(q, j):
        q.waitlgkm(('xr', j))
        for k in range(16):
            r_ = X + 16 * j + k
            q('v_dot2c_f32_bf16 v%d, s%d, v%d' % (A0 if k % 2 == 0 else A1, sONE, r_))
            q('v_dot2c_f32_bf16 v%d, v%d, v%d' % (Q0 if k % 2 == 0 else Q1, r_, r_))
    q = Prog()
    q.waitvm(('x', 0)); stamp(q, 'x0in'); x_read(q, 0, 0)
    for j in range(1, 6):
        q.waitvm(('x', j)); x_read(q, j, j)
        x_stats(q, j - 1)
    q('v_add_u32 v%d, s%d, v%d' % (vT0, sLW, vL16))
    for rg in range(4):
        q('ds_write_b128 v%d, %s offset:%d' % (vT0, v4(F0 + 4 * rg), rg * 1024))
    x_read(q, 6, 0)
    x_stats(q, 5)
    x_stats(q, 6)
    x6 = [G('buffer_load_dwordx4 %s, v%d, %s, s%d offen offset:%d' % (v4(F0 + 4 * rg), vXO[rg], srd(SX), KB[6], rg * 1024)) for rg in range(4)]
    vm = []
    for j in range(OPT['xup'] + 1, 6): vm += x_dma(j)
    NS = OPT.get('ns', 4)
    vm += x6 + share[NSH:] + ([gpf.ins] if OPT['gpf'] == 3 else []) + ssm_rest[:NS]
    st, left = weave(q.ins, vm, OPT.get('perx', 44))
    assert not left, len(left)
    p.extend(st)
    stamp(p, 'x_in')
    w1k = Prog()
    for j in range(7): w1k('s_mul_i32 s%d, s%d, 1792' % (W1K[j], KB[j]))
    dma = []
    for dt in range(2):
        for j in range(7 if dt == 0 else 5):
            for e in range(2):
                l_off = (0 if dt == 0 else 14336 - 128) + 2 * j * 1024
                dma.append((G('s_add_u32 m0, s%d, %d' % (sLW, l_off)) if e == 0 else []) + G(
                    'buffer_load_dwordx4 v%d, %s, s%d offen offset:%d lds' % (vW1O[e], srd(SW1), W1K[j], 128 * dt + 1024 * e), tok='ffnA' if dt == 0 else 'ffnB'))
    q = Prog()
    q('v_add_f32 v%d, v%d, v%d' % (A0, A0, A1)); q('v_add_f32 v%d, v%d, v%d' % (Q0, Q0, Q1))
    q('v_mov_b32 v%d, v%d' % (A1, A0)); q('v_mov_b32 v%d, v%d' % (Q1, Q0))
    q('v_permlane32_swap_b32 v%d, v%d' % (A0, A1)); q('v_permlane32_swap_b32 v%d, v%d' % (Q0, Q1))
    q('v_add_f32 v%d, v%d, v%d' % (A0, A0, A1)); q('v_add_f32 v%d, v%d, v%d' % (Q0, Q0, Q1))
    q('v_mul_f32 v%d, 0x3b124925, v%d' % (A0, A0))
    q('v_mul_f32 v%d, 0x3b124925, v%d' % (Q0, Q0))
    q('v_fma_f32 v%d, -v%d, v%d, v%d' % (Q0, A0, A0, Q0))
    q('v_max_f32 v%d, 0, v%d' % (Q0, Q0))
    bf16_round(q, vM, A0)
    bf16_round(q, Q0, Q0)
    q('v_add_f32 v%d, 0x3727c5ac, v%d' % (Q0, Q0))
    bf16_round(q, Q0, Q0)
    q('v_sqrt_f32 v%d, v%d' % (Q0, Q0))
    bf16_round(q, vS, Q0)
    q('v_rcp_f32 v%d, v%d' % (vRSv, vS))
    q('s_lshl_b32 s%d, s%d, 7' % (sT3, sW))
    q('v_lshl_add_u32 v%d, v%d, 2, s%d' % (vT0, vP, sT3))
    q('v_mul_f32 v%d, 0x%x, v%d' % (vNK, NLOG2E, vRSv))
    q('ds_write_b32 v%d, v%d offset:%d' % (vT0, vRSv, L_RS))
    q('v_lshlrev_b32 v%d, 1, v%d' % (vT0, vT0))
    q('v_mov_b32 v%d, v%d' % (TMP + 12, vM)); q('v_mov_b32 v%d, v%d' % (TMP + 13, vRSv))
    q('ds_write_b64 v%d, v[%d:%d] offset:%d' % (vT0, TMP + 12, TMP + 13, L_MR))
    q('s_sub_u32 s%d, %d, s%d' % (sT4, L_SW, sLW))
    for i in range(4): q('v_add_u32 v%d, s%d, v%d' % (vRX[i], sT4, vRX[i]))
    if OPT['stamps']: q('v_mov_b32 v%d, 0' % vRSv)

    def d_step(ks, mode=0):
        z = Prog()
        if mode == 1:
            for k in range(4):
                z('v_dot2_f32_bf16 v%d, v%d, s%d, v%d' % (TMP + 8 + 2 * k, X + 4 * ks + k, sSELL, vNM))
                z('v_dot2_f32_bf16 v%d, v%d, s%d, v%d' % (TMP + 9 + 2 * k, X + 4 * ks + k, sSELH, vNM))
            for k in range(4):
                z('v_cvt_pk_bf16_f32 v%d, v%d, v%d' % (X + 4 * ks + k, TMP + 8 + 2 * k, TMP + 9 + 2 * k))
            return z.ins
        if mode == 2:
            for k in range(4):
                r_ = X + 4 * ks + k; lo = TMP + 8 + 2 * (k % 2)
                z('v_lshlrev_b32 v%d, 16, v%d' % (lo, r_))
                z('v_and_b32 v%d, s%d, v%d' % (lo + 1, sMHI, r_))
                z('v_pk_add_f32 v[%d:%d], v[%d:%d], v[%d:%d] op_sel_hi:[1,0]' % (lo, lo + 1, lo, lo + 1, vNM, vNM + 1))
                z('v_cvt_pk_bf16_f32 v%d, v%d, v%d' % (r_, lo, lo + 1))
            return z.ins
        for k in range(4):
            r_ = X + 4 * ks + k; lo, hi = TMP + 8 + 2 * (k % 2), TMP + 9 + 2 * (k % 2)
            z('v_lshlrev_b32 v%d, 16, v%d' % (lo, r_))
            z('v_and_b32 v%d, s%d, v%d' % (hi, sMHI, r_))
            z('v_sub_f32 v%d, v%d, v%d' % (lo, lo, vM))
            z('v_sub_f32 v%d, v%d, v%d' % (hi, hi, vM))
            z('v_cvt_pk_bf16_f32 v%d, v%d, v%d' % (r_, lo, hi))
        return z.ins
    LEAD = OPT['lead']
    q('v_sub_f32 v%d, 0, v%d' % (vNM, vM))
    q('s_mov_b32 s%d, 0x3f80' % sSELL); q('s_mov_b32 s%d, 0x3f800000' % sSELH)
    for ks in range(LEAD): q.extend(d_step(ks, 1 if OPT['dot'] else 0))
    q.extend(tagp.ins)
    stamp(q, 'lead')
    q.waitvm('ssmw')
    stamp(q, 'Win')
    q('s_barrier')
    stamp(q, 'B1')
    def wbuf(n): return WB + 4 * (n % 8)
    def ssm_read(n):
        ks, T = n // 2, n % 2
        return G('ds_read_b128 %s, v%d offset:%d' % (v4(wbuf(n)), vRX[ks % 4], T * 28672 + (ks // 4) * 4096), tok=('wf', n))
    PRE = 6
    for n in range(PRE): q.extend(ssm_read(n))
    groups = []
    for ks in range(28):
        z = Prog()
        z.waitlgkm(('wf', 2 * ks + 1))
        for T in range(2):
            n = 2 * ks + T; acc = SRE if T == 0 else SIM
            z('v_mfma_f32_32x32x16_bf16 %s, %s, %s, %s' % (v16(acc), v4(X + 4 * ks), v4(wbuf(n)), '0' if ks == 0 else v16(acc)))
            if n + PRE < 56: z.extend(ssm_read(n + PRE))
            groups.append(z.ins); z = Prog()
    fill = []
    for ks in range(LEAD, 28): fill += d_step(ks, 2 if OPT['pk'] else 0)
    fill = fill + lam.ins
    k = 0
    span = OPT.get('span', 54)
    for n, g in enumerate(groups):
        q.extend(g)
        tgt = min(len(fill), (len(fill) * (n + 1)) // span)
        q.extend(fill[k:tgt]); k = tgt
    done = set(range(X, X + 4 * LEAD))
    for i in q.ins:
        if i.op == 'v_cvt_pk_bf16_f32' and X <= i.wr[0][1] < X + 112: done.add(i.wr[0][1])
        if i.kind == 'mfma': assert all(r[1] in done for r in i.rd if r[0] == 'v' and X <= r[1] < X + 112), i.text
    RSF = TMP + 8
    q('v_lshl_add_u32 v%d, v%d, 4, s%d' % (vT0, vH, sT3))
    for g in range(4):
        q('ds_read_b128 %s, v%d offset:%d' % (v4(RSF + 4 * g), vT0, L_RS + 32 * g))
    def pf(T):
        if T < 4: return 'buffer_load_dwordx2 v[%d:%d], v%d, %s, 0 offen offset:%d sc1' % (FR, FR + 1, vPF, srd(SWS), 1024 * T)
        return 'buffer_load_dwordx2 v[%d:%d], v%d, %s, s%d offen sc1' % (FR, FR + 1, vPF, srd(SWS), sPS)
    w2_regs = {}
    w2_state = {'last': None}
    def w2_load(idx, reg):
        if idx < 56: base, off = sW2, ((idx // 14) * 28 + (idx % 14) // 2) * 2048 + (idx % 2) * 1024
        else: base, off = sW2S, (112 + (idx - 56) // 2) * 2048 + (idx % 2) * 1024
        z = Prog()
        key = (base, off - off % 4096)
        if w2_state['last'] != key:
            z('s_add_u32 s%d, s%d, %d' % (sT5, base, off - off % 4096)); w2_state['last'] = key
        if isinstance(reg, tuple):
            mk = (reg[1], reg[2] - off % 4096 + 4096)
            if w2_state.get('m0') != mk:
                z('s_add_u32 m0, s%d, %d' % mk); w2_state['m0'] = mk
            z('buffer_load_dwordx4 v%d, %s, s%d offen offset:%d sc1 lds' % (vL16, srd(SWS), sT5, off % 4096), tok=('w2', idx))
        else:
            z('buffer_load_dwordx4 %s, v%d, %s, s%d offen offset:%d sc1' % (v4(reg), vL16, srd(SWS), sT5, off % 4096), tok=('w2', idx))
        w2_regs[idx] = reg
        return z.ins
    def w2_dest(i):
        if i < 56: return 256 + 4 * i
        if i < 61: return ('lds', sLT, (i - 56) * 1024)
        return ('lds', sLA, (i - 61) * 1024)
    NW2 = 75 if OPT['ldsw2'] else 56
    w2q = []
    for T in range(5):
        lo, hi_ = 14 * T, (14 * T + 14 if T < 4 else NW2)
        if lo >= hi_: break
        Tp = T if not OPT.get('p3only', 1) else {0: 0, 1: 3, 2: None, 3: None, 4: 4}[T]
        nx = (T + 1 if T < 4 else None) if not OPT.get('p3only', 1) else {0: 3, 1: 4}.get(T)
        if Tp is not None: w2q.append(poll_check('p%d' % Tp, ('s%d' % sPM2) if Tp < 4 else '0x7f7f', pf(Tp)))
        for i in range(lo, hi_):
            g = w2_load(i, w2_dest(i))
            if i == 61: g = [Ins('; need B4')] + g
            w2q.append(g)
            if nx is not None and (nx != 4 or not OPT.get('p3only', 1)) and i == lo + 1: w2q.append(G(pf(nx)))
            if OPT.get('p3only', 1) and i == OPT.get('psidx', 27): w2q.append(G(pf(4)))
    w2i = NW2
    dmaA, dmaB = dma[:14], dma[14:]
    vm = ssm_rest[NS:] + [w1k.ins + dmaA[0]] + dmaA[1:] + w1g + dmaB
    w2q[0] = [Ins('; at %d' % OPT['tc'])] + w2q[0]
    if OPT['w2early']: vm += w2q
    st, carry = weave(q.ins, vm, OPT['per'], 0, OPT['perd'], events=[(OPT['tp'], G(pf(0)))])
    kt = [k for k, i in enumerate(st) if i.text.startswith('v_lshl_add_u32 v%d' % vPF)][0]
    kp = [k for k, i in enumerate(st) if i.text == pf(0)][0]
    assert kt < kp
    if carry and carry[0][0].text.startswith('; at'): carry[0] = carry[0][1:]
    if not OPT['w2early']: carry += w2q
    assert not any(x.tok in ('ffnA', 'ssmw') for g in carry for x in g)
    pos_b = [k for k, i in enumerate(st) if i.kind == 'barrier'][0]
    assert not any(i.tok == 'ssmw' for i in st[pos_b:]), 'SSM DMA after B1'
    p.extend(st)
    stamp(p, 'ssmend')
    p.waitvm('ffnA')
    stamp(p, 'Ain')
    p('s_waitcnt lgkmcnt(0)')
    p('s_barrier')
    stamp(p, 'B2')
    p('s_lshl_b32 s%d, s%d, 13' % (sT4, sC)); p('s_add_u32 s%d, s%d, %d' % (sT4, sT4, WS_EG))
    p('s_add_u32 s%d, s6, s%d' % (SEG, sT4)); p('s_addc_u32 s%d, s7, 0' % (SEG + 1))
    p('s_mov_b32 s%d, 8192' % (SEG + 2)); p('s_mov_b32 s%d, 0x20000' % (SEG + 3))
    p('s_lshl_b32 s%d, s%d, 12' % (sT2, sW))
    p('s_mul_i32 s%d, s%d, 5120' % (sLT, sW)); p('s_add_u32 s%d, s%d, %d' % (sLT, sLT, L_WT - 4096))
    p('s_sub_u32 s%d, s%d, 4096' % (sLA, sLW))
    tail_dma = []
    for j in (5, 6):
        for e in range(2):
            tail_dma.append((G('s_add_u32 m0, s%d, %d' % (sT2, L_SW - 128 + 2 * (j - 5) * 1024)) if e == 0 else []) + G(
                'buffer_load_dwordx4 v%d, %s, s%d offen offset:%d lds' % (vW1O[e], srd(SW1), W1K[j], 128 + 1024 * e), tok='ffnB'))

    def ffn_read(T, ks, n):
        dt, tt = T // 2, T % 2
        j, i = ks // 4, ks % 4
        if dt == 0: U = i * L_XW + 2 * j * 1024
        elif j <= 4: U = i * L_XW + 14336 + 2 * j * 1024
        else: U = L_SW - L0 + i * 4096 + 2 * (j - 5) * 1024
        z = Prog()
        for hh in range(2):
            off = U + hh * 512; win = 0
            if off >= 65536: off -= 65536; win = 1
            z('ds_read_b64_tr_b16 %s, v%d offset:%d' % (v2(wbuf(n) + 2 * hh), vRF[tt][win], off), tok=('wf', n))
        return z.ins
    def silu(T):
        acc = F0 if T % 2 == 0 else F1
        z = Prog()
        tp = [vT0, vT1, vT2, vBO]
        for b in range(0, 16, 4):
            for k in range(4): z('v_mul_f32 v%d, v%d, v%d' % (tp[k], vNK, acc + b + k))
            for k in range(4): z('v_exp_f32 v%d, v%d' % (tp[k], tp[k]))
            for k in range(4): z('v_fma_f32 v%d, v%d, v%d, v%d' % (tp[k], tp[k], vS, vS))
            for k in range(4): z('v_rcp_f32 v%d, v%d' % (tp[k], tp[k]))
            for k in range(4): z('v_mul_f32 v%d, v%d, v%d' % (acc + b + k, acc + b + k, tp[k]))
            z('v_cvt_pk_bf16_f32 v%d, v%d, v%d' % (acc + b // 2, acc + b, acc + b + 1))
            z('v_cvt_pk_bf16_f32 v%d, v%d, v%d' % (acc + b // 2 + 1, acc + b + 2, acc + b + 3))
            if b == 4:
                z('s_add_u32 s%d, s%d, %d' % (sT2, sHW, T * 28 * 1024))
                z('buffer_store_dwordx4 %s, v%d, %s, s%d offen%s' % (v4(acc), vL16, srd(SWS), sT2, HSC), tok=('hs', T))
        z('buffer_store_dwordx4 %s, v%d, %s, s%d offen offset:1024%s' % (v4(acc + 4), vL16, srd(SWS), sT2, HSC), tok=('hs', T))
        return z.ins
    E0r, E0i, E1r, E1i = vXO[0], vXO[1], vXO[2], vXO[3]
    def scan1():
        z = Prog()
        for g in range(4):
            for i in range(4):
                z('v_mul_f32 v%d, v%d, v%d' % (SRE + 4 * g + i, RSF + 4 * g + i, SRE + 4 * g + i))
                z('v_mul_f32 v%d, v%d, v%d' % (SIM + 4 * g + i, RSF + 4 * g + i, SIM + 4 * g + i))
        for i in range(1, 4):
            for g in range(4):
                a, b = SRE + 4 * g + i, SIM + 4 * g + i
                z('v_fmac_f32 v%d, v%d, v%d' % (a, L1r, a - 1))
                z('v_fmac_f32 v%d, v%d, v%d' % (b, L1r, b - 1))
                z('v_fmac_f32 v%d, v%d, v%d' % (a, N1i, b - 1))
                z('v_fmac_f32 v%d, v%d, v%d' % (b, L1i, a - 1))
        for g in range(4):
            b = RSF + 4 * g
            z('v_mov_b32 v%d, v%d' % (b, SRE + 4 * g + 3)); z('v_mov_b32 v%d, v%d' % (b + 1, SRE + 4 * g + 3))
            z('v_mov_b32 v%d, v%d' % (b + 2, SIM + 4 * g + 3)); z('v_mov_b32 v%d, v%d' % (b + 3, SIM + 4 * g + 3))
        for g in range(4):
            b = RSF + 4 * g
            z('v_permlane32_swap_b32 v%d, v%d' % (b, b + 1)); z('v_permlane32_swap_b32 v%d, v%d' % (b + 2, b + 3))
        cur = (RSF, RSF + 2); nxt = [(E0r, E0i), (E1r, E1i)]
        for s in range(1, 8):
            g, h = s // 2, s % 2
            er, ei = RSF + 4 * g + h, RSF + 4 * g + 2 + h
            d = nxt[s % 2]
            z('v_fma_f32 v%d, v%d, v%d, v%d' % (d[0], L4r, cur[0], er))
            z('v_fma_f32 v%d, v%d, v%d, v%d' % (d[1], L4r, cur[1], ei))
            z('v_fma_f32 v%d, -v%d, v%d, v%d' % (d[0], L4i, cur[1], d[0]))
            z('v_fmac_f32 v%d, v%d, v%d' % (d[1], L4i, cur[0]))
            cur = d
        z('s_lshl_b32 s%d, s%d, 8' % (sT4, sW))
        z('v_lshl_add_u32 v%d, v%d, 3, s%d' % (vT0, vP, sT4))
        z('ds_write_b64 v%d, v[%d:%d] offset:%d' % (vT0, E1r, E1i, L_EW), tok='ew')
        return z.ins
    def fl_load(stage): return 'buffer_load_dwordx2 v[%d:%d], v%d, %s, s%d offen sc1' % (FR2, FR2 + 1, vFA, srd(SWS), sT6)
    def fl_issue(stage): return G('s_mov_b32 s%d, %d' % (sT6, stage * 8192), fl_load(stage))
    n0 = 56
    seq = [(T, ks) for T in range(4) for ks in range(28)]
    for m in range(PRE): p.extend(ffn_read(seq[m][0], seq[m][1], n0 + m))
    EWR = TMP + 0
    LB = X
    lbp = Prog()
    lbp('s_sub_u32 s%d, s%d, 1' % (sT0, sR)); lbp('s_lshl_b32 s%d, s%d, 9' % (sT0, sT0))
    lbp('v_lshlrev_b32 v%d, 9, v%d' % (vRX[1], vH))
    lbp('v_sub_u32 v%d, s%d, v%d' % (vRX[1], sT0, vRX[1]))
    lbp('v_lshl_add_u32 v%d, v%d, 4, v%d' % (vRX[0], vP, vRX[1]))
    lb_groups = []
    for m in range(8):
        z = Prog()
        if m: z('v_subrev_u32 v%d, %d, v%d' % (vRX[1], 1024 * m, vRX[0]))
        z('buffer_load_dwordx4 %s, v%d, %s, 0 offen sc1' % (v4(LB + 4 * m), vRX[1] if m else vRX[0], srd(SEG)))
        lb_groups.append(z.ins)
    lb_text = '\n'.join(i.text for g in lb_groups for i in g)
    pool = []
    hid_regs = {}
    hstate = {0: None, 1: None}
    def hid_load(idx):
        rt = idx % 2
        if idx < 56: base, off = (sH0, sH1)[rt], ((idx // 14) * 28 + (idx % 14) // 2) * 1024
        else: base, off = (sH0S, sH1S)[rt], (112 + (idx - 56) // 2) * 1024
        reg = pool.pop(0); hid_regs[idx] = reg
        sreg = sT3 if rt == 0 else sT4
        z = Prog()
        key = (base, off - off % 4096)
        if hstate[rt] != key:
            z('s_add_u32 s%d, s%d, %d' % (sreg, base, off - off % 4096)); hstate[rt] = key
        z('buffer_load_dwordx4 %s, v%d, %s, s%d offen offset:%d sc1' % (v4(reg), vL16, srd(SWS), sreg, off % 4096), tok=('hid', idx))
        return z.ins
    stage_of = lambda idx: min(idx // 14, 4)
    hi = 0
    checked = set()
    def hid_next():
        nonlocal hi
        assert stage_of(hi) in checked
        g = hid_load(hi); hi += 1
        return g
    def fl_check(st):
        checked.add(st)
        return poll_check('f%d' % st, 's%d' % sPMASK, fl_load(0), FR2)
    def split_at_need(vm):
        for k, g in enumerate(vm):
            if g and g[0].text == '; need B4': return vm[:k], vm[k:]
        return vm, []
    for T in range(4):
        groups = []
        acc = F0 if T % 2 == 0 else F1
        for ks in range(28):
            m = T * 28 + ks
            z = Prog()
            if ks % 2 == 0: z.waitlgkm(('wf', n0 + m + 1))
            z('v_mfma_f32_32x32x16_bf16 %s, %s, %s, %s' % (v16(acc), v4(wbuf(n0 + m)), v4(X + 4 * ks), '0' if ks == 0 else v16(acc)))
            if (T, ks) == (2, 0): z('s_barrier')
            if m + PRE < 112:
                z.extend(ffn_read(seq[m + PRE][0], seq[m + PRE][1], n0 + m + PRE))
            groups.append(z.ins)
        q = Prog()
        held = []; ev = []
        if T == 0:
            q.extend(groups[0]); q.extend(groups[1])
            q.extend(interleave(groups[2:], scan1()))
            nb = [g for g in carry if any(x.tok == 'ffnB' for x in g)]
            k = max([carry.index(g) for g in nb]) + 1 if nb else 0
            vm = carry[:k] + tail_dma + carry[k:]
        elif T == 1:
            pre = Prog()
            GE = vXO[0]
            pre('v_fma_f32 v%d, v%d, v%d, v%d' % (vT0, L32r, EWR, EWR + 2)); pre('v_fma_f32 v%d, v%d, v%d, v%d' % (vT1, L32r, EWR + 1, EWR + 3))
            pre('v_fma_f32 v%d, -v%d, v%d, v%d' % (vT0, L32i, EWR + 1, vT0)); pre('v_fmac_f32 v%d, v%d, v%d' % (vT1, L32i, EWR))
            pre('v_fma_f32 v%d, v%d, v%d, v%d' % (vT2, L32r, vT0, EWR + 4)); pre('v_fma_f32 v%d, v%d, v%d, v%d' % (vT3, L32r, vT1, EWR + 5))
            pre('v_fma_f32 v%d, -v%d, v%d, v%d' % (vT2, L32i, vT1, vT2)); pre('v_fmac_f32 v%d, v%d, v%d' % (vT3, L32i, vT0))
            pre('v_fma_f32 v%d, v%d, v%d, v%d' % (GE, L32r, vT2, EWR + 6)); pre('v_fma_f32 v%d, v%d, v%d, v%d' % (GE + 1, L32r, vT3, EWR + 7))
            pre('v_fma_f32 v%d, -v%d, v%d, v%d' % (GE, L32i, vT3, GE)); pre('v_fmac_f32 v%d, v%d, v%d' % (GE + 1, L32i, vT2))
            pre('v_mov_b32 v%d, s%d' % (GE + 2, sTL)); pre('v_mov_b32 v%d, s%d' % (GE + 3, sTH))
            pre('s_lshl_b32 s%d, s%d, 3' % (sT4, sW)); pre('s_lshl_b32 s%d, 0xff, s%d' % (sT4, sT4))
            pre('s_lshl_b32 s%d, s%d, 9' % (sT0, sR))
            egs = G('s_mov_b32 exec_lo, s%d' % sT4, 's_mov_b32 exec_hi, 0',
                    'buffer_store_dwordx4 %s, v%d, %s, s%d offen sc1' % (v4(GE), vL16, srd(SEG), sT0), 's_mov_b64 exec, -1')
            q.extend(interleave(groups[:5], pre.ins)); q.extend(egs)
            q.extend(interleave(groups[5:OPT['send'] + 1], silu(0)))
            for g in groups[OPT['send'] + 1:]: q.extend(g)
            vm = carry
        else:
            q.extend(groups[0]); q.extend(groups[1]); q.extend(groups[2])
            q.extend(interleave(groups[3:OPT['send']], silu(T - 1)))
            for g in groups[OPT['send']:]: q.extend(g)
            if T == 2:
                vm = carry; ev = [(OPT['tf'], flag_group(sFW, 0, ('hs', 0)))]
            else:
                lbs = [[Ins('; after 9')] + lbp.ins + lb_groups[0] + lb_groups[1] + lb_groups[2] + lb_groups[3], lb_groups[4] + lb_groups[5] + lb_groups[6] + lb_groups[7]]
                for g in lbs:
                    for x in g: x.text = x.text
                vm = carry
                ev = [(420, lbs[0][1:]), (520, lbs[1]), (OPT['tf'], flag_group(sFW, 8192, ('hs', 1))), (OPT['tp0'], fl_issue(0))]
        if T < 2: vm, held = split_at_need(vm)
        st, carry = weave(q.ins, vm, OPT['per'], 60 if T == 2 else 0, OPT['perd'], small=(SEG,), events=ev)
        carry += held
        if T == 3:
            mf = [k for k, i in enumerate(st) if i.kind == 'mfma']
            pos_l = [k for k, i in enumerate(st) if i.kind == 'vload' and 's[%d:%d]' % (SEG, SEG + 3) in i.text]
            assert len(pos_l) == 8 and pos_l[0] > mf[7], (pos_l, mf[7])
            pos_h = [k for k, i in enumerate(st) if isinstance(i.tok, tuple) and i.tok[0] == 'hid']
            assert not pos_h or pos_h[0] > mf[11]
        p.extend(st)
        if T == 0:
            assert not any(x.tok == 'ffnB' for g in carry for x in g)
            p.waitlgkm('ew'); p.waitvm('ffnB')
            p('s_barrier')
            p('v_lshlrev_b32 v%d, 3, v%d' % (vT0, vP))
            for k in range(4): p('ds_read_b64 v[%d:%d], v%d offset:%d' % (EWR + 2 * k, EWR + 2 * k + 1, vT0, L_EW + 256 * k))
        stamp(p, 'T%d' % T)
        print('after T%d: %d groups pending' % (T, len(carry)))
    pool += [WB + 4 * k for k in range(8)] + [F0 + 4 * k for k in range(4)] + [X + 32 + 4 * k for k in range(4)]
    p('s_add_u32 s%d, s%d, %d' % (sH1S, sH0S, 168 * 1024))

    q = Prog()
    s3 = silu(3)
    q.extend(s3)
    stamp(q, 'silu3')
    def lb_check(z, lab_bad):
        z('v_add3_u32 v%d, v%d, v%d, v%d' % (vT0, LB + 2, LB + 6, LB + 10)); z('v_add3_u32 v%d, v%d, v%d, v%d' % (vT1, LB + 3, LB + 7, LB + 11))
        z('v_add3_u32 v%d, v%d, v%d, v%d' % (vT0, vT0, LB + 14, LB + 18)); z('v_add3_u32 v%d, v%d, v%d, v%d' % (vT1, vT1, LB + 15, LB + 19))
        z('v_add3_u32 v%d, v%d, v%d, v%d' % (vT0, vT0, LB + 22, LB + 26)); z('v_add3_u32 v%d, v%d, v%d, v%d' % (vT1, vT1, LB + 23, LB + 27))
        z('v_add_u32 v%d, v%d, v%d' % (vT0, vT0, LB + 30)); z('v_add_u32 v%d, v%d, v%d' % (vT1, vT1, LB + 31))
        k0 = len(z.ins)
        z('v_cmp_ne_u32 vcc, v%d, v%d' % (vT0, vT2))
        z('v_cmp_ne_u32 s[%d:%d], v%d, v%d' % (sP0, sP0 + 1, vT1, vT3))
        z('s_nop 1')
        z('s_or_b64 vcc, vcc, s[%d:%d]' % (sP0, sP0 + 1))
        z('s_cbranch_scc1 %s' % lab_bad)
        for i in z.ins[k0:]: i.note = 'glue'
    q('v_sub_u32 v%d, s%d, v%d' % (vT3, sR, vH)); q('v_add_u32 v%d, 1, v%d' % (vT3, vT3)); q('v_lshrrev_b32 v%d, 1, v%d' % (vT3, vT3))
    q('v_mul_lo_u32 v%d, s%d, v%d' % (vT2, sTL, vT3)); q('v_mul_lo_u32 v%d, s%d, v%d' % (vT3, sTH, vT3))
    lb_check(q, 'L_retry_lb')
    q('L_ok_lb:')
    stamp(q, 'lbok')
    z = Prog()
    z('L_retry_lb:'); z('s_mov_b32 s%d, 0' % sSPIN); z('L_loop_lb:'); z('s_sleep 1'); z(lb_text); z('s_waitcnt vmcnt(0)')
    if OPT['stamps']: z('v_add_u32 v%d, 0x100, v%d' % (vRSv, vRSv))
    z('s_add_u32 s%d, s%d, 1' % (sSPIN, sSPIN)); z('s_cmp_gt_u32 s%d, %d' % (sSPIN, OPT['spin'])); z('s_cbranch_scc1 L_ok_lb')
    lb_check(z, 'L_loop_lb'); z('s_branch L_ok_lb')
    retry_blocks.append(z)
    for m in range(6, -1, -1):
        cmac(q, LB + 4 * m, LB + 4 * m + 1, L256r, L256i, LB + 4 * m + 4, LB + 4 * m + 5)
    q('v_mov_b32 v%d, v%d' % (LB + 4, LB)); q('v_mov_b32 v%d, v%d' % (LB + 5, LB + 1))
    q('v_permlane32_swap_b32 v%d, v%d' % (LB, LB + 4)); q('v_permlane32_swap_b32 v%d, v%d' % (LB + 1, LB + 5))
    cmac(q, LB, LB + 1, L128r, L128i, LB + 4, LB + 5)
    cmac(q, EWR, EWR + 1, L32r, L32i, LB, LB + 1)
    cmac(q, EWR + 2, EWR + 3, L32r, L32i, EWR, EWR + 1)
    cmac(q, EWR + 4, EWR + 5, L32r, L32i, EWR + 2, EWR + 3)
    CS = LB + 8
    q('v_mov_b32 v%d, v%d' % (CS, LB)); q('v_mov_b32 v%d, v%d' % (CS + 1, LB + 1))
    for k in range(3):
        k0 = len(q.ins)
        q('s_cmp_eq_u32 s%d, %d' % (sW, k + 1)); q('s_cselect_b64 vcc, -1, 0')
        q('v_cndmask_b32 v%d, v%d, v%d, vcc' % (CS, CS, EWR + 2 * k))
        for i in q.ins[k0:]: i.note = 'glue'
        q('v_cndmask_b32 v%d, v%d, v%d, vcc' % (CS + 1, CS + 1, EWR + 2 * k + 1))
    for s in range(7):
        g, h = s // 2, s % 2
        er, ei = RSF + 4 * g + h, RSF + 4 * g + 2 + h
        d, cur = CS + 2 * (s + 1), CS + 2 * s
        q('v_fma_f32 v%d, v%d, v%d, v%d' % (d, L4r, cur, er))
        q('v_fma_f32 v%d, v%d, v%d, v%d' % (d + 1, L4r, cur + 1, ei))
        q('v_fma_f32 v%d, -v%d, v%d, v%d' % (d, L4i, cur + 1, d))
        q('v_fmac_f32 v%d, v%d, v%d' % (d + 1, L4i, cur))
    k0 = len(q.ins)
    q('s_mov_b32 vcc_lo, 0'); q('s_mov_b32 vcc_hi, -1')
    for g in range(4):
        a = CS + 4 * g
        q('v_cndmask_b32 v%d, v%d, v%d, vcc' % (a, a, a + 2))
        q('v_cndmask_b32 v%d, v%d, v%d, vcc' % (a + 1, a + 1, a + 3))
    for i in q.ins[k0:-1]: i.note = 'glue'
    for g in range(4):
        a = CS + 4 * g
        q('v_sub_f32 v%d, 0, v%d' % (a + 2, a + 1))
    stamp(q, 'carry')
    q.extend(epilogue_loads())
    PW = [(L1r, L1i), (L2r, L2i), (L3r, L3i), (L4r, L4i)]
    for g in range(4):
        a = CS + 4 * g
        for i in range(4):
            ur, ui = SRE + 4 * g + i, SIM + 4 * g + i
            q('v_fmac_f32 v%d, v%d, v%d' % (ur, PW[i][0], a))
            q('v_fmac_f32 v%d, v%d, v%d' % (ui, PW[i][0], a + 1))
            q('v_fmac_f32 v%d, v%d, v%d' % (ur, PW[i][1], a + 2))
            q('v_fmac_f32 v%d, v%d, v%d' % (ui, PW[i][1], a))
        for comp, base in ((0, SRE), (1, SIM)):
            b = base + 4 * g
            q('v_cvt_pk_bf16_f32 v%d, v%d, v%d' % (b, b, b + 1))
            q('v_cvt_pk_bf16_f32 v%d, v%d, v%d' % (b + 1, b + 2, b + 3))
            q('ds_write_b64 v%d, v[%d:%d] offset:%d' % (vTW, b, b + 1, comp * 2304 + 16 * g))
    stamp(q, 'fix')
    HS = F1
    for comp in range(2):
        for q_ in range(2):
            for hh in range(2):
                q('ds_read_b64_tr_b16 %s, v%d offset:%d' % (v2(HS + 8 * comp + 4 * q_ + 2 * hh), vTRr, comp * 2304 + (16 * q_ + 4 * hh) * 72))
    q('s_lshl_b32 s%d, s%d, 11' % (sT2, sC)); q('s_add_u32 s%d, s%d, s%d' % (sT2, sT2, sHW)); q('s_add_u32 s%d, s%d, %d' % (sT2, sT2, 112 * 1024))
    for _ in range(10): q('; pad')
    for f in range(4):
        q('buffer_store_dwordx4 %s, v%d, %s, s%d offen offset:%d%s' % (v4(HS + 4 * f), vL16, srd(SWS), sT2, f * 1024, HSC), tok='hsC')
    vm = carry[:5] + [[Ins('; at %d' % OPT['tc0'])] + fl_check(0)] + [hid_next() for _ in range(14)] + carry[5:]
    ev = [(OPT['tp1'], fl_issue(1)), (OPT['tf2'], flag_group(sFW, 2 * 8192, ('hs', 2)))]
    q.ins = [i for i in q.ins if not i.text.startswith('; mark')]
    st, left = weave(q.ins, vm, OPT['perh'], events=ev)
    k0 = [k for k, i in enumerate(st) if i.text == 'L_ok_f0:'][0]; k1 = [k for k, i in enumerate(st) if i.text.startswith('s_mov_b32 s%d, 8192' % sT6)][0]
    assert k0 < k1
    p.extend(st)
    pool += [F1 + 4 * k for k in range(4)] + [SRE + 4 * k for k in range(8)] + [204 + 4 * k for k in range(5)]
    fillr = epilogue_pre()
    ACC = {(0, 0): X + 48, (0, 1): X + 64, (1, 0): X + 80, (1, 1): X + 96}
    fk = 0
    when = {}
    p('v_add_u32 v%d, s%d, v%d' % (vFA2, sLT, vL16)); p('v_add_u32 v%d, s%d, v%d' % (vFA3, sLA, vL16))
    pstep = {OPT['p2']: 2, OPT['p3']: 3, OPT['p4']: 4}
    cstep = {OPT['c1']: 1, OPT['p2'] + OPT['pd']: 2, OPT['p3'] + OPT['pd']: 3, OPT['p4'] + OPT['pd']: 4}
    real_p = p
    late = []
    for step in range(42):
        if step in (0, 7, 14, 21, 28, 35) or OPT.get('allg'): stamp(real_p, 'g%d' % step)
        side = []
        while any((isinstance(x.tok, tuple) and x.tok[0] == 'hid') or 's_mov_b32 s%d' % sT6 in x.text for g in left for x in g):
            (real_p.extend if step == 0 else side.append)(left.pop(0))
        if step == OPT['f3']: side.append(flag_group(sFW, 3 * 8192, ('hs', 3)))
        if step == OPT['f4']: side.append(flag_group(sFW, 4 * 8192, 'hsC'))
        if step in cstep: side.append(fl_check(cstep[step]))
        if step in pstep:
            assert pstep[step] - 1 in checked
            side.append(fl_issue(pstep[step]))
        nh = 0
        while hi < 84 and hi < 2 * step + 4 + OPT['ahead'] and pool and stage_of(hi) in checked and nh < OPT.get('maxh', 4): side.append(hid_next()); nh += 1
        for rep in range(2):
            if rep == 1 and len(left) + 84 - w2i <= max(0, 30 - step): break
            if left: side.append(left.pop(0))
            elif w2i < 84 and len(pool) > 2 and step >= OPT.get('w2s', 2) and nh < 3:
                reg = pool.pop(0); side.append(w2_load(w2i, reg)); w2i += 1
        if step == OPT.get('b5', 36): side.append(G('s_barrier'))
        for i in (2 * step + 4, 2 * step + 5):
            if i < 84 and isinstance(w2_regs.get(i), tuple):
                d = w2_regs[i]; reg = pool.pop(0)
                z = Prog(); z.waitvm(('w2', i))
                z('ds_read_b128 %s, v%d offset:%d' % (v4(reg), vFA2 if d[1] == sLT else vFA3, d[2] + 4096))
                side.append(z.ins)
                w2_regs[i] = reg
        w0, w1_ = w2_regs[2 * step], w2_regs[2 * step + 1]
        h0, h1 = hid_regs[2 * step], hid_regs[2 * step + 1]
        em = set(x.tok for x in p.ins if isinstance(x.tok, tuple))
        for t in (('w2', 2 * step), ('w2', 2 * step + 1), ('hid', 2 * step), ('hid', 2 * step + 1)): assert t in em, t
        k = 0
        NL = OPT.get('nlast', 3)
        order = ((0, 0), (0, 1), (1, 0), (1, 1))
        if step >= 42 - NL:
            late.append((w1_, h0, h1)); order = order[:2]
        for n, (ct, rt) in enumerate(order):
            a = ACC[(ct, rt)]
            p('v_mfma_f32_32x32x16_bf16 %s, %s, %s, %s' % (v16(a), v4((w0, w1_)[ct]), v4((h0, h1)[rt]), '0' if step == 0 else v16(a)))
            tgt = (len(side) * (n + 1) + len(order) - 1) // len(order)
            c = 0
            for g in side[k:tgt]: p.extend(g); c += sum(cost(x) for x in g)
            k = tgt
            while step >= OPT.get('fs', 1) and fk < len(fillr) and (c < OPT.get('fb', 36) or fillr[fk - 1].note == 'glue'):
                i = fillr[fk]; fk += 1
                c += cost(i)
                p.ins.append(i)
        pool += [w0, w1_, h0, h1]
    wr = [G('ds_write_b128 v%d, %s offset:%d' % (PWA + g, v4(ACC[(0, rt)] + 4 * g), rt * 8192)) for rt in range(2) for g in range(4)] if late else []
    mm = [G('v_mfma_f32_32x32x16_bf16 %s, %s, %s, %s' % (v16(ACC[(1, rt)]), v4(w), v4((a_, b_)[rt]), v16(ACC[(1, rt)]))) for (w, a_, b_) in late for rt in range(2)]
    for n, g in enumerate(mm):
        p.extend(g)
        if n >= 1:
            for _ in range(2):
                if wr: p.extend(wr.pop(0))
    for g in wr: p.extend(g)
    OPT['_ct0done'] = bool(late)
    assert fk == len(fillr) and w2i == 84 and not left, (fk, len(fillr), w2i, len(left))
    print('G2 marks', when)
    stamp(p, 'g2end')
    epilogue(p, ACC)

EX, ED, ST, DD = TMP + 0, TMP + 8, TMP + 10, TMP + 18
EB, ET, PWA, PRA, vOO, PRB = X + 0, X + 16, X + 24, X + 28, X + 30, X + 22
sXO, sOO = 38, 39
def epilogue_loads():
    p = Prog()
    p('v_lshrrev_b32 v%d, 4, v%d' % (vT0, vL)); p('v_and_b32 v%d, 15, v%d' % (vT1, vL))
    p('v_mul_u32_u24 v%d, 896, v%d' % (vT2, vT0)); p('v_lshl_add_u32 v%d, v%d, 3, v%d' % (vT2, vT1, vT2))
    p('s_lshl_b32 s%d, s%d, 5' % (sXO, sRT0)); p('s_lshl_b32 s%d, s%d, 4' % (sT1, sW)); p('s_add_u32 s%d, s%d, s%d' % (sXO, sXO, sT1))
    p('s_mul_i32 s%d, s%d, 896' % (sXO, sXO)); p('s_lshl_b32 s%d, s%d, 7' % (sT1, sCB)); p('s_add_u32 s%d, s%d, s%d' % (sXO, sXO, sT1))
    p('s_add_u32 s%d, s%d, %d' % (sT0, sXO, 8 * 896))
    for it in range(4):
        p('buffer_load_dwordx2 v[%d:%d], v%d, %s, s%d offen offset:%d' % (EX + 2 * it, EX + 2 * it + 1, vT2, srd(SX), sXO if it < 2 else sT0, (it % 2) * 4 * 896))
    p('v_lshlrev_b32 v%d, 3, v%d' % (vT3, vT1))
    p('buffer_load_dwordx2 v[%d:%d], v%d, %s, s%d offen' % (ED, ED + 1, vT3, srd(SDSK), sT1))
    p('s_lshl_b32 s%d, s%d, 9' % (sT1, sHALF)); p('s_lshl_b32 s%d, s%d, 7' % (sT0, sW)); p('s_add_u32 s%d, s%d, s%d' % (sT1, sT1, sT0))
    p('v_lshl_add_u32 v%d, v%d, 3, s%d' % (vT3, vT0, sT1))
    for it in range(4):
        p('ds_read_b64 v[%d:%d], v%d offset:%d' % (ST + 2 * it, ST + 2 * it + 1, vT3, L_MR + 32 * it))
    return p.ins

def epilogue_pre():
    p = Prog()
    p('v_lshlrev_b32 v%d, 1, v%d' % (vOO, vT2))
    p('s_lshl_b32 s%d, s%d, 1' % (sOO, sXO))
    p('v_and_b32 v%d, 7, v%d' % (PWA, vP)); p('v_xor_b32 v%d, v%d, v%d' % (PWA, PWA, vH)); p('v_lshlrev_b32 v%d, 4, v%d' % (PWA, PWA))
    p('v_lshl_add_u32 v%d, v%d, 8, v%d' % (PWA, vP, PWA))
    p('v_add_u32 v%d, s%d, v%d' % (PWA, sLW, PWA))
    for g in range(1, 4): p('v_xor_b32 v%d, %d, v%d' % (PWA + g, g << 5, PWA))
    p('v_xor_b32 v%d, v%d, v%d' % (PRA, vT1, vT0)); p('v_lshlrev_b32 v%d, 4, v%d' % (PRA, PRA))
    p('v_lshl_add_u32 v%d, v%d, 8, v%d' % (PRA, vT0, PRA))
    p('s_lshl_b32 s%d, s%d, 12' % (sT1, sW)); p('s_add_u32 s%d, s%d, %d' % (sT1, sT1, L0)); p('v_add_u32 v%d, s%d, v%d' % (PRA, sT1, PRA))
    p('v_xor_b32 v%d, 64, v%d' % (PRA + 1, PRA)); p('v_add_u32 v%d, 1024, v%d' % (PRA + 1, PRA + 1))
    p('v_add_u32 v%d, %d, v%d' % (PRB, 3 * L_XW, PRA)); p('v_add_u32 v%d, %d, v%d' % (PRB + 1, 3 * L_XW, PRA + 1))
    D = DD; T = ET
    p('v_lshlrev_b32 v%d, 16, v%d' % (D, ED)); p('v_and_b32 v%d, s%d, v%d' % (D + 1, sMHI, ED))
    p('v_lshlrev_b32 v%d, 16, v%d' % (D + 2, ED + 1)); p('v_and_b32 v%d, s%d, v%d' % (D + 3, sMHI, ED + 1))
    for it in range(4):
        b = EB + 4 * it; m, rs = ST + 2 * it, ST + 2 * it + 1
        p('v_lshlrev_b32 v%d, 16, v%d' % (b, EX + 2 * it)); p('v_and_b32 v%d, s%d, v%d' % (b + 1, sMHI, EX + 2 * it))
        p('v_lshlrev_b32 v%d, 16, v%d' % (b + 2, EX + 2 * it + 1)); p('v_and_b32 v%d, s%d, v%d' % (b + 3, sMHI, EX + 2 * it + 1))
        for k in range(4): p('v_sub_f32 v%d, v%d, v%d' % (T + k, b + k, m))
        def rnd():
            p('v_cvt_pk_bf16_f32 v%d, v%d, v%d' % (T + 4, T, T + 1)); p('v_cvt_pk_bf16_f32 v%d, v%d, v%d' % (T + 5, T + 2, T + 3))
            p('v_lshlrev_b32 v%d, 16, v%d' % (T, T + 4)); p('v_and_b32 v%d, s%d, v%d' % (T + 1, sMHI, T + 4))
            p('v_lshlrev_b32 v%d, 16, v%d' % (T + 2, T + 5)); p('v_and_b32 v%d, s%d, v%d' % (T + 3, sMHI, T + 5))
        rnd()
        for k in range(4): p('v_mul_f32 v%d, v%d, v%d' % (T + k, T + k, rs))
        rnd()
        for k in range(4): p('v_mul_f32 v%d, v%d, v%d' % (T + k, T + k, D + k))
        rnd()
        for k in range(4): p('v_add_f32 v%d, v%d, v%d' % (b + k, b + k, T + k))
    return p.ins

def epilogue(p, ACC):
    for rt in range(2):
        for ct in range(1 if OPT.get('_ct0done') else 0, 2):
            for g in range(4):
                p('ds_write_b128 v%d, %s offset:%d' % (PWA + g, v4(ACC[(ct, rt)] + 4 * g), rt * 8192 + ct * 128))
    p('s_waitcnt lgkmcnt(0)')
    p('s_barrier')
    R = 128
    for it in range(4):
        for P in range(4):
            p('ds_read_b128 %s, v%d offset:%d' % (v4(R + 16 * it + 4 * P), (PRA if P < 3 else PRB) + (it & 1), (P % 3) * L_XW + (it >> 1) * 2048))
    for it in range(4):
        b = EB + 4 * it; r_ = R + 16 * it
        p('v_pk_add_f32 v[%d:%d], v[%d:%d], v[%d:%d]' % (r_, r_ + 1, r_, r_ + 1, r_ + 4, r_ + 5))
        p('v_pk_add_f32 v[%d:%d], v[%d:%d], v[%d:%d]' % (r_ + 2, r_ + 3, r_ + 2, r_ + 3, r_ + 6, r_ + 7))
        p('v_pk_add_f32 v[%d:%d], v[%d:%d], v[%d:%d]' % (r_ + 8, r_ + 9, r_ + 8, r_ + 9, r_ + 12, r_ + 13))
        p('v_pk_add_f32 v[%d:%d], v[%d:%d], v[%d:%d]' % (r_ + 10, r_ + 11, r_ + 10, r_ + 11, r_ + 14, r_ + 15))
        p('v_pk_add_f32 v[%d:%d], v[%d:%d], v[%d:%d]' % (b, b + 1, b, b + 1, r_, r_ + 1))
        p('v_pk_add_f32 v[%d:%d], v[%d:%d], v[%d:%d]' % (b + 2, b + 3, b + 2, b + 3, r_ + 2, r_ + 3))
        p('v_pk_add_f32 v[%d:%d], v[%d:%d], v[%d:%d]' % (b, b + 1, b, b + 1, r_ + 8, r_ + 9))
        p('v_pk_add_f32 v[%d:%d], v[%d:%d], v[%d:%d]' % (b + 2, b + 3, b + 2, b + 3, r_ + 10, r_ + 11))
        p('s_add_u32 s%d, s%d, %d' % (sT2, sOO, it * 4 * 1792))
        p('buffer_store_dwordx4 %s, v%d, %s, s%d offen%s' % (v4(b), vOO, srd(SOUT), sT2, ['', ' sc1', ' nt', ' sc0 sc1', ' sc1 nt'][OPT.get('ost', 0)]))
    if OPT['stamps']:
        stamp(p, 'end')
        p('v_readlane_b32 s%d, v%d, 0' % (sT0, vRSv)); p('s_nop 3'); p('v_writelane_b32 v%d, s%d, 60' % (vDUM, sT0))
        p('s_memrealtime s[%d:%d]' % (sP0, sP0 + 1)); p('s_load_dwordx2 s[36:37], s[0:1], 104'); p('s_waitcnt lgkmcnt(0)')
        p('v_writelane_b32 v%d, s%d, 63' % (vDUM, sP0))
        if OPT.get('amp', -1) >= 0:
            p('s_lshl_b32 s%d, s2, 2' % sT0); p('s_add_u32 s%d, s%d, s%d' % (sT0, sT0, sW)); p('s_cmp_lg_u32 s%d, %d' % (sT0, OPT['dbgwave']))
            p('s_cbranch_scc1 L_noamp')
            if OPT['amp'] == 99:
                p('s_mov_b32 s%d, %d' % (sT2, 0xF0000 + 128 * OPT['xa'])); p('buffer_load_dword v%d, v%d, %s, s%d offen sc1' % (vT0, vZ, srd(SWS), sT2))
                p('s_mov_b32 s%d, %d' % (sT2, 0xF0000 + 128 * OPT['xb'])); p('buffer_load_dword v%d, v%d, %s, s%d offen sc1' % (vT1, vZ, srd(SWS), sT2))
                p('s_waitcnt vmcnt(0)')
                p('v_readfirstlane_b32 s%d, v%d' % (sT0, vT0)); p('v_readfirstlane_b32 s%d, v%d' % (sT1, vT1))
                p('s_nop 3'); p('s_add_u32 s%d, s%d, 100' % (sT0, sT0))
            else:
                p('v_readlane_b32 s%d, v%d, %d' % (sT0, vDUM, OPT['amp'])); p('v_readlane_b32 s%d, v%d, %d' % (sT1, vDUM, OPT.get('amp0', 61)))
            p('s_nop 3')
            p('s_sub_u32 s%d, s%d, s%d' % (sT0, sT0, sT1)); p('s_mul_i32 s%d, s%d, %d' % (sT0, sT0, OPT.get('ampk', 4)))
            p('s_min_u32 s%d, s%d, 400000' % (sT0, sT0))
            p('s_memtime s[84:85]'); p('s_waitcnt lgkmcnt(0)')
            p('L_amp:')
            p('s_memtime s[86:87]'); p('s_waitcnt lgkmcnt(0)')
            p('s_sub_u32 s%d, s86, s84' % sT1); p('s_cmp_lt_u32 s%d, s%d' % (sT1, sT0)); p('s_cbranch_scc1 L_amp')
            p('L_noamp:')
        if OPT['dbg']:
            mk_srd(p, 84, 36, 256)
            p('v_readlane_b32 s%d, v%d, 61' % (sT1, vDUM))
            p('s_lshl_b32 s%d, s2, 2' % sT0); p('s_add_u32 s%d, s%d, s%d' % (sT0, sT0, sW)); p('s_cmp_lg_u32 s%d, %d' % (sT0, OPT['dbgwave']))
            p('s_cbranch_scc1 L_nodbg')
            p('v_subrev_u32 v%d, s%d, v%d' % (vT0, sT1, vDUM))
            p('v_lshlrev_b32 v%d, 2, v%d' % (vT1, vL))
            p('s_mov_b64 exec, 0xffff')
            p('buffer_store_dword v%d, v%d, s[84:87], 0 offen' % (vT0, vT1))
            p('s_mov_b64 exec, -1')
            p('L_nodbg:')
        p('s_lshl_b32 s%d, s2, 2' % sT0); p('s_add_u32 s%d, s%d, s%d' % (sT0, sT0, sW)); p('s_lshl_b32 s%d, s%d, 8' % (sT0, sT0))
        p('s_add_u32 s%d, s%d, %d' % (sT0, sT0, WS_STAMP))
        p('v_lshlrev_b32 v%d, 2, v%d' % (vT0, vL))
        p('buffer_store_dword v%d, v%d, %s, s%d offen' % (vDUM, vT0, srd(SWS), sT0))
    p('s_cmp_eq_u32 s%d, 15' % sR); p('s_cbranch_scc0 L_exit')
    p('s_cmp_eq_u32 s%d, 13' % sC); p('s_cbranch_scc0 L_exit')
    p('s_cmp_eq_u32 s%d, 3' % sW); p('s_cbranch_scc0 L_exit')
    p('s_mov_b32 s%d, %d' % (sT0, WS_EPOCH))
    p.extend(flag_group(sT0, 0))
    p('s_endpgm')

def pstamp(p, k):
    if not OPT['stamps']: return
    p('s_memtime s[90:91]'); p('s_waitcnt lgkmcnt(0)'); p('v_writelane_b32 v%d, s90, %d' % (vDUM, k))

def prep_path(p):
    SW2, SCRE, SCIM = 44, 48, 52
    sQ, sKF, sF0, sKS, sT0T, sCBK, sCTG, sFF = 8, 84, 85, 86, 87, 88, 89, 92
    p('L_prep:')
    p.reset()
    p('s_lshl_b32 s%d, s%d, 2' % (sQ, sT0)); p('s_add_u32 s%d, s%d, s%d' % (sQ, sQ, sT1)); p('s_sub_u32 s%d, s%d, 28' % (sQ, sQ))
    p('s_cmp_ge_u32 s%d, 28' % sQ); p('s_cbranch_scc1 L_exit')
    p('s_lshr_b32 s%d, s%d, 1' % (sF0, sQ)); p('s_lshl_b32 s%d, s%d, 7' % (sF0, sF0))
    p('s_and_b32 s%d, s%d, 1' % (sT0, sQ)); p('s_lshl_b32 s%d, s%d, 4' % (sT0, sT0)); p('s_add_u32 s%d, s%d, s%d' % (sF0, sF0, sT0))
    p('s_mul_i32 s%d, s%d, 896' % (sF0, sF0))
    p('s_lshl_b32 s%d, s%d, 2' % (sT0T, sW)); p('s_min_u32 s%d, s%d, 10' % (sT0T, sT0T))
    p('s_lshl_b32 s%d, s%d, 6' % (sT0, sT0T)); p('s_add_u32 s%d, s%d, s%d' % (sF0, sF0, sT0))
    p('s_mul_i32 s%d, s%d, 26624' % (sLW, sW))
    vWO = 21
    p('v_lshrrev_b32 v%d, 4, v%d' % (vWO, vL)); p('v_mul_u32_u24 v%d, 896, v%d' % (vWO, vWO))
    p('v_and_b32 v%d, 15, v%d' % (vT2, vL)); p('v_lshl_add_u32 v%d, v%d, 4, v%d' % (vWO, vT2, vWO))
    p('s_lshl_b32 s%d, s%d, 2' % (sKF, sQ)); p('s_add_u32 s%d, s%d, s%d' % (sKF, sKF, sW))
    p('s_mul_i32 s%d, s%d, 4682' % (sCBK, sKF)); p('s_lshr_b32 s%d, s%d, 16' % (sCBK, sCBK))
    p('s_mul_i32 s%d, s%d, 14' % (sT0, sCBK)); p('s_sub_u32 s%d, s%d, s%d' % (sCTG, sKF, sT0))
    p('s_waitcnt lgkmcnt(0)')
    mk_srd(p, SW2, 38, 1792 * 896)
    def w2dma(T):
        for i in range(4):
            p('s_add_u32 m0, s%d, %d' % (sLW, T * 4096 + i * 1024)); p('s_add_u32 s%d, s%d, %d' % (sT0, sF0, T * 28672 + i * 3584))
            p('buffer_load_dwordx4 v%d, %s, s%d offen lds' % (vWO, srd(SW2), sT0), tok=('w2', T))
    w2dma(0)
    mk_srd(p, SWS, 6, WS_END)
    p('buffer_load_dwordx2 v[%d:%d], v%d, %s, 0 offen sc1' % (TMP + 28, TMP + 29, vZ, srd(SWS)))
    w2dma(1)
    mk_srd(p, SLRE, 18, 896); mk_srd(p, SLIM, 20, 896); mk_srd(p, SLDT, 30, 896)
    p('v_lshlrev_b32 v%d, 1, v%d' % (vT2, vL)); p('s_lshl_b32 s%d, s%d, 7' % (sT1, sCBK))
    p('buffer_load_ushort v%d, v%d, %s, s%d offen' % (TMP + 0, vT2, srd(SLRE), sT1))
    p('buffer_load_ushort v%d, v%d, %s, s%d offen' % (TMP + 1, vT2, srd(SLIM), sT1))
    p('buffer_load_ushort v%d, v%d, %s, s%d offen' % (TMP + 2, vT2, srd(SLDT), sT1))
    w2dma(2)
    mk_srd(p, SCRE, 26, 448 * 896); mk_srd(p, SCIM, 28, 448 * 896)
    vA = 16
    p('v_lshrrev_b32 v%d, 2, v%d' % (vA, vL)); p('v_and_b32 v%d, 3, v%d' % (vA, vA))
    p('v_lshl_add_u32 v%d, v%d, 2, v%d' % (vA, vH, vA)); p('v_lshlrev_b32 v%d, 8, v%d' % (vA, vA))
    p('v_and_b32 v%d, 16, v%d' % (vT2, vL)); p('v_lshl_add_u32 v%d, v%d, 1, v%d' % (vA, vT2, vA))
    p('v_and_b32 v%d, 3, v%d' % (vT2, vL)); p('v_lshl_add_u32 v%d, v%d, 3, v%d' % (vA, vT2, vA))
    p('v_add_u32 v%d, s%d, v%d' % (vA, sLW, vA))
    vC = [17, 18, 19, 20]
    p('v_lshrrev_b32 v%d, 1, v%d' % (vT2, vP)); p('v_and_b32 v%d, 7, v%d' % (vT2, vT2))
    p('v_xor_b32 v%d, v%d, v%d' % (vT2, vT2, vH)); p('v_lshlrev_b32 v%d, 4, v%d' % (vT2, vT2))
    p('v_lshl_add_u32 v%d, v%d, 7, v%d' % (vT2, vP, vT2))
    p('v_add_u32 v%d, s%d, v%d' % (vC[0], sLW, vT2))
    for i in range(1, 4): p('v_xor_b32 v%d, %d, v%d' % (vC[i], i << 5, vC[0]))
    p('s_lshr_b32 s%d, s%d, 1' % (sKS, sT0T)); p('s_mul_i32 s%d, s%d, 168' % (sKS, sKS)); p('s_add_u32 s%d, s%d, s%d' % (sKS, sKS, sQ))
    p('s_lshl_b32 s%d, s%d, 11' % (sKS, sKS)); p('s_add_u32 s%d, s%d, %d' % (sKS, sKS, WS_W2F))
    p('s_lshl_b32 s%d, s%d, 5' % (sFF, sW)); p('s_add_u32 s%d, s%d, s%d' % (sFF, sFF, sQ)); p('s_lshl_b32 s%d, s%d, 3' % (sFF, sFF))
    p('s_mul_i32 s%d, s%d, %d' % (sT2, sCTG, 32 * 896)); p('s_add_u32 s%d, s%d, s%d' % (sT2, sT2, sT1))
    if OPT.get('ptlb', 0):
        p('v_and_b32 v%d, 3, v%d' % (vT2, vL)); p('v_mul_u32_u24 v%d, %d, v%d' % (vT2, 28 * 2048, vT2))
        p('v_lshrrev_b32 v%d, 2, v%d' % (vT3, vL)); p('v_mul_u32_u24 v%d, %d, v%d' % (vT3, 168 * 2048, vT3))
        p('v_add_u32 v%d, v%d, v%d' % (vT2, vT2, vT3))
        p('s_mov_b64 exec, 0xff')
        p('buffer_load_dword v%d, v%d, %s, s%d offen sc1' % (TMP + 12, vT2, srd(SWS), sKS), tok='ptlb')
        p('s_mov_b64 exec, -1')
    pstamp(p, 0)
    FRG = 64
    def stage(T):
        p.waitvm(('w2', T))
        for ct4 in range(4):
            for hh in range(2):
                p('ds_read_b64_tr_b16 %s, v%d offset:%d' % (v2(FRG + 16 * T + 4 * ct4 + 2 * hh), vA, T * 4096 + hh * 2048 + ct4 * 64))
        for ct4 in range(4):
            if ct4 % 2 == 0: p('s_add_u32 s%d, s%d, %d' % (sT0, sKS, ((ct4 // 2) * 168 + 28 * T) * 2048))
            p('buffer_store_dwordx4 %s, v%d, %s, s%d offen offset:%d sc1' % (v4(FRG + 16 * T + 4 * ct4), vL16, srd(SWS), sT0, (ct4 % 2) * 1024), tok=('fst', T))
    def cdma():
        for comp in range(2):
            for rg in range(4):
                p('s_add_u32 m0, s%d, %d' % (sLW, 16384 + comp * 4096 + rg * 1024))
                p('s_add_u32 s%d, s%d, %d' % (sT0, sT2, rg * 7168))
                p('buffer_load_dwordx4 v%d, %s, s%d offen lds' % (vT0 if rg % 2 == 0 else vT1, srd(SCRE if comp == 0 else SCIM), sT0), tok='c')
            if comp == 0 and PO == 0:
                p.extend(flag_group(sFF, WS_PF, ('fst', 0)))
                pstamp(p, 2)
    PO = OPT.get('pord', 0)
    if PO == 2:
        p.waitvm(('w2', 0)); w2dma(3); cdma()
    if PO == 3:
        p.waitvm(('w2', 0)); w2dma(3)
    stage(0)
    pstamp(p, 1)
    stage(1)
    stage(2)
    tag_setup(p, TMP + 28)
    if PO < 2: w2dma(3)
    if PO != 2: cdma()
    lr, li = TMP + 6, TMP + 7
    lam_from(p, TMP + 0, TMP + 1, TMP + 2, lr, li, TMP + 4, TMP + 5)
    p('v_add_f32 v%d, -1.0, v%d' % (lr, lr))
    p('v_mul_f32 v%d, v%d, v%d' % (TMP + 4, TMP + 0, TMP + 0)); p('v_fmac_f32 v%d, v%d, v%d' % (TMP + 4, TMP + 1, TMP + 1))
    p('v_rcp_f32 v%d, v%d' % (TMP + 4, TMP + 4))
    p('v_mul_f32 v%d, v%d, v%d' % (TMP + 8, lr, TMP + 0)); p('v_fmac_f32 v%d, v%d, v%d' % (TMP + 8, li, TMP + 1))
    p('v_add_f32 v%d, v%d, v%d' % (TMP + 4, TMP + 4, TMP + 4))
    p('v_mul_f32 v%d, v%d, v%d' % (TMP + 9, li, TMP + 0)); p('v_fma_f32 v%d, -v%d, v%d, v%d' % (TMP + 9, lr, TMP + 1, TMP + 9))
    p('v_mul_f32 v%d, v%d, v%d' % (TMP + 8, TMP + 8, TMP + 4)); p('v_mul_f32 v%d, v%d, v%d' % (TMP + 9, TMP + 9, TMP + 4))
    p('v_lshl_add_u32 v%d, v%d, 3, s%d' % (vT2, vL, sLW))
    p('ds_write_b64 v%d, v[%d:%d] offset:%d' % (vT2, TMP + 8, TMP + 9, 24576))
    p('v_lshl_add_u32 v%d, v%d, 6, s%d' % (vT2, vH, sLW))
    if PO:
        p.extend(flag_group(sFF, WS_PF, ('fst', 0)))
        pstamp(p, 2)
    stage(3)
    p('s_lshl_b32 s%d, s%d, 3' % (sT0, sCBK)); p('s_add_u32 s%d, s%d, 112' % (sT0, sT0)); p('s_lshl_b32 s%d, s%d, 11' % (sKS, sT0))
    p('s_lshr_b32 s%d, s%d, 1' % (sT0, sCTG)); p('s_mul_i32 s%d, s%d, %d' % (sT0, sT0, 168 * 2048)); p('s_add_u32 s%d, s%d, s%d' % (sKS, sKS, sT0))
    p('s_and_b32 s%d, s%d, 1' % (sT0, sCTG)); p('s_lshl_b32 s%d, s%d, 10' % (sT0, sT0)); p('s_add_u32 s%d, s%d, s%d' % (sKS, sKS, sT0))
    p('s_add_u32 s%d, s%d, %d' % (sKS, sKS, WS_W2F))
    CR = 24; CF = 128; U = 56; O = 192
    p.waitvm('c')
    for g4 in range(4):
        p('ds_read_b128 %s, v%d offset:%d' % (v4(CR + 8 * g4), vC[g4], 16384))
        p('ds_read_b128 %s, v%d offset:%d' % (v4(CR + 8 * g4 + 4), vC[g4], 16384 + 4096))
        for k in range(4): p('ds_read_b128 %s, v%d offset:%d' % (v4(CF + 16 * g4 + 4 * k), vT2, 24576 + 128 * g4 + 16 * k))
        if g4 == 1: p('s_waitcnt lgkmcnt(6)')
    for g4 in range(4):
        cr, ci = CR + 8 * g4, CR + 8 * g4 + 4
        o = O + 8 * g4
        for k in range(4):
            a0, b0, a1, b1 = CF + 16 * g4 + 4 * k, CF + 16 * g4 + 4 * k + 1, CF + 16 * g4 + 4 * k + 2, CF + 16 * g4 + 4 * k + 3
            p('v_lshlrev_b32 v%d, 16, v%d' % (U, cr + k)); p('v_and_b32 v%d, s%d, v%d' % (U + 1, sMHI, cr + k))
            p('v_lshlrev_b32 v%d, 16, v%d' % (U + 2, ci + k)); p('v_and_b32 v%d, s%d, v%d' % (U + 3, sMHI, ci + k))
            p('v_mul_f32 v%d, v%d, v%d' % (U + 4, a0, U)); p('v_fma_f32 v%d, -v%d, v%d, v%d' % (U + 4, b0, U + 2, U + 4))
            p('v_mul_f32 v%d, v%d, v%d' % (U + 5, a1, U + 1)); p('v_fma_f32 v%d, -v%d, v%d, v%d' % (U + 5, b1, U + 3, U + 5))
            p('v_mul_f32 v%d, -v%d, v%d' % (U + 6, a0, U + 2)); p('v_fma_f32 v%d, -v%d, v%d, v%d' % (U + 6, b0, U, U + 6))
            p('v_mul_f32 v%d, -v%d, v%d' % (U + 7, a1, U + 3)); p('v_fma_f32 v%d, -v%d, v%d, v%d' % (U + 7, b1, U + 1, U + 7))
            p('v_cvt_pk_bf16_f32 v%d, v%d, v%d' % (o + k, U + 4, U + 5))
            p('v_cvt_pk_bf16_f32 v%d, v%d, v%d' % (o + 4 + k, U + 6, U + 7))
        if g4 == 1: p.extend(flag_group(sFF, WS_PF + 3072, ('fst', 3)))
    p('s_cmp_ge_u32 s%d, 98' % sKF); p('s_cbranch_scc1 L_prep_fin')
    for g4 in range(4):
        o = O + 8 * g4
        p('s_add_u32 s%d, s%d, %d' % (sT0, sKS, (4 * (g4 >> 1) + (g4 & 1)) * 2048))
        p('s_add_u32 s%d, s%d, 4096' % (sT1, sT0))
        p('buffer_store_dwordx4 %s, v%d, %s, s%d offen sc1' % (v4(o), vL16, srd(SWS), sT0))
        p('buffer_store_dwordx4 %s, v%d, %s, s%d offen sc1' % (v4(o + 4), vL16, srd(SWS), sT1))
    p('s_lshl_b32 s%d, s%d, 3' % (sT0, sCTG)); p('s_add_u32 s%d, s%d, s%d' % (sT0, sT0, sCBK)); p('s_lshl_b32 s%d, s%d, 3' % (sT0, sT0))
    p('s_waitcnt vmcnt(0)')
    p.extend(flag_group(sT0, WS_PF + 4096))
    p('L_prep_fin:')
    if OPT['stamps']:
        pstamp(p, 3)
        p('v_writelane_b32 v%d, s%d, 62' % (vDUM, SOUT)); p('v_writelane_b32 v%d, s%d, 61' % (vDUM, SOUT + 2))
        p('s_lshl_b32 s%d, s2, 2' % sT0); p('s_add_u32 s%d, s%d, s%d' % (sT0, sT0, sW)); p('s_lshl_b32 s%d, s%d, 8' % (sT0, sT0))
        p('s_add_u32 s%d, s%d, %d' % (sT0, sT0, WS_STAMP))
        p('v_lshlrev_b32 v%d, 2, v%d' % (vT0, vL))
        p('buffer_store_dword v%d, v%d, %s, s%d offen' % (vDUM, vT0, srd(SWS), sT0))
    p('L_exit:')
    p('s_endpgm')

HEADER = open('parallel_sum__ssm_conv_s5__dense_activation_silu__prompt.s.ref').read().split('; Override launch')[0]

def build():
    p = Prog()
    prologue_common(p)
    main_path(p)
    for q in retry_blocks:
        p.reset(); p.extend(q.ins)
    prep_path(p)
    if OPT.get('abl'):
        out = []; cnt = 0
        lo = stamp_slots.index(OPT.get('ablo', 'T0') if isinstance(OPT.get('ablo', 'T0'), str) else stamp_slots[OPT['ablo']]); hi_ = stamp_slots.index('T2') if 'abhi' not in OPT else OPT['abhi']
        inside = False
        for i in p.ins:
            if i.op == 'v_writelane_b32':
                k = int(i.text.split(',')[-1])
                if k == lo: inside = True
                if k == hi_: inside = False
                out.append(i); continue
            a = OPT['abl']
            if inside and (a & 64) and (i.kind in ('vload', 'dma', 'vstore', 'needvm') or (i.kind == 'branch' and 'retry' in i.text)): continue
            if inside and (a & 128) and i.kind == 'salu' and 'exec' not in i.text and 'vcc' not in i.text: continue
            if inside and i.note != 'glue' and (((a & 1) and i.kind in ('vload', 'dma') and 'dwordx4' in i.text and 'sc1' in i.text) or ((a & 2) and i.kind == 'trans') or ((a & 4) and i.kind == 'valu')
                           or ((a & 8) and i.kind == 'dsread') or ((a & 16) and i.kind == 'vstore' and 'dwordx4' in i.text) or ((a & 32) and i.kind == 'mfma')):
                continue
            out.append(i)
        p.ins = out
    ins = finalize(p)
    if OPT.get('wlo') is not None:
        out = []; inside = False; slot = 30
        for i in ins:
            if i.op == 'v_writelane_b32' and 's%d,' % sP0 in i.text:
                k = int(i.text.split(',')[-1])
                if k == OPT['wlo']: inside = True
                if k == OPT['whi']: inside = False
            if inside and i.kind in ('dma', 'vload', 'vstore') and OPT.get('wv'): OPT['wskip'] = OPT.get('wskip', 0) - 1
            if inside and slot < 59 and ((i.kind in ('dma', 'vload', 'vstore') and OPT.get('wskip', 0) < 0) if OPT.get('wv') else ((i.kind == 'wait' and 'vmcnt' in i.text) or i.kind == 'barrier')):
                out += [Ins('s_memtime s[62:63]')] if False else []
                out += [Ins('s_memtime s[64:65]'), i, Ins('s_memtime s[72:73]'), Ins('s_waitcnt lgkmcnt(0)'),
                        Ins('v_writelane_b32 v%d, s64, %d' % (vDUM, slot)), Ins('v_writelane_b32 v%d, s72, %d' % (vDUM, slot + 1))]
                print('W%d: %s' % (slot, i.text)); slot += 2
            else: out.append(i)
        ins = out
    ins = [i for i in ins if not i.text.startswith(('; pad', '; need', '; after', '; at'))]
    body = text_of(ins)
    s = HEADER
    s += '; @launch grid=(256,1,1) block=(256,1,1) lds=%d\n' % LDS_BYTES
    s += '.amdgcn_target "amdgcn-amd-amdhsa--gfx950"\n.text\n.globl %s\n.p2align 8\n.type %s,@function\n%s:\n' % (KNAME, KNAME, KNAME)
    s += body
    s += 'L_code_end:\n'
    s += '.section .rodata,"a"\n.p2align 6\n.amdhsa_kernel %s\n' % KNAME
    s += '  .amdhsa_next_free_vgpr 512\n  .amdhsa_next_free_sgpr 102\n  .amdhsa_accum_offset 256\n  .amdhsa_group_segment_fixed_size 0\n'
    s += '  .amdhsa_kernarg_size 120\n  .amdhsa_user_sgpr_count 2\n  .amdhsa_user_sgpr_kernarg_segment_ptr 1\n  .amdhsa_system_sgpr_workgroup_id_x 1\n'
    s += '  .amdhsa_float_denorm_mode_32 3\n'
    s += '.end_amdhsa_kernel\n'
    return s, ins

if __name__ == '__main__':
    s, ins = build()
    open(sys.argv[1], 'w').write(s)
    from collections import Counter
    c = Counter(i.kind for i in ins)
    print('instructions:', sum(v for k, v in c.items() if k != 'label'), dict(c))
    if OPT['stamps']: print('stamps:', ','.join(stamp_slots))
```

```python
import sys, os
sys.path.insert(0, os.path.dirname(os.path.abspath(__file__)))
from dsl import *

KNAME = 'parallel_sum__ssm_conv_s5__dense_activation_silu__prompt_kernel'
OPT = dict(stamps=0, rot=1, w1pf=0, cpf=1, spin=1 << 16, dbg=0, dbgwave=0, per=70, perd=72, lead=22, ahead=10, w2s=12, dot=1, pk=0, w2early=1, tlb=0, fillc=30, ldsw2=1, rotA=0, gpf=0, xup=5, ost=1, sshare=0, ns=0, perx=36, tp=1800, tc=3000, loc=0, send=24, p2=3, p3=9, p4=16, pd=6, f3=0, f4=7, c1=2, tf=900, tp0=1000, tc0=500, tp1=1300, tf2=1400, perh=80)
for a in sys.argv[2:]:
    k, v = a.split('='); OPT[k] = int(v)

HSC = '' if OPT.get('plain') else [' sc1', ' sc0 sc1'][OPT.get('hsc', 0)]
WS_EPOCH = 0
WS_PF    = 0xC000
WS_FL    = 0x2000
WS_EG    = 0x10000
WS_STAMP = 0x80000
WS_W2F   = 0x100000
WS_HID   = 0x400000
WS_END   = WS_HID + 64 * 168 * 1024
L0     = 8192
L_XW   = 24576
L_SW   = L0 + 98304
L_TR   = L0 + 114688
L_WT   = L_TR + 4 * 4608
L_RS   = 0
L_MR   = 512
L_EW   = 1536
LDS_BYTES = 163840
LOG2E = 0x3fb8aa3b
NLOG2E = 0xbfb8aa3b
INV2PI = 0x3e22f983

sR, sC, sW, sROT, sTL, sTH, sONE, sMHI = 8, 9, 10, 11, 12, 13, 14, 15
SX, SBRE, SBIM, SW1, SWS, SOUT, SLRE, SLIM, SLDT, SDSK, SCODE = 40, 44, 48, 52, 56, 60, 64, 68, 72, 76, 80
SEG = 44
KB = [84 + j for j in range(7)]
W1K = [91 + j for j in range(7)]
sT0, sT1, sLW, sT2 = 98, 99, 100, 101
BM0 = [64 + j for j in range(7)]
sHW, sCB, sHALF, sRT0, sPMASK, sW2, sH0, sH1, sSPIN, sFW = 16, 17, 18, 19, 20, 21, 22, 23, 24, 25
sT3, sT4, sT5, sT6 = 26, 27, 28, 29
sP0 = 30
sW2S, sH0S, sH1S, sHWS, sIDX, sM1 = 32, 33, 34, 35, 36, 37
RSO = [72 + j for j in range(4)] + [38, 39, 3]
def srd(b): return 's[%d:%d]' % (b, b + 3)
def v4(b): return ('v[%d:%d]' % (b, b + 3)) if b < 256 else ('a[%d:%d]' % (b - 256, b - 253))
def v2(b): return ('v[%d:%d]' % (b, b + 1)) if b < 256 else ('a[%d:%d]' % (b - 256, b - 255))
def v16(b): return 'v[%d:%d]' % (b, b + 15)

vL = 1; vL16 = 2; vT0, vT1, vT2, vT3 = 3, 4, 5, 6
vM, vS, vNK, vRSv = 7, 8, 9, 10
vZ = 11; vH = 12; vP = 13; vFA = 14; vDUM = 15
X = 16
SRE, SIM, F0, F1 = 128, 144, 160, 176
vXO = [192, 193, 194, 195]
vBO = 196
vW1O = [197, 198]
vRX = [199, 200, 201, 202]
vRF = [[203, 204], [205, 206]]
L1r, L1i, N1i, L2r, L2i, L3r, L3i, L4r, L4i, L32r, L32i, L128r, L128i, L256r, L256i = range(207, 222)
vTW, vTRr = 222, 223
vFA2, vFA3 = 201, 202
TMP = 224
WB = 256 + 224
FR = TMP + 26
FR2 = TMP + 24
TAGP = TMP + 30
vNM = TMP + 16
sSELL, sSELH = 70, 71
sPS, sPM2, sLT, sLA = 68, 69, 67, 66
sRS0, sRS1 = 82, 83
vPF = TMP + 28

def cost(i):
    if i.kind in ('label', 'needvm', 'needlgkm', 'reset'): return 0
    if i.kind in ('trans', 'mfma'): return 8
    if i.kind == 'nop': return 4 * i.width
    if i.kind in ('valu', 'dot', 'perm') and (i.op in ('v_fma_f32', 'v_cvt_pk_bf16_f32', 'v_lshl_add_u32', 'v_add3_u32', 'v_mul_lo_u32') or '0x' in i.text): return 5
    if i.kind in ('vload', 'vstore', 'dma'): return 8
    return 4

def weave(comp, groups, period, start=0, pdma=None, small=(), events=()):
    out = []; t = 0; pipe = 0; nxt = start; groups = list(groups); noins = 0
    pdma = pdma or period; nm = 0; events = sorted(events, key=lambda e: e[0])
    for i in comp:
        if i.kind == 'mfma':
            t = max(t, pipe); pipe = t + 32; nm += 1
        out.append(i); t += cost(i)
        if 'exec' in i.text and i.kind == 'salu':
            noins = 0 if i.text.endswith('exec, -1') else 1
        ok = not noins and not (i.kind == 'salu' and 'm0' in i.text) and i.kind not in ('needvm', 'needlgkm') and not getattr(i, 'note', None) == 'glue'
        if events and ok and t >= events[0][0]:
            g = events.pop(0)[1]; out.extend(g); t += sum(cost(x) for x in g); continue
        if groups and groups[0] and groups[0][0].text.startswith('; after') and nm < int(groups[0][0].text.split()[2]): continue
        if groups and groups[0] and groups[0][0].text.startswith('; at') and t < int(groups[0][0].text.split()[2]): continue
        if 'exec' in i.text and i.kind == 'salu':
            noins = 0 if i.text.endswith('exec, -1') else 1
        if groups and t >= nxt and not noins and not (i.kind == 'salu' and 'm0' in i.text) and i.kind not in ('needvm', 'needlgkm') and not getattr(i, 'note', None) == 'glue':
            g = groups.pop(0); out.extend(g); t += sum(cost(x) for x in g)
            nv = sum(1 for x in g if x.kind in ('dma', 'vload', 'vstore') and 'dwordx4' in x.text and not any('s[%d:%d]' % (b, b + 3) in x.text for b in small))
            pr = (period if any('sc1' in x.text for x in g) else pdma) * nv + (0 if nv else 40)
            nxt = max(nxt + pr, t - pr // 2)
    for e in events: out.extend(e[1])
    return out, groups

def G(*texts, tok=None):
    q = Prog()
    for t in texts: q(t, tok=tok)
    return q.ins

stamp_slots = []
def stamp(p, name):
    if not OPT['stamps']: return
    if OPT.get('rt') and name in ('issued0', 'first', 'x0in', 'Win', 'Ain', 'lbok', 'silu3', 'carry'): return
    if OPT.get('allg') and name in ('issued0', 'first', 'x0in', 'lead', 'Win', 'ssmend', 'Ain', 'lbok', 'T0', 'T1', 'T2', 'B1'): return
    k = len(stamp_slots); stamp_slots.append(name)
    p('s_memtime s[%d:%d]' % (sP0, sP0 + 1))
    if OPT.get('rt'): p('s_memrealtime s[64:65]')
    p('s_waitcnt lgkmcnt(0)')
    p('v_writelane_b32 v%d, s%d, %d' % (vDUM, sP0, k))
    if OPT.get('rt'): p('v_writelane_b32 v%d, s64, %d' % (vDUM, 30 + k))

def mk_srd(p, b, ptr, nbytes):
    p('s_mov_b32 s%d, s%d' % (b, ptr)); p('s_mov_b32 s%d, s%d' % (b + 1, ptr + 1))
    p('s_mov_b32 s%d, %d' % (b + 2, nbytes)); p('s_mov_b32 s%d, 0x20000' % (b + 3))

def bf16_round(p, dst, src):
    p('v_cvt_pk_bf16_f32 v%d, v%d, v%d' % (dst, src, src))
    p('v_lshlrev_b32 v%d, 16, v%d' % (dst, dst))

def lam_from(p, lre, lim, ldt, outr, outi, t0, t1):
    p('v_lshlrev_b32 v%d, 16, v%d' % (lre, lre))
    p('v_lshlrev_b32 v%d, 16, v%d' % (lim, lim))
    p('v_lshlrev_b32 v%d, 16, v%d' % (ldt, ldt))
    p('v_mul_f32 v%d, 0x%x, v%d' % (ldt, LOG2E, ldt))
    p('v_exp_f32 v%d, v%d' % (ldt, ldt))
    bf16_round(p, ldt, ldt)
    p('v_mul_f32 v%d, v%d, v%d' % (t0, ldt, lre))
    p('v_mul_f32 v%d, v%d, v%d' % (t1, ldt, lim))
    p('v_mul_f32 v%d, 0x%x, v%d' % (t0, LOG2E, t0))
    p('v_exp_f32 v%d, v%d' % (t0, t0))
    p('v_mul_f32 v%d, 0x%x, v%d' % (t1, INV2PI, t1))
    p('v_fract_f32 v%d, v%d' % (t1, t1))
    p('v_cos_f32 v%d, v%d' % (outr, t1))
    p('v_sin_f32 v%d, v%d' % (outi, t1))
    p('v_mul_f32 v%d, v%d, v%d' % (outr, t0, outr))
    p('v_mul_f32 v%d, v%d, v%d' % (outi, t0, outi))

def cmul(p, dr, di, ar, ai, br, bi):
    p('v_mul_f32 v%d, v%d, v%d' % (dr, ar, br))
    p('v_mul_f32 v%d, v%d, v%d' % (di, ar, bi))
    p('v_fma_f32 v%d, -v%d, v%d, v%d' % (dr, ai, bi, dr))
    p('v_fmac_f32 v%d, v%d, v%d' % (di, ai, br))

def cmac(p, dr, di, ar, ai, br, bi):
    p('v_fmac_f32 v%d, v%d, v%d' % (dr, ar, br))
    p('v_fmac_f32 v%d, v%d, v%d' % (di, ar, bi))
    p('v_fma_f32 v%d, -v%d, v%d, v%d' % (dr, ai, bi, dr))
    p('v_fmac_f32 v%d, v%d, v%d' % (di, ai, br))

def tag_setup(p, vlo):
    p('v_readfirstlane_b32 s%d, v%d' % (sTL, vlo))
    p('v_readfirstlane_b32 s%d, v%d' % (sTH, vlo + 1))
    p('s_mul_i32 s%d, s%d, 0x9e3779b1' % (sTL, sTL)); p('s_add_u32 s%d, s%d, 0x7f4a7c15' % (sTL, sTL))
    p('s_mul_i32 s%d, s%d, 0x85ebca6b' % (sTH, sTH)); p('s_add_u32 s%d, s%d, 0xc2b2ae35' % (sTH, sTH))
    p('v_mov_b32 v%d, s%d' % (TAGP, sTL)); p('v_mov_b32 v%d, s%d' % (TAGP + 1, sTH))

retry_blocks = []
def poll_check(name, mask, reload_text, FR=FR):
    p = Prog()
    p('v_cmp_ne_u32 vcc, s%d, v%d' % (sTL, FR))
    p('v_cmp_ne_u32 s[%d:%d], s%d, v%d' % (sP0, sP0 + 1, sTH, FR + 1))
    p('s_nop 1')
    p('s_or_b32 s%d, vcc_lo, s%d' % (sM1, sP0))
    p('s_and_b32 s%d, s%d, %s' % (sM1, sM1, mask))
    p('s_cbranch_scc1 L_retry_%s' % name)
    p('L_ok_%s:' % name)
    for i in p.ins: i.note = 'glue'
    q = Prog()
    q('L_retry_%s:' % name)
    q('s_mov_b32 s%d, 0' % sSPIN)
    q('L_loop_%s:' % name)
    q('s_sleep 1')
    q(reload_text)
    q('s_waitcnt vmcnt(0)')
    q('v_cmp_ne_u32 vcc, s%d, v%d' % (sTL, FR))
    q('v_cmp_ne_u32 s[%d:%d], s%d, v%d' % (sP0, sP0 + 1, sTH, FR + 1))
    q('s_add_u32 s%d, s%d, 1' % (sSPIN, sSPIN))
    if OPT['stamps']: q('v_add_u32 v%d, 1, v%d' % (vRSv, vRSv))
    q('s_cmp_gt_u32 s%d, %d' % (sSPIN, OPT['spin']))
    q('s_cbranch_scc1 L_ok_%s' % name)
    q('s_or_b32 s%d, vcc_lo, s%d' % (sM1, sP0))
    q('s_and_b32 s%d, s%d, %s' % (sM1, sM1, mask))
    q('s_cbranch_scc1 L_loop_%s' % name)
    q('s_branch L_ok_%s' % name)
    retry_blocks.append(q)
    return p.ins

def flag_group(base_s, add, waittok=None):
    q = Prog()
    if waittok is not None: q.waitvm(waittok)
    q('s_add_u32 s%d, s%d, %d' % (sM1, base_s, add))
    q('s_mov_b64 exec, 1')
    q('buffer_store_dwordx2 v[%d:%d], v%d, %s, s%d offen%s' % (TAGP, TAGP + 1, vZ, srd(SWS), sM1, HSC if base_s == sFW else ' sc1'))
    q('s_mov_b64 exec, -1')
    return q.ins

def prologue_common(p):
    p('s_cmp_ge_u32 s2, 256')
    p('s_cbranch_scc1 L_exit')
    p('s_load_dwordx16 s[16:31], s[0:1], 0')
    p('s_load_dwordx8 s[32:39], s[0:1], 64')
    p('s_load_dwordx2 s[4:5], s[0:1], 96')
    p('s_load_dwordx2 s[6:7], s[0:1], 112')
    if OPT['stamps']:
        p('s_memrealtime s[%d:%d]' % (SOUT, SOUT + 1))
        p('s_memtime s[%d:%d]' % (SOUT + 2, SOUT + 3))
    if OPT['cpf']:
        p('s_getpc_b64 s[%d:%d]' % (SCODE, SCODE + 1))
        p('L_pc:')
        p('v_lshrrev_b32 v%d, 5, v0' % vT1); p('v_and_b32 v%d, 6, v%d' % (vT1, vT1)); p('v_and_b32 v%d, 1, v0' % vT2)
        p('v_add_lshl_u32 v%d, v%d, v%d, 7' % (vT2, vT1, vT2))
        p('s_sub_u32 s%d, s%d, L_pc-%s' % (SCODE, SCODE, KNAME))
        p('s_subb_u32 s%d, s%d, 0' % (SCODE + 1, SCODE + 1))
        p('s_mov_b32 s%d, L_code_end-%s' % (SCODE + 2, KNAME))
        p('s_mov_b32 s%d, 0x20000' % (SCODE + 3))
        p('s_lshr_b32 s%d, s2, 3' % sT1); p('s_lshl_b32 s%d, s%d, 10' % (sT1, sT1))
        p('s_mov_b64 exec, 3')
        p('buffer_load_dword v%d, v%d, %s, s%d offen' % (F1, vT2, srd(SCODE), sT1), tok='cpf')
        p('s_mov_b64 exec, -1')
    p('v_lshrrev_b32 v%d, 6, v0' % vT0)
    p('v_and_b32 v%d, 63, v0' % vL)
    p('v_readfirstlane_b32 s%d, v%d' % (sW, vT0))
    p('v_lshlrev_b32 v%d, 4, v%d' % (vL16, vL))
    p('v_mov_b32 v%d, 0' % vZ)
    p('v_lshrrev_b32 v%d, 5, v%d' % (vH, vL))
    p('v_and_b32 v%d, 31, v%d' % (vP, vL))
    p('s_and_b32 s%d, s2, 7' % sT0)
    p('s_lshr_b32 s%d, s2, 3' % sT1)
    p('s_mov_b32 s%d, 0x3f803f80' % sONE)
    p('s_mov_b32 s%d, 0xffff0000' % sMHI)
    p('v_lshrrev_b32 v%d, 3, v%d' % (vT0, vL))
    p('v_mul_u32_u24 v%d, 896, v%d' % (vT0, vT0))
    p('v_lshrrev_b32 v%d, 4, v%d' % (vT1, vL))
    p('v_and_b32 v%d, 7, v%d' % (vT2, vL))
    p('v_xor_b32 v%d, v%d, v%d' % (vT1, vT1, vT2))
    p('v_lshl_add_u32 v%d, v%d, 4, v%d' % (vT0, vT1, vT0))
    p('v_xor_b32 v%d, 64, v%d' % (vT1, vT0))
    p('s_cmp_ge_u32 s%d, 28' % sT1)
    p('s_cbranch_scc1 L_prep')

def wrap7(p, dst, a, b_or_imm, tmp):
    p('s_add_u32 s%d, s%d, %s' % (dst, a, b_or_imm))
    p('s_cmp_ge_u32 s%d, 7' % dst)
    p('s_cselect_b32 s%d, 7, 0' % tmp)
    p('s_sub_u32 s%d, s%d, s%d' % (dst, dst, tmp))

def main_path(p):
    sXCD, sI7 = 78, 79
    p('s_mov_b32 s%d, s%d' % (sXCD, sT0)); p('s_mov_b32 s%d, s%d' % (sI7, sT1))
    if not OPT['loc']:
        p('s_mul_i32 s%d, s%d, 37' % (sT2, sT1)); p('s_lshr_b32 s%d, s%d, 8' % (sT2, sT2))
        p('s_mul_i32 s3, s%d, 7' % sT2); p('s_sub_u32 s%d, s%d, s3' % (sROT, sT1))
        p('s_lshr_b32 s%d, s%d, 1' % (sR, sT0)); p('s_lshl_b32 s%d, s%d, 2' % (sR, sR)); p('s_add_u32 s%d, s%d, s%d' % (sR, sR, sT2))
        p('s_and_b32 s%d, s%d, 1' % (sT0, sT0))
        p('s_mul_i32 s%d, s%d, 7' % (sC, sT0)); p('s_add_u32 s%d, s%d, s%d' % (sC, sC, sROT))
    else:
        p('s_cmp_ge_u32 s%d, 14' % sT1); p('s_cselect_b32 s%d, 1, 0' % sT2); p('s_cselect_b32 s3, 14, 0')
        p('s_sub_u32 s%d, s%d, s3' % (sC, sT1))
        p('s_lshl_b32 s%d, s%d, 1' % (sR, sT0)); p('s_add_u32 s%d, s%d, s%d' % (sR, sR, sT2))
        p('s_cmp_ge_u32 s%d, 7' % sC); p('s_cselect_b32 s%d, 1, 0' % sXCD); p('s_cselect_b32 s3, 7, 0')
        p('s_sub_u32 s%d, s%d, s3' % (sROT, sC))
        p('s_lshl_b32 s%d, s%d, 1' % (sT2, sT2))
    p('s_mul_i32 s%d, s%d, %d' % (sLW, sW, L_XW)); p('s_add_u32 s%d, s%d, %d' % (sLW, sLW, L0))
    p('s_lshl_b32 s%d, s%d, 7' % (KB[0], sROT)) if OPT['rot'] else p('s_mov_b32 s%d, 0' % KB[0])
    p('s_lshl_b32 s%d, s%d, 2' % (sT0, sR)); p('s_add_u32 s%d, s%d, s%d' % (sT0, sT0, sW))
    p('s_mul_i32 s%d, s%d, %d' % (sT1, sT0, 32 * 896))
    p('v_add_u32 v%d, s%d, v%d' % (vXO[0], sT1, vT0))
    p('v_add_u32 v%d, s%d, v%d' % (vXO[1], sT1, vT1))
    p('v_add_u32 v%d, %d, v%d' % (vXO[2], 14336 - 2048, vXO[0]))
    p('v_add_u32 v%d, %d, v%d' % (vXO[1], 7168 - 1024, vXO[1]))
    p('v_add_u32 v%d, %d, v%d' % (vXO[3], 14336 - 2048, vXO[1]))
    if OPT['stamps']: p('s_memtime s[76:77]')
    p('s_waitcnt lgkmcnt(0)')
    if OPT['stamps']:
        p('v_writelane_b32 v%d, s%d, 62' % (vDUM, SOUT)); p('v_writelane_b32 v%d, s%d, 61' % (vDUM, SOUT + 2))
        stamp_slots.append('prek'); p('v_writelane_b32 v%d, s76, 0' % vDUM)
        p('s_memtime s[%d:%d]' % (SOUT, SOUT + 1))
    mk_srd(p, SX, 16, 2048 * 896)
    def x_dma(j):
        out = [G('buffer_load_dwordx4 v%d, %s, s%d offen offset:%d lds' % (vXO[rg], srd(SX), KB[j], rg * 1024), tok=('x', j)) for rg in range(4)]
        out[0] = G('s_add_u32 m0, s%d, %d' % (sLW, j * 4096)) + out[0]
        return out
    fill = Prog()
    mk_srd(fill, SBRE, 22, 448 * 896); mk_srd(fill, SBIM, 24, 448 * 896)
    mk_srd(fill, SLRE, 18, 896); mk_srd(fill, SLIM, 20, 896); mk_srd(fill, SLDT, 30, 896); mk_srd(fill, SWS, 6, WS_END)
    mk_srd(fill, SW1, 36, 448 * 3584)
    fl = fill.ins
    for g in x_dma(0): p.extend(g)
    p.extend(fl[:8]); fl = fl[8:]
    p('s_and_b32 s%d, s%d, 1' % (sT1, sW)); p('s_lshl_b32 s%d, s%d, 6' % (sT1, sT1))
    p('v_xor_b32 v%d, s%d, v%d' % (vBO, sT1, vT0))
    p('s_mul_i32 s%d, s%d, 7168' % (sT1, sW)); p('s_mul_i32 s%d, s%d, %d' % (sT0, sC, 32 * 896)); p('s_add_u32 s%d, s%d, s%d' % (sT1, sT1, sT0))
    p('v_add_u32 v%d, s%d, v%d' % (vBO, sT1, vBO))
    p('s_lshl_b32 s%d, s%d, 1' % (sT2, sT2))
    p('s_lshl_b32 s%d, s%d, 12' % (W1K[0], sT2)); p('s_lshl_b32 s%d, s%d, 10' % (sT1, sW)); p('s_add_u32 s%d, s%d, s%d' % (W1K[0], W1K[0], sT1))
    p('s_add_u32 s%d, s%d, %d' % (sT1, sT1, 7 * 4096))
    for k in range(1, 7):
        p('s_add_u32 s%d, s%d, 4096' % (W1K[k], W1K[k - 1]))
        p('s_cmp_ge_u32 s%d, s%d' % (W1K[k], sT1))
        p('s_cselect_b32 s%d, %d, 0' % (sT0, 7 * 4096))
        p('s_sub_u32 s%d, s%d, s%d' % (W1K[k], W1K[k], sT0))
    p('s_lshl_b32 s%d, s%d, 7' % (sT2, sT2))
    p('s_add_u32 s%d, s%d, s%d' % (sT2, sT2, KB[0]))
    p('s_cmp_ge_u32 s%d, 896' % sT2); p('s_cselect_b32 s%d, 896, 0' % sT0); p('s_sub_u32 s%d, s%d, s%d' % (sT2, sT2, sT0))
    p('v_lshlrev_b32 v%d, 1, v%d' % (vT2, vP))
    p('s_lshl_b32 s%d, s%d, 6' % (sT1, sC))
    if OPT['stamps']:
        p('s_memtime s[%d:%d]' % (SOUT + 2, SOUT + 3)); p('s_waitcnt lgkmcnt(0)')
        stamp_slots.append('karg'); p('v_writelane_b32 v%d, s%d, 1' % (vDUM, SOUT))
        stamp_slots.append('x0'); p('v_writelane_b32 v%d, s%d, 2' % (vDUM, SOUT + 2))
    ssm_soff = [sT2]
    def ssm_dma(k, soff):
        return [G('s_add_u32 m0, s%d, %d' % (W1K[k], L_SW + T * 28672),
                  'buffer_load_dwordx4 v%d, %s, s%d offen lds' % (vBO, srd(SBRE if T == 0 else SBIM), soff), tok='ssmw') for T in range(2)]
    def next_soff(q, dst, src):
        q('s_add_u32 s%d, s%d, 128' % (dst, src)); q('s_cmp_ge_u32 s%d, 896' % dst); q('s_cselect_b32 s%d, 0, s%d' % (dst, dst))
    p('s_mov_b32 s%d, s%d' % (sRS0, sT2))
    next_soff(p, sT2, sT2)
    p('s_mov_b32 s%d, s%d' % (sRS1, sT2))
    share = ssm_dma(0, sRS0) + ssm_dma(1, sRS1)
    NSH = OPT.get('sshare', 4)
    for g in share[:NSH]:
        p.extend([g[0]] + fl[:4] + [g[1]]); fl = fl[4:]
    p.extend(fl)
    p('buffer_load_dwordx2 v[%d:%d], v%d, %s, 0 offen sc1' % (TMP + 28, TMP + 29, vZ, srd(SWS)))
    p('buffer_load_ushort v%d, v%d, %s, s%d offen' % (TMP + 0, vT2, srd(SLRE), sT1))
    p('buffer_load_ushort v%d, v%d, %s, s%d offen' % (TMP + 1, vT2, srd(SLIM), sT1))
    p('buffer_load_ushort v%d, v%d, %s, s%d offen' % (TMP + 2, vT2, srd(SLDT), sT1))
    gpf = Prog()
    if OPT['gpf']:
        gpf('s_mul_i32 s%d, s%d, 14' % (sT0, sR)); gpf('s_add_u32 s%d, s%d, s%d' % (sT0, sT0, sC)); gpf('s_lshl_b32 s%d, s%d, 2' % (sT0, sT0))
        gpf('s_add_u32 s%d, s%d, s%d' % (sT0, sT0, sW)); gpf('s_mul_i32 s%d, s%d, 1792' % (sT0, sT0))
        gpf('v_lshlrev_b32 v%d, 7, v%d' % (vT1, vL))
        gpf('s_mov_b64 exec, 0x3fff')
        gpf('buffer_load_dword v%d, v%d, %s, s%d offen' % (F1 + 5, vT1, srd(SW1), sT0), tok='cpf')
        gpf('s_mov_b64 exec, -1')
    if OPT['gpf'] == 1: p.extend(gpf.ins)
    if OPT['tlb']:
        p('v_lshlrev_b32 v%d, 21, v%d' % (vT1, vL))
        p('s_mov_b64 exec, 0xfe')
        p('buffer_load_dword v%d, v%d, %s, 0 offen' % (F1 + 3, vT1, srd(SWS)), tok='cpf')
        p('s_mov_b64 exec, 1')
        p('buffer_load_dword v%d, v%d, %s, 0 offen' % (F1 + 4, vZ, srd(SW1)), tok='cpf')
        p('s_mov_b64 exec, -1')
    stamp(p, 'issued0')
    if OPT.get('amp') == 99:
        p('v_readlane_b32 s%d, v%d, 62' % (sT0, vDUM)); p('s_lshl_b32 s%d, s2, 7' % sT1); p('s_add_u32 s%d, s%d, 0xF0000' % (sT1, sT1))
        p('v_mov_b32 v%d, s%d' % (F1 + 7, sT0))
        p('buffer_store_dword v%d, v%d, %s, s%d offen sc1' % (F1 + 7, vZ, srd(SWS), sT1))
    for j in range(1, 7):
        if OPT['rot']:
            p('s_add_u32 s%d, s%d, 128' % (KB[j], KB[j - 1]))
            p('s_cmp_ge_u32 s%d, 896' % KB[j])
            p('s_cselect_b32 s%d, 0, s%d' % (KB[j], KB[j]))
        else: p('s_mov_b32 s%d, %d' % (KB[j], j * 128))
    prev = sT2
    RS7 = [None, None, 38, 39, 34, 35, 3]
    p('s_and_b32 s%d, s%d, 1' % (sHALF, sXCD))
    mk_srd(p, SDSK, 32, 896)
    mk_srd(p, SOUT, 4, 2048 * 1792)
    for k in range(2, 7):
        next_soff(p, RS7[k], prev); prev = RS7[k]
    ssm_rest = []
    for k in range(2, 7): ssm_rest += ssm_dma(k, RS7[k])
    w1g = []
    if OPT['w1pf']:
        p('v_mul_u32_u24 v%d, 3584, v%d' % (vT1, vL))
        p('s_and_b32 s%d, s%d, 3' % (sT1, sR)); p('s_lshl_b32 s%d, s%d, 2' % (sT1, sT1)); p('s_add_u32 s%d, s%d, s%d' % (sT1, sT1, sW))
        p('s_mul_i32 s%d, s%d, %d' % (sT1, sT1, 28 * 3584))
        p('s_lshl_b32 s%d, s%d, 8' % (sT0, sC)); p('s_add_u32 s%d, s%d, s%d' % (sT1, sT1, sT0))
        p('v_add_u32 v%d, s%d, v%d' % (F1 + 2, sT1, vT1))
        w1g = [G('s_mov_b64 exec, 0x0fffffff', 'buffer_load_dword v%d, v%d, %s, 0 offen offset:128' % (F1 + 1, F1 + 2, srd(SW1)), 's_mov_b64 exec, -1', tok='cpf')]
    p('v_lshrrev_b32 v%d, 3, v%d' % (vT0, vL))
    p('v_mul_u32_u24 v%d, 3584, v%d' % (vT0, vT0))
    p('v_lshrrev_b32 v%d, 2, v%d' % (vT1, vL)); p('v_and_b32 v%d, 4, v%d' % (vT1, vT1))
    p('v_and_b32 v%d, 7, v%d' % (vT2, vL)); p('v_xor_b32 v%d, v%d, v%d' % (vT1, vT1, vT2))
    p('v_lshl_add_u32 v%d, v%d, 4, v%d' % (vT0, vT1, vT0))
    p('s_mul_i32 s%d, s%d, %d' % (sT1, sW, 16 * 3584)); p('s_lshl_b32 s%d, s%d, 8' % (sT0, sC)); p('s_add_u32 s%d, s%d, s%d' % (sT1, sT1, sT0))
    p('v_add_u32 v%d, s%d, v%d' % (vW1O[0], sT1, vT0))
    p('v_add_u32 v%d, %d, v%d' % (vW1O[1], 8 * 3584 - 1024, vW1O[0]))
    p('v_lshrrev_b32 v%d, 1, v%d' % (vT0, vP)); p('v_and_b32 v%d, 7, v%d' % (vT0, vT0))
    p('v_xor_b32 v%d, v%d, v%d' % (vT0, vT0, vH)); p('v_lshlrev_b32 v%d, 4, v%d' % (vT0, vT0))
    p('v_lshl_add_u32 v%d, v%d, 7, v%d' % (vT0, vP, vT0))
    p('v_add_u32 v%d, s%d, v%d' % (vRX[0], sLW, vT0))
    for i in range(1, 4): p('v_xor_b32 v%d, %d, v%d' % (vRX[i], i << 5, vRX[0]))
    p('v_lshrrev_b32 v%d, 2, v%d' % (vT0, vL)); p('v_and_b32 v%d, 3, v%d' % (vT0, vT0))
    p('v_lshlrev_b32 v%d, 7, v%d' % (vT1, vT0))
    p('v_lshl_add_u32 v%d, v%d, 10, v%d' % (vT1, vH, vT1))
    p('v_and_b32 v%d, 2, v%d' % (vT0, vT0)); p('v_lshl_add_u32 v%d, v%d, 5, v%d' % (vT1, vT0, vT1))
    p('v_and_b32 v%d, 16, v%d' % (vT0, vL)); p('v_lshl_add_u32 v%d, v%d, 1, v%d' % (vT1, vT0, vT1))
    p('v_and_b32 v%d, 3, v%d' % (vT0, vL)); p('v_lshl_add_u32 v%d, v%d, 3, v%d' % (vRF[0][0], vT0, vT1))
    p('v_add_u32 v%d, %d, v%d' % (vRF[0][0], L0, vRF[0][0]))
    p('v_xor_b32 v%d, 64, v%d' % (vRF[1][0], vRF[0][0]))
    p('v_add_u32 v%d, 0x10000, v%d' % (vRF[0][1], vRF[0][0]))
    p('v_add_u32 v%d, 0x10000, v%d' % (vRF[1][1], vRF[1][0]))
    p('s_mul_i32 s%d, s%d, 4608' % (sT1, sW)); p('s_add_u32 s%d, s%d, %d' % (sT1, sT1, L_TR))
    p('v_mul_u32_u24 v%d, 72, v%d' % (vT0, vP)); p('v_lshl_add_u32 v%d, v%d, 3, v%d' % (vT0, vH, vT0))
    p('v_add_u32 v%d, s%d, v%d' % (vTW, sT1, vT0))
    p('v_lshrrev_b32 v%d, 2, v%d' % (vT0, vL)); p('v_and_b32 v%d, 3, v%d' % (vT0, vT0))
    p('v_lshl_add_u32 v%d, v%d, 3, v%d' % (vT0, vH, vT0)); p('v_mul_u32_u24 v%d, 72, v%d' % (vT0, vT0))
    p('v_and_b32 v%d, 16, v%d' % (vT1, vL)); p('v_lshl_add_u32 v%d, v%d, 1, v%d' % (vT0, vT1, vT0))
    p('v_and_b32 v%d, 3, v%d' % (vT1, vL)); p('v_lshl_add_u32 v%d, v%d, 3, v%d' % (vT0, vT1, vT0))
    p('v_add_u32 v%d, s%d, v%d' % (vTRr, sT1, vT0))
    p('s_mov_b32 s%d, s%d' % (sCB, sROT))
    p('s_lshl_b32 s%d, s%d, 2' % (sT0, sR)); p('s_add_u32 s%d, s%d, s%d' % (sT1, sT0, sW))
    p('s_mul_i32 s%d, s%d, 168' % (sHW, sT1)); p('s_lshl_b32 s%d, s%d, 1' % (sT2, sC)); p('s_add_u32 s%d, s%d, s%d' % (sHW, sHW, sT2))
    p('s_lshl_b32 s%d, s%d, 10' % (sHW, sHW)); p('s_add_u32 s%d, s%d, %d' % (sHW, sHW, WS_HID))
    p('s_lshl_b32 s%d, s%d, 7' % (sFW, sT1)); p('s_lshl_b32 s%d, s%d, 3' % (sT2, sC)); p('s_add_u32 s%d, s%d, s%d' % (sFW, sFW, sT2))
    p('s_add_u32 s%d, s%d, %d' % (sFW, sFW, WS_FL))
    p('s_lshl_b32 s%d, s%d, 1' % (sT2, sHALF)); p('s_add_u32 s%d, s%d, s%d' % (sRT0, sT0, sT2))
    p('s_mul_i32 s%d, s%d, 7' % (sT2, sW))
    p('s_mul_i32 s%d, s%d, 168' % (sH0, sRT0)); p('s_add_u32 s%d, s%d, s%d' % (sH0, sH0, sT2)); p('s_lshl_b32 s%d, s%d, 10' % (sH0, sH0))
    p('s_add_u32 s%d, s%d, %d' % (sH0, sH0, WS_HID)); p('s_add_u32 s%d, s%d, %d' % (sH1, sH0, 168 * 1024))
    p('s_mul_i32 s%d, s%d, 168' % (sW2, sCB)); p('s_add_u32 s%d, s%d, s%d' % (sW2, sW2, sT2)); p('s_lshl_b32 s%d, s%d, 11' % (sW2, sW2))
    p('s_add_u32 s%d, s%d, %d' % (sW2, sW2, WS_W2F))
    p('s_lshr_b32 s%d, s%d, 1' % (sT0, sT2)); p('s_lshl_b32 s%d, 0x000f000f, s%d' % (sPMASK, sT0))
    p('s_lshl_b32 s%d, s%d, 11' % (sT0, sT2)); p('s_add_u32 s%d, s%d, s%d' % (sW2S, sW2, sT0))
    p('s_lshl_b32 s%d, s%d, 10' % (sT0, sT2)); p('s_add_u32 s%d, s%d, s%d' % (sH0S, sH0, sT0))
    p('v_and_b32 v%d, 16, v%d' % (vT0, vL)); p('v_lshlrev_b32 v%d, 3, v%d' % (vT0, vT0))
    p('v_and_b32 v%d, 15, v%d' % (vT1, vL)); p('v_lshl_add_u32 v%d, v%d, 3, v%d' % (vT0, vT1, vT0))
    p('s_lshl_b32 s%d, s%d, 7' % (sT2, sRT0)); p('s_add_u32 s%d, s%d, %d' % (sT2, sT2, WS_FL))
    p('v_add_u32 v%d, s%d, v%d' % (vFA, sT2, vT0))
    A0, A1, Q0, Q1 = TMP + 8, TMP + 9, TMP + 10, TMP + 11
    for a in (A0, A1, Q0, Q1): p('v_mov_b32 v%d, 0' % a)
    for j in range(1, OPT['xup'] + 1):
        for g in x_dma(j): p.extend(g)
        if j == 2 and OPT['gpf'] == 2: p.extend(gpf.ins)
    stamp(p, 'first')
    lam = Prog()
    LT = F1 + 8
    lam_from(lam, TMP + 0, TMP + 1, TMP + 2, L1r, L1i, LT, LT + 1)
    lam('v_sub_f32 v%d, 0, v%d' % (N1i, L1i))
    cmul(lam, L2r, L2i, L1r, L1i, L1r, L1i)
    cmul(lam, L3r, L3i, L2r, L2i, L1r, L1i)
    cmul(lam, L4r, L4i, L2r, L2i, L2r, L2i)
    cmul(lam, LT, LT + 1, L4r, L4i, L4r, L4i)
    cmul(lam, LT + 2, LT + 3, LT, LT + 1, LT, LT + 1)
    cmul(lam, L32r, L32i, LT + 2, LT + 3, LT + 2, LT + 3)
    cmul(lam, LT, LT + 1, L32r, L32i, L32r, L32i)
    cmul(lam, L128r, L128i, LT, LT + 1, LT, LT + 1)
    cmul(lam, L256r, L256i, L128r, L128i, L128r, L128i)
    tagp = Prog()
    tag_setup(tagp, TMP + 28)
    tagp('s_lshr_b32 s%d, s%d, 1' % (sT5, sCB)); tagp('s_lshl_b32 s%d, s%d, 8' % (sT5, sT5))
    tagp('s_lshl_b32 s%d, s%d, 7' % (sPS, sCB)); tagp('s_add_u32 s%d, s%d, 4096' % (sPS, sPS)); tagp('s_sub_u32 s%d, s%d, s%d' % (sPS, sPS, sT5))
    tagp('s_add_u32 s%d, s%d, %d' % (sT5, sT5, WS_PF))
    tagp('v_lshl_add_u32 v%d, v%d, 3, s%d' % (vPF, vP, sT5))
    tagp('s_mul_i32 s%d, s%d, 7' % (sT5, sW)); tagp('s_lshl_b32 s%d, 0x7f, s%d' % (sPM2, sT5))

    def x_read(q, j, slot):
        for i in range(4):
            q('ds_read_b128 %s, v%d offset:%d' % (v4(X + 16 * j + 4 * i), vRX[i], slot * 4096), tok=('xr', j))
    def x_stats(q, j):
        q.waitlgkm(('xr', j))
        for k in range(16):
            r_ = X + 16 * j + k
            q('v_dot2c_f32_bf16 v%d, s%d, v%d' % (A0 if k % 2 == 0 else A1, sONE, r_))
            q('v_dot2c_f32_bf16 v%d, v%d, v%d' % (Q0 if k % 2 == 0 else Q1, r_, r_))
    q = Prog()
    q.waitvm(('x', 0)); stamp(q, 'x0in'); x_read(q, 0, 0)
    for j in range(1, 6):
        q.waitvm(('x', j)); x_read(q, j, j)
        x_stats(q, j - 1)
    q('v_add_u32 v%d, s%d, v%d' % (vT0, sLW, vL16))
    for rg in range(4):
        q('ds_write_b128 v%d, %s offset:%d' % (vT0, v4(F0 + 4 * rg), rg * 1024))
    x_read(q, 6, 0)
    x_stats(q, 5)
    x_stats(q, 6)
    x6 = [G('buffer_load_dwordx4 %s, v%d, %s, s%d offen offset:%d' % (v4(F0 + 4 * rg), vXO[rg], srd(SX), KB[6], rg * 1024)) for rg in range(4)]
    vm = []
    for j in range(OPT['xup'] + 1, 6): vm += x_dma(j)
    NS = OPT.get('ns', 4)
    vm += x6 + share[NSH:] + ([gpf.ins] if OPT['gpf'] == 3 else []) + ssm_rest[:NS]
    st, left = weave(q.ins, vm, OPT.get('perx', 44))
    assert not left, len(left)
    p.extend(st)
    stamp(p, 'x_in')
    w1k = Prog()
    for j in range(7): w1k('s_mul_i32 s%d, s%d, 1792' % (W1K[j], KB[j]))
    dma = []
    for dt in range(2):
        for j in range(7 if dt == 0 else 5):
            for e in range(2):
                l_off = (0 if dt == 0 else 14336 - 128) + 2 * j * 1024
                dma.append((G('s_add_u32 m0, s%d, %d' % (sLW, l_off)) if e == 0 else []) + G(
                    'buffer_load_dwordx4 v%d, %s, s%d offen offset:%d lds' % (vW1O[e], srd(SW1), W1K[j], 128 * dt + 1024 * e), tok='ffnA' if dt == 0 else 'ffnB'))
    q = Prog()
    q('v_add_f32 v%d, v%d, v%d' % (A0, A0, A1)); q('v_add_f32 v%d, v%d, v%d' % (Q0, Q0, Q1))
    q('v_mov_b32 v%d, v%d' % (A1, A0)); q('v_mov_b32 v%d, v%d' % (Q1, Q0))
    q('v_permlane32_swap_b32 v%d, v%d' % (A0, A1)); q('v_permlane32_swap_b32 v%d, v%d' % (Q0, Q1))
    q('v_add_f32 v%d, v%d, v%d' % (A0, A0, A1)); q('v_add_f32 v%d, v%d, v%d' % (Q0, Q0, Q1))
    q('v_mul_f32 v%d, 0x3b124925, v%d' % (A0, A0))
    q('v_mul_f32 v%d, 0x3b124925, v%d' % (Q0, Q0))
    q('v_fma_f32 v%d, -v%d, v%d, v%d' % (Q0, A0, A0, Q0))
    q('v_max_f32 v%d, 0, v%d' % (Q0, Q0))
    bf16_round(q, vM, A0)
    bf16_round(q, Q0, Q0)
    q('v_add_f32 v%d, 0x3727c5ac, v%d' % (Q0, Q0))
    bf16_round(q, Q0, Q0)
    q('v_sqrt_f32 v%d, v%d' % (Q0, Q0))
    bf16_round(q, vS, Q0)
    q('v_rcp_f32 v%d, v%d' % (vRSv, vS))
    q('s_lshl_b32 s%d, s%d, 7' % (sT3, sW))
    q('v_lshl_add_u32 v%d, v%d, 2, s%d' % (vT0, vP, sT3))
    q('v_mul_f32 v%d, 0x%x, v%d' % (vNK, NLOG2E, vRSv))
    q('ds_write_b32 v%d, v%d offset:%d' % (vT0, vRSv, L_RS))
    q('v_lshlrev_b32 v%d, 1, v%d' % (vT0, vT0))
    q('v_mov_b32 v%d, v%d' % (TMP + 12, vM)); q('v_mov_b32 v%d, v%d' % (TMP + 13, vRSv))
    q('ds_write_b64 v%d, v[%d:%d] offset:%d' % (vT0, TMP + 12, TMP + 13, L_MR))
    q('s_sub_u32 s%d, %d, s%d' % (sT4, L_SW, sLW))
    for i in range(4): q('v_add_u32 v%d, s%d, v%d' % (vRX[i], sT4, vRX[i]))
    if OPT['stamps']: q('v_mov_b32 v%d, 0' % vRSv)

    def d_step(ks, mode=0):
        z = Prog()
        if mode == 1:
            for k in range(4):
                z('v_dot2_f32_bf16 v%d, v%d, s%d, v%d' % (TMP + 8 + 2 * k, X + 4 * ks + k, sSELL, vNM))
                z('v_dot2_f32_bf16 v%d, v%d, s%d, v%d' % (TMP + 9 + 2 * k, X + 4 * ks + k, sSELH, vNM))
            for k in range(4):
                z('v_cvt_pk_bf16_f32 v%d, v%d, v%d' % (X + 4 * ks + k, TMP + 8 + 2 * k, TMP + 9 + 2 * k))
            return z.ins
        if mode == 2:
            for k in range(4):
                r_ = X + 4 * ks + k; lo = TMP + 8 + 2 * (k % 2)
                z('v_lshlrev_b32 v%d, 16, v%d' % (lo, r_))
                z('v_and_b32 v%d, s%d, v%d' % (lo + 1, sMHI, r_))
                z('v_pk_add_f32 v[%d:%d], v[%d:%d], v[%d:%d] op_sel_hi:[1,0]' % (lo, lo + 1, lo, lo + 1, vNM, vNM + 1))
                z('v_cvt_pk_bf16_f32 v%d, v%d, v%d' % (r_, lo, lo + 1))
            return z.ins
        for k in range(4):
            r_ = X + 4 * ks + k; lo, hi = TMP + 8 + 2 * (k % 2), TMP + 9 + 2 * (k % 2)
            z('v_lshlrev_b32 v%d, 16, v%d' % (lo, r_))
            z('v_and_b32 v%d, s%d, v%d' % (hi, sMHI, r_))
            z('v_sub_f32 v%d, v%d, v%d' % (lo, lo, vM))
            z('v_sub_f32 v%d, v%d, v%d' % (hi, hi, vM))
            z('v_cvt_pk_bf16_f32 v%d, v%d, v%d' % (r_, lo, hi))
        return z.ins
    LEAD = OPT['lead']
    q('v_sub_f32 v%d, 0, v%d' % (vNM, vM))
    q('s_mov_b32 s%d, 0x3f80' % sSELL); q('s_mov_b32 s%d, 0x3f800000' % sSELH)
    for ks in range(LEAD): q.extend(d_step(ks, 1 if OPT['dot'] else 0))
    q.extend(tagp.ins)
    stamp(q, 'lead')
    q.waitvm('ssmw')
    stamp(q, 'Win')
    q('s_barrier')
    stamp(q, 'B1')
    def wbuf(n): return WB + 4 * (n % 8)
    def ssm_read(n):
        ks, T = n // 2, n % 2
        return G('ds_read_b128 %s, v%d offset:%d' % (v4(wbuf(n)), vRX[ks % 4], T * 28672 + (ks // 4) * 4096), tok=('wf', n))
    PRE = 6
    for n in range(PRE): q.extend(ssm_read(n))
    groups = []
    for ks in range(28):
        z = Prog()
        z.waitlgkm(('wf', 2 * ks + 1))
        for T in range(2):
            n = 2 * ks + T; acc = SRE if T == 0 else SIM
            z('v_mfma_f32_32x32x16_bf16 %s, %s, %s, %s' % (v16(acc), v4(X + 4 * ks), v4(wbuf(n)), '0' if ks == 0 else v16(acc)))
            if n + PRE < 56: z.extend(ssm_read(n + PRE))
            groups.append(z.ins); z = Prog()
    fill = []
    for ks in range(LEAD, 28): fill += d_step(ks, 2 if OPT['pk'] else 0)
    fill = fill + lam.ins
    k = 0
    span = OPT.get('span', 54)
    for n, g in enumerate(groups):
        q.extend(g)
        tgt = min(len(fill), (len(fill) * (n + 1)) // span)
        q.extend(fill[k:tgt]); k = tgt
    done = set(range(X, X + 4 * LEAD))
    for i in q.ins:
        if i.op == 'v_cvt_pk_bf16_f32' and X <= i.wr[0][1] < X + 112: done.add(i.wr[0][1])
        if i.kind == 'mfma': assert all(r[1] in done for r in i.rd if r[0] == 'v' and X <= r[1] < X + 112), i.text
    RSF = TMP + 8
    q('v_lshl_add_u32 v%d, v%d, 4, s%d' % (vT0, vH, sT3))
    for g in range(4):
        q('ds_read_b128 %s, v%d offset:%d' % (v4(RSF + 4 * g), vT0, L_RS + 32 * g))
    def pf(T):
        if T < 4: return 'buffer_load_dwordx2 v[%d:%d], v%d, %s, 0 offen offset:%d sc1' % (FR, FR + 1, vPF, srd(SWS), 1024 * T)
        return 'buffer_load_dwordx2 v[%d:%d], v%d, %s, s%d offen sc1' % (FR, FR + 1, vPF, srd(SWS), sPS)
    w2_regs = {}
    w2_state = {'last': None}
    def w2_load(idx, reg):
        if idx < 56: base, off = sW2, ((idx // 14) * 28 + (idx % 14) // 2) * 2048 + (idx % 2) * 1024
        else: base, off = sW2S, (112 + (idx - 56) // 2) * 2048 + (idx % 2) * 1024
        z = Prog()
        key = (base, off - off % 4096)
        if w2_state['last'] != key:
            z('s_add_u32 s%d, s%d, %d' % (sT5, base, off - off % 4096)); w2_state['last'] = key
        if isinstance(reg, tuple):
            mk = (reg[1], reg[2] - off % 4096 + 4096)
            if w2_state.get('m0') != mk:
                z('s_add_u32 m0, s%d, %d' % mk); w2_state['m0'] = mk
            z('buffer_load_dwordx4 v%d, %s, s%d offen offset:%d sc1 lds' % (vL16, srd(SWS), sT5, off % 4096), tok=('w2', idx))
        else:
            z('buffer_load_dwordx4 %s, v%d, %s, s%d offen offset:%d sc1' % (v4(reg), vL16, srd(SWS), sT5, off % 4096), tok=('w2', idx))
        w2_regs[idx] = reg
        return z.ins
    def w2_dest(i):
        if i < 56: return 256 + 4 * i
        return X + 32 + 4 * (i - 56)
    NW2 = 76
    w2q = []
    for T in range(5):
        lo, hi_ = 14 * T, (14 * T + 14 if T < 4 else NW2)
        if lo >= hi_: break
        Tp = T if not OPT.get('p3only', 1) else {0: 0, 1: 3, 2: None, 3: None, 4: 4}[T]
        nx = (T + 1 if T < 4 else None) if not OPT.get('p3only', 1) else {0: 3, 1: 4}.get(T)
        if Tp is not None: w2q.append(poll_check('p%d' % Tp, ('s%d' % sPM2) if Tp < 4 else '0x7f7f', pf(Tp)))
        for i in range(lo, hi_):
            g = w2_load(i, w2_dest(i))
            if i == 56: g = [Ins('; need B4')] + g
            if i >= 56: g = [Ins('; after %d' % (9 + i - 56))] + g if i > 56 else g[:1] + [Ins('; after 9')] + g[1:]
            w2q.append(g)
            if nx is not None and (nx != 4 or not OPT.get('p3only', 1)) and i == lo + 1: w2q.append(G(pf(nx)))
            if OPT.get('p3only', 1) and i == OPT.get('psidx', 27): w2q.append(G(pf(4)))
    w2i = NW2
    dmaA, dmaB = dma[:14], dma[14:]
    vm = ssm_rest[NS:] + [w1k.ins + dmaA[0]] + dmaA[1:] + w1g + dmaB
    w2q[0] = [Ins('; at %d' % OPT['tc'])] + w2q[0]
    if OPT['w2early']: vm += w2q
    st, carry = weave(q.ins, vm, OPT['per'], 0, OPT['perd'], events=[(OPT['tp'], G(pf(0)))])
    kt = [k for k, i in enumerate(st) if i.text.startswith('v_lshl_add_u32 v%d' % vPF)][0]
    kp = [k for k, i in enumerate(st) if i.text == pf(0)][0]
    assert kt < kp
    if carry and carry[0][0].text.startswith('; at'): carry[0] = carry[0][1:]
    if not OPT['w2early']: carry += w2q
    assert not any(x.tok in ('ffnA', 'ssmw') for g in carry for x in g)
    pos_b = [k for k, i in enumerate(st) if i.kind == 'barrier'][0]
    assert not any(i.tok == 'ssmw' for i in st[pos_b:]), 'SSM DMA after B1'
    p.extend(st)
    stamp(p, 'ssmend')
    p.waitvm('ffnA')
    stamp(p, 'Ain')
    p('s_waitcnt lgkmcnt(0)')
    p('s_barrier')
    stamp(p, 'B2')
    p('s_lshl_b32 s%d, s%d, 13' % (sT4, sC)); p('s_add_u32 s%d, s%d, %d' % (sT4, sT4, WS_EG))
    p('s_add_u32 s%d, s6, s%d' % (SEG, sT4)); p('s_addc_u32 s%d, s7, 0' % (SEG + 1))
    p('s_mov_b32 s%d, 8192' % (SEG + 2)); p('s_mov_b32 s%d, 0x20000' % (SEG + 3))
    p('s_lshl_b32 s%d, s%d, 12' % (sT2, sW))
    tail_dma = []
    for j in (5, 6):
        for e in range(2):
            tail_dma.append((G('s_add_u32 m0, s%d, %d' % (sT2, L_SW - 128 + 2 * (j - 5) * 1024)) if e == 0 else []) + G(
                'buffer_load_dwordx4 v%d, %s, s%d offen offset:%d lds' % (vW1O[e], srd(SW1), W1K[j], 128 + 1024 * e), tok='ffnB'))

    def ffn_read(T, ks, n):
        dt, tt = T // 2, T % 2
        j, i = ks // 4, ks % 4
        if dt == 0: U = i * L_XW + 2 * j * 1024
        elif j <= 4: U = i * L_XW + 14336 + 2 * j * 1024
        else: U = L_SW - L0 + i * 4096 + 2 * (j - 5) * 1024
        z = Prog()
        for hh in range(2):
            off = U + hh * 512; win = 0
            if off >= 65536: off -= 65536; win = 1
            z('ds_read_b64_tr_b16 %s, v%d offset:%d' % (v2(wbuf(n) + 2 * hh), vRF[tt][win], off), tok=('wf', n))
        return z.ins
    def silu(T):
        acc = F0 if T % 2 == 0 else F1
        z = Prog()
        tp = [vT0, vT1, vT2, vBO]
        for b in range(0, 16, 4):
            for k in range(4): z('v_mul_f32 v%d, v%d, v%d' % (tp[k], vNK, acc + b + k))
            for k in range(4): z('v_exp_f32 v%d, v%d' % (tp[k], tp[k]))
            for k in range(4): z('v_fma_f32 v%d, v%d, v%d, v%d' % (tp[k], tp[k], vS, vS))
            for k in range(4): z('v_rcp_f32 v%d, v%d' % (tp[k], tp[k]))
            for k in range(4): z('v_mul_f32 v%d, v%d, v%d' % (acc + b + k, acc + b + k, tp[k]))
            z('v_cvt_pk_bf16_f32 v%d, v%d, v%d' % (acc + b // 2, acc + b, acc + b + 1))
            z('v_cvt_pk_bf16_f32 v%d, v%d, v%d' % (acc + b // 2 + 1, acc + b + 2, acc + b + 3))
            if b == 4:
                z('s_add_u32 s%d, s%d, %d' % (sT2, sHW, T * 28 * 1024))
                z('buffer_store_dwordx4 %s, v%d, %s, s%d offen%s' % (v4(acc), vL16, srd(SWS), sT2, HSC), tok=('hs', T))
        z('buffer_store_dwordx4 %s, v%d, %s, s%d offen offset:1024%s' % (v4(acc + 4), vL16, srd(SWS), sT2, HSC), tok=('hs', T))
        return z.ins
    E0r, E0i, E1r, E1i = vXO[0], vXO[1], vXO[2], vXO[3]
    def scan1():
        z = Prog()
        for g in range(4):
            for i in range(4):
                z('v_mul_f32 v%d, v%d, v%d' % (SRE + 4 * g + i, RSF + 4 * g + i, SRE + 4 * g + i))
                z('v_mul_f32 v%d, v%d, v%d' % (SIM + 4 * g + i, RSF + 4 * g + i, SIM + 4 * g + i))
        for i in range(1, 4):
            for g in range(4):
                a, b = SRE + 4 * g + i, SIM + 4 * g + i
                z('v_fmac_f32 v%d, v%d, v%d' % (a, L1r, a - 1))
                z('v_fmac_f32 v%d, v%d, v%d' % (b, L1r, b - 1))
                z('v_fmac_f32 v%d, v%d, v%d' % (a, N1i, b - 1))
                z('v_fmac_f32 v%d, v%d, v%d' % (b, L1i, a - 1))
        for g in range(4):
            b = RSF + 4 * g
            z('v_mov_b32 v%d, v%d' % (b, SRE + 4 * g + 3)); z('v_mov_b32 v%d, v%d' % (b + 1, SRE + 4 * g + 3))
            z('v_mov_b32 v%d, v%d' % (b + 2, SIM + 4 * g + 3)); z('v_mov_b32 v%d, v%d' % (b + 3, SIM + 4 * g + 3))
        for g in range(4):
            b = RSF + 4 * g
            z('v_permlane32_swap_b32 v%d, v%d' % (b, b + 1)); z('v_permlane32_swap_b32 v%d, v%d' % (b + 2, b + 3))
        cur = (RSF, RSF + 2); nxt = [(E0r, E0i), (E1r, E1i)]
        for s in range(1, 8):
            g, h = s // 2, s % 2
            er, ei = RSF + 4 * g + h, RSF + 4 * g + 2 + h
            d = nxt[s % 2]
            z('v_fma_f32 v%d, v%d, v%d, v%d' % (d[0], L4r, cur[0], er))
            z('v_fma_f32 v%d, v%d, v%d, v%d' % (d[1], L4r, cur[1], ei))
            z('v_fma_f32 v%d, -v%d, v%d, v%d' % (d[0], L4i, cur[1], d[0]))
            z('v_fmac_f32 v%d, v%d, v%d' % (d[1], L4i, cur[0]))
            cur = d
        z('s_lshl_b32 s%d, s%d, 8' % (sT4, sW))
        z('v_lshl_add_u32 v%d, v%d, 3, s%d' % (vT0, vP, sT4))
        z('ds_write_b64 v%d, v[%d:%d] offset:%d' % (vT0, E1r, E1i, L_EW), tok='ew')
        return z.ins
    def fl_load(stage): return 'buffer_load_dwordx2 v[%d:%d], v%d, %s, s%d offen sc1' % (FR2, FR2 + 1, vFA, srd(SWS), sT6)
    def fl_issue(stage): return G('s_mov_b32 s%d, %d' % (sT6, stage * 8192), fl_load(stage))
    n0 = 56
    seq = [(T, ks) for T in range(4) for ks in range(28)]
    for m in range(PRE): p.extend(ffn_read(seq[m][0], seq[m][1], n0 + m))
    EWR = TMP + 0
    LB = X
    lbp = Prog()
    lbp('s_sub_u32 s%d, s%d, 1' % (sT0, sR)); lbp('s_lshl_b32 s%d, s%d, 9' % (sT0, sT0))
    lbp('v_lshlrev_b32 v%d, 9, v%d' % (vRX[1], vH))
    lbp('v_sub_u32 v%d, s%d, v%d' % (vRX[1], sT0, vRX[1]))
    lbp('v_lshl_add_u32 v%d, v%d, 4, v%d' % (vRX[0], vP, vRX[1]))
    lb_groups = []
    for m in range(8):
        z = Prog()
        if m: z('v_subrev_u32 v%d, %d, v%d' % (vRX[1], 1024 * m, vRX[0]))
        z('buffer_load_dwordx4 %s, v%d, %s, 0 offen sc1' % (v4(LB + 4 * m), vRX[1] if m else vRX[0], srd(SEG)))
        lb_groups.append(z.ins)
    lb_text = '\n'.join(i.text for g in lb_groups for i in g)
    pool = []
    hid_regs = {}
    hstate = {0: None, 1: None}
    def hid_load(idx):
        rt = idx % 2
        if idx < 56: base, off = (sH0, sH1)[rt], ((idx // 14) * 28 + (idx % 14) // 2) * 1024
        else: base, off = (sH0S, sH1S)[rt], (112 + (idx - 56) // 2) * 1024
        reg = pool.pop(0); hid_regs[idx] = reg
        sreg = sT3 if rt == 0 else sT4
        z = Prog()
        key = (base, off - off % 4096)
        if hstate[rt] != key:
            z('s_add_u32 s%d, s%d, %d' % (sreg, base, off - off % 4096)); hstate[rt] = key
        z('buffer_load_dwordx4 %s, v%d, %s, s%d offen offset:%d sc1' % (v4(reg), vL16, srd(SWS), sreg, off % 4096), tok=('hid', idx))
        return z.ins
    stage_of = lambda idx: min(idx // 14, 4)
    hi = 0
    checked = set()
    def hid_next():
        nonlocal hi
        assert stage_of(hi) in checked
        g = hid_load(hi); hi += 1
        return g
    def fl_check(st):
        checked.add(st)
        return poll_check('f%d' % st, 's%d' % sPMASK, fl_load(0), FR2)
    def split_at_need(vm):
        for k, g in enumerate(vm):
            if g and g[0].text == '; need B4': return vm[:k], vm[k:]
        return vm, []
    for T in range(4):
        groups = []
        acc = F0 if T % 2 == 0 else F1
        for ks in range(28):
            m = T * 28 + ks
            z = Prog()
            if ks % 2 == 0: z.waitlgkm(('wf', n0 + m + 1))
            z('v_mfma_f32_32x32x16_bf16 %s, %s, %s, %s' % (v16(acc), v4(wbuf(n0 + m)), v4(X + 4 * ks), '0' if ks == 0 else v16(acc)))
            if m + PRE < 112:
                z.extend(ffn_read(seq[m + PRE][0], seq[m + PRE][1], n0 + m + PRE))
            groups.append(z.ins)
        q = Prog()
        held = []; ev = []
        if T == 0:
            q.extend(groups[0]); q.extend(groups[1])
            q.extend(interleave(groups[2:], scan1()))
            nb = [g for g in carry if any(x.tok == 'ffnB' for x in g)]
            k = max([carry.index(g) for g in nb]) + 1 if nb else 0
            vm = carry[:k] + tail_dma + carry[k:]
        elif T == 1:
            pre = Prog()
            GE = vXO[0]
            pre('v_fma_f32 v%d, v%d, v%d, v%d' % (vT0, L32r, EWR, EWR + 2)); pre('v_fma_f32 v%d, v%d, v%d, v%d' % (vT1, L32r, EWR + 1, EWR + 3))
            pre('v_fma_f32 v%d, -v%d, v%d, v%d' % (vT0, L32i, EWR + 1, vT0)); pre('v_fmac_f32 v%d, v%d, v%d' % (vT1, L32i, EWR))
            pre('v_fma_f32 v%d, v%d, v%d, v%d' % (vT2, L32r, vT0, EWR + 4)); pre('v_fma_f32 v%d, v%d, v%d, v%d' % (vT3, L32r, vT1, EWR + 5))
            pre('v_fma_f32 v%d, -v%d, v%d, v%d' % (vT2, L32i, vT1, vT2)); pre('v_fmac_f32 v%d, v%d, v%d' % (vT3, L32i, vT0))
            pre('v_fma_f32 v%d, v%d, v%d, v%d' % (GE, L32r, vT2, EWR + 6)); pre('v_fma_f32 v%d, v%d, v%d, v%d' % (GE + 1, L32r, vT3, EWR + 7))
            pre('v_fma_f32 v%d, -v%d, v%d, v%d' % (GE, L32i, vT3, GE)); pre('v_fmac_f32 v%d, v%d, v%d' % (GE + 1, L32i, vT2))
            pre('v_mov_b32 v%d, s%d' % (GE + 2, sTL)); pre('v_mov_b32 v%d, s%d' % (GE + 3, sTH))
            pre('s_lshl_b32 s%d, s%d, 3' % (sT4, sW)); pre('s_lshl_b32 s%d, 0xff, s%d' % (sT4, sT4))
            pre('s_lshl_b32 s%d, s%d, 9' % (sT0, sR))
            egs = G('s_mov_b32 exec_lo, s%d' % sT4, 's_mov_b32 exec_hi, 0',
                    'buffer_store_dwordx4 %s, v%d, %s, s%d offen sc1' % (v4(GE), vL16, srd(SEG), sT0), 's_mov_b64 exec, -1')
            q.extend(interleave(groups[:5], pre.ins)); q.extend(egs)
            q.extend(interleave(groups[5:OPT['send'] + 1], silu(0)))
            for g in groups[OPT['send'] + 1:]: q.extend(g)
            vm = carry
        else:
            q.extend(groups[0]); q.extend(groups[1]); q.extend(groups[2])
            q.extend(interleave(groups[3:OPT['send']], silu(T - 1)))
            for g in groups[OPT['send']:]: q.extend(g)
            if T == 2:
                vm = carry; ev = [(OPT['tf'], flag_group(sFW, 0, ('hs', 0)))]
            else:
                lbs = [[Ins('; after 9')] + lbp.ins + lb_groups[0] + lb_groups[1] + lb_groups[2] + lb_groups[3], lb_groups[4] + lb_groups[5] + lb_groups[6] + lb_groups[7]]
                for g in lbs:
                    for x in g: x.text = x.text
                vm = carry
                ev = [(420, lbs[0][1:]), (520, lbs[1]), (OPT['tf'], flag_group(sFW, 8192, ('hs', 1))), (OPT['tp0'], fl_issue(0))]
        if T < 3: vm, held = split_at_need(vm)
        if T == 3: vm = [g[1:] if g and g[0].text == '; need B4' else g for g in vm]
        st, carry = weave(q.ins, vm, OPT['per'], 60 if T == 2 else 0, OPT['perd'], small=(SEG,), events=ev)
        carry += held
        if T == 3:
            mf = [k for k, i in enumerate(st) if i.kind == 'mfma']
            pos_l = [k for k, i in enumerate(st) if i.kind == 'vload' and 's[%d:%d]' % (SEG, SEG + 3) in i.text]
            assert len(pos_l) == 8 and pos_l[0] > mf[7], (pos_l, mf[7])
            pos_h = [k for k, i in enumerate(st) if isinstance(i.tok, tuple) and i.tok[0] == 'hid']
            assert not pos_h or pos_h[0] > mf[11]
        p.extend(st)
        if T == 0:
            assert not any(x.tok == 'ffnB' for g in carry for x in g)
            p.waitlgkm('ew'); p.waitvm('ffnB')
            p('s_barrier')
            p('v_lshlrev_b32 v%d, 3, v%d' % (vT0, vP))
            for k in range(4): p('ds_read_b64 v[%d:%d], v%d offset:%d' % (EWR + 2 * k, EWR + 2 * k + 1, vT0, L_EW + 256 * k))
        stamp(p, 'T%d' % T)
        print('after T%d: %d groups pending' % (T, len(carry)))
    pool += [WB + 4 * k for k in range(8)] + [F0 + 4 * k for k in range(4)]
    carry = [[x for x in g if not x.text.startswith('; after')] for g in carry]
    p('s_add_u32 s%d, s%d, %d' % (sH1S, sH0S, 168 * 1024))

    q = Prog()
    s3 = silu(3)
    q.extend(s3)
    stamp(q, 'silu3')
    def lb_check(z, lab_bad):
        z('v_add3_u32 v%d, v%d, v%d, v%d' % (vT0, LB + 2, LB + 6, LB + 10)); z('v_add3_u32 v%d, v%d, v%d, v%d' % (vT1, LB + 3, LB + 7, LB + 11))
        z('v_add3_u32 v%d, v%d, v%d, v%d' % (vT0, vT0, LB + 14, LB + 18)); z('v_add3_u32 v%d, v%d, v%d, v%d' % (vT1, vT1, LB + 15, LB + 19))
        z('v_add3_u32 v%d, v%d, v%d, v%d' % (vT0, vT0, LB + 22, LB + 26)); z('v_add3_u32 v%d, v%d, v%d, v%d' % (vT1, vT1, LB + 23, LB + 27))
        z('v_add_u32 v%d, v%d, v%d' % (vT0, vT0, LB + 30)); z('v_add_u32 v%d, v%d, v%d' % (vT1, vT1, LB + 31))
        k0 = len(z.ins)
        z('v_cmp_ne_u32 vcc, v%d, v%d' % (vT0, vT2))
        z('v_cmp_ne_u32 s[%d:%d], v%d, v%d' % (sP0, sP0 + 1, vT1, vT3))
        z('s_nop 1')
        z('s_or_b64 vcc, vcc, s[%d:%d]' % (sP0, sP0 + 1))
        z('s_cbranch_scc1 %s' % lab_bad)
        for i in z.ins[k0:]: i.note = 'glue'
    q('v_sub_u32 v%d, s%d, v%d' % (vT3, sR, vH)); q('v_add_u32 v%d, 1, v%d' % (vT3, vT3)); q('v_lshrrev_b32 v%d, 1, v%d' % (vT3, vT3))
    q('v_mul_lo_u32 v%d, s%d, v%d' % (vT2, sTL, vT3)); q('v_mul_lo_u32 v%d, s%d, v%d' % (vT3, sTH, vT3))
    lb_check(q, 'L_retry_lb')
    q('L_ok_lb:')
    stamp(q, 'lbok')
    z = Prog()
    z('L_retry_lb:'); z('s_mov_b32 s%d, 0' % sSPIN); z('L_loop_lb:'); z('s_sleep 1'); z(lb_text); z('s_waitcnt vmcnt(0)')
    if OPT['stamps']: z('v_add_u32 v%d, 0x100, v%d' % (vRSv, vRSv))
    z('s_add_u32 s%d, s%d, 1' % (sSPIN, sSPIN)); z('s_cmp_gt_u32 s%d, %d' % (sSPIN, OPT['spin'])); z('s_cbranch_scc1 L_ok_lb')
    lb_check(z, 'L_loop_lb'); z('s_branch L_ok_lb')
    retry_blocks.append(z)
    for m in range(6, -1, -1):
        cmac(q, LB + 4 * m, LB + 4 * m + 1, L256r, L256i, LB + 4 * m + 4, LB + 4 * m + 5)
    q('v_mov_b32 v%d, v%d' % (LB + 4, LB)); q('v_mov_b32 v%d, v%d' % (LB + 5, LB + 1))
    q('v_permlane32_swap_b32 v%d, v%d' % (LB, LB + 4)); q('v_permlane32_swap_b32 v%d, v%d' % (LB + 1, LB + 5))
    cmac(q, LB, LB + 1, L128r, L128i, LB + 4, LB + 5)
    cmac(q, EWR, EWR + 1, L32r, L32i, LB, LB + 1)
    cmac(q, EWR + 2, EWR + 3, L32r, L32i, EWR, EWR + 1)
    cmac(q, EWR + 4, EWR + 5, L32r, L32i, EWR + 2, EWR + 3)
    CS = LB + 8
    q('v_mov_b32 v%d, v%d' % (CS, LB)); q('v_mov_b32 v%d, v%d' % (CS + 1, LB + 1))
    for k in range(3):
        k0 = len(q.ins)
        q('s_cmp_eq_u32 s%d, %d' % (sW, k + 1)); q('s_cselect_b64 vcc, -1, 0')
        q('v_cndmask_b32 v%d, v%d, v%d, vcc' % (CS, CS, EWR + 2 * k))
        for i in q.ins[k0:]: i.note = 'glue'
        q('v_cndmask_b32 v%d, v%d, v%d, vcc' % (CS + 1, CS + 1, EWR + 2 * k + 1))
    for s in range(7):
        g, h = s // 2, s % 2
        er, ei = RSF + 4 * g + h, RSF + 4 * g + 2 + h
        d, cur = CS + 2 * (s + 1), CS + 2 * s
        q('v_fma_f32 v%d, v%d, v%d, v%d' % (d, L4r, cur, er))
        q('v_fma_f32 v%d, v%d, v%d, v%d' % (d + 1, L4r, cur + 1, ei))
        q('v_fma_f32 v%d, -v%d, v%d, v%d' % (d, L4i, cur + 1, d))
        q('v_fmac_f32 v%d, v%d, v%d' % (d + 1, L4i, cur))
    k0 = len(q.ins)
    q('s_mov_b32 vcc_lo, 0'); q('s_mov_b32 vcc_hi, -1')
    for g in range(4):
        a = CS + 4 * g
        q('v_cndmask_b32 v%d, v%d, v%d, vcc' % (a, a, a + 2))
        q('v_cndmask_b32 v%d, v%d, v%d, vcc' % (a + 1, a + 1, a + 3))
    for i in q.ins[k0:-1]: i.note = 'glue'
    for g in range(4):
        a = CS + 4 * g
        q('v_sub_f32 v%d, 0, v%d' % (a + 2, a + 1))
    stamp(q, 'carry')
    q.extend(epilogue_loads())
    PW = [(L1r, L1i), (L2r, L2i), (L3r, L3i), (L4r, L4i)]
    for g in range(4):
        a = CS + 4 * g
        for i in range(4):
            ur, ui = SRE + 4 * g + i, SIM + 4 * g + i
            q('v_fmac_f32 v%d, v%d, v%d' % (ur, PW[i][0], a))
            q('v_fmac_f32 v%d, v%d, v%d' % (ui, PW[i][0], a + 1))
            q('v_fmac_f32 v%d, v%d, v%d' % (ur, PW[i][1], a + 2))
            q('v_fmac_f32 v%d, v%d, v%d' % (ui, PW[i][1], a))
        for comp, base in ((0, SRE), (1, SIM)):
            b = base + 4 * g
            q('v_cvt_pk_bf16_f32 v%d, v%d, v%d' % (b, b, b + 1))
            q('v_cvt_pk_bf16_f32 v%d, v%d, v%d' % (b + 1, b + 2, b + 3))
            q('ds_write_b64 v%d, v[%d:%d] offset:%d' % (vTW, b, b + 1, comp * 2304 + 16 * g))
    stamp(q, 'fix')
    HS = F1
    for comp in range(2):
        for q_ in range(2):
            for hh in range(2):
                q('ds_read_b64_tr_b16 %s, v%d offset:%d' % (v2(HS + 8 * comp + 4 * q_ + 2 * hh), vTRr, comp * 2304 + (16 * q_ + 4 * hh) * 72))
    q('s_lshl_b32 s%d, s%d, 11' % (sT2, sC)); q('s_add_u32 s%d, s%d, s%d' % (sT2, sT2, sHW)); q('s_add_u32 s%d, s%d, %d' % (sT2, sT2, 112 * 1024))
    for _ in range(10): q('; pad')
    for f in range(4):
        q('buffer_store_dwordx4 %s, v%d, %s, s%d offen offset:%d%s' % (v4(HS + 4 * f), vL16, srd(SWS), sT2, f * 1024, HSC), tok='hsC')
    vm = carry[:5] + [[Ins('; at %d' % OPT['tc0'])] + fl_check(0)] + [hid_next() for _ in range(12)] + carry[5:]
    ev = [(OPT['tp1'], fl_issue(1)), (OPT['tf2'], flag_group(sFW, 2 * 8192, ('hs', 2)))]
    q.ins = [i for i in q.ins if not i.text.startswith('; mark')]
    st, left = weave(q.ins, vm, OPT['perh'], events=ev)
    k0 = [k for k, i in enumerate(st) if i.text == 'L_ok_f0:'][0]; k1 = [k for k, i in enumerate(st) if i.text.startswith('s_mov_b32 s%d, 8192' % sT6)][0]
    assert k0 < k1
    p.extend(st)
    pool += [F1 + 4 * k for k in range(4)]
    fillr = epilogue_pre()
    ACC = {(0, 0): SRE, (0, 1): SIM, (1, 0): 192, (1, 1): 208}
    fk = 0
    when = {}
    pstep = {OPT['p2']: 2, OPT['p3']: 3, OPT['p4']: 4}
    cstep = {OPT['c1']: 1, OPT['p2'] + OPT['pd']: 2, OPT['p3'] + OPT['pd']: 3, OPT['p4'] + OPT['pd']: 4}
    real_p = p
    late = []
    for step in range(42):
        if step in (0, 7, 14, 21, 28, 35) or OPT.get('allg'): stamp(real_p, 'g%d' % step)
        side = []
        while any((isinstance(x.tok, tuple) and x.tok[0] == 'hid') or 's_mov_b32 s%d' % sT6 in x.text for g in left for x in g):
            (real_p.extend if step == 0 else side.append)(left.pop(0))
        if step == OPT['f3']: side.append(flag_group(sFW, 3 * 8192, ('hs', 3)))
        if step == OPT['f4']: side.append(flag_group(sFW, 4 * 8192, 'hsC'))
        if step in cstep: side.append(fl_check(cstep[step]))
        if step in pstep:
            assert pstep[step] - 1 in checked
            side.append(fl_issue(pstep[step]))
        nh = 0
        while hi < 84 and hi < 2 * step + 4 + OPT['ahead'] and pool and stage_of(hi) in checked and nh < OPT.get('maxh', 4): side.append(hid_next()); nh += 1
        for rep in range(2):
            if rep == 1 and len(left) + 84 - w2i <= max(0, 30 - step): break
            if left: side.append(left.pop(0))
            elif w2i < 84 and len(pool) > 2 and step >= OPT.get('w2s', 2) and nh < 3:
                reg = pool.pop(0); side.append(w2_load(w2i, reg)); w2i += 1
        if step == OPT.get('b5', 36): side.append(G('s_barrier'))
        for i in (2 * step + 4, 2 * step + 5):
            if i < 84 and isinstance(w2_regs.get(i), tuple):
                d = w2_regs[i]; reg = pool.pop(0)
                z = Prog(); z.waitvm(('w2', i))
                z('ds_read_b128 %s, v%d offset:%d' % (v4(reg), vFA2 if d[1] == sLT else vFA3, d[2] + 4096))
                side.append(z.ins)
                w2_regs[i] = reg
        w0, w1_ = w2_regs[2 * step], w2_regs[2 * step + 1]
        h0, h1 = hid_regs[2 * step], hid_regs[2 * step + 1]
        em = set(x.tok for x in p.ins if isinstance(x.tok, tuple))
        for t in (('w2', 2 * step), ('w2', 2 * step + 1), ('hid', 2 * step), ('hid', 2 * step + 1)): assert t in em, t
        k = 0
        NL = OPT.get('nlast', 3)
        order = ((0, 0), (0, 1), (1, 0), (1, 1))
        if step >= 42 - NL:
            late.append((w1_, h0, h1)); order = order[:2]
        for n, (ct, rt) in enumerate(order):
            a = ACC[(ct, rt)]
            p('v_mfma_f32_32x32x16_bf16 %s, %s, %s, %s' % (v16(a), v4((w0, w1_)[ct]), v4((h0, h1)[rt]), '0' if step == 0 else v16(a)))
            tgt = (len(side) * (n + 1) + len(order) - 1) // len(order)
            c = 0
            for g in side[k:tgt]: p.extend(g); c += sum(cost(x) for x in g)
            k = tgt
            while step >= OPT.get('fs', 1) and fk < len(fillr) and (c < OPT.get('fb', 36) or fillr[fk - 1].note == 'glue'):
                i = fillr[fk]; fk += 1
                c += cost(i)
                p.ins.append(i)
        pool += [w0, w1_, h0, h1]
    wr = [G('ds_write_b128 v%d, %s offset:%d' % (PWA + g, v4(ACC[(0, rt)] + 4 * g), rt * 8192)) for rt in range(2) for g in range(4)] if late else []
    mm = [G('v_mfma_f32_32x32x16_bf16 %s, %s, %s, %s' % (v16(ACC[(1, rt)]), v4(w), v4((a_, b_)[rt]), v16(ACC[(1, rt)]))) for (w, a_, b_) in late for rt in range(2)]
    for n, g in enumerate(mm):
        p.extend(g)
        if n >= 1:
            for _ in range(2):
                if wr: p.extend(wr.pop(0))
    for g in wr: p.extend(g)
    OPT['_ct0done'] = bool(late)
    assert fk == len(fillr) and w2i == 84 and not left, (fk, len(fillr), w2i, len(left))
    print('G2 marks', when)
    stamp(p, 'g2end')
    epilogue(p, ACC)

EX, ED, ST, DD = TMP + 0, TMP + 8, TMP + 10, TMP + 18
EB, ET, PWA, PRA, vOO, PRB = X + 0, X + 16, X + 24, X + 28, X + 30, X + 22
sXO, sOO = 38, 39
def epilogue_loads():
    p = Prog()
    p('v_lshrrev_b32 v%d, 4, v%d' % (vT0, vL)); p('v_and_b32 v%d, 15, v%d' % (vT1, vL))
    p('v_mul_u32_u24 v%d, 896, v%d' % (vT2, vT0)); p('v_lshl_add_u32 v%d, v%d, 3, v%d' % (vT2, vT1, vT2))
    p('s_lshl_b32 s%d, s%d, 5' % (sXO, sRT0)); p('s_lshl_b32 s%d, s%d, 4' % (sT1, sW)); p('s_add_u32 s%d, s%d, s%d' % (sXO, sXO, sT1))
    p('s_mul_i32 s%d, s%d, 896' % (sXO, sXO)); p('s_lshl_b32 s%d, s%d, 7' % (sT1, sCB)); p('s_add_u32 s%d, s%d, s%d' % (sXO, sXO, sT1))
    p('s_add_u32 s%d, s%d, %d' % (sT0, sXO, 8 * 896))
    for it in range(4):
        p('buffer_load_dwordx2 v[%d:%d], v%d, %s, s%d offen offset:%d' % (EX + 2 * it, EX + 2 * it + 1, vT2, srd(SX), sXO if it < 2 else sT0, (it % 2) * 4 * 896))
    p('v_lshlrev_b32 v%d, 3, v%d' % (vT3, vT1))
    p('buffer_load_dwordx2 v[%d:%d], v%d, %s, s%d offen' % (ED, ED + 1, vT3, srd(SDSK), sT1))
    p('s_lshl_b32 s%d, s%d, 9' % (sT1, sHALF)); p('s_lshl_b32 s%d, s%d, 7' % (sT0, sW)); p('s_add_u32 s%d, s%d, s%d' % (sT1, sT1, sT0))
    p('v_lshl_add_u32 v%d, v%d, 3, s%d' % (vT3, vT0, sT1))
    for it in range(4):
        p('ds_read_b64 v[%d:%d], v%d offset:%d' % (ST + 2 * it, ST + 2 * it + 1, vT3, L_MR + 32 * it))
    return p.ins

def epilogue_pre():
    p = Prog()
    p('v_lshlrev_b32 v%d, 1, v%d' % (vOO, vT2))
    p('s_lshl_b32 s%d, s%d, 1' % (sOO, sXO))
    p('v_and_b32 v%d, 7, v%d' % (PWA, vP)); p('v_xor_b32 v%d, v%d, v%d' % (PWA, PWA, vH)); p('v_lshlrev_b32 v%d, 4, v%d' % (PWA, PWA))
    p('v_lshl_add_u32 v%d, v%d, 8, v%d' % (PWA, vP, PWA))
    p('v_add_u32 v%d, s%d, v%d' % (PWA, sLW, PWA))
    for g in range(1, 4): p('v_xor_b32 v%d, %d, v%d' % (PWA + g, g << 5, PWA))
    p('v_xor_b32 v%d, v%d, v%d' % (PRA, vT1, vT0)); p('v_lshlrev_b32 v%d, 4, v%d' % (PRA, PRA))
    p('v_lshl_add_u32 v%d, v%d, 8, v%d' % (PRA, vT0, PRA))
    p('s_lshl_b32 s%d, s%d, 12' % (sT1, sW)); p('s_add_u32 s%d, s%d, %d' % (sT1, sT1, L0)); p('v_add_u32 v%d, s%d, v%d' % (PRA, sT1, PRA))
    p('v_xor_b32 v%d, 64, v%d' % (PRA + 1, PRA)); p('v_add_u32 v%d, 1024, v%d' % (PRA + 1, PRA + 1))
    p('v_add_u32 v%d, %d, v%d' % (PRB, 3 * L_XW, PRA)); p('v_add_u32 v%d, %d, v%d' % (PRB + 1, 3 * L_XW, PRA + 1))
    D = DD; T = ET
    p('v_lshlrev_b32 v%d, 16, v%d' % (D, ED)); p('v_and_b32 v%d, s%d, v%d' % (D + 1, sMHI, ED))
    p('v_lshlrev_b32 v%d, 16, v%d' % (D + 2, ED + 1)); p('v_and_b32 v%d, s%d, v%d' % (D + 3, sMHI, ED + 1))
    for it in range(4):
        b = EB + 4 * it; m, rs = ST + 2 * it, ST + 2 * it + 1
        p('v_lshlrev_b32 v%d, 16, v%d' % (b, EX + 2 * it)); p('v_and_b32 v%d, s%d, v%d' % (b + 1, sMHI, EX + 2 * it))
        p('v_lshlrev_b32 v%d, 16, v%d' % (b + 2, EX + 2 * it + 1)); p('v_and_b32 v%d, s%d, v%d' % (b + 3, sMHI, EX + 2 * it + 1))
        for k in range(4): p('v_sub_f32 v%d, v%d, v%d' % (T + k, b + k, m))
        def rnd():
            p('v_cvt_pk_bf16_f32 v%d, v%d, v%d' % (T + 4, T, T + 1)); p('v_cvt_pk_bf16_f32 v%d, v%d, v%d' % (T + 5, T + 2, T + 3))
            p('v_lshlrev_b32 v%d, 16, v%d' % (T, T + 4)); p('v_and_b32 v%d, s%d, v%d' % (T + 1, sMHI, T + 4))
            p('v_lshlrev_b32 v%d, 16, v%d' % (T + 2, T + 5)); p('v_and_b32 v%d, s%d, v%d' % (T + 3, sMHI, T + 5))
        rnd()
        for k in range(4): p('v_mul_f32 v%d, v%d, v%d' % (T + k, T + k, rs))
        rnd()
        for k in range(4): p('v_mul_f32 v%d, v%d, v%d' % (T + k, T + k, D + k))
        rnd()
        for k in range(4): p('v_add_f32 v%d, v%d, v%d' % (b + k, b + k, T + k))
    return p.ins

def epilogue(p, ACC):
    for rt in range(2):
        for ct in range(1 if OPT.get('_ct0done') else 0, 2):
            for g in range(4):
                p('ds_write_b128 v%d, %s offset:%d' % (PWA + g, v4(ACC[(ct, rt)] + 4 * g), rt * 8192 + ct * 128))
    p('s_waitcnt lgkmcnt(0)')
    p('s_barrier')
    R = 48
    for it in range(4):
        for P in range(4):
            p('ds_read_b128 %s, v%d offset:%d' % (v4(R + 16 * it + 4 * P), (PRA if P < 3 else PRB) + (it & 1), (P % 3) * L_XW + (it >> 1) * 2048))
    for it in range(4):
        b = EB + 4 * it; r_ = R + 16 * it
        p('v_pk_add_f32 v[%d:%d], v[%d:%d], v[%d:%d]' % (r_, r_ + 1, r_, r_ + 1, r_ + 4, r_ + 5))
        p('v_pk_add_f32 v[%d:%d], v[%d:%d], v[%d:%d]' % (r_ + 2, r_ + 3, r_ + 2, r_ + 3, r_ + 6, r_ + 7))
        p('v_pk_add_f32 v[%d:%d], v[%d:%d], v[%d:%d]' % (r_ + 8, r_ + 9, r_ + 8, r_ + 9, r_ + 12, r_ + 13))
        p('v_pk_add_f32 v[%d:%d], v[%d:%d], v[%d:%d]' % (r_ + 10, r_ + 11, r_ + 10, r_ + 11, r_ + 14, r_ + 15))
        p('v_pk_add_f32 v[%d:%d], v[%d:%d], v[%d:%d]' % (b, b + 1, b, b + 1, r_, r_ + 1))
        p('v_pk_add_f32 v[%d:%d], v[%d:%d], v[%d:%d]' % (b + 2, b + 3, b + 2, b + 3, r_ + 2, r_ + 3))
        p('v_pk_add_f32 v[%d:%d], v[%d:%d], v[%d:%d]' % (b, b + 1, b, b + 1, r_ + 8, r_ + 9))
        p('v_pk_add_f32 v[%d:%d], v[%d:%d], v[%d:%d]' % (b + 2, b + 3, b + 2, b + 3, r_ + 10, r_ + 11))
        p('s_add_u32 s%d, s%d, %d' % (sT2, sOO, it * 4 * 1792))
        p('buffer_store_dwordx4 %s, v%d, %s, s%d offen%s' % (v4(b), vOO, srd(SOUT), sT2, ['', ' sc1', ' nt', ' sc0 sc1', ' sc1 nt'][OPT.get('ost', 0)]))
    if OPT['stamps']:
        stamp(p, 'end')
        p('v_readlane_b32 s%d, v%d, 0' % (sT0, vRSv)); p('s_nop 3'); p('v_writelane_b32 v%d, s%d, 60' % (vDUM, sT0))
        p('s_memrealtime s[%d:%d]' % (sP0, sP0 + 1)); p('s_load_dwordx2 s[36:37], s[0:1], 104'); p('s_waitcnt lgkmcnt(0)')
        p('v_writelane_b32 v%d, s%d, 63' % (vDUM, sP0))
        if OPT.get('amp', -1) >= 0:
            p('s_lshl_b32 s%d, s2, 2' % sT0); p('s_add_u32 s%d, s%d, s%d' % (sT0, sT0, sW)); p('s_cmp_lg_u32 s%d, %d' % (sT0, OPT['dbgwave']))
            p('s_cbranch_scc1 L_noamp')
            if OPT['amp'] == 99:
                p('s_mov_b32 s%d, %d' % (sT2, 0xF0000 + 128 * OPT['xa'])); p('buffer_load_dword v%d, v%d, %s, s%d offen sc1' % (vT0, vZ, srd(SWS), sT2))
                p('s_mov_b32 s%d, %d' % (sT2, 0xF0000 + 128 * OPT['xb'])); p('buffer_load_dword v%d, v%d, %s, s%d offen sc1' % (vT1, vZ, srd(SWS), sT2))
                p('s_waitcnt vmcnt(0)')
                p('v_readfirstlane_b32 s%d, v%d' % (sT0, vT0)); p('v_readfirstlane_b32 s%d, v%d' % (sT1, vT1))
                p('s_nop 3'); p('s_add_u32 s%d, s%d, 100' % (sT0, sT0))
            else:
                p('v_readlane_b32 s%d, v%d, %d' % (sT0, vDUM, OPT['amp'])); p('v_readlane_b32 s%d, v%d, %d' % (sT1, vDUM, OPT.get('amp0', 61)))
            p('s_nop 3')
            p('s_sub_u32 s%d, s%d, s%d' % (sT0, sT0, sT1)); p('s_mul_i32 s%d, s%d, %d' % (sT0, sT0, OPT.get('ampk', 4)))
            p('s_min_u32 s%d, s%d, 400000' % (sT0, sT0))
            p('s_memtime s[84:85]'); p('s_waitcnt lgkmcnt(0)')
            p('L_amp:')
            p('s_memtime s[86:87]'); p('s_waitcnt lgkmcnt(0)')
            p('s_sub_u32 s%d, s86, s84' % sT1); p('s_cmp_lt_u32 s%d, s%d' % (sT1, sT0)); p('s_cbranch_scc1 L_amp')
            p('L_noamp:')
        if OPT['dbg']:
            mk_srd(p, 84, 36, 256)
            p('v_readlane_b32 s%d, v%d, 61' % (sT1, vDUM))
            p('s_lshl_b32 s%d, s2, 2' % sT0); p('s_add_u32 s%d, s%d, s%d' % (sT0, sT0, sW)); p('s_cmp_lg_u32 s%d, %d' % (sT0, OPT['dbgwave']))
            p('s_cbranch_scc1 L_nodbg')
            p('v_subrev_u32 v%d, s%d, v%d' % (vT0, sT1, vDUM))
            p('v_lshlrev_b32 v%d, 2, v%d' % (vT1, vL))
            p('s_mov_b64 exec, 0xffff')
            p('buffer_store_dword v%d, v%d, s[84:87], 0 offen' % (vT0, vT1))
            p('s_mov_b64 exec, -1')
            p('L_nodbg:')
        p('s_lshl_b32 s%d, s2, 2' % sT0); p('s_add_u32 s%d, s%d, s%d' % (sT0, sT0, sW)); p('s_lshl_b32 s%d, s%d, 8' % (sT0, sT0))
        p('s_add_u32 s%d, s%d, %d' % (sT0, sT0, WS_STAMP))
        p('v_lshlrev_b32 v%d, 2, v%d' % (vT0, vL))
        p('buffer_store_dword v%d, v%d, %s, s%d offen' % (vDUM, vT0, srd(SWS), sT0))
    p('s_cmp_eq_u32 s%d, 15' % sR); p('s_cbranch_scc0 L_exit')
    p('s_cmp_eq_u32 s%d, 13' % sC); p('s_cbranch_scc0 L_exit')
    p('s_cmp_eq_u32 s%d, 3' % sW); p('s_cbranch_scc0 L_exit')
    p('s_mov_b32 s%d, %d' % (sT0, WS_EPOCH))
    p.extend(flag_group(sT0, 0))
    p('s_endpgm')

def pstamp(p, k):
    if not OPT['stamps']: return
    p('s_memtime s[90:91]'); p('s_waitcnt lgkmcnt(0)'); p('v_writelane_b32 v%d, s90, %d' % (vDUM, k))

def prep_path(p):
    SW2, SCRE, SCIM = 44, 48, 52
    sQ, sKF, sF0, sKS, sT0T, sCBK, sCTG, sFF = 8, 84, 85, 86, 87, 88, 89, 92
    p('L_prep:')
    p.reset()
    p('s_lshl_b32 s%d, s%d, 2' % (sQ, sT0)); p('s_add_u32 s%d, s%d, s%d' % (sQ, sQ, sT1)); p('s_sub_u32 s%d, s%d, 28' % (sQ, sQ))
    p('s_cmp_ge_u32 s%d, 28' % sQ); p('s_cbranch_scc1 L_exit')
    p('s_lshr_b32 s%d, s%d, 1' % (sF0, sQ)); p('s_lshl_b32 s%d, s%d, 7' % (sF0, sF0))
    p('s_and_b32 s%d, s%d, 1' % (sT0, sQ)); p('s_lshl_b32 s%d, s%d, 4' % (sT0, sT0)); p('s_add_u32 s%d, s%d, s%d' % (sF0, sF0, sT0))
    p('s_mul_i32 s%d, s%d, 896' % (sF0, sF0))
    p('s_lshl_b32 s%d, s%d, 2' % (sT0T, sW)); p('s_min_u32 s%d, s%d, 10' % (sT0T, sT0T))
    p('s_lshl_b32 s%d, s%d, 6' % (sT0, sT0T)); p('s_add_u32 s%d, s%d, s%d' % (sF0, sF0, sT0))
    p('s_mul_i32 s%d, s%d, 26624' % (sLW, sW))
    vWO = 21
    p('v_lshrrev_b32 v%d, 4, v%d' % (vWO, vL)); p('v_mul_u32_u24 v%d, 896, v%d' % (vWO, vWO))
    p('v_and_b32 v%d, 15, v%d' % (vT2, vL)); p('v_lshl_add_u32 v%d, v%d, 4, v%d' % (vWO, vT2, vWO))
    p('s_lshl_b32 s%d, s%d, 2' % (sKF, sQ)); p('s_add_u32 s%d, s%d, s%d' % (sKF, sKF, sW))
    p('s_mul_i32 s%d, s%d, 4682' % (sCBK, sKF)); p('s_lshr_b32 s%d, s%d, 16' % (sCBK, sCBK))
    p('s_mul_i32 s%d, s%d, 14' % (sT0, sCBK)); p('s_sub_u32 s%d, s%d, s%d' % (sCTG, sKF, sT0))
    p('s_waitcnt lgkmcnt(0)')
    mk_srd(p, SW2, 38, 1792 * 896)
    def w2dma(T):
        for i in range(4):
            p('s_add_u32 m0, s%d, %d' % (sLW, T * 4096 + i * 1024)); p('s_add_u32 s%d, s%d, %d' % (sT0, sF0, T * 28672 + i * 3584))
            p('buffer_load_dwordx4 v%d, %s, s%d offen lds' % (vWO, srd(SW2), sT0), tok=('w2', T))
    w2dma(0)
    mk_srd(p, SWS, 6, WS_END)
    p('buffer_load_dwordx2 v[%d:%d], v%d, %s, 0 offen sc1' % (TMP + 28, TMP + 29, vZ, srd(SWS)))
    w2dma(1)
    mk_srd(p, SLRE, 18, 896); mk_srd(p, SLIM, 20, 896); mk_srd(p, SLDT, 30, 896)
    p('v_lshlrev_b32 v%d, 1, v%d' % (vT2, vL)); p('s_lshl_b32 s%d, s%d, 7' % (sT1, sCBK))
    p('buffer_load_ushort v%d, v%d, %s, s%d offen' % (TMP + 0, vT2, srd(SLRE), sT1))
    p('buffer_load_ushort v%d, v%d, %s, s%d offen' % (TMP + 1, vT2, srd(SLIM), sT1))
    p('buffer_load_ushort v%d, v%d, %s, s%d offen' % (TMP + 2, vT2, srd(SLDT), sT1))
    w2dma(2)
    mk_srd(p, SCRE, 26, 448 * 896); mk_srd(p, SCIM, 28, 448 * 896)
    vA = 16
    p('v_lshrrev_b32 v%d, 2, v%d' % (vA, vL)); p('v_and_b32 v%d, 3, v%d' % (vA, vA))
    p('v_lshl_add_u32 v%d, v%d, 2, v%d' % (vA, vH, vA)); p('v_lshlrev_b32 v%d, 8, v%d' % (vA, vA))
    p('v_and_b32 v%d, 16, v%d' % (vT2, vL)); p('v_lshl_add_u32 v%d, v%d, 1, v%d' % (vA, vT2, vA))
    p('v_and_b32 v%d, 3, v%d' % (vT2, vL)); p('v_lshl_add_u32 v%d, v%d, 3, v%d' % (vA, vT2, vA))
    p('v_add_u32 v%d, s%d, v%d' % (vA, sLW, vA))
    vC = [17, 18, 19, 20]
    p('v_lshrrev_b32 v%d, 1, v%d' % (vT2, vP)); p('v_and_b32 v%d, 7, v%d' % (vT2, vT2))
    p('v_xor_b32 v%d, v%d, v%d' % (vT2, vT2, vH)); p('v_lshlrev_b32 v%d, 4, v%d' % (vT2, vT2))
    p('v_lshl_add_u32 v%d, v%d, 7, v%d' % (vT2, vP, vT2))
    p('v_add_u32 v%d, s%d, v%d' % (vC[0], sLW, vT2))
    for i in range(1, 4): p('v_xor_b32 v%d, %d, v%d' % (vC[i], i << 5, vC[0]))
    p('s_lshr_b32 s%d, s%d, 1' % (sKS, sT0T)); p('s_mul_i32 s%d, s%d, 168' % (sKS, sKS)); p('s_add_u32 s%d, s%d, s%d' % (sKS, sKS, sQ))
    p('s_lshl_b32 s%d, s%d, 11' % (sKS, sKS)); p('s_add_u32 s%d, s%d, %d' % (sKS, sKS, WS_W2F))
    p('s_lshl_b32 s%d, s%d, 5' % (sFF, sW)); p('s_add_u32 s%d, s%d, s%d' % (sFF, sFF, sQ)); p('s_lshl_b32 s%d, s%d, 3' % (sFF, sFF))
    p('s_mul_i32 s%d, s%d, %d' % (sT2, sCTG, 32 * 896)); p('s_add_u32 s%d, s%d, s%d' % (sT2, sT2, sT1))
    if OPT.get('ptlb', 0):
        p('v_and_b32 v%d, 3, v%d' % (vT2, vL)); p('v_mul_u32_u24 v%d, %d, v%d' % (vT2, 28 * 2048, vT2))
        p('v_lshrrev_b32 v%d, 2, v%d' % (vT3, vL)); p('v_mul_u32_u24 v%d, %d, v%d' % (vT3, 168 * 2048, vT3))
        p('v_add_u32 v%d, v%d, v%d' % (vT2, vT2, vT3))
        p('s_mov_b64 exec, 0xff')
        p('buffer_load_dword v%d, v%d, %s, s%d offen sc1' % (TMP + 12, vT2, srd(SWS), sKS), tok='ptlb')
        p('s_mov_b64 exec, -1')
    pstamp(p, 0)
    FRG = 64
    def stage(T):
        p.waitvm(('w2', T))
        for ct4 in range(4):
            for hh in range(2):
                p('ds_read_b64_tr_b16 %s, v%d offset:%d' % (v2(FRG + 16 * T + 4 * ct4 + 2 * hh), vA, T * 4096 + hh * 2048 + ct4 * 64))
        for ct4 in range(4):
            if ct4 % 2 == 0: p('s_add_u32 s%d, s%d, %d' % (sT0, sKS, ((ct4 // 2) * 168 + 28 * T) * 2048))
            p('buffer_store_dwordx4 %s, v%d, %s, s%d offen offset:%d sc1' % (v4(FRG + 16 * T + 4 * ct4), vL16, srd(SWS), sT0, (ct4 % 2) * 1024), tok=('fst', T))
    def cdma():
        for comp in range(2):
            for rg in range(4):
                p('s_add_u32 m0, s%d, %d' % (sLW, 16384 + comp * 4096 + rg * 1024))
                p('s_add_u32 s%d, s%d, %d' % (sT0, sT2, rg * 7168))
                p('buffer_load_dwordx4 v%d, %s, s%d offen lds' % (vT0 if rg % 2 == 0 else vT1, srd(SCRE if comp == 0 else SCIM), sT0), tok='c')
            if comp == 0 and PO == 0:
                p.extend(flag_group(sFF, WS_PF, ('fst', 0)))
                pstamp(p, 2)
    PO = OPT.get('pord', 0)
    if PO == 2:
        p.waitvm(('w2', 0)); w2dma(3); cdma()
    if PO == 3:
        p.waitvm(('w2', 0)); w2dma(3)
    stage(0)
    pstamp(p, 1)
    stage(1)
    stage(2)
    tag_setup(p, TMP + 28)
    if PO < 2: w2dma(3)
    if PO != 2: cdma()
    lr, li = TMP + 6, TMP + 7
    lam_from(p, TMP + 0, TMP + 1, TMP + 2, lr, li, TMP + 4, TMP + 5)
    p('v_add_f32 v%d, -1.0, v%d' % (lr, lr))
    p('v_mul_f32 v%d, v%d, v%d' % (TMP + 4, TMP + 0, TMP + 0)); p('v_fmac_f32 v%d, v%d, v%d' % (TMP + 4, TMP + 1, TMP + 1))
    p('v_rcp_f32 v%d, v%d' % (TMP + 4, TMP + 4))
    p('v_mul_f32 v%d, v%d, v%d' % (TMP + 8, lr, TMP + 0)); p('v_fmac_f32 v%d, v%d, v%d' % (TMP + 8, li, TMP + 1))
    p('v_add_f32 v%d, v%d, v%d' % (TMP + 4, TMP + 4, TMP + 4))
    p('v_mul_f32 v%d, v%d, v%d' % (TMP + 9, li, TMP + 0)); p('v_fma_f32 v%d, -v%d, v%d, v%d' % (TMP + 9, lr, TMP + 1, TMP + 9))
    p('v_mul_f32 v%d, v%d, v%d' % (TMP + 8, TMP + 8, TMP + 4)); p('v_mul_f32 v%d, v%d, v%d' % (TMP + 9, TMP + 9, TMP + 4))
    p('v_lshl_add_u32 v%d, v%d, 3, s%d' % (vT2, vL, sLW))
    p('ds_write_b64 v%d, v[%d:%d] offset:%d' % (vT2, TMP + 8, TMP + 9, 24576))
    p('v_lshl_add_u32 v%d, v%d, 6, s%d' % (vT2, vH, sLW))
    if PO:
        p.extend(flag_group(sFF, WS_PF, ('fst', 0)))
        pstamp(p, 2)
    stage(3)
    p('s_lshl_b32 s%d, s%d, 3' % (sT0, sCBK)); p('s_add_u32 s%d, s%d, 112' % (sT0, sT0)); p('s_lshl_b32 s%d, s%d, 11' % (sKS, sT0))
    p('s_lshr_b32 s%d, s%d, 1' % (sT0, sCTG)); p('s_mul_i32 s%d, s%d, %d' % (sT0, sT0, 168 * 2048)); p('s_add_u32 s%d, s%d, s%d' % (sKS, sKS, sT0))
    p('s_and_b32 s%d, s%d, 1' % (sT0, sCTG)); p('s_lshl_b32 s%d, s%d, 10' % (sT0, sT0)); p('s_add_u32 s%d, s%d, s%d' % (sKS, sKS, sT0))
    p('s_add_u32 s%d, s%d, %d' % (sKS, sKS, WS_W2F))
    CR = 24; CF = 128; U = 56; O = 192
    p.waitvm('c')
    for g4 in range(4):
        p('ds_read_b128 %s, v%d offset:%d' % (v4(CR + 8 * g4), vC[g4], 16384))
        p('ds_read_b128 %s, v%d offset:%d' % (v4(CR + 8 * g4 + 4), vC[g4], 16384 + 4096))
        for k in range(4): p('ds_read_b128 %s, v%d offset:%d' % (v4(CF + 16 * g4 + 4 * k), vT2, 24576 + 128 * g4 + 16 * k))
        if g4 == 1: p('s_waitcnt lgkmcnt(6)')
    for g4 in range(4):
        cr, ci = CR + 8 * g4, CR + 8 * g4 + 4
        o = O + 8 * g4
        for k in range(4):
            a0, b0, a1, b1 = CF + 16 * g4 + 4 * k, CF + 16 * g4 + 4 * k + 1, CF + 16 * g4 + 4 * k + 2, CF + 16 * g4 + 4 * k + 3
            p('v_lshlrev_b32 v%d, 16, v%d' % (U, cr + k)); p('v_and_b32 v%d, s%d, v%d' % (U + 1, sMHI, cr + k))
            p('v_lshlrev_b32 v%d, 16, v%d' % (U + 2, ci + k)); p('v_and_b32 v%d, s%d, v%d' % (U + 3, sMHI, ci + k))
            p('v_mul_f32 v%d, v%d, v%d' % (U + 4, a0, U)); p('v_fma_f32 v%d, -v%d, v%d, v%d' % (U + 4, b0, U + 2, U + 4))
            p('v_mul_f32 v%d, v%d, v%d' % (U + 5, a1, U + 1)); p('v_fma_f32 v%d, -v%d, v%d, v%d' % (U + 5, b1, U + 3, U + 5))
            p('v_mul_f32 v%d, -v%d, v%d' % (U + 6, a0, U + 2)); p('v_fma_f32 v%d, -v%d, v%d, v%d' % (U + 6, b0, U, U + 6))
            p('v_mul_f32 v%d, -v%d, v%d' % (U + 7, a1, U + 3)); p('v_fma_f32 v%d, -v%d, v%d, v%d' % (U + 7, b1, U + 1, U + 7))
            p('v_cvt_pk_bf16_f32 v%d, v%d, v%d' % (o + k, U + 4, U + 5))
            p('v_cvt_pk_bf16_f32 v%d, v%d, v%d' % (o + 4 + k, U + 6, U + 7))
        if g4 == 1: p.extend(flag_group(sFF, WS_PF + 3072, ('fst', 3)))
    p('s_cmp_ge_u32 s%d, 98' % sKF); p('s_cbranch_scc1 L_prep_fin')
    for g4 in range(4):
        o = O + 8 * g4
        p('s_add_u32 s%d, s%d, %d' % (sT0, sKS, (4 * (g4 >> 1) + (g4 & 1)) * 2048))
        p('s_add_u32 s%d, s%d, 4096' % (sT1, sT0))
        p('buffer_store_dwordx4 %s, v%d, %s, s%d offen sc1' % (v4(o), vL16, srd(SWS), sT0))
        p('buffer_store_dwordx4 %s, v%d, %s, s%d offen sc1' % (v4(o + 4), vL16, srd(SWS), sT1))
    p('s_lshl_b32 s%d, s%d, 3' % (sT0, sCTG)); p('s_add_u32 s%d, s%d, s%d' % (sT0, sT0, sCBK)); p('s_lshl_b32 s%d, s%d, 3' % (sT0, sT0))
    p('s_waitcnt vmcnt(0)')
    p.extend(flag_group(sT0, WS_PF + 4096))
    p('L_prep_fin:')
    if OPT['stamps']:
        pstamp(p, 3)
        p('v_writelane_b32 v%d, s%d, 62' % (vDUM, SOUT)); p('v_writelane_b32 v%d, s%d, 61' % (vDUM, SOUT + 2))
        p('s_lshl_b32 s%d, s2, 2' % sT0); p('s_add_u32 s%d, s%d, s%d' % (sT0, sT0, sW)); p('s_lshl_b32 s%d, s%d, 8' % (sT0, sT0))
        p('s_add_u32 s%d, s%d, %d' % (sT0, sT0, WS_STAMP))
        p('v_lshlrev_b32 v%d, 2, v%d' % (vT0, vL))
        p('buffer_store_dword v%d, v%d, %s, s%d offen' % (vDUM, vT0, srd(SWS), sT0))
    p('L_exit:')
    p('s_endpgm')

HEADER = open('parallel_sum__ssm_conv_s5__dense_activation_silu__prompt.s.ref').read().split('; Override launch')[0]

def build():
    p = Prog()
    prologue_common(p)
    main_path(p)
    for q in retry_blocks:
        p.reset(); p.extend(q.ins)
    prep_path(p)
    if OPT.get('abl'):
        out = []; cnt = 0
        lo = stamp_slots.index(OPT.get('ablo', 'T0') if isinstance(OPT.get('ablo', 'T0'), str) else stamp_slots[OPT['ablo']]); hi_ = stamp_slots.index('T2') if 'abhi' not in OPT else OPT['abhi']
        inside = False
        for i in p.ins:
            if i.op == 'v_writelane_b32':
                k = int(i.text.split(',')[-1])
                if k == lo: inside = True
                if k == hi_: inside = False
                out.append(i); continue
            a = OPT['abl']
            if inside and (a & 64) and (i.kind in ('vload', 'dma', 'vstore', 'needvm') or (i.kind == 'branch' and 'retry' in i.text)): continue
            if inside and (a & 128) and i.kind == 'salu' and 'exec' not in i.text and 'vcc' not in i.text: continue
            if inside and i.note != 'glue' and (((a & 1) and i.kind in ('vload', 'dma') and 'dwordx4' in i.text and 'sc1' in i.text) or ((a & 2) and i.kind == 'trans') or ((a & 4) and i.kind == 'valu')
                           or ((a & 8) and i.kind == 'dsread') or ((a & 16) and i.kind == 'vstore' and 'dwordx4' in i.text) or ((a & 32) and i.kind == 'mfma')):
                continue
            out.append(i)
        p.ins = out
    ins = finalize(p)
    if OPT.get('wlo') is not None:
        out = []; inside = False; slot = 30
        for i in ins:
            if i.op == 'v_writelane_b32' and 's%d,' % sP0 in i.text:
                k = int(i.text.split(',')[-1])
                if k == OPT['wlo']: inside = True
                if k == OPT['whi']: inside = False
            if inside and i.kind in ('dma', 'vload', 'vstore') and OPT.get('wv'): OPT['wskip'] = OPT.get('wskip', 0) - 1
            if inside and slot < 59 and ((i.kind in ('dma', 'vload', 'vstore') and OPT.get('wskip', 0) < 0) if OPT.get('wv') else ((i.kind == 'wait' and 'vmcnt' in i.text) or i.kind == 'barrier')):
                out += [Ins('s_memtime s[62:63]')] if False else []
                out += [Ins('s_memtime s[64:65]'), i, Ins('s_memtime s[72:73]'), Ins('s_waitcnt lgkmcnt(0)'),
                        Ins('v_writelane_b32 v%d, s64, %d' % (vDUM, slot)), Ins('v_writelane_b32 v%d, s72, %d' % (vDUM, slot + 1))]
                print('W%d: %s' % (slot, i.text)); slot += 2
            else: out.append(i)
        ins = out
    ins = [i for i in ins if not i.text.startswith(('; pad', '; need', '; after', '; at'))]
    body = text_of(ins)
    s = HEADER
    s += '; @launch grid=(256,1,1) block=(256,1,1) lds=%d\n' % LDS_BYTES
    s += '.amdgcn_target "amdgcn-amd-amdhsa--gfx950"\n.text\n.globl %s\n.p2align 8\n.type %s,@function\n%s:\n' % (KNAME, KNAME, KNAME)
    s += body
    s += 'L_code_end:\n'
    s += '.section .rodata,"a"\n.p2align 6\n.amdhsa_kernel %s\n' % KNAME
    s += '  .amdhsa_next_free_vgpr 512\n  .amdhsa_next_free_sgpr 102\n  .amdhsa_accum_offset 256\n  .amdhsa_group_segment_fixed_size 0\n'
    s += '  .amdhsa_kernarg_size 120\n  .amdhsa_user_sgpr_count 2\n  .amdhsa_user_sgpr_kernarg_segment_ptr 1\n  .amdhsa_system_sgpr_workgroup_id_x 1\n'
    s += '  .amdhsa_float_denorm_mode_32 3\n'
    s += '.end_amdhsa_kernel\n'
    return s, ins

if __name__ == '__main__':
    s, ins = build()
    open(sys.argv[1], 'w').write(s)
    from collections import Counter
    c = Counter(i.kind for i in ins)
    print('instructions:', sum(v for k, v in c.items() if k != 'label'), dict(c))
    if OPT['stamps']: print('stamps:', ','.join(stamp_slots))
```

```python
import sys, os
sys.path.insert(0, os.path.dirname(os.path.abspath(__file__)))
from dsl import *

KNAME = 'parallel_sum__ssm_conv_s5__dense_activation_silu__prompt_kernel'
OPT = dict(stamps=0, rot=1, w1pf=0, cpf=1, spin=1 << 16, dbg=0, dbgwave=0, per=70, perd=72, lead=22, ahead=10, w2s=12, dot=1, pk=0, w2early=1, tlb=0, fillc=30, ldsw2=1, rotA=0, gpf=3, xup=5, ost=1, sshare=2, ns=0, perx=36, tp=2600, tc=5000, tch=0, loc=0, send=24, p2=3, p3=9, p4=16, pd=6, f3=0, f4=7, c1=2, tf=900, tp0=1000, tc0=500, tp1=1300, tf2=1400, perh=80)
for a in sys.argv[2:]:
    k, v = a.split('='); OPT[k] = int(v)

HSC = '' if OPT.get('plain') else [' sc1', ' sc0 sc1'][OPT.get('hsc', 0)]
WS_EPOCH = 0
WS_PF    = 0xC000
WS_FL    = 0x2000
WS_EG    = 0x10000
WS_STAMP = 0x80000
WS_W2F   = 0x100000
WS_HID   = 0x400000
WS_END   = WS_HID + 64 * 168 * 1024
L0     = 8192
L_XW   = 24576
L_SW   = L0 + 98304
L_TR   = L0 + 114688
L_WT   = L_TR + 4 * 4608
L_RS   = 0
L_MR   = 512
L_EW   = 1536
LDS_BYTES = 163840
LOG2E = 0x3fb8aa3b
NLOG2E = 0xbfb8aa3b
INV2PI = 0x3e22f983

sR, sC, sW, sROT, sTL, sTH, sONE, sMHI = 8, 9, 10, 11, 12, 13, 14, 15
SX, SBRE, SBIM, SW1, SWS, SOUT, SLRE, SLIM, SLDT, SDSK, SCODE = 40, 44, 48, 52, 56, 60, 64, 68, 72, 76, 80
SEG = 44
KB = [84 + j for j in range(7)]
W1K = [91 + j for j in range(7)]
sT0, sT1, sLW, sT2 = 98, 99, 100, 101
BM0 = [64 + j for j in range(7)]
sHW, sCB, sHALF, sRT0, sPMASK, sW2, sH0, sH1, sSPIN, sFW = 16, 17, 18, 19, 20, 21, 22, 23, 24, 25
sT3, sT4, sT5, sT6 = 26, 27, 28, 29
sP0 = 30
sW2S, sH0S, sH1S, sHWS, sIDX, sM1 = 32, 33, 34, 35, 36, 37
RSO = [72 + j for j in range(4)] + [38, 39, 3]
def srd(b): return 's[%d:%d]' % (b, b + 3)
def v4(b): return ('v[%d:%d]' % (b, b + 3)) if b < 256 else ('a[%d:%d]' % (b - 256, b - 253))
def v2(b): return ('v[%d:%d]' % (b, b + 1)) if b < 256 else ('a[%d:%d]' % (b - 256, b - 255))
def v16(b): return 'v[%d:%d]' % (b, b + 15)

vL = 1; vL16 = 2; vT0, vT1, vT2, vT3 = 3, 4, 5, 6
vM, vS, vNK, vRSv = 7, 8, 9, 10
vZ = 11; vH = 12; vP = 13; vFA = 14; vDUM = 15
X = 16
SRE, SIM, F0, F1 = 128, 144, 160, 176
vXO = [192, 193, 194, 195]
vBO = 196
vW1O = [197, 198]
vRX = [199, 200, 201, 202]
vRF = [[203, 204], [205, 206]]
L1r, L1i, N1i, L2r, L2i, L3r, L3i, L4r, L4i, L32r, L32i, L128r, L128i, L256r, L256i = range(207, 222)
vTW, vTRr = 222, 223
vFA2, vFA3 = 201, 202
TMP = 224
WB = 256 + 224
FR = TMP + 26
FR2 = TMP + 24
TAGP = TMP + 30
vNM = TMP + 16
sSELL, sSELH = 70, 71
sPS, sPM2, sLT, sLA = 68, 69, 67, 66
sRS0, sRS1 = 82, 83
vPF = TMP + 28

def cost(i):
    if i.kind in ('label', 'needvm', 'needlgkm', 'reset'): return 0
    if i.kind in ('trans', 'mfma'): return 8
    if i.kind == 'nop': return 4 * i.width
    if i.kind in ('valu', 'dot', 'perm') and (i.op in ('v_fma_f32', 'v_cvt_pk_bf16_f32', 'v_lshl_add_u32', 'v_add3_u32', 'v_mul_lo_u32') or '0x' in i.text): return 5
    if i.kind in ('vload', 'vstore', 'dma'): return 8
    return 4

def weave(comp, groups, period, start=0, pdma=None, small=(), events=()):
    out = []; t = 0; pipe = 0; nxt = start; groups = list(groups); noins = 0
    pdma = pdma or period; nm = 0; events = sorted(events, key=lambda e: e[0])
    for i in comp:
        if i.kind == 'mfma':
            t = max(t, pipe); pipe = t + 32; nm += 1
        out.append(i); t += cost(i)
        if 'exec' in i.text and i.kind == 'salu':
            noins = 0 if i.text.endswith('exec, -1') else 1
        ok = not noins and not (i.kind == 'salu' and 'm0' in i.text) and i.kind not in ('needvm', 'needlgkm') and not getattr(i, 'note', None) == 'glue'
        if events and ok and t >= events[0][0]:
            g = events.pop(0)[1]; out.extend(g); t += sum(cost(x) for x in g); continue
        if groups and groups[0] and groups[0][0].text.startswith('; after') and nm < int(groups[0][0].text.split()[2]): continue
        if groups and groups[0] and groups[0][0].text.startswith('; at') and t < int(groups[0][0].text.split()[2]): continue
        if 'exec' in i.text and i.kind == 'salu':
            noins = 0 if i.text.endswith('exec, -1') else 1
        if groups and t >= nxt and not noins and not (i.kind == 'salu' and 'm0' in i.text) and i.kind not in ('needvm', 'needlgkm') and not getattr(i, 'note', None) == 'glue':
            g = groups.pop(0); out.extend(g); t += sum(cost(x) for x in g)
            nv = sum(1 for x in g if x.kind in ('dma', 'vload', 'vstore') and 'dwordx4' in x.text and not any('s[%d:%d]' % (b, b + 3) in x.text for b in small))
            pr = (period if any('sc1' in x.text for x in g) else pdma) * nv + (0 if nv else 40)
            nxt = max(nxt + pr, t - pr // 2)
    for e in events: out.extend(e[1])
    return out, groups

def G(*texts, tok=None):
    q = Prog()
    for t in texts: q(t, tok=tok)
    return q.ins

stamp_slots = []
def stamp(p, name):
    if not OPT['stamps']: return
    if OPT.get('rt') and name in ('issued0', 'first', 'x0in', 'Win', 'Ain', 'lbok', 'silu3', 'carry'): return
    if OPT.get('allg') and name in ('issued0', 'first', 'x0in', 'lead', 'Win', 'ssmend', 'Ain', 'lbok', 'T0', 'T1', 'T2', 'B1'): return
    k = len(stamp_slots); stamp_slots.append(name)
    p('s_memtime s[%d:%d]' % (sP0, sP0 + 1))
    if OPT.get('rt'): p('s_memrealtime s[64:65]')
    p('s_waitcnt lgkmcnt(0)')
    p('v_writelane_b32 v%d, s%d, %d' % (vDUM, sP0, k))
    if OPT.get('rt'): p('v_writelane_b32 v%d, s64, %d' % (vDUM, 30 + k))

def mk_srd(p, b, ptr, nbytes):
    p('s_mov_b32 s%d, s%d' % (b, ptr)); p('s_mov_b32 s%d, s%d' % (b + 1, ptr + 1))
    p('s_mov_b32 s%d, %d' % (b + 2, nbytes)); p('s_mov_b32 s%d, 0x20000' % (b + 3))

def bf16_round(p, dst, src):
    p('v_cvt_pk_bf16_f32 v%d, v%d, v%d' % (dst, src, src))
    p('v_lshlrev_b32 v%d, 16, v%d' % (dst, dst))

def lam_from(p, lre, lim, ldt, outr, outi, t0, t1):
    p('v_lshlrev_b32 v%d, 16, v%d' % (lre, lre))
    p('v_lshlrev_b32 v%d, 16, v%d' % (lim, lim))
    p('v_lshlrev_b32 v%d, 16, v%d' % (ldt, ldt))
    p('v_mul_f32 v%d, 0x%x, v%d' % (ldt, LOG2E, ldt))
    p('v_exp_f32 v%d, v%d' % (ldt, ldt))
    bf16_round(p, ldt, ldt)
    p('v_mul_f32 v%d, v%d, v%d' % (t0, ldt, lre))
    p('v_mul_f32 v%d, v%d, v%d' % (t1, ldt, lim))
    p('v_mul_f32 v%d, 0x%x, v%d' % (t0, LOG2E, t0))
    p('v_exp_f32 v%d, v%d' % (t0, t0))
    p('v_mul_f32 v%d, 0x%x, v%d' % (t1, INV2PI, t1))
    p('v_fract_f32 v%d, v%d' % (t1, t1))
    p('v_cos_f32 v%d, v%d' % (outr, t1))
    p('v_sin_f32 v%d, v%d' % (outi, t1))
    p('v_mul_f32 v%d, v%d, v%d' % (outr, t0, outr))
    p('v_mul_f32 v%d, v%d, v%d' % (outi, t0, outi))

def cmul(p, dr, di, ar, ai, br, bi):
    p('v_mul_f32 v%d, v%d, v%d' % (dr, ar, br))
    p('v_mul_f32 v%d, v%d, v%d' % (di, ar, bi))
    p('v_fma_f32 v%d, -v%d, v%d, v%d' % (dr, ai, bi, dr))
    p('v_fmac_f32 v%d, v%d, v%d' % (di, ai, br))

def cmac(p, dr, di, ar, ai, br, bi):
    p('v_fmac_f32 v%d, v%d, v%d' % (dr, ar, br))
    p('v_fmac_f32 v%d, v%d, v%d' % (di, ar, bi))
    p('v_fma_f32 v%d, -v%d, v%d, v%d' % (dr, ai, bi, dr))
    p('v_fmac_f32 v%d, v%d, v%d' % (di, ai, br))

def tag_setup(p, vlo):
    p('v_readfirstlane_b32 s%d, v%d' % (sTL, vlo))
    p('v_readfirstlane_b32 s%d, v%d' % (sTH, vlo + 1))
    p('s_mul_i32 s%d, s%d, 0x9e3779b1' % (sTL, sTL)); p('s_add_u32 s%d, s%d, 0x7f4a7c15' % (sTL, sTL))
    p('s_mul_i32 s%d, s%d, 0x85ebca6b' % (sTH, sTH)); p('s_add_u32 s%d, s%d, 0xc2b2ae35' % (sTH, sTH))
    p('v_mov_b32 v%d, s%d' % (TAGP, sTL)); p('v_mov_b32 v%d, s%d' % (TAGP + 1, sTH))

retry_blocks = []
def poll_check(name, mask, reload_text, FR=FR):
    p = Prog()
    p('v_cmp_ne_u32 vcc, s%d, v%d' % (sTL, FR))
    p('v_cmp_ne_u32 s[%d:%d], s%d, v%d' % (sP0, sP0 + 1, sTH, FR + 1))
    p('s_nop 1')
    p('s_or_b32 s%d, vcc_lo, s%d' % (sM1, sP0))
    p('s_and_b32 s%d, s%d, %s' % (sM1, sM1, mask))
    p('s_cbranch_scc1 L_retry_%s' % name)
    p('L_ok_%s:' % name)
    for i in p.ins: i.note = 'glue'
    q = Prog()
    q('L_retry_%s:' % name)
    q('s_mov_b32 s%d, 0' % sSPIN)
    q('L_loop_%s:' % name)
    q('s_sleep 1')
    q(reload_text)
    q('s_waitcnt vmcnt(0)')
    q('v_cmp_ne_u32 vcc, s%d, v%d' % (sTL, FR))
    q('v_cmp_ne_u32 s[%d:%d], s%d, v%d' % (sP0, sP0 + 1, sTH, FR + 1))
    q('s_add_u32 s%d, s%d, 1' % (sSPIN, sSPIN))
    if OPT['stamps']: q('v_add_u32 v%d, 1, v%d' % (vRSv, vRSv))
    q('s_cmp_gt_u32 s%d, %d' % (sSPIN, OPT['spin']))
    q('s_cbranch_scc1 L_ok_%s' % name)
    q('s_or_b32 s%d, vcc_lo, s%d' % (sM1, sP0))
    q('s_and_b32 s%d, s%d, %s' % (sM1, sM1, mask))
    q('s_cbranch_scc1 L_loop_%s' % name)
    q('s_branch L_ok_%s' % name)
    retry_blocks.append(q)
    return p.ins

def flag_group(base_s, add, waittok=None):
    q = Prog()
    if waittok is not None: q.waitvm(waittok)
    q('s_add_u32 s%d, s%d, %d' % (sM1, base_s, add))
    q('s_mov_b64 exec, 1')
    q('buffer_store_dwordx2 v[%d:%d], v%d, %s, s%d offen%s' % (TAGP, TAGP + 1, vZ, srd(SWS), sM1, HSC if base_s == sFW else ' sc1'))
    q('s_mov_b64 exec, -1')
    return q.ins

def prologue_common(p):
    p('s_cmp_ge_u32 s2, 256')
    p('s_cbranch_scc1 L_exit')
    p('s_load_dwordx16 s[16:31], s[0:1], 0')
    p('s_load_dwordx8 s[32:39], s[0:1], 64')
    p('s_load_dwordx2 s[4:5], s[0:1], 96')
    p('s_load_dwordx2 s[6:7], s[0:1], 112')
    if OPT['stamps']:
        p('s_memrealtime s[%d:%d]' % (SOUT, SOUT + 1))
        p('s_memtime s[%d:%d]' % (SOUT + 2, SOUT + 3))
    if OPT['cpf']:
        p('s_getpc_b64 s[%d:%d]' % (SCODE, SCODE + 1))
        p('L_pc:')
        p('v_lshrrev_b32 v%d, 5, v0' % vT1); p('v_and_b32 v%d, 6, v%d' % (vT1, vT1)); p('v_and_b32 v%d, 1, v0' % vT2)
        p('v_add_lshl_u32 v%d, v%d, v%d, 7' % (vT2, vT1, vT2))
        p('s_sub_u32 s%d, s%d, L_pc-%s' % (SCODE, SCODE, KNAME))
        p('s_subb_u32 s%d, s%d, 0' % (SCODE + 1, SCODE + 1))
        p('s_mov_b32 s%d, L_code_end-%s' % (SCODE + 2, KNAME))
        p('s_mov_b32 s%d, 0x20000' % (SCODE + 3))
        p('s_lshr_b32 s%d, s2, 3' % sT1); p('s_lshl_b32 s%d, s%d, 10' % (sT1, sT1))
        p('s_mov_b64 exec, 3')
        p('buffer_load_dword v%d, v%d, %s, s%d offen' % (F1, vT2, srd(SCODE), sT1), tok='cpf')
        p('s_mov_b64 exec, -1')
    p('v_lshrrev_b32 v%d, 6, v0' % vT0)
    p('v_and_b32 v%d, 63, v0' % vL)
    p('v_readfirstlane_b32 s%d, v%d' % (sW, vT0))
    p('v_lshlrev_b32 v%d, 4, v%d' % (vL16, vL))
    p('v_mov_b32 v%d, 0' % vZ)
    p('v_lshrrev_b32 v%d, 5, v%d' % (vH, vL))
    p('v_and_b32 v%d, 31, v%d' % (vP, vL))
    p('s_and_b32 s%d, s2, 7' % sT0)
    p('s_lshr_b32 s%d, s2, 3' % sT1)
    p('s_mov_b32 s%d, 0x3f803f80' % sONE)
    p('s_mov_b32 s%d, 0xffff0000' % sMHI)
    p('v_lshrrev_b32 v%d, 3, v%d' % (vT0, vL))
    p('v_mul_u32_u24 v%d, 896, v%d' % (vT0, vT0))
    p('v_lshrrev_b32 v%d, 4, v%d' % (vT1, vL))
    p('v_and_b32 v%d, 7, v%d' % (vT2, vL))
    p('v_xor_b32 v%d, v%d, v%d' % (vT1, vT1, vT2))
    p('v_lshl_add_u32 v%d, v%d, 4, v%d' % (vT0, vT1, vT0))
    p('v_xor_b32 v%d, 64, v%d' % (vT1, vT0))
    p('s_cmp_ge_u32 s%d, 28' % sT1)
    p('s_cbranch_scc1 L_prep')

def wrap7(p, dst, a, b_or_imm, tmp):
    p('s_add_u32 s%d, s%d, %s' % (dst, a, b_or_imm))
    p('s_cmp_ge_u32 s%d, 7' % dst)
    p('s_cselect_b32 s%d, 7, 0' % tmp)
    p('s_sub_u32 s%d, s%d, s%d' % (dst, dst, tmp))

def main_path(p):
    sXCD, sI7 = 78, 79
    p('s_mov_b32 s%d, s%d' % (sXCD, sT0)); p('s_mov_b32 s%d, s%d' % (sI7, sT1))
    if not OPT['loc']:
        p('s_mul_i32 s%d, s%d, 37' % (sT2, sT1)); p('s_lshr_b32 s%d, s%d, 8' % (sT2, sT2))
        p('s_mul_i32 s3, s%d, 7' % sT2); p('s_sub_u32 s%d, s%d, s3' % (sROT, sT1))
        p('s_lshr_b32 s%d, s%d, 1' % (sR, sT0)); p('s_lshl_b32 s%d, s%d, 2' % (sR, sR)); p('s_add_u32 s%d, s%d, s%d' % (sR, sR, sT2))
        p('s_and_b32 s%d, s%d, 1' % (sT0, sT0))
        p('s_mul_i32 s%d, s%d, 7' % (sC, sT0)); p('s_add_u32 s%d, s%d, s%d' % (sC, sC, sROT))
    else:
        p('s_cmp_ge_u32 s%d, 14' % sT1); p('s_cselect_b32 s%d, 1, 0' % sT2); p('s_cselect_b32 s3, 14, 0')
        p('s_sub_u32 s%d, s%d, s3' % (sC, sT1))
        p('s_lshl_b32 s%d, s%d, 1' % (sR, sT0)); p('s_add_u32 s%d, s%d, s%d' % (sR, sR, sT2))
        p('s_cmp_ge_u32 s%d, 7' % sC); p('s_cselect_b32 s%d, 1, 0' % sXCD); p('s_cselect_b32 s3, 7, 0')
        p('s_sub_u32 s%d, s%d, s3' % (sROT, sC))
        p('s_lshl_b32 s%d, s%d, 1' % (sT2, sT2))
    p('s_mul_i32 s%d, s%d, %d' % (sLW, sW, L_XW)); p('s_add_u32 s%d, s%d, %d' % (sLW, sLW, L0))
    p('s_lshl_b32 s%d, s%d, 7' % (KB[0], sROT)) if OPT['rot'] else p('s_mov_b32 s%d, 0' % KB[0])
    p('s_lshl_b32 s%d, s%d, 2' % (sT0, sR)); p('s_add_u32 s%d, s%d, s%d' % (sT0, sT0, sW))
    p('s_mul_i32 s%d, s%d, %d' % (sT1, sT0, 32 * 896))
    p('v_add_u32 v%d, s%d, v%d' % (vXO[0], sT1, vT0))
    p('v_add_u32 v%d, s%d, v%d' % (vXO[1], sT1, vT1))
    p('v_add_u32 v%d, %d, v%d' % (vXO[2], 14336 - 2048, vXO[0]))
    p('v_add_u32 v%d, %d, v%d' % (vXO[1], 7168 - 1024, vXO[1]))
    p('v_add_u32 v%d, %d, v%d' % (vXO[3], 14336 - 2048, vXO[1]))
    if OPT['stamps']: p('s_memtime s[76:77]')
    p('s_waitcnt lgkmcnt(0)')
    if OPT['stamps']:
        p('v_writelane_b32 v%d, s%d, 62' % (vDUM, SOUT)); p('v_writelane_b32 v%d, s%d, 61' % (vDUM, SOUT + 2))
        stamp_slots.append('prek'); p('v_writelane_b32 v%d, s76, 0' % vDUM)
        p('s_memtime s[%d:%d]' % (SOUT, SOUT + 1))
    mk_srd(p, SX, 16, 2048 * 896)
    def x_dma(j):
        out = [G('buffer_load_dwordx4 v%d, %s, s%d offen offset:%d lds' % (vXO[rg], srd(SX), KB[j], rg * 1024), tok=('x', j)) for rg in range(4)]
        out[0] = G('s_add_u32 m0, s%d, %d' % (sLW, j * 4096)) + out[0]
        return out
    fill = Prog()
    mk_srd(fill, SBRE, 22, 448 * 896); mk_srd(fill, SBIM, 24, 448 * 896)
    mk_srd(fill, SLRE, 18, 896); mk_srd(fill, SLIM, 20, 896); mk_srd(fill, SLDT, 30, 896); mk_srd(fill, SWS, 6, WS_END)
    mk_srd(fill, SW1, 36, 448 * 3584)
    fl = fill.ins
    for g in x_dma(0): p.extend(g)
    p.extend(fl[:8]); fl = fl[8:]
    p('s_and_b32 s%d, s%d, 1' % (sT1, sW)); p('s_lshl_b32 s%d, s%d, 6' % (sT1, sT1))
    p('v_xor_b32 v%d, s%d, v%d' % (vBO, sT1, vT0))
    p('s_mul_i32 s%d, s%d, 7168' % (sT1, sW)); p('s_mul_i32 s%d, s%d, %d' % (sT0, sC, 32 * 896)); p('s_add_u32 s%d, s%d, s%d' % (sT1, sT1, sT0))
    p('v_add_u32 v%d, s%d, v%d' % (vBO, sT1, vBO))
    p('s_lshl_b32 s%d, s%d, 1' % (sT2, sT2))
    p('s_lshl_b32 s%d, s%d, 12' % (W1K[0], sT2)); p('s_lshl_b32 s%d, s%d, 10' % (sT1, sW)); p('s_add_u32 s%d, s%d, s%d' % (W1K[0], W1K[0], sT1))
    p('s_add_u32 s%d, s%d, %d' % (sT1, sT1, 7 * 4096))
    for k in range(1, 7):
        p('s_add_u32 s%d, s%d, 4096' % (W1K[k], W1K[k - 1]))
        p('s_cmp_ge_u32 s%d, s%d' % (W1K[k], sT1))
        p('s_cselect_b32 s%d, %d, 0' % (sT0, 7 * 4096))
        p('s_sub_u32 s%d, s%d, s%d' % (W1K[k], W1K[k], sT0))
    p('s_lshl_b32 s%d, s%d, 7' % (sT2, sT2))
    p('s_add_u32 s%d, s%d, s%d' % (sT2, sT2, KB[0]))
    p('s_cmp_ge_u32 s%d, 896' % sT2); p('s_cselect_b32 s%d, 896, 0' % sT0); p('s_sub_u32 s%d, s%d, s%d' % (sT2, sT2, sT0))
    p('v_lshlrev_b32 v%d, 1, v%d' % (vT2, vP))
    p('s_lshl_b32 s%d, s%d, 6' % (sT1, sC))
    if OPT['stamps']:
        p('s_memtime s[%d:%d]' % (SOUT + 2, SOUT + 3)); p('s_waitcnt lgkmcnt(0)')
        stamp_slots.append('karg'); p('v_writelane_b32 v%d, s%d, 1' % (vDUM, SOUT))
        stamp_slots.append('x0'); p('v_writelane_b32 v%d, s%d, 2' % (vDUM, SOUT + 2))
    ssm_soff = [sT2]
    def ssm_dma(k, soff):
        return [G('s_add_u32 m0, s%d, %d' % (W1K[k], L_SW + T * 28672),
                  'buffer_load_dwordx4 v%d, %s, s%d offen lds' % (vBO, srd(SBRE if T == 0 else SBIM), soff), tok='ssmw') for T in range(2)]
    def next_soff(q, dst, src):
        q('s_add_u32 s%d, s%d, 128' % (dst, src)); q('s_cmp_ge_u32 s%d, 896' % dst); q('s_cselect_b32 s%d, 0, s%d' % (dst, dst))
    p('s_mov_b32 s%d, s%d' % (sRS0, sT2))
    next_soff(p, sT2, sT2)
    p('s_mov_b32 s%d, s%d' % (sRS1, sT2))
    share = ssm_dma(0, sRS0) + ssm_dma(1, sRS1)
    NSH = OPT.get('sshare', 4)
    for g in share[:NSH]:
        p.extend([g[0]] + fl[:4] + [g[1]]); fl = fl[4:]
    p.extend(fl)
    p('buffer_load_dwordx2 v[%d:%d], v%d, %s, 0 offen sc1' % (TMP + 28, TMP + 29, vZ, srd(SWS)))
    p('buffer_load_ushort v%d, v%d, %s, s%d offen' % (TMP + 0, vT2, srd(SLRE), sT1))
    p('buffer_load_ushort v%d, v%d, %s, s%d offen' % (TMP + 1, vT2, srd(SLIM), sT1))
    p('buffer_load_ushort v%d, v%d, %s, s%d offen' % (TMP + 2, vT2, srd(SLDT), sT1))
    if OPT['tch'] & 3:
        p('s_mov_b64 exec, 1')
        if OPT['tch'] & 2: p('buffer_load_dword v%d, v%d, %s, 0 offen' % (F1 + 3, vZ, srd(SW1)), tok='cpf')
        if OPT['tch'] & 1:
            mk_srd(p, SOUT, 32, 896)
            p('buffer_load_dword v%d, v%d, %s, 0 offen' % (F1 + 4, vZ, srd(SOUT)), tok='cpf')
        p('s_mov_b64 exec, -1')
    gpf = Prog()
    if OPT['gpf']:
        gpf('s_mul_i32 s%d, s%d, 14' % (sT0, sR)); gpf('s_add_u32 s%d, s%d, s%d' % (sT0, sT0, sC)); gpf('s_lshl_b32 s%d, s%d, 2' % (sT0, sT0))
        gpf('s_add_u32 s%d, s%d, s%d' % (sT0, sT0, sW)); gpf('s_mul_i32 s%d, s%d, 1792' % (sT0, sT0))
        gpf('v_lshlrev_b32 v%d, 7, v%d' % (vT1, vL))
        gpf('s_mov_b64 exec, 0x3fff')
        gpf('buffer_load_dword v%d, v%d, %s, s%d offen' % (F1 + 5, vT1, srd(SW1), sT0), tok='cpf')
        gpf('s_mov_b64 exec, -1')
    if OPT['gpf'] == 1: p.extend(gpf.ins)
    if OPT['tlb']:
        p('v_lshlrev_b32 v%d, 21, v%d' % (vT1, vL))
        p('s_mov_b64 exec, 0xfe')
        p('buffer_load_dword v%d, v%d, %s, 0 offen' % (F1 + 3, vT1, srd(SWS)), tok='cpf')
        p('s_mov_b64 exec, 1')
        p('buffer_load_dword v%d, v%d, %s, 0 offen' % (F1 + 4, vZ, srd(SW1)), tok='cpf')
        p('s_mov_b64 exec, -1')
    stamp(p, 'issued0')
    if OPT.get('amp') == 99:
        p('v_readlane_b32 s%d, v%d, 62' % (sT0, vDUM)); p('s_lshl_b32 s%d, s2, 7' % sT1); p('s_add_u32 s%d, s%d, 0xF0000' % (sT1, sT1))
        p('v_mov_b32 v%d, s%d' % (F1 + 7, sT0))
        p('buffer_store_dword v%d, v%d, %s, s%d offen sc1' % (F1 + 7, vZ, srd(SWS), sT1))
    for j in range(1, 7):
        if OPT['rot']:
            p('s_add_u32 s%d, s%d, 128' % (KB[j], KB[j - 1]))
            p('s_cmp_ge_u32 s%d, 896' % KB[j])
            p('s_cselect_b32 s%d, 0, s%d' % (KB[j], KB[j]))
        else: p('s_mov_b32 s%d, %d' % (KB[j], j * 128))
    prev = sT2
    RS7 = [None, None, 38, 39, 34, 35, 3]
    p('s_and_b32 s%d, s%d, 1' % (sHALF, sXCD))
    mk_srd(p, SDSK, 32, 896)
    mk_srd(p, SOUT, 4, 2048 * 1792)
    for k in range(2, 7):
        next_soff(p, RS7[k], prev); prev = RS7[k]
    ssm_rest = []
    for k in range(2, 7): ssm_rest += ssm_dma(k, RS7[k])
    w1g = []
    if OPT['w1pf']:
        p('v_mul_u32_u24 v%d, 3584, v%d' % (vT1, vL))
        p('s_and_b32 s%d, s%d, 3' % (sT1, sR)); p('s_lshl_b32 s%d, s%d, 2' % (sT1, sT1)); p('s_add_u32 s%d, s%d, s%d' % (sT1, sT1, sW))
        p('s_mul_i32 s%d, s%d, %d' % (sT1, sT1, 28 * 3584))
        p('s_lshl_b32 s%d, s%d, 8' % (sT0, sC)); p('s_add_u32 s%d, s%d, s%d' % (sT1, sT1, sT0))
        p('v_add_u32 v%d, s%d, v%d' % (F1 + 2, sT1, vT1))
        w1g = [G('s_mov_b64 exec, 0x0fffffff', 'buffer_load_dword v%d, v%d, %s, 0 offen offset:128' % (F1 + 1, F1 + 2, srd(SW1)), 's_mov_b64 exec, -1', tok='cpf')]
    p('v_lshrrev_b32 v%d, 3, v%d' % (vT0, vL))
    p('v_mul_u32_u24 v%d, 3584, v%d' % (vT0, vT0))
    p('v_lshrrev_b32 v%d, 2, v%d' % (vT1, vL)); p('v_and_b32 v%d, 4, v%d' % (vT1, vT1))
    p('v_and_b32 v%d, 7, v%d' % (vT2, vL)); p('v_xor_b32 v%d, v%d, v%d' % (vT1, vT1, vT2))
    p('v_lshl_add_u32 v%d, v%d, 4, v%d' % (vT0, vT1, vT0))
    p('s_mul_i32 s%d, s%d, %d' % (sT1, sW, 16 * 3584)); p('s_lshl_b32 s%d, s%d, 8' % (sT0, sC)); p('s_add_u32 s%d, s%d, s%d' % (sT1, sT1, sT0))
    p('v_add_u32 v%d, s%d, v%d' % (vW1O[0], sT1, vT0))
    p('v_add_u32 v%d, %d, v%d' % (vW1O[1], 8 * 3584 - 1024, vW1O[0]))
    p('v_lshrrev_b32 v%d, 1, v%d' % (vT0, vP)); p('v_and_b32 v%d, 7, v%d' % (vT0, vT0))
    p('v_xor_b32 v%d, v%d, v%d' % (vT0, vT0, vH)); p('v_lshlrev_b32 v%d, 4, v%d' % (vT0, vT0))
    p('v_lshl_add_u32 v%d, v%d, 7, v%d' % (vT0, vP, vT0))
    p('v_add_u32 v%d, s%d, v%d' % (vRX[0], sLW, vT0))
    for i in range(1, 4): p('v_xor_b32 v%d, %d, v%d' % (vRX[i], i << 5, vRX[0]))
    p('v_lshrrev_b32 v%d, 2, v%d' % (vT0, vL)); p('v_and_b32 v%d, 3, v%d' % (vT0, vT0))
    p('v_lshlrev_b32 v%d, 7, v%d' % (vT1, vT0))
    p('v_lshl_add_u32 v%d, v%d, 10, v%d' % (vT1, vH, vT1))
    p('v_and_b32 v%d, 2, v%d' % (vT0, vT0)); p('v_lshl_add_u32 v%d, v%d, 5, v%d' % (vT1, vT0, vT1))
    p('v_and_b32 v%d, 16, v%d' % (vT0, vL)); p('v_lshl_add_u32 v%d, v%d, 1, v%d' % (vT1, vT0, vT1))
    p('v_and_b32 v%d, 3, v%d' % (vT0, vL)); p('v_lshl_add_u32 v%d, v%d, 3, v%d' % (vRF[0][0], vT0, vT1))
    p('v_add_u32 v%d, %d, v%d' % (vRF[0][0], L0, vRF[0][0]))
    p('v_xor_b32 v%d, 64, v%d' % (vRF[1][0], vRF[0][0]))
    p('v_add_u32 v%d, 0x10000, v%d' % (vRF[0][1], vRF[0][0]))
    p('v_add_u32 v%d, 0x10000, v%d' % (vRF[1][1], vRF[1][0]))
    p('s_mul_i32 s%d, s%d, 4608' % (sT1, sW)); p('s_add_u32 s%d, s%d, %d' % (sT1, sT1, L_TR))
    p('v_mul_u32_u24 v%d, 72, v%d' % (vT0, vP)); p('v_lshl_add_u32 v%d, v%d, 3, v%d' % (vT0, vH, vT0))
    p('v_add_u32 v%d, s%d, v%d' % (vTW, sT1, vT0))
    p('v_lshrrev_b32 v%d, 2, v%d' % (vT0, vL)); p('v_and_b32 v%d, 3, v%d' % (vT0, vT0))
    p('v_lshl_add_u32 v%d, v%d, 3, v%d' % (vT0, vH, vT0)); p('v_mul_u32_u24 v%d, 72, v%d' % (vT0, vT0))
    p('v_and_b32 v%d, 16, v%d' % (vT1, vL)); p('v_lshl_add_u32 v%d, v%d, 1, v%d' % (vT0, vT1, vT0))
    p('v_and_b32 v%d, 3, v%d' % (vT1, vL)); p('v_lshl_add_u32 v%d, v%d, 3, v%d' % (vT0, vT1, vT0))
    p('v_add_u32 v%d, s%d, v%d' % (vTRr, sT1, vT0))
    p('s_mov_b32 s%d, s%d' % (sCB, sROT))
    p('s_lshl_b32 s%d, s%d, 2' % (sT0, sR)); p('s_add_u32 s%d, s%d, s%d' % (sT1, sT0, sW))
    p('s_mul_i32 s%d, s%d, 168' % (sHW, sT1)); p('s_lshl_b32 s%d, s%d, 1' % (sT2, sC)); p('s_add_u32 s%d, s%d, s%d' % (sHW, sHW, sT2))
    p('s_lshl_b32 s%d, s%d, 10' % (sHW, sHW)); p('s_add_u32 s%d, s%d, %d' % (sHW, sHW, WS_HID))
    p('s_lshl_b32 s%d, s%d, 7' % (sFW, sT1)); p('s_lshl_b32 s%d, s%d, 3' % (sT2, sC)); p('s_add_u32 s%d, s%d, s%d' % (sFW, sFW, sT2))
    p('s_add_u32 s%d, s%d, %d' % (sFW, sFW, WS_FL))
    p('s_lshl_b32 s%d, s%d, 1' % (sT2, sHALF)); p('s_add_u32 s%d, s%d, s%d' % (sRT0, sT0, sT2))
    p('s_mul_i32 s%d, s%d, 7' % (sT2, sW))
    p('s_mul_i32 s%d, s%d, 168' % (sH0, sRT0)); p('s_add_u32 s%d, s%d, s%d' % (sH0, sH0, sT2)); p('s_lshl_b32 s%d, s%d, 10' % (sH0, sH0))
    p('s_add_u32 s%d, s%d, %d' % (sH0, sH0, WS_HID)); p('s_add_u32 s%d, s%d, %d' % (sH1, sH0, 168 * 1024))
    p('s_mul_i32 s%d, s%d, 168' % (sW2, sCB)); p('s_add_u32 s%d, s%d, s%d' % (sW2, sW2, sT2)); p('s_lshl_b32 s%d, s%d, 11' % (sW2, sW2))
    p('s_add_u32 s%d, s%d, %d' % (sW2, sW2, WS_W2F))
    p('s_lshr_b32 s%d, s%d, 1' % (sT0, sT2)); p('s_lshl_b32 s%d, 0x000f000f, s%d' % (sPMASK, sT0))
    p('s_lshl_b32 s%d, s%d, 11' % (sT0, sT2)); p('s_add_u32 s%d, s%d, s%d' % (sW2S, sW2, sT0))
    p('s_lshl_b32 s%d, s%d, 10' % (sT0, sT2)); p('s_add_u32 s%d, s%d, s%d' % (sH0S, sH0, sT0))
    p('v_and_b32 v%d, 16, v%d' % (vT0, vL)); p('v_lshlrev_b32 v%d, 3, v%d' % (vT0, vT0))
    p('v_and_b32 v%d, 15, v%d' % (vT1, vL)); p('v_lshl_add_u32 v%d, v%d, 3, v%d' % (vT0, vT1, vT0))
    p('s_lshl_b32 s%d, s%d, 7' % (sT2, sRT0)); p('s_add_u32 s%d, s%d, %d' % (sT2, sT2, WS_FL))
    p('v_add_u32 v%d, s%d, v%d' % (vFA, sT2, vT0))
    A0, A1, Q0, Q1 = TMP + 8, TMP + 9, TMP + 10, TMP + 11
    for a in (A0, A1, Q0, Q1): p('v_mov_b32 v%d, 0' % a)
    for j in range(1, OPT['xup'] + 1):
        for g in x_dma(j): p.extend(g)
        if j == 2 and OPT['gpf'] == 2: p.extend(gpf.ins)
    stamp(p, 'first')
    lam = Prog()
    LT = F1 + 8
    lam_from(lam, TMP + 0, TMP + 1, TMP + 2, L1r, L1i, LT, LT + 1)
    lam('v_sub_f32 v%d, 0, v%d' % (N1i, L1i))
    cmul(lam, L2r, L2i, L1r, L1i, L1r, L1i)
    cmul(lam, L3r, L3i, L2r, L2i, L1r, L1i)
    cmul(lam, L4r, L4i, L2r, L2i, L2r, L2i)
    cmul(lam, LT, LT + 1, L4r, L4i, L4r, L4i)
    cmul(lam, LT + 2, LT + 3, LT, LT + 1, LT, LT + 1)
    cmul(lam, L32r, L32i, LT + 2, LT + 3, LT + 2, LT + 3)
    cmul(lam, LT, LT + 1, L32r, L32i, L32r, L32i)
    cmul(lam, L128r, L128i, LT, LT + 1, LT, LT + 1)
    cmul(lam, L256r, L256i, L128r, L128i, L128r, L128i)
    tagp = Prog()
    tag_setup(tagp, TMP + 28)
    tagp('s_lshr_b32 s%d, s%d, 1' % (sT5, sCB)); tagp('s_lshl_b32 s%d, s%d, 8' % (sT5, sT5))
    tagp('s_lshl_b32 s%d, s%d, 7' % (sPS, sCB)); tagp('s_add_u32 s%d, s%d, 4096' % (sPS, sPS)); tagp('s_sub_u32 s%d, s%d, s%d' % (sPS, sPS, sT5))
    tagp('s_add_u32 s%d, s%d, %d' % (sT5, sT5, WS_PF))
    tagp('v_lshl_add_u32 v%d, v%d, 3, s%d' % (vPF, vP, sT5))
    tagp('s_mul_i32 s%d, s%d, 7' % (sT5, sW)); tagp('s_lshl_b32 s%d, 0x7f, s%d' % (sPM2, sT5))

    def x_read(q, j, slot):
        for i in range(4):
            q('ds_read_b128 %s, v%d offset:%d' % (v4(X + 16 * j + 4 * i), vRX[i], slot * 4096), tok=('xr', j))
    def x_stats(q, j):
        q.waitlgkm(('xr', j))
        for k in range(16):
            r_ = X + 16 * j + k
            q('v_dot2c_f32_bf16 v%d, s%d, v%d' % (A0 if k % 2 == 0 else A1, sONE, r_))
            q('v_dot2c_f32_bf16 v%d, v%d, v%d' % (Q0 if k % 2 == 0 else Q1, r_, r_))
    q = Prog()
    q.waitvm(('x', 0)); stamp(q, 'x0in'); x_read(q, 0, 0)
    for j in range(1, 6):
        q.waitvm(('x', j)); x_read(q, j, j)
        x_stats(q, j - 1)
    q('v_add_u32 v%d, s%d, v%d' % (vT0, sLW, vL16))
    for rg in range(4):
        q('ds_write_b128 v%d, %s offset:%d' % (vT0, v4(F0 + 4 * rg), rg * 1024))
    x_read(q, 6, 0)
    x_stats(q, 5)
    x_stats(q, 6)
    x6 = [G('buffer_load_dwordx4 %s, v%d, %s, s%d offen offset:%d' % (v4(F0 + 4 * rg), vXO[rg], srd(SX), KB[6], rg * 1024)) for rg in range(4)]
    vm = []
    for j in range(OPT['xup'] + 1, 6): vm += x_dma(j)
    NS = OPT.get('ns', 4)
    vm += x6 + share[NSH:] + ([gpf.ins] if OPT['gpf'] == 3 else []) + ssm_rest[:NS]
    st, left = weave(q.ins, vm, OPT.get('perx', 44))
    assert not left, len(left)
    p.extend(st)
    stamp(p, 'x_in')
    w1k = Prog()
    for j in range(7): w1k('s_mul_i32 s%d, s%d, 1792' % (W1K[j], KB[j]))
    dma = []
    for dt in range(2):
        for j in range(7 if dt == 0 else 5):
            for e in range(2):
                l_off = (0 if dt == 0 else 14336 - 128) + 2 * j * 1024
                dma.append((G('s_add_u32 m0, s%d, %d' % (sLW, l_off)) if e == 0 else []) + G(
                    'buffer_load_dwordx4 v%d, %s, s%d offen offset:%d lds' % (vW1O[e], srd(SW1), W1K[j], 128 * dt + 1024 * e), tok='ffnA' if dt == 0 else 'ffnB'))
    q = Prog()
    q('v_add_f32 v%d, v%d, v%d' % (A0, A0, A1)); q('v_add_f32 v%d, v%d, v%d' % (Q0, Q0, Q1))
    q('v_mov_b32 v%d, v%d' % (A1, A0)); q('v_mov_b32 v%d, v%d' % (Q1, Q0))
    q('v_permlane32_swap_b32 v%d, v%d' % (A0, A1)); q('v_permlane32_swap_b32 v%d, v%d' % (Q0, Q1))
    q('v_add_f32 v%d, v%d, v%d' % (A0, A0, A1)); q('v_add_f32 v%d, v%d, v%d' % (Q0, Q0, Q1))
    q('v_mul_f32 v%d, 0x3b124925, v%d' % (A0, A0))
    q('v_mul_f32 v%d, 0x3b124925, v%d' % (Q0, Q0))
    q('v_fma_f32 v%d, -v%d, v%d, v%d' % (Q0, A0, A0, Q0))
    q('v_max_f32 v%d, 0, v%d' % (Q0, Q0))
    bf16_round(q, vM, A0)
    bf16_round(q, Q0, Q0)
    q('v_add_f32 v%d, 0x3727c5ac, v%d' % (Q0, Q0))
    bf16_round(q, Q0, Q0)
    q('v_sqrt_f32 v%d, v%d' % (Q0, Q0))
    bf16_round(q, vS, Q0)
    q('v_rcp_f32 v%d, v%d' % (vRSv, vS))
    q('s_lshl_b32 s%d, s%d, 7' % (sT3, sW))
    q('v_lshl_add_u32 v%d, v%d, 2, s%d' % (vT0, vP, sT3))
    q('v_mul_f32 v%d, 0x%x, v%d' % (vNK, NLOG2E, vRSv))
    q('ds_write_b32 v%d, v%d offset:%d' % (vT0, vRSv, L_RS))
    q('v_lshlrev_b32 v%d, 1, v%d' % (vT0, vT0))
    q('v_mov_b32 v%d, v%d' % (TMP + 12, vM)); q('v_mov_b32 v%d, v%d' % (TMP + 13, vRSv))
    q('ds_write_b64 v%d, v[%d:%d] offset:%d' % (vT0, TMP + 12, TMP + 13, L_MR))
    q('s_sub_u32 s%d, %d, s%d' % (sT4, L_SW, sLW))
    for i in range(4): q('v_add_u32 v%d, s%d, v%d' % (vRX[i], sT4, vRX[i]))
    if OPT['stamps']: q('v_mov_b32 v%d, 0' % vRSv)

    def d_step(ks, mode=0):
        z = Prog()
        if mode == 1:
            for k in range(4):
                z('v_dot2_f32_bf16 v%d, v%d, s%d, v%d' % (TMP + 8 + 2 * k, X + 4 * ks + k, sSELL, vNM))
                z('v_dot2_f32_bf16 v%d, v%d, s%d, v%d' % (TMP + 9 + 2 * k, X + 4 * ks + k, sSELH, vNM))
            for k in range(4):
                z('v_cvt_pk_bf16_f32 v%d, v%d, v%d' % (X + 4 * ks + k, TMP + 8 + 2 * k, TMP + 9 + 2 * k))
            return z.ins
        if mode == 2:
            for k in range(4):
                r_ = X + 4 * ks + k; lo = TMP + 8 + 2 * (k % 2)
                z('v_lshlrev_b32 v%d, 16, v%d' % (lo, r_))
                z('v_and_b32 v%d, s%d, v%d' % (lo + 1, sMHI, r_))
                z('v_pk_add_f32 v[%d:%d], v[%d:%d], v[%d:%d] op_sel_hi:[1,0]' % (lo, lo + 1, lo, lo + 1, vNM, vNM + 1))
                z('v_cvt_pk_bf16_f32 v%d, v%d, v%d' % (r_, lo, lo + 1))
            return z.ins
        for k in range(4):
            r_ = X + 4 * ks + k; lo, hi = TMP + 8 + 2 * (k % 2), TMP + 9 + 2 * (k % 2)
            z('v_lshlrev_b32 v%d, 16, v%d' % (lo, r_))
            z('v_and_b32 v%d, s%d, v%d' % (hi, sMHI, r_))
            z('v_sub_f32 v%d, v%d, v%d' % (lo, lo, vM))
            z('v_sub_f32 v%d, v%d, v%d' % (hi, hi, vM))
            z('v_cvt_pk_bf16_f32 v%d, v%d, v%d' % (r_, lo, hi))
        return z.ins
    LEAD = OPT['lead']
    q('v_sub_f32 v%d, 0, v%d' % (vNM, vM))
    q('s_mov_b32 s%d, 0x3f80' % sSELL); q('s_mov_b32 s%d, 0x3f800000' % sSELH)
    for ks in range(LEAD): q.extend(d_step(ks, 1 if OPT['dot'] else 0))
    q.extend(tagp.ins)
    stamp(q, 'lead')
    q.waitvm('ssmw')
    stamp(q, 'Win')
    q('s_barrier')
    stamp(q, 'B1')
    def wbuf(n): return WB + 4 * (n % 8)
    def ssm_read(n):
        ks, T = n // 2, n % 2
        return G('ds_read_b128 %s, v%d offset:%d' % (v4(wbuf(n)), vRX[ks % 4], T * 28672 + (ks // 4) * 4096), tok=('wf', n))
    PRE = 6
    for n in range(PRE): q.extend(ssm_read(n))
    groups = []
    for ks in range(28):
        z = Prog()
        z.waitlgkm(('wf', 2 * ks + 1))
        for T in range(2):
            n = 2 * ks + T; acc = SRE if T == 0 else SIM
            z('v_mfma_f32_32x32x16_bf16 %s, %s, %s, %s' % (v16(acc), v4(X + 4 * ks), v4(wbuf(n)), '0' if ks == 0 else v16(acc)))
            if n + PRE < 56: z.extend(ssm_read(n + PRE))
            groups.append(z.ins); z = Prog()
    fill = []
    for ks in range(LEAD, 28): fill += d_step(ks, 2 if OPT['pk'] else 0)
    fill = fill + lam.ins
    k = 0
    span = OPT.get('span', 54)
    for n, g in enumerate(groups):
        q.extend(g)
        tgt = min(len(fill), (len(fill) * (n + 1)) // span)
        q.extend(fill[k:tgt]); k = tgt
    done = set(range(X, X + 4 * LEAD))
    for i in q.ins:
        if i.op == 'v_cvt_pk_bf16_f32' and X <= i.wr[0][1] < X + 112: done.add(i.wr[0][1])
        if i.kind == 'mfma': assert all(r[1] in done for r in i.rd if r[0] == 'v' and X <= r[1] < X + 112), i.text
    RSF = TMP + 8
    q('v_lshl_add_u32 v%d, v%d, 4, s%d' % (vT0, vH, sT3))
    for g in range(4):
        q('ds_read_b128 %s, v%d offset:%d' % (v4(RSF + 4 * g), vT0, L_RS + 32 * g))
    def pf(T):
        if T < 4: return 'buffer_load_dwordx2 v[%d:%d], v%d, %s, 0 offen offset:%d sc1' % (FR, FR + 1, vPF, srd(SWS), 1024 * T)
        return 'buffer_load_dwordx2 v[%d:%d], v%d, %s, s%d offen sc1' % (FR, FR + 1, vPF, srd(SWS), sPS)
    w2_regs = {}
    w2_state = {'last': None}
    def w2_load(idx, reg):
        if idx < 56: base, off = sW2, ((idx // 14) * 28 + (idx % 14) // 2) * 2048 + (idx % 2) * 1024
        else: base, off = sW2S, (112 + (idx - 56) // 2) * 2048 + (idx % 2) * 1024
        z = Prog()
        key = (base, off - off % 4096)
        if w2_state['last'] != key:
            z('s_add_u32 s%d, s%d, %d' % (sT5, base, off - off % 4096)); w2_state['last'] = key
        if isinstance(reg, tuple):
            mk = (reg[1], reg[2] - off % 4096 + 4096)
            if w2_state.get('m0') != mk:
                z('s_add_u32 m0, s%d, %d' % mk); w2_state['m0'] = mk
            z('buffer_load_dwordx4 v%d, %s, s%d offen offset:%d sc1 lds' % (vL16, srd(SWS), sT5, off % 4096), tok=('w2', idx))
        else:
            z('buffer_load_dwordx4 %s, v%d, %s, s%d offen offset:%d sc1' % (v4(reg), vL16, srd(SWS), sT5, off % 4096), tok=('w2', idx))
        w2_regs[idx] = reg
        return z.ins
    def w2_dest(i):
        if i < 56: return 256 + 4 * i
        if i < 61: return ('lds', sLT, (i - 56) * 1024)
        return ('lds', sLA, (i - 61) * 1024)
    NW2 = 75 if OPT['ldsw2'] else 56
    w2q = []
    for T in range(5):
        lo, hi_ = 14 * T, (14 * T + 14 if T < 4 else NW2)
        if lo >= hi_: break
        Tp = T if not OPT.get('p3only', 1) else {0: 0, 1: 3, 2: None, 3: None, 4: 4}[T]
        nx = (T + 1 if T < 4 else None) if not OPT.get('p3only', 1) else {0: 3, 1: 4}.get(T)
        if Tp is not None: w2q.append(poll_check('p%d' % Tp, ('s%d' % sPM2) if Tp < 4 else '0x7f7f', pf(Tp)))
        for i in range(lo, hi_):
            g = w2_load(i, w2_dest(i))
            if i == 61: g = [Ins('; need B4')] + g
            w2q.append(g)
            if nx is not None and (nx != 4 or not OPT.get('p3only', 1)) and i == lo + 1: w2q.append(G(pf(nx)))
            if OPT.get('p3only', 1) and i == OPT.get('psidx', 27): w2q.append(G(pf(4)))
    w2i = NW2
    dmaA, dmaB = dma[:14], dma[14:]
    vm = ssm_rest[NS:] + [w1k.ins + dmaA[0]] + dmaA[1:] + w1g + dmaB
    w2q[0] = [Ins('; at %d' % OPT['tc'])] + w2q[0]
    if OPT['w2early']: vm += w2q
    st, carry = weave(q.ins, vm, OPT['per'], 0, OPT['perd'], events=[(OPT['tp'], G(pf(0)))])
    kt = [k for k, i in enumerate(st) if i.text.startswith('v_lshl_add_u32 v%d' % vPF)][0]
    kp = [k for k, i in enumerate(st) if i.text == pf(0)][0]
    assert kt < kp
    if carry and carry[0][0].text.startswith('; at'): carry[0] = carry[0][1:]
    if not OPT['w2early']: carry += w2q
    assert not any(x.tok in ('ffnA', 'ssmw') for g in carry for x in g)
    pos_b = [k for k, i in enumerate(st) if i.kind == 'barrier'][0]
    assert not any(i.tok == 'ssmw' for i in st[pos_b:]), 'SSM DMA after B1'
    p.extend(st)
    stamp(p, 'ssmend')
    p.waitvm('ffnA')
    stamp(p, 'Ain')
    p('s_waitcnt lgkmcnt(0)')
    p('s_barrier')
    stamp(p, 'B2')
    p('s_lshl_b32 s%d, s%d, 13' % (sT4, sC)); p('s_add_u32 s%d, s%d, %d' % (sT4, sT4, WS_EG))
    p('s_add_u32 s%d, s6, s%d' % (SEG, sT4)); p('s_addc_u32 s%d, s7, 0' % (SEG + 1))
    p('s_mov_b32 s%d, 8192' % (SEG + 2)); p('s_mov_b32 s%d, 0x20000' % (SEG + 3))
    p('s_lshl_b32 s%d, s%d, 12' % (sT2, sW))
    p('s_mul_i32 s%d, s%d, 5120' % (sLT, sW)); p('s_add_u32 s%d, s%d, %d' % (sLT, sLT, L_WT - 4096))
    p('s_sub_u32 s%d, s%d, 4096' % (sLA, sLW))
    tail_dma = []
    for j in (5, 6):
        for e in range(2):
            tail_dma.append((G('s_add_u32 m0, s%d, %d' % (sT2, L_SW - 128 + 2 * (j - 5) * 1024)) if e == 0 else []) + G(
                'buffer_load_dwordx4 v%d, %s, s%d offen offset:%d lds' % (vW1O[e], srd(SW1), W1K[j], 128 + 1024 * e), tok='ffnB'))

    def ffn_read(T, ks, n):
        dt, tt = T // 2, T % 2
        j, i = ks // 4, ks % 4
        if dt == 0: U = i * L_XW + 2 * j * 1024
        elif j <= 4: U = i * L_XW + 14336 + 2 * j * 1024
        else: U = L_SW - L0 + i * 4096 + 2 * (j - 5) * 1024
        z = Prog()
        for hh in range(2):
            off = U + hh * 512; win = 0
            if off >= 65536: off -= 65536; win = 1
            z('ds_read_b64_tr_b16 %s, v%d offset:%d' % (v2(wbuf(n) + 2 * hh), vRF[tt][win], off), tok=('wf', n))
        return z.ins
    def silu(T):
        acc = F0 if T % 2 == 0 else F1
        z = Prog()
        tp = [vT0, vT1, vT2, vBO]
        for b in range(0, 16, 4):
            for k in range(4): z('v_mul_f32 v%d, v%d, v%d' % (tp[k], vNK, acc + b + k))
            for k in range(4): z('v_exp_f32 v%d, v%d' % (tp[k], tp[k]))
            for k in range(4): z('v_fma_f32 v%d, v%d, v%d, v%d' % (tp[k], tp[k], vS, vS))
            for k in range(4): z('v_rcp_f32 v%d, v%d' % (tp[k], tp[k]))
            for k in range(4): z('v_mul_f32 v%d, v%d, v%d' % (acc + b + k, acc + b + k, tp[k]))
            z('v_cvt_pk_bf16_f32 v%d, v%d, v%d' % (acc + b // 2, acc + b, acc + b + 1))
            z('v_cvt_pk_bf16_f32 v%d, v%d, v%d' % (acc + b // 2 + 1, acc + b + 2, acc + b + 3))
            if b == 4:
                z('s_add_u32 s%d, s%d, %d' % (sT2, sHW, T * 28 * 1024))
                z('buffer_store_dwordx4 %s, v%d, %s, s%d offen%s' % (v4(acc), vL16, srd(SWS), sT2, HSC), tok=('hs', T))
        z('buffer_store_dwordx4 %s, v%d, %s, s%d offen offset:1024%s' % (v4(acc + 4), vL16, srd(SWS), sT2, HSC), tok=('hs', T))
        return z.ins
    E0r, E0i, E1r, E1i = vXO[0], vXO[1], vXO[2], vXO[3]
    def scan1():
        z = Prog()
        for g in range(4):
            for i in range(4):
                z('v_mul_f32 v%d, v%d, v%d' % (SRE + 4 * g + i, RSF + 4 * g + i, SRE + 4 * g + i))
                z('v_mul_f32 v%d, v%d, v%d' % (SIM + 4 * g + i, RSF + 4 * g + i, SIM + 4 * g + i))
        for i in range(1, 4):
            for g in range(4):
                a, b = SRE + 4 * g + i, SIM + 4 * g + i
                z('v_fmac_f32 v%d, v%d, v%d' % (a, L1r, a - 1))
                z('v_fmac_f32 v%d, v%d, v%d' % (b, L1r, b - 1))
                z('v_fmac_f32 v%d, v%d, v%d' % (a, N1i, b - 1))
                z('v_fmac_f32 v%d, v%d, v%d' % (b, L1i, a - 1))
        for g in range(4):
            b = RSF + 4 * g
            z('v_mov_b32 v%d, v%d' % (b, SRE + 4 * g + 3)); z('v_mov_b32 v%d, v%d' % (b + 1, SRE + 4 * g + 3))
            z('v_mov_b32 v%d, v%d' % (b + 2, SIM + 4 * g + 3)); z('v_mov_b32 v%d, v%d' % (b + 3, SIM + 4 * g + 3))
        for g in range(4):
            b = RSF + 4 * g
            z('v_permlane32_swap_b32 v%d, v%d' % (b, b + 1)); z('v_permlane32_swap_b32 v%d, v%d' % (b + 2, b + 3))
        cur = (RSF, RSF + 2); nxt = [(E0r, E0i), (E1r, E1i)]
        for s in range(1, 8):
            g, h = s // 2, s % 2
            er, ei = RSF + 4 * g + h, RSF + 4 * g + 2 + h
            d = nxt[s % 2]
            z('v_fma_f32 v%d, v%d, v%d, v%d' % (d[0], L4r, cur[0], er))
            z('v_fma_f32 v%d, v%d, v%d, v%d' % (d[1], L4r, cur[1], ei))
            z('v_fma_f32 v%d, -v%d, v%d, v%d' % (d[0], L4i, cur[1], d[0]))
            z('v_fmac_f32 v%d, v%d, v%d' % (d[1], L4i, cur[0]))
            cur = d
        z('s_lshl_b32 s%d, s%d, 8' % (sT4, sW))
        z('v_lshl_add_u32 v%d, v%d, 3, s%d' % (vT0, vP, sT4))
        z('ds_write_b64 v%d, v[%d:%d] offset:%d' % (vT0, E1r, E1i, L_EW), tok='ew')
        return z.ins
    def fl_load(stage): return 'buffer_load_dwordx2 v[%d:%d], v%d, %s, s%d offen sc1' % (FR2, FR2 + 1, vFA, srd(SWS), sT6)
    def fl_issue(stage): return G('s_mov_b32 s%d, %d' % (sT6, stage * 8192), fl_load(stage))
    n0 = 56
    seq = [(T, ks) for T in range(4) for ks in range(28)]
    for m in range(PRE): p.extend(ffn_read(seq[m][0], seq[m][1], n0 + m))
    EWR = TMP + 0
    LB = X
    lbp = Prog()
    lbp('s_sub_u32 s%d, s%d, 1' % (sT0, sR)); lbp('s_lshl_b32 s%d, s%d, 9' % (sT0, sT0))
    lbp('v_lshlrev_b32 v%d, 9, v%d' % (vRX[1], vH))
    lbp('v_sub_u32 v%d, s%d, v%d' % (vRX[1], sT0, vRX[1]))
    lbp('v_lshl_add_u32 v%d, v%d, 4, v%d' % (vRX[0], vP, vRX[1]))
    lb_groups = []
    for m in range(8):
        z = Prog()
        if m: z('v_subrev_u32 v%d, %d, v%d' % (vRX[1], 1024 * m, vRX[0]))
        z('buffer_load_dwordx4 %s, v%d, %s, 0 offen sc1' % (v4(LB + 4 * m), vRX[1] if m else vRX[0], srd(SEG)))
        lb_groups.append(z.ins)
    lb_text = '\n'.join(i.text for g in lb_groups for i in g)
    pool = []
    hid_regs = {}
    hstate = {0: None, 1: None}
    def hid_load(idx):
        rt = idx % 2
        if idx < 56: base, off = (sH0, sH1)[rt], ((idx // 14) * 28 + (idx % 14) // 2) * 1024
        else: base, off = (sH0S, sH1S)[rt], (112 + (idx - 56) // 2) * 1024
        reg = pool.pop(0); hid_regs[idx] = reg
        sreg = sT3 if rt == 0 else sT4
        z = Prog()
        key = (base, off - off % 4096)
        if hstate[rt] != key:
            z('s_add_u32 s%d, s%d, %d' % (sreg, base, off - off % 4096)); hstate[rt] = key
        z('buffer_load_dwordx4 %s, v%d, %s, s%d offen offset:%d sc1' % (v4(reg), vL16, srd(SWS), sreg, off % 4096), tok=('hid', idx))
        return z.ins
    stage_of = lambda idx: min(idx // 14, 4)
    hi = 0
    checked = set()
    def hid_next():
        nonlocal hi
        assert stage_of(hi) in checked
        g = hid_load(hi); hi += 1
        return g
    def fl_check(st):
        checked.add(st)
        return poll_check('f%d' % st, 's%d' % sPMASK, fl_load(0), FR2)
    def split_at_need(vm):
        for k, g in enumerate(vm):
            if g and g[0].text == '; need B4': return vm[:k], vm[k:]
        return vm, []
    for T in range(4):
        groups = []
        acc = F0 if T % 2 == 0 else F1
        for ks in range(28):
            m = T * 28 + ks
            z = Prog()
            if ks % 2 == 0: z.waitlgkm(('wf', n0 + m + 1))
            z('v_mfma_f32_32x32x16_bf16 %s, %s, %s, %s' % (v16(acc), v4(wbuf(n0 + m)), v4(X + 4 * ks), '0' if ks == 0 else v16(acc)))
            if (T, ks) == (2, 0): z('s_barrier')
            if m + PRE < 112:
                z.extend(ffn_read(seq[m + PRE][0], seq[m + PRE][1], n0 + m + PRE))
            groups.append(z.ins)
        q = Prog()
        held = []; ev = []
        if T == 0:
            q.extend(groups[0]); q.extend(groups[1])
            q.extend(interleave(groups[2:], scan1()))
            nb = [g for g in carry if any(x.tok == 'ffnB' for x in g)]
            k = max([carry.index(g) for g in nb]) + 1 if nb else 0
            vm = carry[:k] + tail_dma + carry[k:]
        elif T == 1:
            pre = Prog()
            GE = vXO[0]
            pre('v_fma_f32 v%d, v%d, v%d, v%d' % (vT0, L32r, EWR, EWR + 2)); pre('v_fma_f32 v%d, v%d, v%d, v%d' % (vT1, L32r, EWR + 1, EWR + 3))
            pre('v_fma_f32 v%d, -v%d, v%d, v%d' % (vT0, L32i, EWR + 1, vT0)); pre('v_fmac_f32 v%d, v%d, v%d' % (vT1, L32i, EWR))
            pre('v_fma_f32 v%d, v%d, v%d, v%d' % (vT2, L32r, vT0, EWR + 4)); pre('v_fma_f32 v%d, v%d, v%d, v%d' % (vT3, L32r, vT1, EWR + 5))
            pre('v_fma_f32 v%d, -v%d, v%d, v%d' % (vT2, L32i, vT1, vT2)); pre('v_fmac_f32 v%d, v%d, v%d' % (vT3, L32i, vT0))
            pre('v_fma_f32 v%d, v%d, v%d, v%d' % (GE, L32r, vT2, EWR + 6)); pre('v_fma_f32 v%d, v%d, v%d, v%d' % (GE + 1, L32r, vT3, EWR + 7))
            pre('v_fma_f32 v%d, -v%d, v%d, v%d' % (GE, L32i, vT3, GE)); pre('v_fmac_f32 v%d, v%d, v%d' % (GE + 1, L32i, vT2))
            pre('v_mov_b32 v%d, s%d' % (GE + 2, sTL)); pre('v_mov_b32 v%d, s%d' % (GE + 3, sTH))
            pre('s_lshl_b32 s%d, s%d, 3' % (sT4, sW)); pre('s_lshl_b32 s%d, 0xff, s%d' % (sT4, sT4))
            pre('s_lshl_b32 s%d, s%d, 9' % (sT0, sR))
            egs = G('s_mov_b32 exec_lo, s%d' % sT4, 's_mov_b32 exec_hi, 0',
                    'buffer_store_dwordx4 %s, v%d, %s, s%d offen sc1' % (v4(GE), vL16, srd(SEG), sT0), 's_mov_b64 exec, -1')
            q.extend(interleave(groups[:5], pre.ins)); q.extend(egs)
            q.extend(interleave(groups[5:OPT['send'] + 1], silu(0)))
            for g in groups[OPT['send'] + 1:]: q.extend(g)
            vm = carry
        else:
            q.extend(groups[0]); q.extend(groups[1]); q.extend(groups[2])
            q.extend(interleave(groups[3:OPT['send']], silu(T - 1)))
            for g in groups[OPT['send']:]: q.extend(g)
            if T == 2:
                vm = carry; ev = [(OPT['tf'], flag_group(sFW, 0, ('hs', 0)))]
            else:
                lbs = [[Ins('; after 9')] + lbp.ins + lb_groups[0] + lb_groups[1] + lb_groups[2] + lb_groups[3], lb_groups[4] + lb_groups[5] + lb_groups[6] + lb_groups[7]]
                for g in lbs:
                    for x in g: x.text = x.text
                vm = carry
                ev = [(420, lbs[0][1:]), (520, lbs[1]), (OPT['tf'], flag_group(sFW, 8192, ('hs', 1))), (OPT['tp0'], fl_issue(0))]
        if T < 2: vm, held = split_at_need(vm)
        st, carry = weave(q.ins, vm, OPT['per'], 60 if T == 2 else 0, OPT['perd'], small=(SEG,), events=ev)
        carry += held
        if T == 3:
            mf = [k for k, i in enumerate(st) if i.kind == 'mfma']
            pos_l = [k for k, i in enumerate(st) if i.kind == 'vload' and 's[%d:%d]' % (SEG, SEG + 3) in i.text]
            assert len(pos_l) == 8 and pos_l[0] > mf[7], (pos_l, mf[7])
            pos_h = [k for k, i in enumerate(st) if isinstance(i.tok, tuple) and i.tok[0] == 'hid']
            assert not pos_h or pos_h[0] > mf[11]
        p.extend(st)
        if T == 0:
            assert not any(x.tok == 'ffnB' for g in carry for x in g)
            p.waitlgkm('ew'); p.waitvm('ffnB')
            p('s_barrier')
            p('v_lshlrev_b32 v%d, 3, v%d' % (vT0, vP))
            for k in range(4): p('ds_read_b64 v[%d:%d], v%d offset:%d' % (EWR + 2 * k, EWR + 2 * k + 1, vT0, L_EW + 256 * k))
        stamp(p, 'T%d' % T)
        print('after T%d: %d groups pending' % (T, len(carry)))
    pool += [WB + 4 * k for k in range(8)] + [F0 + 4 * k for k in range(4)] + [X + 32 + 4 * k for k in range(4)]
    p('s_add_u32 s%d, s%d, %d' % (sH1S, sH0S, 168 * 1024))

    q = Prog()
    s3 = silu(3)
    q.extend(s3)
    stamp(q, 'silu3')
    def lb_check(z, lab_bad):
        z('v_add3_u32 v%d, v%d, v%d, v%d' % (vT0, LB + 2, LB + 6, LB + 10)); z('v_add3_u32 v%d, v%d, v%d, v%d' % (vT1, LB + 3, LB + 7, LB + 11))
        z('v_add3_u32 v%d, v%d, v%d, v%d' % (vT0, vT0, LB + 14, LB + 18)); z('v_add3_u32 v%d, v%d, v%d, v%d' % (vT1, vT1, LB + 15, LB + 19))
        z('v_add3_u32 v%d, v%d, v%d, v%d' % (vT0, vT0, LB + 22, LB + 26)); z('v_add3_u32 v%d, v%d, v%d, v%d' % (vT1, vT1, LB + 23, LB + 27))
        z('v_add_u32 v%d, v%d, v%d' % (vT0, vT0, LB + 30)); z('v_add_u32 v%d, v%d, v%d' % (vT1, vT1, LB + 31))
        k0 = len(z.ins)
        z('v_cmp_ne_u32 vcc, v%d, v%d' % (vT0, vT2))
        z('v_cmp_ne_u32 s[%d:%d], v%d, v%d' % (sP0, sP0 + 1, vT1, vT3))
        z('s_nop 1')
        z('s_or_b64 vcc, vcc, s[%d:%d]' % (sP0, sP0 + 1))
        z('s_cbranch_scc1 %s' % lab_bad)
        for i in z.ins[k0:]: i.note = 'glue'
    q('v_sub_u32 v%d, s%d, v%d' % (vT3, sR, vH)); q('v_add_u32 v%d, 1, v%d' % (vT3, vT3)); q('v_lshrrev_b32 v%d, 1, v%d' % (vT3, vT3))
    q('v_mul_lo_u32 v%d, s%d, v%d' % (vT2, sTL, vT3)); q('v_mul_lo_u32 v%d, s%d, v%d' % (vT3, sTH, vT3))
    lb_check(q, 'L_retry_lb')
    q('L_ok_lb:')
    stamp(q, 'lbok')
    z = Prog()
    z('L_retry_lb:'); z('s_mov_b32 s%d, 0' % sSPIN); z('L_loop_lb:'); z('s_sleep 1'); z(lb_text); z('s_waitcnt vmcnt(0)')
    if OPT['stamps']: z('v_add_u32 v%d, 0x100, v%d' % (vRSv, vRSv))
    z('s_add_u32 s%d, s%d, 1' % (sSPIN, sSPIN)); z('s_cmp_gt_u32 s%d, %d' % (sSPIN, OPT['spin'])); z('s_cbranch_scc1 L_ok_lb')
    lb_check(z, 'L_loop_lb'); z('s_branch L_ok_lb')
    retry_blocks.append(z)
    for m in range(6, -1, -1):
        cmac(q, LB + 4 * m, LB + 4 * m + 1, L256r, L256i, LB + 4 * m + 4, LB + 4 * m + 5)
    q('v_mov_b32 v%d, v%d' % (LB + 4, LB)); q('v_mov_b32 v%d, v%d' % (LB + 5, LB + 1))
    q('v_permlane32_swap_b32 v%d, v%d' % (LB, LB + 4)); q('v_permlane32_swap_b32 v%d, v%d' % (LB + 1, LB + 5))
    cmac(q, LB, LB + 1, L128r, L128i, LB + 4, LB + 5)
    cmac(q, EWR, EWR + 1, L32r, L32i, LB, LB + 1)
    cmac(q, EWR + 2, EWR + 3, L32r, L32i, EWR, EWR + 1)
    cmac(q, EWR + 4, EWR + 5, L32r, L32i, EWR + 2, EWR + 3)
    CS = LB + 8
    q('v_mov_b32 v%d, v%d' % (CS, LB)); q('v_mov_b32 v%d, v%d' % (CS + 1, LB + 1))
    for k in range(3):
        k0 = len(q.ins)
        q('s_cmp_eq_u32 s%d, %d' % (sW, k + 1)); q('s_cselect_b64 vcc, -1, 0')
        q('v_cndmask_b32 v%d, v%d, v%d, vcc' % (CS, CS, EWR + 2 * k))
        for i in q.ins[k0:]: i.note = 'glue'
        q('v_cndmask_b32 v%d, v%d, v%d, vcc' % (CS + 1, CS + 1, EWR + 2 * k + 1))
    for s in range(7):
        g, h = s // 2, s % 2
        er, ei = RSF + 4 * g + h, RSF + 4 * g + 2 + h
        d, cur = CS + 2 * (s + 1), CS + 2 * s
        q('v_fma_f32 v%d, v%d, v%d, v%d' % (d, L4r, cur, er))
        q('v_fma_f32 v%d, v%d, v%d, v%d' % (d + 1, L4r, cur + 1, ei))
        q('v_fma_f32 v%d, -v%d, v%d, v%d' % (d, L4i, cur + 1, d))
        q('v_fmac_f32 v%d, v%d, v%d' % (d + 1, L4i, cur))
    k0 = len(q.ins)
    q('s_mov_b32 vcc_lo, 0'); q('s_mov_b32 vcc_hi, -1')
    for g in range(4):
        a = CS + 4 * g
        q('v_cndmask_b32 v%d, v%d, v%d, vcc' % (a, a, a + 2))
        q('v_cndmask_b32 v%d, v%d, v%d, vcc' % (a + 1, a + 1, a + 3))
    for i in q.ins[k0:-1]: i.note = 'glue'
    for g in range(4):
        a = CS + 4 * g
        q('v_sub_f32 v%d, 0, v%d' % (a + 2, a + 1))
    stamp(q, 'carry')
    q.extend(epilogue_loads())
    PW = [(L1r, L1i), (L2r, L2i), (L3r, L3i), (L4r, L4i)]
    for g in range(4):
        a = CS + 4 * g
        for i in range(4):
            ur, ui = SRE + 4 * g + i, SIM + 4 * g + i
            q('v_fmac_f32 v%d, v%d, v%d' % (ur, PW[i][0], a))
            q('v_fmac_f32 v%d, v%d, v%d' % (ui, PW[i][0], a + 1))
            q('v_fmac_f32 v%d, v%d, v%d' % (ur, PW[i][1], a + 2))
            q('v_fmac_f32 v%d, v%d, v%d' % (ui, PW[i][1], a))
        for comp, base in ((0, SRE), (1, SIM)):
            b = base + 4 * g
            q('v_cvt_pk_bf16_f32 v%d, v%d, v%d' % (b, b, b + 1))
            q('v_cvt_pk_bf16_f32 v%d, v%d, v%d' % (b + 1, b + 2, b + 3))
            q('ds_write_b64 v%d, v[%d:%d] offset:%d' % (vTW, b, b + 1, comp * 2304 + 16 * g))
    stamp(q, 'fix')
    HS = F1
    for comp in range(2):
        for q_ in range(2):
            for hh in range(2):
                q('ds_read_b64_tr_b16 %s, v%d offset:%d' % (v2(HS + 8 * comp + 4 * q_ + 2 * hh), vTRr, comp * 2304 + (16 * q_ + 4 * hh) * 72))
    q('s_lshl_b32 s%d, s%d, 11' % (sT2, sC)); q('s_add_u32 s%d, s%d, s%d' % (sT2, sT2, sHW)); q('s_add_u32 s%d, s%d, %d' % (sT2, sT2, 112 * 1024))
    for _ in range(10): q('; pad')
    for f in range(4):
        q('buffer_store_dwordx4 %s, v%d, %s, s%d offen offset:%d%s' % (v4(HS + 4 * f), vL16, srd(SWS), sT2, f * 1024, HSC), tok='hsC')
    vm = carry[:5] + [[Ins('; at %d' % OPT['tc0'])] + fl_check(0)] + [hid_next() for _ in range(14)] + carry[5:]
    ev = [(OPT['tp1'], fl_issue(1)), (OPT['tf2'], flag_group(sFW, 2 * 8192, ('hs', 2)))]
    q.ins = [i for i in q.ins if not i.text.startswith('; mark')]
    st, left = weave(q.ins, vm, OPT['perh'], events=ev)
    k0 = [k for k, i in enumerate(st) if i.text == 'L_ok_f0:'][0]; k1 = [k for k, i in enumerate(st) if i.text.startswith('s_mov_b32 s%d, 8192' % sT6)][0]
    assert k0 < k1
    p.extend(st)
    pool += [F1 + 4 * k for k in range(4)] + [SRE + 4 * k for k in range(8)] + [204 + 4 * k for k in range(5)]
    fillr = epilogue_pre()
    ACC = {(0, 0): X + 48, (0, 1): X + 64, (1, 0): X + 80, (1, 1): X + 96}
    fk = 0
    when = {}
    p('v_add_u32 v%d, s%d, v%d' % (vFA2, sLT, vL16)); p('v_add_u32 v%d, s%d, v%d' % (vFA3, sLA, vL16))
    pstep = {OPT['p2']: 2, OPT['p3']: 3, OPT['p4']: 4}
    cstep = {OPT['c1']: 1, OPT['p2'] + OPT['pd']: 2, OPT['p3'] + OPT['pd']: 3, OPT['p4'] + OPT['pd']: 4}
    real_p = p
    late = []
    for step in range(42):
        if step in (0, 7, 14, 21, 28, 35) or OPT.get('allg'): stamp(real_p, 'g%d' % step)
        side = []
        while any((isinstance(x.tok, tuple) and x.tok[0] == 'hid') or 's_mov_b32 s%d' % sT6 in x.text for g in left for x in g):
            (real_p.extend if step == 0 else side.append)(left.pop(0))
        if step == OPT['f3']: side.append(flag_group(sFW, 3 * 8192, ('hs', 3)))
        if step == OPT['f4']: side.append(flag_group(sFW, 4 * 8192, 'hsC'))
        if step in cstep: side.append(fl_check(cstep[step]))
        if step in pstep:
            assert pstep[step] - 1 in checked
            side.append(fl_issue(pstep[step]))
        nh = 0
        while hi < 84 and hi < 2 * step + 4 + OPT['ahead'] and pool and stage_of(hi) in checked and nh < OPT.get('maxh', 4): side.append(hid_next()); nh += 1
        for rep in range(2):
            if rep == 1 and len(left) + 84 - w2i <= max(0, 30 - step): break
            if left: side.append(left.pop(0))
            elif w2i < 84 and len(pool) > 2 and step >= OPT.get('w2s', 2) and nh < 3:
                reg = pool.pop(0); side.append(w2_load(w2i, reg)); w2i += 1
        if step == OPT.get('ots', 30) and OPT['tch'] & 4:
            side.append(G('s_mov_b64 exec, 1', 'buffer_load_dword v%d, v%d, %s, s%d offen' % (vT3, vZ, srd(SOUT), sOO), 's_mov_b64 exec, -1'))
        if step == OPT.get('b5', 36): side.append(G('s_barrier'))
        for i in (2 * step + 4, 2 * step + 5):
            if i < 84 and isinstance(w2_regs.get(i), tuple):
                d = w2_regs[i]; reg = pool.pop(0)
                z = Prog(); z.waitvm(('w2', i))
                z('ds_read_b128 %s, v%d offset:%d' % (v4(reg), vFA2 if d[1] == sLT else vFA3, d[2] + 4096))
                side.append(z.ins)
                w2_regs[i] = reg
        w0, w1_ = w2_regs[2 * step], w2_regs[2 * step + 1]
        h0, h1 = hid_regs[2 * step], hid_regs[2 * step + 1]
        em = set(x.tok for x in p.ins if isinstance(x.tok, tuple))
        for t in (('w2', 2 * step), ('w2', 2 * step + 1), ('hid', 2 * step), ('hid', 2 * step + 1)): assert t in em, t
        k = 0
        NL = OPT.get('nlast', 3)
        order = ((0, 0), (0, 1), (1, 0), (1, 1))
        if step >= 42 - NL:
            late.append((w1_, h0, h1)); order = order[:2]
        for n, (ct, rt) in enumerate(order):
            a = ACC[(ct, rt)]
            p('v_mfma_f32_32x32x16_bf16 %s, %s, %s, %s' % (v16(a), v4((w0, w1_)[ct]), v4((h0, h1)[rt]), '0' if step == 0 else v16(a)))
            tgt = (len(side) * (n + 1) + len(order) - 1) // len(order)
            c = 0
            for g in side[k:tgt]: p.extend(g); c += sum(cost(x) for x in g)
            k = tgt
            while step >= OPT.get('fs', 1) and fk < len(fillr) and (c < OPT.get('fb', 36) or fillr[fk - 1].note == 'glue'):
                i = fillr[fk]; fk += 1
                c += cost(i)
                p.ins.append(i)
        pool += [w0, w1_, h0, h1]
    wr = [G('ds_write_b128 v%d, %s offset:%d' % (PWA + g, v4(ACC[(0, rt)] + 4 * g), rt * 8192)) for rt in range(2) for g in range(4)] if late else []
    mm = [G('v_mfma_f32_32x32x16_bf16 %s, %s, %s, %s' % (v16(ACC[(1, rt)]), v4(w), v4((a_, b_)[rt]), v16(ACC[(1, rt)]))) for (w, a_, b_) in late for rt in range(2)]
    for n, g in enumerate(mm):
        p.extend(g)
        if n >= 1:
            for _ in range(2):
                if wr: p.extend(wr.pop(0))
    for g in wr: p.extend(g)
    OPT['_ct0done'] = bool(late)
    assert fk == len(fillr) and w2i == 84 and not left, (fk, len(fillr), w2i, len(left))
    print('G2 marks', when)
    stamp(p, 'g2end')
    epilogue(p, ACC)

EX, ED, ST, DD = TMP + 0, TMP + 8, TMP + 10, TMP + 18
EB, ET, PWA, PRA, vOO, PRB = X + 0, X + 16, X + 24, X + 28, X + 30, X + 22
sXO, sOO = 38, 39
def epilogue_loads():
    p = Prog()
    p('v_lshrrev_b32 v%d, 4, v%d' % (vT0, vL)); p('v_and_b32 v%d, 15, v%d' % (vT1, vL))
    p('v_mul_u32_u24 v%d, 896, v%d' % (vT2, vT0)); p('v_lshl_add_u32 v%d, v%d, 3, v%d' % (vT2, vT1, vT2))
    p('s_lshl_b32 s%d, s%d, 5' % (sXO, sRT0)); p('s_lshl_b32 s%d, s%d, 4' % (sT1, sW)); p('s_add_u32 s%d, s%d, s%d' % (sXO, sXO, sT1))
    p('s_mul_i32 s%d, s%d, 896' % (sXO, sXO)); p('s_lshl_b32 s%d, s%d, 7' % (sT1, sCB)); p('s_add_u32 s%d, s%d, s%d' % (sXO, sXO, sT1))
    p('s_add_u32 s%d, s%d, %d' % (sT0, sXO, 8 * 896))
    for it in range(4):
        p('buffer_load_dwordx2 v[%d:%d], v%d, %s, s%d offen offset:%d' % (EX + 2 * it, EX + 2 * it + 1, vT2, srd(SX), sXO if it < 2 else sT0, (it % 2) * 4 * 896))
    p('v_lshlrev_b32 v%d, 3, v%d' % (vT3, vT1))
    p('buffer_load_dwordx2 v[%d:%d], v%d, %s, s%d offen' % (ED, ED + 1, vT3, srd(SDSK), sT1))
    p('s_lshl_b32 s%d, s%d, 9' % (sT1, sHALF)); p('s_lshl_b32 s%d, s%d, 7' % (sT0, sW)); p('s_add_u32 s%d, s%d, s%d' % (sT1, sT1, sT0))
    p('v_lshl_add_u32 v%d, v%d, 3, s%d' % (vT3, vT0, sT1))
    for it in range(4):
        p('ds_read_b64 v[%d:%d], v%d offset:%d' % (ST + 2 * it, ST + 2 * it + 1, vT3, L_MR + 32 * it))
    return p.ins

def epilogue_pre():
    p = Prog()
    p('v_lshlrev_b32 v%d, 1, v%d' % (vOO, vT2))
    p('s_lshl_b32 s%d, s%d, 1' % (sOO, sXO))
    p('v_and_b32 v%d, 7, v%d' % (PWA, vP)); p('v_xor_b32 v%d, v%d, v%d' % (PWA, PWA, vH)); p('v_lshlrev_b32 v%d, 4, v%d' % (PWA, PWA))
    p('v_lshl_add_u32 v%d, v%d, 8, v%d' % (PWA, vP, PWA))
    p('v_add_u32 v%d, s%d, v%d' % (PWA, sLW, PWA))
    for g in range(1, 4): p('v_xor_b32 v%d, %d, v%d' % (PWA + g, g << 5, PWA))
    p('v_xor_b32 v%d, v%d, v%d' % (PRA, vT1, vT0)); p('v_lshlrev_b32 v%d, 4, v%d' % (PRA, PRA))
    p('v_lshl_add_u32 v%d, v%d, 8, v%d' % (PRA, vT0, PRA))
    p('s_lshl_b32 s%d, s%d, 12' % (sT1, sW)); p('s_add_u32 s%d, s%d, %d' % (sT1, sT1, L0)); p('v_add_u32 v%d, s%d, v%d' % (PRA, sT1, PRA))
    p('v_xor_b32 v%d, 64, v%d' % (PRA + 1, PRA)); p('v_add_u32 v%d, 1024, v%d' % (PRA + 1, PRA + 1))
    p('v_add_u32 v%d, %d, v%d' % (PRB, 3 * L_XW, PRA)); p('v_add_u32 v%d, %d, v%d' % (PRB + 1, 3 * L_XW, PRA + 1))
    D = DD; T = ET
    p('v_lshlrev_b32 v%d, 16, v%d' % (D, ED)); p('v_and_b32 v%d, s%d, v%d' % (D + 1, sMHI, ED))
    p('v_lshlrev_b32 v%d, 16, v%d' % (D + 2, ED + 1)); p('v_and_b32 v%d, s%d, v%d' % (D + 3, sMHI, ED + 1))
    for it in range(4):
        b = EB + 4 * it; m, rs = ST + 2 * it, ST + 2 * it + 1
        p('v_lshlrev_b32 v%d, 16, v%d' % (b, EX + 2 * it)); p('v_and_b32 v%d, s%d, v%d' % (b + 1, sMHI, EX + 2 * it))
        p('v_lshlrev_b32 v%d, 16, v%d' % (b + 2, EX + 2 * it + 1)); p('v_and_b32 v%d, s%d, v%d' % (b + 3, sMHI, EX + 2 * it + 1))
        for k in range(4): p('v_sub_f32 v%d, v%d, v%d' % (T + k, b + k, m))
        def rnd():
            p('v_cvt_pk_bf16_f32 v%d, v%d, v%d' % (T + 4, T, T + 1)); p('v_cvt_pk_bf16_f32 v%d, v%d, v%d' % (T + 5, T + 2, T + 3))
            p('v_lshlrev_b32 v%d, 16, v%d' % (T, T + 4)); p('v_and_b32 v%d, s%d, v%d' % (T + 1, sMHI, T + 4))
            p('v_lshlrev_b32 v%d, 16, v%d' % (T + 2, T + 5)); p('v_and_b32 v%d, s%d, v%d' % (T + 3, sMHI, T + 5))
        rnd()
        for k in range(4): p('v_mul_f32 v%d, v%d, v%d' % (T + k, T + k, rs))
        rnd()
        for k in range(4): p('v_mul_f32 v%d, v%d, v%d' % (T + k, T + k, D + k))
        rnd()
        for k in range(4): p('v_add_f32 v%d, v%d, v%d' % (b + k, b + k, T + k))
    return p.ins

def epilogue(p, ACC):
    for rt in range(2):
        for ct in range(1 if OPT.get('_ct0done') else 0, 2):
            for g in range(4):
                p('ds_write_b128 v%d, %s offset:%d' % (PWA + g, v4(ACC[(ct, rt)] + 4 * g), rt * 8192 + ct * 128))
    p('s_waitcnt lgkmcnt(0)')
    p('s_barrier')
    R = 128
    for it in range(4):
        for P in range(4):
            p('ds_read_b128 %s, v%d offset:%d' % (v4(R + 16 * it + 4 * P), (PRA if P < 3 else PRB) + (it & 1), (P % 3) * L_XW + (it >> 1) * 2048))
    for it in range(4):
        b = EB + 4 * it; r_ = R + 16 * it
        p('v_pk_add_f32 v[%d:%d], v[%d:%d], v[%d:%d]' % (r_, r_ + 1, r_, r_ + 1, r_ + 4, r_ + 5))
        p('v_pk_add_f32 v[%d:%d], v[%d:%d], v[%d:%d]' % (r_ + 2, r_ + 3, r_ + 2, r_ + 3, r_ + 6, r_ + 7))
        p('v_pk_add_f32 v[%d:%d], v[%d:%d], v[%d:%d]' % (r_ + 8, r_ + 9, r_ + 8, r_ + 9, r_ + 12, r_ + 13))
        p('v_pk_add_f32 v[%d:%d], v[%d:%d], v[%d:%d]' % (r_ + 10, r_ + 11, r_ + 10, r_ + 11, r_ + 14, r_ + 15))
        p('v_pk_add_f32 v[%d:%d], v[%d:%d], v[%d:%d]' % (b, b + 1, b, b + 1, r_, r_ + 1))
        p('v_pk_add_f32 v[%d:%d], v[%d:%d], v[%d:%d]' % (b + 2, b + 3, b + 2, b + 3, r_ + 2, r_ + 3))
        p('v_pk_add_f32 v[%d:%d], v[%d:%d], v[%d:%d]' % (b, b + 1, b, b + 1, r_ + 8, r_ + 9))
        p('v_pk_add_f32 v[%d:%d], v[%d:%d], v[%d:%d]' % (b + 2, b + 3, b + 2, b + 3, r_ + 10, r_ + 11))
        p('s_add_u32 s%d, s%d, %d' % (sT2, sOO, it * 4 * 1792))
        p('buffer_store_dwordx4 %s, v%d, %s, s%d offen%s' % (v4(b), vOO, srd(SOUT), sT2, ['', ' sc1', ' nt', ' sc0 sc1', ' sc1 nt'][OPT.get('ost', 0)]))
    if OPT['stamps']:
        stamp(p, 'end')
        p('v_readlane_b32 s%d, v%d, 0' % (sT0, vRSv)); p('s_nop 3'); p('v_writelane_b32 v%d, s%d, 60' % (vDUM, sT0))
        p('s_memrealtime s[%d:%d]' % (sP0, sP0 + 1)); p('s_load_dwordx2 s[36:37], s[0:1], 104'); p('s_waitcnt lgkmcnt(0)')
        p('v_writelane_b32 v%d, s%d, 63' % (vDUM, sP0))
        if OPT.get('amp', -1) >= 0:
            p('s_lshl_b32 s%d, s2, 2' % sT0); p('s_add_u32 s%d, s%d, s%d' % (sT0, sT0, sW)); p('s_cmp_lg_u32 s%d, %d' % (sT0, OPT['dbgwave']))
            p('s_cbranch_scc1 L_noamp')
            if OPT['amp'] == 99:
                p('s_mov_b32 s%d, %d' % (sT2, 0xF0000 + 128 * OPT['xa'])); p('buffer_load_dword v%d, v%d, %s, s%d offen sc1' % (vT0, vZ, srd(SWS), sT2))
                p('s_mov_b32 s%d, %d' % (sT2, 0xF0000 + 128 * OPT['xb'])); p('buffer_load_dword v%d, v%d, %s, s%d offen sc1' % (vT1, vZ, srd(SWS), sT2))
                p('s_waitcnt vmcnt(0)')
                p('v_readfirstlane_b32 s%d, v%d' % (sT0, vT0)); p('v_readfirstlane_b32 s%d, v%d' % (sT1, vT1))
                p('s_nop 3'); p('s_add_u32 s%d, s%d, 100' % (sT0, sT0))
            else:
                p('v_readlane_b32 s%d, v%d, %d' % (sT0, vDUM, OPT['amp'])); p('v_readlane_b32 s%d, v%d, %d' % (sT1, vDUM, OPT.get('amp0', 61)))
            p('s_nop 3')
            p('s_sub_u32 s%d, s%d, s%d' % (sT0, sT0, sT1)); p('s_mul_i32 s%d, s%d, %d' % (sT0, sT0, OPT.get('ampk', 4)))
            p('s_min_u32 s%d, s%d, 400000' % (sT0, sT0))
            p('s_memtime s[84:85]'); p('s_waitcnt lgkmcnt(0)')
            p('L_amp:')
            p('s_memtime s[86:87]'); p('s_waitcnt lgkmcnt(0)')
            p('s_sub_u32 s%d, s86, s84' % sT1); p('s_cmp_lt_u32 s%d, s%d' % (sT1, sT0)); p('s_cbranch_scc1 L_amp')
            p('L_noamp:')
        if OPT['dbg']:
            mk_srd(p, 84, 36, 256)
            p('v_readlane_b32 s%d, v%d, 61' % (sT1, vDUM))
            p('s_lshl_b32 s%d, s2, 2' % sT0); p('s_add_u32 s%d, s%d, s%d' % (sT0, sT0, sW)); p('s_cmp_lg_u32 s%d, %d' % (sT0, OPT['dbgwave']))
            p('s_cbranch_scc1 L_nodbg')
            p('v_subrev_u32 v%d, s%d, v%d' % (vT0, sT1, vDUM))
            p('v_lshlrev_b32 v%d, 2, v%d' % (vT1, vL))
            p('s_mov_b64 exec, 0xffff')
            p('buffer_store_dword v%d, v%d, s[84:87], 0 offen' % (vT0, vT1))
            p('s_mov_b64 exec, -1')
            p('L_nodbg:')
        p('s_lshl_b32 s%d, s2, 2' % sT0); p('s_add_u32 s%d, s%d, s%d' % (sT0, sT0, sW)); p('s_lshl_b32 s%d, s%d, 8' % (sT0, sT0))
        p('s_add_u32 s%d, s%d, %d' % (sT0, sT0, WS_STAMP))
        p('v_lshlrev_b32 v%d, 2, v%d' % (vT0, vL))
        p('buffer_store_dword v%d, v%d, %s, s%d offen' % (vDUM, vT0, srd(SWS), sT0))
    p('s_cmp_eq_u32 s%d, 15' % sR); p('s_cbranch_scc0 L_exit')
    p('s_cmp_eq_u32 s%d, 13' % sC); p('s_cbranch_scc0 L_exit')
    p('s_cmp_eq_u32 s%d, 3' % sW); p('s_cbranch_scc0 L_exit')
    p('s_mov_b32 s%d, %d' % (sT0, WS_EPOCH))
    p.extend(flag_group(sT0, 0))
    p('s_endpgm')

def pstamp(p, k):
    if not OPT['stamps']: return
    p('s_memtime s[90:91]'); p('s_waitcnt lgkmcnt(0)'); p('v_writelane_b32 v%d, s90, %d' % (vDUM, k))

def prep_path(p):
    SW2, SCRE, SCIM = 44, 48, 52
    sQ, sKF, sF0, sKS, sT0T, sCBK, sCTG, sFF = 8, 84, 85, 86, 87, 88, 89, 92
    p('L_prep:')
    p.reset()
    p('s_lshl_b32 s%d, s%d, 2' % (sQ, sT0)); p('s_add_u32 s%d, s%d, s%d' % (sQ, sQ, sT1)); p('s_sub_u32 s%d, s%d, 28' % (sQ, sQ))
    p('s_cmp_ge_u32 s%d, 28' % sQ); p('s_cbranch_scc1 L_exit')
    p('s_lshr_b32 s%d, s%d, 1' % (sF0, sQ)); p('s_lshl_b32 s%d, s%d, 7' % (sF0, sF0))
    p('s_and_b32 s%d, s%d, 1' % (sT0, sQ)); p('s_lshl_b32 s%d, s%d, 4' % (sT0, sT0)); p('s_add_u32 s%d, s%d, s%d' % (sF0, sF0, sT0))
    p('s_mul_i32 s%d, s%d, 896' % (sF0, sF0))
    p('s_lshl_b32 s%d, s%d, 2' % (sT0T, sW)); p('s_min_u32 s%d, s%d, 10' % (sT0T, sT0T))
    p('s_lshl_b32 s%d, s%d, 6' % (sT0, sT0T)); p('s_add_u32 s%d, s%d, s%d' % (sF0, sF0, sT0))
    p('s_mul_i32 s%d, s%d, 26624' % (sLW, sW))
    vWO = 21
    p('v_lshrrev_b32 v%d, 4, v%d' % (vWO, vL)); p('v_mul_u32_u24 v%d, 896, v%d' % (vWO, vWO))
    p('v_and_b32 v%d, 15, v%d' % (vT2, vL)); p('v_lshl_add_u32 v%d, v%d, 4, v%d' % (vWO, vT2, vWO))
    p('s_lshl_b32 s%d, s%d, 2' % (sKF, sQ)); p('s_add_u32 s%d, s%d, s%d' % (sKF, sKF, sW))
    p('s_mul_i32 s%d, s%d, 4682' % (sCBK, sKF)); p('s_lshr_b32 s%d, s%d, 16' % (sCBK, sCBK))
    p('s_mul_i32 s%d, s%d, 14' % (sT0, sCBK)); p('s_sub_u32 s%d, s%d, s%d' % (sCTG, sKF, sT0))
    p('s_waitcnt lgkmcnt(0)')
    mk_srd(p, SW2, 38, 1792 * 896)
    def w2dma(T):
        for i in range(4):
            p('s_add_u32 m0, s%d, %d' % (sLW, T * 4096 + i * 1024)); p('s_add_u32 s%d, s%d, %d' % (sT0, sF0, T * 28672 + i * 3584))
            p('buffer_load_dwordx4 v%d, %s, s%d offen lds' % (vWO, srd(SW2), sT0), tok=('w2', T))
    w2dma(0)
    mk_srd(p, SWS, 6, WS_END)
    p('buffer_load_dwordx2 v[%d:%d], v%d, %s, 0 offen sc1' % (TMP + 28, TMP + 29, vZ, srd(SWS)))
    w2dma(1)
    mk_srd(p, SLRE, 18, 896); mk_srd(p, SLIM, 20, 896); mk_srd(p, SLDT, 30, 896)
    p('v_lshlrev_b32 v%d, 1, v%d' % (vT2, vL)); p('s_lshl_b32 s%d, s%d, 7' % (sT1, sCBK))
    p('buffer_load_ushort v%d, v%d, %s, s%d offen' % (TMP + 0, vT2, srd(SLRE), sT1))
    p('buffer_load_ushort v%d, v%d, %s, s%d offen' % (TMP + 1, vT2, srd(SLIM), sT1))
    p('buffer_load_ushort v%d, v%d, %s, s%d offen' % (TMP + 2, vT2, srd(SLDT), sT1))
    w2dma(2)
    mk_srd(p, SCRE, 26, 448 * 896); mk_srd(p, SCIM, 28, 448 * 896)
    vA = 16
    p('v_lshrrev_b32 v%d, 2, v%d' % (vA, vL)); p('v_and_b32 v%d, 3, v%d' % (vA, vA))
    p('v_lshl_add_u32 v%d, v%d, 2, v%d' % (vA, vH, vA)); p('v_lshlrev_b32 v%d, 8, v%d' % (vA, vA))
    p('v_and_b32 v%d, 16, v%d' % (vT2, vL)); p('v_lshl_add_u32 v%d, v%d, 1, v%d' % (vA, vT2, vA))
    p('v_and_b32 v%d, 3, v%d' % (vT2, vL)); p('v_lshl_add_u32 v%d, v%d, 3, v%d' % (vA, vT2, vA))
    p('v_add_u32 v%d, s%d, v%d' % (vA, sLW, vA))
    vC = [17, 18, 19, 20]
    p('v_lshrrev_b32 v%d, 1, v%d' % (vT2, vP)); p('v_and_b32 v%d, 7, v%d' % (vT2, vT2))
    p('v_xor_b32 v%d, v%d, v%d' % (vT2, vT2, vH)); p('v_lshlrev_b32 v%d, 4, v%d' % (vT2, vT2))
    p('v_lshl_add_u32 v%d, v%d, 7, v%d' % (vT2, vP, vT2))
    p('v_add_u32 v%d, s%d, v%d' % (vC[0], sLW, vT2))
    for i in range(1, 4): p('v_xor_b32 v%d, %d, v%d' % (vC[i], i << 5, vC[0]))
    p('s_lshr_b32 s%d, s%d, 1' % (sKS, sT0T)); p('s_mul_i32 s%d, s%d, 168' % (sKS, sKS)); p('s_add_u32 s%d, s%d, s%d' % (sKS, sKS, sQ))
    p('s_lshl_b32 s%d, s%d, 11' % (sKS, sKS)); p('s_add_u32 s%d, s%d, %d' % (sKS, sKS, WS_W2F))
    p('s_lshl_b32 s%d, s%d, 5' % (sFF, sW)); p('s_add_u32 s%d, s%d, s%d' % (sFF, sFF, sQ)); p('s_lshl_b32 s%d, s%d, 3' % (sFF, sFF))
    p('s_mul_i32 s%d, s%d, %d' % (sT2, sCTG, 32 * 896)); p('s_add_u32 s%d, s%d, s%d' % (sT2, sT2, sT1))
    if OPT.get('ptlb', 0):
        p('v_and_b32 v%d, 3, v%d' % (vT2, vL)); p('v_mul_u32_u24 v%d, %d, v%d' % (vT2, 28 * 2048, vT2))
        p('v_lshrrev_b32 v%d, 2, v%d' % (vT3, vL)); p('v_mul_u32_u24 v%d, %d, v%d' % (vT3, 168 * 2048, vT3))
        p('v_add_u32 v%d, v%d, v%d' % (vT2, vT2, vT3))
        p('s_mov_b64 exec, 0xff')
        p('buffer_load_dword v%d, v%d, %s, s%d offen sc1' % (TMP + 12, vT2, srd(SWS), sKS), tok='ptlb')
        p('s_mov_b64 exec, -1')
    pstamp(p, 0)
    FRG = 64
    def stage(T):
        p.waitvm(('w2', T))
        for ct4 in range(4):
            for hh in range(2):
                p('ds_read_b64_tr_b16 %s, v%d offset:%d' % (v2(FRG + 16 * T + 4 * ct4 + 2 * hh), vA, T * 4096 + hh * 2048 + ct4 * 64))
        for ct4 in range(4):
            if ct4 % 2 == 0: p('s_add_u32 s%d, s%d, %d' % (sT0, sKS, ((ct4 // 2) * 168 + 28 * T) * 2048))
            p('buffer_store_dwordx4 %s, v%d, %s, s%d offen offset:%d sc1' % (v4(FRG + 16 * T + 4 * ct4), vL16, srd(SWS), sT0, (ct4 % 2) * 1024), tok=('fst', T))
    def cdma():
        for comp in range(2):
            for rg in range(4):
                p('s_add_u32 m0, s%d, %d' % (sLW, 16384 + comp * 4096 + rg * 1024))
                p('s_add_u32 s%d, s%d, %d' % (sT0, sT2, rg * 7168))
                p('buffer_load_dwordx4 v%d, %s, s%d offen lds' % (vT0 if rg % 2 == 0 else vT1, srd(SCRE if comp == 0 else SCIM), sT0), tok='c')
            if comp == 0 and PO == 0:
                p.extend(flag_group(sFF, WS_PF, ('fst', 0)))
                pstamp(p, 2)
    PO = OPT.get('pord', 0)
    if PO == 2:
        p.waitvm(('w2', 0)); w2dma(3); cdma()
    if PO == 3:
        p.waitvm(('w2', 0)); w2dma(3)
    stage(0)
    pstamp(p, 1)
    stage(1)
    stage(2)
    tag_setup(p, TMP + 28)
    if PO < 2: w2dma(3)
    if PO != 2: cdma()
    lr, li = TMP + 6, TMP + 7
    lam_from(p, TMP + 0, TMP + 1, TMP + 2, lr, li, TMP + 4, TMP + 5)
    p('v_add_f32 v%d, -1.0, v%d' % (lr, lr))
    p('v_mul_f32 v%d, v%d, v%d' % (TMP + 4, TMP + 0, TMP + 0)); p('v_fmac_f32 v%d, v%d, v%d' % (TMP + 4, TMP + 1, TMP + 1))
    p('v_rcp_f32 v%d, v%d' % (TMP + 4, TMP + 4))
    p('v_mul_f32 v%d, v%d, v%d' % (TMP + 8, lr, TMP + 0)); p('v_fmac_f32 v%d, v%d, v%d' % (TMP + 8, li, TMP + 1))
    p('v_add_f32 v%d, v%d, v%d' % (TMP + 4, TMP + 4, TMP + 4))
    p('v_mul_f32 v%d, v%d, v%d' % (TMP + 9, li, TMP + 0)); p('v_fma_f32 v%d, -v%d, v%d, v%d' % (TMP + 9, lr, TMP + 1, TMP + 9))
    p('v_mul_f32 v%d, v%d, v%d' % (TMP + 8, TMP + 8, TMP + 4)); p('v_mul_f32 v%d, v%d, v%d' % (TMP + 9, TMP + 9, TMP + 4))
    p('v_lshl_add_u32 v%d, v%d, 3, s%d' % (vT2, vL, sLW))
    p('ds_write_b64 v%d, v[%d:%d] offset:%d' % (vT2, TMP + 8, TMP + 9, 24576))
    p('v_lshl_add_u32 v%d, v%d, 6, s%d' % (vT2, vH, sLW))
    if PO:
        p.extend(flag_group(sFF, WS_PF, ('fst', 0)))
        pstamp(p, 2)
    stage(3)
    p('s_lshl_b32 s%d, s%d, 3' % (sT0, sCBK)); p('s_add_u32 s%d, s%d, 112' % (sT0, sT0)); p('s_lshl_b32 s%d, s%d, 11' % (sKS, sT0))
    p('s_lshr_b32 s%d, s%d, 1' % (sT0, sCTG)); p('s_mul_i32 s%d, s%d, %d' % (sT0, sT0, 168 * 2048)); p('s_add_u32 s%d, s%d, s%d' % (sKS, sKS, sT0))
    p('s_and_b32 s%d, s%d, 1' % (sT0, sCTG)); p('s_lshl_b32 s%d, s%d, 10' % (sT0, sT0)); p('s_add_u32 s%d, s%d, s%d' % (sKS, sKS, sT0))
    p('s_add_u32 s%d, s%d, %d' % (sKS, sKS, WS_W2F))
    CR = 24; CF = 128; U = 56; O = 192
    p.waitvm('c')
    for g4 in range(4):
        p('ds_read_b128 %s, v%d offset:%d' % (v4(CR + 8 * g4), vC[g4], 16384))
        p('ds_read_b128 %s, v%d offset:%d' % (v4(CR + 8 * g4 + 4), vC[g4], 16384 + 4096))
        for k in range(4): p('ds_read_b128 %s, v%d offset:%d' % (v4(CF + 16 * g4 + 4 * k), vT2, 24576 + 128 * g4 + 16 * k))
        if g4 == 1: p('s_waitcnt lgkmcnt(6)')
    for g4 in range(4):
        cr, ci = CR + 8 * g4, CR + 8 * g4 + 4
        o = O + 8 * g4
        for k in range(4):
            a0, b0, a1, b1 = CF + 16 * g4 + 4 * k, CF + 16 * g4 + 4 * k + 1, CF + 16 * g4 + 4 * k + 2, CF + 16 * g4 + 4 * k + 3
            p('v_lshlrev_b32 v%d, 16, v%d' % (U, cr + k)); p('v_and_b32 v%d, s%d, v%d' % (U + 1, sMHI, cr + k))
            p('v_lshlrev_b32 v%d, 16, v%d' % (U + 2, ci + k)); p('v_and_b32 v%d, s%d, v%d' % (U + 3, sMHI, ci + k))
            p('v_mul_f32 v%d, v%d, v%d' % (U + 4, a0, U)); p('v_fma_f32 v%d, -v%d, v%d, v%d' % (U + 4, b0, U + 2, U + 4))
            p('v_mul_f32 v%d, v%d, v%d' % (U + 5, a1, U + 1)); p('v_fma_f32 v%d, -v%d, v%d, v%d' % (U + 5, b1, U + 3, U + 5))
            p('v_mul_f32 v%d, -v%d, v%d' % (U + 6, a0, U + 2)); p('v_fma_f32 v%d, -v%d, v%d, v%d' % (U + 6, b0, U, U + 6))
            p('v_mul_f32 v%d, -v%d, v%d' % (U + 7, a1, U + 3)); p('v_fma_f32 v%d, -v%d, v%d, v%d' % (U + 7, b1, U + 1, U + 7))
            p('v_cvt_pk_bf16_f32 v%d, v%d, v%d' % (o + k, U + 4, U + 5))
            p('v_cvt_pk_bf16_f32 v%d, v%d, v%d' % (o + 4 + k, U + 6, U + 7))
        if g4 == 1: p.extend(flag_group(sFF, WS_PF + 3072, ('fst', 3)))
    p('s_cmp_ge_u32 s%d, 98' % sKF); p('s_cbranch_scc1 L_prep_fin')
    for g4 in range(4):
        o = O + 8 * g4
        p('s_add_u32 s%d, s%d, %d' % (sT0, sKS, (4 * (g4 >> 1) + (g4 & 1)) * 2048))
        p('s_add_u32 s%d, s%d, 4096' % (sT1, sT0))
        p('buffer_store_dwordx4 %s, v%d, %s, s%d offen sc1' % (v4(o), vL16, srd(SWS), sT0))
        p('buffer_store_dwordx4 %s, v%d, %s, s%d offen sc1' % (v4(o + 4), vL16, srd(SWS), sT1))
    p('s_lshl_b32 s%d, s%d, 3' % (sT0, sCTG)); p('s_add_u32 s%d, s%d, s%d' % (sT0, sT0, sCBK)); p('s_lshl_b32 s%d, s%d, 3' % (sT0, sT0))
    p('s_waitcnt vmcnt(0)')
    p.extend(flag_group(sT0, WS_PF + 4096))
    p('L_prep_fin:')
    if OPT['stamps']:
        pstamp(p, 3)
        p('v_writelane_b32 v%d, s%d, 62' % (vDUM, SOUT)); p('v_writelane_b32 v%d, s%d, 61' % (vDUM, SOUT + 2))
        p('s_lshl_b32 s%d, s2, 2' % sT0); p('s_add_u32 s%d, s%d, s%d' % (sT0, sT0, sW)); p('s_lshl_b32 s%d, s%d, 8' % (sT0, sT0))
        p('s_add_u32 s%d, s%d, %d' % (sT0, sT0, WS_STAMP))
        p('v_lshlrev_b32 v%d, 2, v%d' % (vT0, vL))
        p('buffer_store_dword v%d, v%d, %s, s%d offen' % (vDUM, vT0, srd(SWS), sT0))
    p('L_exit:')
    p('s_endpgm')

HEADER = open('parallel_sum__ssm_conv_s5__dense_activation_silu__prompt.s.ref').read().split('; Override launch')[0]

def build():
    p = Prog()
    prologue_common(p)
    main_path(p)
    for q in retry_blocks:
        p.reset(); p.extend(q.ins)
    prep_path(p)
    if OPT.get('abl'):
        out = []; cnt = 0
        lo = stamp_slots.index(OPT.get('ablo', 'T0') if isinstance(OPT.get('ablo', 'T0'), str) else stamp_slots[OPT['ablo']]); hi_ = stamp_slots.index('T2') if 'abhi' not in OPT else OPT['abhi']
        inside = False
        for i in p.ins:
            if i.op == 'v_writelane_b32':
                k = int(i.text.split(',')[-1])
                if k == lo: inside = True
                if k == hi_: inside = False
                out.append(i); continue
            a = OPT['abl']
            if inside and (a & 64) and (i.kind in ('vload', 'dma', 'vstore', 'needvm') or (i.kind == 'branch' and 'retry' in i.text)): continue
            if inside and (a & 128) and i.kind == 'salu' and 'exec' not in i.text and 'vcc' not in i.text: continue
            if inside and i.note != 'glue' and (((a & 1) and i.kind in ('vload', 'dma') and 'dwordx4' in i.text and 'sc1' in i.text) or ((a & 2) and i.kind == 'trans') or ((a & 4) and i.kind == 'valu')
                           or ((a & 8) and i.kind == 'dsread') or ((a & 16) and i.kind == 'vstore' and 'dwordx4' in i.text) or ((a & 32) and i.kind == 'mfma')):
                continue
            out.append(i)
        p.ins = out
    ins = finalize(p)
    if OPT.get('wlo') is not None:
        out = []; inside = False; slot = 30
        for i in ins:
            if i.op == 'v_writelane_b32' and 's%d,' % sP0 in i.text:
                k = int(i.text.split(',')[-1])
                if k == OPT['wlo']: inside = True
                if k == OPT['whi']: inside = False
            if inside and i.kind in ('dma', 'vload', 'vstore') and OPT.get('wv'): OPT['wskip'] = OPT.get('wskip', 0) - 1
            if inside and slot < 59 and ((i.kind in ('dma', 'vload', 'vstore') and OPT.get('wskip', 0) < 0) if OPT.get('wv') else ((i.kind == 'wait' and 'vmcnt' in i.text) or i.kind == 'barrier')):
                out += [Ins('s_memtime s[62:63]')] if False else []
                out += [Ins('s_memtime s[64:65]'), i, Ins('s_memtime s[72:73]'), Ins('s_waitcnt lgkmcnt(0)'),
                        Ins('v_writelane_b32 v%d, s64, %d' % (vDUM, slot)), Ins('v_writelane_b32 v%d, s72, %d' % (vDUM, slot + 1))]
                print('W%d: %s' % (slot, i.text)); slot += 2
            else: out.append(i)
        ins = out
    ins = [i for i in ins if not i.text.startswith(('; pad', '; need', '; after', '; at'))]
    body = text_of(ins)
    s = HEADER
    s += '; @launch grid=(256,1,1) block=(256,1,1) lds=%d\n' % LDS_BYTES
    s += '.amdgcn_target "amdgcn-amd-amdhsa--gfx950"\n.text\n.globl %s\n.p2align 8\n.type %s,@function\n%s:\n' % (KNAME, KNAME, KNAME)
    s += body
    s += 'L_code_end:\n'
    s += '.section .rodata,"a"\n.p2align 6\n.amdhsa_kernel %s\n' % KNAME
    s += '  .amdhsa_next_free_vgpr 512\n  .amdhsa_next_free_sgpr 102\n  .amdhsa_accum_offset 256\n  .amdhsa_group_segment_fixed_size 0\n'
    s += '  .amdhsa_kernarg_size 120\n  .amdhsa_user_sgpr_count 2\n  .amdhsa_user_sgpr_kernarg_segment_ptr 1\n  .amdhsa_system_sgpr_workgroup_id_x 1\n'
    s += '  .amdhsa_float_denorm_mode_32 3\n'
    s += '.end_amdhsa_kernel\n'
    return s, ins

if __name__ == '__main__':
    s, ins = build()
    open(sys.argv[1], 'w').write(s)
    from collections import Counter
    c = Counter(i.kind for i in ins)
    print('instructions:', sum(v for k, v in c.items() if k != 'label'), dict(c))
    if OPT['stamps']: print('stamps:', ','.join(stamp_slots))
```

```python
import sys, os
sys.path.insert(0, os.path.dirname(os.path.abspath(__file__)))
from dsl import *

KNAME = 'parallel_sum__ssm_conv_s5__dense_activation_silu__prompt_kernel'
OPT = dict(stamps=0, rot=1, w1pf=0, cpf=1, spin=1 << 16, dbg=0, dbgwave=0, per=70, perd=72, lead=22, ahead=10, w2s=12, dot=1, pk=0, w2early=1, tlb=0, fillc=30, ldsw2=1, rotA=0, gpf=3, xup=5, ost=1, sshare=2, ns=0, perx=36, tp=2600, tc=5000, tch=0, xe=1, loc=0, send=24, p2=3, p3=9, p4=16, pd=6, f3=0, f4=7, c1=2, tf=900, tp0=1000, tc0=500, tp1=1300, tf2=1400, perh=80)
for a in sys.argv[2:]:
    k, v = a.split('='); OPT[k] = int(v)

HSC = '' if OPT.get('plain') else [' sc1', ' sc0 sc1'][OPT.get('hsc', 0)]
WS_EPOCH = 0
WS_PF    = 0xC000
WS_FL    = 0x2000
WS_EG    = 0x10000
WS_STAMP = 0x80000
WS_W2F   = 0x100000
WS_HID   = 0x400000
WS_END   = WS_HID + 64 * 168 * 1024
L0     = 8192
L_XW   = 24576
L_SW   = L0 + 98304
L_TR   = L0 + 114688
L_WT   = L_TR + 4 * 4608
L_RS   = 0
L_MR   = 512
L_EW   = 1536
LDS_BYTES = 163840
LOG2E = 0x3fb8aa3b
NLOG2E = 0xbfb8aa3b
INV2PI = 0x3e22f983

sR, sC, sW, sROT, sTL, sTH, sONE, sMHI = 8, 9, 10, 11, 12, 13, 14, 15
SX, SBRE, SBIM, SW1, SWS, SOUT, SLRE, SLIM, SLDT, SDSK, SCODE = 40, 44, 48, 52, 56, 60, 64, 68, 72, 76, 80
SEG = 44
KB = [84 + j for j in range(7)]
W1K = [91 + j for j in range(7)]
sT0, sT1, sLW, sT2 = 98, 99, 100, 101
BM0 = [64 + j for j in range(7)]
sHW, sCB, sHALF, sRT0, sPMASK, sW2, sH0, sH1, sSPIN, sFW = 16, 17, 18, 19, 20, 21, 22, 23, 24, 25
sT3, sT4, sT5, sT6 = 26, 27, 28, 29
sP0 = 30
sW2S, sH0S, sH1S, sHWS, sIDX, sM1 = 32, 33, 34, 35, 36, 37
RSO = [72 + j for j in range(4)] + [38, 39, 3]
def srd(b): return 's[%d:%d]' % (b, b + 3)
def v4(b): return ('v[%d:%d]' % (b, b + 3)) if b < 256 else ('a[%d:%d]' % (b - 256, b - 253))
def v2(b): return ('v[%d:%d]' % (b, b + 1)) if b < 256 else ('a[%d:%d]' % (b - 256, b - 255))
def v16(b): return 'v[%d:%d]' % (b, b + 15)

vL = 1; vL16 = 2; vT0, vT1, vT2, vT3 = 3, 4, 5, 6
vM, vS, vNK, vRSv = 7, 8, 9, 10
vZ = 11; vH = 12; vP = 13; vFA = 14; vDUM = 15
X = 16
SRE, SIM, F0, F1 = 128, 144, 160, 176
vXO = [192, 193, 194, 195]
vBO = 196
vW1O = [197, 198]
vRX = [199, 200, 201, 202]
vRF = [[203, 204], [205, 206]]
L1r, L1i, N1i, L2r, L2i, L3r, L3i, L4r, L4i, L32r, L32i, L128r, L128i, L256r, L256i = range(207, 222)
vTW, vTRr = 222, 223
vFA2, vFA3 = 201, 202
TMP = 224
WB = 256 + 224
FR = TMP + 26
FR2 = TMP + 24
TAGP = TMP + 30
vNM = TMP + 16
sSELL, sSELH = 70, 71
sPS, sPM2, sLT, sLA = 68, 69, 67, 66
sRS0, sRS1 = 82, 83
vPF = TMP + 28

def cost(i):
    if i.kind in ('label', 'needvm', 'needlgkm', 'reset'): return 0
    if i.kind in ('trans', 'mfma'): return 8
    if i.kind == 'nop': return 4 * i.width
    if i.kind in ('valu', 'dot', 'perm') and (i.op in ('v_fma_f32', 'v_cvt_pk_bf16_f32', 'v_lshl_add_u32', 'v_add3_u32', 'v_mul_lo_u32') or '0x' in i.text): return 5
    if i.kind in ('vload', 'vstore', 'dma'): return 8
    return 4

def weave(comp, groups, period, start=0, pdma=None, small=(), events=()):
    out = []; t = 0; pipe = 0; nxt = start; groups = list(groups); noins = 0
    pdma = pdma or period; nm = 0; events = sorted(events, key=lambda e: e[0])
    for i in comp:
        if i.kind == 'mfma':
            t = max(t, pipe); pipe = t + 32; nm += 1
        out.append(i); t += cost(i)
        if 'exec' in i.text and i.kind == 'salu':
            noins = 0 if i.text.endswith('exec, -1') else 1
        ok = not noins and not (i.kind == 'salu' and 'm0' in i.text) and i.kind not in ('needvm', 'needlgkm') and not getattr(i, 'note', None) == 'glue'
        if events and ok and t >= events[0][0]:
            g = events.pop(0)[1]; out.extend(g); t += sum(cost(x) for x in g); continue
        if groups and groups[0] and groups[0][0].text.startswith('; after') and nm < int(groups[0][0].text.split()[2]): continue
        if groups and groups[0] and groups[0][0].text.startswith('; at') and t < int(groups[0][0].text.split()[2]): continue
        if 'exec' in i.text and i.kind == 'salu':
            noins = 0 if i.text.endswith('exec, -1') else 1
        if groups and t >= nxt and not noins and not (i.kind == 'salu' and 'm0' in i.text) and i.kind not in ('needvm', 'needlgkm') and not getattr(i, 'note', None) == 'glue':
            g = groups.pop(0); out.extend(g); t += sum(cost(x) for x in g)
            nv = sum(1 for x in g if x.kind in ('dma', 'vload', 'vstore') and 'dwordx4' in x.text and not any('s[%d:%d]' % (b, b + 3) in x.text for b in small))
            pr = (period if any('sc1' in x.text for x in g) else pdma) * nv + (0 if nv else 40)
            nxt = max(nxt + pr, t - pr // 2)
    for e in events: out.extend(e[1])
    return out, groups

def G(*texts, tok=None):
    q = Prog()
    for t in texts: q(t, tok=tok)
    return q.ins

stamp_slots = []
def stamp(p, name):
    if not OPT['stamps']: return
    if OPT.get('rt') and name in ('issued0', 'first', 'x0in', 'Win', 'Ain', 'lbok', 'silu3', 'carry'): return
    if OPT.get('allg') and name in ('issued0', 'first', 'x0in', 'lead', 'Win', 'ssmend', 'Ain', 'lbok', 'T0', 'T1', 'T2', 'B1'): return
    k = len(stamp_slots); stamp_slots.append(name)
    p('s_memtime s[%d:%d]' % (sP0, sP0 + 1))
    if OPT.get('rt'): p('s_memrealtime s[64:65]')
    p('s_waitcnt lgkmcnt(0)')
    p('v_writelane_b32 v%d, s%d, %d' % (vDUM, sP0, k))
    if OPT.get('rt'): p('v_writelane_b32 v%d, s64, %d' % (vDUM, 30 + k))

def mk_srd(p, b, ptr, nbytes):
    p('s_mov_b32 s%d, s%d' % (b, ptr)); p('s_mov_b32 s%d, s%d' % (b + 1, ptr + 1))
    p('s_mov_b32 s%d, %d' % (b + 2, nbytes)); p('s_mov_b32 s%d, 0x20000' % (b + 3))

def bf16_round(p, dst, src):
    p('v_cvt_pk_bf16_f32 v%d, v%d, v%d' % (dst, src, src))
    p('v_lshlrev_b32 v%d, 16, v%d' % (dst, dst))

def lam_from(p, lre, lim, ldt, outr, outi, t0, t1):
    p('v_lshlrev_b32 v%d, 16, v%d' % (lre, lre))
    p('v_lshlrev_b32 v%d, 16, v%d' % (lim, lim))
    p('v_lshlrev_b32 v%d, 16, v%d' % (ldt, ldt))
    p('v_mul_f32 v%d, 0x%x, v%d' % (ldt, LOG2E, ldt))
    p('v_exp_f32 v%d, v%d' % (ldt, ldt))
    bf16_round(p, ldt, ldt)
    p('v_mul_f32 v%d, v%d, v%d' % (t0, ldt, lre))
    p('v_mul_f32 v%d, v%d, v%d' % (t1, ldt, lim))
    p('v_mul_f32 v%d, 0x%x, v%d' % (t0, LOG2E, t0))
    p('v_exp_f32 v%d, v%d' % (t0, t0))
    p('v_mul_f32 v%d, 0x%x, v%d' % (t1, INV2PI, t1))
    p('v_fract_f32 v%d, v%d' % (t1, t1))
    p('v_cos_f32 v%d, v%d' % (outr, t1))
    p('v_sin_f32 v%d, v%d' % (outi, t1))
    p('v_mul_f32 v%d, v%d, v%d' % (outr, t0, outr))
    p('v_mul_f32 v%d, v%d, v%d' % (outi, t0, outi))

def cmul(p, dr, di, ar, ai, br, bi):
    p('v_mul_f32 v%d, v%d, v%d' % (dr, ar, br))
    p('v_mul_f32 v%d, v%d, v%d' % (di, ar, bi))
    p('v_fma_f32 v%d, -v%d, v%d, v%d' % (dr, ai, bi, dr))
    p('v_fmac_f32 v%d, v%d, v%d' % (di, ai, br))

def cmac(p, dr, di, ar, ai, br, bi):
    p('v_fmac_f32 v%d, v%d, v%d' % (dr, ar, br))
    p('v_fmac_f32 v%d, v%d, v%d' % (di, ar, bi))
    p('v_fma_f32 v%d, -v%d, v%d, v%d' % (dr, ai, bi, dr))
    p('v_fmac_f32 v%d, v%d, v%d' % (di, ai, br))

def tag_setup(p, vlo):
    p('v_readfirstlane_b32 s%d, v%d' % (sTL, vlo))
    p('v_readfirstlane_b32 s%d, v%d' % (sTH, vlo + 1))
    p('s_mul_i32 s%d, s%d, 0x9e3779b1' % (sTL, sTL)); p('s_add_u32 s%d, s%d, 0x7f4a7c15' % (sTL, sTL))
    p('s_mul_i32 s%d, s%d, 0x85ebca6b' % (sTH, sTH)); p('s_add_u32 s%d, s%d, 0xc2b2ae35' % (sTH, sTH))
    p('v_mov_b32 v%d, s%d' % (TAGP, sTL)); p('v_mov_b32 v%d, s%d' % (TAGP + 1, sTH))

retry_blocks = []
def poll_check(name, mask, reload_text, FR=FR):
    p = Prog()
    p('v_cmp_ne_u32 vcc, s%d, v%d' % (sTL, FR))
    p('v_cmp_ne_u32 s[%d:%d], s%d, v%d' % (sP0, sP0 + 1, sTH, FR + 1))
    p('s_nop 1')
    p('s_or_b32 s%d, vcc_lo, s%d' % (sM1, sP0))
    p('s_and_b32 s%d, s%d, %s' % (sM1, sM1, mask))
    p('s_cbranch_scc1 L_retry_%s' % name)
    p('L_ok_%s:' % name)
    for i in p.ins: i.note = 'glue'
    q = Prog()
    q('L_retry_%s:' % name)
    q('s_mov_b32 s%d, 0' % sSPIN)
    q('L_loop_%s:' % name)
    q('s_sleep 1')
    q(reload_text)
    q('s_waitcnt vmcnt(0)')
    q('v_cmp_ne_u32 vcc, s%d, v%d' % (sTL, FR))
    q('v_cmp_ne_u32 s[%d:%d], s%d, v%d' % (sP0, sP0 + 1, sTH, FR + 1))
    q('s_add_u32 s%d, s%d, 1' % (sSPIN, sSPIN))
    if OPT['stamps']: q('v_add_u32 v%d, 1, v%d' % (vRSv, vRSv))
    q('s_cmp_gt_u32 s%d, %d' % (sSPIN, OPT['spin']))
    q('s_cbranch_scc1 L_ok_%s' % name)
    q('s_or_b32 s%d, vcc_lo, s%d' % (sM1, sP0))
    q('s_and_b32 s%d, s%d, %s' % (sM1, sM1, mask))
    q('s_cbranch_scc1 L_loop_%s' % name)
    q('s_branch L_ok_%s' % name)
    retry_blocks.append(q)
    return p.ins

def flag_group(base_s, add, waittok=None):
    q = Prog()
    if waittok is not None: q.waitvm(waittok)
    q('s_add_u32 s%d, s%d, %d' % (sM1, base_s, add))
    q('s_mov_b64 exec, 1')
    q('buffer_store_dwordx2 v[%d:%d], v%d, %s, s%d offen%s' % (TAGP, TAGP + 1, vZ, srd(SWS), sM1, HSC if base_s == sFW else ' sc1'))
    q('s_mov_b64 exec, -1')
    return q.ins

def prologue_common(p):
    p('s_cmp_ge_u32 s2, 256')
    p('s_cbranch_scc1 L_exit')
    p('s_load_dwordx16 s[16:31], s[0:1], 0')
    p('s_load_dwordx8 s[32:39], s[0:1], 64')
    p('s_load_dwordx2 s[4:5], s[0:1], 96')
    p('s_load_dwordx2 s[6:7], s[0:1], 112')
    if OPT['stamps']:
        p('s_memrealtime s[%d:%d]' % (SOUT, SOUT + 1))
        p('s_memtime s[%d:%d]' % (SOUT + 2, SOUT + 3))
    if OPT['cpf']:
        p('s_getpc_b64 s[%d:%d]' % (SCODE, SCODE + 1))
        p('L_pc:')
        p('v_lshrrev_b32 v%d, 5, v0' % vT1); p('v_and_b32 v%d, 6, v%d' % (vT1, vT1)); p('v_and_b32 v%d, 1, v0' % vT2)
        p('v_add_lshl_u32 v%d, v%d, v%d, 7' % (vT2, vT1, vT2))
        p('s_sub_u32 s%d, s%d, L_pc-%s' % (SCODE, SCODE, KNAME))
        p('s_subb_u32 s%d, s%d, 0' % (SCODE + 1, SCODE + 1))
        p('s_mov_b32 s%d, L_code_end-%s' % (SCODE + 2, KNAME))
        p('s_mov_b32 s%d, 0x20000' % (SCODE + 3))
        p('s_lshr_b32 s%d, s2, 3' % sT1); p('s_lshl_b32 s%d, s%d, 10' % (sT1, sT1))
        p('s_mov_b64 exec, 3')
        p('buffer_load_dword v%d, v%d, %s, s%d offen' % (F1, vT2, srd(SCODE), sT1), tok='cpf')
        p('s_mov_b64 exec, -1')
    p('v_lshrrev_b32 v%d, 6, v0' % vT0)
    p('v_and_b32 v%d, 63, v0' % vL)
    p('v_readfirstlane_b32 s%d, v%d' % (sW, vT0))
    p('v_lshlrev_b32 v%d, 4, v%d' % (vL16, vL))
    p('v_mov_b32 v%d, 0' % vZ)
    p('v_lshrrev_b32 v%d, 5, v%d' % (vH, vL))
    p('v_and_b32 v%d, 31, v%d' % (vP, vL))
    p('s_and_b32 s%d, s2, 7' % sT0)
    p('s_lshr_b32 s%d, s2, 3' % sT1)
    p('s_mov_b32 s%d, 0x3f803f80' % sONE)
    p('s_mov_b32 s%d, 0xffff0000' % sMHI)
    p('v_lshrrev_b32 v%d, 3, v%d' % (vT0, vL))
    p('v_mul_u32_u24 v%d, 896, v%d' % (vT0, vT0))
    p('v_lshrrev_b32 v%d, 4, v%d' % (vT1, vL))
    p('v_and_b32 v%d, 7, v%d' % (vT2, vL))
    p('v_xor_b32 v%d, v%d, v%d' % (vT1, vT1, vT2))
    p('v_lshl_add_u32 v%d, v%d, 4, v%d' % (vT0, vT1, vT0))
    p('v_xor_b32 v%d, 64, v%d' % (vT1, vT0))
    p('s_cmp_ge_u32 s%d, 28' % sT1)
    p('s_cbranch_scc1 L_prep')

def wrap7(p, dst, a, b_or_imm, tmp):
    p('s_add_u32 s%d, s%d, %s' % (dst, a, b_or_imm))
    p('s_cmp_ge_u32 s%d, 7' % dst)
    p('s_cselect_b32 s%d, 7, 0' % tmp)
    p('s_sub_u32 s%d, s%d, s%d' % (dst, dst, tmp))

def main_path(p):
    sXCD, sI7 = 78, 79
    p('s_mov_b32 s%d, s%d' % (sXCD, sT0)); p('s_mov_b32 s%d, s%d' % (sI7, sT1))
    if not OPT['loc']:
        p('s_mul_i32 s%d, s%d, 37' % (sT2, sT1)); p('s_lshr_b32 s%d, s%d, 8' % (sT2, sT2))
        p('s_mul_i32 s3, s%d, 7' % sT2); p('s_sub_u32 s%d, s%d, s3' % (sROT, sT1))
        p('s_lshr_b32 s%d, s%d, 1' % (sR, sT0)); p('s_lshl_b32 s%d, s%d, 2' % (sR, sR)); p('s_add_u32 s%d, s%d, s%d' % (sR, sR, sT2))
        p('s_and_b32 s%d, s%d, 1' % (sT0, sT0))
        p('s_mul_i32 s%d, s%d, 7' % (sC, sT0)); p('s_add_u32 s%d, s%d, s%d' % (sC, sC, sROT))
    else:
        p('s_cmp_ge_u32 s%d, 14' % sT1); p('s_cselect_b32 s%d, 1, 0' % sT2); p('s_cselect_b32 s3, 14, 0')
        p('s_sub_u32 s%d, s%d, s3' % (sC, sT1))
        p('s_lshl_b32 s%d, s%d, 1' % (sR, sT0)); p('s_add_u32 s%d, s%d, s%d' % (sR, sR, sT2))
        p('s_cmp_ge_u32 s%d, 7' % sC); p('s_cselect_b32 s%d, 1, 0' % sXCD); p('s_cselect_b32 s3, 7, 0')
        p('s_sub_u32 s%d, s%d, s3' % (sROT, sC))
        p('s_lshl_b32 s%d, s%d, 1' % (sT2, sT2))
    p('s_mul_i32 s%d, s%d, %d' % (sLW, sW, L_XW)); p('s_add_u32 s%d, s%d, %d' % (sLW, sLW, L0))
    p('s_lshl_b32 s%d, s%d, 7' % (KB[0], sROT)) if OPT['rot'] else p('s_mov_b32 s%d, 0' % KB[0])
    p('s_lshl_b32 s%d, s%d, 2' % (sT0, sR)); p('s_add_u32 s%d, s%d, s%d' % (sT0, sT0, sW))
    p('s_mul_i32 s%d, s%d, %d' % (sT1, sT0, 32 * 896))
    p('v_add_u32 v%d, s%d, v%d' % (vXO[0], sT1, vT0))
    p('v_add_u32 v%d, s%d, v%d' % (vXO[1], sT1, vT1))
    p('v_add_u32 v%d, %d, v%d' % (vXO[2], 14336 - 2048, vXO[0]))
    p('v_add_u32 v%d, %d, v%d' % (vXO[1], 7168 - 1024, vXO[1]))
    p('v_add_u32 v%d, %d, v%d' % (vXO[3], 14336 - 2048, vXO[1]))
    if OPT.get('xe', 0):
        for j in range(1, 7):
            if OPT['rot']:
                p('s_add_u32 s%d, s%d, 128' % (KB[j], KB[j - 1]))
                p('s_cmp_ge_u32 s%d, 896' % KB[j])
                p('s_cselect_b32 s%d, 0, s%d' % (KB[j], KB[j]))
            else: p('s_mov_b32 s%d, %d' % (KB[j], j * 128))
    if OPT['stamps']: p('s_memtime s[76:77]')
    p('s_waitcnt lgkmcnt(0)')
    if OPT['stamps']:
        p('v_writelane_b32 v%d, s%d, 62' % (vDUM, SOUT)); p('v_writelane_b32 v%d, s%d, 61' % (vDUM, SOUT + 2))
        stamp_slots.append('prek'); p('v_writelane_b32 v%d, s76, 0' % vDUM)
        p('s_memtime s[%d:%d]' % (SOUT, SOUT + 1))
    mk_srd(p, SX, 16, 2048 * 896)
    def x_dma(j):
        out = [G('buffer_load_dwordx4 v%d, %s, s%d offen offset:%d lds' % (vXO[rg], srd(SX), KB[j], rg * 1024), tok=('x', j)) for rg in range(4)]
        out[0] = G('s_add_u32 m0, s%d, %d' % (sLW, j * 4096)) + out[0]
        return out
    fill = Prog()
    mk_srd(fill, SBRE, 22, 448 * 896); mk_srd(fill, SBIM, 24, 448 * 896)
    mk_srd(fill, SLRE, 18, 896); mk_srd(fill, SLIM, 20, 896); mk_srd(fill, SLDT, 30, 896); mk_srd(fill, SWS, 6, WS_END)
    mk_srd(fill, SW1, 36, 448 * 3584)
    fl = fill.ins
    for j in range(1 + OPT.get('xe', 0)):
        for g in x_dma(j): p.extend(g)
    p.extend(fl[:8]); fl = fl[8:]
    p('s_and_b32 s%d, s%d, 1' % (sT1, sW)); p('s_lshl_b32 s%d, s%d, 6' % (sT1, sT1))
    p('v_xor_b32 v%d, s%d, v%d' % (vBO, sT1, vT0))
    p('s_mul_i32 s%d, s%d, 7168' % (sT1, sW)); p('s_mul_i32 s%d, s%d, %d' % (sT0, sC, 32 * 896)); p('s_add_u32 s%d, s%d, s%d' % (sT1, sT1, sT0))
    p('v_add_u32 v%d, s%d, v%d' % (vBO, sT1, vBO))
    p('s_lshl_b32 s%d, s%d, 1' % (sT2, sT2))
    p('s_lshl_b32 s%d, s%d, 12' % (W1K[0], sT2)); p('s_lshl_b32 s%d, s%d, 10' % (sT1, sW)); p('s_add_u32 s%d, s%d, s%d' % (W1K[0], W1K[0], sT1))
    p('s_add_u32 s%d, s%d, %d' % (sT1, sT1, 7 * 4096))
    for k in range(1, 7):
        p('s_add_u32 s%d, s%d, 4096' % (W1K[k], W1K[k - 1]))
        p('s_cmp_ge_u32 s%d, s%d' % (W1K[k], sT1))
        p('s_cselect_b32 s%d, %d, 0' % (sT0, 7 * 4096))
        p('s_sub_u32 s%d, s%d, s%d' % (W1K[k], W1K[k], sT0))
    p('s_lshl_b32 s%d, s%d, 7' % (sT2, sT2))
    p('s_add_u32 s%d, s%d, s%d' % (sT2, sT2, KB[0]))
    p('s_cmp_ge_u32 s%d, 896' % sT2); p('s_cselect_b32 s%d, 896, 0' % sT0); p('s_sub_u32 s%d, s%d, s%d' % (sT2, sT2, sT0))
    p('v_lshlrev_b32 v%d, 1, v%d' % (vT2, vP))
    p('s_lshl_b32 s%d, s%d, 6' % (sT1, sC))
    if OPT['stamps']:
        p('s_memtime s[%d:%d]' % (SOUT + 2, SOUT + 3)); p('s_waitcnt lgkmcnt(0)')
        stamp_slots.append('karg'); p('v_writelane_b32 v%d, s%d, 1' % (vDUM, SOUT))
        stamp_slots.append('x0'); p('v_writelane_b32 v%d, s%d, 2' % (vDUM, SOUT + 2))
    ssm_soff = [sT2]
    def ssm_dma(k, soff):
        return [G('s_add_u32 m0, s%d, %d' % (W1K[k], L_SW + T * 28672),
                  'buffer_load_dwordx4 v%d, %s, s%d offen lds' % (vBO, srd(SBRE if T == 0 else SBIM), soff), tok='ssmw') for T in range(2)]
    def next_soff(q, dst, src):
        q('s_add_u32 s%d, s%d, 128' % (dst, src)); q('s_cmp_ge_u32 s%d, 896' % dst); q('s_cselect_b32 s%d, 0, s%d' % (dst, dst))
    p('s_mov_b32 s%d, s%d' % (sRS0, sT2))
    next_soff(p, sT2, sT2)
    p('s_mov_b32 s%d, s%d' % (sRS1, sT2))
    share = ssm_dma(0, sRS0) + ssm_dma(1, sRS1)
    NSH = OPT.get('sshare', 4)
    for g in share[:NSH]:
        p.extend([g[0]] + fl[:4] + [g[1]]); fl = fl[4:]
    p.extend(fl)
    p('buffer_load_dwordx2 v[%d:%d], v%d, %s, 0 offen sc1' % (TMP + 28, TMP + 29, vZ, srd(SWS)))
    p('buffer_load_ushort v%d, v%d, %s, s%d offen' % (TMP + 0, vT2, srd(SLRE), sT1))
    p('buffer_load_ushort v%d, v%d, %s, s%d offen' % (TMP + 1, vT2, srd(SLIM), sT1))
    p('buffer_load_ushort v%d, v%d, %s, s%d offen' % (TMP + 2, vT2, srd(SLDT), sT1))
    if OPT['tch'] & 3:
        p('s_mov_b64 exec, 1')
        if OPT['tch'] & 2: p('buffer_load_dword v%d, v%d, %s, 0 offen' % (F1 + 3, vZ, srd(SW1)), tok='cpf')
        if OPT['tch'] & 1:
            mk_srd(p, SOUT, 32, 896)
            p('buffer_load_dword v%d, v%d, %s, 0 offen' % (F1 + 4, vZ, srd(SOUT)), tok='cpf')
        p('s_mov_b64 exec, -1')
    gpf = Prog()
    if OPT['gpf']:
        gpf('s_mul_i32 s%d, s%d, 14' % (sT0, sR)); gpf('s_add_u32 s%d, s%d, s%d' % (sT0, sT0, sC)); gpf('s_lshl_b32 s%d, s%d, 2' % (sT0, sT0))
        gpf('s_add_u32 s%d, s%d, s%d' % (sT0, sT0, sW)); gpf('s_mul_i32 s%d, s%d, 1792' % (sT0, sT0))
        gpf('v_lshlrev_b32 v%d, 7, v%d' % (vT1, vL))
        gpf('s_mov_b64 exec, 0x3fff')
        gpf('buffer_load_dword v%d, v%d, %s, s%d offen' % (F1 + 5, vT1, srd(SW1), sT0), tok='cpf')
        gpf('s_mov_b64 exec, -1')
    if OPT['gpf'] == 1: p.extend(gpf.ins)
    if OPT['tlb']:
        p('v_lshlrev_b32 v%d, 21, v%d' % (vT1, vL))
        p('s_mov_b64 exec, 0xfe')
        p('buffer_load_dword v%d, v%d, %s, 0 offen' % (F1 + 3, vT1, srd(SWS)), tok='cpf')
        p('s_mov_b64 exec, 1')
        p('buffer_load_dword v%d, v%d, %s, 0 offen' % (F1 + 4, vZ, srd(SW1)), tok='cpf')
        p('s_mov_b64 exec, -1')
    stamp(p, 'issued0')
    if OPT.get('amp') == 99:
        p('v_readlane_b32 s%d, v%d, 62' % (sT0, vDUM)); p('s_lshl_b32 s%d, s2, 7' % sT1); p('s_add_u32 s%d, s%d, 0xF0000' % (sT1, sT1))
        p('v_mov_b32 v%d, s%d' % (F1 + 7, sT0))
        p('buffer_store_dword v%d, v%d, %s, s%d offen sc1' % (F1 + 7, vZ, srd(SWS), sT1))
    if not OPT.get('xe', 0):
        for j in range(1, 7):
            if OPT['rot']:
                p('s_add_u32 s%d, s%d, 128' % (KB[j], KB[j - 1]))
                p('s_cmp_ge_u32 s%d, 896' % KB[j])
                p('s_cselect_b32 s%d, 0, s%d' % (KB[j], KB[j]))
            else: p('s_mov_b32 s%d, %d' % (KB[j], j * 128))
    prev = sT2
    RS7 = [None, None, 38, 39, 34, 35, 3]
    p('s_and_b32 s%d, s%d, 1' % (sHALF, sXCD))
    mk_srd(p, SDSK, 32, 896)
    mk_srd(p, SOUT, 4, 2048 * 1792)
    for k in range(2, 7):
        next_soff(p, RS7[k], prev); prev = RS7[k]
    ssm_rest = []
    for k in range(2, 7): ssm_rest += ssm_dma(k, RS7[k])
    w1g = []
    if OPT['w1pf']:
        p('v_mul_u32_u24 v%d, 3584, v%d' % (vT1, vL))
        p('s_and_b32 s%d, s%d, 3' % (sT1, sR)); p('s_lshl_b32 s%d, s%d, 2' % (sT1, sT1)); p('s_add_u32 s%d, s%d, s%d' % (sT1, sT1, sW))
        p('s_mul_i32 s%d, s%d, %d' % (sT1, sT1, 28 * 3584))
        p('s_lshl_b32 s%d, s%d, 8' % (sT0, sC)); p('s_add_u32 s%d, s%d, s%d' % (sT1, sT1, sT0))
        p('v_add_u32 v%d, s%d, v%d' % (F1 + 2, sT1, vT1))
        w1g = [G('s_mov_b64 exec, 0x0fffffff', 'buffer_load_dword v%d, v%d, %s, 0 offen offset:128' % (F1 + 1, F1 + 2, srd(SW1)), 's_mov_b64 exec, -1', tok='cpf')]
    p('v_lshrrev_b32 v%d, 3, v%d' % (vT0, vL))
    p('v_mul_u32_u24 v%d, 3584, v%d' % (vT0, vT0))
    p('v_lshrrev_b32 v%d, 2, v%d' % (vT1, vL)); p('v_and_b32 v%d, 4, v%d' % (vT1, vT1))
    p('v_and_b32 v%d, 7, v%d' % (vT2, vL)); p('v_xor_b32 v%d, v%d, v%d' % (vT1, vT1, vT2))
    p('v_lshl_add_u32 v%d, v%d, 4, v%d' % (vT0, vT1, vT0))
    p('s_mul_i32 s%d, s%d, %d' % (sT1, sW, 16 * 3584)); p('s_lshl_b32 s%d, s%d, 8' % (sT0, sC)); p('s_add_u32 s%d, s%d, s%d' % (sT1, sT1, sT0))
    p('v_add_u32 v%d, s%d, v%d' % (vW1O[0], sT1, vT0))
    p('v_add_u32 v%d, %d, v%d' % (vW1O[1], 8 * 3584 - 1024, vW1O[0]))
    p('v_lshrrev_b32 v%d, 1, v%d' % (vT0, vP)); p('v_and_b32 v%d, 7, v%d' % (vT0, vT0))
    p('v_xor_b32 v%d, v%d, v%d' % (vT0, vT0, vH)); p('v_lshlrev_b32 v%d, 4, v%d' % (vT0, vT0))
    p('v_lshl_add_u32 v%d, v%d, 7, v%d' % (vT0, vP, vT0))
    p('v_add_u32 v%d, s%d, v%d' % (vRX[0], sLW, vT0))
    for i in range(1, 4): p('v_xor_b32 v%d, %d, v%d' % (vRX[i], i << 5, vRX[0]))
    p('v_lshrrev_b32 v%d, 2, v%d' % (vT0, vL)); p('v_and_b32 v%d, 3, v%d' % (vT0, vT0))
    p('v_lshlrev_b32 v%d, 7, v%d' % (vT1, vT0))
    p('v_lshl_add_u32 v%d, v%d, 10, v%d' % (vT1, vH, vT1))
    p('v_and_b32 v%d, 2, v%d' % (vT0, vT0)); p('v_lshl_add_u32 v%d, v%d, 5, v%d' % (vT1, vT0, vT1))
    p('v_and_b32 v%d, 16, v%d' % (vT0, vL)); p('v_lshl_add_u32 v%d, v%d, 1, v%d' % (vT1, vT0, vT1))
    p('v_and_b32 v%d, 3, v%d' % (vT0, vL)); p('v_lshl_add_u32 v%d, v%d, 3, v%d' % (vRF[0][0], vT0, vT1))
    p('v_add_u32 v%d, %d, v%d' % (vRF[0][0], L0, vRF[0][0]))
    p('v_xor_b32 v%d, 64, v%d' % (vRF[1][0], vRF[0][0]))
    p('v_add_u32 v%d, 0x10000, v%d' % (vRF[0][1], vRF[0][0]))
    p('v_add_u32 v%d, 0x10000, v%d' % (vRF[1][1], vRF[1][0]))
    p('s_mul_i32 s%d, s%d, 4608' % (sT1, sW)); p('s_add_u32 s%d, s%d, %d' % (sT1, sT1, L_TR))
    p('v_mul_u32_u24 v%d, 72, v%d' % (vT0, vP)); p('v_lshl_add_u32 v%d, v%d, 3, v%d' % (vT0, vH, vT0))
    p('v_add_u32 v%d, s%d, v%d' % (vTW, sT1, vT0))
    p('v_lshrrev_b32 v%d, 2, v%d' % (vT0, vL)); p('v_and_b32 v%d, 3, v%d' % (vT0, vT0))
    p('v_lshl_add_u32 v%d, v%d, 3, v%d' % (vT0, vH, vT0)); p('v_mul_u32_u24 v%d, 72, v%d' % (vT0, vT0))
    p('v_and_b32 v%d, 16, v%d' % (vT1, vL)); p('v_lshl_add_u32 v%d, v%d, 1, v%d' % (vT0, vT1, vT0))
    p('v_and_b32 v%d, 3, v%d' % (vT1, vL)); p('v_lshl_add_u32 v%d, v%d, 3, v%d' % (vT0, vT1, vT0))
    p('v_add_u32 v%d, s%d, v%d' % (vTRr, sT1, vT0))
    p('s_mov_b32 s%d, s%d' % (sCB, sROT))
    p('s_lshl_b32 s%d, s%d, 2' % (sT0, sR)); p('s_add_u32 s%d, s%d, s%d' % (sT1, sT0, sW))
    p('s_mul_i32 s%d, s%d, 168' % (sHW, sT1)); p('s_lshl_b32 s%d, s%d, 1' % (sT2, sC)); p('s_add_u32 s%d, s%d, s%d' % (sHW, sHW, sT2))
    p('s_lshl_b32 s%d, s%d, 10' % (sHW, sHW)); p('s_add_u32 s%d, s%d, %d' % (sHW, sHW, WS_HID))
    p('s_lshl_b32 s%d, s%d, 7' % (sFW, sT1)); p('s_lshl_b32 s%d, s%d, 3' % (sT2, sC)); p('s_add_u32 s%d, s%d, s%d' % (sFW, sFW, sT2))
    p('s_add_u32 s%d, s%d, %d' % (sFW, sFW, WS_FL))
    p('s_lshl_b32 s%d, s%d, 1' % (sT2, sHALF)); p('s_add_u32 s%d, s%d, s%d' % (sRT0, sT0, sT2))
    p('s_mul_i32 s%d, s%d, 7' % (sT2, sW))
    p('s_mul_i32 s%d, s%d, 168' % (sH0, sRT0)); p('s_add_u32 s%d, s%d, s%d' % (sH0, sH0, sT2)); p('s_lshl_b32 s%d, s%d, 10' % (sH0, sH0))
    p('s_add_u32 s%d, s%d, %d' % (sH0, sH0, WS_HID)); p('s_add_u32 s%d, s%d, %d' % (sH1, sH0, 168 * 1024))
    p('s_mul_i32 s%d, s%d, 168' % (sW2, sCB)); p('s_add_u32 s%d, s%d, s%d' % (sW2, sW2, sT2)); p('s_lshl_b32 s%d, s%d, 11' % (sW2, sW2))
    p('s_add_u32 s%d, s%d, %d' % (sW2, sW2, WS_W2F))
    p('s_lshr_b32 s%d, s%d, 1' % (sT0, sT2)); p('s_lshl_b32 s%d, 0x000f000f, s%d' % (sPMASK, sT0))
    p('s_lshl_b32 s%d, s%d, 11' % (sT0, sT2)); p('s_add_u32 s%d, s%d, s%d' % (sW2S, sW2, sT0))
    p('s_lshl_b32 s%d, s%d, 10' % (sT0, sT2)); p('s_add_u32 s%d, s%d, s%d' % (sH0S, sH0, sT0))
    p('v_and_b32 v%d, 16, v%d' % (vT0, vL)); p('v_lshlrev_b32 v%d, 3, v%d' % (vT0, vT0))
    p('v_and_b32 v%d, 15, v%d' % (vT1, vL)); p('v_lshl_add_u32 v%d, v%d, 3, v%d' % (vT0, vT1, vT0))
    p('s_lshl_b32 s%d, s%d, 7' % (sT2, sRT0)); p('s_add_u32 s%d, s%d, %d' % (sT2, sT2, WS_FL))
    p('v_add_u32 v%d, s%d, v%d' % (vFA, sT2, vT0))
    A0, A1, Q0, Q1 = TMP + 8, TMP + 9, TMP + 10, TMP + 11
    for a in (A0, A1, Q0, Q1): p('v_mov_b32 v%d, 0' % a)
    for j in range(1 + OPT.get('xe', 0), OPT['xup'] + 1):
        for g in x_dma(j): p.extend(g)
        if j == 2 and OPT['gpf'] == 2: p.extend(gpf.ins)
    stamp(p, 'first')
    lam = Prog()
    LT = F1 + 8
    lam_from(lam, TMP + 0, TMP + 1, TMP + 2, L1r, L1i, LT, LT + 1)
    lam('v_sub_f32 v%d, 0, v%d' % (N1i, L1i))
    cmul(lam, L2r, L2i, L1r, L1i, L1r, L1i)
    cmul(lam, L3r, L3i, L2r, L2i, L1r, L1i)
    cmul(lam, L4r, L4i, L2r, L2i, L2r, L2i)
    cmul(lam, LT, LT + 1, L4r, L4i, L4r, L4i)
    cmul(lam, LT + 2, LT + 3, LT, LT + 1, LT, LT + 1)
    cmul(lam, L32r, L32i, LT + 2, LT + 3, LT + 2, LT + 3)
    cmul(lam, LT, LT + 1, L32r, L32i, L32r, L32i)
    cmul(lam, L128r, L128i, LT, LT + 1, LT, LT + 1)
    cmul(lam, L256r, L256i, L128r, L128i, L128r, L128i)
    tagp = Prog()
    tag_setup(tagp, TMP + 28)
    tagp('s_lshr_b32 s%d, s%d, 1' % (sT5, sCB)); tagp('s_lshl_b32 s%d, s%d, 8' % (sT5, sT5))
    tagp('s_lshl_b32 s%d, s%d, 7' % (sPS, sCB)); tagp('s_add_u32 s%d, s%d, 4096' % (sPS, sPS)); tagp('s_sub_u32 s%d, s%d, s%d' % (sPS, sPS, sT5))
    tagp('s_add_u32 s%d, s%d, %d' % (sT5, sT5, WS_PF))
    tagp('v_lshl_add_u32 v%d, v%d, 3, s%d' % (vPF, vP, sT5))
    tagp('s_mul_i32 s%d, s%d, 7' % (sT5, sW)); tagp('s_lshl_b32 s%d, 0x7f, s%d' % (sPM2, sT5))

    def x_read(q, j, slot):
        for i in range(4):
            q('ds_read_b128 %s, v%d offset:%d' % (v4(X + 16 * j + 4 * i), vRX[i], slot * 4096), tok=('xr', j))
    def x_stats(q, j):
        q.waitlgkm(('xr', j))
        for k in range(16):
            r_ = X + 16 * j + k
            q('v_dot2c_f32_bf16 v%d, s%d, v%d' % (A0 if k % 2 == 0 else A1, sONE, r_))
            q('v_dot2c_f32_bf16 v%d, v%d, v%d' % (Q0 if k % 2 == 0 else Q1, r_, r_))
    q = Prog()
    q.waitvm(('x', 0)); stamp(q, 'x0in'); x_read(q, 0, 0)
    for j in range(1, 6):
        q.waitvm(('x', j)); x_read(q, j, j)
        x_stats(q, j - 1)
    q('v_add_u32 v%d, s%d, v%d' % (vT0, sLW, vL16))
    for rg in range(4):
        q('ds_write_b128 v%d, %s offset:%d' % (vT0, v4(F0 + 4 * rg), rg * 1024))
    x_read(q, 6, 0)
    x_stats(q, 5)
    x_stats(q, 6)
    x6 = [G('buffer_load_dwordx4 %s, v%d, %s, s%d offen offset:%d' % (v4(F0 + 4 * rg), vXO[rg], srd(SX), KB[6], rg * 1024)) for rg in range(4)]
    vm = []
    for j in range(OPT['xup'] + 1, 6): vm += x_dma(j)
    NS = OPT.get('ns', 4)
    vm += x6 + share[NSH:] + ([gpf.ins] if OPT['gpf'] == 3 else []) + ssm_rest[:NS]
    st, left = weave(q.ins, vm, OPT.get('perx', 44))
    assert not left, len(left)
    p.extend(st)
    stamp(p, 'x_in')
    w1k = Prog()
    for j in range(7): w1k('s_mul_i32 s%d, s%d, 1792' % (W1K[j], KB[j]))
    dma = []
    for dt in range(2):
        for j in range(7 if dt == 0 else 5):
            for e in range(2):
                l_off = (0 if dt == 0 else 14336 - 128) + 2 * j * 1024
                dma.append((G('s_add_u32 m0, s%d, %d' % (sLW, l_off)) if e == 0 else []) + G(
                    'buffer_load_dwordx4 v%d, %s, s%d offen offset:%d lds' % (vW1O[e], srd(SW1), W1K[j], 128 * dt + 1024 * e), tok='ffnA' if dt == 0 else 'ffnB'))
    q = Prog()
    q('v_add_f32 v%d, v%d, v%d' % (A0, A0, A1)); q('v_add_f32 v%d, v%d, v%d' % (Q0, Q0, Q1))
    q('v_mov_b32 v%d, v%d' % (A1, A0)); q('v_mov_b32 v%d, v%d' % (Q1, Q0))
    q('v_permlane32_swap_b32 v%d, v%d' % (A0, A1)); q('v_permlane32_swap_b32 v%d, v%d' % (Q0, Q1))
    q('v_add_f32 v%d, v%d, v%d' % (A0, A0, A1)); q('v_add_f32 v%d, v%d, v%d' % (Q0, Q0, Q1))
    q('v_mul_f32 v%d, 0x3b124925, v%d' % (A0, A0))
    q('v_mul_f32 v%d, 0x3b124925, v%d' % (Q0, Q0))
    q('v_fma_f32 v%d, -v%d, v%d, v%d' % (Q0, A0, A0, Q0))
    q('v_max_f32 v%d, 0, v%d' % (Q0, Q0))
    bf16_round(q, vM, A0)
    bf16_round(q, Q0, Q0)
    q('v_add_f32 v%d, 0x3727c5ac, v%d' % (Q0, Q0))
    bf16_round(q, Q0, Q0)
    q('v_sqrt_f32 v%d, v%d' % (Q0, Q0))
    bf16_round(q, vS, Q0)
    q('v_rcp_f32 v%d, v%d' % (vRSv, vS))
    q('s_lshl_b32 s%d, s%d, 7' % (sT3, sW))
    q('v_lshl_add_u32 v%d, v%d, 2, s%d' % (vT0, vP, sT3))
    q('v_mul_f32 v%d, 0x%x, v%d' % (vNK, NLOG2E, vRSv))
    q('ds_write_b32 v%d, v%d offset:%d' % (vT0, vRSv, L_RS))
    q('v_lshlrev_b32 v%d, 1, v%d' % (vT0, vT0))
    q('v_mov_b32 v%d, v%d' % (TMP + 12, vM)); q('v_mov_b32 v%d, v%d' % (TMP + 13, vRSv))
    q('ds_write_b64 v%d, v[%d:%d] offset:%d' % (vT0, TMP + 12, TMP + 13, L_MR))
    q('s_sub_u32 s%d, %d, s%d' % (sT4, L_SW, sLW))
    for i in range(4): q('v_add_u32 v%d, s%d, v%d' % (vRX[i], sT4, vRX[i]))
    if OPT['stamps']: q('v_mov_b32 v%d, 0' % vRSv)

    def d_step(ks, mode=0):
        z = Prog()
        if mode == 1:
            for k in range(4):
                z('v_dot2_f32_bf16 v%d, v%d, s%d, v%d' % (TMP + 8 + 2 * k, X + 4 * ks + k, sSELL, vNM))
                z('v_dot2_f32_bf16 v%d, v%d, s%d, v%d' % (TMP + 9 + 2 * k, X + 4 * ks + k, sSELH, vNM))
            for k in range(4):
                z('v_cvt_pk_bf16_f32 v%d, v%d, v%d' % (X + 4 * ks + k, TMP + 8 + 2 * k, TMP + 9 + 2 * k))
            return z.ins
        if mode == 2:
            for k in range(4):
                r_ = X + 4 * ks + k; lo = TMP + 8 + 2 * (k % 2)
                z('v_lshlrev_b32 v%d, 16, v%d' % (lo, r_))
                z('v_and_b32 v%d, s%d, v%d' % (lo + 1, sMHI, r_))
                z('v_pk_add_f32 v[%d:%d], v[%d:%d], v[%d:%d] op_sel_hi:[1,0]' % (lo, lo + 1, lo, lo + 1, vNM, vNM + 1))
                z('v_cvt_pk_bf16_f32 v%d, v%d, v%d' % (r_, lo, lo + 1))
            return z.ins
        for k in range(4):
            r_ = X + 4 * ks + k; lo, hi = TMP + 8 + 2 * (k % 2), TMP + 9 + 2 * (k % 2)
            z('v_lshlrev_b32 v%d, 16, v%d' % (lo, r_))
            z('v_and_b32 v%d, s%d, v%d' % (hi, sMHI, r_))
            z('v_sub_f32 v%d, v%d, v%d' % (lo, lo, vM))
            z('v_sub_f32 v%d, v%d, v%d' % (hi, hi, vM))
            z('v_cvt_pk_bf16_f32 v%d, v%d, v%d' % (r_, lo, hi))
        return z.ins
    LEAD = OPT['lead']
    q('v_sub_f32 v%d, 0, v%d' % (vNM, vM))
    q('s_mov_b32 s%d, 0x3f80' % sSELL); q('s_mov_b32 s%d, 0x3f800000' % sSELH)
    if OPT.get('tage'): q.extend(tagp.ins)
    for ks in range(LEAD): q.extend(d_step(ks, 1 if OPT['dot'] else 0))
    if not OPT.get('tage'): q.extend(tagp.ins)
    stamp(q, 'lead')
    q.waitvm('ssmw')
    stamp(q, 'Win')
    q('s_barrier')
    stamp(q, 'B1')
    def wbuf(n): return WB + 4 * (n % 8)
    def ssm_read(n):
        ks, T = n // 2, n % 2
        return G('ds_read_b128 %s, v%d offset:%d' % (v4(wbuf(n)), vRX[ks % 4], T * 28672 + (ks // 4) * 4096), tok=('wf', n))
    PRE = 6
    for n in range(PRE): q.extend(ssm_read(n))
    groups = []
    for ks in range(28):
        z = Prog()
        z.waitlgkm(('wf', 2 * ks + 1))
        for T in range(2):
            n = 2 * ks + T; acc = SRE if T == 0 else SIM
            z('v_mfma_f32_32x32x16_bf16 %s, %s, %s, %s' % (v16(acc), v4(X + 4 * ks), v4(wbuf(n)), '0' if ks == 0 else v16(acc)))
            if n + PRE < 56: z.extend(ssm_read(n + PRE))
            groups.append(z.ins); z = Prog()
    fill = []
    for ks in range(LEAD, 28): fill += d_step(ks, 2 if OPT['pk'] else 0)
    fill = fill + lam.ins
    k = 0
    span = OPT.get('span', 54)
    for n, g in enumerate(groups):
        q.extend(g)
        tgt = min(len(fill), (len(fill) * (n + 1)) // span)
        q.extend(fill[k:tgt]); k = tgt
    done = set(range(X, X + 4 * LEAD))
    for i in q.ins:
        if i.op == 'v_cvt_pk_bf16_f32' and X <= i.wr[0][1] < X + 112: done.add(i.wr[0][1])
        if i.kind == 'mfma': assert all(r[1] in done for r in i.rd if r[0] == 'v' and X <= r[1] < X + 112), i.text
    RSF = TMP + 8
    q('v_lshl_add_u32 v%d, v%d, 4, s%d' % (vT0, vH, sT3))
    for g in range(4):
        q('ds_read_b128 %s, v%d offset:%d' % (v4(RSF + 4 * g), vT0, L_RS + 32 * g))
    def pf(T):
        if T < 4: return 'buffer_load_dwordx2 v[%d:%d], v%d, %s, 0 offen offset:%d sc1' % (FR, FR + 1, vPF, srd(SWS), 1024 * T)
        return 'buffer_load_dwordx2 v[%d:%d], v%d, %s, s%d offen sc1' % (FR, FR + 1, vPF, srd(SWS), sPS)
    w2_regs = {}
    w2_state = {'last': None}
    def w2_load(idx, reg):
        if idx < 56: base, off = sW2, ((idx // 14) * 28 + (idx % 14) // 2) * 2048 + (idx % 2) * 1024
        else: base, off = sW2S, (112 + (idx - 56) // 2) * 2048 + (idx % 2) * 1024
        z = Prog()
        key = (base, off - off % 4096)
        if w2_state['last'] != key:
            z('s_add_u32 s%d, s%d, %d' % (sT5, base, off - off % 4096)); w2_state['last'] = key
        if isinstance(reg, tuple):
            mk = (reg[1], reg[2] - off % 4096 + 4096)
            if w2_state.get('m0') != mk:
                z('s_add_u32 m0, s%d, %d' % mk); w2_state['m0'] = mk
            z('buffer_load_dwordx4 v%d, %s, s%d offen offset:%d sc1 lds' % (vL16, srd(SWS), sT5, off % 4096), tok=('w2', idx))
        else:
            z('buffer_load_dwordx4 %s, v%d, %s, s%d offen offset:%d sc1' % (v4(reg), vL16, srd(SWS), sT5, off % 4096), tok=('w2', idx))
        w2_regs[idx] = reg
        return z.ins
    def w2_dest(i):
        if i < 56: return 256 + 4 * i
        return X + 32 + 4 * (i - 56)
    NW2 = 76
    w2q = []
    for T in range(5):
        lo, hi_ = 14 * T, (14 * T + 14 if T < 4 else NW2)
        if lo >= hi_: break
        Tp = T if not OPT.get('p3only', 1) else ({0: 0, 1: 3, 2: None, 3: None, 4: 4} if OPT.get('pord', 0) < 4 else {0: 0, 1: None, 2: None, 3: 3, 4: 4})[T]
        nx = (T + 1 if T < 4 else None) if not OPT.get('p3only', 1) else ({0: 3, 1: 4} if OPT.get('pord', 0) < 4 else {2: 3}).get(T)
        if Tp is not None: w2q.append(poll_check('p%d' % Tp, ('s%d' % sPM2) if Tp < 4 else '0x7f7f', pf(Tp)))
        for i in range(lo, hi_):
            g = w2_load(i, w2_dest(i))
            if i == 56: g = [Ins('; need B4')] + g
            if i >= 56: g = [Ins('; after %d' % (9 + i - 56))] + g if i > 56 else g[:1] + [Ins('; after 9')] + g[1:]
            w2q.append(g)
            if nx is not None and (nx != 4 or not OPT.get('p3only', 1)) and i == lo + 1: w2q.append(G(pf(nx)))
            if OPT.get('p3only', 1) and i == OPT.get('psidx', 27): w2q.append(G(pf(4)))
    w2i = NW2
    dmaA, dmaB = dma[:14], dma[14:]
    vm = ssm_rest[NS:] + [w1k.ins + dmaA[0]] + dmaA[1:] + w1g + dmaB
    w2q[0] = [Ins('; at %d' % OPT['tc'])] + w2q[0]
    if OPT['w2early']: vm += w2q
    st, carry = weave(q.ins, vm, OPT['per'], 0, OPT['perd'], events=[(OPT['tp'], G(pf(0)))])
    kt = [k for k, i in enumerate(st) if i.text.startswith('v_lshl_add_u32 v%d' % vPF)][0]
    kp = [k for k, i in enumerate(st) if i.text == pf(0)][0]
    assert kt < kp
    if carry and carry[0][0].text.startswith('; at'): carry[0] = carry[0][1:]
    if not OPT['w2early']: carry += w2q
    assert not any(x.tok in ('ffnA', 'ssmw') for g in carry for x in g)
    pos_b = [k for k, i in enumerate(st) if i.kind == 'barrier'][0]
    assert not any(i.tok == 'ssmw' for i in st[pos_b:]), 'SSM DMA after B1'
    p.extend(st)
    stamp(p, 'ssmend')
    p.waitvm('ffnA')
    stamp(p, 'Ain')
    p('s_waitcnt lgkmcnt(0)')
    p('s_barrier')
    stamp(p, 'B2')
    p('s_lshl_b32 s%d, s%d, 13' % (sT4, sC)); p('s_add_u32 s%d, s%d, %d' % (sT4, sT4, WS_EG))
    p('s_add_u32 s%d, s6, s%d' % (SEG, sT4)); p('s_addc_u32 s%d, s7, 0' % (SEG + 1))
    p('s_mov_b32 s%d, 8192' % (SEG + 2)); p('s_mov_b32 s%d, 0x20000' % (SEG + 3))
    p('s_lshl_b32 s%d, s%d, 12' % (sT2, sW))
    tail_dma = []
    for j in (5, 6):
        for e in range(2):
            tail_dma.append((G('s_add_u32 m0, s%d, %d' % (sT2, L_SW - 128 + 2 * (j - 5) * 1024)) if e == 0 else []) + G(
                'buffer_load_dwordx4 v%d, %s, s%d offen offset:%d lds' % (vW1O[e], srd(SW1), W1K[j], 128 + 1024 * e), tok='ffnB'))

    def ffn_read(T, ks, n):
        dt, tt = T // 2, T % 2
        j, i = ks // 4, ks % 4
        if dt == 0: U = i * L_XW + 2 * j * 1024
        elif j <= 4: U = i * L_XW + 14336 + 2 * j * 1024
        else: U = L_SW - L0 + i * 4096 + 2 * (j - 5) * 1024
        z = Prog()
        for hh in range(2):
            off = U + hh * 512; win = 0
            if off >= 65536: off -= 65536; win = 1
            z('ds_read_b64_tr_b16 %s, v%d offset:%d' % (v2(wbuf(n) + 2 * hh), vRF[tt][win], off), tok=('wf', n))
        return z.ins
    def silu(T):
        acc = F0 if T % 2 == 0 else F1
        z = Prog()
        tp = [vT0, vT1, vT2, vBO]
        for b in range(0, 16, 4):
            for k in range(4): z('v_mul_f32 v%d, v%d, v%d' % (tp[k], vNK, acc + b + k))
            for k in range(4): z('v_exp_f32 v%d, v%d' % (tp[k], tp[k]))
            for k in range(4): z('v_fma_f32 v%d, v%d, v%d, v%d' % (tp[k], tp[k], vS, vS))
            for k in range(4): z('v_rcp_f32 v%d, v%d' % (tp[k], tp[k]))
            for k in range(4): z('v_mul_f32 v%d, v%d, v%d' % (acc + b + k, acc + b + k, tp[k]))
            z('v_cvt_pk_bf16_f32 v%d, v%d, v%d' % (acc + b // 2, acc + b, acc + b + 1))
            z('v_cvt_pk_bf16_f32 v%d, v%d, v%d' % (acc + b // 2 + 1, acc + b + 2, acc + b + 3))
            if b == 4:
                z('s_add_u32 s%d, s%d, %d' % (sT2, sHW, T * 28 * 1024))
                z('buffer_store_dwordx4 %s, v%d, %s, s%d offen%s' % (v4(acc), vL16, srd(SWS), sT2, HSC), tok=('hs', T))
        z('buffer_store_dwordx4 %s, v%d, %s, s%d offen offset:1024%s' % (v4(acc + 4), vL16, srd(SWS), sT2, HSC), tok=('hs', T))
        return z.ins
    E0r, E0i, E1r, E1i = vXO[0], vXO[1], vXO[2], vXO[3]
    def scan1():
        z = Prog()
        for g in range(4):
            for i in range(4):
                z('v_mul_f32 v%d, v%d, v%d' % (SRE + 4 * g + i, RSF + 4 * g + i, SRE + 4 * g + i))
                z('v_mul_f32 v%d, v%d, v%d' % (SIM + 4 * g + i, RSF + 4 * g + i, SIM + 4 * g + i))
        for i in range(1, 4):
            for g in range(4):
                a, b = SRE + 4 * g + i, SIM + 4 * g + i
                z('v_fmac_f32 v%d, v%d, v%d' % (a, L1r, a - 1))
                z('v_fmac_f32 v%d, v%d, v%d' % (b, L1r, b - 1))
                z('v_fmac_f32 v%d, v%d, v%d' % (a, N1i, b - 1))
                z('v_fmac_f32 v%d, v%d, v%d' % (b, L1i, a - 1))
        for g in range(4):
            b = RSF + 4 * g
            z('v_mov_b32 v%d, v%d' % (b, SRE + 4 * g + 3)); z('v_mov_b32 v%d, v%d' % (b + 1, SRE + 4 * g + 3))
            z('v_mov_b32 v%d, v%d' % (b + 2, SIM + 4 * g + 3)); z('v_mov_b32 v%d, v%d' % (b + 3, SIM + 4 * g + 3))
        for g in range(4):
            b = RSF + 4 * g
            z('v_permlane32_swap_b32 v%d, v%d' % (b, b + 1)); z('v_permlane32_swap_b32 v%d, v%d' % (b + 2, b + 3))
        cur = (RSF, RSF + 2); nxt = [(E0r, E0i), (E1r, E1i)]
        for s in range(1, 8):
            g, h = s // 2, s % 2
            er, ei = RSF + 4 * g + h, RSF + 4 * g + 2 + h
            d = nxt[s % 2]
            z('v_fma_f32 v%d, v%d, v%d, v%d' % (d[0], L4r, cur[0], er))
            z('v_fma_f32 v%d, v%d, v%d, v%d' % (d[1], L4r, cur[1], ei))
            z('v_fma_f32 v%d, -v%d, v%d, v%d' % (d[0], L4i, cur[1], d[0]))
            z('v_fmac_f32 v%d, v%d, v%d' % (d[1], L4i, cur[0]))
            cur = d
        z('s_lshl_b32 s%d, s%d, 8' % (sT4, sW))
        z('v_lshl_add_u32 v%d, v%d, 3, s%d' % (vT0, vP, sT4))
        z('ds_write_b64 v%d, v[%d:%d] offset:%d' % (vT0, E1r, E1i, L_EW), tok='ew')
        return z.ins
    def fl_load(stage): return 'buffer_load_dwordx2 v[%d:%d], v%d, %s, s%d offen sc1' % (FR2, FR2 + 1, vFA, srd(SWS), sT6)
    def fl_issue(stage): return G('s_mov_b32 s%d, %d' % (sT6, stage * 8192), fl_load(stage))
    n0 = 56
    seq = [(T, ks) for T in range(4) for ks in range(28)]
    for m in range(PRE): p.extend(ffn_read(seq[m][0], seq[m][1], n0 + m))
    EWR = TMP + 0
    LB = X
    lbp = Prog()
    lbp('s_sub_u32 s%d, s%d, 1' % (sT0, sR)); lbp('s_lshl_b32 s%d, s%d, 9' % (sT0, sT0))
    lbp('v_lshlrev_b32 v%d, 9, v%d' % (vRX[1], vH))
    lbp('v_sub_u32 v%d, s%d, v%d' % (vRX[1], sT0, vRX[1]))
    lbp('v_lshl_add_u32 v%d, v%d, 4, v%d' % (vRX[0], vP, vRX[1]))
    lb_groups = []
    for m in range(8):
        z = Prog()
        if m: z('v_subrev_u32 v%d, %d, v%d' % (vRX[1], 1024 * m, vRX[0]))
        z('buffer_load_dwordx4 %s, v%d, %s, 0 offen sc1' % (v4(LB + 4 * m), vRX[1] if m else vRX[0], srd(SEG)))
        lb_groups.append(z.ins)
    lb_text = '\n'.join(i.text for g in lb_groups for i in g)
    pool = []
    hid_regs = {}
    hstate = {0: None, 1: None}
    def hid_load(idx):
        rt = idx % 2
        if idx < 56: base, off = (sH0, sH1)[rt], ((idx // 14) * 28 + (idx % 14) // 2) * 1024
        else: base, off = (sH0S, sH1S)[rt], (112 + (idx - 56) // 2) * 1024
        reg = pool.pop(0); hid_regs[idx] = reg
        sreg = sT3 if rt == 0 else sT4
        z = Prog()
        key = (base, off - off % 4096)
        if hstate[rt] != key:
            z('s_add_u32 s%d, s%d, %d' % (sreg, base, off - off % 4096)); hstate[rt] = key
        z('buffer_load_dwordx4 %s, v%d, %s, s%d offen offset:%d sc1' % (v4(reg), vL16, srd(SWS), sreg, off % 4096), tok=('hid', idx))
        return z.ins
    stage_of = lambda idx: min(idx // 14, 4)
    hi = 0
    checked = set()
    def hid_next():
        nonlocal hi
        assert stage_of(hi) in checked
        g = hid_load(hi); hi += 1
        return g
    def fl_check(st):
        checked.add(st)
        return poll_check('f%d' % st, 's%d' % sPMASK, fl_load(0), FR2)
    def split_at_need(vm):
        for k, g in enumerate(vm):
            if g and g[0].text == '; need B4': return vm[:k], vm[k:]
        return vm, []
    for T in range(4):
        groups = []
        acc = F0 if T % 2 == 0 else F1
        for ks in range(28):
            m = T * 28 + ks
            z = Prog()
            if ks % 2 == 0: z.waitlgkm(('wf', n0 + m + 1))
            z('v_mfma_f32_32x32x16_bf16 %s, %s, %s, %s' % (v16(acc), v4(wbuf(n0 + m)), v4(X + 4 * ks), '0' if ks == 0 else v16(acc)))
            if m + PRE < 112:
                z.extend(ffn_read(seq[m + PRE][0], seq[m + PRE][1], n0 + m + PRE))
            groups.append(z.ins)
        q = Prog()
        held = []; ev = []
        if T == 0:
            q.extend(groups[0]); q.extend(groups[1])
            q.extend(interleave(groups[2:], scan1()))
            nb = [g for g in carry if any(x.tok == 'ffnB' for x in g)]
            k = max([carry.index(g) for g in nb]) + 1 if nb else 0
            vm = carry[:k] + tail_dma + carry[k:]
        elif T == 1:
            pre = Prog()
            GE = vXO[0]
            pre('v_fma_f32 v%d, v%d, v%d, v%d' % (vT0, L32r, EWR, EWR + 2)); pre('v_fma_f32 v%d, v%d, v%d, v%d' % (vT1, L32r, EWR + 1, EWR + 3))
            pre('v_fma_f32 v%d, -v%d, v%d, v%d' % (vT0, L32i, EWR + 1, vT0)); pre('v_fmac_f32 v%d, v%d, v%d' % (vT1, L32i, EWR))
            pre('v_fma_f32 v%d, v%d, v%d, v%d' % (vT2, L32r, vT0, EWR + 4)); pre('v_fma_f32 v%d, v%d, v%d, v%d' % (vT3, L32r, vT1, EWR + 5))
            pre('v_fma_f32 v%d, -v%d, v%d, v%d' % (vT2, L32i, vT1, vT2)); pre('v_fmac_f32 v%d, v%d, v%d' % (vT3, L32i, vT0))
            pre('v_fma_f32 v%d, v%d, v%d, v%d' % (GE, L32r, vT2, EWR + 6)); pre('v_fma_f32 v%d, v%d, v%d, v%d' % (GE + 1, L32r, vT3, EWR + 7))
            pre('v_fma_f32 v%d, -v%d, v%d, v%d' % (GE, L32i, vT3, GE)); pre('v_fmac_f32 v%d, v%d, v%d' % (GE + 1, L32i, vT2))
            pre('v_mov_b32 v%d, s%d' % (GE + 2, sTL)); pre('v_mov_b32 v%d, s%d' % (GE + 3, sTH))
            pre('s_lshl_b32 s%d, s%d, 3' % (sT4, sW)); pre('s_lshl_b32 s%d, 0xff, s%d' % (sT4, sT4))
            pre('s_lshl_b32 s%d, s%d, 9' % (sT0, sR))
            egs = G('s_mov_b32 exec_lo, s%d' % sT4, 's_mov_b32 exec_hi, 0',
                    'buffer_store_dwordx4 %s, v%d, %s, s%d offen sc1' % (v4(GE), vL16, srd(SEG), sT0), 's_mov_b64 exec, -1')
            q.extend(interleave(groups[:5], pre.ins)); q.extend(egs)
            q.extend(interleave(groups[5:OPT['send'] + 1], silu(0)))
            for g in groups[OPT['send'] + 1:]: q.extend(g)
            vm = carry
        else:
            q.extend(groups[0]); q.extend(groups[1]); q.extend(groups[2])
            q.extend(interleave(groups[3:OPT['send']], silu(T - 1)))
            for g in groups[OPT['send']:]: q.extend(g)
            if T == 2:
                vm = carry; ev = [(OPT['tf'], flag_group(sFW, 0, ('hs', 0)))]
            else:
                lbs = [[Ins('; after 9')] + lbp.ins + lb_groups[0] + lb_groups[1] + lb_groups[2] + lb_groups[3], lb_groups[4] + lb_groups[5] + lb_groups[6] + lb_groups[7]]
                for g in lbs:
                    for x in g: x.text = x.text
                vm = carry
                ev = [(420, lbs[0][1:]), (520, lbs[1]), (OPT['tf'], flag_group(sFW, 8192, ('hs', 1))), (OPT['tp0'], fl_issue(0))]
        if T < 3: vm, held = split_at_need(vm)
        if T == 3: vm = [g[1:] if g and g[0].text == '; need B4' else g for g in vm]
        st, carry = weave(q.ins, vm, OPT['per'], 60 if T == 2 else 0, OPT['perd'], small=(SEG,), events=ev)
        carry += held
        if T == 3:
            mf = [k for k, i in enumerate(st) if i.kind == 'mfma']
            pos_l = [k for k, i in enumerate(st) if i.kind == 'vload' and 's[%d:%d]' % (SEG, SEG + 3) in i.text]
            assert len(pos_l) == 8 and pos_l[0] > mf[7], (pos_l, mf[7])
            pos_h = [k for k, i in enumerate(st) if isinstance(i.tok, tuple) and i.tok[0] == 'hid']
            assert not pos_h or pos_h[0] > mf[11]
        p.extend(st)
        if T == 0:
            assert not any(x.tok == 'ffnB' for g in carry for x in g)
            p.waitlgkm('ew'); p.waitvm('ffnB')
            p('s_barrier')
            p('v_lshlrev_b32 v%d, 3, v%d' % (vT0, vP))
            for k in range(4): p('ds_read_b64 v[%d:%d], v%d offset:%d' % (EWR + 2 * k, EWR + 2 * k + 1, vT0, L_EW + 256 * k))
        stamp(p, 'T%d' % T)
        print('after T%d: %d groups pending' % (T, len(carry)))
    pool += [WB + 4 * k for k in range(8)] + [F0 + 4 * k for k in range(4)]
    carry = [[x for x in g if not x.text.startswith('; after')] for g in carry]
    p('s_add_u32 s%d, s%d, %d' % (sH1S, sH0S, 168 * 1024))

    q = Prog()
    s3 = silu(3)
    q.extend(s3)
    stamp(q, 'silu3')
    def lb_check(z, lab_bad):
        z('v_add3_u32 v%d, v%d, v%d, v%d' % (vT0, LB + 2, LB + 6, LB + 10)); z('v_add3_u32 v%d, v%d, v%d, v%d' % (vT1, LB + 3, LB + 7, LB + 11))
        z('v_add3_u32 v%d, v%d, v%d, v%d' % (vT0, vT0, LB + 14, LB + 18)); z('v_add3_u32 v%d, v%d, v%d, v%d' % (vT1, vT1, LB + 15, LB + 19))
        z('v_add3_u32 v%d, v%d, v%d, v%d' % (vT0, vT0, LB + 22, LB + 26)); z('v_add3_u32 v%d, v%d, v%d, v%d' % (vT1, vT1, LB + 23, LB + 27))
        z('v_add_u32 v%d, v%d, v%d' % (vT0, vT0, LB + 30)); z('v_add_u32 v%d, v%d, v%d' % (vT1, vT1, LB + 31))
        k0 = len(z.ins)
        z('v_cmp_ne_u32 vcc, v%d, v%d' % (vT0, vT2))
        z('v_cmp_ne_u32 s[%d:%d], v%d, v%d' % (sP0, sP0 + 1, vT1, vT3))
        z('s_nop 1')
        z('s_or_b64 vcc, vcc, s[%d:%d]' % (sP0, sP0 + 1))
        z('s_cbranch_scc1 %s' % lab_bad)
        for i in z.ins[k0:]: i.note = 'glue'
    q('v_sub_u32 v%d, s%d, v%d' % (vT3, sR, vH)); q('v_add_u32 v%d, 1, v%d' % (vT3, vT3)); q('v_lshrrev_b32 v%d, 1, v%d' % (vT3, vT3))
    q('v_mul_lo_u32 v%d, s%d, v%d' % (vT2, sTL, vT3)); q('v_mul_lo_u32 v%d, s%d, v%d' % (vT3, sTH, vT3))
    lb_check(q, 'L_retry_lb')
    q('L_ok_lb:')
    stamp(q, 'lbok')
    z = Prog()
    z('L_retry_lb:'); z('s_mov_b32 s%d, 0' % sSPIN); z('L_loop_lb:'); z('s_sleep 1'); z(lb_text); z('s_waitcnt vmcnt(0)')
    if OPT['stamps']: z('v_add_u32 v%d, 0x100, v%d' % (vRSv, vRSv))
    z('s_add_u32 s%d, s%d, 1' % (sSPIN, sSPIN)); z('s_cmp_gt_u32 s%d, %d' % (sSPIN, OPT['spin'])); z('s_cbranch_scc1 L_ok_lb')
    lb_check(z, 'L_loop_lb'); z('s_branch L_ok_lb')
    retry_blocks.append(z)
    for m in range(6, -1, -1):
        cmac(q, LB + 4 * m, LB + 4 * m + 1, L256r, L256i, LB + 4 * m + 4, LB + 4 * m + 5)
    q('v_mov_b32 v%d, v%d' % (LB + 4, LB)); q('v_mov_b32 v%d, v%d' % (LB + 5, LB + 1))
    q('v_permlane32_swap_b32 v%d, v%d' % (LB, LB + 4)); q('v_permlane32_swap_b32 v%d, v%d' % (LB + 1, LB + 5))
    cmac(q, LB, LB + 1, L128r, L128i, LB + 4, LB + 5)
    cmac(q, EWR, EWR + 1, L32r, L32i, LB, LB + 1)
    cmac(q, EWR + 2, EWR + 3, L32r, L32i, EWR, EWR + 1)
    cmac(q, EWR + 4, EWR + 5, L32r, L32i, EWR + 2, EWR + 3)
    CS = LB + 8
    q('v_mov_b32 v%d, v%d' % (CS, LB)); q('v_mov_b32 v%d, v%d' % (CS + 1, LB + 1))
    for k in range(3):
        k0 = len(q.ins)
        q('s_cmp_eq_u32 s%d, %d' % (sW, k + 1)); q('s_cselect_b64 vcc, -1, 0')
        q('v_cndmask_b32 v%d, v%d, v%d, vcc' % (CS, CS, EWR + 2 * k))
        for i in q.ins[k0:]: i.note = 'glue'
        q('v_cndmask_b32 v%d, v%d, v%d, vcc' % (CS + 1, CS + 1, EWR + 2 * k + 1))
    for s in range(7):
        g, h = s // 2, s % 2
        er, ei = RSF + 4 * g + h, RSF + 4 * g + 2 + h
        d, cur = CS + 2 * (s + 1), CS + 2 * s
        q('v_fma_f32 v%d, v%d, v%d, v%d' % (d, L4r, cur, er))
        q('v_fma_f32 v%d, v%d, v%d, v%d' % (d + 1, L4r, cur + 1, ei))
        q('v_fma_f32 v%d, -v%d, v%d, v%d' % (d, L4i, cur + 1, d))
        q('v_fmac_f32 v%d, v%d, v%d' % (d + 1, L4i, cur))
    k0 = len(q.ins)
    q('s_mov_b32 vcc_lo, 0'); q('s_mov_b32 vcc_hi, -1')
    for g in range(4):
        a = CS + 4 * g
        q('v_cndmask_b32 v%d, v%d, v%d, vcc' % (a, a, a + 2))
        q('v_cndmask_b32 v%d, v%d, v%d, vcc' % (a + 1, a + 1, a + 3))
    for i in q.ins[k0:-1]: i.note = 'glue'
    for g in range(4):
        a = CS + 4 * g
        q('v_sub_f32 v%d, 0, v%d' % (a + 2, a + 1))
    stamp(q, 'carry')
    q.extend(epilogue_loads())
    PW = [(L1r, L1i), (L2r, L2i), (L3r, L3i), (L4r, L4i)]
    for g in range(4):
        a = CS + 4 * g
        for i in range(4):
            ur, ui = SRE + 4 * g + i, SIM + 4 * g + i
            q('v_fmac_f32 v%d, v%d, v%d' % (ur, PW[i][0], a))
            q('v_fmac_f32 v%d, v%d, v%d' % (ui, PW[i][0], a + 1))
            q('v_fmac_f32 v%d, v%d, v%d' % (ur, PW[i][1], a + 2))
            q('v_fmac_f32 v%d, v%d, v%d' % (ui, PW[i][1], a))
        for comp, base in ((0, SRE), (1, SIM)):
            b = base + 4 * g
            q('v_cvt_pk_bf16_f32 v%d, v%d, v%d' % (b, b, b + 1))
            q('v_cvt_pk_bf16_f32 v%d, v%d, v%d' % (b + 1, b + 2, b + 3))
            q('ds_write_b64 v%d, v[%d:%d] offset:%d' % (vTW, b, b + 1, comp * 2304 + 16 * g))
    stamp(q, 'fix')
    HS = F1
    for comp in range(2):
        for q_ in range(2):
            for hh in range(2):
                q('ds_read_b64_tr_b16 %s, v%d offset:%d' % (v2(HS + 8 * comp + 4 * q_ + 2 * hh), vTRr, comp * 2304 + (16 * q_ + 4 * hh) * 72))
    q('s_lshl_b32 s%d, s%d, 11' % (sT2, sC)); q('s_add_u32 s%d, s%d, s%d' % (sT2, sT2, sHW)); q('s_add_u32 s%d, s%d, %d' % (sT2, sT2, 112 * 1024))
    for _ in range(10): q('; pad')
    for f in range(4):
        q('buffer_store_dwordx4 %s, v%d, %s, s%d offen offset:%d%s' % (v4(HS + 4 * f), vL16, srd(SWS), sT2, f * 1024, HSC), tok='hsC')
    vm = carry[:5] + [[Ins('; at %d' % OPT['tc0'])] + fl_check(0)] + [hid_next() for _ in range(12)] + carry[5:]
    ev = [(OPT['tp1'], fl_issue(1)), (OPT['tf2'], flag_group(sFW, 2 * 8192, ('hs', 2)))]
    q.ins = [i for i in q.ins if not i.text.startswith('; mark')]
    st, left = weave(q.ins, vm, OPT['perh'], events=ev)
    k0 = [k for k, i in enumerate(st) if i.text == 'L_ok_f0:'][0]; k1 = [k for k, i in enumerate(st) if i.text.startswith('s_mov_b32 s%d, 8192' % sT6)][0]
    assert k0 < k1
    p.extend(st)
    pool += [F1 + 4 * k for k in range(4)]
    fillr = epilogue_pre()
    ACC = {(0, 0): SRE, (0, 1): SIM, (1, 0): 192, (1, 1): 208}
    fk = 0
    when = {}
    pstep = {OPT['p2']: 2, OPT['p3']: 3, OPT['p4']: 4}
    cstep = {OPT['c1']: 1, OPT['p2'] + OPT['pd']: 2, OPT['p3'] + OPT['pd']: 3, OPT['p4'] + OPT['pd']: 4}
    real_p = p
    late = []
    for step in range(42):
        if step in (0, 7, 14, 21, 28, 35) or OPT.get('allg'): stamp(real_p, 'g%d' % step)
        side = []
        while any((isinstance(x.tok, tuple) and x.tok[0] == 'hid') or 's_mov_b32 s%d' % sT6 in x.text for g in left for x in g):
            (real_p.extend if step == 0 else side.append)(left.pop(0))
        if step == OPT['f3']: side.append(flag_group(sFW, 3 * 8192, ('hs', 3)))
        if step == OPT['f4']: side.append(flag_group(sFW, 4 * 8192, 'hsC'))
        if step in cstep: side.append(fl_check(cstep[step]))
        if step in pstep:
            assert pstep[step] - 1 in checked
            side.append(fl_issue(pstep[step]))
        nh = 0
        while hi < 84 and hi < 2 * step + 4 + OPT['ahead'] and pool and stage_of(hi) in checked and nh < OPT.get('maxh', 4): side.append(hid_next()); nh += 1
        for rep in range(2):
            if rep == 1 and len(left) + 84 - w2i <= max(0, 30 - step): break
            if left: side.append(left.pop(0))
            elif w2i < 84 and len(pool) > 2 and step >= OPT.get('w2s', 2) and nh < 3:
                reg = pool.pop(0); side.append(w2_load(w2i, reg)); w2i += 1
        if step == OPT.get('ots', 30) and OPT['tch'] & 4:
            side.append(G('s_mov_b64 exec, 1', 'buffer_load_dword v%d, v%d, %s, s%d offen' % (vT3, vZ, srd(SOUT), sOO), 's_mov_b64 exec, -1'))
        if step == OPT.get('b5', 36): side.append(G('s_barrier'))
        for i in (2 * step + 4, 2 * step + 5):
            if i < 84 and isinstance(w2_regs.get(i), tuple):
                d = w2_regs[i]; reg = pool.pop(0)
                z = Prog(); z.waitvm(('w2', i))
                z('ds_read_b128 %s, v%d offset:%d' % (v4(reg), vFA2 if d[1] == sLT else vFA3, d[2] + 4096))
                side.append(z.ins)
                w2_regs[i] = reg
        w0, w1_ = w2_regs[2 * step], w2_regs[2 * step + 1]
        h0, h1 = hid_regs[2 * step], hid_regs[2 * step + 1]
        em = set(x.tok for x in p.ins if isinstance(x.tok, tuple))
        for t in (('w2', 2 * step), ('w2', 2 * step + 1), ('hid', 2 * step), ('hid', 2 * step + 1)): assert t in em, t
        k = 0
        NL = OPT.get('nlast', 3)
        order = ((0, 0), (0, 1), (1, 0), (1, 1))
        if step >= 42 - NL:
            late.append((w1_, h0, h1)); order = order[:2]
        for n, (ct, rt) in enumerate(order):
            a = ACC[(ct, rt)]
            p('v_mfma_f32_32x32x16_bf16 %s, %s, %s, %s' % (v16(a), v4((w0, w1_)[ct]), v4((h0, h1)[rt]), '0' if step == 0 else v16(a)))
            tgt = (len(side) * (n + 1) + len(order) - 1) // len(order)
            c = 0
            for g in side[k:tgt]: p.extend(g); c += sum(cost(x) for x in g)
            k = tgt
            while step >= OPT.get('fs', 1) and fk < len(fillr) and (c < OPT.get('fb', 36) or fillr[fk - 1].note == 'glue'):
                i = fillr[fk]; fk += 1
                c += cost(i)
                p.ins.append(i)
        pool += [w0, w1_, h0, h1]
    wr = [G('ds_write_b128 v%d, %s offset:%d' % (PWA + g, v4(ACC[(0, rt)] + 4 * g), rt * 8192)) for rt in range(2) for g in range(4)] if late else []
    mm = [G('v_mfma_f32_32x32x16_bf16 %s, %s, %s, %s' % (v16(ACC[(1, rt)]), v4(w), v4((a_, b_)[rt]), v16(ACC[(1, rt)]))) for (w, a_, b_) in late for rt in range(2)]
    for n, g in enumerate(mm):
        p.extend(g)
        if n >= 1:
            for _ in range(2):
                if wr: p.extend(wr.pop(0))
    for g in wr: p.extend(g)
    OPT['_ct0done'] = bool(late)
    assert fk == len(fillr) and w2i == 84 and not left, (fk, len(fillr), w2i, len(left))
    print('G2 marks', when)
    stamp(p, 'g2end')
    epilogue(p, ACC)

EX, ED, ST, DD = TMP + 0, TMP + 8, TMP + 10, TMP + 18
EB, ET, PWA, PRA, vOO, PRB = X + 0, X + 16, X + 24, X + 28, X + 30, X + 22
sXO, sOO = 38, 39
def epilogue_loads():
    p = Prog()
    p('v_lshrrev_b32 v%d, 4, v%d' % (vT0, vL)); p('v_and_b32 v%d, 15, v%d' % (vT1, vL))
    p('v_mul_u32_u24 v%d, 896, v%d' % (vT2, vT0)); p('v_lshl_add_u32 v%d, v%d, 3, v%d' % (vT2, vT1, vT2))
    p('s_lshl_b32 s%d, s%d, 5' % (sXO, sRT0)); p('s_lshl_b32 s%d, s%d, 4' % (sT1, sW)); p('s_add_u32 s%d, s%d, s%d' % (sXO, sXO, sT1))
    p('s_mul_i32 s%d, s%d, 896' % (sXO, sXO)); p('s_lshl_b32 s%d, s%d, 7' % (sT1, sCB)); p('s_add_u32 s%d, s%d, s%d' % (sXO, sXO, sT1))
    p('s_add_u32 s%d, s%d, %d' % (sT0, sXO, 8 * 896))
    for it in range(4):
        p('buffer_load_dwordx2 v[%d:%d], v%d, %s, s%d offen offset:%d' % (EX + 2 * it, EX + 2 * it + 1, vT2, srd(SX), sXO if it < 2 else sT0, (it % 2) * 4 * 896))
    p('v_lshlrev_b32 v%d, 3, v%d' % (vT3, vT1))
    p('buffer_load_dwordx2 v[%d:%d], v%d, %s, s%d offen' % (ED, ED + 1, vT3, srd(SDSK), sT1))
    p('s_lshl_b32 s%d, s%d, 9' % (sT1, sHALF)); p('s_lshl_b32 s%d, s%d, 7' % (sT0, sW)); p('s_add_u32 s%d, s%d, s%d' % (sT1, sT1, sT0))
    p('v_lshl_add_u32 v%d, v%d, 3, s%d' % (vT3, vT0, sT1))
    for it in range(4):
        p('ds_read_b64 v[%d:%d], v%d offset:%d' % (ST + 2 * it, ST + 2 * it + 1, vT3, L_MR + 32 * it))
    return p.ins

def epilogue_pre():
    p = Prog()
    p('v_lshlrev_b32 v%d, 1, v%d' % (vOO, vT2))
    p('s_lshl_b32 s%d, s%d, 1' % (sOO, sXO))
    p('v_and_b32 v%d, 7, v%d' % (PWA, vP)); p('v_xor_b32 v%d, v%d, v%d' % (PWA, PWA, vH)); p('v_lshlrev_b32 v%d, 4, v%d' % (PWA, PWA))
    p('v_lshl_add_u32 v%d, v%d, 8, v%d' % (PWA, vP, PWA))
    p('v_add_u32 v%d, s%d, v%d' % (PWA, sLW, PWA))
    for g in range(1, 4): p('v_xor_b32 v%d, %d, v%d' % (PWA + g, g << 5, PWA))
    p('v_xor_b32 v%d, v%d, v%d' % (PRA, vT1, vT0)); p('v_lshlrev_b32 v%d, 4, v%d' % (PRA, PRA))
    p('v_lshl_add_u32 v%d, v%d, 8, v%d' % (PRA, vT0, PRA))
    p('s_lshl_b32 s%d, s%d, 12' % (sT1, sW)); p('s_add_u32 s%d, s%d, %d' % (sT1, sT1, L0)); p('v_add_u32 v%d, s%d, v%d' % (PRA, sT1, PRA))
    p('v_xor_b32 v%d, 64, v%d' % (PRA + 1, PRA)); p('v_add_u32 v%d, 1024, v%d' % (PRA + 1, PRA + 1))
    p('v_add_u32 v%d, %d, v%d' % (PRB, 3 * L_XW, PRA)); p('v_add_u32 v%d, %d, v%d' % (PRB + 1, 3 * L_XW, PRA + 1))
    D = DD; T = ET
    p('v_lshlrev_b32 v%d, 16, v%d' % (D, ED)); p('v_and_b32 v%d, s%d, v%d' % (D + 1, sMHI, ED))
    p('v_lshlrev_b32 v%d, 16, v%d' % (D + 2, ED + 1)); p('v_and_b32 v%d, s%d, v%d' % (D + 3, sMHI, ED + 1))
    for it in range(4):
        b = EB + 4 * it; m, rs = ST + 2 * it, ST + 2 * it + 1
        p('v_lshlrev_b32 v%d, 16, v%d' % (b, EX + 2 * it)); p('v_and_b32 v%d, s%d, v%d' % (b + 1, sMHI, EX + 2 * it))
        p('v_lshlrev_b32 v%d, 16, v%d' % (b + 2, EX + 2 * it + 1)); p('v_and_b32 v%d, s%d, v%d' % (b + 3, sMHI, EX + 2 * it + 1))
        for k in range(4): p('v_sub_f32 v%d, v%d, v%d' % (T + k, b + k, m))
        def rnd():
            p('v_cvt_pk_bf16_f32 v%d, v%d, v%d' % (T + 4, T, T + 1)); p('v_cvt_pk_bf16_f32 v%d, v%d, v%d' % (T + 5, T + 2, T + 3))
            p('v_lshlrev_b32 v%d, 16, v%d' % (T, T + 4)); p('v_and_b32 v%d, s%d, v%d' % (T + 1, sMHI, T + 4))
            p('v_lshlrev_b32 v%d, 16, v%d' % (T + 2, T + 5)); p('v_and_b32 v%d, s%d, v%d' % (T + 3, sMHI, T + 5))
        rnd()
        for k in range(4): p('v_mul_f32 v%d, v%d, v%d' % (T + k, T + k, rs))
        rnd()
        for k in range(4): p('v_mul_f32 v%d, v%d, v%d' % (T + k, T + k, D + k))
        rnd()
        for k in range(4): p('v_add_f32 v%d, v%d, v%d' % (b + k, b + k, T + k))
    return p.ins

def epilogue(p, ACC):
    for rt in range(2):
        for ct in range(1 if OPT.get('_ct0done') else 0, 2):
            for g in range(4):
                p('ds_write_b128 v%d, %s offset:%d' % (PWA + g, v4(ACC[(ct, rt)] + 4 * g), rt * 8192 + ct * 128))
    p('s_waitcnt lgkmcnt(0)')
    p('s_barrier')
    R = 48
    for it in range(4):
        for P in range(4):
            p('ds_read_b128 %s, v%d offset:%d' % (v4(R + 16 * it + 4 * P), (PRA if P < 3 else PRB) + (it & 1), (P % 3) * L_XW + (it >> 1) * 2048))
    for it in range(4):
        b = EB + 4 * it; r_ = R + 16 * it
        p('v_pk_add_f32 v[%d:%d], v[%d:%d], v[%d:%d]' % (r_, r_ + 1, r_, r_ + 1, r_ + 4, r_ + 5))
        p('v_pk_add_f32 v[%d:%d], v[%d:%d], v[%d:%d]' % (r_ + 2, r_ + 3, r_ + 2, r_ + 3, r_ + 6, r_ + 7))
        p('v_pk_add_f32 v[%d:%d], v[%d:%d], v[%d:%d]' % (r_ + 8, r_ + 9, r_ + 8, r_ + 9, r_ + 12, r_ + 13))
        p('v_pk_add_f32 v[%d:%d], v[%d:%d], v[%d:%d]' % (r_ + 10, r_ + 11, r_ + 10, r_ + 11, r_ + 14, r_ + 15))
        p('v_pk_add_f32 v[%d:%d], v[%d:%d], v[%d:%d]' % (b, b + 1, b, b + 1, r_, r_ + 1))
        p('v_pk_add_f32 v[%d:%d], v[%d:%d], v[%d:%d]' % (b + 2, b + 3, b + 2, b + 3, r_ + 2, r_ + 3))
        p('v_pk_add_f32 v[%d:%d], v[%d:%d], v[%d:%d]' % (b, b + 1, b, b + 1, r_ + 8, r_ + 9))
        p('v_pk_add_f32 v[%d:%d], v[%d:%d], v[%d:%d]' % (b + 2, b + 3, b + 2, b + 3, r_ + 10, r_ + 11))
        p('s_add_u32 s%d, s%d, %d' % (sT2, sOO, it * 4 * 1792))
        p('buffer_store_dwordx4 %s, v%d, %s, s%d offen%s' % (v4(b), vOO, srd(SOUT), sT2, ['', ' sc1', ' nt', ' sc0 sc1', ' sc1 nt'][OPT.get('ost', 0)]))
    if OPT['stamps']:
        stamp(p, 'end')
        p('v_readlane_b32 s%d, v%d, 0' % (sT0, vRSv)); p('s_nop 3'); p('v_writelane_b32 v%d, s%d, 60' % (vDUM, sT0))
        p('s_memrealtime s[%d:%d]' % (sP0, sP0 + 1)); p('s_load_dwordx2 s[36:37], s[0:1], 104'); p('s_waitcnt lgkmcnt(0)')
        p('v_writelane_b32 v%d, s%d, 63' % (vDUM, sP0))
        if OPT.get('amp', -1) >= 0:
            p('s_lshl_b32 s%d, s2, 2' % sT0); p('s_add_u32 s%d, s%d, s%d' % (sT0, sT0, sW)); p('s_cmp_lg_u32 s%d, %d' % (sT0, OPT['dbgwave']))
            p('s_cbranch_scc1 L_noamp')
            if OPT['amp'] == 99:
                p('s_mov_b32 s%d, %d' % (sT2, 0xF0000 + 128 * OPT['xa'])); p('buffer_load_dword v%d, v%d, %s, s%d offen sc1' % (vT0, vZ, srd(SWS), sT2))
                p('s_mov_b32 s%d, %d' % (sT2, 0xF0000 + 128 * OPT['xb'])); p('buffer_load_dword v%d, v%d, %s, s%d offen sc1' % (vT1, vZ, srd(SWS), sT2))
                p('s_waitcnt vmcnt(0)')
                p('v_readfirstlane_b32 s%d, v%d' % (sT0, vT0)); p('v_readfirstlane_b32 s%d, v%d' % (sT1, vT1))
                p('s_nop 3'); p('s_add_u32 s%d, s%d, 100' % (sT0, sT0))
            else:
                p('v_readlane_b32 s%d, v%d, %d' % (sT0, vDUM, OPT['amp'])); p('v_readlane_b32 s%d, v%d, %d' % (sT1, vDUM, OPT.get('amp0', 61)))
            p('s_nop 3')
            p('s_sub_u32 s%d, s%d, s%d' % (sT0, sT0, sT1)); p('s_mul_i32 s%d, s%d, %d' % (sT0, sT0, OPT.get('ampk', 4)))
            p('s_min_u32 s%d, s%d, 400000' % (sT0, sT0))
            p('s_memtime s[84:85]'); p('s_waitcnt lgkmcnt(0)')
            p('L_amp:')
            p('s_memtime s[86:87]'); p('s_waitcnt lgkmcnt(0)')
            p('s_sub_u32 s%d, s86, s84' % sT1); p('s_cmp_lt_u32 s%d, s%d' % (sT1, sT0)); p('s_cbranch_scc1 L_amp')
            p('L_noamp:')
        if OPT['dbg']:
            mk_srd(p, 84, 36, 256)
            p('v_readlane_b32 s%d, v%d, 61' % (sT1, vDUM))
            p('s_lshl_b32 s%d, s2, 2' % sT0); p('s_add_u32 s%d, s%d, s%d' % (sT0, sT0, sW)); p('s_cmp_lg_u32 s%d, %d' % (sT0, OPT['dbgwave']))
            p('s_cbranch_scc1 L_nodbg')
            p('v_subrev_u32 v%d, s%d, v%d' % (vT0, sT1, vDUM))
            p('v_lshlrev_b32 v%d, 2, v%d' % (vT1, vL))
            p('s_mov_b64 exec, 0xffff')
            p('buffer_store_dword v%d, v%d, s[84:87], 0 offen' % (vT0, vT1))
            p('s_mov_b64 exec, -1')
            p('L_nodbg:')
        p('s_lshl_b32 s%d, s2, 2' % sT0); p('s_add_u32 s%d, s%d, s%d' % (sT0, sT0, sW)); p('s_lshl_b32 s%d, s%d, 8' % (sT0, sT0))
        p('s_add_u32 s%d, s%d, %d' % (sT0, sT0, WS_STAMP))
        p('v_lshlrev_b32 v%d, 2, v%d' % (vT0, vL))
        p('buffer_store_dword v%d, v%d, %s, s%d offen' % (vDUM, vT0, srd(SWS), sT0))
    p('s_cmp_eq_u32 s%d, 15' % sR); p('s_cbranch_scc0 L_exit')
    p('s_cmp_eq_u32 s%d, 13' % sC); p('s_cbranch_scc0 L_exit')
    p('s_cmp_eq_u32 s%d, 3' % sW); p('s_cbranch_scc0 L_exit')
    p('s_mov_b32 s%d, %d' % (sT0, WS_EPOCH))
    p.extend(flag_group(sT0, 0))
    p('s_endpgm')

def pstamp(p, k):
    if not OPT['stamps']: return
    p('s_memtime s[90:91]'); p('s_waitcnt lgkmcnt(0)'); p('v_writelane_b32 v%d, s90, %d' % (vDUM, k))

def prep_path(p):
    SW2, SCRE, SCIM = 44, 48, 52
    sQ, sKF, sF0, sKS, sT0T, sCBK, sCTG, sFF = 8, 84, 85, 86, 87, 88, 89, 92
    p('L_prep:')
    p.reset()
    p('s_lshl_b32 s%d, s%d, 2' % (sQ, sT0)); p('s_add_u32 s%d, s%d, s%d' % (sQ, sQ, sT1)); p('s_sub_u32 s%d, s%d, 28' % (sQ, sQ))
    p('s_cmp_ge_u32 s%d, 28' % sQ); p('s_cbranch_scc1 L_exit')
    p('s_lshr_b32 s%d, s%d, 1' % (sF0, sQ)); p('s_lshl_b32 s%d, s%d, 7' % (sF0, sF0))
    p('s_and_b32 s%d, s%d, 1' % (sT0, sQ)); p('s_lshl_b32 s%d, s%d, 4' % (sT0, sT0)); p('s_add_u32 s%d, s%d, s%d' % (sF0, sF0, sT0))
    p('s_mul_i32 s%d, s%d, 896' % (sF0, sF0))
    p('s_lshl_b32 s%d, s%d, 2' % (sT0T, sW)); p('s_min_u32 s%d, s%d, 10' % (sT0T, sT0T))
    p('s_lshl_b32 s%d, s%d, 6' % (sT0, sT0T)); p('s_add_u32 s%d, s%d, s%d' % (sF0, sF0, sT0))
    p('s_mul_i32 s%d, s%d, 26624' % (sLW, sW))
    vWO = 21
    p('v_lshrrev_b32 v%d, 4, v%d' % (vWO, vL)); p('v_mul_u32_u24 v%d, 896, v%d' % (vWO, vWO))
    p('v_and_b32 v%d, 15, v%d' % (vT2, vL)); p('v_lshl_add_u32 v%d, v%d, 4, v%d' % (vWO, vT2, vWO))
    p('s_lshl_b32 s%d, s%d, 2' % (sKF, sQ)); p('s_add_u32 s%d, s%d, s%d' % (sKF, sKF, sW))
    p('s_mul_i32 s%d, s%d, 4682' % (sCBK, sKF)); p('s_lshr_b32 s%d, s%d, 16' % (sCBK, sCBK))
    p('s_mul_i32 s%d, s%d, 14' % (sT0, sCBK)); p('s_sub_u32 s%d, s%d, s%d' % (sCTG, sKF, sT0))
    p('s_waitcnt lgkmcnt(0)')
    mk_srd(p, SW2, 38, 1792 * 896)
    def w2dma(T):
        for i in range(4):
            p('s_add_u32 m0, s%d, %d' % (sLW, T * 4096 + i * 1024)); p('s_add_u32 s%d, s%d, %d' % (sT0, sF0, T * 28672 + i * 3584))
            p('buffer_load_dwordx4 v%d, %s, s%d offen lds' % (vWO, srd(SW2), sT0), tok=('w2', T))
    w2dma(0)
    mk_srd(p, SWS, 6, WS_END)
    p('buffer_load_dwordx2 v[%d:%d], v%d, %s, 0 offen sc1' % (TMP + 28, TMP + 29, vZ, srd(SWS)))
    w2dma(1)
    mk_srd(p, SLRE, 18, 896); mk_srd(p, SLIM, 20, 896); mk_srd(p, SLDT, 30, 896)
    p('v_lshlrev_b32 v%d, 1, v%d' % (vT2, vL)); p('s_lshl_b32 s%d, s%d, 7' % (sT1, sCBK))
    p('buffer_load_ushort v%d, v%d, %s, s%d offen' % (TMP + 0, vT2, srd(SLRE), sT1))
    p('buffer_load_ushort v%d, v%d, %s, s%d offen' % (TMP + 1, vT2, srd(SLIM), sT1))
    p('buffer_load_ushort v%d, v%d, %s, s%d offen' % (TMP + 2, vT2, srd(SLDT), sT1))
    w2dma(2)
    mk_srd(p, SCRE, 26, 448 * 896); mk_srd(p, SCIM, 28, 448 * 896)
    vA = 16
    p('v_lshrrev_b32 v%d, 2, v%d' % (vA, vL)); p('v_and_b32 v%d, 3, v%d' % (vA, vA))
    p('v_lshl_add_u32 v%d, v%d, 2, v%d' % (vA, vH, vA)); p('v_lshlrev_b32 v%d, 8, v%d' % (vA, vA))
    p('v_and_b32 v%d, 16, v%d' % (vT2, vL)); p('v_lshl_add_u32 v%d, v%d, 1, v%d' % (vA, vT2, vA))
    p('v_and_b32 v%d, 3, v%d' % (vT2, vL)); p('v_lshl_add_u32 v%d, v%d, 3, v%d' % (vA, vT2, vA))
    p('v_add_u32 v%d, s%d, v%d' % (vA, sLW, vA))
    vC = [17, 18, 19, 20]
    p('v_lshrrev_b32 v%d, 1, v%d' % (vT2, vP)); p('v_and_b32 v%d, 7, v%d' % (vT2, vT2))
    p('v_xor_b32 v%d, v%d, v%d' % (vT2, vT2, vH)); p('v_lshlrev_b32 v%d, 4, v%d' % (vT2, vT2))
    p('v_lshl_add_u32 v%d, v%d, 7, v%d' % (vT2, vP, vT2))
    p('v_add_u32 v%d, s%d, v%d' % (vC[0], sLW, vT2))
    for i in range(1, 4): p('v_xor_b32 v%d, %d, v%d' % (vC[i], i << 5, vC[0]))
    p('s_lshr_b32 s%d, s%d, 1' % (sKS, sT0T)); p('s_mul_i32 s%d, s%d, 168' % (sKS, sKS)); p('s_add_u32 s%d, s%d, s%d' % (sKS, sKS, sQ))
    p('s_lshl_b32 s%d, s%d, 11' % (sKS, sKS)); p('s_add_u32 s%d, s%d, %d' % (sKS, sKS, WS_W2F))
    p('s_lshl_b32 s%d, s%d, 5' % (sFF, sW)); p('s_add_u32 s%d, s%d, s%d' % (sFF, sFF, sQ)); p('s_lshl_b32 s%d, s%d, 3' % (sFF, sFF))
    p('s_mul_i32 s%d, s%d, %d' % (sT2, sCTG, 32 * 896)); p('s_add_u32 s%d, s%d, s%d' % (sT2, sT2, sT1))
    if OPT.get('ptlb', 0):
        p('v_and_b32 v%d, 3, v%d' % (vT2, vL)); p('v_mul_u32_u24 v%d, %d, v%d' % (vT2, 28 * 2048, vT2))
        p('v_lshrrev_b32 v%d, 2, v%d' % (vT3, vL)); p('v_mul_u32_u24 v%d, %d, v%d' % (vT3, 168 * 2048, vT3))
        p('v_add_u32 v%d, v%d, v%d' % (vT2, vT2, vT3))
        p('s_mov_b64 exec, 0xff')
        p('buffer_load_dword v%d, v%d, %s, s%d offen sc1' % (TMP + 12, vT2, srd(SWS), sKS), tok='ptlb')
        p('s_mov_b64 exec, -1')
    pstamp(p, 0)
    FRG = 64
    def stage(T):
        p.waitvm(('w2', T))
        for ct4 in range(4):
            for hh in range(2):
                p('ds_read_b64_tr_b16 %s, v%d offset:%d' % (v2(FRG + 16 * T + 4 * ct4 + 2 * hh), vA, T * 4096 + hh * 2048 + ct4 * 64))
        for ct4 in range(4):
            if ct4 % 2 == 0: p('s_add_u32 s%d, s%d, %d' % (sT0, sKS, ((ct4 // 2) * 168 + 28 * T) * 2048))
            p('buffer_store_dwordx4 %s, v%d, %s, s%d offen offset:%d sc1' % (v4(FRG + 16 * T + 4 * ct4), vL16, srd(SWS), sT0, (ct4 % 2) * 1024), tok=('fst', T))
    def cdma():
        for comp in range(2):
            for rg in range(4):
                p('s_add_u32 m0, s%d, %d' % (sLW, 16384 + comp * 4096 + rg * 1024))
                p('s_add_u32 s%d, s%d, %d' % (sT0, sT2, rg * 7168))
                p('buffer_load_dwordx4 v%d, %s, s%d offen lds' % (vT0 if rg % 2 == 0 else vT1, srd(SCRE if comp == 0 else SCIM), sT0), tok='c')
            if comp == 0 and PO == 0:
                p.extend(flag_group(sFF, WS_PF, ('fst', 0)))
                pstamp(p, 2)
    PO = OPT.get('pord', 0)
    if PO == 2:
        p.waitvm(('w2', 0)); w2dma(3); cdma()
    if PO == 3:
        p.waitvm(('w2', 0)); w2dma(3)
    stage(0)
    pstamp(p, 1)
    stage(1)
    stage(2)
    tag_setup(p, TMP + 28)
    if PO == 4:
        p.extend(flag_group(sFF, WS_PF, ('fst', 2)))
        pstamp(p, 2)
    if PO == 5:
        w2dma(3)
        p.extend(flag_group(sFF, WS_PF, ('fst', 2)))
        pstamp(p, 2)
    if PO < 2 or PO == 4: w2dma(3)
    if PO != 2: cdma()
    lr, li = TMP + 6, TMP + 7
    lam_from(p, TMP + 0, TMP + 1, TMP + 2, lr, li, TMP + 4, TMP + 5)
    p('v_add_f32 v%d, -1.0, v%d' % (lr, lr))
    p('v_mul_f32 v%d, v%d, v%d' % (TMP + 4, TMP + 0, TMP + 0)); p('v_fmac_f32 v%d, v%d, v%d' % (TMP + 4, TMP + 1, TMP + 1))
    p('v_rcp_f32 v%d, v%d' % (TMP + 4, TMP + 4))
    p('v_mul_f32 v%d, v%d, v%d' % (TMP + 8, lr, TMP + 0)); p('v_fmac_f32 v%d, v%d, v%d' % (TMP + 8, li, TMP + 1))
    p('v_add_f32 v%d, v%d, v%d' % (TMP + 4, TMP + 4, TMP + 4))
    p('v_mul_f32 v%d, v%d, v%d' % (TMP + 9, li, TMP + 0)); p('v_fma_f32 v%d, -v%d, v%d, v%d' % (TMP + 9, lr, TMP + 1, TMP + 9))
    p('v_mul_f32 v%d, v%d, v%d' % (TMP + 8, TMP + 8, TMP + 4)); p('v_mul_f32 v%d, v%d, v%d' % (TMP + 9, TMP + 9, TMP + 4))
    p('v_lshl_add_u32 v%d, v%d, 3, s%d' % (vT2, vL, sLW))
    p('ds_write_b64 v%d, v[%d:%d] offset:%d' % (vT2, TMP + 8, TMP + 9, 24576))
    p('v_lshl_add_u32 v%d, v%d, 6, s%d' % (vT2, vH, sLW))
    if PO in (1, 2, 3):
        p.extend(flag_group(sFF, WS_PF, ('fst', 0)))
        pstamp(p, 2)
    stage(3)
    p('s_lshl_b32 s%d, s%d, 3' % (sT0, sCBK)); p('s_add_u32 s%d, s%d, 112' % (sT0, sT0)); p('s_lshl_b32 s%d, s%d, 11' % (sKS, sT0))
    p('s_lshr_b32 s%d, s%d, 1' % (sT0, sCTG)); p('s_mul_i32 s%d, s%d, %d' % (sT0, sT0, 168 * 2048)); p('s_add_u32 s%d, s%d, s%d' % (sKS, sKS, sT0))
    p('s_and_b32 s%d, s%d, 1' % (sT0, sCTG)); p('s_lshl_b32 s%d, s%d, 10' % (sT0, sT0)); p('s_add_u32 s%d, s%d, s%d' % (sKS, sKS, sT0))
    p('s_add_u32 s%d, s%d, %d' % (sKS, sKS, WS_W2F))
    CR = 24; CF = 128; U = 56; O = 192
    p.waitvm('c')
    for g4 in range(4):
        p('ds_read_b128 %s, v%d offset:%d' % (v4(CR + 8 * g4), vC[g4], 16384))
        p('ds_read_b128 %s, v%d offset:%d' % (v4(CR + 8 * g4 + 4), vC[g4], 16384 + 4096))
        for k in range(4): p('ds_read_b128 %s, v%d offset:%d' % (v4(CF + 16 * g4 + 4 * k), vT2, 24576 + 128 * g4 + 16 * k))
        if g4 == 1: p('s_waitcnt lgkmcnt(6)')
    for g4 in range(4):
        cr, ci = CR + 8 * g4, CR + 8 * g4 + 4
        o = O + 8 * g4
        for k in range(4):
            a0, b0, a1, b1 = CF + 16 * g4 + 4 * k, CF + 16 * g4 + 4 * k + 1, CF + 16 * g4 + 4 * k + 2, CF + 16 * g4 + 4 * k + 3
            p('v_lshlrev_b32 v%d, 16, v%d' % (U, cr + k)); p('v_and_b32 v%d, s%d, v%d' % (U + 1, sMHI, cr + k))
            p('v_lshlrev_b32 v%d, 16, v%d' % (U + 2, ci + k)); p('v_and_b32 v%d, s%d, v%d' % (U + 3, sMHI, ci + k))
            p('v_mul_f32 v%d, v%d, v%d' % (U + 4, a0, U)); p('v_fma_f32 v%d, -v%d, v%d, v%d' % (U + 4, b0, U + 2, U + 4))
            p('v_mul_f32 v%d, v%d, v%d' % (U + 5, a1, U + 1)); p('v_fma_f32 v%d, -v%d, v%d, v%d' % (U + 5, b1, U + 3, U + 5))
            p('v_mul_f32 v%d, -v%d, v%d' % (U + 6, a0, U + 2)); p('v_fma_f32 v%d, -v%d, v%d, v%d' % (U + 6, b0, U, U + 6))
            p('v_mul_f32 v%d, -v%d, v%d' % (U + 7, a1, U + 3)); p('v_fma_f32 v%d, -v%d, v%d, v%d' % (U + 7, b1, U + 1, U + 7))
            p('v_cvt_pk_bf16_f32 v%d, v%d, v%d' % (o + k, U + 4, U + 5))
            p('v_cvt_pk_bf16_f32 v%d, v%d, v%d' % (o + 4 + k, U + 6, U + 7))
        if g4 == 1: p.extend(flag_group(sFF, WS_PF + 3072, ('fst', 3)))
    p('s_cmp_ge_u32 s%d, 98' % sKF); p('s_cbranch_scc1 L_prep_fin')
    for g4 in range(4):
        o = O + 8 * g4
        p('s_add_u32 s%d, s%d, %d' % (sT0, sKS, (4 * (g4 >> 1) + (g4 & 1)) * 2048))
        p('s_add_u32 s%d, s%d, 4096' % (sT1, sT0))
        p('buffer_store_dwordx4 %s, v%d, %s, s%d offen sc1' % (v4(o), vL16, srd(SWS), sT0))
        p('buffer_store_dwordx4 %s, v%d, %s, s%d offen sc1' % (v4(o + 4), vL16, srd(SWS), sT1))
    p('s_lshl_b32 s%d, s%d, 3' % (sT0, sCTG)); p('s_add_u32 s%d, s%d, s%d' % (sT0, sT0, sCBK)); p('s_lshl_b32 s%d, s%d, 3' % (sT0, sT0))
    p('s_waitcnt vmcnt(0)')
    p.extend(flag_group(sT0, WS_PF + 4096))
    p('L_prep_fin:')
    if OPT['stamps']:
        pstamp(p, 3)
        p('v_writelane_b32 v%d, s%d, 62' % (vDUM, SOUT)); p('v_writelane_b32 v%d, s%d, 61' % (vDUM, SOUT + 2))
        p('s_lshl_b32 s%d, s2, 2' % sT0); p('s_add_u32 s%d, s%d, s%d' % (sT0, sT0, sW)); p('s_lshl_b32 s%d, s%d, 8' % (sT0, sT0))
        p('s_add_u32 s%d, s%d, %d' % (sT0, sT0, WS_STAMP))
        p('v_lshlrev_b32 v%d, 2, v%d' % (vT0, vL))
        p('buffer_store_dword v%d, v%d, %s, s%d offen' % (vDUM, vT0, srd(SWS), sT0))
    p('L_exit:')
    p('s_endpgm')

HEADER = open('parallel_sum__ssm_conv_s5__dense_activation_silu__prompt.s.ref').read().split('; Override launch')[0]

def build():
    p = Prog()
    prologue_common(p)
    main_path(p)
    for q in retry_blocks:
        p.reset(); p.extend(q.ins)
    prep_path(p)
    if OPT.get('abl'):
        out = []; cnt = 0
        lo = stamp_slots.index(OPT.get('ablo', 'T0') if isinstance(OPT.get('ablo', 'T0'), str) else stamp_slots[OPT['ablo']]); hi_ = stamp_slots.index('T2') if 'abhi' not in OPT else OPT['abhi']
        inside = False
        for i in p.ins:
            if i.op == 'v_writelane_b32':
                k = int(i.text.split(',')[-1])
                if k == lo: inside = True
                if k == hi_: inside = False
                out.append(i); continue
            a = OPT['abl']
            if inside and (a & 64) and (i.kind in ('vload', 'dma', 'vstore', 'needvm') or (i.kind == 'branch' and 'retry' in i.text)): continue
            if inside and (a & 128) and i.kind == 'salu' and 'exec' not in i.text and 'vcc' not in i.text: continue
            if inside and i.note != 'glue' and (((a & 1) and i.kind in ('vload', 'dma') and 'dwordx4' in i.text and 'sc1' in i.text) or ((a & 2) and i.kind == 'trans') or ((a & 4) and i.kind == 'valu')
                           or ((a & 8) and i.kind == 'dsread') or ((a & 16) and i.kind == 'vstore' and 'dwordx4' in i.text) or ((a & 32) and i.kind == 'mfma')):
                continue
            out.append(i)
        p.ins = out
    ins = finalize(p)
    if OPT.get('wlo') is not None:
        out = []; inside = False; slot = 30
        for i in ins:
            if i.op == 'v_writelane_b32' and 's%d,' % sP0 in i.text:
                k = int(i.text.split(',')[-1])
                if k == OPT['wlo']: inside = True
                if k == OPT['whi']: inside = False
            if inside and i.kind in ('dma', 'vload', 'vstore') and OPT.get('wv'): OPT['wskip'] = OPT.get('wskip', 0) - 1
            if inside and slot < 59 and ((i.kind in ('dma', 'vload', 'vstore') and OPT.get('wskip', 0) < 0) if OPT.get('wv') else ((i.kind == 'wait' and 'vmcnt' in i.text) or i.kind == 'barrier')):
                out += [Ins('s_memtime s[62:63]')] if False else []
                out += [Ins('s_memtime s[64:65]'), i, Ins('s_memtime s[72:73]'), Ins('s_waitcnt lgkmcnt(0)'),
                        Ins('v_writelane_b32 v%d, s64, %d' % (vDUM, slot)), Ins('v_writelane_b32 v%d, s72, %d' % (vDUM, slot + 1))]
                print('W%d: %s' % (slot, i.text)); slot += 2
            else: out.append(i)
        ins = out
    ins = [i for i in ins if not i.text.startswith(('; pad', '; need', '; after', '; at'))]
    body = text_of(ins)
    s = HEADER
    s += '; @launch grid=(256,1,1) block=(256,1,1) lds=%d\n' % LDS_BYTES
    s += '.amdgcn_target "amdgcn-amd-amdhsa--gfx950"\n.text\n.globl %s\n.p2align 8\n.type %s,@function\n%s:\n' % (KNAME, KNAME, KNAME)
    s += body
    s += 'L_code_end:\n'
    s += '.section .rodata,"a"\n.p2align 6\n.amdhsa_kernel %s\n' % KNAME
    s += '  .amdhsa_next_free_vgpr 512\n  .amdhsa_next_free_sgpr 102\n  .amdhsa_accum_offset 256\n  .amdhsa_group_segment_fixed_size 0\n'
    s += '  .amdhsa_kernarg_size 120\n  .amdhsa_user_sgpr_count 2\n  .amdhsa_user_sgpr_kernarg_segment_ptr 1\n  .amdhsa_system_sgpr_workgroup_id_x 1\n'
    s += '  .amdhsa_float_denorm_mode_32 3\n'
    s += '.end_amdhsa_kernel\n'
    return s, ins

if __name__ == '__main__':
    s, ins = build()
    open(sys.argv[1], 'w').write(s)
    from collections import Counter
    c = Counter(i.kind for i in ins)
    print('instructions:', sum(v for k, v in c.items() if k != 'label'), dict(c))
    if OPT['stamps']: print('stamps:', ','.join(stamp_slots))
```

```python
import sys, os
sys.path.insert(0, os.path.dirname(os.path.abspath(__file__)))
from dsl import *

KNAME = 'parallel_sum__ssm_conv_s5__dense_activation_silu__prompt_kernel'
OPT = dict(stamps=0, rot=1, w1pf=0, cpf=1, spin=1 << 16, dbg=0, dbgwave=0, per=70, perd=72, lead=22, ahead=10, w2s=12, dot=1, pk=0, w2early=1, tlb=0, fillc=30, ldsw2=1, rotA=0, gpf=3, xup=5, ost=1, sshare=2, ns=0, perx=36, tp=1300, tc=2400, tch=0, xe=1, pord=4, psidx=45, tage=1, loc=0, send=24, p2=3, p3=9, p4=16, pd=6, f3=0, f4=7, c1=2, tf=900, tp0=1000, tc0=500, tp1=1300, tf2=1400, perh=80)
for a in sys.argv[2:]:
    k, v = a.split('='); OPT[k] = int(v)

HSC = '' if OPT.get('plain') else [' sc1', ' sc0 sc1'][OPT.get('hsc', 0)]
WS_EPOCH = 0
WS_PF    = 0xC000
WS_FL    = 0x2000
WS_EG    = 0x10000
WS_STAMP = 0x80000
WS_W2F   = 0x100000
WS_HID   = 0x400000
WS_END   = WS_HID + 64 * 168 * 1024
L0     = 8192
L_XW   = 24576
L_SW   = L0 + 98304
L_TR   = L0 + 114688
L_WT   = L_TR + 4 * 4608
L_RS   = 0
L_MR   = 512
L_EW   = 1536
LDS_BYTES = 163840
LOG2E = 0x3fb8aa3b
NLOG2E = 0xbfb8aa3b
INV2PI = 0x3e22f983

sR, sC, sW, sROT, sTL, sTH, sONE, sMHI = 8, 9, 10, 11, 12, 13, 14, 15
SX, SBRE, SBIM, SW1, SWS, SOUT, SLRE, SLIM, SLDT, SDSK, SCODE = 40, 44, 48, 52, 56, 60, 64, 68, 72, 76, 80
SEG = 44
KB = [84 + j for j in range(7)]
W1K = [91 + j for j in range(7)]
sT0, sT1, sLW, sT2 = 98, 99, 100, 101
BM0 = [64 + j for j in range(7)]
sHW, sCB, sHALF, sRT0, sPMASK, sW2, sH0, sH1, sSPIN, sFW = 16, 17, 18, 19, 20, 21, 22, 23, 24, 25
sT3, sT4, sT5, sT6 = 26, 27, 28, 29
sP0 = 30
sW2S, sH0S, sH1S, sHWS, sIDX, sM1 = 32, 33, 34, 35, 36, 37
RSO = [72 + j for j in range(4)] + [38, 39, 3]
def srd(b): return 's[%d:%d]' % (b, b + 3)
def v4(b): return ('v[%d:%d]' % (b, b + 3)) if b < 256 else ('a[%d:%d]' % (b - 256, b - 253))
def v2(b): return ('v[%d:%d]' % (b, b + 1)) if b < 256 else ('a[%d:%d]' % (b - 256, b - 255))
def v16(b): return 'v[%d:%d]' % (b, b + 15)

vL = 1; vL16 = 2; vT0, vT1, vT2, vT3 = 3, 4, 5, 6
vM, vS, vNK, vRSv = 7, 8, 9, 10
vZ = 11; vH = 12; vP = 13; vFA = 14; vDUM = 15
X = 16
SRE, SIM, F0, F1 = 128, 144, 160, 176
vXO = [192, 193, 194, 195]
vBO = 196
vW1O = [197, 198]
vRX = [199, 200, 201, 202]
vRF = [[203, 204], [205, 206]]
L1r, L1i, N1i, L2r, L2i, L3r, L3i, L4r, L4i, L32r, L32i, L128r, L128i, L256r, L256i = range(207, 222)
vTW, vTRr = 222, 223
vFA2, vFA3 = 201, 202
TMP = 224
WB = 256 + 224
FR = TMP + 26
FR2 = TMP + 24
TAGP = TMP + 30
vNM = TMP + 16
sSELL, sSELH = 70, 71
sPS, sPM2, sLT, sLA = 68, 69, 67, 66
sRS0, sRS1 = 82, 83
vPF = TMP + 28

def cost(i):
    if i.kind in ('label', 'needvm', 'needlgkm', 'reset'): return 0
    if i.kind in ('trans', 'mfma'): return 8
    if i.kind == 'nop': return 4 * i.width
    if i.kind in ('valu', 'dot', 'perm') and (i.op in ('v_fma_f32', 'v_cvt_pk_bf16_f32', 'v_lshl_add_u32', 'v_add3_u32', 'v_mul_lo_u32') or '0x' in i.text): return 5
    if i.kind in ('vload', 'vstore', 'dma'): return 8
    return 4

def weave(comp, groups, period, start=0, pdma=None, small=(), events=()):
    out = []; t = 0; pipe = 0; nxt = start; groups = list(groups); noins = 0
    pdma = pdma or period; nm = 0; events = sorted(events, key=lambda e: e[0])
    for i in comp:
        if i.kind == 'mfma':
            t = max(t, pipe); pipe = t + 32; nm += 1
        out.append(i); t += cost(i)
        if 'exec' in i.text and i.kind == 'salu':
            noins = 0 if i.text.endswith('exec, -1') else 1
        ok = not noins and not (i.kind == 'salu' and 'm0' in i.text) and i.kind not in ('needvm', 'needlgkm') and not getattr(i, 'note', None) == 'glue'
        if events and ok and t >= events[0][0]:
            g = events.pop(0)[1]; out.extend(g); t += sum(cost(x) for x in g); continue
        if groups and groups[0] and groups[0][0].text.startswith('; after') and nm < int(groups[0][0].text.split()[2]): continue
        if groups and groups[0] and groups[0][0].text.startswith('; at') and t < int(groups[0][0].text.split()[2]): continue
        if 'exec' in i.text and i.kind == 'salu':
            noins = 0 if i.text.endswith('exec, -1') else 1
        if groups and t >= nxt and not noins and not (i.kind == 'salu' and 'm0' in i.text) and i.kind not in ('needvm', 'needlgkm') and not getattr(i, 'note', None) == 'glue':
            g = groups.pop(0); out.extend(g); t += sum(cost(x) for x in g)
            nv = sum(1 for x in g if x.kind in ('dma', 'vload', 'vstore') and 'dwordx4' in x.text and not any('s[%d:%d]' % (b, b + 3) in x.text for b in small))
            pr = (period if any('sc1' in x.text for x in g) else pdma) * nv + (0 if nv else 40)
            nxt = max(nxt + pr, t - pr // 2)
    for e in events: out.extend(e[1])
    return out, groups

def G(*texts, tok=None):
    q = Prog()
    for t in texts: q(t, tok=tok)
    return q.ins

stamp_slots = []
def stamp(p, name):
    if not OPT['stamps']: return
    if OPT.get('rt') and name in ('issued0', 'first', 'x0in', 'Win', 'Ain', 'lbok', 'silu3', 'carry'): return
    if OPT.get('allg') and name in ('issued0', 'first', 'x0in', 'lead', 'Win', 'ssmend', 'Ain', 'lbok', 'T0', 'T1', 'T2', 'B1'): return
    k = len(stamp_slots); stamp_slots.append(name)
    p('s_memtime s[%d:%d]' % (sP0, sP0 + 1))
    if OPT.get('rt'): p('s_memrealtime s[64:65]')
    p('s_waitcnt lgkmcnt(0)')
    p('v_writelane_b32 v%d, s%d, %d' % (vDUM, sP0, k))
    if OPT.get('rt'): p('v_writelane_b32 v%d, s64, %d' % (vDUM, 30 + k))

def mk_srd(p, b, ptr, nbytes):
    p('s_mov_b32 s%d, s%d' % (b, ptr)); p('s_mov_b32 s%d, s%d' % (b + 1, ptr + 1))
    p('s_mov_b32 s%d, %d' % (b + 2, nbytes)); p('s_mov_b32 s%d, 0x20000' % (b + 3))

def bf16_round(p, dst, src):
    p('v_cvt_pk_bf16_f32 v%d, v%d, v%d' % (dst, src, src))
    p('v_lshlrev_b32 v%d, 16, v%d' % (dst, dst))

def lam_from(p, lre, lim, ldt, outr, outi, t0, t1):
    p('v_lshlrev_b32 v%d, 16, v%d' % (lre, lre))
    p('v_lshlrev_b32 v%d, 16, v%d' % (lim, lim))
    p('v_lshlrev_b32 v%d, 16, v%d' % (ldt, ldt))
    p('v_mul_f32 v%d, 0x%x, v%d' % (ldt, LOG2E, ldt))
    p('v_exp_f32 v%d, v%d' % (ldt, ldt))
    bf16_round(p, ldt, ldt)
    p('v_mul_f32 v%d, v%d, v%d' % (t0, ldt, lre))
    p('v_mul_f32 v%d, v%d, v%d' % (t1, ldt, lim))
    p('v_mul_f32 v%d, 0x%x, v%d' % (t0, LOG2E, t0))
    p('v_exp_f32 v%d, v%d' % (t0, t0))
    p('v_mul_f32 v%d, 0x%x, v%d' % (t1, INV2PI, t1))
    p('v_fract_f32 v%d, v%d' % (t1, t1))
    p('v_cos_f32 v%d, v%d' % (outr, t1))
    p('v_sin_f32 v%d, v%d' % (outi, t1))
    p('v_mul_f32 v%d, v%d, v%d' % (outr, t0, outr))
    p('v_mul_f32 v%d, v%d, v%d' % (outi, t0, outi))

def cmul(p, dr, di, ar, ai, br, bi):
    p('v_mul_f32 v%d, v%d, v%d' % (dr, ar, br))
    p('v_mul_f32 v%d, v%d, v%d' % (di, ar, bi))
    p('v_fma_f32 v%d, -v%d, v%d, v%d' % (dr, ai, bi, dr))
    p('v_fmac_f32 v%d, v%d, v%d' % (di, ai, br))

def cmac(p, dr, di, ar, ai, br, bi):
    p('v_fmac_f32 v%d, v%d, v%d' % (dr, ar, br))
    p('v_fmac_f32 v%d, v%d, v%d' % (di, ar, bi))
    p('v_fma_f32 v%d, -v%d, v%d, v%d' % (dr, ai, bi, dr))
    p('v_fmac_f32 v%d, v%d, v%d' % (di, ai, br))

def tag_setup(p, vlo):
    p('v_readfirstlane_b32 s%d, v%d' % (sTL, vlo))
    p('v_readfirstlane_b32 s%d, v%d' % (sTH, vlo + 1))
    p('s_mul_i32 s%d, s%d, 0x9e3779b1' % (sTL, sTL)); p('s_add_u32 s%d, s%d, 0x7f4a7c15' % (sTL, sTL))
    p('s_mul_i32 s%d, s%d, 0x85ebca6b' % (sTH, sTH)); p('s_add_u32 s%d, s%d, 0xc2b2ae35' % (sTH, sTH))
    p('v_mov_b32 v%d, s%d' % (TAGP, sTL)); p('v_mov_b32 v%d, s%d' % (TAGP + 1, sTH))

retry_blocks = []
def poll_check(name, mask, reload_text, FR=FR):
    p = Prog()
    p('v_cmp_ne_u32 vcc, s%d, v%d' % (sTL, FR))
    p('v_cmp_ne_u32 s[%d:%d], s%d, v%d' % (sP0, sP0 + 1, sTH, FR + 1))
    p('s_nop 1')
    p('s_or_b32 s%d, vcc_lo, s%d' % (sM1, sP0))
    p('s_and_b32 s%d, s%d, %s' % (sM1, sM1, mask))
    p('s_cbranch_scc1 L_retry_%s' % name)
    p('L_ok_%s:' % name)
    for i in p.ins: i.note = 'glue'
    q = Prog()
    q('L_retry_%s:' % name)
    q('s_mov_b32 s%d, 0' % sSPIN)
    q('L_loop_%s:' % name)
    q('s_sleep 1')
    q(reload_text)
    q('s_waitcnt vmcnt(0)')
    q('v_cmp_ne_u32 vcc, s%d, v%d' % (sTL, FR))
    q('v_cmp_ne_u32 s[%d:%d], s%d, v%d' % (sP0, sP0 + 1, sTH, FR + 1))
    q('s_add_u32 s%d, s%d, 1' % (sSPIN, sSPIN))
    if OPT['stamps']: q('v_add_u32 v%d, 1, v%d' % (vRSv, vRSv))
    q('s_cmp_gt_u32 s%d, %d' % (sSPIN, OPT['spin']))
    q('s_cbranch_scc1 L_ok_%s' % name)
    q('s_or_b32 s%d, vcc_lo, s%d' % (sM1, sP0))
    q('s_and_b32 s%d, s%d, %s' % (sM1, sM1, mask))
    q('s_cbranch_scc1 L_loop_%s' % name)
    q('s_branch L_ok_%s' % name)
    retry_blocks.append(q)
    return p.ins

def flag_group(base_s, add, waittok=None):
    q = Prog()
    if waittok is not None: q.waitvm(waittok)
    q('s_add_u32 s%d, s%d, %d' % (sM1, base_s, add))
    q('s_mov_b64 exec, 1')
    q('buffer_store_dwordx2 v[%d:%d], v%d, %s, s%d offen%s' % (TAGP, TAGP + 1, vZ, srd(SWS), sM1, HSC if base_s == sFW else ' sc1'))
    q('s_mov_b64 exec, -1')
    return q.ins

def prologue_common(p):
    p('s_cmp_ge_u32 s2, 256')
    p('s_cbranch_scc1 L_exit')
    p('s_load_dwordx16 s[16:31], s[0:1], 0')
    p('s_load_dwordx8 s[32:39], s[0:1], 64')
    p('s_load_dwordx2 s[4:5], s[0:1], 96')
    p('s_load_dwordx2 s[6:7], s[0:1], 112')
    if OPT['stamps']:
        p('s_memrealtime s[%d:%d]' % (SOUT, SOUT + 1))
        p('s_memtime s[%d:%d]' % (SOUT + 2, SOUT + 3))
    if OPT['cpf']:
        p('s_getpc_b64 s[%d:%d]' % (SCODE, SCODE + 1))
        p('L_pc:')
        p('v_lshrrev_b32 v%d, 5, v0' % vT1); p('v_and_b32 v%d, 6, v%d' % (vT1, vT1)); p('v_and_b32 v%d, 1, v0' % vT2)
        p('v_add_lshl_u32 v%d, v%d, v%d, 7' % (vT2, vT1, vT2))
        p('s_sub_u32 s%d, s%d, L_pc-%s' % (SCODE, SCODE, KNAME))
        p('s_subb_u32 s%d, s%d, 0' % (SCODE + 1, SCODE + 1))
        p('s_lshr_b32 s%d, s2, 3' % sT1); p('s_lshl_b32 s%d, s%d, 10' % (sT1, sT1))
        p('v_add_u32 v%d, s%d, v%d' % (vT2, sT1, vT2))
        p('v_min_u32 v%d, L_code_end-%s-4, v%d' % (vT2, KNAME, vT2))
        p('v_mov_b32 v%d, s%d' % (F1 + 9, SCODE + 1))
        p('v_add_co_u32 v%d, vcc, s%d, v%d' % (F1 + 8, SCODE, vT2))
        p('v_addc_co_u32 v%d, vcc, 0, v%d, vcc' % (F1 + 9, F1 + 9))
        p('s_mov_b64 exec, 3')
        p('global_load_dword v%d, v[%d:%d], off' % (F1, F1 + 8, F1 + 9), tok='cpf')
        p('s_mov_b64 exec, -1')
    p('v_lshrrev_b32 v%d, 6, v0' % vT0)
    p('v_and_b32 v%d, 63, v0' % vL)
    p('v_readfirstlane_b32 s%d, v%d' % (sW, vT0))
    p('v_lshlrev_b32 v%d, 4, v%d' % (vL16, vL))
    p('v_mov_b32 v%d, 0' % vZ)
    p('v_lshrrev_b32 v%d, 5, v%d' % (vH, vL))
    p('v_and_b32 v%d, 31, v%d' % (vP, vL))
    p('s_and_b32 s%d, s2, 7' % sT0)
    p('s_lshr_b32 s%d, s2, 3' % sT1)
    p('s_mov_b32 s%d, 0x3f803f80' % sONE)
    p('s_mov_b32 s%d, 0xffff0000' % sMHI)
    p('v_lshrrev_b32 v%d, 3, v%d' % (vT0, vL))
    p('v_mul_u32_u24 v%d, 896, v%d' % (vT0, vT0))
    p('v_lshrrev_b32 v%d, 4, v%d' % (vT1, vL))
    p('v_and_b32 v%d, 7, v%d' % (vT2, vL))
    p('v_xor_b32 v%d, v%d, v%d' % (vT1, vT1, vT2))
    p('v_lshl_add_u32 v%d, v%d, 4, v%d' % (vT0, vT1, vT0))
    p('v_xor_b32 v%d, 64, v%d' % (vT1, vT0))
    p('s_cmp_ge_u32 s%d, 28' % sT1)
    p('s_cbranch_scc1 L_prep')

def wrap7(p, dst, a, b_or_imm, tmp):
    p('s_add_u32 s%d, s%d, %s' % (dst, a, b_or_imm))
    p('s_cmp_ge_u32 s%d, 7' % dst)
    p('s_cselect_b32 s%d, 7, 0' % tmp)
    p('s_sub_u32 s%d, s%d, s%d' % (dst, dst, tmp))

def main_path(p):
    sXCD, sI7 = 78, 79
    p('s_mov_b32 s%d, s%d' % (sXCD, sT0)); p('s_mov_b32 s%d, s%d' % (sI7, sT1))
    if not OPT['loc']:
        p('s_mul_i32 s%d, s%d, 37' % (sT2, sT1)); p('s_lshr_b32 s%d, s%d, 8' % (sT2, sT2))
        p('s_mul_i32 s3, s%d, 7' % sT2); p('s_sub_u32 s%d, s%d, s3' % (sROT, sT1))
        p('s_lshr_b32 s%d, s%d, 1' % (sR, sT0)); p('s_lshl_b32 s%d, s%d, 2' % (sR, sR)); p('s_add_u32 s%d, s%d, s%d' % (sR, sR, sT2))
        p('s_and_b32 s%d, s%d, 1' % (sT0, sT0))
        p('s_mul_i32 s%d, s%d, 7' % (sC, sT0)); p('s_add_u32 s%d, s%d, s%d' % (sC, sC, sROT))
    else:
        p('s_cmp_ge_u32 s%d, 14' % sT1); p('s_cselect_b32 s%d, 1, 0' % sT2); p('s_cselect_b32 s3, 14, 0')
        p('s_sub_u32 s%d, s%d, s3' % (sC, sT1))
        p('s_lshl_b32 s%d, s%d, 1' % (sR, sT0)); p('s_add_u32 s%d, s%d, s%d' % (sR, sR, sT2))
        p('s_cmp_ge_u32 s%d, 7' % sC); p('s_cselect_b32 s%d, 1, 0' % sXCD); p('s_cselect_b32 s3, 7, 0')
        p('s_sub_u32 s%d, s%d, s3' % (sROT, sC))
        p('s_lshl_b32 s%d, s%d, 1' % (sT2, sT2))
    p('s_mul_i32 s%d, s%d, %d' % (sLW, sW, L_XW)); p('s_add_u32 s%d, s%d, %d' % (sLW, sLW, L0))
    p('s_lshl_b32 s%d, s%d, 7' % (KB[0], sROT)) if OPT['rot'] else p('s_mov_b32 s%d, 0' % KB[0])
    p('s_lshl_b32 s%d, s%d, 2' % (sT0, sR)); p('s_add_u32 s%d, s%d, s%d' % (sT0, sT0, sW))
    p('s_mul_i32 s%d, s%d, %d' % (sT1, sT0, 32 * 896))
    p('v_add_u32 v%d, s%d, v%d' % (vXO[0], sT1, vT0))
    p('v_add_u32 v%d, s%d, v%d' % (vXO[1], sT1, vT1))
    p('v_add_u32 v%d, %d, v%d' % (vXO[2], 14336 - 2048, vXO[0]))
    p('v_add_u32 v%d, %d, v%d' % (vXO[1], 7168 - 1024, vXO[1]))
    p('v_add_u32 v%d, %d, v%d' % (vXO[3], 14336 - 2048, vXO[1]))
    if OPT.get('xe', 0):
        for j in range(1, 7):
            if OPT['rot']:
                p('s_add_u32 s%d, s%d, 128' % (KB[j], KB[j - 1]))
                p('s_cmp_ge_u32 s%d, 896' % KB[j])
                p('s_cselect_b32 s%d, 0, s%d' % (KB[j], KB[j]))
            else: p('s_mov_b32 s%d, %d' % (KB[j], j * 128))
    if OPT['stamps']: p('s_memtime s[76:77]')
    p('s_waitcnt lgkmcnt(0)')
    if OPT['stamps']:
        p('v_writelane_b32 v%d, s%d, 62' % (vDUM, SOUT)); p('v_writelane_b32 v%d, s%d, 61' % (vDUM, SOUT + 2))
        stamp_slots.append('prek'); p('v_writelane_b32 v%d, s76, 0' % vDUM)
        p('s_memtime s[%d:%d]' % (SOUT, SOUT + 1))
    mk_srd(p, SX, 16, 2048 * 896)
    def x_dma(j):
        out = [G('buffer_load_dwordx4 v%d, %s, s%d offen offset:%d lds' % (vXO[rg], srd(SX), KB[j], rg * 1024), tok=('x', j)) for rg in range(4)]
        out[0] = G('s_add_u32 m0, s%d, %d' % (sLW, j * 4096)) + out[0]
        return out
    fill = Prog()
    mk_srd(fill, SBRE, 22, 448 * 896); mk_srd(fill, SBIM, 24, 448 * 896)
    mk_srd(fill, SLRE, 18, 896); mk_srd(fill, SLIM, 20, 896); mk_srd(fill, SLDT, 30, 896); mk_srd(fill, SWS, 6, WS_END)
    mk_srd(fill, SW1, 36, 448 * 3584)
    fl = fill.ins
    for j in range(1 + OPT.get('xe', 0)):
        for g in x_dma(j): p.extend(g)
    p.extend(fl[:8]); fl = fl[8:]
    p('s_and_b32 s%d, s%d, 1' % (sT1, sW)); p('s_lshl_b32 s%d, s%d, 6' % (sT1, sT1))
    p('v_xor_b32 v%d, s%d, v%d' % (vBO, sT1, vT0))
    p('s_mul_i32 s%d, s%d, 7168' % (sT1, sW)); p('s_mul_i32 s%d, s%d, %d' % (sT0, sC, 32 * 896)); p('s_add_u32 s%d, s%d, s%d' % (sT1, sT1, sT0))
    p('v_add_u32 v%d, s%d, v%d' % (vBO, sT1, vBO))
    p('s_lshl_b32 s%d, s%d, 1' % (sT2, sT2))
    p('s_lshl_b32 s%d, s%d, 12' % (W1K[0], sT2)); p('s_lshl_b32 s%d, s%d, 10' % (sT1, sW)); p('s_add_u32 s%d, s%d, s%d' % (W1K[0], W1K[0], sT1))
    p('s_add_u32 s%d, s%d, %d' % (sT1, sT1, 7 * 4096))
    for k in range(1, 7):
        p('s_add_u32 s%d, s%d, 4096' % (W1K[k], W1K[k - 1]))
        p('s_cmp_ge_u32 s%d, s%d' % (W1K[k], sT1))
        p('s_cselect_b32 s%d, %d, 0' % (sT0, 7 * 4096))
        p('s_sub_u32 s%d, s%d, s%d' % (W1K[k], W1K[k], sT0))
    p('s_lshl_b32 s%d, s%d, 7' % (sT2, sT2))
    p('s_add_u32 s%d, s%d, s%d' % (sT2, sT2, KB[0]))
    p('s_cmp_ge_u32 s%d, 896' % sT2); p('s_cselect_b32 s%d, 896, 0' % sT0); p('s_sub_u32 s%d, s%d, s%d' % (sT2, sT2, sT0))
    p('v_lshlrev_b32 v%d, 1, v%d' % (vT2, vP))
    p('s_lshl_b32 s%d, s%d, 6' % (sT1, sC))
    if OPT['stamps']:
        p('s_memtime s[%d:%d]' % (SOUT + 2, SOUT + 3)); p('s_waitcnt lgkmcnt(0)')
        stamp_slots.append('karg'); p('v_writelane_b32 v%d, s%d, 1' % (vDUM, SOUT))
        stamp_slots.append('x0'); p('v_writelane_b32 v%d, s%d, 2' % (vDUM, SOUT + 2))
    ssm_soff = [sT2]
    def ssm_dma(k, soff):
        return [G('s_add_u32 m0, s%d, %d' % (W1K[k], L_SW + T * 28672),
                  'buffer_load_dwordx4 v%d, %s, s%d offen lds' % (vBO, srd(SBRE if T == 0 else SBIM), soff), tok='ssmw') for T in range(2)]
    def next_soff(q, dst, src):
        q('s_add_u32 s%d, s%d, 128' % (dst, src)); q('s_cmp_ge_u32 s%d, 896' % dst); q('s_cselect_b32 s%d, 0, s%d' % (dst, dst))
    p('s_mov_b32 s%d, s%d' % (sRS0, sT2))
    next_soff(p, sT2, sT2)
    p('s_mov_b32 s%d, s%d' % (sRS1, sT2))
    share = ssm_dma(0, sRS0) + ssm_dma(1, sRS1)
    NSH = OPT.get('sshare', 4)
    for g in share[:NSH]:
        p.extend([g[0]] + fl[:4] + [g[1]]); fl = fl[4:]
    p.extend(fl)
    p('buffer_load_dwordx2 v[%d:%d], v%d, %s, 0 offen sc1' % (TMP + 28, TMP + 29, vZ, srd(SWS)))
    p('buffer_load_ushort v%d, v%d, %s, s%d offen' % (TMP + 0, vT2, srd(SLRE), sT1))
    p('buffer_load_ushort v%d, v%d, %s, s%d offen' % (TMP + 1, vT2, srd(SLIM), sT1))
    p('buffer_load_ushort v%d, v%d, %s, s%d offen' % (TMP + 2, vT2, srd(SLDT), sT1))
    if OPT['tch'] & 3:
        p('s_mov_b64 exec, 1')
        if OPT['tch'] & 2: p('buffer_load_dword v%d, v%d, %s, 0 offen' % (F1 + 3, vZ, srd(SW1)), tok='cpf')
        if OPT['tch'] & 1:
            mk_srd(p, SOUT, 32, 896)
            p('buffer_load_dword v%d, v%d, %s, 0 offen' % (F1 + 4, vZ, srd(SOUT)), tok='cpf')
        p('s_mov_b64 exec, -1')
    gpf = Prog()
    if OPT['gpf']:
        gpf('s_mul_i32 s%d, s%d, 14' % (sT0, sR)); gpf('s_add_u32 s%d, s%d, s%d' % (sT0, sT0, sC)); gpf('s_lshl_b32 s%d, s%d, 2' % (sT0, sT0))
        gpf('s_add_u32 s%d, s%d, s%d' % (sT0, sT0, sW)); gpf('s_mul_i32 s%d, s%d, 1792' % (sT0, sT0))
        gpf('v_lshlrev_b32 v%d, 7, v%d' % (vT1, vL))
        gpf('s_mov_b64 exec, 0x3fff')
        gpf('buffer_load_dword v%d, v%d, %s, s%d offen' % (F1 + 5, vT1, srd(SW1), sT0), tok='cpf')
        gpf('s_mov_b64 exec, -1')
    if OPT['gpf'] == 1: p.extend(gpf.ins)
    if OPT['tlb']:
        p('v_lshlrev_b32 v%d, 21, v%d' % (vT1, vL))
        p('s_mov_b64 exec, 0xfe')
        p('buffer_load_dword v%d, v%d, %s, 0 offen' % (F1 + 3, vT1, srd(SWS)), tok='cpf')
        p('s_mov_b64 exec, 1')
        p('buffer_load_dword v%d, v%d, %s, 0 offen' % (F1 + 4, vZ, srd(SW1)), tok='cpf')
        p('s_mov_b64 exec, -1')
    stamp(p, 'issued0')
    if OPT.get('amp') == 99:
        p('v_readlane_b32 s%d, v%d, 62' % (sT0, vDUM)); p('s_lshl_b32 s%d, s2, 7' % sT1); p('s_add_u32 s%d, s%d, 0xF0000' % (sT1, sT1))
        p('v_mov_b32 v%d, s%d' % (F1 + 7, sT0))
        p('buffer_store_dword v%d, v%d, %s, s%d offen sc1' % (F1 + 7, vZ, srd(SWS), sT1))
    if not OPT.get('xe', 0):
        for j in range(1, 7):
            if OPT['rot']:
                p('s_add_u32 s%d, s%d, 128' % (KB[j], KB[j - 1]))
                p('s_cmp_ge_u32 s%d, 896' % KB[j])
                p('s_cselect_b32 s%d, 0, s%d' % (KB[j], KB[j]))
            else: p('s_mov_b32 s%d, %d' % (KB[j], j * 128))
    prev = sT2
    RS7 = [None, None, 38, 39, 34, 35, 3]
    p('s_and_b32 s%d, s%d, 1' % (sHALF, sXCD))
    mk_srd(p, SDSK, 32, 896)
    mk_srd(p, SOUT, 4, 2048 * 1792)
    for k in range(2, 7):
        next_soff(p, RS7[k], prev); prev = RS7[k]
    ssm_rest = []
    for k in range(2, 7): ssm_rest += ssm_dma(k, RS7[k])
    w1g = []
    if OPT['w1pf']:
        p('v_mul_u32_u24 v%d, 3584, v%d' % (vT1, vL))
        p('s_and_b32 s%d, s%d, 3' % (sT1, sR)); p('s_lshl_b32 s%d, s%d, 2' % (sT1, sT1)); p('s_add_u32 s%d, s%d, s%d' % (sT1, sT1, sW))
        p('s_mul_i32 s%d, s%d, %d' % (sT1, sT1, 28 * 3584))
        p('s_lshl_b32 s%d, s%d, 8' % (sT0, sC)); p('s_add_u32 s%d, s%d, s%d' % (sT1, sT1, sT0))
        p('v_add_u32 v%d, s%d, v%d' % (F1 + 2, sT1, vT1))
        w1g = [G('s_mov_b64 exec, 0x0fffffff', 'buffer_load_dword v%d, v%d, %s, 0 offen offset:128' % (F1 + 1, F1 + 2, srd(SW1)), 's_mov_b64 exec, -1', tok='cpf')]
    p('v_lshrrev_b32 v%d, 3, v%d' % (vT0, vL))
    p('v_mul_u32_u24 v%d, 3584, v%d' % (vT0, vT0))
    p('v_lshrrev_b32 v%d, 2, v%d' % (vT1, vL)); p('v_and_b32 v%d, 4, v%d' % (vT1, vT1))
    p('v_and_b32 v%d, 7, v%d' % (vT2, vL)); p('v_xor_b32 v%d, v%d, v%d' % (vT1, vT1, vT2))
    p('v_lshl_add_u32 v%d, v%d, 4, v%d' % (vT0, vT1, vT0))
    p('s_mul_i32 s%d, s%d, %d' % (sT1, sW, 16 * 3584)); p('s_lshl_b32 s%d, s%d, 8' % (sT0, sC)); p('s_add_u32 s%d, s%d, s%d' % (sT1, sT1, sT0))
    p('v_add_u32 v%d, s%d, v%d' % (vW1O[0], sT1, vT0))
    p('v_add_u32 v%d, %d, v%d' % (vW1O[1], 8 * 3584 - 1024, vW1O[0]))
    p('v_lshrrev_b32 v%d, 1, v%d' % (vT0, vP)); p('v_and_b32 v%d, 7, v%d' % (vT0, vT0))
    p('v_xor_b32 v%d, v%d, v%d' % (vT0, vT0, vH)); p('v_lshlrev_b32 v%d, 4, v%d' % (vT0, vT0))
    p('v_lshl_add_u32 v%d, v%d, 7, v%d' % (vT0, vP, vT0))
    p('v_add_u32 v%d, s%d, v%d' % (vRX[0], sLW, vT0))
    for i in range(1, 4): p('v_xor_b32 v%d, %d, v%d' % (vRX[i], i << 5, vRX[0]))
    p('v_lshrrev_b32 v%d, 2, v%d' % (vT0, vL)); p('v_and_b32 v%d, 3, v%d' % (vT0, vT0))
    p('v_lshlrev_b32 v%d, 7, v%d' % (vT1, vT0))
    p('v_lshl_add_u32 v%d, v%d, 10, v%d' % (vT1, vH, vT1))
    p('v_and_b32 v%d, 2, v%d' % (vT0, vT0)); p('v_lshl_add_u32 v%d, v%d, 5, v%d' % (vT1, vT0, vT1))
    p('v_and_b32 v%d, 16, v%d' % (vT0, vL)); p('v_lshl_add_u32 v%d, v%d, 1, v%d' % (vT1, vT0, vT1))
    p('v_and_b32 v%d, 3, v%d' % (vT0, vL)); p('v_lshl_add_u32 v%d, v%d, 3, v%d' % (vRF[0][0], vT0, vT1))
    p('v_add_u32 v%d, %d, v%d' % (vRF[0][0], L0, vRF[0][0]))
    p('v_xor_b32 v%d, 64, v%d' % (vRF[1][0], vRF[0][0]))
    p('v_add_u32 v%d, 0x10000, v%d' % (vRF[0][1], vRF[0][0]))
    p('v_add_u32 v%d, 0x10000, v%d' % (vRF[1][1], vRF[1][0]))
    p('s_mul_i32 s%d, s%d, 4608' % (sT1, sW)); p('s_add_u32 s%d, s%d, %d' % (sT1, sT1, L_TR))
    p('v_mul_u32_u24 v%d, 72, v%d' % (vT0, vP)); p('v_lshl_add_u32 v%d, v%d, 3, v%d' % (vT0, vH, vT0))
    p('v_add_u32 v%d, s%d, v%d' % (vTW, sT1, vT0))
    p('v_lshrrev_b32 v%d, 2, v%d' % (vT0, vL)); p('v_and_b32 v%d, 3, v%d' % (vT0, vT0))
    p('v_lshl_add_u32 v%d, v%d, 3, v%d' % (vT0, vH, vT0)); p('v_mul_u32_u24 v%d, 72, v%d' % (vT0, vT0))
    p('v_and_b32 v%d, 16, v%d' % (vT1, vL)); p('v_lshl_add_u32 v%d, v%d, 1, v%d' % (vT0, vT1, vT0))
    p('v_and_b32 v%d, 3, v%d' % (vT1, vL)); p('v_lshl_add_u32 v%d, v%d, 3, v%d' % (vT0, vT1, vT0))
    p('v_add_u32 v%d, s%d, v%d' % (vTRr, sT1, vT0))
    p('s_mov_b32 s%d, s%d' % (sCB, sROT))
    p('s_lshl_b32 s%d, s%d, 2' % (sT0, sR)); p('s_add_u32 s%d, s%d, s%d' % (sT1, sT0, sW))
    p('s_mul_i32 s%d, s%d, 168' % (sHW, sT1)); p('s_lshl_b32 s%d, s%d, 1' % (sT2, sC)); p('s_add_u32 s%d, s%d, s%d' % (sHW, sHW, sT2))
    p('s_lshl_b32 s%d, s%d, 10' % (sHW, sHW)); p('s_add_u32 s%d, s%d, %d' % (sHW, sHW, WS_HID))
    p('s_lshl_b32 s%d, s%d, 7' % (sFW, sT1)); p('s_lshl_b32 s%d, s%d, 3' % (sT2, sC)); p('s_add_u32 s%d, s%d, s%d' % (sFW, sFW, sT2))
    p('s_add_u32 s%d, s%d, %d' % (sFW, sFW, WS_FL))
    p('s_lshl_b32 s%d, s%d, 1' % (sT2, sHALF)); p('s_add_u32 s%d, s%d, s%d' % (sRT0, sT0, sT2))
    p('s_mul_i32 s%d, s%d, 7' % (sT2, sW))
    p('s_mul_i32 s%d, s%d, 168' % (sH0, sRT0)); p('s_add_u32 s%d, s%d, s%d' % (sH0, sH0, sT2)); p('s_lshl_b32 s%d, s%d, 10' % (sH0, sH0))
    p('s_add_u32 s%d, s%d, %d' % (sH0, sH0, WS_HID)); p('s_add_u32 s%d, s%d, %d' % (sH1, sH0, 168 * 1024))
    p('s_mul_i32 s%d, s%d, 168' % (sW2, sCB)); p('s_add_u32 s%d, s%d, s%d' % (sW2, sW2, sT2)); p('s_lshl_b32 s%d, s%d, 11' % (sW2, sW2))
    p('s_add_u32 s%d, s%d, %d' % (sW2, sW2, WS_W2F))
    p('s_lshr_b32 s%d, s%d, 1' % (sT0, sT2)); p('s_lshl_b32 s%d, 0x000f000f, s%d' % (sPMASK, sT0))
    p('s_lshl_b32 s%d, s%d, 11' % (sT0, sT2)); p('s_add_u32 s%d, s%d, s%d' % (sW2S, sW2, sT0))
    p('s_lshl_b32 s%d, s%d, 10' % (sT0, sT2)); p('s_add_u32 s%d, s%d, s%d' % (sH0S, sH0, sT0))
    p('v_and_b32 v%d, 16, v%d' % (vT0, vL)); p('v_lshlrev_b32 v%d, 3, v%d' % (vT0, vT0))
    p('v_and_b32 v%d, 15, v%d' % (vT1, vL)); p('v_lshl_add_u32 v%d, v%d, 3, v%d' % (vT0, vT1, vT0))
    p('s_lshl_b32 s%d, s%d, 7' % (sT2, sRT0)); p('s_add_u32 s%d, s%d, %d' % (sT2, sT2, WS_FL))
    p('v_add_u32 v%d, s%d, v%d' % (vFA, sT2, vT0))
    A0, A1, Q0, Q1 = TMP + 8, TMP + 9, TMP + 10, TMP + 11
    for a in (A0, A1, Q0, Q1): p('v_mov_b32 v%d, 0' % a)
    for j in range(1 + OPT.get('xe', 0), OPT['xup'] + 1):
        for g in x_dma(j): p.extend(g)
        if j == 2 and OPT['gpf'] == 2: p.extend(gpf.ins)
    stamp(p, 'first')
    lam = Prog()
    LT = F1 + 8
    lam_from(lam, TMP + 0, TMP + 1, TMP + 2, L1r, L1i, LT, LT + 1)
    lam('v_sub_f32 v%d, 0, v%d' % (N1i, L1i))
    cmul(lam, L2r, L2i, L1r, L1i, L1r, L1i)
    cmul(lam, L3r, L3i, L2r, L2i, L1r, L1i)
    cmul(lam, L4r, L4i, L2r, L2i, L2r, L2i)
    cmul(lam, LT, LT + 1, L4r, L4i, L4r, L4i)
    cmul(lam, LT + 2, LT + 3, LT, LT + 1, LT, LT + 1)
    cmul(lam, L32r, L32i, LT + 2, LT + 3, LT + 2, LT + 3)
    cmul(lam, LT, LT + 1, L32r, L32i, L32r, L32i)
    cmul(lam, L128r, L128i, LT, LT + 1, LT, LT + 1)
    cmul(lam, L256r, L256i, L128r, L128i, L128r, L128i)
    tagp = Prog()
    tag_setup(tagp, TMP + 28)
    tagp('s_lshr_b32 s%d, s%d, 1' % (sT5, sCB)); tagp('s_lshl_b32 s%d, s%d, 8' % (sT5, sT5))
    tagp('s_lshl_b32 s%d, s%d, 7' % (sPS, sCB)); tagp('s_add_u32 s%d, s%d, 4096' % (sPS, sPS)); tagp('s_sub_u32 s%d, s%d, s%d' % (sPS, sPS, sT5))
    tagp('s_add_u32 s%d, s%d, %d' % (sT5, sT5, WS_PF))
    tagp('v_lshl_add_u32 v%d, v%d, 3, s%d' % (vPF, vP, sT5))
    tagp('s_mul_i32 s%d, s%d, 7' % (sT5, sW)); tagp('s_lshl_b32 s%d, 0x7f, s%d' % (sPM2, sT5))

    def x_read(q, j, slot):
        for i in range(4):
            q('ds_read_b128 %s, v%d offset:%d' % (v4(X + 16 * j + 4 * i), vRX[i], slot * 4096), tok=('xr', j))
    def x_stats(q, j):
        q.waitlgkm(('xr', j))
        for k in range(16):
            r_ = X + 16 * j + k
            q('v_dot2c_f32_bf16 v%d, s%d, v%d' % (A0 if k % 2 == 0 else A1, sONE, r_))
            q('v_dot2c_f32_bf16 v%d, v%d, v%d' % (Q0 if k % 2 == 0 else Q1, r_, r_))
    q = Prog()
    q.waitvm(('x', 0)); stamp(q, 'x0in'); x_read(q, 0, 0)
    for j in range(1, 6):
        q.waitvm(('x', j)); x_read(q, j, j)
        x_stats(q, j - 1)
    q('v_add_u32 v%d, s%d, v%d' % (vT0, sLW, vL16))
    for rg in range(4):
        q('ds_write_b128 v%d, %s offset:%d' % (vT0, v4(F0 + 4 * rg), rg * 1024))
    x_read(q, 6, 0)
    x_stats(q, 5)
    x_stats(q, 6)
    x6 = [G('buffer_load_dwordx4 %s, v%d, %s, s%d offen offset:%d' % (v4(F0 + 4 * rg), vXO[rg], srd(SX), KB[6], rg * 1024)) for rg in range(4)]
    vm = []
    for j in range(OPT['xup'] + 1, 6): vm += x_dma(j)
    NS = OPT.get('ns', 4)
    vm += x6 + share[NSH:] + ([gpf.ins] if OPT['gpf'] == 3 else []) + ssm_rest[:NS]
    st, left = weave(q.ins, vm, OPT.get('perx', 44))
    assert not left, len(left)
    p.extend(st)
    stamp(p, 'x_in')
    w1k = Prog()
    for j in range(7): w1k('s_mul_i32 s%d, s%d, 1792' % (W1K[j], KB[j]))
    dma = []
    for dt in range(2):
        for j in range(7 if dt == 0 else 5):
            for e in range(2):
                l_off = (0 if dt == 0 else 14336 - 128) + 2 * j * 1024
                dma.append((G('s_add_u32 m0, s%d, %d' % (sLW, l_off)) if e == 0 else []) + G(
                    'buffer_load_dwordx4 v%d, %s, s%d offen offset:%d lds' % (vW1O[e], srd(SW1), W1K[j], 128 * dt + 1024 * e), tok='ffnA' if dt == 0 else 'ffnB'))
    q = Prog()
    q('v_add_f32 v%d, v%d, v%d' % (A0, A0, A1)); q('v_add_f32 v%d, v%d, v%d' % (Q0, Q0, Q1))
    q('v_mov_b32 v%d, v%d' % (A1, A0)); q('v_mov_b32 v%d, v%d' % (Q1, Q0))
    q('v_permlane32_swap_b32 v%d, v%d' % (A0, A1)); q('v_permlane32_swap_b32 v%d, v%d' % (Q0, Q1))
    q('v_add_f32 v%d, v%d, v%d' % (A0, A0, A1)); q('v_add_f32 v%d, v%d, v%d' % (Q0, Q0, Q1))
    q('v_mul_f32 v%d, 0x3b124925, v%d' % (A0, A0))
    q('v_mul_f32 v%d, 0x3b124925, v%d' % (Q0, Q0))
    q('v_fma_f32 v%d, -v%d, v%d, v%d' % (Q0, A0, A0, Q0))
    q('v_max_f32 v%d, 0, v%d' % (Q0, Q0))
    bf16_round(q, vM, A0)
    bf16_round(q, Q0, Q0)
    q('v_add_f32 v%d, 0x3727c5ac, v%d' % (Q0, Q0))
    bf16_round(q, Q0, Q0)
    q('v_sqrt_f32 v%d, v%d' % (Q0, Q0))
    bf16_round(q, vS, Q0)
    q('v_rcp_f32 v%d, v%d' % (vRSv, vS))
    q('s_lshl_b32 s%d, s%d, 7' % (sT3, sW))
    q('v_lshl_add_u32 v%d, v%d, 2, s%d' % (vT0, vP, sT3))
    q('v_mul_f32 v%d, 0x%x, v%d' % (vNK, NLOG2E, vRSv))
    q('ds_write_b32 v%d, v%d offset:%d' % (vT0, vRSv, L_RS))
    q('v_lshlrev_b32 v%d, 1, v%d' % (vT0, vT0))
    q('v_mov_b32 v%d, v%d' % (TMP + 12, vM)); q('v_mov_b32 v%d, v%d' % (TMP + 13, vRSv))
    q('ds_write_b64 v%d, v[%d:%d] offset:%d' % (vT0, TMP + 12, TMP + 13, L_MR))
    q('s_sub_u32 s%d, %d, s%d' % (sT4, L_SW, sLW))
    for i in range(4): q('v_add_u32 v%d, s%d, v%d' % (vRX[i], sT4, vRX[i]))
    if OPT['stamps']: q('v_mov_b32 v%d, 0' % vRSv)

    def d_step(ks, mode=0):
        z = Prog()
        if mode == 1:
            for k in range(4):
                z('v_dot2_f32_bf16 v%d, v%d, s%d, v%d' % (TMP + 8 + 2 * k, X + 4 * ks + k, sSELL, vNM))
                z('v_dot2_f32_bf16 v%d, v%d, s%d, v%d' % (TMP + 9 + 2 * k, X + 4 * ks + k, sSELH, vNM))
            for k in range(4):
                z('v_cvt_pk_bf16_f32 v%d, v%d, v%d' % (X + 4 * ks + k, TMP + 8 + 2 * k, TMP + 9 + 2 * k))
            return z.ins
        if mode == 2:
            for k in range(4):
                r_ = X + 4 * ks + k; lo = TMP + 8 + 2 * (k % 2)
                z('v_lshlrev_b32 v%d, 16, v%d' % (lo, r_))
                z('v_and_b32 v%d, s%d, v%d' % (lo + 1, sMHI, r_))
                z('v_pk_add_f32 v[%d:%d], v[%d:%d], v[%d:%d] op_sel_hi:[1,0]' % (lo, lo + 1, lo, lo + 1, vNM, vNM + 1))
                z('v_cvt_pk_bf16_f32 v%d, v%d, v%d' % (r_, lo, lo + 1))
            return z.ins
        for k in range(4):
            r_ = X + 4 * ks + k; lo, hi = TMP + 8 + 2 * (k % 2), TMP + 9 + 2 * (k % 2)
            z('v_lshlrev_b32 v%d, 16, v%d' % (lo, r_))
            z('v_and_b32 v%d, s%d, v%d' % (hi, sMHI, r_))
            z('v_sub_f32 v%d, v%d, v%d' % (lo, lo, vM))
            z('v_sub_f32 v%d, v%d, v%d' % (hi, hi, vM))
            z('v_cvt_pk_bf16_f32 v%d, v%d, v%d' % (r_, lo, hi))
        return z.ins
    LEAD = OPT['lead']
    q('v_sub_f32 v%d, 0, v%d' % (vNM, vM))
    q('s_mov_b32 s%d, 0x3f80' % sSELL); q('s_mov_b32 s%d, 0x3f800000' % sSELH)
    if OPT.get('tage'): q.extend(tagp.ins)
    for ks in range(LEAD): q.extend(d_step(ks, 1 if OPT['dot'] else 0))
    if not OPT.get('tage'): q.extend(tagp.ins)
    stamp(q, 'lead')
    q.waitvm('ssmw')
    stamp(q, 'Win')
    q('s_barrier')
    stamp(q, 'B1')
    def wbuf(n): return WB + 4 * (n % 8)
    def ssm_read(n):
        ks, T = n // 2, n % 2
        return G('ds_read_b128 %s, v%d offset:%d' % (v4(wbuf(n)), vRX[ks % 4], T * 28672 + (ks // 4) * 4096), tok=('wf', n))
    PRE = 6
    for n in range(PRE): q.extend(ssm_read(n))
    groups = []
    for ks in range(28):
        z = Prog()
        z.waitlgkm(('wf', 2 * ks + 1))
        for T in range(2):
            n = 2 * ks + T; acc = SRE if T == 0 else SIM
            z('v_mfma_f32_32x32x16_bf16 %s, %s, %s, %s' % (v16(acc), v4(X + 4 * ks), v4(wbuf(n)), '0' if ks == 0 else v16(acc)))
            if n + PRE < 56: z.extend(ssm_read(n + PRE))
            groups.append(z.ins); z = Prog()
    fill = []
    for ks in range(LEAD, 28): fill += d_step(ks, 2 if OPT['pk'] else 0)
    fill = fill + lam.ins
    k = 0
    span = OPT.get('span', 54)
    for n, g in enumerate(groups):
        q.extend(g)
        tgt = min(len(fill), (len(fill) * (n + 1)) // span)
        q.extend(fill[k:tgt]); k = tgt
    done = set(range(X, X + 4 * LEAD))
    for i in q.ins:
        if i.op == 'v_cvt_pk_bf16_f32' and X <= i.wr[0][1] < X + 112: done.add(i.wr[0][1])
        if i.kind == 'mfma': assert all(r[1] in done for r in i.rd if r[0] == 'v' and X <= r[1] < X + 112), i.text
    RSF = TMP + 8
    q('v_lshl_add_u32 v%d, v%d, 4, s%d' % (vT0, vH, sT3))
    for g in range(4):
        q('ds_read_b128 %s, v%d offset:%d' % (v4(RSF + 4 * g), vT0, L_RS + 32 * g))
    def pf(T):
        if T < 4: return 'buffer_load_dwordx2 v[%d:%d], v%d, %s, 0 offen offset:%d sc1' % (FR, FR + 1, vPF, srd(SWS), 1024 * T)
        return 'buffer_load_dwordx2 v[%d:%d], v%d, %s, s%d offen sc1' % (FR, FR + 1, vPF, srd(SWS), sPS)
    w2_regs = {}
    w2_state = {'last': None}
    def w2_load(idx, reg):
        if idx < 56: base, off = sW2, ((idx // 14) * 28 + (idx % 14) // 2) * 2048 + (idx % 2) * 1024
        else: base, off = sW2S, (112 + (idx - 56) // 2) * 2048 + (idx % 2) * 1024
        z = Prog()
        key = (base, off - off % 4096)
        if w2_state['last'] != key:
            z('s_add_u32 s%d, s%d, %d' % (sT5, base, off - off % 4096)); w2_state['last'] = key
        if isinstance(reg, tuple):
            mk = (reg[1], reg[2] - off % 4096 + 4096)
            if w2_state.get('m0') != mk:
                z('s_add_u32 m0, s%d, %d' % mk); w2_state['m0'] = mk
            z('buffer_load_dwordx4 v%d, %s, s%d offen offset:%d sc1 lds' % (vL16, srd(SWS), sT5, off % 4096), tok=('w2', idx))
        else:
            z('buffer_load_dwordx4 %s, v%d, %s, s%d offen offset:%d sc1' % (v4(reg), vL16, srd(SWS), sT5, off % 4096), tok=('w2', idx))
        w2_regs[idx] = reg
        return z.ins
    def w2_dest(i):
        if i < 56: return 256 + 4 * i
        return X + 32 + 4 * (i - 56)
    NW2 = 76
    w2q = []
    for T in range(5):
        lo, hi_ = 14 * T, (14 * T + 14 if T < 4 else NW2)
        if lo >= hi_: break
        Tp = T if not OPT.get('p3only', 1) else ({0: 0, 1: 3, 2: None, 3: None, 4: 4} if OPT.get('pord', 0) < 4 else {0: 0, 1: None, 2: None, 3: 3, 4: 4})[T]
        nx = (T + 1 if T < 4 else None) if not OPT.get('p3only', 1) else ({0: 3, 1: 4} if OPT.get('pord', 0) < 4 else {2: 3}).get(T)
        if Tp is not None: w2q.append(poll_check('p%d' % Tp, ('s%d' % sPM2) if Tp < 4 else '0x7f7f', pf(Tp)))
        for i in range(lo, hi_):
            g = w2_load(i, w2_dest(i))
            if i == 56: g = [Ins('; need B4')] + g
            if i >= 56: g = [Ins('; after %d' % (9 + i - 56))] + g if i > 56 else g[:1] + [Ins('; after 9')] + g[1:]
            w2q.append(g)
            if nx is not None and (nx != 4 or not OPT.get('p3only', 1)) and i == lo + 1: w2q.append(G(pf(nx)))
            if OPT.get('p3only', 1) and i == OPT.get('psidx', 27): w2q.append(G(pf(4)))
    w2i = NW2
    dmaA, dmaB = dma[:14], dma[14:]
    vm = ssm_rest[NS:] + [w1k.ins + dmaA[0]] + dmaA[1:] + w1g + dmaB
    w2q[0] = [Ins('; at %d' % OPT['tc'])] + w2q[0]
    if OPT['w2early']: vm += w2q
    st, carry = weave(q.ins, vm, OPT['per'], 0, OPT['perd'], events=[(OPT['tp'], G(pf(0)))])
    kt = [k for k, i in enumerate(st) if i.text.startswith('v_lshl_add_u32 v%d' % vPF)][0]
    kp = [k for k, i in enumerate(st) if i.text == pf(0)][0]
    assert kt < kp
    if carry and carry[0][0].text.startswith('; at'): carry[0] = carry[0][1:]
    if not OPT['w2early']: carry += w2q
    assert not any(x.tok in ('ffnA', 'ssmw') for g in carry for x in g)
    pos_b = [k for k, i in enumerate(st) if i.kind == 'barrier'][0]
    assert not any(i.tok == 'ssmw' for i in st[pos_b:]), 'SSM DMA after B1'
    p.extend(st)
    stamp(p, 'ssmend')
    p.waitvm('ffnA')
    stamp(p, 'Ain')
    p('s_waitcnt lgkmcnt(0)')
    p('s_barrier')
    stamp(p, 'B2')
    p('s_lshl_b32 s%d, s%d, 13' % (sT4, sC)); p('s_add_u32 s%d, s%d, %d' % (sT4, sT4, WS_EG))
    p('s_add_u32 s%d, s6, s%d' % (SEG, sT4)); p('s_addc_u32 s%d, s7, 0' % (SEG + 1))
    p('s_mov_b32 s%d, 8192' % (SEG + 2)); p('s_mov_b32 s%d, 0x20000' % (SEG + 3))
    p('s_lshl_b32 s%d, s%d, 12' % (sT2, sW))
    tail_dma = []
    for j in (5, 6):
        for e in range(2):
            tail_dma.append((G('s_add_u32 m0, s%d, %d' % (sT2, L_SW - 128 + 2 * (j - 5) * 1024)) if e == 0 else []) + G(
                'buffer_load_dwordx4 v%d, %s, s%d offen offset:%d lds' % (vW1O[e], srd(SW1), W1K[j], 128 + 1024 * e), tok='ffnB'))

    def ffn_read(T, ks, n):
        dt, tt = T // 2, T % 2
        j, i = ks // 4, ks % 4
        if dt == 0: U = i * L_XW + 2 * j * 1024
        elif j <= 4: U = i * L_XW + 14336 + 2 * j * 1024
        else: U = L_SW - L0 + i * 4096 + 2 * (j - 5) * 1024
        z = Prog()
        for hh in range(2):
            off = U + hh * 512; win = 0
            if off >= 65536: off -= 65536; win = 1
            z('ds_read_b64_tr_b16 %s, v%d offset:%d' % (v2(wbuf(n) + 2 * hh), vRF[tt][win], off), tok=('wf', n))
        return z.ins
    def silu(T):
        acc = F0 if T % 2 == 0 else F1
        z = Prog()
        tp = [vT0, vT1, vT2, vBO]
        for b in range(0, 16, 4):
            for k in range(4): z('v_mul_f32 v%d, v%d, v%d' % (tp[k], vNK, acc + b + k))
            for k in range(4): z('v_exp_f32 v%d, v%d' % (tp[k], tp[k]))
            for k in range(4): z('v_fma_f32 v%d, v%d, v%d, v%d' % (tp[k], tp[k], vS, vS))
            for k in range(4): z('v_rcp_f32 v%d, v%d' % (tp[k], tp[k]))
            for k in range(4): z('v_mul_f32 v%d, v%d, v%d' % (acc + b + k, acc + b + k, tp[k]))
            z('v_cvt_pk_bf16_f32 v%d, v%d, v%d' % (acc + b // 2, acc + b, acc + b + 1))
            z('v_cvt_pk_bf16_f32 v%d, v%d, v%d' % (acc + b // 2 + 1, acc + b + 2, acc + b + 3))
            if b == 4:
                z('s_add_u32 s%d, s%d, %d' % (sT2, sHW, T * 28 * 1024))
                z('buffer_store_dwordx4 %s, v%d, %s, s%d offen%s' % (v4(acc), vL16, srd(SWS), sT2, HSC), tok=('hs', T))
        z('buffer_store_dwordx4 %s, v%d, %s, s%d offen offset:1024%s' % (v4(acc + 4), vL16, srd(SWS), sT2, HSC), tok=('hs', T))
        return z.ins
    E0r, E0i, E1r, E1i = vXO[0], vXO[1], vXO[2], vXO[3]
    def scan1():
        z = Prog()
        for g in range(4):
            for i in range(4):
                z('v_mul_f32 v%d, v%d, v%d' % (SRE + 4 * g + i, RSF + 4 * g + i, SRE + 4 * g + i))
                z('v_mul_f32 v%d, v%d, v%d' % (SIM + 4 * g + i, RSF + 4 * g + i, SIM + 4 * g + i))
        for i in range(1, 4):
            for g in range(4):
                a, b = SRE + 4 * g + i, SIM + 4 * g + i
                z('v_fmac_f32 v%d, v%d, v%d' % (a, L1r, a - 1))
                z('v_fmac_f32 v%d, v%d, v%d' % (b, L1r, b - 1))
                z('v_fmac_f32 v%d, v%d, v%d' % (a, N1i, b - 1))
                z('v_fmac_f32 v%d, v%d, v%d' % (b, L1i, a - 1))
        for g in range(4):
            b = RSF + 4 * g
            z('v_mov_b32 v%d, v%d' % (b, SRE + 4 * g + 3)); z('v_mov_b32 v%d, v%d' % (b + 1, SRE + 4 * g + 3))
            z('v_mov_b32 v%d, v%d' % (b + 2, SIM + 4 * g + 3)); z('v_mov_b32 v%d, v%d' % (b + 3, SIM + 4 * g + 3))
        for g in range(4):
            b = RSF + 4 * g
            z('v_permlane32_swap_b32 v%d, v%d' % (b, b + 1)); z('v_permlane32_swap_b32 v%d, v%d' % (b + 2, b + 3))
        cur = (RSF, RSF + 2); nxt = [(E0r, E0i), (E1r, E1i)]
        for s in range(1, 8):
            g, h = s // 2, s % 2
            er, ei = RSF + 4 * g + h, RSF + 4 * g + 2 + h
            d = nxt[s % 2]
            z('v_fma_f32 v%d, v%d, v%d, v%d' % (d[0], L4r, cur[0], er))
            z('v_fma_f32 v%d, v%d, v%d, v%d' % (d[1], L4r, cur[1], ei))
            z('v_fma_f32 v%d, -v%d, v%d, v%d' % (d[0], L4i, cur[1], d[0]))
            z('v_fmac_f32 v%d, v%d, v%d' % (d[1], L4i, cur[0]))
            cur = d
        z('s_lshl_b32 s%d, s%d, 8' % (sT4, sW))
        z('v_lshl_add_u32 v%d, v%d, 3, s%d' % (vT0, vP, sT4))
        z('ds_write_b64 v%d, v[%d:%d] offset:%d' % (vT0, E1r, E1i, L_EW), tok='ew')
        return z.ins
    def fl_load(stage): return 'buffer_load_dwordx2 v[%d:%d], v%d, %s, s%d offen sc1' % (FR2, FR2 + 1, vFA, srd(SWS), sT6)
    def fl_issue(stage): return G('s_mov_b32 s%d, %d' % (sT6, stage * 8192), fl_load(stage))
    n0 = 56
    seq = [(T, ks) for T in range(4) for ks in range(28)]
    for m in range(PRE): p.extend(ffn_read(seq[m][0], seq[m][1], n0 + m))
    EWR = TMP + 0
    LB = X
    lbp = Prog()
    lbp('s_sub_u32 s%d, s%d, 1' % (sT0, sR)); lbp('s_lshl_b32 s%d, s%d, 9' % (sT0, sT0))
    lbp('v_lshlrev_b32 v%d, 9, v%d' % (vRX[1], vH))
    lbp('v_sub_u32 v%d, s%d, v%d' % (vRX[1], sT0, vRX[1]))
    lbp('v_lshl_add_u32 v%d, v%d, 4, v%d' % (vRX[0], vP, vRX[1]))
    lb_groups = []
    for m in range(8):
        z = Prog()
        if m: z('v_subrev_u32 v%d, %d, v%d' % (vRX[1], 1024 * m, vRX[0]))
        z('buffer_load_dwordx4 %s, v%d, %s, 0 offen sc1' % (v4(LB + 4 * m), vRX[1] if m else vRX[0], srd(SEG)))
        lb_groups.append(z.ins)
    lb_text = '\n'.join(i.text for g in lb_groups for i in g)
    pool = []
    hid_regs = {}
    hstate = {0: None, 1: None}
    def hid_load(idx):
        rt = idx % 2
        if idx < 56: base, off = (sH0, sH1)[rt], ((idx // 14) * 28 + (idx % 14) // 2) * 1024
        else: base, off = (sH0S, sH1S)[rt], (112 + (idx - 56) // 2) * 1024
        reg = pool.pop(0); hid_regs[idx] = reg
        sreg = sT3 if rt == 0 else sT4
        z = Prog()
        key = (base, off - off % 4096)
        if hstate[rt] != key:
            z('s_add_u32 s%d, s%d, %d' % (sreg, base, off - off % 4096)); hstate[rt] = key
        z('buffer_load_dwordx4 %s, v%d, %s, s%d offen offset:%d sc1' % (v4(reg), vL16, srd(SWS), sreg, off % 4096), tok=('hid', idx))
        return z.ins
    stage_of = lambda idx: min(idx // 14, 4)
    hi = 0
    checked = set()
    def hid_next():
        nonlocal hi
        assert stage_of(hi) in checked
        g = hid_load(hi); hi += 1
        return g
    def fl_check(st):
        checked.add(st)
        return poll_check('f%d' % st, 's%d' % sPMASK, fl_load(0), FR2)
    def split_at_need(vm):
        for k, g in enumerate(vm):
            if g and g[0].text == '; need B4': return vm[:k], vm[k:]
        return vm, []
    for T in range(4):
        groups = []
        acc = F0 if T % 2 == 0 else F1
        for ks in range(28):
            m = T * 28 + ks
            z = Prog()
            if ks % 2 == 0: z.waitlgkm(('wf', n0 + m + 1))
            z('v_mfma_f32_32x32x16_bf16 %s, %s, %s, %s' % (v16(acc), v4(wbuf(n0 + m)), v4(X + 4 * ks), '0' if ks == 0 else v16(acc)))
            if m + PRE < 112:
                z.extend(ffn_read(seq[m + PRE][0], seq[m + PRE][1], n0 + m + PRE))
            groups.append(z.ins)
        q = Prog()
        held = []; ev = []
        if T == 0:
            q.extend(groups[0]); q.extend(groups[1])
            q.extend(interleave(groups[2:], scan1()))
            nb = [g for g in carry if any(x.tok == 'ffnB' for x in g)]
            k = max([carry.index(g) for g in nb]) + 1 if nb else 0
            vm = carry[:k] + tail_dma + carry[k:]
        elif T == 1:
            pre = Prog()
            GE = vXO[0]
            pre('v_fma_f32 v%d, v%d, v%d, v%d' % (vT0, L32r, EWR, EWR + 2)); pre('v_fma_f32 v%d, v%d, v%d, v%d' % (vT1, L32r, EWR + 1, EWR + 3))
            pre('v_fma_f32 v%d, -v%d, v%d, v%d' % (vT0, L32i, EWR + 1, vT0)); pre('v_fmac_f32 v%d, v%d, v%d' % (vT1, L32i, EWR))
            pre('v_fma_f32 v%d, v%d, v%d, v%d' % (vT2, L32r, vT0, EWR + 4)); pre('v_fma_f32 v%d, v%d, v%d, v%d' % (vT3, L32r, vT1, EWR + 5))
            pre('v_fma_f32 v%d, -v%d, v%d, v%d' % (vT2, L32i, vT1, vT2)); pre('v_fmac_f32 v%d, v%d, v%d' % (vT3, L32i, vT0))
            pre('v_fma_f32 v%d, v%d, v%d, v%d' % (GE, L32r, vT2, EWR + 6)); pre('v_fma_f32 v%d, v%d, v%d, v%d' % (GE + 1, L32r, vT3, EWR + 7))
            pre('v_fma_f32 v%d, -v%d, v%d, v%d' % (GE, L32i, vT3, GE)); pre('v_fmac_f32 v%d, v%d, v%d' % (GE + 1, L32i, vT2))
            pre('v_mov_b32 v%d, s%d' % (GE + 2, sTL)); pre('v_mov_b32 v%d, s%d' % (GE + 3, sTH))
            pre('s_lshl_b32 s%d, s%d, 3' % (sT4, sW)); pre('s_lshl_b32 s%d, 0xff, s%d' % (sT4, sT4))
            pre('s_lshl_b32 s%d, s%d, 9' % (sT0, sR))
            egs = G('s_mov_b32 exec_lo, s%d' % sT4, 's_mov_b32 exec_hi, 0',
                    'buffer_store_dwordx4 %s, v%d, %s, s%d offen sc1' % (v4(GE), vL16, srd(SEG), sT0), 's_mov_b64 exec, -1')
            q.extend(interleave(groups[:5], pre.ins)); q.extend(egs)
            q.extend(interleave(groups[5:OPT['send'] + 1], silu(0)))
            for g in groups[OPT['send'] + 1:]: q.extend(g)
            vm = carry
        else:
            q.extend(groups[0]); q.extend(groups[1]); q.extend(groups[2])
            q.extend(interleave(groups[3:OPT['send']], silu(T - 1)))
            for g in groups[OPT['send']:]: q.extend(g)
            if T == 2:
                vm = carry; ev = [(OPT['tf'], flag_group(sFW, 0, ('hs', 0)))]
            else:
                lbs = [[Ins('; after 9')] + lbp.ins + lb_groups[0] + lb_groups[1] + lb_groups[2] + lb_groups[3], lb_groups[4] + lb_groups[5] + lb_groups[6] + lb_groups[7]]
                for g in lbs:
                    for x in g: x.text = x.text
                vm = carry
                ev = [(420, lbs[0][1:]), (520, lbs[1]), (OPT['tf'], flag_group(sFW, 8192, ('hs', 1))), (OPT['tp0'], fl_issue(0))]
        if T < 3: vm, held = split_at_need(vm)
        if T == 3: vm = [g[1:] if g and g[0].text == '; need B4' else g for g in vm]
        st, carry = weave(q.ins, vm, OPT['per'], 60 if T == 2 else 0, OPT['perd'], small=(SEG,), events=ev)
        carry += held
        if T == 3:
            mf = [k for k, i in enumerate(st) if i.kind == 'mfma']
            pos_l = [k for k, i in enumerate(st) if i.kind == 'vload' and 's[%d:%d]' % (SEG, SEG + 3) in i.text]
            assert len(pos_l) == 8 and pos_l[0] > mf[7], (pos_l, mf[7])
            pos_h = [k for k, i in enumerate(st) if isinstance(i.tok, tuple) and i.tok[0] == 'hid']
            assert not pos_h or pos_h[0] > mf[11]
        p.extend(st)
        if T == 0:
            assert not any(x.tok == 'ffnB' for g in carry for x in g)
            p.waitlgkm('ew'); p.waitvm('ffnB')
            p('s_barrier')
            p('v_lshlrev_b32 v%d, 3, v%d' % (vT0, vP))
            for k in range(4): p('ds_read_b64 v[%d:%d], v%d offset:%d' % (EWR + 2 * k, EWR + 2 * k + 1, vT0, L_EW + 256 * k))
        stamp(p, 'T%d' % T)
        print('after T%d: %d groups pending' % (T, len(carry)))
    pool += [WB + 4 * k for k in range(8)] + [F0 + 4 * k for k in range(4)]
    carry = [[x for x in g if not x.text.startswith('; after')] for g in carry]
    p('s_add_u32 s%d, s%d, %d' % (sH1S, sH0S, 168 * 1024))

    q = Prog()
    s3 = silu(3)
    q.extend(s3)
    stamp(q, 'silu3')
    def lb_check(z, lab_bad):
        z('v_add3_u32 v%d, v%d, v%d, v%d' % (vT0, LB + 2, LB + 6, LB + 10)); z('v_add3_u32 v%d, v%d, v%d, v%d' % (vT1, LB + 3, LB + 7, LB + 11))
        z('v_add3_u32 v%d, v%d, v%d, v%d' % (vT0, vT0, LB + 14, LB + 18)); z('v_add3_u32 v%d, v%d, v%d, v%d' % (vT1, vT1, LB + 15, LB + 19))
        z('v_add3_u32 v%d, v%d, v%d, v%d' % (vT0, vT0, LB + 22, LB + 26)); z('v_add3_u32 v%d, v%d, v%d, v%d' % (vT1, vT1, LB + 23, LB + 27))
        z('v_add_u32 v%d, v%d, v%d' % (vT0, vT0, LB + 30)); z('v_add_u32 v%d, v%d, v%d' % (vT1, vT1, LB + 31))
        k0 = len(z.ins)
        z('v_cmp_ne_u32 vcc, v%d, v%d' % (vT0, vT2))
        z('v_cmp_ne_u32 s[%d:%d], v%d, v%d' % (sP0, sP0 + 1, vT1, vT3))
        z('s_nop 1')
        z('s_or_b64 vcc, vcc, s[%d:%d]' % (sP0, sP0 + 1))
        z('s_cbranch_scc1 %s' % lab_bad)
        for i in z.ins[k0:]: i.note = 'glue'
    q('v_sub_u32 v%d, s%d, v%d' % (vT3, sR, vH)); q('v_add_u32 v%d, 1, v%d' % (vT3, vT3)); q('v_lshrrev_b32 v%d, 1, v%d' % (vT3, vT3))
    q('v_mul_lo_u32 v%d, s%d, v%d' % (vT2, sTL, vT3)); q('v_mul_lo_u32 v%d, s%d, v%d' % (vT3, sTH, vT3))
    lb_check(q, 'L_retry_lb')
    q('L_ok_lb:')
    stamp(q, 'lbok')
    z = Prog()
    z('L_retry_lb:'); z('s_mov_b32 s%d, 0' % sSPIN); z('L_loop_lb:'); z('s_sleep 1'); z(lb_text); z('s_waitcnt vmcnt(0)')
    if OPT['stamps']: z('v_add_u32 v%d, 0x100, v%d' % (vRSv, vRSv))
    z('s_add_u32 s%d, s%d, 1' % (sSPIN, sSPIN)); z('s_cmp_gt_u32 s%d, %d' % (sSPIN, OPT['spin'])); z('s_cbranch_scc1 L_ok_lb')
    lb_check(z, 'L_loop_lb'); z('s_branch L_ok_lb')
    retry_blocks.append(z)
    for m in range(6, -1, -1):
        cmac(q, LB + 4 * m, LB + 4 * m + 1, L256r, L256i, LB + 4 * m + 4, LB + 4 * m + 5)
    q('v_mov_b32 v%d, v%d' % (LB + 4, LB)); q('v_mov_b32 v%d, v%d' % (LB + 5, LB + 1))
    q('v_permlane32_swap_b32 v%d, v%d' % (LB, LB + 4)); q('v_permlane32_swap_b32 v%d, v%d' % (LB + 1, LB + 5))
    cmac(q, LB, LB + 1, L128r, L128i, LB + 4, LB + 5)
    cmac(q, EWR, EWR + 1, L32r, L32i, LB, LB + 1)
    cmac(q, EWR + 2, EWR + 3, L32r, L32i, EWR, EWR + 1)
    cmac(q, EWR + 4, EWR + 5, L32r, L32i, EWR + 2, EWR + 3)
    CS = LB + 8
    q('v_mov_b32 v%d, v%d' % (CS, LB)); q('v_mov_b32 v%d, v%d' % (CS + 1, LB + 1))
    for k in range(3):
        k0 = len(q.ins)
        q('s_cmp_eq_u32 s%d, %d' % (sW, k + 1)); q('s_cselect_b64 vcc, -1, 0')
        q('v_cndmask_b32 v%d, v%d, v%d, vcc' % (CS, CS, EWR + 2 * k))
        for i in q.ins[k0:]: i.note = 'glue'
        q('v_cndmask_b32 v%d, v%d, v%d, vcc' % (CS + 1, CS + 1, EWR + 2 * k + 1))
    for s in range(7):
        g, h = s // 2, s % 2
        er, ei = RSF + 4 * g + h, RSF + 4 * g + 2 + h
        d, cur = CS + 2 * (s + 1), CS + 2 * s
        q('v_fma_f32 v%d, v%d, v%d, v%d' % (d, L4r, cur, er))
        q('v_fma_f32 v%d, v%d, v%d, v%d' % (d + 1, L4r, cur + 1, ei))
        q('v_fma_f32 v%d, -v%d, v%d, v%d' % (d, L4i, cur + 1, d))
        q('v_fmac_f32 v%d, v%d, v%d' % (d + 1, L4i, cur))
    k0 = len(q.ins)
    q('s_mov_b32 vcc_lo, 0'); q('s_mov_b32 vcc_hi, -1')
    for g in range(4):
        a = CS + 4 * g
        q('v_cndmask_b32 v%d, v%d, v%d, vcc' % (a, a, a + 2))
        q('v_cndmask_b32 v%d, v%d, v%d, vcc' % (a + 1, a + 1, a + 3))
    for i in q.ins[k0:-1]: i.note = 'glue'
    for g in range(4):
        a = CS + 4 * g
        q('v_sub_f32 v%d, 0, v%d' % (a + 2, a + 1))
    stamp(q, 'carry')
    q.extend(epilogue_loads())
    PW = [(L1r, L1i), (L2r, L2i), (L3r, L3i), (L4r, L4i)]
    for g in range(4):
        a = CS + 4 * g
        for i in range(4):
            ur, ui = SRE + 4 * g + i, SIM + 4 * g + i
            q('v_fmac_f32 v%d, v%d, v%d' % (ur, PW[i][0], a))
            q('v_fmac_f32 v%d, v%d, v%d' % (ui, PW[i][0], a + 1))
            q('v_fmac_f32 v%d, v%d, v%d' % (ur, PW[i][1], a + 2))
            q('v_fmac_f32 v%d, v%d, v%d' % (ui, PW[i][1], a))
        for comp, base in ((0, SRE), (1, SIM)):
            b = base + 4 * g
            q('v_cvt_pk_bf16_f32 v%d, v%d, v%d' % (b, b, b + 1))
            q('v_cvt_pk_bf16_f32 v%d, v%d, v%d' % (b + 1, b + 2, b + 3))
            q('ds_write_b64 v%d, v[%d:%d] offset:%d' % (vTW, b, b + 1, comp * 2304 + 16 * g))
    stamp(q, 'fix')
    HS = F1
    for comp in range(2):
        for q_ in range(2):
            for hh in range(2):
                q('ds_read_b64_tr_b16 %s, v%d offset:%d' % (v2(HS + 8 * comp + 4 * q_ + 2 * hh), vTRr, comp * 2304 + (16 * q_ + 4 * hh) * 72))
    q('s_lshl_b32 s%d, s%d, 11' % (sT2, sC)); q('s_add_u32 s%d, s%d, s%d' % (sT2, sT2, sHW)); q('s_add_u32 s%d, s%d, %d' % (sT2, sT2, 112 * 1024))
    for _ in range(10): q('; pad')
    for f in range(4):
        q('buffer_store_dwordx4 %s, v%d, %s, s%d offen offset:%d%s' % (v4(HS + 4 * f), vL16, srd(SWS), sT2, f * 1024, HSC), tok='hsC')
    vm = carry[:5] + [[Ins('; at %d' % OPT['tc0'])] + fl_check(0)] + [hid_next() for _ in range(12)] + carry[5:]
    ev = [(OPT['tp1'], fl_issue(1)), (OPT['tf2'], flag_group(sFW, 2 * 8192, ('hs', 2)))]
    q.ins = [i for i in q.ins if not i.text.startswith('; mark')]
    st, left = weave(q.ins, vm, OPT['perh'], events=ev)
    k0 = [k for k, i in enumerate(st) if i.text == 'L_ok_f0:'][0]; k1 = [k for k, i in enumerate(st) if i.text.startswith('s_mov_b32 s%d, 8192' % sT6)][0]
    assert k0 < k1
    p.extend(st)
    pool += [F1 + 4 * k for k in range(4)]
    fillr = epilogue_pre()
    ACC = {(0, 0): SRE, (0, 1): SIM, (1, 0): 192, (1, 1): 208}
    fk = 0
    when = {}
    pstep = {OPT['p2']: 2, OPT['p3']: 3, OPT['p4']: 4}
    cstep = {OPT['c1']: 1, OPT['p2'] + OPT['pd']: 2, OPT['p3'] + OPT['pd']: 3, OPT['p4'] + OPT['pd']: 4}
    real_p = p
    late = []
    for step in range(42):
        if step in (0, 7, 14, 21, 28, 35) or OPT.get('allg'): stamp(real_p, 'g%d' % step)
        side = []
        while any((isinstance(x.tok, tuple) and x.tok[0] == 'hid') or 's_mov_b32 s%d' % sT6 in x.text for g in left for x in g):
            (real_p.extend if step == 0 else side.append)(left.pop(0))
        if step == OPT['f3']: side.append(flag_group(sFW, 3 * 8192, ('hs', 3)))
        if step == OPT['f4']: side.append(flag_group(sFW, 4 * 8192, 'hsC'))
        if step in cstep: side.append(fl_check(cstep[step]))
        if step in pstep:
            assert pstep[step] - 1 in checked
            side.append(fl_issue(pstep[step]))
        nh = 0
        while hi < 84 and hi < 2 * step + 4 + OPT['ahead'] and pool and stage_of(hi) in checked and nh < OPT.get('maxh', 4): side.append(hid_next()); nh += 1
        for rep in range(2):
            if rep == 1 and len(left) + 84 - w2i <= max(0, 30 - step): break
            if left: side.append(left.pop(0))
            elif w2i < 84 and len(pool) > 2 and step >= OPT.get('w2s', 2) and nh < 3:
                reg = pool.pop(0); side.append(w2_load(w2i, reg)); w2i += 1
        if step == OPT.get('ots', 30) and OPT['tch'] & 4:
            side.append(G('s_mov_b64 exec, 1', 'buffer_load_dword v%d, v%d, %s, s%d offen' % (vT3, vZ, srd(SOUT), sOO), 's_mov_b64 exec, -1'))
        if step == OPT.get('b5', 36): side.append(G('s_barrier'))
        for i in (2 * step + 4, 2 * step + 5):
            if i < 84 and isinstance(w2_regs.get(i), tuple):
                d = w2_regs[i]; reg = pool.pop(0)
                z = Prog(); z.waitvm(('w2', i))
                z('ds_read_b128 %s, v%d offset:%d' % (v4(reg), vFA2 if d[1] == sLT else vFA3, d[2] + 4096))
                side.append(z.ins)
                w2_regs[i] = reg
        w0, w1_ = w2_regs[2 * step], w2_regs[2 * step + 1]
        h0, h1 = hid_regs[2 * step], hid_regs[2 * step + 1]
        em = set(x.tok for x in p.ins if isinstance(x.tok, tuple))
        for t in (('w2', 2 * step), ('w2', 2 * step + 1), ('hid', 2 * step), ('hid', 2 * step + 1)): assert t in em, t
        k = 0
        NL = OPT.get('nlast', 3)
        order = ((0, 0), (0, 1), (1, 0), (1, 1))
        if step >= 42 - NL:
            late.append((w1_, h0, h1)); order = order[:2]
        for n, (ct, rt) in enumerate(order):
            a = ACC[(ct, rt)]
            p('v_mfma_f32_32x32x16_bf16 %s, %s, %s, %s' % (v16(a), v4((w0, w1_)[ct]), v4((h0, h1)[rt]), '0' if step == 0 else v16(a)))
            tgt = (len(side) * (n + 1) + len(order) - 1) // len(order)
            c = 0
            for g in side[k:tgt]: p.extend(g); c += sum(cost(x) for x in g)
            k = tgt
            while step >= OPT.get('fs', 1) and fk < len(fillr) and (c < OPT.get('fb', 36) or fillr[fk - 1].note == 'glue'):
                i = fillr[fk]; fk += 1
                c += cost(i)
                p.ins.append(i)
        pool += [w0, w1_, h0, h1]
    wr = [G('ds_write_b128 v%d, %s offset:%d' % (PWA + g, v4(ACC[(0, rt)] + 4 * g), rt * 8192)) for rt in range(2) for g in range(4)] if late else []
    mm = [G('v_mfma_f32_32x32x16_bf16 %s, %s, %s, %s' % (v16(ACC[(1, rt)]), v4(w), v4((a_, b_)[rt]), v16(ACC[(1, rt)]))) for (w, a_, b_) in late for rt in range(2)]
    for n, g in enumerate(mm):
        p.extend(g)
        if n >= 1:
            for _ in range(2):
                if wr: p.extend(wr.pop(0))
    for g in wr: p.extend(g)
    OPT['_ct0done'] = bool(late)
    assert fk == len(fillr) and w2i == 84 and not left, (fk, len(fillr), w2i, len(left))
    print('G2 marks', when)
    stamp(p, 'g2end')
    epilogue(p, ACC)

EX, ED, ST, DD = TMP + 0, TMP + 8, TMP + 10, TMP + 18
EB, ET, PWA, PRA, vOO, PRB = X + 0, X + 16, X + 24, X + 28, X + 30, X + 22
sXO, sOO = 38, 39
def epilogue_loads():
    p = Prog()
    p('v_lshrrev_b32 v%d, 4, v%d' % (vT0, vL)); p('v_and_b32 v%d, 15, v%d' % (vT1, vL))
    p('v_mul_u32_u24 v%d, 896, v%d' % (vT2, vT0)); p('v_lshl_add_u32 v%d, v%d, 3, v%d' % (vT2, vT1, vT2))
    p('s_lshl_b32 s%d, s%d, 5' % (sXO, sRT0)); p('s_lshl_b32 s%d, s%d, 4' % (sT1, sW)); p('s_add_u32 s%d, s%d, s%d' % (sXO, sXO, sT1))
    p('s_mul_i32 s%d, s%d, 896' % (sXO, sXO)); p('s_lshl_b32 s%d, s%d, 7' % (sT1, sCB)); p('s_add_u32 s%d, s%d, s%d' % (sXO, sXO, sT1))
    p('s_add_u32 s%d, s%d, %d' % (sT0, sXO, 8 * 896))
    for it in range(4):
        p('buffer_load_dwordx2 v[%d:%d], v%d, %s, s%d offen offset:%d' % (EX + 2 * it, EX + 2 * it + 1, vT2, srd(SX), sXO if it < 2 else sT0, (it % 2) * 4 * 896))
    p('v_lshlrev_b32 v%d, 3, v%d' % (vT3, vT1))
    p('buffer_load_dwordx2 v[%d:%d], v%d, %s, s%d offen' % (ED, ED + 1, vT3, srd(SDSK), sT1))
    p('s_lshl_b32 s%d, s%d, 9' % (sT1, sHALF)); p('s_lshl_b32 s%d, s%d, 7' % (sT0, sW)); p('s_add_u32 s%d, s%d, s%d' % (sT1, sT1, sT0))
    p('v_lshl_add_u32 v%d, v%d, 3, s%d' % (vT3, vT0, sT1))
    for it in range(4):
        p('ds_read_b64 v[%d:%d], v%d offset:%d' % (ST + 2 * it, ST + 2 * it + 1, vT3, L_MR + 32 * it))
    return p.ins

def epilogue_pre():
    p = Prog()
    p('v_lshlrev_b32 v%d, 1, v%d' % (vOO, vT2))
    p('s_lshl_b32 s%d, s%d, 1' % (sOO, sXO))
    p('v_and_b32 v%d, 7, v%d' % (PWA, vP)); p('v_xor_b32 v%d, v%d, v%d' % (PWA, PWA, vH)); p('v_lshlrev_b32 v%d, 4, v%d' % (PWA, PWA))
    p('v_lshl_add_u32 v%d, v%d, 8, v%d' % (PWA, vP, PWA))
    p('v_add_u32 v%d, s%d, v%d' % (PWA, sLW, PWA))
    for g in range(1, 4): p('v_xor_b32 v%d, %d, v%d' % (PWA + g, g << 5, PWA))
    p('v_xor_b32 v%d, v%d, v%d' % (PRA, vT1, vT0)); p('v_lshlrev_b32 v%d, 4, v%d' % (PRA, PRA))
    p('v_lshl_add_u32 v%d, v%d, 8, v%d' % (PRA, vT0, PRA))
    p('s_lshl_b32 s%d, s%d, 12' % (sT1, sW)); p('s_add_u32 s%d, s%d, %d' % (sT1, sT1, L0)); p('v_add_u32 v%d, s%d, v%d' % (PRA, sT1, PRA))
    p('v_xor_b32 v%d, 64, v%d' % (PRA + 1, PRA)); p('v_add_u32 v%d, 1024, v%d' % (PRA + 1, PRA + 1))
    p('v_add_u32 v%d, %d, v%d' % (PRB, 3 * L_XW, PRA)); p('v_add_u32 v%d, %d, v%d' % (PRB + 1, 3 * L_XW, PRA + 1))
    D = DD; T = ET
    p('v_lshlrev_b32 v%d, 16, v%d' % (D, ED)); p('v_and_b32 v%d, s%d, v%d' % (D + 1, sMHI, ED))
    p('v_lshlrev_b32 v%d, 16, v%d' % (D + 2, ED + 1)); p('v_and_b32 v%d, s%d, v%d' % (D + 3, sMHI, ED + 1))
    for it in range(4):
        b = EB + 4 * it; m, rs = ST + 2 * it, ST + 2 * it + 1
        p('v_lshlrev_b32 v%d, 16, v%d' % (b, EX + 2 * it)); p('v_and_b32 v%d, s%d, v%d' % (b + 1, sMHI, EX + 2 * it))
        p('v_lshlrev_b32 v%d, 16, v%d' % (b + 2, EX + 2 * it + 1)); p('v_and_b32 v%d, s%d, v%d' % (b + 3, sMHI, EX + 2 * it + 1))
        for k in range(4): p('v_sub_f32 v%d, v%d, v%d' % (T + k, b + k, m))
        def rnd():
            p('v_cvt_pk_bf16_f32 v%d, v%d, v%d' % (T + 4, T, T + 1)); p('v_cvt_pk_bf16_f32 v%d, v%d, v%d' % (T + 5, T + 2, T + 3))
            p('v_lshlrev_b32 v%d, 16, v%d' % (T, T + 4)); p('v_and_b32 v%d, s%d, v%d' % (T + 1, sMHI, T + 4))
            p('v_lshlrev_b32 v%d, 16, v%d' % (T + 2, T + 5)); p('v_and_b32 v%d, s%d, v%d' % (T + 3, sMHI, T + 5))
        rnd()
        for k in range(4): p('v_mul_f32 v%d, v%d, v%d' % (T + k, T + k, rs))
        rnd()
        for k in range(4): p('v_mul_f32 v%d, v%d, v%d' % (T + k, T + k, D + k))
        rnd()
        for k in range(4): p('v_add_f32 v%d, v%d, v%d' % (b + k, b + k, T + k))
    return p.ins

def epilogue(p, ACC):
    for rt in range(2):
        for ct in range(1 if OPT.get('_ct0done') else 0, 2):
            for g in range(4):
                p('ds_write_b128 v%d, %s offset:%d' % (PWA + g, v4(ACC[(ct, rt)] + 4 * g), rt * 8192 + ct * 128))
    p('s_waitcnt lgkmcnt(0)')
    p('s_barrier')
    R = 48
    for it in range(4):
        for P in range(4):
            p('ds_read_b128 %s, v%d offset:%d' % (v4(R + 16 * it + 4 * P), (PRA if P < 3 else PRB) + (it & 1), (P % 3) * L_XW + (it >> 1) * 2048))
    for it in range(4):
        b = EB + 4 * it; r_ = R + 16 * it
        p('v_pk_add_f32 v[%d:%d], v[%d:%d], v[%d:%d]' % (r_, r_ + 1, r_, r_ + 1, r_ + 4, r_ + 5))
        p('v_pk_add_f32 v[%d:%d], v[%d:%d], v[%d:%d]' % (r_ + 2, r_ + 3, r_ + 2, r_ + 3, r_ + 6, r_ + 7))
        p('v_pk_add_f32 v[%d:%d], v[%d:%d], v[%d:%d]' % (r_ + 8, r_ + 9, r_ + 8, r_ + 9, r_ + 12, r_ + 13))
        p('v_pk_add_f32 v[%d:%d], v[%d:%d], v[%d:%d]' % (r_ + 10, r_ + 11, r_ + 10, r_ + 11, r_ + 14, r_ + 15))
        p('v_pk_add_f32 v[%d:%d], v[%d:%d], v[%d:%d]' % (b, b + 1, b, b + 1, r_, r_ + 1))
        p('v_pk_add_f32 v[%d:%d], v[%d:%d], v[%d:%d]' % (b + 2, b + 3, b + 2, b + 3, r_ + 2, r_ + 3))
        p('v_pk_add_f32 v[%d:%d], v[%d:%d], v[%d:%d]' % (b, b + 1, b, b + 1, r_ + 8, r_ + 9))
        p('v_pk_add_f32 v[%d:%d], v[%d:%d], v[%d:%d]' % (b + 2, b + 3, b + 2, b + 3, r_ + 10, r_ + 11))
        p('s_add_u32 s%d, s%d, %d' % (sT2, sOO, it * 4 * 1792))
        p('buffer_store_dwordx4 %s, v%d, %s, s%d offen%s' % (v4(b), vOO, srd(SOUT), sT2, ['', ' sc1', ' nt', ' sc0 sc1', ' sc1 nt'][OPT.get('ost', 0)]))
    if OPT['stamps']:
        stamp(p, 'end')
        p('v_readlane_b32 s%d, v%d, 0' % (sT0, vRSv)); p('s_nop 3'); p('v_writelane_b32 v%d, s%d, 60' % (vDUM, sT0))
        p('s_memrealtime s[%d:%d]' % (sP0, sP0 + 1)); p('s_load_dwordx2 s[36:37], s[0:1], 104'); p('s_waitcnt lgkmcnt(0)')
        p('v_writelane_b32 v%d, s%d, 63' % (vDUM, sP0))
        if OPT.get('amp', -1) >= 0:
            p('s_lshl_b32 s%d, s2, 2' % sT0); p('s_add_u32 s%d, s%d, s%d' % (sT0, sT0, sW)); p('s_cmp_lg_u32 s%d, %d' % (sT0, OPT['dbgwave']))
            p('s_cbranch_scc1 L_noamp')
            if OPT['amp'] == 99:
                p('s_mov_b32 s%d, %d' % (sT2, 0xF0000 + 128 * OPT['xa'])); p('buffer_load_dword v%d, v%d, %s, s%d offen sc1' % (vT0, vZ, srd(SWS), sT2))
                p('s_mov_b32 s%d, %d' % (sT2, 0xF0000 + 128 * OPT['xb'])); p('buffer_load_dword v%d, v%d, %s, s%d offen sc1' % (vT1, vZ, srd(SWS), sT2))
                p('s_waitcnt vmcnt(0)')
                p('v_readfirstlane_b32 s%d, v%d' % (sT0, vT0)); p('v_readfirstlane_b32 s%d, v%d' % (sT1, vT1))
                p('s_nop 3'); p('s_add_u32 s%d, s%d, 100' % (sT0, sT0))
            else:
                p('v_readlane_b32 s%d, v%d, %d' % (sT0, vDUM, OPT['amp'])); p('v_readlane_b32 s%d, v%d, %d' % (sT1, vDUM, OPT.get('amp0', 61)))
            p('s_nop 3')
            p('s_sub_u32 s%d, s%d, s%d' % (sT0, sT0, sT1)); p('s_mul_i32 s%d, s%d, %d' % (sT0, sT0, OPT.get('ampk', 4)))
            p('s_min_u32 s%d, s%d, 400000' % (sT0, sT0))
            p('s_memtime s[84:85]'); p('s_waitcnt lgkmcnt(0)')
            p('L_amp:')
            p('s_memtime s[86:87]'); p('s_waitcnt lgkmcnt(0)')
            p('s_sub_u32 s%d, s86, s84' % sT1); p('s_cmp_lt_u32 s%d, s%d' % (sT1, sT0)); p('s_cbranch_scc1 L_amp')
            p('L_noamp:')
        if OPT['dbg']:
            mk_srd(p, 84, 36, 256)
            p('v_readlane_b32 s%d, v%d, 61' % (sT1, vDUM))
            p('s_lshl_b32 s%d, s2, 2' % sT0); p('s_add_u32 s%d, s%d, s%d' % (sT0, sT0, sW)); p('s_cmp_lg_u32 s%d, %d' % (sT0, OPT['dbgwave']))
            p('s_cbranch_scc1 L_nodbg')
            p('v_subrev_u32 v%d, s%d, v%d' % (vT0, sT1, vDUM))
            p('v_lshlrev_b32 v%d, 2, v%d' % (vT1, vL))
            p('s_mov_b64 exec, 0xffff')
            p('buffer_store_dword v%d, v%d, s[84:87], 0 offen' % (vT0, vT1))
            p('s_mov_b64 exec, -1')
            p('L_nodbg:')
        p('s_lshl_b32 s%d, s2, 2' % sT0); p('s_add_u32 s%d, s%d, s%d' % (sT0, sT0, sW)); p('s_lshl_b32 s%d, s%d, 8' % (sT0, sT0))
        p('s_add_u32 s%d, s%d, %d' % (sT0, sT0, WS_STAMP))
        p('v_lshlrev_b32 v%d, 2, v%d' % (vT0, vL))
        p('buffer_store_dword v%d, v%d, %s, s%d offen' % (vDUM, vT0, srd(SWS), sT0))
    p('s_cmp_eq_u32 s%d, 15' % sR); p('s_cbranch_scc0 L_exit')
    p('s_cmp_eq_u32 s%d, 13' % sC); p('s_cbranch_scc0 L_exit')
    p('s_cmp_eq_u32 s%d, 3' % sW); p('s_cbranch_scc0 L_exit')
    p('s_mov_b32 s%d, %d' % (sT0, WS_EPOCH))
    p.extend(flag_group(sT0, 0))
    p('s_endpgm')

def pstamp(p, k):
    if not OPT['stamps']: return
    p('s_memtime s[90:91]'); p('s_waitcnt lgkmcnt(0)'); p('v_writelane_b32 v%d, s90, %d' % (vDUM, k))

def prep_path(p):
    SW2, SCRE, SCIM = 44, 48, 52
    sQ, sKF, sF0, sKS, sT0T, sCBK, sCTG, sFF = 8, 84, 85, 86, 87, 88, 89, 92
    p('L_prep:')
    p.reset()
    p('s_lshl_b32 s%d, s%d, 2' % (sQ, sT0)); p('s_add_u32 s%d, s%d, s%d' % (sQ, sQ, sT1)); p('s_sub_u32 s%d, s%d, 28' % (sQ, sQ))
    p('s_cmp_ge_u32 s%d, 28' % sQ); p('s_cbranch_scc1 L_exit')
    p('s_lshr_b32 s%d, s%d, 1' % (sF0, sQ)); p('s_lshl_b32 s%d, s%d, 7' % (sF0, sF0))
    p('s_and_b32 s%d, s%d, 1' % (sT0, sQ)); p('s_lshl_b32 s%d, s%d, 4' % (sT0, sT0)); p('s_add_u32 s%d, s%d, s%d' % (sF0, sF0, sT0))
    p('s_mul_i32 s%d, s%d, 896' % (sF0, sF0))
    p('s_lshl_b32 s%d, s%d, 2' % (sT0T, sW)); p('s_min_u32 s%d, s%d, 10' % (sT0T, sT0T))
    p('s_lshl_b32 s%d, s%d, 6' % (sT0, sT0T)); p('s_add_u32 s%d, s%d, s%d' % (sF0, sF0, sT0))
    p('s_mul_i32 s%d, s%d, 26624' % (sLW, sW))
    vWO = 21
    p('v_lshrrev_b32 v%d, 4, v%d' % (vWO, vL)); p('v_mul_u32_u24 v%d, 896, v%d' % (vWO, vWO))
    p('v_and_b32 v%d, 15, v%d' % (vT2, vL)); p('v_lshl_add_u32 v%d, v%d, 4, v%d' % (vWO, vT2, vWO))
    p('s_lshl_b32 s%d, s%d, 2' % (sKF, sQ)); p('s_add_u32 s%d, s%d, s%d' % (sKF, sKF, sW))
    p('s_mul_i32 s%d, s%d, 4682' % (sCBK, sKF)); p('s_lshr_b32 s%d, s%d, 16' % (sCBK, sCBK))
    p('s_mul_i32 s%d, s%d, 14' % (sT0, sCBK)); p('s_sub_u32 s%d, s%d, s%d' % (sCTG, sKF, sT0))
    p('s_waitcnt lgkmcnt(0)')
    mk_srd(p, SW2, 38, 1792 * 896)
    def w2dma(T):
        for i in range(4):
            p('s_add_u32 m0, s%d, %d' % (sLW, T * 4096 + i * 1024)); p('s_add_u32 s%d, s%d, %d' % (sT0, sF0, T * 28672 + i * 3584))
            p('buffer_load_dwordx4 v%d, %s, s%d offen lds' % (vWO, srd(SW2), sT0), tok=('w2', T))
    w2dma(0)
    mk_srd(p, SWS, 6, WS_END)
    p('buffer_load_dwordx2 v[%d:%d], v%d, %s, 0 offen sc1' % (TMP + 28, TMP + 29, vZ, srd(SWS)))
    w2dma(1)
    mk_srd(p, SLRE, 18, 896); mk_srd(p, SLIM, 20, 896); mk_srd(p, SLDT, 30, 896)
    p('v_lshlrev_b32 v%d, 1, v%d' % (vT2, vL)); p('s_lshl_b32 s%d, s%d, 7' % (sT1, sCBK))
    p('buffer_load_ushort v%d, v%d, %s, s%d offen' % (TMP + 0, vT2, srd(SLRE), sT1))
    p('buffer_load_ushort v%d, v%d, %s, s%d offen' % (TMP + 1, vT2, srd(SLIM), sT1))
    p('buffer_load_ushort v%d, v%d, %s, s%d offen' % (TMP + 2, vT2, srd(SLDT), sT1))
    w2dma(2)
    mk_srd(p, SCRE, 26, 448 * 896); mk_srd(p, SCIM, 28, 448 * 896)
    vA = 16
    p('v_lshrrev_b32 v%d, 2, v%d' % (vA, vL)); p('v_and_b32 v%d, 3, v%d' % (vA, vA))
    p('v_lshl_add_u32 v%d, v%d, 2, v%d' % (vA, vH, vA)); p('v_lshlrev_b32 v%d, 8, v%d' % (vA, vA))
    p('v_and_b32 v%d, 16, v%d' % (vT2, vL)); p('v_lshl_add_u32 v%d, v%d, 1, v%d' % (vA, vT2, vA))
    p('v_and_b32 v%d, 3, v%d' % (vT2, vL)); p('v_lshl_add_u32 v%d, v%d, 3, v%d' % (vA, vT2, vA))
    p('v_add_u32 v%d, s%d, v%d' % (vA, sLW, vA))
    vC = [17, 18, 19, 20]
    p('v_lshrrev_b32 v%d, 1, v%d' % (vT2, vP)); p('v_and_b32 v%d, 7, v%d' % (vT2, vT2))
    p('v_xor_b32 v%d, v%d, v%d' % (vT2, vT2, vH)); p('v_lshlrev_b32 v%d, 4, v%d' % (vT2, vT2))
    p('v_lshl_add_u32 v%d, v%d, 7, v%d' % (vT2, vP, vT2))
    p('v_add_u32 v%d, s%d, v%d' % (vC[0], sLW, vT2))
    for i in range(1, 4): p('v_xor_b32 v%d, %d, v%d' % (vC[i], i << 5, vC[0]))
    p('s_lshr_b32 s%d, s%d, 1' % (sKS, sT0T)); p('s_mul_i32 s%d, s%d, 168' % (sKS, sKS)); p('s_add_u32 s%d, s%d, s%d' % (sKS, sKS, sQ))
    p('s_lshl_b32 s%d, s%d, 11' % (sKS, sKS)); p('s_add_u32 s%d, s%d, %d' % (sKS, sKS, WS_W2F))
    p('s_lshl_b32 s%d, s%d, 5' % (sFF, sW)); p('s_add_u32 s%d, s%d, s%d' % (sFF, sFF, sQ)); p('s_lshl_b32 s%d, s%d, 3' % (sFF, sFF))
    p('s_mul_i32 s%d, s%d, %d' % (sT2, sCTG, 32 * 896)); p('s_add_u32 s%d, s%d, s%d' % (sT2, sT2, sT1))
    if OPT.get('ptlb', 0):
        p('v_and_b32 v%d, 3, v%d' % (vT2, vL)); p('v_mul_u32_u24 v%d, %d, v%d' % (vT2, 28 * 2048, vT2))
        p('v_lshrrev_b32 v%d, 2, v%d' % (vT3, vL)); p('v_mul_u32_u24 v%d, %d, v%d' % (vT3, 168 * 2048, vT3))
        p('v_add_u32 v%d, v%d, v%d' % (vT2, vT2, vT3))
        p('s_mov_b64 exec, 0xff')
        p('buffer_load_dword v%d, v%d, %s, s%d offen sc1' % (TMP + 12, vT2, srd(SWS), sKS), tok='ptlb')
        p('s_mov_b64 exec, -1')
    pstamp(p, 0)
    FRG = 64
    def stage(T):
        p.waitvm(('w2', T))
        for ct4 in range(4):
            for hh in range(2):
                p('ds_read_b64_tr_b16 %s, v%d offset:%d' % (v2(FRG + 16 * T + 4 * ct4 + 2 * hh), vA, T * 4096 + hh * 2048 + ct4 * 64))
        for ct4 in range(4):
            if ct4 % 2 == 0: p('s_add_u32 s%d, s%d, %d' % (sT0, sKS, ((ct4 // 2) * 168 + 28 * T) * 2048))
            p('buffer_store_dwordx4 %s, v%d, %s, s%d offen offset:%d sc1' % (v4(FRG + 16 * T + 4 * ct4), vL16, srd(SWS), sT0, (ct4 % 2) * 1024), tok=('fst', T))
    def cdma():
        for comp in range(2):
            for rg in range(4):
                p('s_add_u32 m0, s%d, %d' % (sLW, 16384 + comp * 4096 + rg * 1024))
                p('s_add_u32 s%d, s%d, %d' % (sT0, sT2, rg * 7168))
                p('buffer_load_dwordx4 v%d, %s, s%d offen lds' % (vT0 if rg % 2 == 0 else vT1, srd(SCRE if comp == 0 else SCIM), sT0), tok='c')
            if comp == 0 and PO == 0:
                p.extend(flag_group(sFF, WS_PF, ('fst', 0)))
                pstamp(p, 2)
    PO = OPT.get('pord', 0)
    if PO == 2:
        p.waitvm(('w2', 0)); w2dma(3); cdma()
    if PO == 3:
        p.waitvm(('w2', 0)); w2dma(3)
    stage(0)
    pstamp(p, 1)
    stage(1)
    stage(2)
    tag_setup(p, TMP + 28)
    if PO == 4:
        p.extend(flag_group(sFF, WS_PF, ('fst', 2)))
        pstamp(p, 2)
    if PO == 5:
        w2dma(3)
        p.extend(flag_group(sFF, WS_PF, ('fst', 2)))
        pstamp(p, 2)
    if PO < 2 or PO == 4: w2dma(3)
    if PO != 2: cdma()
    lr, li = TMP + 6, TMP + 7
    lam_from(p, TMP + 0, TMP + 1, TMP + 2, lr, li, TMP + 4, TMP + 5)
    p('v_add_f32 v%d, -1.0, v%d' % (lr, lr))
    p('v_mul_f32 v%d, v%d, v%d' % (TMP + 4, TMP + 0, TMP + 0)); p('v_fmac_f32 v%d, v%d, v%d' % (TMP + 4, TMP + 1, TMP + 1))
    p('v_rcp_f32 v%d, v%d' % (TMP + 4, TMP + 4))
    p('v_mul_f32 v%d, v%d, v%d' % (TMP + 8, lr, TMP + 0)); p('v_fmac_f32 v%d, v%d, v%d' % (TMP + 8, li, TMP + 1))
    p('v_add_f32 v%d, v%d, v%d' % (TMP + 4, TMP + 4, TMP + 4))
    p('v_mul_f32 v%d, v%d, v%d' % (TMP + 9, li, TMP + 0)); p('v_fma_f32 v%d, -v%d, v%d, v%d' % (TMP + 9, lr, TMP + 1, TMP + 9))
    p('v_mul_f32 v%d, v%d, v%d' % (TMP + 8, TMP + 8, TMP + 4)); p('v_mul_f32 v%d, v%d, v%d' % (TMP + 9, TMP + 9, TMP + 4))
    p('v_lshl_add_u32 v%d, v%d, 3, s%d' % (vT2, vL, sLW))
    p('ds_write_b64 v%d, v[%d:%d] offset:%d' % (vT2, TMP + 8, TMP + 9, 24576))
    p('v_lshl_add_u32 v%d, v%d, 6, s%d' % (vT2, vH, sLW))
    if PO in (1, 2, 3):
        p.extend(flag_group(sFF, WS_PF, ('fst', 0)))
        pstamp(p, 2)
    stage(3)
    p('s_lshl_b32 s%d, s%d, 3' % (sT0, sCBK)); p('s_add_u32 s%d, s%d, 112' % (sT0, sT0)); p('s_lshl_b32 s%d, s%d, 11' % (sKS, sT0))
    p('s_lshr_b32 s%d, s%d, 1' % (sT0, sCTG)); p('s_mul_i32 s%d, s%d, %d' % (sT0, sT0, 168 * 2048)); p('s_add_u32 s%d, s%d, s%d' % (sKS, sKS, sT0))
    p('s_and_b32 s%d, s%d, 1' % (sT0, sCTG)); p('s_lshl_b32 s%d, s%d, 10' % (sT0, sT0)); p('s_add_u32 s%d, s%d, s%d' % (sKS, sKS, sT0))
    p('s_add_u32 s%d, s%d, %d' % (sKS, sKS, WS_W2F))
    CR = 24; CF = 128; U = 56; O = 192
    p.waitvm('c')
    for g4 in range(4):
        p('ds_read_b128 %s, v%d offset:%d' % (v4(CR + 8 * g4), vC[g4], 16384))
        p('ds_read_b128 %s, v%d offset:%d' % (v4(CR + 8 * g4 + 4), vC[g4], 16384 + 4096))
        for k in range(4): p('ds_read_b128 %s, v%d offset:%d' % (v4(CF + 16 * g4 + 4 * k), vT2, 24576 + 128 * g4 + 16 * k))
        if g4 == 1: p('s_waitcnt lgkmcnt(6)')
    for g4 in range(4):
        cr, ci = CR + 8 * g4, CR + 8 * g4 + 4
        o = O + 8 * g4
        for k in range(4):
            a0, b0, a1, b1 = CF + 16 * g4 + 4 * k, CF + 16 * g4 + 4 * k + 1, CF + 16 * g4 + 4 * k + 2, CF + 16 * g4 + 4 * k + 3
            p('v_lshlrev_b32 v%d, 16, v%d' % (U, cr + k)); p('v_and_b32 v%d, s%d, v%d' % (U + 1, sMHI, cr + k))
            p('v_lshlrev_b32 v%d, 16, v%d' % (U + 2, ci + k)); p('v_and_b32 v%d, s%d, v%d' % (U + 3, sMHI, ci + k))
            p('v_mul_f32 v%d, v%d, v%d' % (U + 4, a0, U)); p('v_fma_f32 v%d, -v%d, v%d, v%d' % (U + 4, b0, U + 2, U + 4))
            p('v_mul_f32 v%d, v%d, v%d' % (U + 5, a1, U + 1)); p('v_fma_f32 v%d, -v%d, v%d, v%d' % (U + 5, b1, U + 3, U + 5))
            p('v_mul_f32 v%d, -v%d, v%d' % (U + 6, a0, U + 2)); p('v_fma_f32 v%d, -v%d, v%d, v%d' % (U + 6, b0, U, U + 6))
            p('v_mul_f32 v%d, -v%d, v%d' % (U + 7, a1, U + 3)); p('v_fma_f32 v%d, -v%d, v%d, v%d' % (U + 7, b1, U + 1, U + 7))
            p('v_cvt_pk_bf16_f32 v%d, v%d, v%d' % (o + k, U + 4, U + 5))
            p('v_cvt_pk_bf16_f32 v%d, v%d, v%d' % (o + 4 + k, U + 6, U + 7))
        if g4 == 1: p.extend(flag_group(sFF, WS_PF + 3072, ('fst', 3)))
    p('s_cmp_ge_u32 s%d, 98' % sKF); p('s_cbranch_scc1 L_prep_fin')
    for g4 in range(4):
        o = O + 8 * g4
        p('s_add_u32 s%d, s%d, %d' % (sT0, sKS, (4 * (g4 >> 1) + (g4 & 1)) * 2048))
        p('s_add_u32 s%d, s%d, 4096' % (sT1, sT0))
        p('buffer_store_dwordx4 %s, v%d, %s, s%d offen sc1' % (v4(o), vL16, srd(SWS), sT0))
        p('buffer_store_dwordx4 %s, v%d, %s, s%d offen sc1' % (v4(o + 4), vL16, srd(SWS), sT1))
    p('s_lshl_b32 s%d, s%d, 3' % (sT0, sCTG)); p('s_add_u32 s%d, s%d, s%d' % (sT0, sT0, sCBK)); p('s_lshl_b32 s%d, s%d, 3' % (sT0, sT0))
    p('s_waitcnt vmcnt(0)')
    p.extend(flag_group(sT0, WS_PF + 4096))
    p('L_prep_fin:')
    if OPT['stamps']:
        pstamp(p, 3)
        p('v_writelane_b32 v%d, s%d, 62' % (vDUM, SOUT)); p('v_writelane_b32 v%d, s%d, 61' % (vDUM, SOUT + 2))
        p('s_lshl_b32 s%d, s2, 2' % sT0); p('s_add_u32 s%d, s%d, s%d' % (sT0, sT0, sW)); p('s_lshl_b32 s%d, s%d, 8' % (sT0, sT0))
        p('s_add_u32 s%d, s%d, %d' % (sT0, sT0, WS_STAMP))
        p('v_lshlrev_b32 v%d, 2, v%d' % (vT0, vL))
        p('buffer_store_dword v%d, v%d, %s, s%d offen' % (vDUM, vT0, srd(SWS), sT0))
    p('L_exit:')
    p('s_endpgm')

HEADER = open('parallel_sum__ssm_conv_s5__dense_activation_silu__prompt.s.ref').read().split('; Override launch')[0]

def build():
    p = Prog()
    prologue_common(p)
    main_path(p)
    for q in retry_blocks:
        p.reset(); p.extend(q.ins)
    prep_path(p)
    if OPT.get('abl'):
        out = []; cnt = 0
        lo = stamp_slots.index(OPT.get('ablo', 'T0') if isinstance(OPT.get('ablo', 'T0'), str) else stamp_slots[OPT['ablo']]); hi_ = stamp_slots.index('T2') if 'abhi' not in OPT else OPT['abhi']
        inside = False
        for i in p.ins:
            if i.op == 'v_writelane_b32':
                k = int(i.text.split(',')[-1])
                if k == lo: inside = True
                if k == hi_: inside = False
                out.append(i); continue
            a = OPT['abl']
            if inside and (a & 64) and (i.kind in ('vload', 'dma', 'vstore', 'needvm') or (i.kind == 'branch' and 'retry' in i.text)): continue
            if inside and (a & 128) and i.kind == 'salu' and 'exec' not in i.text and 'vcc' not in i.text: continue
            if inside and i.note != 'glue' and (((a & 1) and i.kind in ('vload', 'dma') and 'dwordx4' in i.text and 'sc1' in i.text) or ((a & 2) and i.kind == 'trans') or ((a & 4) and i.kind == 'valu')
                           or ((a & 8) and i.kind == 'dsread') or ((a & 16) and i.kind == 'vstore' and 'dwordx4' in i.text) or ((a & 32) and i.kind == 'mfma')):
                continue
            out.append(i)
        p.ins = out
    ins = finalize(p)
    if OPT.get('wlo') is not None:
        out = []; inside = False; slot = 30
        for i in ins:
            if i.op == 'v_writelane_b32' and 's%d,' % sP0 in i.text:
                k = int(i.text.split(',')[-1])
                if k == OPT['wlo']: inside = True
                if k == OPT['whi']: inside = False
            if inside and i.kind in ('dma', 'vload', 'vstore') and OPT.get('wv'): OPT['wskip'] = OPT.get('wskip', 0) - 1
            if inside and slot < 59 and ((i.kind in ('dma', 'vload', 'vstore') and OPT.get('wskip', 0) < 0) if OPT.get('wv') else ((i.kind == 'wait' and 'vmcnt' in i.text) or i.kind == 'barrier')):
                out += [Ins('s_memtime s[62:63]')] if False else []
                out += [Ins('s_memtime s[64:65]'), i, Ins('s_memtime s[72:73]'), Ins('s_waitcnt lgkmcnt(0)'),
                        Ins('v_writelane_b32 v%d, s64, %d' % (vDUM, slot)), Ins('v_writelane_b32 v%d, s72, %d' % (vDUM, slot + 1))]
                print('W%d: %s' % (slot, i.text)); slot += 2
            else: out.append(i)
        ins = out
    ins = [i for i in ins if not i.text.startswith(('; pad', '; need', '; after', '; at'))]
    body = text_of(ins)
    s = HEADER
    s += '; @launch grid=(256,1,1) block=(256,1,1) lds=%d\n' % LDS_BYTES
    s += '.amdgcn_target "amdgcn-amd-amdhsa--gfx950"\n.text\n.globl %s\n.p2align 8\n.type %s,@function\n%s:\n' % (KNAME, KNAME, KNAME)
    s += body
    s += 'L_code_end:\n'
    s += '.section .rodata,"a"\n.p2align 6\n.amdhsa_kernel %s\n' % KNAME
    s += '  .amdhsa_next_free_vgpr 512\n  .amdhsa_next_free_sgpr 102\n  .amdhsa_accum_offset 256\n  .amdhsa_group_segment_fixed_size 0\n'
    s += '  .amdhsa_kernarg_size 120\n  .amdhsa_user_sgpr_count 2\n  .amdhsa_user_sgpr_kernarg_segment_ptr 1\n  .amdhsa_system_sgpr_workgroup_id_x 1\n'
    s += '  .amdhsa_float_denorm_mode_32 3\n'
    s += '.end_amdhsa_kernel\n'
    return s, ins

if __name__ == '__main__':
    s, ins = build()
    open(sys.argv[1], 'w').write(s)
    from collections import Counter
    c = Counter(i.kind for i in ins)
    print('instructions:', sum(v for k, v in c.items() if k != 'label'), dict(c))
    if OPT['stamps']: print('stamps:', ','.join(stamp_slots))
```
